```python
import torch

def _softmax(x, axis=-1):
    return torch.softmax(x, dim=axis)
def _gelu(x):
    return torch.nn.functional.gelu(x, approximate="tanh")
def _silu(x):
    return torch.nn.functional.silu(x)
def _sigmoid(x):
    return torch.sigmoid(x)
def _layernorm(x, axis=-1, eps=1e-5):
    m = x.mean(dim=axis, keepdim=True)
    v = x.var(dim=axis, keepdim=True, unbiased=False)
    return (x - m) / torch.sqrt(v + eps)
def _scatter_add(tgt, idx, src, axis=0):
    return tgt.clone().index_add_(axis, idx, src)
def _segment_sum(src, seg, n):
    out = torch.zeros((n,) + src.shape[1:], dtype=src.dtype)
    return out.index_add_(0, seg, src)
def _pad(x, pw):
    flat = tuple(v for pair in reversed(pw) for v in pair)
    return torch.nn.functional.pad(x, flat)

kernel_name = 'recurrent_scan__mha_block_cached__moe_arch_mod__decode'

def setup_inputs():

    _w = (lambda a: (lambda t: t.to(torch.bfloat16) if t.is_floating_point() else t)(torch.as_tensor(a)))
    def _A_setup():
        B, Sq, D = 2, 1, 640
        H, Sk, Dh = 32, 8192, 192
        return {
            "x": _w((lambda *s: torch.randn(*s, dtype=torch.bfloat16) * 0.05)(B, Sq, D)),
            "k_cache": _w((lambda *s: torch.randn(*s, dtype=torch.bfloat16) * 1.6)(B, H, Sk, Dh)),
            "v_cache": _w((lambda *s: torch.randn(*s, dtype=torch.bfloat16) * 0.2)(B, H, Sk, Dh)),
            "wq": _w((lambda *s: torch.randn(*s, dtype=torch.bfloat16) * 1.6)(D, H * Dh) * (D ** -0.5)),
            "wo": _w((lambda *s: torch.randn(*s, dtype=torch.bfloat16) * 0.2)(H * Dh, D) * ((H * Dh) ** -0.5)),
        }
    _A_in = _A_setup()

    def _B_setup():
        B, S, D, F, C = 2, 1, 640, 1536, 1
        return {
            "x": _w((lambda *s: torch.randn(*s, dtype=torch.bfloat16) * 0.05)(B, S, D)),
            "w_r": _w((lambda *s: torch.randn(*s, dtype=torch.bfloat16) * 0.1)(D)),
            "w_gate": _w((lambda *s: torch.randn(*s, dtype=torch.bfloat16) * 0.1)(D, F)),
            "w_up": _w((lambda *s: torch.randn(*s, dtype=torch.bfloat16) * 0.1)(D, F)),
            "w_down": _w((lambda *s: torch.randn(*s, dtype=torch.bfloat16) * 0.1)(F, D)),
        }
    _B_in = _B_setup()

    return {
        "A_x": _A_in["x"],
        "A_k_cache": _A_in["k_cache"],
        "A_v_cache": _A_in["v_cache"],
        "A_wq": _A_in["wq"],
        "A_wo": _A_in["wo"],
        "B_x": _B_in["x"],
        "B_w_r": _B_in["w_r"],
        "B_w_gate": _B_in["w_gate"],
        "B_w_up": _B_in["w_up"],
        "B_w_down": _B_in["w_down"],
    }

def reference(A_x, A_k_cache, A_v_cache, A_wq, A_wo, B_x, B_w_r, B_w_gate, B_w_up, B_w_down):
    def _A_ref(x, k_cache, v_cache, wq, wo):
        B, Sq, D = x.shape
        H, Dh = 32, 192
        q = (lambda x, *d: x.permute(*d))((x @ wq).reshape(B, Sq, H, Dh), 0, 2, 1, 3)
        scores = torch.einsum("bhqd,bhkd->bhqk", q, k_cache) * (Dh ** -0.5)
        p = _softmax(scores, axis=-1)
        o = torch.einsum("bhqk,bhkd->bhqd", p, v_cache)
        return (lambda x, *d: x.permute(*d))(o, 0, 2, 1, 3).reshape(B, Sq, H * Dh) @ wo

    def _B_ref(x, w_r, w_gate, w_up, w_down):
        B, S, D = x.shape
        C = 1
        r = x @ w_r
        idx = torch.argsort(-r, axis=-1)[:, :C]
        idx_e = (lambda x, n, axis: torch.repeat_interleave(x, n, dim=axis))(idx.reshape(B, C, 1), D, axis=2)
        x_sel = (lambda x, i, axis: torch.take_along_dim(x, i, dim=axis))(x, idx_e, axis=1)
        g = _silu(x_sel @ w_gate)
        u = x_sel @ w_up
        y = (g * u) @ w_down
        r_sel = _sigmoid((lambda x, i, axis: torch.take_along_dim(x, i, dim=axis))(r, idx, axis=1))
        y = y * r_sel.reshape(B, C, 1)
        b_off = (torch.arange(B) * S).reshape(B, 1)
        flat_idx = (idx + b_off).reshape(B * C)
        zero = (x * 0.0).reshape(B * S, D)
        upd = _scatter_add(zero, flat_idx, y.reshape(B * C, D), axis=0)
        return x + upd.reshape(B, S, D)

    x = A_x
    xn = _layernorm(x, axis=-1)
    s = _A_ref(xn, A_k_cache, A_v_cache, A_wq, A_wo)
    g = _silu(_B_ref(xn, B_w_r, B_w_gate, B_w_up, B_w_down))
    return x + s * g
```

```python
import sys

KNAME = "recurrent_scan__mha_block_cached__moe_arch_mod__decode_kernel"
TB = 201326592
CH = 786432
STEP = 12288

P_OFF = 0
ST_OFF = 256 * 2560
Y_OFF = ST_OFF + 64 * 128
WS_USED = Y_OFF + 24 * 5120
STAMP_OFF = 1 << 20

L_XN = 0
L_QP = 2560
L_QB = L_QP + 8 * 768 + 256
L_SC = L_QB + 4 * 512
OS = 416
L_O = L_SC + 4 * 1152
L_SCALE = L_O + 8 * OS
L_HB = L_SCALE + 64
L_WX = (L_HB + 256 + 1023) // 1024 * 1024
LDS_BYTES = L_WX + 4 * 12 * 1024

LOG2E = 0x3fb8aa3b
SCALE_F32 = 0x3d93cd3a
import struct
assert struct.unpack("<I", struct.pack("<f", 192 ** -0.5))[0] == SCALE_F32, hex(struct.unpack("<I", struct.pack("<f", 192 ** -0.5))[0])
def f32(x): return "0x%08x" % struct.unpack("<I", struct.pack("<f", x))[0]


class G:
    def __init__(self, R=8, kvflags="nt", wflags="", moeflags="nt", rot=1, stamps=False, poll_max=1 << 18):
        self.o = []
        self.R = R
        self.kvf = kvflags
        self.wf = wflags
        self.mf = moeflags
        self.rot = rot
        self.stamps = stamps
        self.poll_max = poll_max
        self.nlab = 0

    def a(self, s):
        for ln in s.split("\n"):
            ln = ln.strip()
            if ln:
                self.o.append(("" if ln.endswith(":") else "    ") + ln)

    def lab(self, p="L"):
        self.nlab += 1
        return f"{p}_{self.nlab}"

    def srd(self, q, lo, nbytes):
        self.a(f"s_mov_b32 s{q}, s{lo}\ns_mov_b32 s{q+1}, s{lo+1}\ns_mov_b32 s{q+2}, {nbytes}\ns_mov_b32 s{q+3}, 0x20000")

    def dpp(self, op, d, s0, s1, ctrl):
        self.a(f"{op}_dpp v{d}, v{s0}, v{s1} {ctrl} row_mask:0xf bank_mask:0xf")

    def row_reduce(self, op, v, steps=(1, 2, 4, 8)):
        for s in steps:
            self.a("s_nop 1")
            self.dpp(op, v, v, v, f"row_ror:{s}")

    def swap_reduce(self, op, v, t, which):
        self.a(f"v_mov_b32 v{t}, v{v}\ns_nop 1\nv_permlane{which}_swap_b32 v{v}, v{t}\ns_nop 1\n{op} v{v}, v{v}, v{t}")

    def stamp(self, idx, vt, st=90):
        if not self.stamps:
            return
        self.a(f"""s_memrealtime s[{st}:{st+1}]
        s_lshl_b32 s{st+2}, s2, 3
        s_add_u32 s{st+2}, s{st+2}, s3
        s_lshl_b32 s{st+2}, s{st+2}, 7
        s_add_u32 s{st+2}, s{st+2}, {STAMP_OFF + idx*8}
        s_waitcnt lgkmcnt(0)
        v_mov_b32 v{vt}, s{st}
        v_mov_b32 v{vt+1}, s{st+1}
        v_mov_b32 v{vt+2}, 0
        s_mov_b64 exec, 1
        buffer_store_dwordx2 v[{vt}:{vt+1}], v{vt+2}, s[56:59], s{st+2} offen
        s_mov_b64 exec, -1""")

    def selectors(self, vL, base, t0, t1, t2):
        a = self.a
        a(f"""v_and_b32 v{t0}, 1, v{vL}
        v_cmp_eq_u32 vcc, 1, v{t0}
        v_mov_b32 v{t0}, 0x0c0c0100
        v_mov_b32 v{t1}, 0x01000c0c
        v_cndmask_b32 v{t0}, v{t0}, v{t1}, vcc
        v_mov_b32 v{t1}, 0x0c0c0302
        v_mov_b32 v{t2}, 0x03020c0c
        v_cndmask_b32 v{t1}, v{t1}, v{t2}, vcc
        v_bfe_u32 v{t2}, v{vL}, 1, 2""")
        for j in range(4):
            a(f"""v_cmp_eq_u32 vcc, {j}, v{t2}
            v_mov_b32 v{base+j}, 0x0c0c0c0c
            v_mov_b32 v{base+4+j}, 0x0c0c0c0c
            v_cndmask_b32 v{base+j}, v{base+j}, v{t0}, vcc
            v_cndmask_b32 v{base+4+j}, v{base+4+j}, v{t1}, vcc""")

    def buildA(self, A, P, hi, sel):
        for j in range(4):
            self.a(f"v_perm_b32 v{A+j}, v{P}, v{P}, v{sel + (4 if hi else 0) + j}")

    def mfma(self, D, A, B, C):
        c = "0" if C is None else f"v[{C}:{C+3}]"
        self.a(f"v_mfma_f32_16x16x32_bf16 v[{D}:{D+3}], v[{A}:{A+3}], v[{B}:{B+3}], {c}")

    def rbf(self, v):
        self.a(f"v_cvt_pk_bf16_f32 v{v}, v{v}, v{v}\nv_lshlrev_b32 v{v}, 16, v{v}")

    def merge4(self, X):
        a = self.a
        a(f"""s_nop 1
        v_permlane16_swap_b32 v{X}, v{X+1}
        v_permlane16_swap_b32 v{X+2}, v{X+3}
        s_nop 1
        v_add_f32 v{X}, v{X}, v{X+1}
        v_add_f32 v{X+2}, v{X+2}, v{X+3}
        s_nop 1
        v_permlane32_swap_b32 v{X}, v{X+2}
        s_nop 1
        v_add_f32 v{X}, v{X}, v{X+2}""")
        self.row_reduce("v_add_f32", X, steps=(4, 8))

    def wait_c0(self, vt):
        L = self.lab("c0")
        Ld = self.lab("c0d")
        self.srd(60, 38, 256)
        self.a(f"""s_mov_b32 s12, {self.poll_max}
        v_mov_b32 v{vt+1}, 0
        {L}:
        buffer_load_dword v{vt}, v{vt+1}, s[60:63], 0 offen sc1
        s_waitcnt vmcnt(0)
        v_readfirstlane_b32 s13, v{vt}
        s_cmp_ge_u32 s13, 256
        s_cbranch_scc1 {Ld}
        s_sleep 8
        s_sub_u32 s12, s12, 1
        s_cmp_gt_u32 s12, 0
        s_cbranch_scc1 {L}
        {Ld}:""")

    def gen(self):
        a = self.a
        R = self.R
        a(f"""s_cmp_ge_u32 s2, 256
        s_cbranch_scc1 L_end
        s_load_dwordx16 s[16:31], s[0:1], 0
        s_load_dwordx8 s[32:39], s[0:1], 64
        s_load_dwordx2 s[40:41], s[0:1], 96
        v_lshrrev_b32 v1, 6, v0
        v_and_b32 v0, 63, v0
        v_readfirstlane_b32 s3, v1
        s_and_b32 s9, s2, 7
        s_lshr_b32 s10, s2, 3
        s_lshl_b32 s4, s9, 2
        s_lshr_b32 s11, s10, 3
        s_add_u32 s4, s4, s11
        s_bfe_u32 s5, s10, 0x10002
        s_and_b32 s6, s10, 3
        s_lshl_b32 s8, s5, 5
        s_add_u32 s8, s8, s4
        s_lshl_b32 s7, s8, 2
        s_add_u32 s7, s7, s6
        s_cmp_ge_u32 s3, 4
        s_cbranch_scc1 L_H""")
        self.gen_S()
        a("L_H:")
        self.gen_H()
        a("L_end:\ns_endpgm")

    def gen_S(self):
        a = self.a
        R = self.R
        NIT = 64 // R
        vL = 0
        vOFF, vSCW, vSCR, vT0, vT1, vT2, vT3, vOW = 1, 2, 3, 4, 5, 6, 7, 8
        vA0, vA1 = 9, 10
        vQ = 12
        vSEL = 24
        vACC = 32
        vA = 44
        vP = 52
        RING = 64
        assert RING + R * 12 <= 256
        sOFF, sBEG, sEND, sSTART, sIT = 42, 43, 64, 65, 66
        a(f"""v_lshrrev_b32 v{vT0}, 3, v{vL}
        v_and_b32 v{vT1}, 7, v{vL}
        v_mul_u32_u24 v{vOFF}, 384, v{vT0}
        v_lshl_add_u32 v{vOFF}, v{vT1}, 4, v{vOFF}
        s_mul_i32 s9, s3, 3072
        v_add_u32 v{vOFF}, s9, v{vOFF}
        s_mul_i32 s{sBEG}, s7, {CH}
        s_add_u32 s{sEND}, s{sBEG}, {CH}
        s_mul_i32 s9, s7, {self.rot}
        s_and_b32 s9, s9, 63
        s_mul_i32 s9, s9, {STEP}
        s_add_u32 s{sSTART}, s{sBEG}, s9
        s_mov_b32 s{sOFF}, s{sSTART}
        s_waitcnt lgkmcnt(0)""")
        self.srd(52, 18, TB)

        def load(slot):
            for j in range(3):
                r = RING + (slot * 3 + j) * 4
                a(f"buffer_load_dwordx4 v[{r}:{r+3}], v{vOFF}, s[52:55], s{sOFF} offen offset:{128*j} {self.kvf}")
            a(f"""s_add_u32 s{sOFF}, s{sOFF}, {STEP}
            s_cmp_ge_u32 s{sOFF}, s{sEND}
            s_cselect_b32 s{sOFF}, s{sBEG}, s{sOFF}""")
        for s in range(R):
            load(s)
        self.srd(56, 40, 0x200000)
        self.stamp(0, vA)
        self.selectors(vL, vSEL, vT2, vT3, vOW)
        a(f"""s_mul_i32 s9, s3, 1152
        s_add_u32 s9, s9, {L_SC}
        v_mul_u32_u24 v{vSCW}, 144, v{vT0}
        v_add_u32 v{vSCW}, s9, v{vSCW}
        v_mov_b32 v{vSCR}, v{vSCW}""")
        a(f"""v_lshrrev_b32 v{vT2}, 5, v{vL}
        s_lshl_b32 s9, s3, 1
        v_add_u32 v{vT2}, s9, v{vT2}
        v_mul_u32_u24 v{vOW}, {OS}, v{vT2}
        v_lshl_add_u32 v{vOW}, v{vT1}, 4, v{vOW}
        v_bfe_u32 v{vT2}, v{vL}, 4, 1
        v_lshl_add_u32 v{vOW}, v{vT2}, 3, v{vOW}
        v_add_u32 v{vOW}, {L_O}, v{vOW}""")
        a("s_barrier")
        self.stamp(1, vA)
        T = 32
        a(f"v_lshlrev_b32 v{vT2}, 4, v{vL}")
        for p in range(8):
            a(f"ds_read_b128 v[{T+4*p}:{T+4*p+3}], v{vT2} offset:{L_QP + p*768}")
        a(f"""s_lshl_b32 s9, s3, 9
        s_add_u32 s9, s9, {L_QB}
        v_lshlrev_b32 v{vT3}, 3, v{vL}
        v_add_u32 v{vT3}, s9, v{vT3}
        v_lshlrev_b32 v{vT2}, 4, v{vT1}
        v_add_u32 v{vT2}, s9, v{vT2}""")
        for p in range(1, 8):
            a(f"s_waitcnt lgkmcnt({7-p})")
            for r in range(4):
                a(f"v_add_f32 v{T+r}, v{T+r}, v{T+4*p+r}")
        a(f"""v_cvt_pk_bf16_f32 v{T}, v{T}, v{T+1}
        v_cvt_pk_bf16_f32 v{T+1}, v{T+2}, v{T+3}
        ds_write_b64 v{vT3}, v[{T}:{T+1}]
        s_waitcnt lgkmcnt(0)""")
        for j in range(3):
            a(f"ds_read_b128 v[{vQ+4*j}:{vQ+4*j+3}], v{vT2} offset:{128*j}")
        a(f"s_mov_b32 s{sIT}, 0\ns_mov_b32 s10, {SCALE_F32}\ns_waitcnt lgkmcnt(0)")
        a("L_kloop:")
        a(f"""s_cmp_eq_u32 s{sIT}, {NIT-1}
        s_cbranch_scc0 L_k1
        s_mov_b32 s52, s20
        s_mov_b32 s53, s21
        L_k1:""")
        for s in range(0, R, 2):
            a(f"s_waitcnt vmcnt({3*R-6})")
            ra, rb = RING + s * 12, RING + (s + 1) * 12
            for i in range(12):
                c0 = "0" if i == 0 else f"v{vA0}"
                c1 = "0" if i == 0 else f"v{vA1}"
                a(f"v_dot2_f32_bf16 v{vA0}, v{ra+i}, v{vQ+i}, {c0}")
                a(f"v_dot2_f32_bf16 v{vA1}, v{rb+i}, v{vQ+i}, {c1}")
            load(s)
            self.dpp("v_add_f32", vA0, vA0, vA0, "quad_perm:[1,0,3,2]")
            self.dpp("v_add_f32", vA1, vA1, vA1, "quad_perm:[1,0,3,2]")
            load(s + 1)
            self.dpp("v_add_f32", vA0, vA0, vA0, "quad_perm:[2,3,0,1]")
            self.dpp("v_add_f32", vA1, vA1, vA1, "quad_perm:[2,3,0,1]")
            a("s_nop 0")
            self.dpp("v_add_f32", vA0, vA0, vA0, "row_half_mirror")
            self.dpp("v_add_f32", vA1, vA1, vA1, "row_half_mirror")
            a(f"""v_cvt_pk_bf16_f32 v{vT2}, v{vA0}, v{vA1}
            v_lshlrev_b32 v{vA0}, 16, v{vT2}
            v_and_b32 v{vA1}, 0xffff0000, v{vT2}
            v_mul_f32 v{vA0}, s10, v{vA0}
            v_mul_f32 v{vA1}, s10, v{vA1}
            v_cvt_pk_bf16_f32 v{vT2}, v{vA0}, v{vA1}
            ds_write_b32 v{vSCW}, v{vT2} offset:{(s//2)*4}""")
        a(f"""v_add_u32 v{vSCW}, {2*R}, v{vSCW}
        s_add_u32 s{sIT}, s{sIT}, 1
        s_cmp_lt_u32 s{sIT}, {NIT}
        s_cbranch_scc1 L_kloop""")
        self.stamp(2, vA)
        F = 32
        a(f"""v_lshl_add_u32 v{vT2}, v{vT1}, 4, v{vSCR}
        s_waitcnt lgkmcnt(0)
        ds_read_b128 v[40:43], v{vT2}
        s_waitcnt lgkmcnt(0)""")
        for i in range(4):
            a(f"v_lshlrev_b32 v{F+2*i}, 16, v{40+i}\nv_and_b32 v{F+2*i+1}, 0xffff0000, v{40+i}")
        a(f"""v_max3_f32 v{vA0}, v{F}, v{F+1}, v{F+2}
        v_max3_f32 v{vA0}, v{vA0}, v{F+3}, v{F+4}
        v_max3_f32 v{vA0}, v{vA0}, v{F+5}, v{F+6}
        v_max_f32 v{vA0}, v{vA0}, v{F+7}""")
        self.row_reduce("v_max_f32", vA0)
        self.swap_reduce("v_max_f32", vA0, vT3, 16)
        self.swap_reduce("v_max_f32", vA0, vT3, 32)
        for i in range(8):
            a(f"v_sub_f32 v{F+i}, v{F+i}, v{vA0}\nv_mul_f32 v{F+i}, {LOG2E}, v{F+i}")
        for i in range(8):
            a(f"v_exp_f32 v{F+i}, v{F+i}")
        a("s_nop 0")
        a(f"v_add_f32 v{vA1}, v{F}, v{F+1}")
        for i in range(2, 8):
            a(f"v_add_f32 v{vA1}, v{vA1}, v{F+i}")
        for i in range(4):
            a(f"v_cvt_pk_bf16_f32 v{40+i}, v{F+2*i}, v{F+2*i+1}")
        a(f"ds_write_b128 v{vT2}, v[40:43]")
        self.row_reduce("v_add_f32", vA1)
        self.swap_reduce("v_add_f32", vA1, vT3, 16)
        self.swap_reduce("v_add_f32", vA1, vT3, 32)
        a(f"""v_mov_b32 v{vT2}, v{vA0}
        v_mov_b32 v{vT3}, v{vA1}
        s_lshl_b32 s9, s7, 5
        s_lshl_b32 s11, s3, 3
        s_add_u32 s9, s9, s11
        s_add_u32 s9, s9, {ST_OFF}
        v_mov_b32 v{vA0}, 0
        s_mov_b64 exec, 1
        buffer_store_dwordx2 v[{vT2}:{vT3}], v{vA0}, s[56:59], s9 offen sc1
        s_mov_b64 exec, -1""")
        for i in range(12):
            a(f"v_mov_b32 v{vACC+i}, 0")
        a(f"s_mov_b32 s{sIT}, 0\ns_waitcnt lgkmcnt(0)")
        self.stamp(3, vA)
        a("L_vloop:")
        if R == 8:
            a(f"ds_read_b128 v[{vP}:{vP+3}], v{vSCR}")
        else:
            a(f"ds_read_b128 v[{vP}:{vP+3}], v{vSCR}\nds_read_b128 v[{vP+4}:{vP+7}], v{vSCR} offset:16")
        a(f"""s_cmp_eq_u32 s{sIT}, {NIT-1}
        s_cbranch_scc0 L_v1
        s_mov_b32 s54, 0
        L_v1:
        v_add_u32 v{vSCR}, {2*R}, v{vSCR}
        s_waitcnt lgkmcnt(0)""")
        for s in range(R):
            A = vA + 4 * (s & 1)
            self.buildA(A, vP + s // 2, s & 1, vSEL)
            a(f"s_waitcnt vmcnt({3*R-3})\ns_nop 0")
            for j in range(3):
                self.mfma(vACC + 4 * j, A, RING + (s * 3 + j) * 4, vACC + 4 * j)
            load(s)
        a(f"""s_add_u32 s{sIT}, s{sIT}, 1
        s_cmp_lt_u32 s{sIT}, {NIT}
        s_cbranch_scc1 L_vloop""")
        a("s_nop 7")
        for j in range(3):
            a(f"""v_cvt_pk_bf16_f32 v{vA+2*j}, v{vACC+4*j}, v{vACC+4*j+1}
            v_cvt_pk_bf16_f32 v{vA+2*j+1}, v{vACC+4*j+2}, v{vACC+4*j+3}""")
        a("s_mov_b32 exec_lo, 0x00ff00ff\ns_mov_b32 exec_hi, 0xff00ff00")
        for j in range(3):
            a(f"ds_write_b64 v{vOW}, v[{vA+2*j}:{vA+2*j+1}] offset:{128*j}")
        a("s_mov_b64 exec, -1")
        a(f"""v_and_b32 v{vT0}, 7, v{vL}
        v_mul_u32_u24 v{vT0}, {OS}, v{vT0}
        v_lshrrev_b32 v{vT1}, 4, v{vL}
        v_lshl_add_u32 v{vT0}, v{vT1}, 4, v{vT0}
        v_and_b32 v{vT2}, 1, v{vT1}
        v_and_b32 v{vT3}, 15, v{vL}
        v_lshl_add_u32 v{vT3}, v{vT3}, 1, v{vT2}
        v_lshlrev_b32 v{vT3}, 2, v{vT3}
        v_lshlrev_b32 v{vT2}, 3, v{vT2}
        s_mul_i32 s9, s3, 12288
        s_add_u32 s9, s9, {L_WX}
        v_lshlrev_b32 v{vT1}, 4, v{vL}
        v_add_u32 v{vT1}, s9, v{vT1}
        s_mul_i32 s9, s7, 2560
        s_lshl_b32 s11, s3, 7
        s_add_u32 s9, s9, s11
        s_add_u32 s9, s9, {P_OFF + 2048}
        s_waitcnt vmcnt(0) lgkmcnt(0)""")
        self.stamp(4, 12)
        a("s_barrier")
        AA, BB, D0, D1, SCL = 64, 96, 32, 36, 40
        for k in range(6):
            a(f"ds_read_b128 v[{AA+4*k}:{AA+4*k+3}], v{vT0} offset:{L_O + 64*k}")
            a(f"ds_read_b128 v[{BB+8*k}:{BB+8*k+3}], v{vT1} offset:{2048*k}")
            a(f"ds_read_b128 v[{BB+8*k+4}:{BB+8*k+7}], v{vT1} offset:{2048*k+1024}")
            if k == 3:
                a("s_waitcnt lgkmcnt(6)")
        a(f"ds_read_b64 v[{SCL}:{SCL+1}], v{vT2} offset:{L_SCALE}")
        for k in range(6):
            a(f"s_waitcnt lgkmcnt({min(15, 3*(5-k)+1)})")
            self.mfma(D0, AA + 4 * k, BB + 8 * k, None if k == 0 else D0)
            self.mfma(D1, AA + 4 * k, BB + 8 * k + 4, None if k == 0 else D1)
        a("s_waitcnt lgkmcnt(0)\ns_nop 7")
        for D in (D0, D1):
            a(f"""v_add_f32 v{D}, v{D}, v{D+1}
            v_add_f32 v{D+2}, v{D+2}, v{D+3}
            v_mul_f32 v{D}, v{D}, v{SCL}
            v_fmac_f32 v{D}, v{D+2}, v{SCL+1}""")
        a(f"""s_nop 1
        v_permlane16_swap_b32 v{D0}, v{D1}
        s_nop 1
        v_add_f32 v{D0}, v{D0}, v{D1}
        s_mov_b32 exec_hi, 0
        buffer_store_dword v{D0}, v{vT3}, s[56:59], s9 offen sc1
        s_mov_b64 exec, -1""")
        self.stamp(5, 12)
        a("s_endpgm")

    def gen_H(self):
        a = self.a
        vL = 0
        vT0, vT1, vT2, vT3, vT4, vT5, vW = 1, 2, 3, 4, 5, 6, 7
        vX = 8
        vSEL = 18
        vF = 28
        vA, vACC = 28, 36
        vG, vXC, vOUTA, vPA = 48, 49, 50, 51
        vE = 52
        TI = 64
        a("s_sub_u32 s3, s3, 4")
        a(f"""v_lshrrev_b32 v{vT0}, 5, v{vL}
        v_mul_u32_u24 v{vT0}, 1280, v{vT0}
        v_and_b32 v{vT1}, 31, v{vL}
        v_lshl_add_u32 v{vT0}, v{vT1}, 3, v{vT0}
        v_lshrrev_b32 v{vT1}, 3, v{vL}
        s_mov_b32 s9, {80*12288}
        v_mul_lo_u32 v{vW}, v{vT1}, s9
        v_and_b32 v{vT2}, 7, v{vL}
        v_lshl_add_u32 v{vW}, v{vT2}, 4, v{vW}
        s_mul_i32 s9, s4, 384
        s_mul_i32 s10, s3, {20*12288}
        s_add_u32 s9, s9, s10
        v_add_u32 v{vW}, s9, v{vW}
        s_waitcnt lgkmcnt(0)""")
        self.srd(60, 16, 2560)
        self.srd(44, 22, 640 * 12288)
        for t in range(5):
            a(f"buffer_load_dwordx2 v[{vX+2*t}:{vX+2*t+1}], v{vT0}, s[60:63], 0 offen offset:{256*t}")

        def wq_load(G, slot):
            a(f"s_mov_b32 s9, {G*12288}")
            for j in range(3):
                r = TI + (slot * 3 + j) * 4
                a(f"buffer_load_dwordx4 v[{r}:{r+3}], v{vW}, s[44:47], s9 offen offset:{128*j} {self.wf}")
        for G in range(16):
            wq_load(G, G)
        self.srd(56, 40, 0x200000)
        a(f"""v_mov_b32 v{vE}, -1
        v_mov_b32 v{vE+1}, -1
        v_mov_b32 v{vE+2}, -1
        v_mov_b32 v{vE+3}, -1
        v_lshlrev_b32 v{vT3}, 4, v{vL}
        s_mul_i32 s9, s7, 2560
        s_lshl_b32 s10, s3, 10
        s_add_u32 s9, s9, s10
        s_lshl_b32 s10, s7, 5
        s_add_u32 s10, s10, {ST_OFF}
        s_cmp_eq_u32 s3, 3
        s_cselect_b32 s9, s10, s9
        s_mov_b32 exec_lo, -1
        s_cselect_b32 exec_lo, 3, -1
        s_cmp_ge_u32 s3, 2
        s_cselect_b32 exec_hi, 0, -1
        buffer_store_dwordx4 v[{vE}:{vE+3}], v{vT3}, s[56:59], s9 offen sc1
        s_mov_b64 exec, -1
        s_cmp_ge_u32 s2, 24
        s_cbranch_scc1 L_nopy
        s_mul_i32 s9, s2, 5120
        s_mul_i32 s10, s3, 1280
        s_add_u32 s9, s9, s10
        s_add_u32 s9, s9, {Y_OFF}
        buffer_store_dwordx4 v[{vE}:{vE+3}], v{vT3}, s[56:59], s9 offen sc1
        s_mov_b64 exec, 0xffff
        buffer_store_dwordx4 v[{vE}:{vE+3}], v{vT3}, s[56:59], s9 offen offset:1024 sc1
        s_mov_b64 exec, -1
        L_nopy:""")
        self.selectors(vL, vSEL, vT3, vT4, vT5)
        a("s_waitcnt vmcnt(48)")
        for i in range(10):
            a(f"v_lshlrev_b32 v{vF+2*i}, 16, v{vX+i}\nv_and_b32 v{vF+2*i+1}, 0xffff0000, v{vX+i}")
        a(f"v_add_f32 v{vT3}, v{vF}, v{vF+1}\nv_add_f32 v{vT4}, v{vF+2}, v{vF+3}")
        for i in range(4, 20, 2):
            a(f"v_add_f32 v{vT3}, v{vT3}, v{vF+i}\nv_add_f32 v{vT4}, v{vT4}, v{vF+i+1}")
        a(f"v_add_f32 v{vT3}, v{vT3}, v{vT4}")
        self.row_reduce("v_add_f32", vT3)
        self.swap_reduce("v_add_f32", vT3, vT4, 16)
        def div640(v, t):
            a(f"""v_mul_f32 v{t}, {f32(1/640)}, v{v}
            v_fmac_f32 v{v}, {f32(-640.0)}, v{t}
            v_fmac_f32 v{t}, {f32(1/640)}, v{v}
            v_mov_b32 v{v}, v{t}""")
        div640(vT3, vT4)
        a(f"v_mov_b32 v{vT4}, 0\nv_mov_b32 v{vT5}, 0")
        for i in range(0, 20, 2):
            a(f"""v_sub_f32 v{vE+4}, v{vF+i}, v{vT3}
            v_sub_f32 v{vE+5}, v{vF+i+1}, v{vT3}
            v_fmac_f32 v{vT4}, v{vE+4}, v{vE+4}
            v_fmac_f32 v{vT5}, v{vE+5}, v{vE+5}""")
        a(f"v_add_f32 v{vT4}, v{vT4}, v{vT5}")
        self.row_reduce("v_add_f32", vT4)
        self.swap_reduce("v_add_f32", vT4, vT5, 16)
        div640(vT4, vT5)
        self.rbf(vT3)
        self.rbf(vT4)
        a(f"v_add_f32 v{vT4}, {f32(1e-5)}, v{vT4}")
        self.rbf(vT4)
        a(f"v_sqrt_f32 v{vT4}, v{vT4}\ns_nop 0")
        self.rbf(vT4)
        a(f"v_rcp_f32 v{vT5}, v{vT4}")
        for i in range(10):
            f0, f1 = vF + 2 * i, vF + 2 * i + 1
            a(f"""v_sub_f32 v{f0}, v{f0}, v{vT3}
            v_sub_f32 v{f1}, v{f1}, v{vT3}
            v_cvt_pk_bf16_f32 v{f1}, v{f0}, v{f1}
            v_lshlrev_b32 v{f0}, 16, v{f1}
            v_and_b32 v{f1}, 0xffff0000, v{f1}
            v_mul_f32 v{vE+4}, v{f0}, v{vT5}
            v_mul_f32 v{vE+5}, v{f1}, v{vT5}
            v_fma_f32 v{f0}, -v{vE+4}, v{vT4}, v{f0}
            v_fma_f32 v{f1}, -v{vE+5}, v{vT4}, v{f1}
            v_fmac_f32 v{vE+4}, v{f0}, v{vT5}
            v_fmac_f32 v{vE+5}, v{f1}, v{vT5}
            v_cvt_pk_bf16_f32 v{vX+i}, v{vE+4}, v{vE+5}""")
        for t in range(5):
            a(f"ds_write_b64 v{vT0}, v[{vX+2*t}:{vX+2*t+1}] offset:{L_XN + 256*t}")
        a(f"""v_mul_u32_u24 v{vT3}, 160, v{vT1}
        s_mul_i32 s9, s5, 1280
        s_mul_i32 s10, s3, 40
        s_add_u32 s9, s9, s10
        v_add_u32 v{vT3}, s9, v{vT3}
        s_waitcnt lgkmcnt(0)""")
        for t in range(5):
            a(f"ds_read_b64 v[{vX+2*t}:{vX+2*t+1}], v{vT3} offset:{L_XN + 8*t}")
        a(f"""v_lshrrev_b32 v{vT4}, 5, v{vL}
        s_lshl_b32 s9, s3, 1
        v_add_u32 v{vT4}, s9, v{vT4}
        v_mul_u32_u24 v{vT4}, 768, v{vT4}
        v_lshl_add_u32 v{vT4}, v{vT2}, 5, v{vT4}
        v_bfe_u32 v{vT5}, v{vL}, 4, 1
        v_lshl_add_u32 v{vT4}, v{vT5}, 4, v{vT4}
        s_waitcnt lgkmcnt(0)""")
        for G in range(20):
            A = vA + 4 * (G & 1)
            slot = G if G < 16 else G - 16
            self.buildA(A, vX + G // 2, G & 1, vSEL)
            if G < 4:
                n = 3 * (15 - G) + 3 * G
            elif G < 16:
                n = 3 * (15 - G) + 12
            else:
                n = 3 * (19 - G)
            a(f"s_waitcnt vmcnt({n})\ns_nop 0")
            for j in range(3):
                self.mfma(vACC + 4 * j, A, TI + (slot * 3 + j) * 4, None if G == 0 else vACC + 4 * j)
            if G < 4:
                wq_load(16 + G, G)
        a("s_nop 7\ns_mov_b32 exec_lo, 0x00ff00ff\ns_mov_b32 exec_hi, 0xff00ff00")
        for j in range(3):
            a(f"ds_write_b128 v{vT4}, v[{vACC+4*j}:{vACC+4*j+3}] offset:{L_QP + 256*j}")
        a("s_mov_b64 exec, -1\ns_waitcnt vmcnt(0) lgkmcnt(0)\ns_barrier")
        a(f"""s_cmp_lg_u32 s3, 0
        s_cbranch_scc1 L_noinc""")
        self.srd(60, 38, 256)
        a(f"""v_mov_b32 v{vT3}, 1
        v_mov_b32 v{vT4}, 0
        s_mov_b64 exec, 1
        buffer_atomic_add v{vT3}, v{vT4}, s[60:63], 0 offen sc1
        s_mov_b64 exec, -1
        L_noinc:""")
        a(f"v_and_b32 v{vT1}, 15, v{vL}\nv_lshrrev_b32 v{vT2}, 4, v{vL}")
        a(f"""s_cmp_ge_u32 s2, 24
        s_cbranch_scc1 L_nomoe
        s_cmp_lg_u32 s3, 1
        s_cbranch_scc1 L_nomoe""")
        self.gen_moe(vL, vT0, vT1, vT2, vT3, vT4, vT5, vW, vX, vSEL, vA, vACC, vE, TI)
        a("L_nomoe:")
        self.srd(44, 24, 6144 * 1280)
        a(f"""v_mul_u32_u24 v{vW}, {8*1280}, v{vT2}
        s_mul_i32 s9, s4, {192*1280}
        v_add_u32 v{vW}, s9, v{vW}
        v_lshl_add_u32 v{vT3}, v{vT1}, 2, v{vW}
        s_lshl_b32 s9, s3, 6
        s_add_u32 s9, s9, 1024
        v_add_u32 v{vT3}, s9, v{vT3}
        v_lshl_add_u32 v{vW}, v{vT1}, 4, v{vW}
        s_lshl_b32 s9, s3, 8
        v_add_u32 v{vW}, s9, v{vW}
        s_mov_b32 s14, 0x05040100
        s_mov_b32 s15, 0x07060302""")
        for K in range(6):
            for e in range(8):
                if e % 4 == 0:
                    a(f"s_mov_b32 s9, {(32*K + e)*1280}")
                a(f"buffer_load_dword v{TI+8*K+e}, v{vT3}, s[44:47], s9 offen offset:{(e%4)*1280} {self.wf}")
        a(f"""s_mul_i32 s9, s3, 12288
        s_add_u32 s9, s9, {L_WX}
        v_lshlrev_b32 v{vT4}, 4, v{vL}
        v_add_u32 v{vT4}, s9, v{vT4}""")
        for K in range(6):
            a(f"s_waitcnt vmcnt({8*(5-K)})")
            d = TI + 48 + 8 * K
            for t in range(4):
                a(f"v_perm_b32 v{d+t}, v{TI+8*K+2*t+1}, v{TI+8*K+2*t}, s14")
                a(f"v_perm_b32 v{d+4+t}, v{TI+8*K+2*t+1}, v{TI+8*K+2*t}, s15")
            a(f"ds_write_b128 v{vT4}, v[{d}:{d+3}] offset:{2048*K}")
            a(f"ds_write_b128 v{vT4}, v[{d+4}:{d+7}] offset:{2048*K+1024}")
        a("s_waitcnt lgkmcnt(0)")
        def REG(k): return 32 + 32 * k
        for K in range(5, -1, -1):
            for e in range(8):
                if e % 4 == 0:
                    a(f"s_mov_b32 s9, {(32*K + e)*1280}")
                r = REG(K) + 4 * e
                a(f"buffer_load_dwordx4 v[{r}:{r+3}], v{vW}, s[44:47], s9 offen offset:{(e%4)*1280} {self.wf}")
        for K in range(5, -1, -1):
            a(f"s_waitcnt vmcnt({8*K})")
            s, d = REG(K), REG(K + 1)
            for dd in range(4):
                for t in range(4):
                    a(f"v_perm_b32 v{d+(2*dd)*4+t}, v{s+(2*t+1)*4+dd}, v{s+(2*t)*4+dd}, s14")
                    a(f"v_perm_b32 v{d+(2*dd+1)*4+t}, v{s+(2*t+1)*4+dd}, v{s+(2*t)*4+dd}, s15")
        vG, vXC, vOUTA, vPA, vSC = 8, 9, 10, 11, 12
        vAR, vST = 14, 15
        W = 32
        a("s_cmp_lg_u32 s3, 0\ns_cbranch_scc1 L_nostat")
        self.wait_c0(W)
        Ls, Lsd = self.lab("st"), self.lab("std")
        a(f"""s_lshl_b32 s9, s8, 7
        s_add_u32 s9, s9, {ST_OFF}
        v_lshlrev_b32 v{W+4}, 3, v{vT1}
        s_mov_b32 s12, {self.poll_max}
        {Ls}:
        buffer_load_dwordx2 v[{W}:{W+1}], v{W+4}, s[56:59], s9 offen sc1
        s_waitcnt vmcnt(0)
        v_cmp_u_f32 vcc, v{W}, v{W+1}
        s_cbranch_vccz {Lsd}
        s_sleep 32
        s_sub_u32 s12, s12, 1
        s_cmp_gt_u32 s12, 0
        s_cbranch_scc1 {Ls}
        {Lsd}:
        v_mov_b32 v{W+2}, v{W}""")
        self.row_reduce("v_max_f32", W + 2)
        a(f"""v_sub_f32 v{W}, v{W}, v{W+2}
        v_mul_f32 v{W}, {LOG2E}, v{W}
        v_exp_f32 v{W}, v{W}
        s_nop 0
        v_mul_f32 v{W+1}, v{W+1}, v{W}""")
        self.row_reduce("v_add_f32", W + 1)
        a(f"""v_rcp_f32 v{W+2}, v{W+1}
        s_nop 0
        v_mul_f32 v{W+3}, v{W}, v{W+2}
        v_fma_f32 v{W}, -v{W+3}, v{W+1}, v{W}
        v_fmac_f32 v{W+3}, v{W}, v{W+2}
        s_lshl_b32 s9, s6, 2
        v_subrev_u32 v{W+4}, s9, v{vL}
        v_cmp_gt_u32 vcc, 4, v{W+4}
        v_lshlrev_b32 v{W+4}, 2, v{W+4}
        s_and_saveexec_b64 s[10:11], vcc
        ds_write_b32 v{W+4}, v{W+3} offset:{L_SCALE}
        s_mov_b64 exec, -1
        L_nostat:""")
        a(f"""s_lshl_b32 s67, s6, 5
        s_add_u32 s67, s67, s4
        s_mov_b32 s68, 0
        s_cmp_lg_u32 s3, 2
        s_cbranch_scc1 L_noown
        s_cmp_ge_u32 s67, 40
        s_cbranch_scc1 L_noown
        s_mov_b32 s68, 1""")
        self.wait_c0(W)
        self.srd(60, 28, 1280)
        a(f"""v_lshlrev_b32 v{W+20}, 2, v{vL}
        s_mul_i32 s9, s5, 1280
        v_add_u32 v{W+21}, s9, v{W+20}""")
        for t in range(5):
            a(f"buffer_load_dword v{W+t}, v{W+20}, s[60:63], 0 offen offset:{256*t}")
            a(f"ds_read_b32 v{W+5+t}, v{W+21} offset:{L_XN + 256*t}")
        self.srd(60, 16, 2560)
        a(f"""v_and_b32 v{W+22}, 3, v{vL}
        v_lshl_add_u32 v{vOUTA}, v{W+22}, 2, v{vT2}
        v_lshlrev_b32 v{vOUTA}, 1, v{vOUTA}
        s_lshl_b32 s10, s67, 5
        s_add_u32 s10, s10, s9
        v_add_u32 v{vOUTA}, s10, v{vOUTA}
        buffer_load_ushort v{vXC}, v{vOUTA}, s[60:63], 0 offen
        ds_read_u16 v{W+23}, v{vOUTA} offset:{L_XN}
        s_waitcnt vmcnt(0) lgkmcnt(0)""")
        for t in range(5):
            c = "0" if t == 0 else f"v{W+10}"
            a(f"v_dot2_f32_bf16 v{W+10}, v{W+t}, v{W+5+t}, {c}")
        a(f"v_lshlrev_b32 v{vXC}, 16, v{vXC}\nv_lshlrev_b32 v{W+23}, 16, v{W+23}\ns_nop 1")
        self.row_reduce("v_add_f32", W + 10)
        self.swap_reduce("v_add_f32", W + 10, W + 11, 16)
        self.swap_reduce("v_add_f32", W + 10, W + 11, 32)
        self.rbf(W + 10)
        a(f"""v_mul_f32 v{W+10}, {f32(-1.4426950408889634)}, v{W+10}
        v_exp_f32 v{W+10}, v{W+10}
        s_nop 0
        v_add_f32 v{W+10}, 1.0, v{W+10}
        v_rcp_f32 v{W+10}, v{W+10}
        s_nop 0""")
        self.rbf(W + 10)
        Ly, Lyd = self.lab("y"), self.lab("yd")
        a(f"""v_lshrrev_b32 v{W+20}, 2, v{vL}
        v_mul_u32_u24 v{W+21}, 5120, v{W+20}
        v_lshl_add_u32 v{W+21}, v{W+22}, 4, v{W+21}
        v_mul_u32_u24 v{vPA}, 2560, v{W+20}
        v_lshl_add_u32 v{vPA}, v{W+22}, 4, v{vPA}
        s_mul_i32 s9, s5, 2560
        s_lshl_b32 s10, s67, 6
        s_add_u32 s9, s9, s10
        s_add_u32 s9, s9, {Y_OFF}
        s_add_u32 s10, s9, {16*5120}
        s_mov_b32 s12, {self.poll_max}
        {Ly}:
        v_mov_b32 v{W+4}, 0
        v_mov_b32 v{W+5}, 0
        v_mov_b32 v{W+6}, 0
        v_mov_b32 v{W+7}, 0
        buffer_load_dwordx4 v[{W}:{W+3}], v{W+21}, s[56:59], s9 offen sc1
        s_mov_b32 exec_hi, 0
        buffer_load_dwordx4 v[{W+4}:{W+7}], v{W+21}, s[56:59], s10 offen sc1
        s_mov_b32 exec_hi, -1
        s_waitcnt vmcnt(0)""")
        for r in range(4):
            a(f"v_add_f32 v{W+r}, v{W+r}, v{W+4+r}")
        self.merge4(W)
        a(f"""v_cmp_u_f32 vcc, v{W}, v{W}
        s_cbranch_vccz {Lyd}
        s_sleep 32
        s_sub_u32 s12, s12, 1
        s_cmp_gt_u32 s12, 0
        s_cbranch_scc1 {Ly}
        {Lyd}:""")
        self.rbf(W)
        a(f"v_mul_f32 v{W}, v{W}, v{W+10}")
        self.rbf(W)
        a(f"v_add_f32 v{W}, v{W}, v{W+23}")
        self.rbf(W)
        a(f"""v_mul_f32 v{W+1}, {f32(-1.4426950408889634)}, v{W}
        v_exp_f32 v{W+1}, v{W+1}
        s_nop 0
        v_add_f32 v{W+1}, 1.0, v{W+1}
        v_rcp_f32 v{W+1}, v{W+1}
        s_nop 0
        v_mul_f32 v{vG}, v{W}, v{W+1}""")
        self.rbf(vG)
        a(f"""s_mul_i32 s70, s5, {128*2560}
        s_lshl_b32 s10, s67, 6
        s_add_u32 s70, s70, s10""")
        for t in range(1, 8):
            a(f"s_add_u32 s{70+t}, s70, {t*40960}")
        a("L_noown:")
        self.srd(60, 36, 2560)
        a(f"""v_and_b32 v{vAR}, 7, v{vL}
        v_mul_u32_u24 v{vAR}, {OS}, v{vAR}
        v_lshl_add_u32 v{vAR}, v{vT2}, 4, v{vAR}
        v_and_b32 v{vT3}, 1, v{vT2}
        v_lshlrev_b32 v{vST}, 5, v{vT1}
        v_lshl_add_u32 v{vST}, v{vT3}, 4, v{vST}
        v_lshlrev_b32 v{vT3}, 3, v{vT3}
        s_mul_i32 s9, s7, 2560
        s_lshl_b32 s10, s3, 9
        s_add_u32 s9, s9, s10
        s_waitcnt vmcnt(0) lgkmcnt(0)
        s_barrier""")
        Aop = [16, 20, 24, 28, REG(1), REG(1) + 4]
        for k in range(4):
            a(f"ds_read_b128 v[{Aop[k]}:{Aop[k]+3}], v{vAR} offset:{L_O + 64*k}")
        a(f"ds_read_b64 v[{vSC}:{vSC+1}], v{vT3} offset:{L_SCALE}")
        for k in range(6):
            if k == 0:
                a("s_waitcnt lgkmcnt(4)")
            elif k < 4:
                a(f"s_waitcnt lgkmcnt({4-k+2})")
            else:
                a(f"s_waitcnt lgkmcnt({5-k})")
            for c in range(8):
                self.mfma(32 + 4 * c, Aop[k], REG(k + 1) + 4 * c, None if k == 0 else 32 + 4 * c)
            if k == 0:
                for kk in (4, 5):
                    a(f"ds_read_b128 v[{Aop[kk]}:{Aop[kk]+3}], v{vAR} offset:{L_O + 64*kk}")
        a("s_nop 1")
        for c in range(8):
            D = 32 + 4 * c
            a(f"""v_add_f32 v{D}, v{D}, v{D+1}
            v_add_f32 v{D+2}, v{D+2}, v{D+3}
            v_mul_f32 v{D}, v{D}, v{vSC}
            v_fmac_f32 v{D}, v{D+2}, v{vSC+1}""")
        a("s_nop 1")
        for c in range(4):
            a(f"v_permlane16_swap_b32 v{32+4*c}, v{48+4*c}")
        a("s_nop 1")
        for c in range(4):
            a(f"v_add_f32 v{16+c}, v{32+4*c}, v{48+4*c}")
        a(f"""s_mov_b32 exec_hi, 0
        buffer_store_dwordx4 v[16:19], v{vST}, s[56:59], s9 offen sc1
        s_mov_b32 exec_hi, -1
        s_cmp_eq_u32 s68, 0
        s_cbranch_scc1 L_end""")
        Lp, Lpd = self.lab("p"), self.lab("pd")
        Z = 64
        a(f"s_mov_b32 s12, {self.poll_max}\n{Lp}:")
        for t in range(8):
            a(f"buffer_load_dwordx4 v[{Z+4*t}:{Z+4*t+3}], v{vPA}, s[56:59], s{70+t} offen sc1")
        for t in range(1, 8):
            a(f"s_waitcnt vmcnt({7-t})")
            for r in range(4):
                a(f"v_add_f32 v{Z+r}, v{Z+r}, v{Z+4*t+r}")
        self.merge4(Z)
        a(f"""v_cmp_u_f32 vcc, v{Z}, v{Z}
        s_cbranch_vccz {Lpd}
        s_sub_u32 s12, s12, 1
        s_cmp_gt_u32 s12, 0
        s_cbranch_scc1 {Lp}
        {Lpd}:""")
        self.rbf(Z)
        a(f"v_mul_f32 v{Z}, v{Z}, v{vG}")
        self.rbf(Z)
        a(f"""v_add_f32 v{Z}, v{Z}, v{vXC}
        v_cvt_pk_bf16_f32 v{Z}, v{Z}, v{Z}
        s_mov_b32 exec_lo, 0x000f000f
        s_mov_b32 exec_hi, 0x000f000f
        buffer_store_short v{Z}, v{vOUTA}, s[60:63], 0 offen""")

    def gen_moe(self, vL, vT0, vT1, vT2, vT3, vT4, vT5, vW, vX, vSEL, vA, vACC, vE, TI):
        a = self.a
        vAD = 52
        vCO = 8
        CO = TI + 128
        vCA = 54
        a(f"""v_cmp_gt_u32 vcc, 8, v{vT1}
        v_mov_b32 v{vT3}, s32
        v_mov_b32 v{vT4}, s30
        v_cndmask_b32 v{vAD}, v{vT3}, v{vT4}, vcc
        v_mov_b32 v{vT3}, s33
        v_mov_b32 v{vT4}, s31
        v_cndmask_b32 v{vAD+1}, v{vT3}, v{vT4}, vcc
        s_mov_b32 s9, {160*3072}
        v_mul_lo_u32 v{vT3}, v{vT2}, s9
        v_and_b32 v{vT4}, 7, v{vL}
        v_lshl_add_u32 v{vT3}, v{vT4}, 4, v{vT3}
        s_lshl_b32 s9, s2, 7
        v_add_u32 v{vT4}, s9, v{vT3}
        v_mov_b32 v{vT5}, 0
        v_add_co_u32 v{vAD}, vcc, v{vAD}, v{vT4}
        s_nop 1
        v_addc_co_u32 v{vAD+1}, vcc, v{vAD+1}, v{vT5}, vcc
        v_lshrrev_b32 v{vT3}, 3, v{vT1}
        v_mul_u32_u24 v{vCA}, 1280, v{vT3}
        v_mul_u32_u24 v{vT3}, 320, v{vT2}
        v_add_u32 v{vCA}, v{vCA}, v{vT3}
        v_mov_b32 v{vACC}, 0
        v_mov_b32 v{vACC+1}, 0
        v_mov_b32 v{vACC+2}, 0
        v_mov_b32 v{vACC+3}, 0
        s_mov_b32 s10, 6144
        s_mov_b32 s11, 0
        s_mov_b32 s12, 0
        L_moe1:""")
        for t in range(32):
            a(f"global_load_dwordx4 v[{TI+4*t}:{TI+4*t+3}], v[{vAD}:{vAD+1}], off offset:{3072*(t&1)} {self.mf}")
            if t & 1:
                a(f"v_lshl_add_u64 v[{vAD}:{vAD+1}], v[{vAD}:{vAD+1}], 0, s[10:11]")
        for qd in range(4):
            a(f"ds_read_b128 v[{CO+4*qd}:{CO+4*qd+3}], v{vCA} offset:{L_XN + 16*qd}")
        a(f"v_add_u32 v{vCA}, 64, v{vCA}\ns_waitcnt lgkmcnt(0)")
        for t in range(32):
            A = vA + 4 * (t & 1)
            self.buildA(A, CO + t // 2, t & 1, vSEL)
            a(f"s_waitcnt vmcnt({31-t})\ns_nop 0")
            self.mfma(vACC, A, TI + 4 * t, vACC)
        a(f"""s_add_u32 s12, s12, 1
        s_cmp_lt_u32 s12, 5
        s_cbranch_scc1 L_moe1
        s_nop 7""")
        for r in range(4):
            self.rbf(vACC + r)
        a("s_nop 1")
        for r in range(4):
            a(f"v_mov_b32_dpp v{vACC+4+r}, v{vACC+r} row_ror:8 row_mask:0xf bank_mask:0xf")
        for r in range(4):
            a(f"""v_mul_f32 v{vT3}, {f32(-1.4426950408889634)}, v{vACC+r}
            v_exp_f32 v{vT3}, v{vT3}
            s_nop 0
            v_add_f32 v{vT3}, 1.0, v{vT3}
            v_rcp_f32 v{vT3}, v{vT3}
            s_nop 0
            v_mul_f32 v{vACC+r}, v{vACC+r}, v{vT3}""")
            self.rbf(vACC + r)
            a(f"v_mul_f32 v{vACC+r}, v{vACC+r}, v{vACC+4+r}")
        a(f"""v_cvt_pk_bf16_f32 v{vACC+4}, v{vACC}, v{vACC+1}
        v_cvt_pk_bf16_f32 v{vACC+5}, v{vACC+2}, v{vACC+3}
        v_lshrrev_b32 v{vT3}, 1, v{vT2}
        v_lshlrev_b32 v{vT3}, 7, v{vT3}
        v_lshl_add_u32 v{vT3}, v{vT1}, 4, v{vT3}
        v_and_b32 v{vT4}, 1, v{vT2}
        v_lshl_add_u32 v{vT3}, v{vT4}, 3, v{vT3}
        s_mov_b32 exec_lo, 0x00ff00ff
        s_mov_b32 exec_hi, 0x00ff00ff
        ds_write_b64 v{vT3}, v[{vACC+4}:{vACC+5}] offset:{L_HB}
        s_mov_b64 exec, -1
        v_lshrrev_b32 v{vT3}, 3, v{vT1}
        v_lshlrev_b32 v{vT3}, 7, v{vT3}
        v_lshl_add_u32 v{vT3}, v{vT2}, 5, v{vT3}
        s_waitcnt lgkmcnt(0)
        ds_read_b128 v[8:11], v{vT3} offset:{L_HB}
        ds_read_b128 v[12:15], v{vT3} offset:{L_HB+16}""")
        self.srd(44, 34, 1536 * 1280)
        DA = TI + 160
        a(f"""v_mul_u32_u24 v{vW}, {16*1280}, v{vT2}
        v_lshl_add_u32 v{vW}, v{vT1}, 4, v{vW}
        s_mul_i32 s9, s2, {64*1280}
        v_add_u32 v{vW}, s9, v{vW}
        s_waitcnt lgkmcnt(0)""")
        for half in range(2):
            for Gi in range(8):
                Gd = half * 8 + Gi
                a(f"s_mov_b32 s9, {Gd*1280}")
                for J in range(5):
                    r = TI + (Gi * 5 + J) * 4
                    a(f"buffer_load_dwordx4 v[{r}:{r+3}], v{vW}, s[44:47], s9 offen offset:{256*J} {self.mf}")
            for Gi in range(8):
                Gd = half * 8 + Gi
                A = vA + 4 * (Gi & 1)
                self.buildA(A, 8 + Gd // 2, Gd & 1, vSEL)
                a(f"s_waitcnt vmcnt({5*(7-Gi)})\ns_nop 0")
                for J in range(5):
                    self.mfma(DA + 4 * J, A, TI + (Gi * 5 + J) * 4, None if Gd == 0 else DA + 4 * J)
        a(f"""v_lshrrev_b32 v{vT3}, 1, v{vT2}
        v_mul_u32_u24 v{vT3}, 2560, v{vT3}
        v_lshl_add_u32 v{vT3}, v{vT1}, 5, v{vT3}
        v_and_b32 v{vT4}, 1, v{vT2}
        v_lshl_add_u32 v{vT3}, v{vT4}, 4, v{vT3}
        s_mul_i32 s9, s2, 5120
        s_add_u32 s9, s9, {Y_OFF}
        s_nop 7""")
        for J in range(5):
            a(f"buffer_store_dwordx4 v[{DA+4*J}:{DA+4*J+3}], v{vT3}, s[56:59], s9 offen offset:{512*J} sc1")
        a("s_waitcnt vmcnt(0)")

    def text(self):
        hdr = open("recurrent_scan__mha_block_cached__moe_arch_mod__decode.s.ref").read().split("; Override launch")[0]
        self.gen()
        return hdr + f"""; @launch grid=(256,1,1) block=(512,1,1) lds={LDS_BYTES}
.amdgcn_target "amdgcn-amd-amdhsa--gfx950"
.text
.globl {KNAME}
.p2align 8
.type {KNAME},@function
{KNAME}:
""" + "\n".join(self.o) + f"""
.section .rodata,"a"
.p2align 6
.amdhsa_kernel {KNAME}
  .amdhsa_next_free_vgpr 256
  .amdhsa_next_free_sgpr 96
  .amdhsa_accum_offset 256
  .amdhsa_group_segment_fixed_size 0
  .amdhsa_kernarg_size 104
  .amdhsa_user_sgpr_count 2
  .amdhsa_user_sgpr_kernarg_segment_ptr 1
  .amdhsa_system_sgpr_workgroup_id_x 1
  .amdhsa_float_denorm_mode_32 3
.end_amdhsa_kernel
"""


if __name__ == "__main__":
    out = sys.argv[1]
    kw = {}
    for arg in sys.argv[2:]:
        k, v = arg.split("=", 1)
        try:
            v = int(v)
        except ValueError:
            pass
        kw[k] = v
    open(out, "w").write(G(**kw).text())
```

```python
import sys, struct

KNAME = "recurrent_scan__mha_block_cached__moe_arch_mod__decode_kernel"
TB = 201326592
CH = 786432
STEP = 12288

P_OFF = 0
ST_OFF = 256 * 2560
EP_OFF = ST_OFF + 64 * 256
Y_OFF = EP_OFF + 256
QX_OFF = Y_OFF + 48 * 5120
G1_OFF = QX_OFF + 32 * 8 * 2 * 768
WS_USED = G1_OFF + 240 * 1024
STAMP_OFF = 2 << 20
WS_SRD = 4 << 20
assert WS_USED <= STAMP_OFF

L_XN = 0
L_QB = 2560
L_SC = L_QB + 512
OS = 416
L_O = L_SC + 4 * 1152
L_SCALE = L_O + 8 * OS
L_HB = L_SCALE + 64
L_WX = (L_HB + 256 + 1023) // 1024 * 1024
LDS_BYTES = L_WX + 4 * 12 * 1024

LOG2E = 0x3fb8aa3b
SCALE_F32 = 0x3d93cd3a
assert struct.unpack("<I", struct.pack("<f", 192 ** -0.5))[0] == SCALE_F32
def f32(x): return "0x%08x" % struct.unpack("<I", struct.pack("<f", x))[0]
NLOG2E = f32(-1.4426950408889634)

sWAVE, sH, sB, sSPLIT, sCHUNK, sBH = 3, 4, 5, 6, 7, 8
sT = 78
sMASK = 79
sWV = 69


class G:
    def __init__(self, R0=16, R1=8, W=4, W0=3, kvflags="nt", wflags="nt", woflags="nt", moeflags="nt", rot=1, stamps=0,
                 poll_max=1 << 18, hprio=3, wobatch=8):
        self.o = []
        self.R0, self.R1, self.W, self.W0 = R0, R1, W, W0
        fl = lambda x: '' if x == 'pl' else x.replace('_', ' ')
        self.kvf, self.wf, self.mf = fl(kvflags), fl(wflags), fl(moeflags)
        self.wof = fl(woflags)
        self.rot = rot
        self.stamps = stamps
        self.poll_max = poll_max
        self.hprio = hprio
        self.wobatch = wobatch
        self.nlab = 0

    def a(self, s):
        for ln in s.split("\n"):
            ln = ln.strip()
            if ln:
                self.o.append(("" if ln.endswith(":") else "    ") + ln)

    def lab(self, p="L"):
        self.nlab += 1
        return f"{p}_{self.nlab}"

    def srd(self, q, lo, nbytes):
        self.a(f"s_mov_b32 s{q}, s{lo}\ns_mov_b32 s{q+1}, s{lo+1}\ns_mov_b32 s{q+2}, {nbytes}\ns_mov_b32 s{q+3}, 0x20000")

    def dpp(self, op, d, s0, s1, ctrl):
        self.a(f"{op}_dpp v{d}, v{s0}, v{s1} {ctrl} row_mask:0xf bank_mask:0xf")

    def row_reduce(self, op, v, steps=(1, 2, 4, 8)):
        for s in steps:
            self.a("s_nop 1")
            self.dpp(op, v, v, v, f"row_ror:{s}")

    def swap_reduce(self, op, v, t, which):
        self.a(f"v_mov_b32 v{t}, v{v}\ns_nop 1\nv_permlane{which}_swap_b32 v{v}, v{t}\ns_nop 1\n{op} v{v}, v{v}, v{t}")

    def stamp(self, idx, vt, st=90, src=None):
        if not self.stamps:
            return
        if src is None:
            self.a(f"s_memrealtime s[{st}:{st+1}]")
            src = st
        self.a(f"""s_lshl_b32 s{st+2}, s2, 3
        s_add_u32 s{st+2}, s{st+2}, s{sWV}
        s_lshl_b32 s{st+2}, s{st+2}, 7
        s_add_u32 s{st+2}, s{st+2}, {STAMP_OFF + idx*8}
        s_waitcnt lgkmcnt(0)
        v_mov_b32 v{vt}, s{src}
        v_mov_b32 v{vt+1}, s{src+1}
        v_mov_b32 v{vt+2}, 0
        s_mov_b64 exec, 1
        buffer_store_dwordx2 v[{vt}:{vt+1}], v{vt+2}, s[56:59], s{st+2} offen
        s_mov_b64 exec, -1""")

    def selectors(self, vL, base, t0, t1, t2):
        a = self.a
        a(f"""v_and_b32 v{t0}, 1, v{vL}
        v_cmp_eq_u32 vcc, 1, v{t0}
        v_mov_b32 v{t0}, 0x0c0c0100
        v_mov_b32 v{t1}, 0x01000c0c
        v_cndmask_b32 v{t0}, v{t0}, v{t1}, vcc
        v_mov_b32 v{t1}, 0x0c0c0302
        v_mov_b32 v{t2}, 0x03020c0c
        v_cndmask_b32 v{t1}, v{t1}, v{t2}, vcc
        v_bfe_u32 v{t2}, v{vL}, 1, 2""")
        for j in range(4):
            a(f"""v_cmp_eq_u32 vcc, {j}, v{t2}
            v_mov_b32 v{base+j}, 0x0c0c0c0c
            v_mov_b32 v{base+4+j}, 0x0c0c0c0c
            v_cndmask_b32 v{base+j}, v{base+j}, v{t0}, vcc
            v_cndmask_b32 v{base+4+j}, v{base+4+j}, v{t1}, vcc""")

    def buildA(self, A, P, hi, sel):
        for j in range(4):
            self.a(f"v_perm_b32 v{A+j}, v{P}, v{P}, v{sel + (4 if hi else 0) + j}")

    def mfma(self, D, A, B, C):
        c = "0" if C is None else f"v[{C}:{C+3}]"
        self.a(f"v_mfma_f32_16x16x32_bf16 v[{D}:{D+3}], v[{A}:{A+3}], v[{B}:{B+3}], {c}")

    def rbf(self, v):
        self.a(f"v_cvt_pk_bf16_f32 v{v}, v{v}, v{v}\nv_lshlrev_b32 v{v}, 16, v{v}")

    def tag(self, d, s, vTG, rn=False):
        if rn:
            self.a(f"v_add_u32 v{d}, 0x80, v{s}")
            s = d
        self.a(f"v_and_or_b32 v{d}, v{s}, s{sMASK}, v{vTG}")

    def chk4(self, acc, x, vTG, first=False, n=4):
        for r in range(n):
            self.a(f"v_xor_b32 v{x+r}, v{x+r}, v{vTG}")
        for r in range(0, n, 2):
            if first and r == 0:
                self.a(f"v_or_b32 v{acc}, v{x}, v{x+1}")
            else:
                self.a(f"v_or3_b32 v{acc}, v{x+r}, v{x+r+1}, v{acc}")

    def poll_tail(self, acc, Lretry, Ldone, sleep):
        self.a(f"""v_and_b32 v{acc}, 0xff, v{acc}
        v_cmp_ne_u32 vcc, 0, v{acc}
        s_cbranch_vccz {Ldone}""")
        if sleep:
            self.a(f"s_sleep {sleep}")
        self.a(f"""s_sub_u32 s12, s12, 1
        s_cmp_gt_u32 s12, 0
        s_cbranch_scc1 {Lretry}
        {Ldone}:""")

    def merge4(self, X):
        a = self.a
        a(f"""s_nop 1
        v_permlane16_swap_b32 v{X}, v{X+1}
        v_permlane16_swap_b32 v{X+2}, v{X+3}
        s_nop 1
        v_add_f32 v{X}, v{X}, v{X+1}
        v_add_f32 v{X+2}, v{X+2}, v{X+3}
        s_nop 1
        v_permlane32_swap_b32 v{X}, v{X+2}
        s_nop 1
        v_add_f32 v{X}, v{X}, v{X+2}""")
        self.row_reduce("v_add_f32", X, steps=(4, 8))

    def sigmoid_like(self, d, x):
        self.a(f"""v_mul_f32 v{d}, {NLOG2E}, v{x}
        v_exp_f32 v{d}, v{d}
        s_nop 0
        v_add_f32 v{d}, 1.0, v{d}
        v_rcp_f32 v{d}, v{d}
        s_nop 0""")

    def epoch_load(self):
        self.a(f"s_load_dword s{sT}, s[40:41], {EP_OFF}")

    def epoch_use(self, vTG):
        self.a(f"""s_add_u32 s{sT}, s{sT}, 1
        s_mov_b32 s{sMASK}, 0xffffff00
        s_and_b32 s9, s{sT}, 0xff
        v_mov_b32 v{vTG}, s9""")

    def gen(self):
        a = self.a
        a(f"""s_cmp_ge_u32 s2, 256
        s_cbranch_scc1 L_end
        s_load_dwordx16 s[16:31], s[0:1], 0
        s_load_dwordx8 s[32:39], s[0:1], 64
        s_load_dwordx2 s[40:41], s[0:1], 96""")
        if self.stamps:
            a("s_memrealtime s[86:87]")
        a(f"""v_lshrrev_b32 v1, 6, v0
        v_and_b32 v0, 63, v0
        v_readfirstlane_b32 s3, v1
        s_and_b32 s9, s2, 7
        s_lshr_b32 s10, s2, 3
        s_lshl_b32 s4, s9, 2
        s_lshr_b32 s11, s10, 3
        s_add_u32 s4, s4, s11
        s_bfe_u32 s5, s10, 0x10002
        s_and_b32 s6, s10, 3
        s_lshl_b32 s8, s5, 5
        s_add_u32 s8, s8, s4
        s_lshl_b32 s7, s8, 2
        s_add_u32 s7, s7, s6
        s_mov_b32 s{sWV}, s3
        s_cmp_ge_u32 s3, 4
        s_cbranch_scc1 L_H""")
        self.gen_S()
        a("L_H:")
        self.gen_H()
        a("L_end:\ns_endpgm")

    def gen_S(self):
        a = self.a
        R0, R1, W, W0 = self.R0, self.R1, self.W, self.W0
        assert (64 - R0) % W == 0 and (64 - R1) % W == 0 and W % 2 == 0 and R0 % 2 == 0 and R1 >= W and R0 >= W and R1 <= 16
        NITK, NITV = (64 - R0) // W, (64 - R1) // W
        vL = 0
        vOFF, vSCW, vSCR, vT0, vT1, vT2, vT3, vOW = 1, 2, 3, 4, 5, 6, 7, 8
        vA0, vA1, vTG = 9, 10, 11
        vQ = 12
        vSEL = 24
        vACC = 32
        vA = 44
        vP = 52
        RING = 64
        assert RING + R0 * 12 <= 256
        sOFF, sBEG, sEND, sIT = 42, 43, 64, 66
        a(f"""v_lshrrev_b32 v{vT0}, 3, v{vL}
        v_and_b32 v{vT1}, 7, v{vL}
        v_mul_u32_u24 v{vOFF}, 384, v{vT0}
        v_lshl_add_u32 v{vOFF}, v{vT1}, 4, v{vOFF}
        s_mul_i32 s9, s3, 3072
        v_add_u32 v{vOFF}, s9, v{vOFF}
        s_mul_i32 s{sBEG}, s7, {CH}
        s_add_u32 s{sEND}, s{sBEG}, {CH}
        s_mul_i32 s9, s7, {self.rot}
        s_and_b32 s9, s9, 63
        s_mul_i32 s9, s9, {STEP}
        s_add_u32 s{sOFF}, s{sBEG}, s9
        s_waitcnt lgkmcnt(0)""")
        self.srd(52, 18, TB)

        def load(slot):
            for j in range(3):
                r = RING + (slot * 3 + j) * 4
                a(f"buffer_load_dwordx4 v[{r}:{r+3}], v{vOFF}, s[52:55], s{sOFF} offen offset:{128*j} {self.kvf}")
            a(f"""s_add_u32 s{sOFF}, s{sOFF}, {STEP}
            s_cmp_ge_u32 s{sOFF}, s{sEND}
            s_cselect_b32 s{sOFF}, s{sBEG}, s{sOFF}""")
        for s in range(W0):
            load(s)
        self.epoch_load()
        self.srd(56, 40, WS_SRD)
        self.selectors(vL, vSEL, vT2, vT3, vOW)
        a(f"""s_mul_i32 s9, s3, 1152
        s_add_u32 s9, s9, {L_SC}
        v_mul_u32_u24 v{vSCW}, 144, v{vT0}
        v_add_u32 v{vSCW}, s9, v{vSCW}
        v_mov_b32 v{vSCR}, v{vSCW}""")
        a(f"""v_lshrrev_b32 v{vT2}, 5, v{vL}
        s_lshl_b32 s9, s3, 1
        v_add_u32 v{vT2}, s9, v{vT2}
        v_mul_u32_u24 v{vOW}, {OS}, v{vT2}
        v_lshl_add_u32 v{vOW}, v{vT1}, 4, v{vOW}
        v_bfe_u32 v{vT2}, v{vL}, 4, 1
        v_lshl_add_u32 v{vOW}, v{vT2}, 3, v{vOW}
        v_add_u32 v{vOW}, {L_O}, v{vOW}
        v_lshlrev_b32 v{vT2}, 4, v{vT1}""")
        for s in range(W0, R0):
            a(f"s_waitcnt vmcnt({3*(W0-1)})")
            load(s)
        a("s_waitcnt lgkmcnt(0)")
        self.epoch_use(vTG)
        self.stamp(15, vA, src=86)
        self.stamp(0, vA)
        a("s_barrier")
        self.stamp(1, vA)
        for j in range(3):
            a(f"ds_read_b128 v[{vQ+4*j}:{vQ+4*j+3}], v{vT2} offset:{L_QB + 128*j}")
        a(f"s_mov_b32 s{sIT}, 0\ns_mov_b32 s10, {SCALE_F32}\ns_waitcnt lgkmcnt(0)")

        def kpair(s, n, reload, off):
            a(f"s_waitcnt vmcnt({n})")
            ra, rb = RING + s * 12, RING + (s + 1) * 12
            for i in range(12):
                c0 = "0" if i == 0 else f"v{vA0}"
                c1 = "0" if i == 0 else f"v{vA1}"
                a(f"v_dot2_f32_bf16 v{vA0}, v{ra+i}, v{vQ+i}, {c0}")
                a(f"v_dot2_f32_bf16 v{vA1}, v{rb+i}, v{vQ+i}, {c1}")
            if reload:
                load(s)
            else:
                a("s_nop 2")
            self.dpp("v_add_f32", vA0, vA0, vA0, "quad_perm:[1,0,3,2]")
            self.dpp("v_add_f32", vA1, vA1, vA1, "quad_perm:[1,0,3,2]")
            if reload:
                load(s + 1)
            else:
                a("s_nop 0")
            self.dpp("v_add_f32", vA0, vA0, vA0, "quad_perm:[2,3,0,1]")
            self.dpp("v_add_f32", vA1, vA1, vA1, "quad_perm:[2,3,0,1]")
            a("s_nop 0")
            self.dpp("v_add_f32", vA0, vA0, vA0, "row_half_mirror")
            self.dpp("v_add_f32", vA1, vA1, vA1, "row_half_mirror")
            a(f"""v_cvt_pk_bf16_f32 v{vT2}, v{vA0}, v{vA1}
            v_lshlrev_b32 v{vA0}, 16, v{vT2}
            v_and_b32 v{vA1}, 0xffff0000, v{vT2}
            v_mul_f32 v{vA0}, s10, v{vA0}
            v_mul_f32 v{vA1}, s10, v{vA1}
            v_cvt_pk_bf16_f32 v{vT2}, v{vA0}, v{vA1}
            ds_write_b32 v{vSCW}, v{vT2} offset:{off}""")
        for s in range(0, R0, 2):
            kpair(s, 3 * ((R0 - s - 2) + min(s, W)), s < W, (s // 2) * 4)
        a(f"v_add_u32 v{vSCW}, {2*R0}, v{vSCW}")
        a("L_kloop:")
        a(f"""s_cmp_eq_u32 s{sIT}, {NITK-1}
        s_cbranch_scc0 L_k1
        s_mov_b32 s52, s20
        s_mov_b32 s53, s21
        L_k1:""")
        for s in range(0, W, 2):
            kpair(s, 3 * (W - 2), True, (s // 2) * 4)
        a(f"""v_add_u32 v{vSCW}, {2*W}, v{vSCW}
        s_add_u32 s{sIT}, s{sIT}, 1
        s_cmp_lt_u32 s{sIT}, {NITK}
        s_cbranch_scc1 L_kloop""")
        for s in range(W, R1):
            load(s)
        self.stamp(2, vA)
        F = 32
        a(f"""v_lshl_add_u32 v{vT2}, v{vT1}, 4, v{vSCR}
        s_waitcnt lgkmcnt(0)
        ds_read_b128 v[40:43], v{vT2}
        s_waitcnt lgkmcnt(0)""")
        for i in range(4):
            a(f"v_lshlrev_b32 v{F+2*i}, 16, v{40+i}\nv_and_b32 v{F+2*i+1}, 0xffff0000, v{40+i}")
        a(f"""v_max3_f32 v{vA0}, v{F}, v{F+1}, v{F+2}
        v_max3_f32 v{vA0}, v{vA0}, v{F+3}, v{F+4}
        v_max3_f32 v{vA0}, v{vA0}, v{F+5}, v{F+6}
        v_max_f32 v{vA0}, v{vA0}, v{F+7}""")
        self.row_reduce("v_max_f32", vA0)
        self.swap_reduce("v_max_f32", vA0, vT3, 16)
        self.swap_reduce("v_max_f32", vA0, vT3, 32)
        for i in range(8):
            a(f"v_sub_f32 v{F+i}, v{F+i}, v{vA0}\nv_mul_f32 v{F+i}, {LOG2E}, v{F+i}")
        for i in range(8):
            a(f"v_exp_f32 v{F+i}, v{F+i}")
        a("s_nop 0")
        a(f"v_add_f32 v{vA1}, v{F}, v{F+1}")
        for i in range(2, 8):
            a(f"v_add_f32 v{vA1}, v{vA1}, v{F+i}")
        for i in range(4):
            a(f"v_cvt_pk_bf16_f32 v{40+i}, v{F+2*i}, v{F+2*i+1}")
        a(f"ds_write_b128 v{vT2}, v[40:43]")
        self.row_reduce("v_add_f32", vA1)
        self.swap_reduce("v_add_f32", vA1, vT3, 16)
        self.swap_reduce("v_add_f32", vA1, vT3, 32)
        a("s_waitcnt lgkmcnt(0)")
        def pread(n, off=0):
            if n == 1: a(f"ds_read_b32 v{vP}, v{vSCR} offset:{off}")
            elif n == 2: a(f"ds_read_b64 v[{vP}:{vP+1}], v{vSCR} offset:{off}")
            elif n == 4: a(f"ds_read_b128 v[{vP}:{vP+3}], v{vSCR} offset:{off}")
            elif n == 8: a(f"ds_read_b128 v[{vP}:{vP+3}], v{vSCR} offset:{off}\nds_read_b128 v[{vP+4}:{vP+7}], v{vSCR} offset:{off+16}")
            else: raise ValueError(n)
        pread(R1 // 2)
        self.tag(44, vA0, vTG)
        self.tag(45, vA1, vTG)
        a(f"""v_mov_b32 v46, s{sT}
        v_mov_b32 v47, s{sT}
        s_lshl_b32 s9, s7, 6
        s_lshl_b32 s11, s3, 4
        s_add_u32 s9, s9, s11
        s_add_u32 s9, s9, {ST_OFF}
        v_mov_b32 v{vA0}, 0
        s_mov_b64 exec, 1
        buffer_store_dwordx4 v[44:47], v{vA0}, s[56:59], s9 offen sc1
        s_mov_b64 exec, -1""")
        for i in range(12):
            a(f"v_mov_b32 v{vACC+i}, 0")
        a(f"s_mov_b32 s{sIT}, 0\nv_add_u32 v{vSCR}, {2*R1}, v{vSCR}\ns_waitcnt lgkmcnt(0)")
        self.stamp(3, 60)

        def vslot(s, n, reload, last, nnext):
            A = vA + 4 * ((s + 1) & 1)
            self.buildA(A, vP + s // 2, s & 1, vSEL)
            if last:
                pread(nnext)
                a(f"v_add_u32 v{vSCR}, {4*nnext}, v{vSCR}")
            a(f"s_waitcnt vmcnt({n})\ns_nop 0")
            for j in range(3):
                self.mfma(vACC + 4 * j, A, RING + (s * 3 + j) * 4, vACC + 4 * j)
            if reload:
                load(s)
        for s in range(R1):
            vslot(s, 3 * ((R1 - s - 1) + min(s, W)), s < W, s == R1 - 1, W // 2)
        a("L_vloop:")
        a(f"""s_cmp_eq_u32 s{sIT}, {NITV-1}
        s_cbranch_scc0 L_v1
        s_mov_b32 s54, 0
        L_v1:
        s_waitcnt lgkmcnt(0)""")
        for s in range(W):
            vslot(s, 3 * (W - 1), True, s == W - 1, W // 2)
        a(f"""s_add_u32 s{sIT}, s{sIT}, 1
        s_cmp_lt_u32 s{sIT}, {NITV}
        s_cbranch_scc1 L_vloop""")
        a("s_nop 3")
        for j in range(3):
            a(f"""v_cvt_pk_bf16_f32 v{vA+2*j}, v{vACC+4*j}, v{vACC+4*j+1}
            v_cvt_pk_bf16_f32 v{vA+2*j+1}, v{vACC+4*j+2}, v{vACC+4*j+3}""")
        a("s_mov_b32 exec_lo, 0x00ff00ff\ns_mov_b32 exec_hi, 0xff00ff00")
        for j in range(3):
            a(f"ds_write_b64 v{vOW}, v[{vA+2*j}:{vA+2*j+1}] offset:{128*j}")
        a("s_mov_b64 exec, -1")
        a(f"""v_and_b32 v{vT0}, 7, v{vL}
        v_mul_u32_u24 v{vT0}, {OS}, v{vT0}
        v_lshrrev_b32 v{vT1}, 4, v{vL}
        v_lshl_add_u32 v{vT0}, v{vT1}, 4, v{vT0}
        v_and_b32 v{vT2}, 1, v{vT1}
        v_and_b32 v{vT3}, 15, v{vL}
        v_lshl_add_u32 v{vT3}, v{vT3}, 1, v{vT2}
        v_lshlrev_b32 v{vT3}, 2, v{vT3}
        v_lshlrev_b32 v{vT2}, 3, v{vT2}
        s_mul_i32 s9, s3, 12288
        s_add_u32 s9, s9, {L_WX}
        v_lshlrev_b32 v{vT1}, 4, v{vL}
        v_add_u32 v{vT1}, s9, v{vT1}
        s_mul_i32 s9, s7, 2560
        s_lshl_b32 s11, s3, 7
        s_add_u32 s9, s9, s11
        s_add_u32 s9, s9, {P_OFF + 2048}
        s_waitcnt lgkmcnt(0)""")
        self.stamp(4, 12)
        a("s_barrier")
        AA = RING + 12 * W
        BB = AA + 24
        assert BB + 48 <= 256
        D0, D1, SCL = 32, 36, 40
        for k in range(6):
            a(f"ds_read_b128 v[{AA+4*k}:{AA+4*k+3}], v{vT0} offset:{L_O + 64*k}")
            a(f"ds_read_b128 v[{BB+8*k}:{BB+8*k+3}], v{vT1} offset:{2048*k}")
            a(f"ds_read_b128 v[{BB+8*k+4}:{BB+8*k+7}], v{vT1} offset:{2048*k+1024}")
            if k == 3:
                a("s_waitcnt lgkmcnt(6)")
        a(f"ds_read_b64 v[{SCL}:{SCL+1}], v{vT2} offset:{L_SCALE}")
        for k in range(6):
            a(f"s_waitcnt lgkmcnt({min(15, 3*(5-k)+1)})")
            self.mfma(D0, AA + 4 * k, BB + 8 * k, None if k == 0 else D0)
            self.mfma(D1, AA + 4 * k, BB + 8 * k + 4, None if k == 0 else D1)
        a("s_waitcnt lgkmcnt(0)\ns_nop 7")
        for D in (D0, D1):
            a(f"""v_add_f32 v{D}, v{D}, v{D+1}
            v_add_f32 v{D+2}, v{D+2}, v{D+3}
            v_mul_f32 v{D}, v{D}, v{SCL}
            v_fmac_f32 v{D}, v{D+2}, v{SCL+1}""")
        a(f"""s_nop 1
        v_permlane16_swap_b32 v{D0}, v{D1}
        s_nop 1
        v_add_f32 v{D0}, v{D0}, v{D1}""")
        self.tag(D0, D0, vTG)
        a(f"""s_mov_b32 exec_hi, 0
        buffer_store_dword v{D0}, v{vT3}, s[56:59], s9 offen sc1
        s_mov_b64 exec, -1""")
        self.stamp(5, 12)
        a("s_endpgm")

    def gen_H(self):
        a = self.a
        vL = 0
        vT0, vT1, vT2, vT3, vT4, vT5, vW = 1, 2, 3, 4, 5, 6, 7
        vX = 8
        vSEL = 18
        vTG = 26
        vCK = 27
        vF = 28
        vA, vACC = 28, 36
        vE = 52
        TI = 64
        if self.hprio:
            a(f"s_setprio {self.hprio}")
        a("s_sub_u32 s3, s3, 4")
        a(f"""s_and_b32 s14, s10, 7
        v_lshrrev_b32 v{vT0}, 5, v{vL}
        v_mul_u32_u24 v{vT0}, 1280, v{vT0}
        v_and_b32 v{vT1}, 31, v{vL}
        v_lshl_add_u32 v{vT0}, v{vT1}, 3, v{vT0}
        v_lshrrev_b32 v{vT1}, 3, v{vL}
        v_mul_u32_u24 v{vW}, {10*12288}, v{vT1}
        v_and_b32 v{vT2}, 7, v{vL}
        v_lshl_add_u32 v{vW}, v{vT2}, 4, v{vW}
        s_mul_i32 s9, s4, 384
        s_mul_i32 s11, s14, {80*12288}
        s_add_u32 s9, s9, s11
        s_lshl_b32 s11, s3, 7
        s_add_u32 s9, s9, s11
        v_add_u32 v{vW}, s9, v{vW}
        s_waitcnt lgkmcnt(0)""")
        self.srd(60, 16, 2560)
        self.srd(44, 22, 640 * 12288)
        for t in range(5):
            a(f"buffer_load_dwordx2 v[{vX+2*t}:{vX+2*t+1}], v{vT0}, s[60:63], 0 offen offset:{256*t}")
        a("s_cmp_eq_u32 s3, 3\ns_cselect_b32 s46, 0, s46")
        for G in range(10):
            a(f"s_mov_b32 s9, {G*12288}")
            a(f"buffer_load_dwordx4 v[{TI+4*G}:{TI+4*G+3}], v{vW}, s[44:47], s9 offen {self.wf}")
        self.epoch_load()
        self.srd(56, 40, WS_SRD)
        self.selectors(vL, vSEL, vT3, vT4, vT5)
        a("s_waitcnt vmcnt(10)")
        for i in range(10):
            a(f"v_lshlrev_b32 v{vF+2*i}, 16, v{vX+i}\nv_and_b32 v{vF+2*i+1}, 0xffff0000, v{vX+i}")
        a(f"v_add_f32 v{vT3}, v{vF}, v{vF+1}\nv_add_f32 v{vT4}, v{vF+2}, v{vF+3}")
        for i in range(4, 20, 2):
            a(f"v_add_f32 v{vT3}, v{vT3}, v{vF+i}\nv_add_f32 v{vT4}, v{vT4}, v{vF+i+1}")
        a(f"v_add_f32 v{vT3}, v{vT3}, v{vT4}")
        self.row_reduce("v_add_f32", vT3)
        self.swap_reduce("v_add_f32", vT3, vT4, 16)
        def div640(v, t):
            a(f"""v_mul_f32 v{t}, {f32(1/640)}, v{v}
            v_fmac_f32 v{v}, {f32(-640.0)}, v{t}
            v_fmac_f32 v{t}, {f32(1/640)}, v{v}
            v_mov_b32 v{v}, v{t}""")
        div640(vT3, vT4)
        a(f"v_mov_b32 v{vT4}, 0\nv_mov_b32 v{vT5}, 0")
        for i in range(0, 20, 2):
            a(f"""v_sub_f32 v{vE+4}, v{vF+i}, v{vT3}
            v_sub_f32 v{vE+5}, v{vF+i+1}, v{vT3}
            v_fmac_f32 v{vT4}, v{vE+4}, v{vE+4}
            v_fmac_f32 v{vT5}, v{vE+5}, v{vE+5}""")
        a(f"v_add_f32 v{vT4}, v{vT4}, v{vT5}")
        self.row_reduce("v_add_f32", vT4)
        self.swap_reduce("v_add_f32", vT4, vT5, 16)
        div640(vT4, vT5)
        self.rbf(vT3)
        self.rbf(vT4)
        a(f"v_add_f32 v{vT4}, {f32(1e-5)}, v{vT4}")
        self.rbf(vT4)
        a(f"v_sqrt_f32 v{vT4}, v{vT4}\ns_nop 0")
        self.rbf(vT4)
        a(f"v_rcp_f32 v{vT5}, v{vT4}")
        for i in range(10):
            f0, f1 = vF + 2 * i, vF + 2 * i + 1
            a(f"""v_sub_f32 v{f0}, v{f0}, v{vT3}
            v_sub_f32 v{f1}, v{f1}, v{vT3}
            v_cvt_pk_bf16_f32 v{f1}, v{f0}, v{f1}
            v_lshlrev_b32 v{f0}, 16, v{f1}
            v_and_b32 v{f1}, 0xffff0000, v{f1}
            v_mul_f32 v{vE+4}, v{f0}, v{vT5}
            v_mul_f32 v{vE+5}, v{f1}, v{vT5}
            v_fma_f32 v{f0}, -v{vE+4}, v{vT4}, v{f0}
            v_fma_f32 v{f1}, -v{vE+5}, v{vT4}, v{f1}
            v_fmac_f32 v{vE+4}, v{f0}, v{vT5}
            v_fmac_f32 v{vE+5}, v{f1}, v{vT5}
            v_cvt_pk_bf16_f32 v{vX+i}, v{vE+4}, v{vE+5}""")
        for t in range(5):
            a(f"ds_write_b64 v{vT0}, v[{vX+2*t}:{vX+2*t+1}] offset:{L_XN + 256*t}")
        a("s_waitcnt lgkmcnt(0)")
        self.epoch_use(vTG)
        self.stamp(15, 60, src=86)
        self.stamp(1, 60)
        a("s_cmp_eq_u32 s3, 3\ns_cbranch_scc1 L_qcons")
        a(f"""v_mul_u32_u24 v{vT3}, 20, v{vT1}
        s_mul_i32 s9, s14, 160
        v_add_u32 v{vT3}, s9, v{vT3}""")
        for bb in range(2):
            for t in range(5):
                a(f"ds_read_b32 v{vX+5*bb+t}, v{vT3} offset:{L_XN + 1280*bb + 4*t}")
        a(f"""v_lshrrev_b32 v{vT4}, 5, v{vL}
        v_mul_u32_u24 v{vT4}, 768, v{vT4}
        v_lshl_add_u32 v{vT4}, v{vT2}, 5, v{vT4}
        v_bfe_u32 v{vT5}, v{vL}, 4, 1
        v_lshl_add_u32 v{vT4}, v{vT5}, 4, v{vT4}
        s_lshl_b32 s9, s4, 3
        s_add_u32 s9, s9, s14
        s_mul_i32 s9, s9, 1536
        s_lshl_b32 s11, s3, 8
        s_add_u32 s9, s9, s11
        s_add_u32 s9, s9, {QX_OFF}
        s_waitcnt lgkmcnt(0)""")
        for G in range(10):
            self.buildA(vA, vX + G // 2, G & 1, vSEL)
            self.buildA(vA + 4, vX + 5 + G // 2, G & 1, vSEL)
            a(f"s_waitcnt vmcnt({9-G})\ns_nop 0")
            self.mfma(vACC, vA, TI + 4 * G, None if G == 0 else vACC)
            self.mfma(vACC + 4, vA + 4, TI + 4 * G, None if G == 0 else vACC + 4)
        a("s_nop 7")
        for r in range(4):
            a(f"v_permlane32_swap_b32 v{vACC+r}, v{vACC+4+r}")
        a("s_nop 1")
        for r in range(4):
            self.dpp("v_add_f32", vACC + r, vACC + 4 + r, vACC + r, "row_ror:8")
        for r in range(4):
            self.tag(vACC + r, vACC + r, vTG, rn=True)
        a(f"""s_mov_b32 exec_lo, 0x00ff00ff
        s_mov_b32 exec_hi, 0x00ff00ff
        buffer_store_dwordx4 v[{vACC}:{vACC+3}], v{vT4}, s[56:59], s9 offen sc1
        s_mov_b64 exec, -1
        s_branch L_qdone
        L_qcons:""")
        Lq, Lqd = self.lab("q"), self.lab("qd")
        a(f"""v_lshlrev_b32 v{vT3}, 4, v{vL}
        v_lshlrev_b32 v{vT4}, 3, v{vL}
        s_mul_i32 s9, s4, {8*1536}
        s_mul_i32 s11, s5, 768
        s_add_u32 s9, s9, s11
        s_add_u32 s70, s9, {QX_OFF}
        s_add_u32 s71, s70, 3072
        s_add_u32 s72, s70, 6144
        s_add_u32 s73, s70, 9216
        s_mov_b32 s12, {self.poll_max}
        s_mov_b32 exec_hi, 0xffff
        {Lq}:""")
        for k in range(8):
            a(f"buffer_load_dwordx4 v[{TI+4*k}:{TI+4*k+3}], v{vT3}, s[56:59], s{70+k//2} offen offset:{1536*(k&1)} sc1")
        for k in range(8):
            a(f"s_waitcnt vmcnt({7-k})")
            self.chk4(vCK, TI + 4 * k, vTG, first=(k == 0))
            if k:
                for r in range(4):
                    a(f"v_add_f32 v{TI+r}, v{TI+r}, v{TI+4*k+r}")
        self.poll_tail(vCK, Lq, Lqd, 0)
        a(f"""v_cvt_pk_bf16_f32 v{TI}, v{TI}, v{TI+1}
        v_cvt_pk_bf16_f32 v{TI+1}, v{TI+2}, v{TI+3}
        ds_write_b64 v{vT4}, v[{TI}:{TI+1}] offset:{L_QB}
        s_mov_b64 exec, -1
        s_waitcnt lgkmcnt(0)
        L_qdone:""")
        self.stamp(2, 60)
        a("s_barrier")
        a(f"""s_cmp_lg_u32 s3, 0
        s_cbranch_scc1 L_noinc""")
        self.srd(60, 38, 256)
        a(f"""v_mov_b32 v{vT3}, 1
        v_mov_b32 v{vT4}, 0
        s_mov_b64 exec, 1
        buffer_atomic_add v{vT3}, v{vT4}, s[60:63], 0 offen sc1
        s_mov_b64 exec, -1
        L_noinc:""")
        a(f"v_and_b32 v{vT1}, 15, v{vL}\nv_lshrrev_b32 v{vT2}, 4, v{vL}")
        a(f"""s_mul_hi_u32 s81, s2, {(2**32 + 23)//24}
        s_mul_i32 s80, s81, 24
        s_sub_u32 s80, s2, s80
        s_mov_b32 s82, 0
        s_cmp_ge_u32 s2, 240
        s_cbranch_scc1 L_nomoe1
        s_cmp_lg_u32 s3, 1
        s_cbranch_scc1 L_nomoe1
        s_mov_b32 s82, 1""")
        self.gen_moe1(vL, vT1, vT2, vT3, vT4, vT5, vSEL, vA, vACC, vTG, TI)
        a("L_nomoe1:")
        self.srd(44, 24, 6144 * 1280)
        a(f"""v_mul_u32_u24 v{vW}, {8*1280}, v{vT2}
        s_mul_i32 s9, s4, {192*1280}
        v_add_u32 v{vW}, s9, v{vW}
        v_lshl_add_u32 v{vT3}, v{vT1}, 2, v{vW}
        s_lshl_b32 s9, s3, 6
        s_add_u32 s9, s9, 1024
        v_add_u32 v{vT3}, s9, v{vT3}
        v_lshl_add_u32 v{vW}, v{vT1}, 4, v{vW}
        s_lshl_b32 s9, s3, 8
        v_add_u32 v{vW}, s9, v{vW}
        s_mov_b32 s14, 0x05040100
        s_mov_b32 s15, 0x07060302
        s_mul_i32 s9, s3, 12288
        s_add_u32 s9, s9, {L_WX}
        v_lshlrev_b32 v{vT4}, 4, v{vL}
        v_add_u32 v{vT4}, s9, v{vT4}""")
        for K0 in range(0, 6, 2):
            for K in (K0, K0 + 1):
                for e in range(8):
                    if e % 4 == 0:
                        a(f"s_mov_b32 s9, {(32*K + e)*1280}")
                    a(f"buffer_load_dword v{TI+8*K+e}, v{vT3}, s[44:47], s9 offen offset:{(e%4)*1280} {self.wof}")
            for K in (K0, K0 + 1):
                a(f"s_waitcnt vmcnt({8*(K0+1-K)})")
                d = TI + 48 + 8 * K
                for t in range(4):
                    a(f"v_perm_b32 v{d+t}, v{TI+8*K+2*t+1}, v{TI+8*K+2*t}, s14")
                    a(f"v_perm_b32 v{d+4+t}, v{TI+8*K+2*t+1}, v{TI+8*K+2*t}, s15")
                a(f"ds_write_b128 v{vT4}, v[{d}:{d+3}] offset:{2048*K}")
                a(f"ds_write_b128 v{vT4}, v[{d+4}:{d+7}] offset:{2048*K+1024}")
        a("s_waitcnt lgkmcnt(0)")
        self.stamp(3, 60)
        a("s_cmp_eq_u32 s82, 0\ns_cbranch_scc1 L_nomoe2")
        self.gen_moe2(vL, vT1, vT2, vT3, vT4, vT5, vSEL, vA, vACC, vTG, vCK, TI)
        self.stamp(9, 60)
        a("L_nomoe2:")
        def REG(k): return 32 + 32 * k
        for K in range(6):
            for e in range(8):
                if e % 4 == 0:
                    a(f"s_mov_b32 s9, {(32*K + e)*1280}")
                r = REG(0) + 4 * e
                a(f"buffer_load_dwordx4 v[{r}:{r+3}], v{vW}, s[44:47], s9 offen offset:{(e%4)*1280} {self.wof}")
                if self.wobatch == 4 and e == 3:
                    a("s_waitcnt vmcnt(0)")
            s, d = REG(0), REG(K + 1)
            for t in range(4):
                a(f"s_waitcnt vmcnt({6-2*t})")
                for dd in range(4):
                    a(f"v_perm_b32 v{d+(2*dd)*4+t}, v{s+(2*t+1)*4+dd}, v{s+(2*t)*4+dd}, s14")
                    a(f"v_perm_b32 v{d+(2*dd+1)*4+t}, v{s+(2*t+1)*4+dd}, v{s+(2*t)*4+dd}, s15")
        vG, vXC, vOUTA, vPA, vSC = 8, 9, 10, 11, 12
        vAR, vST = 14, 15
        Wk = 32
        self.stamp(4, 60)
        a(f"""s_cmp_lg_u32 s3, 3
        s_cbranch_scc1 L_noep
        s_cmp_lg_u32 s2, 0
        s_cbranch_scc1 L_noep""")
        Lc, Lcd = self.lab("c0"), self.lab("c0d")
        self.srd(60, 38, 256)
        a(f"""s_mov_b32 s12, {self.poll_max}
        v_mov_b32 v{Wk+1}, 0
        {Lc}:
        buffer_load_dword v{Wk}, v{Wk+1}, s[60:63], 0 offen sc1
        s_waitcnt vmcnt(0)
        v_readfirstlane_b32 s13, v{Wk}
        s_cmp_ge_u32 s13, 256
        s_cbranch_scc1 {Lcd}
        s_sleep 16
        s_sub_u32 s12, s12, 1
        s_cmp_gt_u32 s12, 0
        s_cbranch_scc1 {Lc}
        {Lcd}:
        v_mov_b32 v{Wk}, s{sT}
        s_mov_b32 s9, {EP_OFF}
        s_mov_b64 exec, 1
        buffer_store_dword v{Wk}, v{Wk+1}, s[56:59], s9 offen sc1
        s_mov_b64 exec, -1
        L_noep:""")
        a("s_cmp_lg_u32 s3, 0\ns_cbranch_scc1 L_nostat")
        Ls, Lsd = self.lab("st"), self.lab("std")
        a(f"""s_lshl_b32 s9, s8, 8
        s_add_u32 s9, s9, {ST_OFF}
        v_lshlrev_b32 v{Wk+4}, 4, v{vT1}
        v_mov_b32 v{Wk+5}, s{sT}
        s_mov_b32 s12, {self.poll_max}
        {Ls}:
        buffer_load_dwordx4 v[{Wk}:{Wk+3}], v{Wk+4}, s[56:59], s9 offen sc1
        s_waitcnt vmcnt(0)""")
        self.chk4(vCK, Wk, vTG, first=True, n=2)
        a(f"""v_and_b32 v{vCK}, 0xff, v{vCK}
        v_bitop3_b32 v{vCK}, v{Wk+2}, v{Wk+5}, v{vCK} bitop3:0xbe
        v_bitop3_b32 v{vCK}, v{Wk+3}, v{Wk+5}, v{vCK} bitop3:0xbe
        v_cmp_ne_u32 vcc, 0, v{vCK}
        s_cbranch_vccz {Lsd}
        s_sleep 32
        s_sub_u32 s12, s12, 1
        s_cmp_gt_u32 s12, 0
        s_cbranch_scc1 {Ls}
        {Lsd}:
        v_mov_b32 v{Wk+2}, v{Wk}""")
        self.row_reduce("v_max_f32", Wk + 2)
        a(f"""v_sub_f32 v{Wk}, v{Wk}, v{Wk+2}
        v_mul_f32 v{Wk}, {LOG2E}, v{Wk}
        v_exp_f32 v{Wk}, v{Wk}
        s_nop 0
        v_mul_f32 v{Wk+1}, v{Wk+1}, v{Wk}""")
        self.row_reduce("v_add_f32", Wk + 1)
        a(f"""v_rcp_f32 v{Wk+2}, v{Wk+1}
        s_nop 0
        v_mul_f32 v{Wk+3}, v{Wk}, v{Wk+2}
        v_fma_f32 v{Wk}, -v{Wk+3}, v{Wk+1}, v{Wk}
        v_fmac_f32 v{Wk+3}, v{Wk}, v{Wk+2}
        s_lshl_b32 s9, s6, 2
        v_subrev_u32 v{Wk+4}, s9, v{vL}
        v_cmp_gt_u32 vcc, 4, v{Wk+4}
        v_lshlrev_b32 v{Wk+4}, 2, v{Wk+4}
        s_and_saveexec_b64 s[10:11], vcc
        ds_write_b32 v{Wk+4}, v{Wk+3} offset:{L_SCALE}
        s_mov_b64 exec, -1
        L_nostat:""")
        a(f"""s_lshl_b32 s67, s6, 5
        s_add_u32 s67, s67, s4
        s_mov_b32 s68, 0
        s_cmp_lg_u32 s3, 2
        s_cbranch_scc1 L_noown
        s_cmp_ge_u32 s67, 40
        s_cbranch_scc1 L_noown
        s_mov_b32 s68, 1""")
        self.srd(60, 28, 1280)
        W = Wk
        a(f"""v_lshlrev_b32 v{W+20}, 2, v{vL}
        s_mul_i32 s9, s5, 1280
        v_add_u32 v{W+21}, s9, v{W+20}""")
        for t in range(5):
            a(f"buffer_load_dword v{W+t}, v{W+20}, s[60:63], 0 offen offset:{256*t}")
            a(f"ds_read_b32 v{W+5+t}, v{W+21} offset:{L_XN + 256*t}")
        self.srd(60, 16, 2560)
        a(f"""v_and_b32 v{W+22}, 3, v{vL}
        v_lshl_add_u32 v{vOUTA}, v{W+22}, 2, v{vT2}
        v_lshlrev_b32 v{vOUTA}, 1, v{vOUTA}
        s_lshl_b32 s10, s67, 5
        s_add_u32 s10, s10, s9
        v_add_u32 v{vOUTA}, s10, v{vOUTA}
        buffer_load_ushort v{vXC}, v{vOUTA}, s[60:63], 0 offen
        ds_read_u16 v{W+23}, v{vOUTA} offset:{L_XN}
        s_waitcnt vmcnt(0) lgkmcnt(0)""")
        for t in range(5):
            c = "0" if t == 0 else f"v{W+24}"
            a(f"v_dot2_f32_bf16 v{W+24}, v{W+t}, v{W+5+t}, {c}")
        a(f"v_lshlrev_b32 v{vXC}, 16, v{vXC}\nv_lshlrev_b32 v{W+23}, 16, v{W+23}\ns_nop 1")
        self.row_reduce("v_add_f32", W + 24)
        self.swap_reduce("v_add_f32", W + 24, W + 25, 16)
        self.swap_reduce("v_add_f32", W + 24, W + 25, 32)
        self.rbf(W + 24)
        self.sigmoid_like(W + 24, W + 24)
        self.rbf(W + 24)
        Ly, Lyd = self.lab("y"), self.lab("yd")
        a(f"""v_lshrrev_b32 v{W+20}, 2, v{vL}
        v_mul_u32_u24 v{W+21}, 5120, v{W+20}
        v_lshl_add_u32 v{W+21}, v{W+22}, 4, v{W+21}
        v_mul_u32_u24 v{vPA}, 2560, v{W+20}
        v_lshl_add_u32 v{vPA}, v{W+22}, 4, v{vPA}
        s_mul_i32 s9, s5, 2560
        s_lshl_b32 s10, s67, 6
        s_add_u32 s9, s9, s10
        s_add_u32 s9, s9, {Y_OFF}
        s_add_u32 s10, s9, {16*5120}
        s_add_u32 s11, s9, {32*5120}
        s_mov_b32 s12, {self.poll_max}
        {Ly}:
        buffer_load_dwordx4 v[{W}:{W+3}], v{W+21}, s[56:59], s9 offen sc1
        buffer_load_dwordx4 v[{W+4}:{W+7}], v{W+21}, s[56:59], s10 offen sc1
        buffer_load_dwordx4 v[{W+8}:{W+11}], v{W+21}, s[56:59], s11 offen sc1
        s_waitcnt vmcnt(0)""")
        self.chk4(vCK, W, vTG, first=True, n=12)
        self.poll_tail(vCK, Ly, Lyd, 32)
        for r in range(4):
            a(f"v_add_f32 v{W+r}, v{W+r}, v{W+4+r}\nv_add_f32 v{W+r}, v{W+r}, v{W+8+r}")
        self.merge4(W)
        self.rbf(W)
        a(f"v_mul_f32 v{W}, v{W}, v{W+24}")
        self.rbf(W)
        a(f"v_add_f32 v{W}, v{W}, v{W+23}")
        self.rbf(W)
        self.sigmoid_like(W + 1, W)
        a(f"v_mul_f32 v{vG}, v{W}, v{W+1}")
        self.rbf(vG)
        a(f"""s_mul_i32 s70, s5, {128*2560}
        s_lshl_b32 s10, s67, 6
        s_add_u32 s70, s70, s10""")
        for t in range(1, 8):
            a(f"s_add_u32 s{70+t}, s70, {t*40960}")
        a("L_noown:")
        self.srd(60, 36, 2560)
        a(f"""v_and_b32 v{vAR}, 7, v{vL}
        v_mul_u32_u24 v{vAR}, {OS}, v{vAR}
        v_lshl_add_u32 v{vAR}, v{vT2}, 4, v{vAR}
        v_and_b32 v{vT3}, 1, v{vT2}
        v_lshlrev_b32 v{vST}, 5, v{vT1}
        v_lshl_add_u32 v{vST}, v{vT3}, 4, v{vST}
        v_lshlrev_b32 v{vT3}, 3, v{vT3}
        s_mul_i32 s9, s7, 2560
        s_lshl_b32 s10, s3, 9
        s_add_u32 s9, s9, s10
        s_waitcnt vmcnt(0) lgkmcnt(0)""")
        self.stamp(5, 60)
        a("s_barrier")
        self.stamp(6, 60)
        Aop = [16, 20, 28, REG(1), REG(1) + 4, REG(1) + 8]
        for k in range(3):
            a(f"ds_read_b128 v[{Aop[k]}:{Aop[k]+3}], v{vAR} offset:{L_O + 64*k}")
        a(f"ds_read_b64 v[{vSC}:{vSC+1}], v{vT3} offset:{L_SCALE}")
        waits = [3, 5, 4, 2, 1, 0]
        for k in range(6):
            a(f"s_waitcnt lgkmcnt({waits[k]})")
            for c in range(8):
                self.mfma(32 + 4 * c, Aop[k], REG(k + 1) + 4 * c, None if k == 0 else 32 + 4 * c)
            if k == 0:
                for kk in (3, 4, 5):
                    a(f"ds_read_b128 v[{Aop[kk]}:{Aop[kk]+3}], v{vAR} offset:{L_O + 64*kk}")
        a("s_nop 1")
        for c in range(8):
            D = 32 + 4 * c
            a(f"""v_add_f32 v{D}, v{D}, v{D+1}
            v_add_f32 v{D+2}, v{D+2}, v{D+3}
            v_mul_f32 v{D}, v{D}, v{vSC}
            v_fmac_f32 v{D}, v{D+2}, v{vSC+1}""")
        a("s_nop 1")
        for c in range(4):
            a(f"v_permlane16_swap_b32 v{32+4*c}, v{48+4*c}")
        a("s_nop 1")
        for c in range(4):
            a(f"v_add_f32 v{16+c}, v{32+4*c}, v{48+4*c}")
        for c in range(4):
            self.tag(16 + c, 16 + c, vTG)
        a(f"""s_mov_b32 exec_hi, 0
        buffer_store_dwordx4 v[16:19], v{vST}, s[56:59], s9 offen sc1
        s_mov_b32 exec_hi, -1""")
        self.stamp(7, 60)
        a("""s_cmp_eq_u32 s68, 0
        s_cbranch_scc1 L_end""")
        Lp, Lpd = self.lab("p"), self.lab("pd")
        Z = 64
        a(f"s_mov_b32 s12, {self.poll_max}\n{Lp}:")
        for t in range(8):
            a(f"buffer_load_dwordx4 v[{Z+4*t}:{Z+4*t+3}], v{vPA}, s[56:59], s{70+t} offen sc1")
        for t in range(8):
            a(f"s_waitcnt vmcnt({7-t})")
            self.chk4(vCK, Z + 4 * t, vTG, first=(t == 0))
            if t:
                for r in range(4):
                    a(f"v_add_f32 v{Z+r}, v{Z+r}, v{Z+4*t+r}")
        self.poll_tail(vCK, Lp, Lpd, 0)
        self.merge4(Z)
        self.rbf(Z)
        a(f"v_mul_f32 v{Z}, v{Z}, v{vG}")
        self.rbf(Z)
        a(f"""v_add_f32 v{Z}, v{Z}, v{vXC}
        v_cvt_pk_bf16_f32 v{Z}, v{Z}, v{Z}
        s_mov_b32 exec_lo, 0x000f000f
        s_mov_b32 exec_hi, 0x000f000f
        buffer_store_short v{Z}, v{vOUTA}, s[60:63], 0 offen""")
        self.stamp(8, 60)

    def gen_moe1(self, vL, vT1, vT2, vT3, vT4, vT5, vSEL, vA, vACC, vTG, TI):
        a = self.a
        vAD = 52
        vCA = 54
        a(f"""v_cmp_gt_u32 vcc, 8, v{vT1}
        v_mov_b32 v{vT3}, s32
        v_mov_b32 v{vT4}, s30
        v_cndmask_b32 v{vAD}, v{vT3}, v{vT4}, vcc
        v_mov_b32 v{vT3}, s33
        v_mov_b32 v{vT4}, s31
        v_cndmask_b32 v{vAD+1}, v{vT3}, v{vT4}, vcc
        v_mul_u32_u24 v{vT3}, {16*3072}, v{vT2}
        v_and_b32 v{vT4}, 7, v{vL}
        v_lshl_add_u32 v{vT3}, v{vT4}, 4, v{vT3}
        s_lshl_b32 s9, s80, 7
        s_mul_i32 s10, s81, {64*3072}
        s_add_u32 s9, s9, s10
        v_add_u32 v{vT4}, s9, v{vT3}
        v_mov_b32 v{vT5}, 0
        v_add_co_u32 v{vAD}, vcc, v{vAD}, v{vT4}
        s_nop 1
        v_addc_co_u32 v{vAD+1}, vcc, v{vAD+1}, v{vT5}, vcc
        v_lshrrev_b32 v{vT3}, 3, v{vT1}
        v_mul_u32_u24 v{vCA}, 1280, v{vT3}
        v_lshl_add_u32 v{vCA}, v{vT2}, 5, v{vCA}
        s_lshl_b32 s9, s81, 7
        v_add_u32 v{vCA}, s9, v{vCA}
        s_mov_b32 s10, 6144
        s_mov_b32 s11, 0
        ds_read_b128 v[8:11], v{vCA} offset:{L_XN}
        ds_read_b128 v[12:15], v{vCA} offset:{L_XN+16}""")
        for half in range(2):
            for t in range(8):
                a(f"global_load_dwordx4 v[{TI+4*t}:{TI+4*t+3}], v[{vAD}:{vAD+1}], off offset:{3072*(t&1)} {self.mf}")
                if t & 1:
                    a(f"v_lshl_add_u64 v[{vAD}:{vAD+1}], v[{vAD}:{vAD+1}], 0, s[10:11]")
            a("s_waitcnt lgkmcnt(0)")
            for t in range(8):
                Gd = half * 8 + t
                A = vA + 4 * (t & 1)
                self.buildA(A, 8 + Gd // 2, Gd & 1, vSEL)
                a(f"s_waitcnt vmcnt({7-t})\ns_nop 0")
                self.mfma(vACC, A, TI + 4 * t, None if Gd == 0 else vACC)
        a(f"""s_mul_i32 s9, s80, 10240
        s_lshl_b32 s10, s81, 10
        s_add_u32 s9, s9, s10
        s_add_u32 s9, s9, {G1_OFF}
        v_lshlrev_b32 v{vT3}, 4, v{vL}
        s_nop 7""")
        for r in range(4):
            self.tag(vACC + r, vACC + r, vTG, rn=True)
        a(f"buffer_store_dwordx4 v[{vACC}:{vACC+3}], v{vT3}, s[56:59], s9 offen sc1")

    def gen_moe2(self, vL, vT1, vT2, vT3, vT4, vT5, vSEL, vA, vACC, vTG, vCK, TI):
        a = self.a
        DT = TI + 64
        vD = 52
        a(f"""s_cmp_ge_u32 s81, 5
        s_cselect_b32 s83, 1, 0
        s_mul_i32 s84, s83, 5
        s_sub_u32 s84, s81, s84""")
        self.srd(60, 34, 1536 * 1280)
        a(f"""v_mul_u32_u24 v{vD}, {8*1280}, v{vT2}
        v_lshl_add_u32 v{vD}, v{vT1}, 4, v{vD}
        s_mul_i32 s9, s80, {64*1280}
        s_mul_i32 s10, s83, {32*1280}
        s_add_u32 s9, s9, s10
        s_lshl_b32 s10, s84, 8
        s_add_u32 s9, s9, s10
        s_add_u32 s10, s9, {4*1280}""")
        for Gd in range(8):
            a(f"buffer_load_dwordx4 v[{DT+4*Gd}:{DT+4*Gd+3}], v{vD}, s[60:63], s{9 + Gd//4} offen offset:{(Gd%4)*1280} {self.mf}")
        Lg, Lgd = self.lab("g"), self.lab("gd")
        a(f"""s_mul_i32 s9, s80, 10240
        s_add_u32 s9, s9, {G1_OFF}
        s_add_u32 s10, s9, 4096
        s_add_u32 s11, s9, 8192
        v_lshlrev_b32 v{vT3}, 4, v{vL}
        s_mov_b32 s12, {self.poll_max}
        {Lg}:""")
        for t in range(10):
            a(f"buffer_load_dwordx4 v[{TI+4*t}:{TI+4*t+3}], v{vT3}, s[56:59], s{9 + t//4} offen offset:{(t%4)*1024} sc1")
        a("s_waitcnt vmcnt(0)")
        self.chk4(vCK, TI, vTG, first=True, n=40)
        self.poll_tail(vCK, Lg, Lgd, 32)
        for t in range(1, 10):
            for r in range(4):
                a(f"v_add_f32 v{TI+r}, v{TI+r}, v{TI+4*t+r}")
        for r in range(4):
            self.rbf(TI + r)
        a("s_nop 1")
        for r in range(4):
            a(f"v_mov_b32_dpp v{TI+4+r}, v{TI+r} row_ror:8 row_mask:0xf bank_mask:0xf")
        for r in range(4):
            self.sigmoid_like(vT3, TI + r)
            a(f"v_mul_f32 v{TI+r}, v{TI+r}, v{vT3}")
            self.rbf(TI + r)
            a(f"v_mul_f32 v{TI+r}, v{TI+r}, v{TI+4+r}")
        a(f"""v_cvt_pk_bf16_f32 v{TI+4}, v{TI}, v{TI+1}
        v_cvt_pk_bf16_f32 v{TI+5}, v{TI+2}, v{TI+3}
        v_lshrrev_b32 v{vT3}, 1, v{vT2}
        v_lshlrev_b32 v{vT3}, 7, v{vT3}
        v_lshl_add_u32 v{vT3}, v{vT1}, 4, v{vT3}
        v_and_b32 v{vT4}, 1, v{vT2}
        v_lshl_add_u32 v{vT3}, v{vT4}, 3, v{vT3}
        s_mov_b32 exec_lo, 0x00ff00ff
        s_mov_b32 exec_hi, 0x00ff00ff
        ds_write_b64 v{vT3}, v[{TI+4}:{TI+5}] offset:{L_HB}
        s_mov_b64 exec, -1
        v_lshrrev_b32 v{vT3}, 3, v{vT1}
        v_lshlrev_b32 v{vT3}, 7, v{vT3}
        v_lshl_add_u32 v{vT3}, v{vT2}, 4, v{vT3}
        s_lshl_b32 s9, s83, 6
        v_add_u32 v{vT3}, s9, v{vT3}
        s_waitcnt lgkmcnt(0)
        ds_read_b128 v[8:11], v{vT3} offset:{L_HB}
        s_waitcnt lgkmcnt(0)""")
        for Gd in range(8):
            A = vA + 4 * (Gd & 1)
            self.buildA(A, 8 + Gd // 2, Gd & 1, vSEL)
            a("s_nop 1")
            self.mfma(vACC, A, DT + 4 * Gd, None if Gd == 0 else vACC)
        a(f"""v_lshrrev_b32 v{vT3}, 1, v{vT2}
        v_mul_u32_u24 v{vT3}, 2560, v{vT3}
        v_lshl_add_u32 v{vT3}, v{vT1}, 5, v{vT3}
        v_lshl_add_u32 v{vT3}, v{vT4}, 4, v{vT3}
        s_lshl_b32 s9, s80, 1
        s_add_u32 s9, s9, s83
        s_mul_i32 s9, s9, 5120
        s_lshl_b32 s10, s84, 9
        s_add_u32 s9, s9, s10
        s_add_u32 s9, s9, {Y_OFF}
        s_nop 3""")
        for r in range(4):
            self.tag(vACC + r, vACC + r, vTG, rn=True)
        a(f"buffer_store_dwordx4 v[{vACC}:{vACC+3}], v{vT3}, s[56:59], s9 offen sc1\ns_waitcnt vmcnt(0)")

    def text(self):
        hdr = open("recurrent_scan__mha_block_cached__moe_arch_mod__decode.s.ref").read().split("; Override launch")[0]
        self.gen()
        return hdr + f"""; @launch grid=(256,1,1) block=(512,1,1) lds={LDS_BYTES}
.amdgcn_target "amdgcn-amd-amdhsa--gfx950"
.text
.globl {KNAME}
.p2align 8
.type {KNAME},@function
{KNAME}:
""" + "\n".join(self.o) + f"""
.section .rodata,"a"
.p2align 6
.amdhsa_kernel {KNAME}
  .amdhsa_next_free_vgpr 256
  .amdhsa_next_free_sgpr 96
  .amdhsa_accum_offset 256
  .amdhsa_group_segment_fixed_size 0
  .amdhsa_kernarg_size 104
  .amdhsa_user_sgpr_count 2
  .amdhsa_user_sgpr_kernarg_segment_ptr 1
  .amdhsa_system_sgpr_workgroup_id_x 1
  .amdhsa_float_denorm_mode_32 3
.end_amdhsa_kernel
"""


if __name__ == "__main__":
    out = sys.argv[1]
    kw = {}
    for arg in sys.argv[2:]:
        k, v = arg.split("=", 1)
        try:
            v = int(v)
        except ValueError:
            pass
        kw[k] = v
    open(out, "w").write(G(**kw).text())
```

```python
import sys, struct

KNAME = "recurrent_scan__mha_block_cached__moe_arch_mod__decode_kernel"
TB = 201326592
CH = 786432
STEP = 12288

P_OFF = 0
ST_OFF = 256 * 2560
EP_OFF = ST_OFF + 64 * 256
Y_OFF = EP_OFF + 256
QX_OFF = Y_OFF + 48 * 5120
G1_OFF = QX_OFF + 32 * 8 * 2 * 768
WS_USED = G1_OFF + 240 * 1024
STAMP_OFF = 2 << 20
WS_SRD = 4 << 20
assert WS_USED <= STAMP_OFF

L_XN = 0
L_QB = 2560
L_SC = L_QB + 512
OS = 416
L_O = L_SC + 4 * 1152
L_SCALE = L_O + 8 * OS
L_HB = L_SCALE + 64
L_WX = (L_HB + 256 + 1023) // 1024 * 1024
LDS_BYTES = L_WX + 4 * 12 * 1024

LOG2E = 0x3fb8aa3b
SCALE_F32 = 0x3d93cd3a
assert struct.unpack("<I", struct.pack("<f", 192 ** -0.5))[0] == SCALE_F32
def f32(x): return "0x%08x" % struct.unpack("<I", struct.pack("<f", x))[0]
NLOG2E = f32(-1.4426950408889634)

sWAVE, sH, sB, sSPLIT, sCHUNK, sBH = 3, 4, 5, 6, 7, 8
sT = 78
sMASK = 79
sWV = 69


class G:
    def __init__(self, R0=16, R1=8, W=4, W0=3, kvflags="nt", wflags="nt", woflags="nt", moeflags="nt", rot=1, stamps=0,
                 poll_max=1 << 18, hprio=3, wobatch=8):
        self.o = []
        self.R0, self.R1, self.W, self.W0 = R0, R1, W, W0
        fl = lambda x: '' if x == 'pl' else x.replace('_', ' ')
        self.kvf, self.wf, self.mf = fl(kvflags), fl(wflags), fl(moeflags)
        self.wof = fl(woflags)
        self.rot = rot
        self.stamps = stamps
        self.poll_max = poll_max
        self.hprio = hprio
        self.wobatch = wobatch
        self.nlab = 0

    def a(self, s):
        for ln in s.split("\n"):
            ln = ln.strip()
            if ln:
                self.o.append(("" if ln.endswith(":") else "    ") + ln)

    def lab(self, p="L"):
        self.nlab += 1
        return f"{p}_{self.nlab}"

    def srd(self, q, lo, nbytes):
        self.a(f"s_mov_b32 s{q}, s{lo}\ns_mov_b32 s{q+1}, s{lo+1}\ns_mov_b32 s{q+2}, {nbytes}\ns_mov_b32 s{q+3}, 0x20000")

    def dpp(self, op, d, s0, s1, ctrl):
        self.a(f"{op}_dpp v{d}, v{s0}, v{s1} {ctrl} row_mask:0xf bank_mask:0xf")

    def row_reduce(self, op, v, steps=(1, 2, 4, 8)):
        for s in steps:
            self.a("s_nop 1")
            self.dpp(op, v, v, v, f"row_ror:{s}")

    def swap_reduce(self, op, v, t, which):
        self.a(f"v_mov_b32 v{t}, v{v}\ns_nop 1\nv_permlane{which}_swap_b32 v{v}, v{t}\ns_nop 1\n{op} v{v}, v{v}, v{t}")

    def stamp(self, idx, vt, st=90, src=None):
        if not self.stamps:
            return
        if src is None:
            self.a(f"s_memrealtime s[{st}:{st+1}]")
            src = st
        if self.stamps == 2:
            slot = (idx if idx < 15 else 0) + (1 if self.cls == "S" else 7)
            if self.cls == "H" and idx not in (1, 2, 4, 7, 8):
                return
            if self.cls == "H":
                slot = {1: 8, 2: 9, 4: 10, 7: 11, 8: 12}[idx]
            elif idx == 15:
                slot = 1
            else:
                slot = 2 + idx
            inv = f"s_not_b32 s{st+2}, s{src}" if idx == 15 else f"s_mov_b32 s{st+2}, s{src}"
            self.a(f"""s_waitcnt lgkmcnt(0)
            {inv}
            v_mov_b32 v{vt}, s{st+2}
            v_mov_b32 v{vt+2}, {slot*4}
            s_mov_b64 exec, 1
            global_atomic_umax v{vt+2}, v{vt}, s[38:39] sc1
            s_mov_b64 exec, -1""")
            return
        self.a(f"""s_lshl_b32 s{st+2}, s2, 3
        s_add_u32 s{st+2}, s{st+2}, s{sWV}
        s_lshl_b32 s{st+2}, s{st+2}, 7
        s_add_u32 s{st+2}, s{st+2}, {STAMP_OFF + idx*8}
        s_waitcnt lgkmcnt(0)
        v_mov_b32 v{vt}, s{src}
        v_mov_b32 v{vt+1}, s{src+1}
        v_mov_b32 v{vt+2}, 0
        s_mov_b64 exec, 1
        buffer_store_dwordx2 v[{vt}:{vt+1}], v{vt+2}, s[56:59], s{st+2} offen
        s_mov_b64 exec, -1""")

    def selectors(self, vL, base, t0, t1, t2):
        a = self.a
        a(f"""v_and_b32 v{t0}, 1, v{vL}
        v_cmp_eq_u32 vcc, 1, v{t0}
        v_mov_b32 v{t0}, 0x0c0c0100
        v_mov_b32 v{t1}, 0x01000c0c
        v_cndmask_b32 v{t0}, v{t0}, v{t1}, vcc
        v_mov_b32 v{t1}, 0x0c0c0302
        v_mov_b32 v{t2}, 0x03020c0c
        v_cndmask_b32 v{t1}, v{t1}, v{t2}, vcc
        v_bfe_u32 v{t2}, v{vL}, 1, 2""")
        for j in range(4):
            a(f"""v_cmp_eq_u32 vcc, {j}, v{t2}
            v_mov_b32 v{base+j}, 0x0c0c0c0c
            v_mov_b32 v{base+4+j}, 0x0c0c0c0c
            v_cndmask_b32 v{base+j}, v{base+j}, v{t0}, vcc
            v_cndmask_b32 v{base+4+j}, v{base+4+j}, v{t1}, vcc""")

    def buildA(self, A, P, hi, sel):
        for j in range(4):
            self.a(f"v_perm_b32 v{A+j}, v{P}, v{P}, v{sel + (4 if hi else 0) + j}")

    def mfma(self, D, A, B, C):
        c = "0" if C is None else f"v[{C}:{C+3}]"
        self.a(f"v_mfma_f32_16x16x32_bf16 v[{D}:{D+3}], v[{A}:{A+3}], v[{B}:{B+3}], {c}")

    def rbf(self, v):
        self.a(f"v_cvt_pk_bf16_f32 v{v}, v{v}, v{v}\nv_lshlrev_b32 v{v}, 16, v{v}")

    def tag(self, d, s, vTG, rn=False):
        if rn:
            self.a(f"v_add_u32 v{d}, 0x80, v{s}")
            s = d
        self.a(f"v_and_or_b32 v{d}, v{s}, s{sMASK}, v{vTG}")

    def chk4(self, acc, x, vTG, first=False, n=4):
        for r in range(n):
            self.a(f"v_xor_b32 v{x+r}, v{x+r}, v{vTG}")
        for r in range(0, n, 2):
            if first and r == 0:
                self.a(f"v_or_b32 v{acc}, v{x}, v{x+1}")
            else:
                self.a(f"v_or3_b32 v{acc}, v{x+r}, v{x+r+1}, v{acc}")

    def poll_tail(self, acc, Lretry, Ldone, sleep):
        self.a(f"""v_and_b32 v{acc}, 0xff, v{acc}
        v_cmp_ne_u32 vcc, 0, v{acc}
        s_cbranch_vccz {Ldone}""")
        if sleep:
            self.a(f"s_sleep {sleep}")
        self.a(f"""s_sub_u32 s12, s12, 1
        s_cmp_gt_u32 s12, 0
        s_cbranch_scc1 {Lretry}
        {Ldone}:""")

    def merge4(self, X):
        a = self.a
        a(f"""s_nop 1
        v_permlane16_swap_b32 v{X}, v{X+1}
        v_permlane16_swap_b32 v{X+2}, v{X+3}
        s_nop 1
        v_add_f32 v{X}, v{X}, v{X+1}
        v_add_f32 v{X+2}, v{X+2}, v{X+3}
        s_nop 1
        v_permlane32_swap_b32 v{X}, v{X+2}
        s_nop 1
        v_add_f32 v{X}, v{X}, v{X+2}""")
        self.row_reduce("v_add_f32", X, steps=(4, 8))

    def sigmoid_like(self, d, x):
        self.a(f"""v_mul_f32 v{d}, {NLOG2E}, v{x}
        v_exp_f32 v{d}, v{d}
        s_nop 0
        v_add_f32 v{d}, 1.0, v{d}
        v_rcp_f32 v{d}, v{d}
        s_nop 0""")

    def epoch_load(self):
        self.a(f"s_load_dword s{sT}, s[40:41], {EP_OFF}")

    def epoch_use(self, vTG):
        self.a(f"""s_add_u32 s{sT}, s{sT}, 1
        s_mov_b32 s{sMASK}, 0xffffff00
        s_and_b32 s9, s{sT}, 0xff
        v_mov_b32 v{vTG}, s9""")

    def gen(self):
        a = self.a
        a(f"""s_cmp_ge_u32 s2, 256
        s_cbranch_scc1 L_end
        s_load_dwordx16 s[16:31], s[0:1], 0
        s_load_dwordx8 s[32:39], s[0:1], 64
        s_load_dwordx2 s[40:41], s[0:1], 96""")
        if self.stamps:
            a("s_memrealtime s[86:87]")
        a(f"""v_lshrrev_b32 v1, 6, v0
        v_and_b32 v0, 63, v0
        v_readfirstlane_b32 s3, v1
        s_and_b32 s9, s2, 7
        s_lshr_b32 s10, s2, 3
        s_lshl_b32 s4, s9, 2
        s_lshr_b32 s11, s10, 3
        s_add_u32 s4, s4, s11
        s_bfe_u32 s5, s10, 0x10002
        s_and_b32 s6, s10, 3
        s_lshl_b32 s8, s5, 5
        s_add_u32 s8, s8, s4
        s_lshl_b32 s7, s8, 2
        s_add_u32 s7, s7, s6
        s_mov_b32 s{sWV}, s3
        s_cmp_ge_u32 s3, 4
        s_cbranch_scc1 L_H""")
        self.gen_S()
        a("L_H:")
        self.gen_H()
        a("L_end:\ns_endpgm")

    def gen_S(self):
        self.cls = "S"
        a = self.a
        R0, R1, W, W0 = self.R0, self.R1, self.W, self.W0
        assert (64 - R0) % W == 0 and (64 - R1) % W == 0 and W % 2 == 0 and R0 % 2 == 0 and R1 >= W and R0 >= W and R1 <= 16
        NITK, NITV = (64 - R0) // W, (64 - R1) // W
        vL = 0
        vOFF, vSCW, vSCR, vT0, vT1, vT2, vT3, vOW = 1, 2, 3, 4, 5, 6, 7, 8
        vA0, vA1, vTG = 9, 10, 11
        vQ = 12
        vSEL = 24
        vACC = 32
        vA = 44
        vP = 52
        RING = 64
        assert RING + R0 * 12 <= 256
        sOFF, sBEG, sEND, sIT = 42, 43, 64, 66
        a(f"""v_lshrrev_b32 v{vT0}, 3, v{vL}
        v_and_b32 v{vT1}, 7, v{vL}
        v_mul_u32_u24 v{vOFF}, 384, v{vT0}
        v_lshl_add_u32 v{vOFF}, v{vT1}, 4, v{vOFF}
        s_mul_i32 s9, s3, 3072
        v_add_u32 v{vOFF}, s9, v{vOFF}
        s_mul_i32 s{sBEG}, s7, {CH}
        s_add_u32 s{sEND}, s{sBEG}, {CH}
        s_mul_i32 s9, s7, {self.rot}
        s_and_b32 s9, s9, 63
        s_mul_i32 s9, s9, {STEP}
        s_add_u32 s{sOFF}, s{sBEG}, s9
        s_waitcnt lgkmcnt(0)""")
        self.srd(52, 18, TB)

        def load(slot):
            for j in range(3):
                r = RING + (slot * 3 + j) * 4
                a(f"buffer_load_dwordx4 v[{r}:{r+3}], v{vOFF}, s[52:55], s{sOFF} offen offset:{128*j} {self.kvf}")
            a(f"""s_add_u32 s{sOFF}, s{sOFF}, {STEP}
            s_cmp_ge_u32 s{sOFF}, s{sEND}
            s_cselect_b32 s{sOFF}, s{sBEG}, s{sOFF}""")
        for s in range(W0):
            load(s)
        self.epoch_load()
        self.srd(56, 40, WS_SRD)
        self.selectors(vL, vSEL, vT2, vT3, vOW)
        a(f"""s_mul_i32 s9, s3, 1152
        s_add_u32 s9, s9, {L_SC}
        v_mul_u32_u24 v{vSCW}, 144, v{vT0}
        v_add_u32 v{vSCW}, s9, v{vSCW}
        v_mov_b32 v{vSCR}, v{vSCW}""")
        a(f"""v_lshrrev_b32 v{vT2}, 5, v{vL}
        s_lshl_b32 s9, s3, 1
        v_add_u32 v{vT2}, s9, v{vT2}
        v_mul_u32_u24 v{vOW}, {OS}, v{vT2}
        v_lshl_add_u32 v{vOW}, v{vT1}, 4, v{vOW}
        v_bfe_u32 v{vT2}, v{vL}, 4, 1
        v_lshl_add_u32 v{vOW}, v{vT2}, 3, v{vOW}
        v_add_u32 v{vOW}, {L_O}, v{vOW}
        v_lshlrev_b32 v{vT2}, 4, v{vT1}""")
        for s in range(W0, R0):
            a(f"s_waitcnt vmcnt({3*(W0-1)})")
            load(s)
        a("s_waitcnt lgkmcnt(0)")
        self.epoch_use(vTG)
        self.stamp(15, vA, src=86)
        self.stamp(0, vA)
        a("s_barrier")
        self.stamp(1, vA)
        for j in range(3):
            a(f"ds_read_b128 v[{vQ+4*j}:{vQ+4*j+3}], v{vT2} offset:{L_QB + 128*j}")
        a(f"s_mov_b32 s{sIT}, 0\ns_mov_b32 s10, {SCALE_F32}\ns_waitcnt lgkmcnt(0)")

        def kpair(s, n, reload, off):
            a(f"s_waitcnt vmcnt({n})")
            ra, rb = RING + s * 12, RING + (s + 1) * 12
            for i in range(12):
                c0 = "0" if i == 0 else f"v{vA0}"
                c1 = "0" if i == 0 else f"v{vA1}"
                a(f"v_dot2_f32_bf16 v{vA0}, v{ra+i}, v{vQ+i}, {c0}")
                a(f"v_dot2_f32_bf16 v{vA1}, v{rb+i}, v{vQ+i}, {c1}")
            if reload:
                load(s)
            else:
                a("s_nop 2")
            self.dpp("v_add_f32", vA0, vA0, vA0, "quad_perm:[1,0,3,2]")
            self.dpp("v_add_f32", vA1, vA1, vA1, "quad_perm:[1,0,3,2]")
            if reload:
                load(s + 1)
            else:
                a("s_nop 0")
            self.dpp("v_add_f32", vA0, vA0, vA0, "quad_perm:[2,3,0,1]")
            self.dpp("v_add_f32", vA1, vA1, vA1, "quad_perm:[2,3,0,1]")
            a("s_nop 0")
            self.dpp("v_add_f32", vA0, vA0, vA0, "row_half_mirror")
            self.dpp("v_add_f32", vA1, vA1, vA1, "row_half_mirror")
            a(f"""v_cvt_pk_bf16_f32 v{vT2}, v{vA0}, v{vA1}
            v_lshlrev_b32 v{vA0}, 16, v{vT2}
            v_and_b32 v{vA1}, 0xffff0000, v{vT2}
            v_mul_f32 v{vA0}, s10, v{vA0}
            v_mul_f32 v{vA1}, s10, v{vA1}
            v_cvt_pk_bf16_f32 v{vT2}, v{vA0}, v{vA1}
            ds_write_b32 v{vSCW}, v{vT2} offset:{off}""")
        for s in range(0, R0, 2):
            kpair(s, 3 * ((R0 - s - 2) + min(s, W)), s < W, (s // 2) * 4)
        a(f"v_add_u32 v{vSCW}, {2*R0}, v{vSCW}")
        a("L_kloop:")
        a(f"""s_cmp_eq_u32 s{sIT}, {NITK-1}
        s_cbranch_scc0 L_k1
        s_mov_b32 s52, s20
        s_mov_b32 s53, s21
        L_k1:""")
        for s in range(0, W, 2):
            kpair(s, 3 * (W - 2), True, (s // 2) * 4)
        a(f"""v_add_u32 v{vSCW}, {2*W}, v{vSCW}
        s_add_u32 s{sIT}, s{sIT}, 1
        s_cmp_lt_u32 s{sIT}, {NITK}
        s_cbranch_scc1 L_kloop""")
        for s in range(W, R1):
            load(s)
        self.stamp(2, vA)
        F = 32
        a(f"""v_lshl_add_u32 v{vT2}, v{vT1}, 4, v{vSCR}
        s_waitcnt lgkmcnt(0)
        ds_read_b128 v[40:43], v{vT2}
        s_waitcnt lgkmcnt(0)""")
        for i in range(4):
            a(f"v_lshlrev_b32 v{F+2*i}, 16, v{40+i}\nv_and_b32 v{F+2*i+1}, 0xffff0000, v{40+i}")
        a(f"""v_max3_f32 v{vA0}, v{F}, v{F+1}, v{F+2}
        v_max3_f32 v{vA0}, v{vA0}, v{F+3}, v{F+4}
        v_max3_f32 v{vA0}, v{vA0}, v{F+5}, v{F+6}
        v_max_f32 v{vA0}, v{vA0}, v{F+7}""")
        self.row_reduce("v_max_f32", vA0)
        self.swap_reduce("v_max_f32", vA0, vT3, 16)
        self.swap_reduce("v_max_f32", vA0, vT3, 32)
        for i in range(8):
            a(f"v_sub_f32 v{F+i}, v{F+i}, v{vA0}\nv_mul_f32 v{F+i}, {LOG2E}, v{F+i}")
        for i in range(8):
            a(f"v_exp_f32 v{F+i}, v{F+i}")
        a("s_nop 0")
        a(f"v_add_f32 v{vA1}, v{F}, v{F+1}")
        for i in range(2, 8):
            a(f"v_add_f32 v{vA1}, v{vA1}, v{F+i}")
        for i in range(4):
            a(f"v_cvt_pk_bf16_f32 v{40+i}, v{F+2*i}, v{F+2*i+1}")
        a(f"ds_write_b128 v{vT2}, v[40:43]")
        self.row_reduce("v_add_f32", vA1)
        self.swap_reduce("v_add_f32", vA1, vT3, 16)
        self.swap_reduce("v_add_f32", vA1, vT3, 32)
        a("s_waitcnt lgkmcnt(0)")
        def pread(n, off=0):
            if n == 1: a(f"ds_read_b32 v{vP}, v{vSCR} offset:{off}")
            elif n == 2: a(f"ds_read_b64 v[{vP}:{vP+1}], v{vSCR} offset:{off}")
            elif n == 4: a(f"ds_read_b128 v[{vP}:{vP+3}], v{vSCR} offset:{off}")
            elif n == 8: a(f"ds_read_b128 v[{vP}:{vP+3}], v{vSCR} offset:{off}\nds_read_b128 v[{vP+4}:{vP+7}], v{vSCR} offset:{off+16}")
            else: raise ValueError(n)
        pread(R1 // 2)
        self.tag(44, vA0, vTG)
        self.tag(45, vA1, vTG)
        a(f"""v_mov_b32 v46, s{sT}
        v_mov_b32 v47, s{sT}
        s_lshl_b32 s9, s7, 6
        s_lshl_b32 s11, s3, 4
        s_add_u32 s9, s9, s11
        s_add_u32 s9, s9, {ST_OFF}
        v_mov_b32 v{vA0}, 0
        s_mov_b64 exec, 1
        buffer_store_dwordx4 v[44:47], v{vA0}, s[56:59], s9 offen sc1
        s_mov_b64 exec, -1""")
        for i in range(12):
            a(f"v_mov_b32 v{vACC+i}, 0")
        a(f"s_mov_b32 s{sIT}, 0\nv_add_u32 v{vSCR}, {2*R1}, v{vSCR}\ns_waitcnt lgkmcnt(0)")
        self.stamp(3, 60)

        def vslot(s, n, reload, last, nnext):
            A = vA + 4 * ((s + 1) & 1)
            self.buildA(A, vP + s // 2, s & 1, vSEL)
            if last:
                pread(nnext)
                a(f"v_add_u32 v{vSCR}, {4*nnext}, v{vSCR}")
            a(f"s_waitcnt vmcnt({n})\ns_nop 0")
            for j in range(3):
                self.mfma(vACC + 4 * j, A, RING + (s * 3 + j) * 4, vACC + 4 * j)
            if reload:
                load(s)
        for s in range(R1):
            vslot(s, 3 * ((R1 - s - 1) + min(s, W)), s < W, s == R1 - 1, W // 2)
        a("L_vloop:")
        a(f"""s_cmp_eq_u32 s{sIT}, {NITV-1}
        s_cbranch_scc0 L_v1
        s_mov_b32 s54, 0
        L_v1:
        s_waitcnt lgkmcnt(0)""")
        for s in range(W):
            vslot(s, 3 * (W - 1), True, s == W - 1, W // 2)
        a(f"""s_add_u32 s{sIT}, s{sIT}, 1
        s_cmp_lt_u32 s{sIT}, {NITV}
        s_cbranch_scc1 L_vloop""")
        a("s_nop 3")
        for j in range(3):
            a(f"""v_cvt_pk_bf16_f32 v{vA+2*j}, v{vACC+4*j}, v{vACC+4*j+1}
            v_cvt_pk_bf16_f32 v{vA+2*j+1}, v{vACC+4*j+2}, v{vACC+4*j+3}""")
        a("s_mov_b32 exec_lo, 0x00ff00ff\ns_mov_b32 exec_hi, 0xff00ff00")
        for j in range(3):
            a(f"ds_write_b64 v{vOW}, v[{vA+2*j}:{vA+2*j+1}] offset:{128*j}")
        a("s_mov_b64 exec, -1")
        a(f"""v_and_b32 v{vT0}, 7, v{vL}
        v_mul_u32_u24 v{vT0}, {OS}, v{vT0}
        v_lshrrev_b32 v{vT1}, 4, v{vL}
        v_lshl_add_u32 v{vT0}, v{vT1}, 4, v{vT0}
        v_and_b32 v{vT2}, 1, v{vT1}
        v_and_b32 v{vT3}, 15, v{vL}
        v_lshl_add_u32 v{vT3}, v{vT3}, 1, v{vT2}
        v_lshlrev_b32 v{vT3}, 2, v{vT3}
        v_lshlrev_b32 v{vT2}, 3, v{vT2}
        s_mul_i32 s9, s3, 12288
        s_add_u32 s9, s9, {L_WX}
        v_lshlrev_b32 v{vT1}, 4, v{vL}
        v_add_u32 v{vT1}, s9, v{vT1}
        s_mul_i32 s9, s7, 2560
        s_lshl_b32 s11, s3, 7
        s_add_u32 s9, s9, s11
        s_add_u32 s9, s9, {P_OFF + 2048}
        s_waitcnt lgkmcnt(0)""")
        self.stamp(4, 12)
        a("s_barrier")
        AA = RING + 12 * W
        BB = AA + 24
        assert BB + 48 <= 256
        D0, D1, SCL = 32, 36, 40
        for k in range(6):
            a(f"ds_read_b128 v[{AA+4*k}:{AA+4*k+3}], v{vT0} offset:{L_O + 64*k}")
            a(f"ds_read_b128 v[{BB+8*k}:{BB+8*k+3}], v{vT1} offset:{2048*k}")
            a(f"ds_read_b128 v[{BB+8*k+4}:{BB+8*k+7}], v{vT1} offset:{2048*k+1024}")
            if k == 3:
                a("s_waitcnt lgkmcnt(6)")
        a(f"ds_read_b64 v[{SCL}:{SCL+1}], v{vT2} offset:{L_SCALE}")
        for k in range(6):
            a(f"s_waitcnt lgkmcnt({min(15, 3*(5-k)+1)})")
            self.mfma(D0, AA + 4 * k, BB + 8 * k, None if k == 0 else D0)
            self.mfma(D1, AA + 4 * k, BB + 8 * k + 4, None if k == 0 else D1)
        a("s_waitcnt lgkmcnt(0)\ns_nop 7")
        for D in (D0, D1):
            a(f"""v_add_f32 v{D}, v{D}, v{D+1}
            v_add_f32 v{D+2}, v{D+2}, v{D+3}
            v_mul_f32 v{D}, v{D}, v{SCL}
            v_fmac_f32 v{D}, v{D+2}, v{SCL+1}""")
        a(f"""s_nop 1
        v_permlane16_swap_b32 v{D0}, v{D1}
        s_nop 1
        v_add_f32 v{D0}, v{D0}, v{D1}""")
        self.tag(D0, D0, vTG)
        a(f"""s_mov_b32 exec_hi, 0
        buffer_store_dword v{D0}, v{vT3}, s[56:59], s9 offen sc1
        s_mov_b64 exec, -1""")
        self.stamp(5, 12)
        a("s_endpgm")

    def gen_H(self):
        self.cls = "H"
        a = self.a
        vL = 0
        vT0, vT1, vT2, vT3, vT4, vT5, vW = 1, 2, 3, 4, 5, 6, 7
        vX = 8
        vSEL = 18
        vTG = 26
        vCK = 27
        vF = 28
        vA, vACC = 28, 36
        vE = 52
        TI = 64
        if self.hprio:
            a(f"s_setprio {self.hprio}")
        a("s_sub_u32 s3, s3, 4")
        a(f"""s_and_b32 s14, s10, 7
        v_lshrrev_b32 v{vT0}, 5, v{vL}
        v_mul_u32_u24 v{vT0}, 1280, v{vT0}
        v_and_b32 v{vT1}, 31, v{vL}
        v_lshl_add_u32 v{vT0}, v{vT1}, 3, v{vT0}
        v_lshrrev_b32 v{vT1}, 3, v{vL}
        v_mul_u32_u24 v{vW}, {10*12288}, v{vT1}
        v_and_b32 v{vT2}, 7, v{vL}
        v_lshl_add_u32 v{vW}, v{vT2}, 4, v{vW}
        s_mul_i32 s9, s4, 384
        s_mul_i32 s11, s14, {80*12288}
        s_add_u32 s9, s9, s11
        s_lshl_b32 s11, s3, 7
        s_add_u32 s9, s9, s11
        v_add_u32 v{vW}, s9, v{vW}
        s_waitcnt lgkmcnt(0)""")
        self.srd(60, 16, 2560)
        self.srd(44, 22, 640 * 12288)
        for t in range(5):
            a(f"buffer_load_dwordx2 v[{vX+2*t}:{vX+2*t+1}], v{vT0}, s[60:63], 0 offen offset:{256*t}")
        a("s_cmp_eq_u32 s3, 3\ns_cselect_b32 s46, 0, s46")
        for G in range(10):
            a(f"s_mov_b32 s9, {G*12288}")
            a(f"buffer_load_dwordx4 v[{TI+4*G}:{TI+4*G+3}], v{vW}, s[44:47], s9 offen {self.wf}")
        self.epoch_load()
        self.srd(56, 40, WS_SRD)
        self.selectors(vL, vSEL, vT3, vT4, vT5)
        a("s_waitcnt vmcnt(10)")
        for i in range(10):
            a(f"v_lshlrev_b32 v{vF+2*i}, 16, v{vX+i}\nv_and_b32 v{vF+2*i+1}, 0xffff0000, v{vX+i}")
        a(f"v_add_f32 v{vT3}, v{vF}, v{vF+1}\nv_add_f32 v{vT4}, v{vF+2}, v{vF+3}")
        for i in range(4, 20, 2):
            a(f"v_add_f32 v{vT3}, v{vT3}, v{vF+i}\nv_add_f32 v{vT4}, v{vT4}, v{vF+i+1}")
        a(f"v_add_f32 v{vT3}, v{vT3}, v{vT4}")
        self.row_reduce("v_add_f32", vT3)
        self.swap_reduce("v_add_f32", vT3, vT4, 16)
        def div640(v, t):
            a(f"""v_mul_f32 v{t}, {f32(1/640)}, v{v}
            v_fmac_f32 v{v}, {f32(-640.0)}, v{t}
            v_fmac_f32 v{t}, {f32(1/640)}, v{v}
            v_mov_b32 v{v}, v{t}""")
        div640(vT3, vT4)
        a(f"v_mov_b32 v{vT4}, 0\nv_mov_b32 v{vT5}, 0")
        for i in range(0, 20, 2):
            a(f"""v_sub_f32 v{vE+4}, v{vF+i}, v{vT3}
            v_sub_f32 v{vE+5}, v{vF+i+1}, v{vT3}
            v_fmac_f32 v{vT4}, v{vE+4}, v{vE+4}
            v_fmac_f32 v{vT5}, v{vE+5}, v{vE+5}""")
        a(f"v_add_f32 v{vT4}, v{vT4}, v{vT5}")
        self.row_reduce("v_add_f32", vT4)
        self.swap_reduce("v_add_f32", vT4, vT5, 16)
        div640(vT4, vT5)
        self.rbf(vT3)
        self.rbf(vT4)
        a(f"v_add_f32 v{vT4}, {f32(1e-5)}, v{vT4}")
        self.rbf(vT4)
        a(f"v_sqrt_f32 v{vT4}, v{vT4}\ns_nop 0")
        self.rbf(vT4)
        a(f"v_rcp_f32 v{vT5}, v{vT4}")
        for i in range(10):
            f0, f1 = vF + 2 * i, vF + 2 * i + 1
            a(f"""v_sub_f32 v{f0}, v{f0}, v{vT3}
            v_sub_f32 v{f1}, v{f1}, v{vT3}
            v_cvt_pk_bf16_f32 v{f1}, v{f0}, v{f1}
            v_lshlrev_b32 v{f0}, 16, v{f1}
            v_and_b32 v{f1}, 0xffff0000, v{f1}
            v_mul_f32 v{vE+4}, v{f0}, v{vT5}
            v_mul_f32 v{vE+5}, v{f1}, v{vT5}
            v_fma_f32 v{f0}, -v{vE+4}, v{vT4}, v{f0}
            v_fma_f32 v{f1}, -v{vE+5}, v{vT4}, v{f1}
            v_fmac_f32 v{vE+4}, v{f0}, v{vT5}
            v_fmac_f32 v{vE+5}, v{f1}, v{vT5}
            v_cvt_pk_bf16_f32 v{vX+i}, v{vE+4}, v{vE+5}""")
        for t in range(5):
            a(f"ds_write_b64 v{vT0}, v[{vX+2*t}:{vX+2*t+1}] offset:{L_XN + 256*t}")
        a("s_waitcnt lgkmcnt(0)")
        self.epoch_use(vTG)
        self.stamp(15, 60, src=86)
        self.stamp(1, 60)
        a("s_cmp_eq_u32 s3, 3\ns_cbranch_scc1 L_qcons")
        a(f"""v_mul_u32_u24 v{vT3}, 20, v{vT1}
        s_mul_i32 s9, s14, 160
        v_add_u32 v{vT3}, s9, v{vT3}""")
        for bb in range(2):
            for t in range(5):
                a(f"ds_read_b32 v{vX+5*bb+t}, v{vT3} offset:{L_XN + 1280*bb + 4*t}")
        a(f"""v_lshrrev_b32 v{vT4}, 5, v{vL}
        v_mul_u32_u24 v{vT4}, 768, v{vT4}
        v_lshl_add_u32 v{vT4}, v{vT2}, 5, v{vT4}
        v_bfe_u32 v{vT5}, v{vL}, 4, 1
        v_lshl_add_u32 v{vT4}, v{vT5}, 4, v{vT4}
        s_lshl_b32 s9, s4, 3
        s_add_u32 s9, s9, s14
        s_mul_i32 s9, s9, 1536
        s_lshl_b32 s11, s3, 8
        s_add_u32 s9, s9, s11
        s_add_u32 s9, s9, {QX_OFF}
        s_waitcnt lgkmcnt(0)""")
        for G in range(10):
            self.buildA(vA, vX + G // 2, G & 1, vSEL)
            self.buildA(vA + 4, vX + 5 + G // 2, G & 1, vSEL)
            a(f"s_waitcnt vmcnt({9-G})\ns_nop 0")
            self.mfma(vACC, vA, TI + 4 * G, None if G == 0 else vACC)
            self.mfma(vACC + 4, vA + 4, TI + 4 * G, None if G == 0 else vACC + 4)
        a("s_nop 7")
        for r in range(4):
            a(f"v_permlane32_swap_b32 v{vACC+r}, v{vACC+4+r}")
        a("s_nop 1")
        for r in range(4):
            self.dpp("v_add_f32", vACC + r, vACC + 4 + r, vACC + r, "row_ror:8")
        for r in range(4):
            self.tag(vACC + r, vACC + r, vTG, rn=True)
        a(f"""s_mov_b32 exec_lo, 0x00ff00ff
        s_mov_b32 exec_hi, 0x00ff00ff
        buffer_store_dwordx4 v[{vACC}:{vACC+3}], v{vT4}, s[56:59], s9 offen sc1
        s_mov_b64 exec, -1
        s_branch L_qdone
        L_qcons:""")
        Lq, Lqd = self.lab("q"), self.lab("qd")
        a(f"""v_lshlrev_b32 v{vT3}, 4, v{vL}
        v_lshlrev_b32 v{vT4}, 3, v{vL}
        s_mul_i32 s9, s4, {8*1536}
        s_mul_i32 s11, s5, 768
        s_add_u32 s9, s9, s11
        s_add_u32 s70, s9, {QX_OFF}
        s_add_u32 s71, s70, 3072
        s_add_u32 s72, s70, 6144
        s_add_u32 s73, s70, 9216
        s_mov_b32 s12, {self.poll_max}
        s_mov_b32 exec_hi, 0xffff
        {Lq}:""")
        for k in range(8):
            a(f"buffer_load_dwordx4 v[{TI+4*k}:{TI+4*k+3}], v{vT3}, s[56:59], s{70+k//2} offen offset:{1536*(k&1)} sc1")
        for k in range(8):
            a(f"s_waitcnt vmcnt({7-k})")
            self.chk4(vCK, TI + 4 * k, vTG, first=(k == 0))
            if k:
                for r in range(4):
                    a(f"v_add_f32 v{TI+r}, v{TI+r}, v{TI+4*k+r}")
        self.poll_tail(vCK, Lq, Lqd, 0)
        a(f"""v_cvt_pk_bf16_f32 v{TI}, v{TI}, v{TI+1}
        v_cvt_pk_bf16_f32 v{TI+1}, v{TI+2}, v{TI+3}
        ds_write_b64 v{vT4}, v[{TI}:{TI+1}] offset:{L_QB}
        s_mov_b64 exec, -1
        s_waitcnt lgkmcnt(0)
        L_qdone:""")
        self.stamp(2, 60)
        a("s_barrier")
        a(f"""s_cmp_lg_u32 s3, 0
        s_cbranch_scc1 L_noinc""")
        self.srd(60, 38, 256)
        a(f"""v_mov_b32 v{vT3}, 1
        v_mov_b32 v{vT4}, 0
        s_mov_b64 exec, 1
        buffer_atomic_add v{vT3}, v{vT4}, s[60:63], 0 offen sc1
        s_mov_b64 exec, -1
        L_noinc:""")
        a(f"v_and_b32 v{vT1}, 15, v{vL}\nv_lshrrev_b32 v{vT2}, 4, v{vL}")
        a(f"""s_mul_hi_u32 s81, s2, {(2**32 + 23)//24}
        s_mul_i32 s80, s81, 24
        s_sub_u32 s80, s2, s80
        s_mov_b32 s82, 0
        s_cmp_ge_u32 s2, 240
        s_cbranch_scc1 L_nomoe1
        s_cmp_lg_u32 s3, 1
        s_cbranch_scc1 L_nomoe1
        s_mov_b32 s82, 1""")
        self.gen_moe1(vL, vT1, vT2, vT3, vT4, vT5, vSEL, vA, vACC, vTG, TI)
        a("L_nomoe1:")
        self.srd(44, 24, 6144 * 1280)
        a(f"""v_mul_u32_u24 v{vW}, {8*1280}, v{vT2}
        s_mul_i32 s9, s4, {192*1280}
        v_add_u32 v{vW}, s9, v{vW}
        v_lshl_add_u32 v{vT3}, v{vT1}, 2, v{vW}
        s_lshl_b32 s9, s3, 6
        s_add_u32 s9, s9, 1024
        v_add_u32 v{vT3}, s9, v{vT3}
        v_lshl_add_u32 v{vW}, v{vT1}, 4, v{vW}
        s_lshl_b32 s9, s3, 8
        v_add_u32 v{vW}, s9, v{vW}
        s_mov_b32 s14, 0x05040100
        s_mov_b32 s15, 0x07060302
        s_mul_i32 s9, s3, 12288
        s_add_u32 s9, s9, {L_WX}
        v_lshlrev_b32 v{vT4}, 4, v{vL}
        v_add_u32 v{vT4}, s9, v{vT4}""")
        for K0 in range(0, 6, 2):
            for K in (K0, K0 + 1):
                for e in range(8):
                    if e % 4 == 0:
                        a(f"s_mov_b32 s9, {(32*K + e)*1280}")
                    a(f"buffer_load_dword v{TI+8*K+e}, v{vT3}, s[44:47], s9 offen offset:{(e%4)*1280} {self.wof}")
            for K in (K0, K0 + 1):
                a(f"s_waitcnt vmcnt({8*(K0+1-K)})")
                d = TI + 48 + 8 * K
                for t in range(4):
                    a(f"v_perm_b32 v{d+t}, v{TI+8*K+2*t+1}, v{TI+8*K+2*t}, s14")
                    a(f"v_perm_b32 v{d+4+t}, v{TI+8*K+2*t+1}, v{TI+8*K+2*t}, s15")
                a(f"ds_write_b128 v{vT4}, v[{d}:{d+3}] offset:{2048*K}")
                a(f"ds_write_b128 v{vT4}, v[{d+4}:{d+7}] offset:{2048*K+1024}")
        a("s_waitcnt lgkmcnt(0)")
        self.stamp(3, 60)
        a("s_cmp_eq_u32 s82, 0\ns_cbranch_scc1 L_nomoe2")
        self.gen_moe2(vL, vT1, vT2, vT3, vT4, vT5, vSEL, vA, vACC, vTG, vCK, TI)
        self.stamp(9, 60)
        a("L_nomoe2:")
        def REG(k): return 32 + 32 * k
        for K in range(6):
            for e in range(8):
                if e % 4 == 0:
                    a(f"s_mov_b32 s9, {(32*K + e)*1280}")
                r = REG(0) + 4 * e
                a(f"buffer_load_dwordx4 v[{r}:{r+3}], v{vW}, s[44:47], s9 offen offset:{(e%4)*1280} {self.wof}")
                if self.wobatch == 4 and e == 3:
                    a("s_waitcnt vmcnt(0)")
            s, d = REG(0), REG(K + 1)
            for t in range(4):
                a(f"s_waitcnt vmcnt({6-2*t})")
                for dd in range(4):
                    a(f"v_perm_b32 v{d+(2*dd)*4+t}, v{s+(2*t+1)*4+dd}, v{s+(2*t)*4+dd}, s14")
                    a(f"v_perm_b32 v{d+(2*dd+1)*4+t}, v{s+(2*t+1)*4+dd}, v{s+(2*t)*4+dd}, s15")
        vG, vXC, vOUTA, vPA, vSC = 8, 9, 10, 11, 12
        vAR, vST = 14, 15
        Wk = 32
        self.stamp(4, 60)
        a(f"""s_cmp_lg_u32 s3, 3
        s_cbranch_scc1 L_noep
        s_cmp_lg_u32 s2, 0
        s_cbranch_scc1 L_noep""")
        Lc, Lcd = self.lab("c0"), self.lab("c0d")
        self.srd(60, 38, 256)
        a(f"""s_mov_b32 s12, {self.poll_max}
        v_mov_b32 v{Wk+1}, 0
        {Lc}:
        buffer_load_dword v{Wk}, v{Wk+1}, s[60:63], 0 offen sc1
        s_waitcnt vmcnt(0)
        v_readfirstlane_b32 s13, v{Wk}
        s_cmp_ge_u32 s13, 256
        s_cbranch_scc1 {Lcd}
        s_sleep 16
        s_sub_u32 s12, s12, 1
        s_cmp_gt_u32 s12, 0
        s_cbranch_scc1 {Lc}
        {Lcd}:
        v_mov_b32 v{Wk}, s{sT}
        s_mov_b32 s9, {EP_OFF}
        s_mov_b64 exec, 1
        buffer_store_dword v{Wk}, v{Wk+1}, s[56:59], s9 offen sc1
        s_mov_b64 exec, -1
        L_noep:""")
        a("s_cmp_lg_u32 s3, 0\ns_cbranch_scc1 L_nostat")
        Ls, Lsd = self.lab("st"), self.lab("std")
        a(f"""s_lshl_b32 s9, s8, 8
        s_add_u32 s9, s9, {ST_OFF}
        v_lshlrev_b32 v{Wk+4}, 4, v{vT1}
        v_mov_b32 v{Wk+5}, s{sT}
        s_mov_b32 s12, {self.poll_max}
        {Ls}:
        buffer_load_dwordx4 v[{Wk}:{Wk+3}], v{Wk+4}, s[56:59], s9 offen sc1
        s_waitcnt vmcnt(0)""")
        self.chk4(vCK, Wk, vTG, first=True, n=2)
        a(f"""v_and_b32 v{vCK}, 0xff, v{vCK}
        v_bitop3_b32 v{vCK}, v{Wk+2}, v{Wk+5}, v{vCK} bitop3:0xbe
        v_bitop3_b32 v{vCK}, v{Wk+3}, v{Wk+5}, v{vCK} bitop3:0xbe
        v_cmp_ne_u32 vcc, 0, v{vCK}
        s_cbranch_vccz {Lsd}
        s_sleep 32
        s_sub_u32 s12, s12, 1
        s_cmp_gt_u32 s12, 0
        s_cbranch_scc1 {Ls}
        {Lsd}:
        v_mov_b32 v{Wk+2}, v{Wk}""")
        self.row_reduce("v_max_f32", Wk + 2)
        a(f"""v_sub_f32 v{Wk}, v{Wk}, v{Wk+2}
        v_mul_f32 v{Wk}, {LOG2E}, v{Wk}
        v_exp_f32 v{Wk}, v{Wk}
        s_nop 0
        v_mul_f32 v{Wk+1}, v{Wk+1}, v{Wk}""")
        self.row_reduce("v_add_f32", Wk + 1)
        a(f"""v_rcp_f32 v{Wk+2}, v{Wk+1}
        s_nop 0
        v_mul_f32 v{Wk+3}, v{Wk}, v{Wk+2}
        v_fma_f32 v{Wk}, -v{Wk+3}, v{Wk+1}, v{Wk}
        v_fmac_f32 v{Wk+3}, v{Wk}, v{Wk+2}
        s_lshl_b32 s9, s6, 2
        v_subrev_u32 v{Wk+4}, s9, v{vL}
        v_cmp_gt_u32 vcc, 4, v{Wk+4}
        v_lshlrev_b32 v{Wk+4}, 2, v{Wk+4}
        s_and_saveexec_b64 s[10:11], vcc
        ds_write_b32 v{Wk+4}, v{Wk+3} offset:{L_SCALE}
        s_mov_b64 exec, -1
        L_nostat:""")
        a(f"""s_lshl_b32 s67, s6, 5
        s_add_u32 s67, s67, s4
        s_mov_b32 s68, 0
        s_cmp_lg_u32 s3, 2
        s_cbranch_scc1 L_noown
        s_cmp_ge_u32 s67, 40
        s_cbranch_scc1 L_noown
        s_mov_b32 s68, 1""")
        self.srd(60, 28, 1280)
        W = Wk
        a(f"""v_lshlrev_b32 v{W+20}, 2, v{vL}
        s_mul_i32 s9, s5, 1280
        v_add_u32 v{W+21}, s9, v{W+20}""")
        for t in range(5):
            a(f"buffer_load_dword v{W+t}, v{W+20}, s[60:63], 0 offen offset:{256*t}")
            a(f"ds_read_b32 v{W+5+t}, v{W+21} offset:{L_XN + 256*t}")
        self.srd(60, 16, 2560)
        a(f"""v_and_b32 v{W+22}, 3, v{vL}
        v_lshl_add_u32 v{vOUTA}, v{W+22}, 2, v{vT2}
        v_lshlrev_b32 v{vOUTA}, 1, v{vOUTA}
        s_lshl_b32 s10, s67, 5
        s_add_u32 s10, s10, s9
        v_add_u32 v{vOUTA}, s10, v{vOUTA}
        buffer_load_ushort v{vXC}, v{vOUTA}, s[60:63], 0 offen
        ds_read_u16 v{W+23}, v{vOUTA} offset:{L_XN}
        s_waitcnt vmcnt(0) lgkmcnt(0)""")
        for t in range(5):
            c = "0" if t == 0 else f"v{W+24}"
            a(f"v_dot2_f32_bf16 v{W+24}, v{W+t}, v{W+5+t}, {c}")
        a(f"v_lshlrev_b32 v{vXC}, 16, v{vXC}\nv_lshlrev_b32 v{W+23}, 16, v{W+23}\ns_nop 1")
        self.row_reduce("v_add_f32", W + 24)
        self.swap_reduce("v_add_f32", W + 24, W + 25, 16)
        self.swap_reduce("v_add_f32", W + 24, W + 25, 32)
        self.rbf(W + 24)
        self.sigmoid_like(W + 24, W + 24)
        self.rbf(W + 24)
        Ly, Lyd = self.lab("y"), self.lab("yd")
        a(f"""v_lshrrev_b32 v{W+20}, 2, v{vL}
        v_mul_u32_u24 v{W+21}, 5120, v{W+20}
        v_lshl_add_u32 v{W+21}, v{W+22}, 4, v{W+21}
        v_mul_u32_u24 v{vPA}, 2560, v{W+20}
        v_lshl_add_u32 v{vPA}, v{W+22}, 4, v{vPA}
        s_mul_i32 s9, s5, 2560
        s_lshl_b32 s10, s67, 6
        s_add_u32 s9, s9, s10
        s_add_u32 s9, s9, {Y_OFF}
        s_add_u32 s10, s9, {16*5120}
        s_add_u32 s11, s9, {32*5120}
        s_mov_b32 s12, {self.poll_max}
        {Ly}:
        buffer_load_dwordx4 v[{W}:{W+3}], v{W+21}, s[56:59], s9 offen sc1
        buffer_load_dwordx4 v[{W+4}:{W+7}], v{W+21}, s[56:59], s10 offen sc1
        buffer_load_dwordx4 v[{W+8}:{W+11}], v{W+21}, s[56:59], s11 offen sc1
        s_waitcnt vmcnt(0)""")
        self.chk4(vCK, W, vTG, first=True, n=12)
        self.poll_tail(vCK, Ly, Lyd, 32)
        for r in range(4):
            a(f"v_add_f32 v{W+r}, v{W+r}, v{W+4+r}\nv_add_f32 v{W+r}, v{W+r}, v{W+8+r}")
        self.merge4(W)
        self.rbf(W)
        a(f"v_mul_f32 v{W}, v{W}, v{W+24}")
        self.rbf(W)
        a(f"v_add_f32 v{W}, v{W}, v{W+23}")
        self.rbf(W)
        self.sigmoid_like(W + 1, W)
        a(f"v_mul_f32 v{vG}, v{W}, v{W+1}")
        self.rbf(vG)
        a(f"""s_mul_i32 s70, s5, {128*2560}
        s_lshl_b32 s10, s67, 6
        s_add_u32 s70, s70, s10""")
        for t in range(1, 8):
            a(f"s_add_u32 s{70+t}, s70, {t*40960}")
        a("L_noown:")
        self.srd(60, 36, 2560)
        a(f"""v_and_b32 v{vAR}, 7, v{vL}
        v_mul_u32_u24 v{vAR}, {OS}, v{vAR}
        v_lshl_add_u32 v{vAR}, v{vT2}, 4, v{vAR}
        v_and_b32 v{vT3}, 1, v{vT2}
        v_lshlrev_b32 v{vST}, 5, v{vT1}
        v_lshl_add_u32 v{vST}, v{vT3}, 4, v{vST}
        v_lshlrev_b32 v{vT3}, 3, v{vT3}
        s_mul_i32 s9, s7, 2560
        s_lshl_b32 s10, s3, 9
        s_add_u32 s9, s9, s10
        s_waitcnt vmcnt(0) lgkmcnt(0)""")
        self.stamp(5, 60)
        a("s_barrier")
        self.stamp(6, 60)
        Aop = [16, 20, 28, REG(1), REG(1) + 4, REG(1) + 8]
        for k in range(3):
            a(f"ds_read_b128 v[{Aop[k]}:{Aop[k]+3}], v{vAR} offset:{L_O + 64*k}")
        a(f"ds_read_b64 v[{vSC}:{vSC+1}], v{vT3} offset:{L_SCALE}")
        waits = [3, 5, 4, 2, 1, 0]
        for k in range(6):
            a(f"s_waitcnt lgkmcnt({waits[k]})")
            for c in range(8):
                self.mfma(32 + 4 * c, Aop[k], REG(k + 1) + 4 * c, None if k == 0 else 32 + 4 * c)
            if k == 0:
                for kk in (3, 4, 5):
                    a(f"ds_read_b128 v[{Aop[kk]}:{Aop[kk]+3}], v{vAR} offset:{L_O + 64*kk}")
        a("s_nop 1")
        for c in range(8):
            D = 32 + 4 * c
            a(f"""v_add_f32 v{D}, v{D}, v{D+1}
            v_add_f32 v{D+2}, v{D+2}, v{D+3}
            v_mul_f32 v{D}, v{D}, v{vSC}
            v_fmac_f32 v{D}, v{D+2}, v{vSC+1}""")
        a("s_nop 1")
        for c in range(4):
            a(f"v_permlane16_swap_b32 v{32+4*c}, v{48+4*c}")
        a("s_nop 1")
        for c in range(4):
            a(f"v_add_f32 v{16+c}, v{32+4*c}, v{48+4*c}")
        for c in range(4):
            self.tag(16 + c, 16 + c, vTG)
        a(f"""s_mov_b32 exec_hi, 0
        buffer_store_dwordx4 v[16:19], v{vST}, s[56:59], s9 offen sc1
        s_mov_b32 exec_hi, -1""")
        self.stamp(7, 60)
        a("""s_cmp_eq_u32 s68, 0
        s_cbranch_scc1 L_end""")
        Lp, Lpd = self.lab("p"), self.lab("pd")
        Z = 64
        a(f"s_mov_b32 s12, {self.poll_max}\n{Lp}:")
        for t in range(8):
            a(f"buffer_load_dwordx4 v[{Z+4*t}:{Z+4*t+3}], v{vPA}, s[56:59], s{70+t} offen sc1")
        for t in range(8):
            a(f"s_waitcnt vmcnt({7-t})")
            self.chk4(vCK, Z + 4 * t, vTG, first=(t == 0))
            if t:
                for r in range(4):
                    a(f"v_add_f32 v{Z+r}, v{Z+r}, v{Z+4*t+r}")
        self.poll_tail(vCK, Lp, Lpd, 0)
        self.merge4(Z)
        self.rbf(Z)
        a(f"v_mul_f32 v{Z}, v{Z}, v{vG}")
        self.rbf(Z)
        a(f"""v_add_f32 v{Z}, v{Z}, v{vXC}
        v_cvt_pk_bf16_f32 v{Z}, v{Z}, v{Z}
        s_mov_b32 exec_lo, 0x000f000f
        s_mov_b32 exec_hi, 0x000f000f
        buffer_store_short v{Z}, v{vOUTA}, s[60:63], 0 offen""")
        self.stamp(8, 60)

    def gen_moe1(self, vL, vT1, vT2, vT3, vT4, vT5, vSEL, vA, vACC, vTG, TI):
        a = self.a
        vAD = 52
        vCA = 54
        a(f"""v_cmp_gt_u32 vcc, 8, v{vT1}
        v_mov_b32 v{vT3}, s32
        v_mov_b32 v{vT4}, s30
        v_cndmask_b32 v{vAD}, v{vT3}, v{vT4}, vcc
        v_mov_b32 v{vT3}, s33
        v_mov_b32 v{vT4}, s31
        v_cndmask_b32 v{vAD+1}, v{vT3}, v{vT4}, vcc
        v_mul_u32_u24 v{vT3}, {16*3072}, v{vT2}
        v_and_b32 v{vT4}, 7, v{vL}
        v_lshl_add_u32 v{vT3}, v{vT4}, 4, v{vT3}
        s_lshl_b32 s9, s80, 7
        s_mul_i32 s10, s81, {64*3072}
        s_add_u32 s9, s9, s10
        v_add_u32 v{vT4}, s9, v{vT3}
        v_mov_b32 v{vT5}, 0
        v_add_co_u32 v{vAD}, vcc, v{vAD}, v{vT4}
        s_nop 1
        v_addc_co_u32 v{vAD+1}, vcc, v{vAD+1}, v{vT5}, vcc
        v_lshrrev_b32 v{vT3}, 3, v{vT1}
        v_mul_u32_u24 v{vCA}, 1280, v{vT3}
        v_lshl_add_u32 v{vCA}, v{vT2}, 5, v{vCA}
        s_lshl_b32 s9, s81, 7
        v_add_u32 v{vCA}, s9, v{vCA}
        s_mov_b32 s10, 6144
        s_mov_b32 s11, 0
        ds_read_b128 v[8:11], v{vCA} offset:{L_XN}
        ds_read_b128 v[12:15], v{vCA} offset:{L_XN+16}""")
        for half in range(2):
            for t in range(8):
                a(f"global_load_dwordx4 v[{TI+4*t}:{TI+4*t+3}], v[{vAD}:{vAD+1}], off offset:{3072*(t&1)} {self.mf}")
                if t & 1:
                    a(f"v_lshl_add_u64 v[{vAD}:{vAD+1}], v[{vAD}:{vAD+1}], 0, s[10:11]")
            a("s_waitcnt lgkmcnt(0)")
            for t in range(8):
                Gd = half * 8 + t
                A = vA + 4 * (t & 1)
                self.buildA(A, 8 + Gd // 2, Gd & 1, vSEL)
                a(f"s_waitcnt vmcnt({7-t})\ns_nop 0")
                self.mfma(vACC, A, TI + 4 * t, None if Gd == 0 else vACC)
        a(f"""s_mul_i32 s9, s80, 10240
        s_lshl_b32 s10, s81, 10
        s_add_u32 s9, s9, s10
        s_add_u32 s9, s9, {G1_OFF}
        v_lshlrev_b32 v{vT3}, 4, v{vL}
        s_nop 7""")
        for r in range(4):
            self.tag(vACC + r, vACC + r, vTG, rn=True)
        a(f"buffer_store_dwordx4 v[{vACC}:{vACC+3}], v{vT3}, s[56:59], s9 offen sc1")

    def gen_moe2(self, vL, vT1, vT2, vT3, vT4, vT5, vSEL, vA, vACC, vTG, vCK, TI):
        a = self.a
        DT = TI + 64
        vD = 52
        a(f"""s_cmp_ge_u32 s81, 5
        s_cselect_b32 s83, 1, 0
        s_mul_i32 s84, s83, 5
        s_sub_u32 s84, s81, s84""")
        self.srd(60, 34, 1536 * 1280)
        a(f"""v_mul_u32_u24 v{vD}, {8*1280}, v{vT2}
        v_lshl_add_u32 v{vD}, v{vT1}, 4, v{vD}
        s_mul_i32 s9, s80, {64*1280}
        s_mul_i32 s10, s83, {32*1280}
        s_add_u32 s9, s9, s10
        s_lshl_b32 s10, s84, 8
        s_add_u32 s9, s9, s10
        s_add_u32 s10, s9, {4*1280}""")
        for Gd in range(8):
            a(f"buffer_load_dwordx4 v[{DT+4*Gd}:{DT+4*Gd+3}], v{vD}, s[60:63], s{9 + Gd//4} offen offset:{(Gd%4)*1280} {self.mf}")
        Lg, Lgd = self.lab("g"), self.lab("gd")
        a(f"""s_mul_i32 s9, s80, 10240
        s_add_u32 s9, s9, {G1_OFF}
        s_add_u32 s10, s9, 4096
        s_add_u32 s11, s9, 8192
        v_lshlrev_b32 v{vT3}, 4, v{vL}
        s_mov_b32 s12, {self.poll_max}
        {Lg}:""")
        for t in range(10):
            a(f"buffer_load_dwordx4 v[{TI+4*t}:{TI+4*t+3}], v{vT3}, s[56:59], s{9 + t//4} offen offset:{(t%4)*1024} sc1")
        a("s_waitcnt vmcnt(0)")
        self.chk4(vCK, TI, vTG, first=True, n=40)
        self.poll_tail(vCK, Lg, Lgd, 32)
        for t in range(1, 10):
            for r in range(4):
                a(f"v_add_f32 v{TI+r}, v{TI+r}, v{TI+4*t+r}")
        for r in range(4):
            self.rbf(TI + r)
        a("s_nop 1")
        for r in range(4):
            a(f"v_mov_b32_dpp v{TI+4+r}, v{TI+r} row_ror:8 row_mask:0xf bank_mask:0xf")
        for r in range(4):
            self.sigmoid_like(vT3, TI + r)
            a(f"v_mul_f32 v{TI+r}, v{TI+r}, v{vT3}")
            self.rbf(TI + r)
            a(f"v_mul_f32 v{TI+r}, v{TI+r}, v{TI+4+r}")
        a(f"""v_cvt_pk_bf16_f32 v{TI+4}, v{TI}, v{TI+1}
        v_cvt_pk_bf16_f32 v{TI+5}, v{TI+2}, v{TI+3}
        v_lshrrev_b32 v{vT3}, 1, v{vT2}
        v_lshlrev_b32 v{vT3}, 7, v{vT3}
        v_lshl_add_u32 v{vT3}, v{vT1}, 4, v{vT3}
        v_and_b32 v{vT4}, 1, v{vT2}
        v_lshl_add_u32 v{vT3}, v{vT4}, 3, v{vT3}
        s_mov_b32 exec_lo, 0x00ff00ff
        s_mov_b32 exec_hi, 0x00ff00ff
        ds_write_b64 v{vT3}, v[{TI+4}:{TI+5}] offset:{L_HB}
        s_mov_b64 exec, -1
        v_lshrrev_b32 v{vT3}, 3, v{vT1}
        v_lshlrev_b32 v{vT3}, 7, v{vT3}
        v_lshl_add_u32 v{vT3}, v{vT2}, 4, v{vT3}
        s_lshl_b32 s9, s83, 6
        v_add_u32 v{vT3}, s9, v{vT3}
        s_waitcnt lgkmcnt(0)
        ds_read_b128 v[8:11], v{vT3} offset:{L_HB}
        s_waitcnt lgkmcnt(0)""")
        for Gd in range(8):
            A = vA + 4 * (Gd & 1)
            self.buildA(A, 8 + Gd // 2, Gd & 1, vSEL)
            a("s_nop 1")
            self.mfma(vACC, A, DT + 4 * Gd, None if Gd == 0 else vACC)
        a(f"""v_lshrrev_b32 v{vT3}, 1, v{vT2}
        v_mul_u32_u24 v{vT3}, 2560, v{vT3}
        v_lshl_add_u32 v{vT3}, v{vT1}, 5, v{vT3}
        v_lshl_add_u32 v{vT3}, v{vT4}, 4, v{vT3}
        s_lshl_b32 s9, s80, 1
        s_add_u32 s9, s9, s83
        s_mul_i32 s9, s9, 5120
        s_lshl_b32 s10, s84, 9
        s_add_u32 s9, s9, s10
        s_add_u32 s9, s9, {Y_OFF}
        s_nop 3""")
        for r in range(4):
            self.tag(vACC + r, vACC + r, vTG, rn=True)
        a(f"buffer_store_dwordx4 v[{vACC}:{vACC+3}], v{vT3}, s[56:59], s9 offen sc1\ns_waitcnt vmcnt(0)")

    def text(self):
        hdr = open("recurrent_scan__mha_block_cached__moe_arch_mod__decode.s.ref").read().split("; Override launch")[0]
        self.gen()
        return hdr + f"""; @launch grid=(256,1,1) block=(512,1,1) lds={LDS_BYTES}
.amdgcn_target "amdgcn-amd-amdhsa--gfx950"
.text
.globl {KNAME}
.p2align 8
.type {KNAME},@function
{KNAME}:
""" + "\n".join(self.o) + f"""
.section .rodata,"a"
.p2align 6
.amdhsa_kernel {KNAME}
  .amdhsa_next_free_vgpr 256
  .amdhsa_next_free_sgpr 96
  .amdhsa_accum_offset 256
  .amdhsa_group_segment_fixed_size 0
  .amdhsa_kernarg_size 104
  .amdhsa_user_sgpr_count 2
  .amdhsa_user_sgpr_kernarg_segment_ptr 1
  .amdhsa_system_sgpr_workgroup_id_x 1
  .amdhsa_float_denorm_mode_32 3
.end_amdhsa_kernel
"""


if __name__ == "__main__":
    out = sys.argv[1]
    kw = {}
    for arg in sys.argv[2:]:
        k, v = arg.split("=", 1)
        try:
            v = int(v)
        except ValueError:
            pass
        kw[k] = v
    open(out, "w").write(G(**kw).text())
```

```python
import sys, struct

KNAME = "recurrent_scan__mha_block_cached__moe_arch_mod__decode_kernel"
TB = 201326592
CH = 786432
STEP = 12288

P_OFF = 0
ST_OFF = 256 * 2560
EP_OFF = ST_OFF + 64 * 256
Y_OFF = EP_OFF + 256
QX_OFF = Y_OFF + 48 * 5120
G1_OFF = QX_OFF + 32 * 8 * 2 * 768
WS_USED = G1_OFF + 240 * 1024
STAMP_OFF = 2 << 20
WS_SRD = 4 << 20
assert WS_USED <= STAMP_OFF

L_XN = 0
L_QB = 2560
L_SC = L_QB + 512
OS = 416
L_O = L_SC + 4 * 1152
L_SCALE = L_O + 8 * OS
L_HB = L_SCALE + 64
L_WX = (L_HB + 256 + 1023) // 1024 * 1024
LDS_BYTES = L_WX + 4 * 12 * 1024

LOG2E = 0x3fb8aa3b
SCALE_F32 = 0x3d93cd3a
assert struct.unpack("<I", struct.pack("<f", 192 ** -0.5))[0] == SCALE_F32
def f32(x): return "0x%08x" % struct.unpack("<I", struct.pack("<f", x))[0]
NLOG2E = f32(-1.4426950408889634)

sWAVE, sH, sB, sSPLIT, sCHUNK, sBH = 3, 4, 5, 6, 7, 8
sT = 78
sMASK = 79
sWV = 69


class G:
    def __init__(self, R0=16, R1=8, W=4, W0=3, kvflags="nt", wflags="nt", woflags="nt", moeflags="nt", rot=1, stamps=0,
                 poll_max=1 << 18, hprio=3, wobatch=8):
        self.o = []
        self.R0, self.R1, self.W, self.W0 = R0, R1, W, W0
        fl = lambda x: '' if x == 'pl' else x.replace('_', ' ')
        self.kvf, self.wf, self.mf = fl(kvflags), fl(wflags), fl(moeflags)
        self.wof = fl(woflags)
        self.rot = rot
        self.stamps = stamps
        self.poll_max = poll_max
        self.hprio = hprio
        self.wobatch = wobatch
        self.nlab = 0

    def a(self, s):
        for ln in s.split("\n"):
            ln = ln.strip()
            if ln:
                self.o.append(("" if ln.endswith(":") else "    ") + ln)

    def lab(self, p="L"):
        self.nlab += 1
        return f"{p}_{self.nlab}"

    def srd(self, q, lo, nbytes):
        self.a(f"s_mov_b32 s{q}, s{lo}\ns_mov_b32 s{q+1}, s{lo+1}\ns_mov_b32 s{q+2}, {nbytes}\ns_mov_b32 s{q+3}, 0x20000")

    def dpp(self, op, d, s0, s1, ctrl):
        self.a(f"{op}_dpp v{d}, v{s0}, v{s1} {ctrl} row_mask:0xf bank_mask:0xf")

    def row_reduce(self, op, v, steps=(1, 2, 4, 8)):
        for s in steps:
            self.a("s_nop 1")
            self.dpp(op, v, v, v, f"row_ror:{s}")

    def swap_reduce(self, op, v, t, which):
        self.a(f"v_mov_b32 v{t}, v{v}\ns_nop 1\nv_permlane{which}_swap_b32 v{v}, v{t}\ns_nop 1\n{op} v{v}, v{v}, v{t}")

    def stamp(self, idx, vt, st=90, src=None):
        if not self.stamps:
            return
        if src is None:
            self.a(f"s_memrealtime s[{st}:{st+1}]")
            src = st
        if self.stamps == 2:
            slot = (idx if idx < 15 else 0) + (1 if self.cls == "S" else 7)
            if self.cls == "H" and idx not in (1, 2, 4, 7, 8):
                return
            if self.cls == "H":
                slot = {1: 8, 2: 9, 4: 10, 7: 11, 8: 12}[idx]
            elif idx == 15:
                slot = 1
            else:
                slot = 2 + idx
            inv = f"s_mov_b32 s{st+2}, s{src}"
            Lsk = self.lab("sk")
            if not (self.cls == "H" and idx == 8):
                self.a(f"""s_waitcnt lgkmcnt(0)
                s_cmp_lg_u32 s2, 0
                s_cbranch_scc1 {Lsk}""")
            self.a(f"""s_waitcnt lgkmcnt(0)
            {inv}
            v_mov_b32 v{vt}, s{st+2}
            v_mov_b32 v{vt+2}, {slot*4}
            s_mov_b64 exec, 1
            global_atomic_umax v{vt+2}, v{vt}, s[38:39] sc1
            s_mov_b64 exec, -1
            {Lsk}:""")
            return
        self.a(f"""s_lshl_b32 s{st+2}, s2, 3
        s_add_u32 s{st+2}, s{st+2}, s{sWV}
        s_lshl_b32 s{st+2}, s{st+2}, 7
        s_add_u32 s{st+2}, s{st+2}, {STAMP_OFF + idx*8}
        s_waitcnt lgkmcnt(0)
        v_mov_b32 v{vt}, s{src}
        v_mov_b32 v{vt+1}, s{src+1}
        v_mov_b32 v{vt+2}, 0
        s_mov_b64 exec, 1
        buffer_store_dwordx2 v[{vt}:{vt+1}], v{vt+2}, s[56:59], s{st+2} offen
        s_mov_b64 exec, -1""")

    def selectors(self, vL, base, t0, t1, t2):
        a = self.a
        a(f"""v_and_b32 v{t0}, 1, v{vL}
        v_cmp_eq_u32 vcc, 1, v{t0}
        v_mov_b32 v{t0}, 0x0c0c0100
        v_mov_b32 v{t1}, 0x01000c0c
        v_cndmask_b32 v{t0}, v{t0}, v{t1}, vcc
        v_mov_b32 v{t1}, 0x0c0c0302
        v_mov_b32 v{t2}, 0x03020c0c
        v_cndmask_b32 v{t1}, v{t1}, v{t2}, vcc
        v_bfe_u32 v{t2}, v{vL}, 1, 2""")
        for j in range(4):
            a(f"""v_cmp_eq_u32 vcc, {j}, v{t2}
            v_mov_b32 v{base+j}, 0x0c0c0c0c
            v_mov_b32 v{base+4+j}, 0x0c0c0c0c
            v_cndmask_b32 v{base+j}, v{base+j}, v{t0}, vcc
            v_cndmask_b32 v{base+4+j}, v{base+4+j}, v{t1}, vcc""")

    def buildA(self, A, P, hi, sel):
        for j in range(4):
            self.a(f"v_perm_b32 v{A+j}, v{P}, v{P}, v{sel + (4 if hi else 0) + j}")

    def mfma(self, D, A, B, C):
        c = "0" if C is None else f"v[{C}:{C+3}]"
        self.a(f"v_mfma_f32_16x16x32_bf16 v[{D}:{D+3}], v[{A}:{A+3}], v[{B}:{B+3}], {c}")

    def rbf(self, v):
        self.a(f"v_cvt_pk_bf16_f32 v{v}, v{v}, v{v}\nv_lshlrev_b32 v{v}, 16, v{v}")

    def tag(self, d, s, vTG, rn=False):
        if rn:
            self.a(f"v_add_u32 v{d}, 0x80, v{s}")
            s = d
        self.a(f"v_and_or_b32 v{d}, v{s}, s{sMASK}, v{vTG}")

    def chk4(self, acc, x, vTG, first=False, n=4):
        for r in range(n):
            self.a(f"v_xor_b32 v{x+r}, v{x+r}, v{vTG}")
        for r in range(0, n, 2):
            if first and r == 0:
                self.a(f"v_or_b32 v{acc}, v{x}, v{x+1}")
            else:
                self.a(f"v_or3_b32 v{acc}, v{x+r}, v{x+r+1}, v{acc}")

    def poll_tail(self, acc, Lretry, Ldone, sleep):
        self.a(f"""v_and_b32 v{acc}, 0xff, v{acc}
        v_cmp_ne_u32 vcc, 0, v{acc}
        s_cbranch_vccz {Ldone}""")
        if sleep:
            self.a(f"s_sleep {sleep}")
        self.a(f"""s_sub_u32 s12, s12, 1
        s_cmp_gt_u32 s12, 0
        s_cbranch_scc1 {Lretry}
        {Ldone}:""")

    def merge4(self, X):
        a = self.a
        a(f"""s_nop 1
        v_permlane16_swap_b32 v{X}, v{X+1}
        v_permlane16_swap_b32 v{X+2}, v{X+3}
        s_nop 1
        v_add_f32 v{X}, v{X}, v{X+1}
        v_add_f32 v{X+2}, v{X+2}, v{X+3}
        s_nop 1
        v_permlane32_swap_b32 v{X}, v{X+2}
        s_nop 1
        v_add_f32 v{X}, v{X}, v{X+2}""")
        self.row_reduce("v_add_f32", X, steps=(4, 8))

    def sigmoid_like(self, d, x):
        self.a(f"""v_mul_f32 v{d}, {NLOG2E}, v{x}
        v_exp_f32 v{d}, v{d}
        s_nop 0
        v_add_f32 v{d}, 1.0, v{d}
        v_rcp_f32 v{d}, v{d}
        s_nop 0""")

    def epoch_load(self):
        self.a(f"s_load_dword s{sT}, s[40:41], {EP_OFF}")

    def epoch_use(self, vTG):
        self.a(f"""s_add_u32 s{sT}, s{sT}, 1
        s_mov_b32 s{sMASK}, 0xffffff00
        s_and_b32 s9, s{sT}, 0xff
        v_mov_b32 v{vTG}, s9""")

    def gen(self):
        a = self.a
        a(f"""s_cmp_ge_u32 s2, 256
        s_cbranch_scc1 L_end
        s_load_dwordx16 s[16:31], s[0:1], 0
        s_load_dwordx8 s[32:39], s[0:1], 64
        s_load_dwordx2 s[40:41], s[0:1], 96""")
        if self.stamps:
            a("s_memrealtime s[86:87]")
        a(f"""v_lshrrev_b32 v1, 6, v0
        v_and_b32 v0, 63, v0
        v_readfirstlane_b32 s3, v1
        s_and_b32 s9, s2, 7
        s_lshr_b32 s10, s2, 3
        s_lshl_b32 s4, s9, 2
        s_lshr_b32 s11, s10, 3
        s_add_u32 s4, s4, s11
        s_bfe_u32 s5, s10, 0x10002
        s_and_b32 s6, s10, 3
        s_lshl_b32 s8, s5, 5
        s_add_u32 s8, s8, s4
        s_lshl_b32 s7, s8, 2
        s_add_u32 s7, s7, s6
        s_mov_b32 s{sWV}, s3
        s_cmp_ge_u32 s3, 4
        s_cbranch_scc1 L_H""")
        self.gen_S()
        a("L_H:")
        self.gen_H()
        a("L_end:\ns_endpgm")

    def gen_S(self):
        self.cls = "S"
        a = self.a
        R0, R1, W, W0 = self.R0, self.R1, self.W, self.W0
        assert (64 - R0) % W == 0 and (64 - R1) % W == 0 and W % 2 == 0 and R0 % 2 == 0 and R1 >= W and R0 >= W and R1 <= 16
        NITK, NITV = (64 - R0) // W, (64 - R1) // W
        vL = 0
        vOFF, vSCW, vSCR, vT0, vT1, vT2, vT3, vOW = 1, 2, 3, 4, 5, 6, 7, 8
        vA0, vA1, vTG = 9, 10, 11
        vQ = 12
        vSEL = 24
        vACC = 32
        vA = 44
        vP = 52
        RING = 64
        assert RING + R0 * 12 <= 256
        sOFF, sBEG, sEND, sIT = 42, 43, 64, 66
        a(f"""v_lshrrev_b32 v{vT0}, 3, v{vL}
        v_and_b32 v{vT1}, 7, v{vL}
        v_mul_u32_u24 v{vOFF}, 384, v{vT0}
        v_lshl_add_u32 v{vOFF}, v{vT1}, 4, v{vOFF}
        s_mul_i32 s9, s3, 3072
        v_add_u32 v{vOFF}, s9, v{vOFF}
        s_mul_i32 s{sBEG}, s7, {CH}
        s_add_u32 s{sEND}, s{sBEG}, {CH}
        s_mul_i32 s9, s7, {self.rot}
        s_and_b32 s9, s9, 63
        s_mul_i32 s9, s9, {STEP}
        s_add_u32 s{sOFF}, s{sBEG}, s9
        s_waitcnt lgkmcnt(0)""")
        self.srd(52, 18, TB)

        def load(slot):
            for j in range(3):
                r = RING + (slot * 3 + j) * 4
                a(f"buffer_load_dwordx4 v[{r}:{r+3}], v{vOFF}, s[52:55], s{sOFF} offen offset:{128*j} {self.kvf}")
            a(f"""s_add_u32 s{sOFF}, s{sOFF}, {STEP}
            s_cmp_ge_u32 s{sOFF}, s{sEND}
            s_cselect_b32 s{sOFF}, s{sBEG}, s{sOFF}""")
        for s in range(W0):
            load(s)
        self.epoch_load()
        self.srd(56, 40, WS_SRD)
        self.selectors(vL, vSEL, vT2, vT3, vOW)
        a(f"""s_mul_i32 s9, s3, 1152
        s_add_u32 s9, s9, {L_SC}
        v_mul_u32_u24 v{vSCW}, 144, v{vT0}
        v_add_u32 v{vSCW}, s9, v{vSCW}
        v_mov_b32 v{vSCR}, v{vSCW}""")
        a(f"""v_lshrrev_b32 v{vT2}, 5, v{vL}
        s_lshl_b32 s9, s3, 1
        v_add_u32 v{vT2}, s9, v{vT2}
        v_mul_u32_u24 v{vOW}, {OS}, v{vT2}
        v_lshl_add_u32 v{vOW}, v{vT1}, 4, v{vOW}
        v_bfe_u32 v{vT2}, v{vL}, 4, 1
        v_lshl_add_u32 v{vOW}, v{vT2}, 3, v{vOW}
        v_add_u32 v{vOW}, {L_O}, v{vOW}
        v_lshlrev_b32 v{vT2}, 4, v{vT1}""")
        for s in range(W0, R0):
            a(f"s_waitcnt vmcnt({3*(W0-1)})")
            load(s)
        a("s_waitcnt lgkmcnt(0)")
        self.epoch_use(vTG)
        self.stamp(15, vA, src=86)
        self.stamp(0, vA)
        a("s_barrier")
        self.stamp(1, vA)
        for j in range(3):
            a(f"ds_read_b128 v[{vQ+4*j}:{vQ+4*j+3}], v{vT2} offset:{L_QB + 128*j}")
        a(f"s_mov_b32 s{sIT}, 0\ns_mov_b32 s10, {SCALE_F32}\ns_waitcnt lgkmcnt(0)")

        def kpair(s, n, reload, off):
            a(f"s_waitcnt vmcnt({n})")
            ra, rb = RING + s * 12, RING + (s + 1) * 12
            for i in range(12):
                c0 = "0" if i == 0 else f"v{vA0}"
                c1 = "0" if i == 0 else f"v{vA1}"
                a(f"v_dot2_f32_bf16 v{vA0}, v{ra+i}, v{vQ+i}, {c0}")
                a(f"v_dot2_f32_bf16 v{vA1}, v{rb+i}, v{vQ+i}, {c1}")
            if reload:
                load(s)
            else:
                a("s_nop 2")
            self.dpp("v_add_f32", vA0, vA0, vA0, "quad_perm:[1,0,3,2]")
            self.dpp("v_add_f32", vA1, vA1, vA1, "quad_perm:[1,0,3,2]")
            if reload:
                load(s + 1)
            else:
                a("s_nop 0")
            self.dpp("v_add_f32", vA0, vA0, vA0, "quad_perm:[2,3,0,1]")
            self.dpp("v_add_f32", vA1, vA1, vA1, "quad_perm:[2,3,0,1]")
            a("s_nop 0")
            self.dpp("v_add_f32", vA0, vA0, vA0, "row_half_mirror")
            self.dpp("v_add_f32", vA1, vA1, vA1, "row_half_mirror")
            a(f"""v_cvt_pk_bf16_f32 v{vT2}, v{vA0}, v{vA1}
            v_lshlrev_b32 v{vA0}, 16, v{vT2}
            v_and_b32 v{vA1}, 0xffff0000, v{vT2}
            v_mul_f32 v{vA0}, s10, v{vA0}
            v_mul_f32 v{vA1}, s10, v{vA1}
            v_cvt_pk_bf16_f32 v{vT2}, v{vA0}, v{vA1}
            ds_write_b32 v{vSCW}, v{vT2} offset:{off}""")
        for s in range(0, R0, 2):
            kpair(s, 3 * ((R0 - s - 2) + min(s, W)), s < W, (s // 2) * 4)
        a(f"v_add_u32 v{vSCW}, {2*R0}, v{vSCW}")
        a("L_kloop:")
        a(f"""s_cmp_eq_u32 s{sIT}, {NITK-1}
        s_cbranch_scc0 L_k1
        s_mov_b32 s52, s20
        s_mov_b32 s53, s21
        L_k1:""")
        for s in range(0, W, 2):
            kpair(s, 3 * (W - 2), True, (s // 2) * 4)
        a(f"""v_add_u32 v{vSCW}, {2*W}, v{vSCW}
        s_add_u32 s{sIT}, s{sIT}, 1
        s_cmp_lt_u32 s{sIT}, {NITK}
        s_cbranch_scc1 L_kloop""")
        for s in range(W, R1):
            load(s)
        self.stamp(2, vA)
        F = 32
        a(f"""v_lshl_add_u32 v{vT2}, v{vT1}, 4, v{vSCR}
        s_waitcnt lgkmcnt(0)
        ds_read_b128 v[40:43], v{vT2}
        s_waitcnt lgkmcnt(0)""")
        for i in range(4):
            a(f"v_lshlrev_b32 v{F+2*i}, 16, v{40+i}\nv_and_b32 v{F+2*i+1}, 0xffff0000, v{40+i}")
        a(f"""v_max3_f32 v{vA0}, v{F}, v{F+1}, v{F+2}
        v_max3_f32 v{vA0}, v{vA0}, v{F+3}, v{F+4}
        v_max3_f32 v{vA0}, v{vA0}, v{F+5}, v{F+6}
        v_max_f32 v{vA0}, v{vA0}, v{F+7}""")
        self.row_reduce("v_max_f32", vA0)
        self.swap_reduce("v_max_f32", vA0, vT3, 16)
        self.swap_reduce("v_max_f32", vA0, vT3, 32)
        for i in range(8):
            a(f"v_sub_f32 v{F+i}, v{F+i}, v{vA0}\nv_mul_f32 v{F+i}, {LOG2E}, v{F+i}")
        for i in range(8):
            a(f"v_exp_f32 v{F+i}, v{F+i}")
        a("s_nop 0")
        a(f"v_add_f32 v{vA1}, v{F}, v{F+1}")
        for i in range(2, 8):
            a(f"v_add_f32 v{vA1}, v{vA1}, v{F+i}")
        for i in range(4):
            a(f"v_cvt_pk_bf16_f32 v{40+i}, v{F+2*i}, v{F+2*i+1}")
        a(f"ds_write_b128 v{vT2}, v[40:43]")
        self.row_reduce("v_add_f32", vA1)
        self.swap_reduce("v_add_f32", vA1, vT3, 16)
        self.swap_reduce("v_add_f32", vA1, vT3, 32)
        a("s_waitcnt lgkmcnt(0)")
        def pread(n, off=0):
            if n == 1: a(f"ds_read_b32 v{vP}, v{vSCR} offset:{off}")
            elif n == 2: a(f"ds_read_b64 v[{vP}:{vP+1}], v{vSCR} offset:{off}")
            elif n == 4: a(f"ds_read_b128 v[{vP}:{vP+3}], v{vSCR} offset:{off}")
            elif n == 8: a(f"ds_read_b128 v[{vP}:{vP+3}], v{vSCR} offset:{off}\nds_read_b128 v[{vP+4}:{vP+7}], v{vSCR} offset:{off+16}")
            else: raise ValueError(n)
        pread(R1 // 2)
        self.tag(44, vA0, vTG)
        self.tag(45, vA1, vTG)
        a(f"""v_mov_b32 v46, s{sT}
        v_mov_b32 v47, s{sT}
        s_lshl_b32 s9, s7, 6
        s_lshl_b32 s11, s3, 4
        s_add_u32 s9, s9, s11
        s_add_u32 s9, s9, {ST_OFF}
        v_mov_b32 v{vA0}, 0
        s_mov_b64 exec, 1
        buffer_store_dwordx4 v[44:47], v{vA0}, s[56:59], s9 offen sc1
        s_mov_b64 exec, -1""")
        for i in range(12):
            a(f"v_mov_b32 v{vACC+i}, 0")
        a(f"s_mov_b32 s{sIT}, 0\nv_add_u32 v{vSCR}, {2*R1}, v{vSCR}\ns_waitcnt lgkmcnt(0)")
        self.stamp(3, 60)

        def vslot(s, n, reload, last, nnext):
            A = vA + 4 * ((s + 1) & 1)
            self.buildA(A, vP + s // 2, s & 1, vSEL)
            if last:
                pread(nnext)
                a(f"v_add_u32 v{vSCR}, {4*nnext}, v{vSCR}")
            a(f"s_waitcnt vmcnt({n})\ns_nop 0")
            for j in range(3):
                self.mfma(vACC + 4 * j, A, RING + (s * 3 + j) * 4, vACC + 4 * j)
            if reload:
                load(s)
        for s in range(R1):
            vslot(s, 3 * ((R1 - s - 1) + min(s, W)), s < W, s == R1 - 1, W // 2)
        a("L_vloop:")
        a(f"""s_cmp_eq_u32 s{sIT}, {NITV-1}
        s_cbranch_scc0 L_v1
        s_mov_b32 s54, 0
        L_v1:
        s_waitcnt lgkmcnt(0)""")
        for s in range(W):
            vslot(s, 3 * (W - 1), True, s == W - 1, W // 2)
        a(f"""s_add_u32 s{sIT}, s{sIT}, 1
        s_cmp_lt_u32 s{sIT}, {NITV}
        s_cbranch_scc1 L_vloop""")
        a("s_nop 3")
        for j in range(3):
            a(f"""v_cvt_pk_bf16_f32 v{vA+2*j}, v{vACC+4*j}, v{vACC+4*j+1}
            v_cvt_pk_bf16_f32 v{vA+2*j+1}, v{vACC+4*j+2}, v{vACC+4*j+3}""")
        a("s_mov_b32 exec_lo, 0x00ff00ff\ns_mov_b32 exec_hi, 0xff00ff00")
        for j in range(3):
            a(f"ds_write_b64 v{vOW}, v[{vA+2*j}:{vA+2*j+1}] offset:{128*j}")
        a("s_mov_b64 exec, -1")
        a(f"""v_and_b32 v{vT0}, 7, v{vL}
        v_mul_u32_u24 v{vT0}, {OS}, v{vT0}
        v_lshrrev_b32 v{vT1}, 4, v{vL}
        v_lshl_add_u32 v{vT0}, v{vT1}, 4, v{vT0}
        v_and_b32 v{vT2}, 1, v{vT1}
        v_and_b32 v{vT3}, 15, v{vL}
        v_lshl_add_u32 v{vT3}, v{vT3}, 1, v{vT2}
        v_lshlrev_b32 v{vT3}, 2, v{vT3}
        v_lshlrev_b32 v{vT2}, 3, v{vT2}
        s_mul_i32 s9, s3, 12288
        s_add_u32 s9, s9, {L_WX}
        v_lshlrev_b32 v{vT1}, 4, v{vL}
        v_add_u32 v{vT1}, s9, v{vT1}
        s_mul_i32 s9, s7, 2560
        s_lshl_b32 s11, s3, 7
        s_add_u32 s9, s9, s11
        s_add_u32 s9, s9, {P_OFF + 2048}
        s_waitcnt lgkmcnt(0)""")
        self.stamp(4, 12)
        a("s_barrier")
        AA = RING + 12 * W
        BB = AA + 24
        assert BB + 48 <= 256
        D0, D1, SCL = 32, 36, 40
        for k in range(6):
            a(f"ds_read_b128 v[{AA+4*k}:{AA+4*k+3}], v{vT0} offset:{L_O + 64*k}")
            a(f"ds_read_b128 v[{BB+8*k}:{BB+8*k+3}], v{vT1} offset:{2048*k}")
            a(f"ds_read_b128 v[{BB+8*k+4}:{BB+8*k+7}], v{vT1} offset:{2048*k+1024}")
            if k == 3:
                a("s_waitcnt lgkmcnt(6)")
        a(f"ds_read_b64 v[{SCL}:{SCL+1}], v{vT2} offset:{L_SCALE}")
        for k in range(6):
            a(f"s_waitcnt lgkmcnt({min(15, 3*(5-k)+1)})")
            self.mfma(D0, AA + 4 * k, BB + 8 * k, None if k == 0 else D0)
            self.mfma(D1, AA + 4 * k, BB + 8 * k + 4, None if k == 0 else D1)
        a("s_waitcnt lgkmcnt(0)\ns_nop 7")
        for D in (D0, D1):
            a(f"""v_add_f32 v{D}, v{D}, v{D+1}
            v_add_f32 v{D+2}, v{D+2}, v{D+3}
            v_mul_f32 v{D}, v{D}, v{SCL}
            v_fmac_f32 v{D}, v{D+2}, v{SCL+1}""")
        a(f"""s_nop 1
        v_permlane16_swap_b32 v{D0}, v{D1}
        s_nop 1
        v_add_f32 v{D0}, v{D0}, v{D1}""")
        self.tag(D0, D0, vTG)
        a(f"""s_mov_b32 exec_hi, 0
        buffer_store_dword v{D0}, v{vT3}, s[56:59], s9 offen sc1
        s_mov_b64 exec, -1""")
        self.stamp(5, 12)
        a("s_endpgm")

    def gen_H(self):
        self.cls = "H"
        a = self.a
        vL = 0
        vT0, vT1, vT2, vT3, vT4, vT5, vW = 1, 2, 3, 4, 5, 6, 7
        vX = 8
        vSEL = 18
        vTG = 26
        vCK = 27
        vF = 28
        vA, vACC = 28, 36
        vE = 52
        TI = 64
        if self.hprio:
            a(f"s_setprio {self.hprio}")
        a("s_sub_u32 s3, s3, 4")
        a(f"""s_and_b32 s14, s10, 7
        v_lshrrev_b32 v{vT0}, 5, v{vL}
        v_mul_u32_u24 v{vT0}, 1280, v{vT0}
        v_and_b32 v{vT1}, 31, v{vL}
        v_lshl_add_u32 v{vT0}, v{vT1}, 3, v{vT0}
        v_lshrrev_b32 v{vT1}, 3, v{vL}
        v_mul_u32_u24 v{vW}, {10*12288}, v{vT1}
        v_and_b32 v{vT2}, 7, v{vL}
        v_lshl_add_u32 v{vW}, v{vT2}, 4, v{vW}
        s_mul_i32 s9, s4, 384
        s_mul_i32 s11, s14, {80*12288}
        s_add_u32 s9, s9, s11
        s_lshl_b32 s11, s3, 7
        s_add_u32 s9, s9, s11
        v_add_u32 v{vW}, s9, v{vW}
        s_waitcnt lgkmcnt(0)""")
        self.srd(60, 16, 2560)
        self.srd(44, 22, 640 * 12288)
        for t in range(5):
            a(f"buffer_load_dwordx2 v[{vX+2*t}:{vX+2*t+1}], v{vT0}, s[60:63], 0 offen offset:{256*t}")
        a("s_cmp_eq_u32 s3, 3\ns_cselect_b32 s46, 0, s46")
        for G in range(10):
            a(f"s_mov_b32 s9, {G*12288}")
            a(f"buffer_load_dwordx4 v[{TI+4*G}:{TI+4*G+3}], v{vW}, s[44:47], s9 offen {self.wf}")
        self.epoch_load()
        self.srd(56, 40, WS_SRD)
        self.selectors(vL, vSEL, vT3, vT4, vT5)
        a("s_waitcnt vmcnt(10)")
        for i in range(10):
            a(f"v_lshlrev_b32 v{vF+2*i}, 16, v{vX+i}\nv_and_b32 v{vF+2*i+1}, 0xffff0000, v{vX+i}")
        a(f"v_add_f32 v{vT3}, v{vF}, v{vF+1}\nv_add_f32 v{vT4}, v{vF+2}, v{vF+3}")
        for i in range(4, 20, 2):
            a(f"v_add_f32 v{vT3}, v{vT3}, v{vF+i}\nv_add_f32 v{vT4}, v{vT4}, v{vF+i+1}")
        a(f"v_add_f32 v{vT3}, v{vT3}, v{vT4}")
        self.row_reduce("v_add_f32", vT3)
        self.swap_reduce("v_add_f32", vT3, vT4, 16)
        def div640(v, t):
            a(f"""v_mul_f32 v{t}, {f32(1/640)}, v{v}
            v_fmac_f32 v{v}, {f32(-640.0)}, v{t}
            v_fmac_f32 v{t}, {f32(1/640)}, v{v}
            v_mov_b32 v{v}, v{t}""")
        div640(vT3, vT4)
        a(f"v_mov_b32 v{vT4}, 0\nv_mov_b32 v{vT5}, 0")
        for i in range(0, 20, 2):
            a(f"""v_sub_f32 v{vE+4}, v{vF+i}, v{vT3}
            v_sub_f32 v{vE+5}, v{vF+i+1}, v{vT3}
            v_fmac_f32 v{vT4}, v{vE+4}, v{vE+4}
            v_fmac_f32 v{vT5}, v{vE+5}, v{vE+5}""")
        a(f"v_add_f32 v{vT4}, v{vT4}, v{vT5}")
        self.row_reduce("v_add_f32", vT4)
        self.swap_reduce("v_add_f32", vT4, vT5, 16)
        div640(vT4, vT5)
        self.rbf(vT3)
        self.rbf(vT4)
        a(f"v_add_f32 v{vT4}, {f32(1e-5)}, v{vT4}")
        self.rbf(vT4)
        a(f"v_sqrt_f32 v{vT4}, v{vT4}\ns_nop 0")
        self.rbf(vT4)
        a(f"v_rcp_f32 v{vT5}, v{vT4}")
        for i in range(10):
            f0, f1 = vF + 2 * i, vF + 2 * i + 1
            a(f"""v_sub_f32 v{f0}, v{f0}, v{vT3}
            v_sub_f32 v{f1}, v{f1}, v{vT3}
            v_cvt_pk_bf16_f32 v{f1}, v{f0}, v{f1}
            v_lshlrev_b32 v{f0}, 16, v{f1}
            v_and_b32 v{f1}, 0xffff0000, v{f1}
            v_mul_f32 v{vE+4}, v{f0}, v{vT5}
            v_mul_f32 v{vE+5}, v{f1}, v{vT5}
            v_fma_f32 v{f0}, -v{vE+4}, v{vT4}, v{f0}
            v_fma_f32 v{f1}, -v{vE+5}, v{vT4}, v{f1}
            v_fmac_f32 v{vE+4}, v{f0}, v{vT5}
            v_fmac_f32 v{vE+5}, v{f1}, v{vT5}
            v_cvt_pk_bf16_f32 v{vX+i}, v{vE+4}, v{vE+5}""")
        for t in range(5):
            a(f"ds_write_b64 v{vT0}, v[{vX+2*t}:{vX+2*t+1}] offset:{L_XN + 256*t}")
        a("s_waitcnt lgkmcnt(0)")
        self.epoch_use(vTG)
        self.stamp(15, 60, src=86)
        self.stamp(1, 60)
        a("s_cmp_eq_u32 s3, 3\ns_cbranch_scc1 L_qcons")
        a(f"""v_mul_u32_u24 v{vT3}, 20, v{vT1}
        s_mul_i32 s9, s14, 160
        v_add_u32 v{vT3}, s9, v{vT3}""")
        for bb in range(2):
            for t in range(5):
                a(f"ds_read_b32 v{vX+5*bb+t}, v{vT3} offset:{L_XN + 1280*bb + 4*t}")
        a(f"""v_lshrrev_b32 v{vT4}, 5, v{vL}
        v_mul_u32_u24 v{vT4}, 768, v{vT4}
        v_lshl_add_u32 v{vT4}, v{vT2}, 5, v{vT4}
        v_bfe_u32 v{vT5}, v{vL}, 4, 1
        v_lshl_add_u32 v{vT4}, v{vT5}, 4, v{vT4}
        s_lshl_b32 s9, s4, 3
        s_add_u32 s9, s9, s14
        s_mul_i32 s9, s9, 1536
        s_lshl_b32 s11, s3, 8
        s_add_u32 s9, s9, s11
        s_add_u32 s9, s9, {QX_OFF}
        s_waitcnt lgkmcnt(0)""")
        for G in range(10):
            self.buildA(vA, vX + G // 2, G & 1, vSEL)
            self.buildA(vA + 4, vX + 5 + G // 2, G & 1, vSEL)
            a(f"s_waitcnt vmcnt({9-G})\ns_nop 0")
            self.mfma(vACC, vA, TI + 4 * G, None if G == 0 else vACC)
            self.mfma(vACC + 4, vA + 4, TI + 4 * G, None if G == 0 else vACC + 4)
        a("s_nop 7")
        for r in range(4):
            a(f"v_permlane32_swap_b32 v{vACC+r}, v{vACC+4+r}")
        a("s_nop 1")
        for r in range(4):
            self.dpp("v_add_f32", vACC + r, vACC + 4 + r, vACC + r, "row_ror:8")
        for r in range(4):
            self.tag(vACC + r, vACC + r, vTG, rn=True)
        a(f"""s_mov_b32 exec_lo, 0x00ff00ff
        s_mov_b32 exec_hi, 0x00ff00ff
        buffer_store_dwordx4 v[{vACC}:{vACC+3}], v{vT4}, s[56:59], s9 offen sc1
        s_mov_b64 exec, -1
        s_branch L_qdone
        L_qcons:""")
        Lq, Lqd = self.lab("q"), self.lab("qd")
        a(f"""v_lshlrev_b32 v{vT3}, 4, v{vL}
        v_lshlrev_b32 v{vT4}, 3, v{vL}
        s_mul_i32 s9, s4, {8*1536}
        s_mul_i32 s11, s5, 768
        s_add_u32 s9, s9, s11
        s_add_u32 s70, s9, {QX_OFF}
        s_add_u32 s71, s70, 3072
        s_add_u32 s72, s70, 6144
        s_add_u32 s73, s70, 9216
        s_mov_b32 s12, {self.poll_max}
        s_mov_b32 exec_hi, 0xffff
        {Lq}:""")
        for k in range(8):
            a(f"buffer_load_dwordx4 v[{TI+4*k}:{TI+4*k+3}], v{vT3}, s[56:59], s{70+k//2} offen offset:{1536*(k&1)} sc1")
        for k in range(8):
            a(f"s_waitcnt vmcnt({7-k})")
            self.chk4(vCK, TI + 4 * k, vTG, first=(k == 0))
            if k:
                for r in range(4):
                    a(f"v_add_f32 v{TI+r}, v{TI+r}, v{TI+4*k+r}")
        self.poll_tail(vCK, Lq, Lqd, 0)
        a(f"""v_cvt_pk_bf16_f32 v{TI}, v{TI}, v{TI+1}
        v_cvt_pk_bf16_f32 v{TI+1}, v{TI+2}, v{TI+3}
        ds_write_b64 v{vT4}, v[{TI}:{TI+1}] offset:{L_QB}
        s_mov_b64 exec, -1
        s_waitcnt lgkmcnt(0)
        L_qdone:""")
        self.stamp(2, 60)
        a("s_barrier")
        a(f"""s_cmp_lg_u32 s3, 0
        s_cbranch_scc1 L_noinc""")
        self.srd(60, 38, 256)
        a(f"""v_mov_b32 v{vT3}, 1
        v_mov_b32 v{vT4}, 0
        s_mov_b64 exec, 1
        buffer_atomic_add v{vT3}, v{vT4}, s[60:63], 0 offen sc1
        s_mov_b64 exec, -1
        L_noinc:""")
        a(f"v_and_b32 v{vT1}, 15, v{vL}\nv_lshrrev_b32 v{vT2}, 4, v{vL}")
        a(f"""s_mul_hi_u32 s81, s2, {(2**32 + 23)//24}
        s_mul_i32 s80, s81, 24
        s_sub_u32 s80, s2, s80
        s_mov_b32 s82, 0
        s_cmp_ge_u32 s2, 240
        s_cbranch_scc1 L_nomoe1
        s_cmp_lg_u32 s3, 1
        s_cbranch_scc1 L_nomoe1
        s_mov_b32 s82, 1""")
        self.gen_moe1(vL, vT1, vT2, vT3, vT4, vT5, vSEL, vA, vACC, vTG, TI)
        a("L_nomoe1:")
        self.srd(44, 24, 6144 * 1280)
        a(f"""v_mul_u32_u24 v{vW}, {8*1280}, v{vT2}
        s_mul_i32 s9, s4, {192*1280}
        v_add_u32 v{vW}, s9, v{vW}
        v_lshl_add_u32 v{vT3}, v{vT1}, 2, v{vW}
        s_lshl_b32 s9, s3, 6
        s_add_u32 s9, s9, 1024
        v_add_u32 v{vT3}, s9, v{vT3}
        v_lshl_add_u32 v{vW}, v{vT1}, 4, v{vW}
        s_lshl_b32 s9, s3, 8
        v_add_u32 v{vW}, s9, v{vW}
        s_mov_b32 s14, 0x05040100
        s_mov_b32 s15, 0x07060302
        s_mul_i32 s9, s3, 12288
        s_add_u32 s9, s9, {L_WX}
        v_lshlrev_b32 v{vT4}, 4, v{vL}
        v_add_u32 v{vT4}, s9, v{vT4}""")
        for K0 in range(0, 6, 2):
            for K in (K0, K0 + 1):
                for e in range(8):
                    if e % 4 == 0:
                        a(f"s_mov_b32 s9, {(32*K + e)*1280}")
                    a(f"buffer_load_dword v{TI+8*K+e}, v{vT3}, s[44:47], s9 offen offset:{(e%4)*1280} {self.wof}")
            for K in (K0, K0 + 1):
                a(f"s_waitcnt vmcnt({8*(K0+1-K)})")
                d = TI + 48 + 8 * K
                for t in range(4):
                    a(f"v_perm_b32 v{d+t}, v{TI+8*K+2*t+1}, v{TI+8*K+2*t}, s14")
                    a(f"v_perm_b32 v{d+4+t}, v{TI+8*K+2*t+1}, v{TI+8*K+2*t}, s15")
                a(f"ds_write_b128 v{vT4}, v[{d}:{d+3}] offset:{2048*K}")
                a(f"ds_write_b128 v{vT4}, v[{d+4}:{d+7}] offset:{2048*K+1024}")
        a("s_waitcnt lgkmcnt(0)")
        self.stamp(3, 60)
        a("s_cmp_eq_u32 s82, 0\ns_cbranch_scc1 L_nomoe2")
        self.gen_moe2(vL, vT1, vT2, vT3, vT4, vT5, vSEL, vA, vACC, vTG, vCK, TI)
        self.stamp(9, 60)
        a("L_nomoe2:")
        def REG(k): return 32 + 32 * k
        for K in range(6):
            for e in range(8):
                if e % 4 == 0:
                    a(f"s_mov_b32 s9, {(32*K + e)*1280}")
                r = REG(0) + 4 * e
                a(f"buffer_load_dwordx4 v[{r}:{r+3}], v{vW}, s[44:47], s9 offen offset:{(e%4)*1280} {self.wof}")
                if self.wobatch == 4 and e == 3:
                    a("s_waitcnt vmcnt(0)")
            s, d = REG(0), REG(K + 1)
            for t in range(4):
                a(f"s_waitcnt vmcnt({6-2*t})")
                for dd in range(4):
                    a(f"v_perm_b32 v{d+(2*dd)*4+t}, v{s+(2*t+1)*4+dd}, v{s+(2*t)*4+dd}, s14")
                    a(f"v_perm_b32 v{d+(2*dd+1)*4+t}, v{s+(2*t+1)*4+dd}, v{s+(2*t)*4+dd}, s15")
        vG, vXC, vOUTA, vPA, vSC = 8, 9, 10, 11, 12
        vAR, vST = 14, 15
        Wk = 32
        self.stamp(4, 60)
        a(f"""s_cmp_lg_u32 s3, 3
        s_cbranch_scc1 L_noep
        s_cmp_lg_u32 s2, 0
        s_cbranch_scc1 L_noep""")
        Lc, Lcd = self.lab("c0"), self.lab("c0d")
        self.srd(60, 38, 256)
        a(f"""s_mov_b32 s12, {self.poll_max}
        v_mov_b32 v{Wk+1}, 0
        {Lc}:
        buffer_load_dword v{Wk}, v{Wk+1}, s[60:63], 0 offen sc1
        s_waitcnt vmcnt(0)
        v_readfirstlane_b32 s13, v{Wk}
        s_cmp_ge_u32 s13, 256
        s_cbranch_scc1 {Lcd}
        s_sleep 16
        s_sub_u32 s12, s12, 1
        s_cmp_gt_u32 s12, 0
        s_cbranch_scc1 {Lc}
        {Lcd}:
        v_mov_b32 v{Wk}, s{sT}
        s_mov_b32 s9, {EP_OFF}
        s_mov_b64 exec, 1
        buffer_store_dword v{Wk}, v{Wk+1}, s[56:59], s9 offen sc1
        s_mov_b64 exec, -1
        L_noep:""")
        a("s_cmp_lg_u32 s3, 0\ns_cbranch_scc1 L_nostat")
        Ls, Lsd = self.lab("st"), self.lab("std")
        a(f"""s_lshl_b32 s9, s8, 8
        s_add_u32 s9, s9, {ST_OFF}
        v_lshlrev_b32 v{Wk+4}, 4, v{vT1}
        v_mov_b32 v{Wk+5}, s{sT}
        s_mov_b32 s12, {self.poll_max}
        {Ls}:
        buffer_load_dwordx4 v[{Wk}:{Wk+3}], v{Wk+4}, s[56:59], s9 offen sc1
        s_waitcnt vmcnt(0)""")
        self.chk4(vCK, Wk, vTG, first=True, n=2)
        a(f"""v_and_b32 v{vCK}, 0xff, v{vCK}
        v_bitop3_b32 v{vCK}, v{Wk+2}, v{Wk+5}, v{vCK} bitop3:0xbe
        v_bitop3_b32 v{vCK}, v{Wk+3}, v{Wk+5}, v{vCK} bitop3:0xbe
        v_cmp_ne_u32 vcc, 0, v{vCK}
        s_cbranch_vccz {Lsd}
        s_sleep 32
        s_sub_u32 s12, s12, 1
        s_cmp_gt_u32 s12, 0
        s_cbranch_scc1 {Ls}
        {Lsd}:
        v_mov_b32 v{Wk+2}, v{Wk}""")
        self.row_reduce("v_max_f32", Wk + 2)
        a(f"""v_sub_f32 v{Wk}, v{Wk}, v{Wk+2}
        v_mul_f32 v{Wk}, {LOG2E}, v{Wk}
        v_exp_f32 v{Wk}, v{Wk}
        s_nop 0
        v_mul_f32 v{Wk+1}, v{Wk+1}, v{Wk}""")
        self.row_reduce("v_add_f32", Wk + 1)
        a(f"""v_rcp_f32 v{Wk+2}, v{Wk+1}
        s_nop 0
        v_mul_f32 v{Wk+3}, v{Wk}, v{Wk+2}
        v_fma_f32 v{Wk}, -v{Wk+3}, v{Wk+1}, v{Wk}
        v_fmac_f32 v{Wk+3}, v{Wk}, v{Wk+2}
        s_lshl_b32 s9, s6, 2
        v_subrev_u32 v{Wk+4}, s9, v{vL}
        v_cmp_gt_u32 vcc, 4, v{Wk+4}
        v_lshlrev_b32 v{Wk+4}, 2, v{Wk+4}
        s_and_saveexec_b64 s[10:11], vcc
        ds_write_b32 v{Wk+4}, v{Wk+3} offset:{L_SCALE}
        s_mov_b64 exec, -1
        L_nostat:""")
        a(f"""s_lshl_b32 s67, s6, 5
        s_add_u32 s67, s67, s4
        s_mov_b32 s68, 0
        s_cmp_lg_u32 s3, 2
        s_cbranch_scc1 L_noown
        s_cmp_ge_u32 s67, 40
        s_cbranch_scc1 L_noown
        s_mov_b32 s68, 1""")
        self.srd(60, 28, 1280)
        W = Wk
        a(f"""v_lshlrev_b32 v{W+20}, 2, v{vL}
        s_mul_i32 s9, s5, 1280
        v_add_u32 v{W+21}, s9, v{W+20}""")
        for t in range(5):
            a(f"buffer_load_dword v{W+t}, v{W+20}, s[60:63], 0 offen offset:{256*t}")
            a(f"ds_read_b32 v{W+5+t}, v{W+21} offset:{L_XN + 256*t}")
        self.srd(60, 16, 2560)
        a(f"""v_and_b32 v{W+22}, 3, v{vL}
        v_lshl_add_u32 v{vOUTA}, v{W+22}, 2, v{vT2}
        v_lshlrev_b32 v{vOUTA}, 1, v{vOUTA}
        s_lshl_b32 s10, s67, 5
        s_add_u32 s10, s10, s9
        v_add_u32 v{vOUTA}, s10, v{vOUTA}
        buffer_load_ushort v{vXC}, v{vOUTA}, s[60:63], 0 offen
        ds_read_u16 v{W+23}, v{vOUTA} offset:{L_XN}
        s_waitcnt vmcnt(0) lgkmcnt(0)""")
        for t in range(5):
            c = "0" if t == 0 else f"v{W+24}"
            a(f"v_dot2_f32_bf16 v{W+24}, v{W+t}, v{W+5+t}, {c}")
        a(f"v_lshlrev_b32 v{vXC}, 16, v{vXC}\nv_lshlrev_b32 v{W+23}, 16, v{W+23}\ns_nop 1")
        self.row_reduce("v_add_f32", W + 24)
        self.swap_reduce("v_add_f32", W + 24, W + 25, 16)
        self.swap_reduce("v_add_f32", W + 24, W + 25, 32)
        self.rbf(W + 24)
        self.sigmoid_like(W + 24, W + 24)
        self.rbf(W + 24)
        Ly, Lyd = self.lab("y"), self.lab("yd")
        a(f"""v_lshrrev_b32 v{W+20}, 2, v{vL}
        v_mul_u32_u24 v{W+21}, 5120, v{W+20}
        v_lshl_add_u32 v{W+21}, v{W+22}, 4, v{W+21}
        v_mul_u32_u24 v{vPA}, 2560, v{W+20}
        v_lshl_add_u32 v{vPA}, v{W+22}, 4, v{vPA}
        s_mul_i32 s9, s5, 2560
        s_lshl_b32 s10, s67, 6
        s_add_u32 s9, s9, s10
        s_add_u32 s9, s9, {Y_OFF}
        s_add_u32 s10, s9, {16*5120}
        s_add_u32 s11, s9, {32*5120}
        s_mov_b32 s12, {self.poll_max}
        {Ly}:
        buffer_load_dwordx4 v[{W}:{W+3}], v{W+21}, s[56:59], s9 offen sc1
        buffer_load_dwordx4 v[{W+4}:{W+7}], v{W+21}, s[56:59], s10 offen sc1
        buffer_load_dwordx4 v[{W+8}:{W+11}], v{W+21}, s[56:59], s11 offen sc1
        s_waitcnt vmcnt(0)""")
        self.chk4(vCK, W, vTG, first=True, n=12)
        self.poll_tail(vCK, Ly, Lyd, 32)
        for r in range(4):
            a(f"v_add_f32 v{W+r}, v{W+r}, v{W+4+r}\nv_add_f32 v{W+r}, v{W+r}, v{W+8+r}")
        self.merge4(W)
        self.rbf(W)
        a(f"v_mul_f32 v{W}, v{W}, v{W+24}")
        self.rbf(W)
        a(f"v_add_f32 v{W}, v{W}, v{W+23}")
        self.rbf(W)
        self.sigmoid_like(W + 1, W)
        a(f"v_mul_f32 v{vG}, v{W}, v{W+1}")
        self.rbf(vG)
        a(f"""s_mul_i32 s70, s5, {128*2560}
        s_lshl_b32 s10, s67, 6
        s_add_u32 s70, s70, s10""")
        for t in range(1, 8):
            a(f"s_add_u32 s{70+t}, s70, {t*40960}")
        a("L_noown:")
        self.srd(60, 36, 2560)
        a(f"""v_and_b32 v{vAR}, 7, v{vL}
        v_mul_u32_u24 v{vAR}, {OS}, v{vAR}
        v_lshl_add_u32 v{vAR}, v{vT2}, 4, v{vAR}
        v_and_b32 v{vT3}, 1, v{vT2}
        v_lshlrev_b32 v{vST}, 5, v{vT1}
        v_lshl_add_u32 v{vST}, v{vT3}, 4, v{vST}
        v_lshlrev_b32 v{vT3}, 3, v{vT3}
        s_mul_i32 s9, s7, 2560
        s_lshl_b32 s10, s3, 9
        s_add_u32 s9, s9, s10
        s_waitcnt vmcnt(0) lgkmcnt(0)""")
        self.stamp(5, 60)
        a("s_barrier")
        self.stamp(6, 60)
        Aop = [16, 20, 28, REG(1), REG(1) + 4, REG(1) + 8]
        for k in range(3):
            a(f"ds_read_b128 v[{Aop[k]}:{Aop[k]+3}], v{vAR} offset:{L_O + 64*k}")
        a(f"ds_read_b64 v[{vSC}:{vSC+1}], v{vT3} offset:{L_SCALE}")
        waits = [3, 5, 4, 2, 1, 0]
        for k in range(6):
            a(f"s_waitcnt lgkmcnt({waits[k]})")
            for c in range(8):
                self.mfma(32 + 4 * c, Aop[k], REG(k + 1) + 4 * c, None if k == 0 else 32 + 4 * c)
            if k == 0:
                for kk in (3, 4, 5):
                    a(f"ds_read_b128 v[{Aop[kk]}:{Aop[kk]+3}], v{vAR} offset:{L_O + 64*kk}")
        a("s_nop 1")
        for c in range(8):
            D = 32 + 4 * c
            a(f"""v_add_f32 v{D}, v{D}, v{D+1}
            v_add_f32 v{D+2}, v{D+2}, v{D+3}
            v_mul_f32 v{D}, v{D}, v{vSC}
            v_fmac_f32 v{D}, v{D+2}, v{vSC+1}""")
        a("s_nop 1")
        for c in range(4):
            a(f"v_permlane16_swap_b32 v{32+4*c}, v{48+4*c}")
        a("s_nop 1")
        for c in range(4):
            a(f"v_add_f32 v{16+c}, v{32+4*c}, v{48+4*c}")
        for c in range(4):
            self.tag(16 + c, 16 + c, vTG)
        a(f"""s_mov_b32 exec_hi, 0
        buffer_store_dwordx4 v[16:19], v{vST}, s[56:59], s9 offen sc1
        s_mov_b32 exec_hi, -1""")
        self.stamp(7, 60)
        a("""s_cmp_eq_u32 s68, 0
        s_cbranch_scc1 L_end""")
        Lp, Lpd = self.lab("p"), self.lab("pd")
        Z = 64
        a(f"s_mov_b32 s12, {self.poll_max}\n{Lp}:")
        for t in range(8):
            a(f"buffer_load_dwordx4 v[{Z+4*t}:{Z+4*t+3}], v{vPA}, s[56:59], s{70+t} offen sc1")
        for t in range(8):
            a(f"s_waitcnt vmcnt({7-t})")
            self.chk4(vCK, Z + 4 * t, vTG, first=(t == 0))
            if t:
                for r in range(4):
                    a(f"v_add_f32 v{Z+r}, v{Z+r}, v{Z+4*t+r}")
        self.poll_tail(vCK, Lp, Lpd, 0)
        self.merge4(Z)
        self.rbf(Z)
        a(f"v_mul_f32 v{Z}, v{Z}, v{vG}")
        self.rbf(Z)
        a(f"""v_add_f32 v{Z}, v{Z}, v{vXC}
        v_cvt_pk_bf16_f32 v{Z}, v{Z}, v{Z}
        s_mov_b32 exec_lo, 0x000f000f
        s_mov_b32 exec_hi, 0x000f000f
        buffer_store_short v{Z}, v{vOUTA}, s[60:63], 0 offen""")
        self.stamp(8, 60)

    def gen_moe1(self, vL, vT1, vT2, vT3, vT4, vT5, vSEL, vA, vACC, vTG, TI):
        a = self.a
        vAD = 52
        vCA = 54
        a(f"""v_cmp_gt_u32 vcc, 8, v{vT1}
        v_mov_b32 v{vT3}, s32
        v_mov_b32 v{vT4}, s30
        v_cndmask_b32 v{vAD}, v{vT3}, v{vT4}, vcc
        v_mov_b32 v{vT3}, s33
        v_mov_b32 v{vT4}, s31
        v_cndmask_b32 v{vAD+1}, v{vT3}, v{vT4}, vcc
        v_mul_u32_u24 v{vT3}, {16*3072}, v{vT2}
        v_and_b32 v{vT4}, 7, v{vL}
        v_lshl_add_u32 v{vT3}, v{vT4}, 4, v{vT3}
        s_lshl_b32 s9, s80, 7
        s_mul_i32 s10, s81, {64*3072}
        s_add_u32 s9, s9, s10
        v_add_u32 v{vT4}, s9, v{vT3}
        v_mov_b32 v{vT5}, 0
        v_add_co_u32 v{vAD}, vcc, v{vAD}, v{vT4}
        s_nop 1
        v_addc_co_u32 v{vAD+1}, vcc, v{vAD+1}, v{vT5}, vcc
        v_lshrrev_b32 v{vT3}, 3, v{vT1}
        v_mul_u32_u24 v{vCA}, 1280, v{vT3}
        v_lshl_add_u32 v{vCA}, v{vT2}, 5, v{vCA}
        s_lshl_b32 s9, s81, 7
        v_add_u32 v{vCA}, s9, v{vCA}
        s_mov_b32 s10, 6144
        s_mov_b32 s11, 0
        ds_read_b128 v[8:11], v{vCA} offset:{L_XN}
        ds_read_b128 v[12:15], v{vCA} offset:{L_XN+16}""")
        for half in range(2):
            for t in range(8):
                a(f"global_load_dwordx4 v[{TI+4*t}:{TI+4*t+3}], v[{vAD}:{vAD+1}], off offset:{3072*(t&1)} {self.mf}")
                if t & 1:
                    a(f"v_lshl_add_u64 v[{vAD}:{vAD+1}], v[{vAD}:{vAD+1}], 0, s[10:11]")
            a("s_waitcnt lgkmcnt(0)")
            for t in range(8):
                Gd = half * 8 + t
                A = vA + 4 * (t & 1)
                self.buildA(A, 8 + Gd // 2, Gd & 1, vSEL)
                a(f"s_waitcnt vmcnt({7-t})\ns_nop 0")
                self.mfma(vACC, A, TI + 4 * t, None if Gd == 0 else vACC)
        a(f"""s_mul_i32 s9, s80, 10240
        s_lshl_b32 s10, s81, 10
        s_add_u32 s9, s9, s10
        s_add_u32 s9, s9, {G1_OFF}
        v_lshlrev_b32 v{vT3}, 4, v{vL}
        s_nop 7""")
        for r in range(4):
            self.tag(vACC + r, vACC + r, vTG, rn=True)
        a(f"buffer_store_dwordx4 v[{vACC}:{vACC+3}], v{vT3}, s[56:59], s9 offen sc1")

    def gen_moe2(self, vL, vT1, vT2, vT3, vT4, vT5, vSEL, vA, vACC, vTG, vCK, TI):
        a = self.a
        DT = TI + 64
        vD = 52
        a(f"""s_cmp_ge_u32 s81, 5
        s_cselect_b32 s83, 1, 0
        s_mul_i32 s84, s83, 5
        s_sub_u32 s84, s81, s84""")
        self.srd(60, 34, 1536 * 1280)
        a(f"""v_mul_u32_u24 v{vD}, {8*1280}, v{vT2}
        v_lshl_add_u32 v{vD}, v{vT1}, 4, v{vD}
        s_mul_i32 s9, s80, {64*1280}
        s_mul_i32 s10, s83, {32*1280}
        s_add_u32 s9, s9, s10
        s_lshl_b32 s10, s84, 8
        s_add_u32 s9, s9, s10
        s_add_u32 s10, s9, {4*1280}""")
        for Gd in range(8):
            a(f"buffer_load_dwordx4 v[{DT+4*Gd}:{DT+4*Gd+3}], v{vD}, s[60:63], s{9 + Gd//4} offen offset:{(Gd%4)*1280} {self.mf}")
        Lg, Lgd = self.lab("g"), self.lab("gd")
        a(f"""s_mul_i32 s9, s80, 10240
        s_add_u32 s9, s9, {G1_OFF}
        s_add_u32 s10, s9, 4096
        s_add_u32 s11, s9, 8192
        v_lshlrev_b32 v{vT3}, 4, v{vL}
        s_mov_b32 s12, {self.poll_max}
        {Lg}:""")
        for t in range(10):
            a(f"buffer_load_dwordx4 v[{TI+4*t}:{TI+4*t+3}], v{vT3}, s[56:59], s{9 + t//4} offen offset:{(t%4)*1024} sc1")
        a("s_waitcnt vmcnt(0)")
        self.chk4(vCK, TI, vTG, first=True, n=40)
        self.poll_tail(vCK, Lg, Lgd, 32)
        for t in range(1, 10):
            for r in range(4):
                a(f"v_add_f32 v{TI+r}, v{TI+r}, v{TI+4*t+r}")
        for r in range(4):
            self.rbf(TI + r)
        a("s_nop 1")
        for r in range(4):
            a(f"v_mov_b32_dpp v{TI+4+r}, v{TI+r} row_ror:8 row_mask:0xf bank_mask:0xf")
        for r in range(4):
            self.sigmoid_like(vT3, TI + r)
            a(f"v_mul_f32 v{TI+r}, v{TI+r}, v{vT3}")
            self.rbf(TI + r)
            a(f"v_mul_f32 v{TI+r}, v{TI+r}, v{TI+4+r}")
        a(f"""v_cvt_pk_bf16_f32 v{TI+4}, v{TI}, v{TI+1}
        v_cvt_pk_bf16_f32 v{TI+5}, v{TI+2}, v{TI+3}
        v_lshrrev_b32 v{vT3}, 1, v{vT2}
        v_lshlrev_b32 v{vT3}, 7, v{vT3}
        v_lshl_add_u32 v{vT3}, v{vT1}, 4, v{vT3}
        v_and_b32 v{vT4}, 1, v{vT2}
        v_lshl_add_u32 v{vT3}, v{vT4}, 3, v{vT3}
        s_mov_b32 exec_lo, 0x00ff00ff
        s_mov_b32 exec_hi, 0x00ff00ff
        ds_write_b64 v{vT3}, v[{TI+4}:{TI+5}] offset:{L_HB}
        s_mov_b64 exec, -1
        v_lshrrev_b32 v{vT3}, 3, v{vT1}
        v_lshlrev_b32 v{vT3}, 7, v{vT3}
        v_lshl_add_u32 v{vT3}, v{vT2}, 4, v{vT3}
        s_lshl_b32 s9, s83, 6
        v_add_u32 v{vT3}, s9, v{vT3}
        s_waitcnt lgkmcnt(0)
        ds_read_b128 v[8:11], v{vT3} offset:{L_HB}
        s_waitcnt lgkmcnt(0)""")
        for Gd in range(8):
            A = vA + 4 * (Gd & 1)
            self.buildA(A, 8 + Gd // 2, Gd & 1, vSEL)
            a("s_nop 1")
            self.mfma(vACC, A, DT + 4 * Gd, None if Gd == 0 else vACC)
        a(f"""v_lshrrev_b32 v{vT3}, 1, v{vT2}
        v_mul_u32_u24 v{vT3}, 2560, v{vT3}
        v_lshl_add_u32 v{vT3}, v{vT1}, 5, v{vT3}
        v_lshl_add_u32 v{vT3}, v{vT4}, 4, v{vT3}
        s_lshl_b32 s9, s80, 1
        s_add_u32 s9, s9, s83
        s_mul_i32 s9, s9, 5120
        s_lshl_b32 s10, s84, 9
        s_add_u32 s9, s9, s10
        s_add_u32 s9, s9, {Y_OFF}
        s_nop 3""")
        for r in range(4):
            self.tag(vACC + r, vACC + r, vTG, rn=True)
        a(f"buffer_store_dwordx4 v[{vACC}:{vACC+3}], v{vT3}, s[56:59], s9 offen sc1\ns_waitcnt vmcnt(0)")

    def text(self):
        hdr = open("recurrent_scan__mha_block_cached__moe_arch_mod__decode.s.ref").read().split("; Override launch")[0]
        self.gen()
        return hdr + f"""; @launch grid=(256,1,1) block=(512,1,1) lds={LDS_BYTES}
.amdgcn_target "amdgcn-amd-amdhsa--gfx950"
.text
.globl {KNAME}
.p2align 8
.type {KNAME},@function
{KNAME}:
""" + "\n".join(self.o) + f"""
.section .rodata,"a"
.p2align 6
.amdhsa_kernel {KNAME}
  .amdhsa_next_free_vgpr 256
  .amdhsa_next_free_sgpr 96
  .amdhsa_accum_offset 256
  .amdhsa_group_segment_fixed_size 0
  .amdhsa_kernarg_size 104
  .amdhsa_user_sgpr_count 2
  .amdhsa_user_sgpr_kernarg_segment_ptr 1
  .amdhsa_system_sgpr_workgroup_id_x 1
  .amdhsa_float_denorm_mode_32 3
.end_amdhsa_kernel
"""


if __name__ == "__main__":
    out = sys.argv[1]
    kw = {}
    for arg in sys.argv[2:]:
        k, v = arg.split("=", 1)
        try:
            v = int(v)
        except ValueError:
            pass
        kw[k] = v
    open(out, "w").write(G(**kw).text())
```

```python
import sys, struct

KNAME = "recurrent_scan__mha_block_cached__moe_arch_mod__decode_kernel"
TB = 201326592
CH = 786432
STEP = 12288

P_OFF = 0
ST_OFF = 256 * 2560
EP_OFF = ST_OFF + 64 * 256
Y_OFF = EP_OFF + 256
QX_OFF = Y_OFF + 48 * 5120
G1_OFF = QX_OFF + 32 * 8 * 2 * 768
WS_USED = G1_OFF + 240 * 1024
STAMP_OFF = 2 << 20
WS_SRD = 4 << 20
assert WS_USED <= STAMP_OFF

L_XN = 0
L_QB = 2560
L_SC = L_QB + 512
OS = 416
L_O = L_SC + 4 * 1152
L_SCALE = L_O + 8 * OS
L_FLAG = L_SCALE + 48
L_HB = L_SCALE + 64
L_WX = (L_HB + 256 + 1023) // 1024 * 1024
LDS_BYTES = L_WX + 4 * 12 * 1024

LOG2E = 0x3fb8aa3b
SCALE_F32 = 0x3d93cd3a
assert struct.unpack("<I", struct.pack("<f", 192 ** -0.5))[0] == SCALE_F32
def f32(x): return "0x%08x" % struct.unpack("<I", struct.pack("<f", x))[0]
NLOG2E = f32(-1.4426950408889634)

sWAVE, sH, sB, sSPLIT, sCHUNK, sBH = 3, 4, 5, 6, 7, 8
sT = 78
sMASK = 79
sWV = 69


class G:
    def __init__(self, R0=16, R1=8, W=4, W0=3, kvflags="nt", wflags="nt", woflags="pl", moeflags="nt", rot=1, stamps=0,
                 poll_max=1 << 18, hprio=3, hprio1=0, hprio2=3, wobatch=8, nowo=0, nomoe=0, noq=0, nob0=0, D=2, GI=4, early=0, nok=0, nopoll=0, hskip=0, stsleep=127, DV=0, earlyV=-1, D0=0, hsleep=0):
        self.DV = DV or D
        self.earlyV = early if earlyV < 0 else earlyV
        self.D0 = D0 or D
        self.hsleep = hsleep
        self.nok, self.nopoll, self.hskip, self.stsleep = nok, nopoll, hskip, stsleep
        self.D, self.GI, self.early = D, GI, early
        self.nowo, self.nomoe, self.noq, self.nob0 = nowo, nomoe, noq, nob0
        self.hprio1, self.hprio2 = hprio1, hprio2
        self.o = []
        self.R0, self.R1, self.W, self.W0 = R0, R1, W, W0
        fl = lambda x: '' if x == 'pl' else x.replace('_', ' ')
        self.kvf, self.wf, self.mf = fl(kvflags), fl(wflags), fl(moeflags)
        self.wof = fl(woflags)
        self.rot = rot
        self.stamps = stamps
        self.poll_max = poll_max
        self.hprio = hprio
        self.wobatch = wobatch
        self.nlab = 0

    def a(self, s):
        for ln in s.split("\n"):
            ln = ln.strip()
            if ln:
                self.o.append(("" if ln.endswith(":") else "    ") + ln)

    def lab(self, p="L"):
        self.nlab += 1
        return f"{p}_{self.nlab}"

    def srd(self, q, lo, nbytes):
        self.a(f"s_mov_b32 s{q}, s{lo}\ns_mov_b32 s{q+1}, s{lo+1}\ns_mov_b32 s{q+2}, {nbytes}\ns_mov_b32 s{q+3}, 0x20000")

    def dpp(self, op, d, s0, s1, ctrl):
        self.a(f"{op}_dpp v{d}, v{s0}, v{s1} {ctrl} row_mask:0xf bank_mask:0xf")

    def row_reduce(self, op, v, steps=(1, 2, 4, 8)):
        for s in steps:
            self.a("s_nop 1")
            self.dpp(op, v, v, v, f"row_ror:{s}")

    def swap_reduce(self, op, v, t, which):
        self.a(f"v_mov_b32 v{t}, v{v}\ns_nop 1\nv_permlane{which}_swap_b32 v{v}, v{t}\ns_nop 1\n{op} v{v}, v{v}, v{t}")

    def stamp(self, idx, vt, st=90, src=None):
        if not self.stamps:
            return
        if src is None:
            self.a(f"s_memrealtime s[{st}:{st+1}]")
            src = st
        if self.stamps == 2:
            slot = (idx if idx < 15 else 0) + (1 if self.cls == "S" else 7)
            if self.cls == "H" and idx not in (1, 2, 4, 7, 8):
                return
            if self.cls == "H":
                slot = {1: 8, 2: 9, 4: 10, 7: 11, 8: 12}[idx]
            elif idx == 15:
                slot = 1
            else:
                slot = 2 + idx
            inv = f"s_mov_b32 s{st+2}, s{src}"
            Lsk = self.lab("sk")
            if not (self.cls == "H" and idx == 8):
                self.a(f"""s_waitcnt lgkmcnt(0)
                s_cmp_lg_u32 s2, 0
                s_cbranch_scc1 {Lsk}""")
            self.a(f"""s_waitcnt lgkmcnt(0)
            {inv}
            v_mov_b32 v{vt}, s{st+2}
            v_mov_b32 v{vt+2}, {slot*4}
            s_mov_b64 exec, 1
            global_atomic_umax v{vt+2}, v{vt}, s[38:39] sc1
            s_mov_b64 exec, -1
            {Lsk}:""")
            return
        self.a(f"""s_lshl_b32 s{st+2}, s2, 3
        s_add_u32 s{st+2}, s{st+2}, s{sWV}
        s_lshl_b32 s{st+2}, s{st+2}, 7
        s_add_u32 s{st+2}, s{st+2}, {STAMP_OFF + idx*8}
        s_waitcnt lgkmcnt(0)
        v_mov_b32 v{vt}, s{src}
        v_mov_b32 v{vt+1}, s{src+1}
        v_mov_b32 v{vt+2}, 0
        s_mov_b64 exec, 1
        buffer_store_dwordx2 v[{vt}:{vt+1}], v{vt+2}, s[56:59], s{st+2} offen
        s_mov_b64 exec, -1""")

    def selectors(self, vL, base, t0, t1, t2):
        a = self.a
        a(f"""v_and_b32 v{t0}, 1, v{vL}
        v_cmp_eq_u32 vcc, 1, v{t0}
        v_mov_b32 v{t0}, 0x0c0c0100
        v_mov_b32 v{t1}, 0x01000c0c
        v_cndmask_b32 v{t0}, v{t0}, v{t1}, vcc
        v_mov_b32 v{t1}, 0x0c0c0302
        v_mov_b32 v{t2}, 0x03020c0c
        v_cndmask_b32 v{t1}, v{t1}, v{t2}, vcc
        v_bfe_u32 v{t2}, v{vL}, 1, 2""")
        for j in range(4):
            a(f"""v_cmp_eq_u32 vcc, {j}, v{t2}
            v_mov_b32 v{base+j}, 0x0c0c0c0c
            v_mov_b32 v{base+4+j}, 0x0c0c0c0c
            v_cndmask_b32 v{base+j}, v{base+j}, v{t0}, vcc
            v_cndmask_b32 v{base+4+j}, v{base+4+j}, v{t1}, vcc""")

    def buildA(self, A, P, hi, sel):
        for j in range(4):
            self.a(f"v_perm_b32 v{A+j}, v{P}, v{P}, v{sel + (4 if hi else 0) + j}")

    def mfma(self, D, A, B, C):
        c = "0" if C is None else f"v[{C}:{C+3}]"
        self.a(f"v_mfma_f32_16x16x32_bf16 v[{D}:{D+3}], v[{A}:{A+3}], v[{B}:{B+3}], {c}")

    def rbf(self, v):
        self.a(f"v_cvt_pk_bf16_f32 v{v}, v{v}, v{v}\nv_lshlrev_b32 v{v}, 16, v{v}")

    def tag(self, d, s, vTG, rn=False):
        if rn:
            self.a(f"v_add_u32 v{d}, 0x80, v{s}")
            s = d
        self.a(f"v_and_or_b32 v{d}, v{s}, s{sMASK}, v{vTG}")

    def chk4(self, acc, x, vTG, first=False, n=4):
        for r in range(n):
            self.a(f"v_xor_b32 v{x+r}, v{x+r}, v{vTG}")
        for r in range(0, n, 2):
            if first and r == 0:
                self.a(f"v_or_b32 v{acc}, v{x}, v{x+1}")
            else:
                self.a(f"v_or3_b32 v{acc}, v{x+r}, v{x+r+1}, v{acc}")

    def poll_tail(self, acc, Lretry, Ldone, sleep):
        self.a(f"""v_and_b32 v{acc}, 0xff, v{acc}
        v_cmp_ne_u32 vcc, 0, v{acc}
        s_cbranch_vccz {Ldone}""")
        if sleep:
            self.a(f"s_sleep {sleep}")
        self.a(f"""s_sub_u32 s12, s12, 1
        s_cmp_gt_u32 s12, 0
        s_cbranch_scc1 {Lretry}
        {Ldone}:""")

    def merge4(self, X):
        a = self.a
        a(f"""s_nop 1
        v_permlane16_swap_b32 v{X}, v{X+1}
        v_permlane16_swap_b32 v{X+2}, v{X+3}
        s_nop 1
        v_add_f32 v{X}, v{X}, v{X+1}
        v_add_f32 v{X+2}, v{X+2}, v{X+3}
        s_nop 1
        v_permlane32_swap_b32 v{X}, v{X+2}
        s_nop 1
        v_add_f32 v{X}, v{X}, v{X+2}""")
        self.row_reduce("v_add_f32", X, steps=(4, 8))

    def sigmoid_like(self, d, x):
        self.a(f"""v_mul_f32 v{d}, {NLOG2E}, v{x}
        v_exp_f32 v{d}, v{d}
        s_nop 0
        v_add_f32 v{d}, 1.0, v{d}
        v_rcp_f32 v{d}, v{d}
        s_nop 0""")

    def rotcode(self):
        if self.rot < 100:
            return f"s_mul_i32 s9, s7, {self.rot}"
        if self.rot == 100:
            return "s_lshr_b32 s9, s2, 3\ns_lshl_b32 s11, s2, 5\ns_add_u32 s9, s9, s11"
        if self.rot == 101:
            return "s_lshl_b32 s9, s5, 4\ns_add_u32 s9, s9, s7"
        if self.rot == 102:
            return "s_lshr_b32 s9, s7, 6\ns_mul_i32 s9, s9, 17\ns_add_u32 s9, s9, s7"
        raise ValueError

    def epoch_load(self):
        self.a(f"s_load_dword s{sT}, s[40:41], {EP_OFF}")

    def epoch_use(self, vTG):
        self.a(f"""s_add_u32 s{sT}, s{sT}, 1
        s_mov_b32 s{sMASK}, 0xffffff00
        s_and_b32 s9, s{sT}, 0xff
        v_mov_b32 v{vTG}, s9""")

    def gen(self):
        a = self.a
        a(f"""s_cmp_ge_u32 s2, 256
        s_cbranch_scc1 L_end
        s_load_dwordx16 s[16:31], s[0:1], 0
        s_load_dwordx8 s[32:39], s[0:1], 64
        s_load_dwordx2 s[40:41], s[0:1], 96""")
        if self.stamps:
            a("s_memrealtime s[86:87]")
        a(f"""v_lshrrev_b32 v1, 6, v0
        v_and_b32 v0, 63, v0
        v_readfirstlane_b32 s3, v1
        s_and_b32 s9, s2, 7
        s_lshr_b32 s10, s2, 3
        s_lshl_b32 s4, s9, 2
        s_lshr_b32 s11, s10, 3
        s_add_u32 s4, s4, s11
        s_bfe_u32 s5, s10, 0x10002
        s_and_b32 s6, s10, 3
        s_lshl_b32 s8, s5, 5
        s_add_u32 s8, s8, s4
        s_lshl_b32 s7, s8, 2
        s_add_u32 s7, s7, s6
        s_mov_b32 s{sWV}, s3
        s_cmp_ge_u32 s3, 4
        s_cbranch_scc1 L_H""")
        self.gen_S()
        a("L_H:")
        self.gen_H()
        a("L_end:\ns_endpgm")

    def gen_S(self):
        self.cls = "S"
        a = self.a
        R0, D, GI = self.R0, self.D, self.GI
        RS = {2: 4, 3: 6}[D]
        R1 = 4
        DV = self.DV
        RSV = {2: 4, 3: 6}[DV]
        D0 = self.D0
        assert (64 - R0) % RS == 0
        NITK = (64 - R0) // RS
        W = max(RS, RSV)
        vL = 0
        vOFF, vSCW, vSCR, vT0, vT1, vT2, vT3, vOW = 1, 2, 3, 4, 5, 6, 7, 8
        vA0, vA1, vTG = 9, 10, 11
        vQ = 12
        vSEL = 24
        vACC = 32
        vA = 44
        vP = 52
        RING = 64
        assert RING + R0 * 12 <= 256
        sOFF, sBEG, sEND, sIT, sCNT = 42, 43, 64, 66, 65
        a(f"""v_lshrrev_b32 v{vT0}, 3, v{vL}
        v_and_b32 v{vT1}, 7, v{vL}
        v_mul_u32_u24 v{vOFF}, 384, v{vT0}
        v_lshl_add_u32 v{vOFF}, v{vT1}, 4, v{vOFF}
        s_mul_i32 s9, s3, 3072""")
        if GI == 4:
            stepb = 4 * STEP
            a(f"""s_mul_i32 s11, s6, {STEP}
            s_add_u32 s9, s9, s11
            s_mul_i32 s{sBEG}, s8, {4*CH}
            s_add_u32 s{sEND}, s{sBEG}, {4*CH}
            v_add_u32 v{vOFF}, s9, v{vOFF}
            s_mul_i32 s9, s8, {self.rot}""")
        else:
            stepb = STEP
            a(f"""v_add_u32 v{vOFF}, s9, v{vOFF}
            s_mul_i32 s{sBEG}, s7, {CH}
            s_add_u32 s{sEND}, s{sBEG}, {CH}
            {self.rotcode()}""")
        a(f"""s_and_b32 s9, s9, 63
        s_mul_i32 s9, s9, {stepb}
        s_add_u32 s{sOFF}, s{sBEG}, s9
        s_mov_b32 s{sCNT}, 0
        s_waitcnt lgkmcnt(0)""")
        self.srd(52, 18, TB)

        def load(slot, sw=None):
            for j in range(3):
                r = RING + (slot * 3 + j) * 4
                a(f"buffer_load_dwordx4 v[{r}:{r+3}], v{vOFF}, s[52:55], s{sOFF} offen offset:{128*j} {self.kvf}")
            a(f"""s_add_u32 s{sOFF}, s{sOFF}, {stepb}
            s_cmp_ge_u32 s{sOFF}, s{sEND}
            s_cselect_b32 s{sOFF}, s{sBEG}, s{sOFF}""")
            if sw == "kv":
                a(f"""s_cmp_eq_u32 s{sIT}, {NITK-1}
                s_cselect_b32 s52, s20, s52
                s_cselect_b32 s53, s21, s53""")
            elif sw is not None:
                a(f"""s_cmp_eq_u32 s{sIT}, {sw}
                s_cselect_b32 s54, 0, s54""")
        thr = 3 * (D - 1) + self.early
        for s in range(D0):
            load(s)
        self.epoch_load()
        self.srd(56, 40, WS_SRD)
        self.selectors(vL, vSEL, vT2, vT3, vOW)
        a(f"""s_mul_i32 s9, s3, 1152
        s_add_u32 s9, s9, {L_SC}
        v_mul_u32_u24 v{vSCW}, 144, v{vT0}
        v_add_u32 v{vSCW}, s9, v{vSCW}
        v_mov_b32 v{vSCR}, v{vSCW}""")
        a(f"""v_lshrrev_b32 v{vT2}, 5, v{vL}
        s_lshl_b32 s9, s3, 1
        v_add_u32 v{vT2}, s9, v{vT2}
        v_mul_u32_u24 v{vOW}, {OS}, v{vT2}
        v_lshl_add_u32 v{vOW}, v{vT1}, 4, v{vOW}
        v_bfe_u32 v{vT2}, v{vL}, 4, 1
        v_lshl_add_u32 v{vOW}, v{vT2}, 3, v{vOW}
        v_add_u32 v{vOW}, {L_O}, v{vOW}
        v_lshlrev_b32 v{vT2}, 4, v{vT1}""")
        for s in range(D0, R0):
            a(f"s_waitcnt vmcnt({3*(D0-1)})")
            load(s)
        a("s_waitcnt lgkmcnt(0)")
        self.epoch_use(vTG)
        self.stamp(15, vA, src=86)
        self.stamp(0, vA)
        a("s_barrier")
        self.stamp(1, vA)
        for j in range(3):
            a(f"ds_read_b128 v[{vQ+4*j}:{vQ+4*j+3}], v{vT2} offset:{L_QB + 128*j}")
        a(f"s_mov_b32 s{sIT}, 0\ns_mov_b32 s10, {SCALE_F32}\ns_waitcnt lgkmcnt(0)")

        def kpair(s, off):
            ra, rb = RING + s * 12, RING + (s + 1) * 12
            for i in range(12):
                c0 = "0" if i == 0 else f"v{vA0}"
                c1 = "0" if i == 0 else f"v{vA1}"
                a(f"v_dot2_f32_bf16 v{vA0}, v{ra+i}, v{vQ+i}, {c0}")
                a(f"v_dot2_f32_bf16 v{vA1}, v{rb+i}, v{vQ+i}, {c1}")
            a("s_nop 2")
            self.dpp("v_add_f32", vA0, vA0, vA0, "quad_perm:[1,0,3,2]")
            self.dpp("v_add_f32", vA1, vA1, vA1, "quad_perm:[1,0,3,2]")
            a("s_nop 0")
            self.dpp("v_add_f32", vA0, vA0, vA0, "quad_perm:[2,3,0,1]")
            self.dpp("v_add_f32", vA1, vA1, vA1, "quad_perm:[2,3,0,1]")
            a("s_nop 0")
            self.dpp("v_add_f32", vA0, vA0, vA0, "row_half_mirror")
            self.dpp("v_add_f32", vA1, vA1, vA1, "row_half_mirror")
            a(f"""v_cvt_pk_bf16_f32 v{vT2}, v{vA0}, v{vA1}
            v_lshlrev_b32 v{vA0}, 16, v{vT2}
            v_and_b32 v{vA1}, 0xffff0000, v{vT2}
            v_mul_f32 v{vA0}, s10, v{vA0}
            v_mul_f32 v{vA1}, s10, v{vA1}
            v_cvt_pk_bf16_f32 v{vT2}, v{vA0}, v{vA1}
            ds_write_b32 v{vSCW}, v{vT2} offset:{off}""")
        npairs = R0 // 2
        issue_after = {0: 0, 3: 1} if D == 2 else {0: 0, 2: 1, 4: 2}
        issued = 0
        for p in range(npairs):
            a(f"s_waitcnt vmcnt({3 * ((R0 - 2*p - 2) + issued)})")
            kpair(2 * p, p * 4)
            if p in issue_after:
                a(f"s_waitcnt vmcnt({thr})")
                load(issue_after[p])
                issued += 1
        a(f"v_add_u32 v{vSCW}, {2*R0}, v{vSCW}")
        a("L_kloop:")
        for s in range(RS):
            a(f"s_waitcnt vmcnt({thr})")
            load((s + D) % RS, "kv" if s == RS - D - 1 else None)
            if s & 1:
                if self.early:
                    a(f"s_waitcnt vmcnt({3*D})")
                if not self.nok:
                    kpair(s - 1, (s // 2) * 4)
        a(f"""v_add_u32 v{vSCW}, {2*RS}, v{vSCW}
        s_add_u32 s{sIT}, s{sIT}, 1
        s_cmp_lt_u32 s{sIT}, {NITK}
        s_cbranch_scc1 L_kloop""")
        for s in range(D, R1):
            load(s)
        self.stamp(2, vA)
        F = 32
        a(f"""v_lshl_add_u32 v{vT2}, v{vT1}, 4, v{vSCR}
        s_waitcnt lgkmcnt(0)
        ds_read_b128 v[40:43], v{vT2}
        s_waitcnt lgkmcnt(0)""")
        for i in range(4):
            a(f"v_lshlrev_b32 v{F+2*i}, 16, v{40+i}\nv_and_b32 v{F+2*i+1}, 0xffff0000, v{40+i}")
        a(f"""v_max3_f32 v{vA0}, v{F}, v{F+1}, v{F+2}
        v_max3_f32 v{vA0}, v{vA0}, v{F+3}, v{F+4}
        v_max3_f32 v{vA0}, v{vA0}, v{F+5}, v{F+6}
        v_max_f32 v{vA0}, v{vA0}, v{F+7}""")
        self.row_reduce("v_max_f32", vA0)
        self.swap_reduce("v_max_f32", vA0, vT3, 16)
        self.swap_reduce("v_max_f32", vA0, vT3, 32)
        for i in range(8):
            a(f"v_sub_f32 v{F+i}, v{F+i}, v{vA0}\nv_mul_f32 v{F+i}, {LOG2E}, v{F+i}")
        for i in range(8):
            a(f"v_exp_f32 v{F+i}, v{F+i}")
        a("s_nop 0")
        a(f"v_add_f32 v{vA1}, v{F}, v{F+1}")
        for i in range(2, 8):
            a(f"v_add_f32 v{vA1}, v{vA1}, v{F+i}")
        for i in range(4):
            a(f"v_cvt_pk_bf16_f32 v{40+i}, v{F+2*i}, v{F+2*i+1}")
        a(f"ds_write_b128 v{vT2}, v[40:43]")
        self.row_reduce("v_add_f32", vA1)
        self.swap_reduce("v_add_f32", vA1, vT3, 16)
        self.swap_reduce("v_add_f32", vA1, vT3, 32)
        a("s_waitcnt lgkmcnt(0)")
        def pread(n):
            if n == 2: a(f"ds_read_b64 v[{vP}:{vP+1}], v{vSCR}")
            elif n == 3: a(f"ds_read_b32 v{vP}, v{vSCR}\nds_read_b32 v{vP+1}, v{vSCR} offset:4\nds_read_b32 v{vP+2}, v{vSCR} offset:8")
            else: raise ValueError(n)
            a(f"v_add_u32 v{vSCR}, {4*n}, v{vSCR}")
        pread(R1 // 2)
        self.tag(44, vA0, vTG)
        self.tag(45, vA1, vTG)
        a(f"""v_mov_b32 v46, s{sT}
        v_mov_b32 v47, s{sT}
        s_lshl_b32 s9, s7, 6
        s_lshl_b32 s11, s3, 4
        s_add_u32 s9, s9, s11
        s_add_u32 s9, s9, {ST_OFF}
        v_mov_b32 v{vA0}, 0
        s_mov_b64 exec, 1
        buffer_store_dwordx4 v[44:47], v{vA0}, s[56:59], s9 offen sc1
        s_mov_b64 exec, -1""")
        for i in range(12):
            a(f"v_mov_b32 v{vACC+i}, 0")
        a(f"s_mov_b32 s{sIT}, 0\ns_waitcnt lgkmcnt(0)")
        self.stamp(3, 60)

        def vmf(g, slot):
            A = vA + 4 * ((g + 1) & 1)
            for j in range(3):
                self.mfma(vACC + 4 * j, A, RING + (slot * 3 + j) * 4, vACC + 4 * j)
        def vA_(g):
            self.buildA(vA + 4 * ((g + 1) & 1), vP + g // 2, g & 1, vSEL)
        thrV = 3 * (DV - 1) + self.earlyV
        NITV = (64 - R1) // RSV
        assert (64 - R1) % RSV == 0
        issued = 0
        for g in range(R1):
            vA_(g)
            if g == R1 - 1:
                pread(RSV // 2)
            if g >= R1 - DV:
                a(f"s_waitcnt vmcnt({thrV})")
                load((R1 + issued) % RSV)
                issued += 1
                if self.earlyV:
                    a(f"s_waitcnt vmcnt({3*DV})")
            else:
                a(f"s_waitcnt vmcnt({3*(R1 - g - 1)})\ns_nop 0")
            vmf(g, g)
        a("L_vloop:\ns_waitcnt lgkmcnt(0)")
        for s in range(RSV):
            slot = (R1 + s) % RSV
            vA_(s)
            if s == RSV - 1:
                pread(RSV // 2)
            a(f"s_waitcnt vmcnt({thrV})")
            load((slot + DV) % RSV, (NITV - 1) if s == RSV - DV - 1 else None)
            if self.earlyV:
                a(f"s_waitcnt vmcnt({3*DV})")
            vmf(s, slot)
        a(f"""s_add_u32 s{sIT}, s{sIT}, 1
        s_cmp_lt_u32 s{sIT}, {NITV}
        s_cbranch_scc1 L_vloop
        s_nop 3""")
        a("s_nop 3")
        for j in range(3):
            a(f"""v_cvt_pk_bf16_f32 v{vA+2*j}, v{vACC+4*j}, v{vACC+4*j+1}
            v_cvt_pk_bf16_f32 v{vA+2*j+1}, v{vACC+4*j+2}, v{vACC+4*j+3}""")
        a("s_mov_b32 exec_lo, 0x00ff00ff\ns_mov_b32 exec_hi, 0xff00ff00")
        for j in range(3):
            a(f"ds_write_b64 v{vOW}, v[{vA+2*j}:{vA+2*j+1}] offset:{128*j}")
        a("s_mov_b64 exec, -1")
        a(f"""v_and_b32 v{vT0}, 7, v{vL}
        v_mul_u32_u24 v{vT0}, {OS}, v{vT0}
        v_lshrrev_b32 v{vT1}, 4, v{vL}
        v_lshl_add_u32 v{vT0}, v{vT1}, 4, v{vT0}
        v_and_b32 v{vT2}, 1, v{vT1}
        v_and_b32 v{vT3}, 15, v{vL}
        v_lshl_add_u32 v{vT3}, v{vT3}, 1, v{vT2}
        v_lshlrev_b32 v{vT3}, 2, v{vT3}
        v_lshlrev_b32 v{vT2}, 3, v{vT2}
        s_mul_i32 s9, s3, 12288
        s_add_u32 s9, s9, {L_WX}
        v_lshlrev_b32 v{vT1}, 4, v{vL}
        v_add_u32 v{vT1}, s9, v{vT1}
        s_mul_i32 s9, s7, 2560
        s_lshl_b32 s11, s3, 7
        s_add_u32 s9, s9, s11
        s_add_u32 s9, s9, {P_OFF + 2048}
        s_waitcnt lgkmcnt(0)""")
        self.stamp(4, 12)
        a("s_barrier")
        AA = RING + 12 * W
        BB = AA + 24
        assert BB + 48 <= 256
        D0, D1, SCL = 32, 36, 40
        for k in range(6):
            a(f"ds_read_b128 v[{AA+4*k}:{AA+4*k+3}], v{vT0} offset:{L_O + 64*k}")
            a(f"ds_read_b128 v[{BB+8*k}:{BB+8*k+3}], v{vT1} offset:{2048*k}")
            a(f"ds_read_b128 v[{BB+8*k+4}:{BB+8*k+7}], v{vT1} offset:{2048*k+1024}")
            if k == 3:
                a("s_waitcnt lgkmcnt(6)")
        a(f"ds_read_b64 v[{SCL}:{SCL+1}], v{vT2} offset:{L_SCALE}")
        for k in range(6):
            a(f"s_waitcnt lgkmcnt({min(15, 3*(5-k)+1)})")
            self.mfma(D0, AA + 4 * k, BB + 8 * k, None if k == 0 else D0)
            self.mfma(D1, AA + 4 * k, BB + 8 * k + 4, None if k == 0 else D1)
        a("s_waitcnt lgkmcnt(0)\ns_nop 7")
        for D in (D0, D1):
            a(f"""v_add_f32 v{D}, v{D}, v{D+1}
            v_add_f32 v{D+2}, v{D+2}, v{D+3}
            v_mul_f32 v{D}, v{D}, v{SCL}
            v_fmac_f32 v{D}, v{D+2}, v{SCL+1}""")
        a(f"""s_nop 1
        v_permlane16_swap_b32 v{D0}, v{D1}
        s_nop 1
        v_add_f32 v{D0}, v{D0}, v{D1}""")
        self.tag(D0, D0, vTG)
        a(f"""s_mov_b32 exec_hi, 0
        buffer_store_dword v{D0}, v{vT3}, s[56:59], s9 offen sc1
        s_mov_b64 exec, -1""")
        self.stamp(5, 12)
        a("s_endpgm")

    def gen_H(self):
        self.cls = "H"
        a = self.a
        vL = 0
        vT0, vT1, vT2, vT3, vT4, vT5, vW = 1, 2, 3, 4, 5, 6, 7
        vX = 8
        vSEL = 18
        vTG = 26
        vCK = 27
        vF = 28
        vA, vACC = 28, 36
        vE = 52
        TI = 64
        if self.hprio:
            a(f"s_setprio {self.hprio}")
        a("s_sub_u32 s3, s3, 4")
        a(f"""s_and_b32 s14, s10, 7
        v_lshrrev_b32 v{vT0}, 5, v{vL}
        v_mul_u32_u24 v{vT0}, 1280, v{vT0}
        v_and_b32 v{vT1}, 31, v{vL}
        v_lshl_add_u32 v{vT0}, v{vT1}, 3, v{vT0}
        v_lshrrev_b32 v{vT1}, 3, v{vL}
        v_mul_u32_u24 v{vW}, {10*12288}, v{vT1}
        v_and_b32 v{vT2}, 7, v{vL}
        v_lshl_add_u32 v{vW}, v{vT2}, 4, v{vW}
        s_mul_i32 s9, s4, 384
        s_mul_i32 s11, s14, {80*12288}
        s_add_u32 s9, s9, s11
        s_lshl_b32 s11, s3, 7
        s_add_u32 s9, s9, s11
        v_add_u32 v{vW}, s9, v{vW}
        s_waitcnt lgkmcnt(0)""")
        self.srd(60, 16, 2560)
        self.srd(44, 22, 640 * 12288)
        for t in range(5):
            a(f"buffer_load_dwordx2 v[{vX+2*t}:{vX+2*t+1}], v{vT0}, s[60:63], 0 offen offset:{256*t}")
        a("s_cmp_eq_u32 s3, 3\ns_cselect_b32 s46, 0, s46")
        for G in range(10):
            a(f"s_mov_b32 s9, {G*12288}")
            a(f"buffer_load_dwordx4 v[{TI+4*G}:{TI+4*G+3}], v{vW}, s[44:47], s9 offen {self.wf}")
        self.epoch_load()
        self.srd(56, 40, WS_SRD)
        self.selectors(vL, vSEL, vT3, vT4, vT5)
        a(f"s_mov_b32 s9, 0x3f803f80\ns_waitcnt vmcnt(10)")
        self.stamp(11, 60)
        for i in range(10):
            c = "0" if i == 0 else f"v{vT3}"
            a(f"v_dot2_f32_bf16 v{vT3}, v{vX+i}, s9, {c}")
        for i in range(2):
            a(f"v_lshlrev_b32 v{vF+2*i}, 16, v{vX+i}\nv_and_b32 v{vF+2*i+1}, 0xffff0000, v{vX+i}")
        k = 2
        for st in (1, 2, 4, 8):
            self.dpp("v_add_f32", vT3, vT3, vT3, f"row_ror:{st}")
            a(f"v_lshlrev_b32 v{vF+2*k}, 16, v{vX+k}\nv_and_b32 v{vF+2*k+1}, 0xffff0000, v{vX+k}")
            k += 1
        a(f"v_mov_b32 v{vT4}, v{vT3}")
        a(f"v_lshlrev_b32 v{vF+2*k}, 16, v{vX+k}\nv_and_b32 v{vF+2*k+1}, 0xffff0000, v{vX+k}")
        k += 1
        a(f"v_permlane16_swap_b32 v{vT3}, v{vT4}")
        while k < 10:
            a(f"v_lshlrev_b32 v{vF+2*k}, 16, v{vX+k}\nv_and_b32 v{vF+2*k+1}, 0xffff0000, v{vX+k}")
            k += 1
        a(f"v_add_f32 v{vT3}, v{vT3}, v{vT4}")
        def div640(v, t):
            a(f"""v_mul_f32 v{t}, {f32(1/640)}, v{v}
            v_fmac_f32 v{v}, {f32(-640.0)}, v{t}
            v_fmac_f32 v{t}, {f32(1/640)}, v{v}""")
        M2 = vE
        D2 = vE + 2
        Q2 = vE + 4
        div640(vT3, M2)
        a(f"v_mov_b32 v{M2+1}, v{M2}")
        for i in range(10):
            a(f"v_pk_add_f32 v[{D2}:{D2+1}], v[{vF+2*i}:{vF+2*i+1}], v[{M2}:{M2+1}] neg_lo:[0,1] neg_hi:[0,1]")
            if i == 0:
                a(f"v_pk_mul_f32 v[{Q2}:{Q2+1}], v[{D2}:{D2+1}], v[{D2}:{D2+1}]")
            else:
                a(f"v_pk_fma_f32 v[{Q2}:{Q2+1}], v[{D2}:{D2+1}], v[{D2}:{D2+1}], v[{Q2}:{Q2+1}]")
        a(f"v_add_f32 v{vT4}, v{Q2}, v{Q2+1}")
        self.rbf(M2)
        a(f"v_mov_b32 v{M2+1}, v{M2}")
        def xc(i):
            a(f"""v_pk_add_f32 v[{vF+2*i}:{vF+2*i+1}], v[{vF+2*i}:{vF+2*i+1}], v[{M2}:{M2+1}] neg_lo:[0,1] neg_hi:[0,1]
            v_cvt_pk_bf16_f32 v{vF+2*i+1}, v{vF+2*i}, v{vF+2*i+1}
            v_lshlrev_b32 v{vF+2*i}, 16, v{vF+2*i+1}
            v_and_b32 v{vF+2*i+1}, 0xffff0000, v{vF+2*i+1}""")
        k = 0
        for st in (1, 2, 4, 8):
            self.dpp("v_add_f32", vT4, vT4, vT4, f"row_ror:{st}")
            xc(k); k += 1
        a(f"v_mov_b32 v{vT5}, v{vT4}")
        xc(k); k += 1
        a(f"v_permlane16_swap_b32 v{vT4}, v{vT5}")
        xc(k); k += 1
        a(f"v_add_f32 v{vT4}, v{vT4}, v{vT5}")
        div640(vT4, vT5)
        self.rbf(vT5)
        a(f"v_add_f32 v{vT5}, {f32(1e-5)}, v{vT5}")
        self.rbf(vT5)
        a(f"v_sqrt_f32 v{vT5}, v{vT5}")
        xc(k); k += 1
        self.rbf(vT5)
        a(f"v_rcp_f32 v{D2}, v{vT5}")
        xc(k); k += 1
        a(f"v_mov_b32 v{D2+1}, v{D2}\nv_mov_b32 v{Q2}, v{vT5}\nv_mov_b32 v{Q2+1}, v{vT5}")
        while k < 10:
            xc(k); k += 1
        R2 = vE + 6
        for i in range(10):
            f = vF + 2 * i
            a(f"""v_pk_mul_f32 v[{R2}:{R2+1}], v[{f}:{f+1}], v[{D2}:{D2+1}]
            v_pk_fma_f32 v[{f}:{f+1}], v[{R2}:{R2+1}], v[{Q2}:{Q2+1}], v[{f}:{f+1}] neg_lo:[1,0,0] neg_hi:[1,0,0]
            v_pk_fma_f32 v[{R2}:{R2+1}], v[{f}:{f+1}], v[{D2}:{D2+1}], v[{R2}:{R2+1}]
            v_cvt_pk_bf16_f32 v{vX+i}, v{R2}, v{R2+1}""")
            if i & 1:
                t = i // 2
                a(f"ds_write_b64 v{vT0}, v[{vX+2*t}:{vX+2*t+1}] offset:{L_XN + 256*t}")
        a("s_waitcnt lgkmcnt(0)")
        self.epoch_use(vTG)
        self.stamp(15, 60, src=86)
        self.stamp(1, 60)
        a("s_cmp_eq_u32 s3, 3\ns_cbranch_scc1 L_qcons")
        a(f"""v_mul_u32_u24 v{vT3}, 20, v{vT1}
        s_mul_i32 s9, s14, 160
        v_add_u32 v{vT3}, s9, v{vT3}""")
        for bb in range(2):
            for t in range(5):
                a(f"ds_read_b32 v{vX+5*bb+t}, v{vT3} offset:{L_XN + 1280*bb + 4*t}")
        a(f"""v_lshrrev_b32 v{vT4}, 5, v{vL}
        v_mul_u32_u24 v{vT4}, 768, v{vT4}
        v_lshl_add_u32 v{vT4}, v{vT2}, 5, v{vT4}
        v_bfe_u32 v{vT5}, v{vL}, 4, 1
        v_lshl_add_u32 v{vT4}, v{vT5}, 4, v{vT4}
        s_lshl_b32 s9, s4, 3
        s_add_u32 s9, s9, s14
        s_mul_i32 s9, s9, 1536
        s_lshl_b32 s11, s3, 8
        s_add_u32 s9, s9, s11
        s_add_u32 s9, s9, {QX_OFF}
        s_waitcnt lgkmcnt(0)""")
        for G in range(10):
            self.buildA(vA, vX + G // 2, G & 1, vSEL)
            self.buildA(vA + 4, vX + 5 + G // 2, G & 1, vSEL)
            a(f"s_waitcnt vmcnt({9-G})\ns_nop 0")
            self.mfma(vACC, vA, TI + 4 * G, None if G == 0 else vACC)
            self.mfma(vACC + 4, vA + 4, TI + 4 * G, None if G == 0 else vACC + 4)
        a("s_nop 7")
        for r in range(4):
            a(f"v_permlane32_swap_b32 v{vACC+r}, v{vACC+4+r}")
        a("s_nop 1")
        for r in range(4):
            self.dpp("v_add_f32", vACC + r, vACC + 4 + r, vACC + r, "row_ror:8")
        for r in range(4):
            self.tag(vACC + r, vACC + r, vTG, rn=True)
        a(f"""s_mov_b32 exec_lo, 0x00ff00ff
        s_mov_b32 exec_hi, 0x00ff00ff
        buffer_store_dwordx4 v[{vACC}:{vACC+3}], v{vT4}, s[56:59], s9 offen sc1
        s_mov_b64 exec, -1
        s_branch L_qdone
        L_qcons:""")
        Lq, Lqd = self.lab("q"), self.lab("qd")
        a(f"""v_lshlrev_b32 v{vT3}, 4, v{vL}
        v_lshlrev_b32 v{vT4}, 3, v{vL}
        s_mul_i32 s9, s4, {8*1536}
        s_mul_i32 s11, s5, 768
        s_add_u32 s9, s9, s11
        s_add_u32 s70, s9, {QX_OFF}
        s_add_u32 s71, s70, 3072
        s_add_u32 s72, s70, 6144
        s_add_u32 s73, s70, 9216
        s_mov_b32 s12, {self.poll_max}
        s_mov_b32 exec_hi, 0xffff
        {Lq}:""")
        for k in range(8):
            a(f"buffer_load_dwordx4 v[{TI+4*k}:{TI+4*k+3}], v{vT3}, s[56:59], s{70+k//2} offen offset:{1536*(k&1)} sc1")
        for k in range(8):
            a(f"s_waitcnt vmcnt({7-k})")
            self.chk4(vCK, TI + 4 * k, vTG, first=(k == 0))
            if k:
                for r in range(4):
                    a(f"v_add_f32 v{TI+r}, v{TI+r}, v{TI+4*k+r}")
        self.poll_tail(vCK, Lq, Lqd, 0)
        a(f"""v_cvt_pk_bf16_f32 v{TI}, v{TI}, v{TI+1}
        v_cvt_pk_bf16_f32 v{TI+1}, v{TI+2}, v{TI+3}
        ds_write_b64 v{vT4}, v[{TI}:{TI+1}] offset:{L_QB}
        s_mov_b64 exec, -1
        s_waitcnt lgkmcnt(0)
        L_qdone:""")
        self.stamp(2, 60)
        a(f"s_setprio {self.hprio1}")
        a("s_barrier")
        a(f"v_and_b32 v{vT1}, 15, v{vL}\nv_lshrrev_b32 v{vT2}, 4, v{vL}")
        if self.hskip:
            a("s_mov_b32 s68, 0\ns_branch L_noown")
        a(f"""s_mul_hi_u32 s81, s2, {(2**32 + 23)//24}
        s_mul_i32 s80, s81, 24
        s_sub_u32 s80, s2, s80
        s_mov_b32 s82, 0
        s_cmp_ge_u32 s2, {0 if self.nomoe else 240}
        s_cbranch_scc1 L_nomoe1
        s_cmp_lg_u32 s3, 1
        s_cbranch_scc1 L_nomoe1
        s_mov_b32 s82, 1""")
        self.gen_moe1(vL, vT1, vT2, vT3, vT4, vT5, vSEL, vA, vACC, vTG, TI)
        a("L_nomoe1:")
        self.srd(44, 24, 0 if self.nowo else 6144 * 1280)
        a(f"""v_mul_u32_u24 v{vW}, {8*1280}, v{vT2}
        s_mul_i32 s9, s4, {192*1280}
        v_add_u32 v{vW}, s9, v{vW}
        v_lshl_add_u32 v{vT3}, v{vT1}, 2, v{vW}
        s_lshl_b32 s9, s3, 6
        s_add_u32 s9, s9, 1024
        v_add_u32 v{vT3}, s9, v{vT3}
        v_lshl_add_u32 v{vW}, v{vT1}, 4, v{vW}
        s_lshl_b32 s9, s3, 8
        v_add_u32 v{vW}, s9, v{vW}
        s_mov_b32 s14, 0x05040100
        s_mov_b32 s15, 0x07060302
        s_mul_i32 s9, s3, 12288
        s_add_u32 s9, s9, {L_WX}
        v_lshlrev_b32 v{vT4}, 4, v{vL}
        v_add_u32 v{vT4}, s9, v{vT4}""")
        for K0 in range(0, 6, 2):
            for K in (K0, K0 + 1):
                for e in range(8):
                    if e % 4 == 0:
                        a(f"s_mov_b32 s9, {(32*K + e)*1280}")
                    a(f"buffer_load_dword v{TI+8*K+e}, v{vT3}, s[44:47], s9 offen offset:{(e%4)*1280} {self.wof}")
            for K in (K0, K0 + 1):
                a(f"s_waitcnt vmcnt({8*(K0+1-K)})")
                d = TI + 48 + 8 * K
                for t in range(4):
                    a(f"v_perm_b32 v{d+t}, v{TI+8*K+2*t+1}, v{TI+8*K+2*t}, s14")
                    a(f"v_perm_b32 v{d+4+t}, v{TI+8*K+2*t+1}, v{TI+8*K+2*t}, s15")
                a(f"ds_write_b128 v{vT4}, v[{d}:{d+3}] offset:{2048*K}")
                a(f"ds_write_b128 v{vT4}, v[{d+4}:{d+7}] offset:{2048*K+1024}")
        a("s_waitcnt lgkmcnt(0)")
        self.stamp(3, 60)
        a("s_cmp_eq_u32 s82, 0\ns_cbranch_scc1 L_nomoe2")
        self.gen_moe2(vL, vT1, vT2, vT3, vT4, vT5, vSEL, vA, vACC, vTG, vCK, TI)
        self.stamp(9, 60)
        a("L_nomoe2:")
        def REG(k): return 32 + 32 * k
        for K in range(6):
            for e in range(8):
                if e % 4 == 0:
                    a(f"s_mov_b32 s9, {(32*K + e)*1280}")
                r = REG(0) + 4 * e
                a(f"buffer_load_dwordx4 v[{r}:{r+3}], v{vW}, s[44:47], s9 offen offset:{(e%4)*1280} {self.wof}")
                if self.wobatch == 4 and e == 3:
                    a("s_waitcnt vmcnt(0)")
            s, d = REG(0), REG(K + 1)
            for t in range(4):
                a(f"s_waitcnt vmcnt({6-2*t})")
                for dd in range(4):
                    a(f"v_perm_b32 v{d+(2*dd)*4+t}, v{s+(2*t+1)*4+dd}, v{s+(2*t)*4+dd}, s14")
                    a(f"v_perm_b32 v{d+(2*dd+1)*4+t}, v{s+(2*t+1)*4+dd}, v{s+(2*t)*4+dd}, s15")
        vG, vXC, vOUTA, vPA, vSC = 8, 9, 10, 11, 12
        vAR, vST = 14, 15
        Wk = 32
        self.stamp(4, 60)
        a(f"""s_cmp_lg_u32 s3, 3
        s_cbranch_scc1 L_noep
        s_cmp_lg_u32 s2, 0
        s_cbranch_scc1 L_noep""")
        Lc, Lcd = self.lab("c0"), self.lab("c0d")
        a(f"""s_mov_b32 s12, {self.poll_max}
        v_lshlrev_b32 v{Wk+8}, 6, v{vL}
        v_mov_b32 v{Wk+9}, s{sT}
        s_mov_b32 s9, {ST_OFF + 8}
        s_mov_b32 s10, {ST_OFF + 8 + 4096}
        s_mov_b32 s11, {ST_OFF + 8 + 8192}
        s_mov_b32 s13, {ST_OFF + 8 + 12288}
        {Lc}:
        s_sleep 127
        buffer_load_dwordx2 v[{Wk}:{Wk+1}], v{Wk+8}, s[56:59], s9 offen sc1
        buffer_load_dwordx2 v[{Wk+2}:{Wk+3}], v{Wk+8}, s[56:59], s10 offen sc1
        buffer_load_dwordx2 v[{Wk+4}:{Wk+5}], v{Wk+8}, s[56:59], s11 offen sc1
        buffer_load_dwordx2 v[{Wk+6}:{Wk+7}], v{Wk+8}, s[56:59], s13 offen sc1
        s_waitcnt vmcnt(0)""")
        self.chk4(vCK, Wk, Wk + 9, first=True, n=8)
        a(f"""v_cmp_ne_u32 vcc, 0, v{vCK}
        s_cbranch_vccz {Lcd}
        s_sub_u32 s12, s12, 1
        s_cmp_gt_u32 s12, 0
        s_cbranch_scc1 {Lc}
        {Lcd}:
        v_mov_b32 v{Wk}, 0
        s_mov_b32 s9, {EP_OFF}
        s_mov_b64 exec, 1
        buffer_store_dword v{Wk+9}, v{Wk}, s[56:59], s9 offen sc1
        s_mov_b64 exec, -1
        L_noep:""")
        a("s_cmp_lg_u32 s3, 0\ns_cbranch_scc1 L_nostat")
        if self.nopoll:
            a("s_branch L_nostat")
        Ls, Lsd = self.lab("st"), self.lab("std")
        a(f"""s_lshl_b32 s9, s8, 8
        s_add_u32 s9, s9, {ST_OFF}
        v_lshlrev_b32 v{Wk+4}, 4, v{vT1}
        v_mov_b32 v{Wk+5}, s{sT}
        s_mov_b32 s12, {self.poll_max}
        {Ls}:
        buffer_load_dwordx4 v[{Wk}:{Wk+3}], v{Wk+4}, s[56:59], s9 offen sc1
        s_waitcnt vmcnt(0)""")
        self.chk4(vCK, Wk, vTG, first=True, n=2)
        a(f"""v_and_b32 v{vCK}, 0xff, v{vCK}
        v_bitop3_b32 v{vCK}, v{Wk+2}, v{Wk+5}, v{vCK} bitop3:0xbe
        v_bitop3_b32 v{vCK}, v{Wk+3}, v{Wk+5}, v{vCK} bitop3:0xbe
        v_cmp_ne_u32 vcc, 0, v{vCK}
        s_cbranch_vccz {Lsd}
        s_sleep {self.stsleep}
        s_sub_u32 s12, s12, 1
        s_cmp_gt_u32 s12, 0
        s_cbranch_scc1 {Ls}
        {Lsd}:
        v_mov_b32 v{Wk+2}, v{Wk}""")
        self.row_reduce("v_max_f32", Wk + 2)
        a(f"""v_sub_f32 v{Wk}, v{Wk}, v{Wk+2}
        v_mul_f32 v{Wk}, {LOG2E}, v{Wk}
        v_exp_f32 v{Wk}, v{Wk}
        s_nop 0
        v_mul_f32 v{Wk+1}, v{Wk+1}, v{Wk}""")
        self.row_reduce("v_add_f32", Wk + 1)
        a(f"""v_rcp_f32 v{Wk+2}, v{Wk+1}
        s_nop 0
        v_mul_f32 v{Wk+3}, v{Wk}, v{Wk+2}
        v_fma_f32 v{Wk}, -v{Wk+3}, v{Wk+1}, v{Wk}
        v_fmac_f32 v{Wk+3}, v{Wk}, v{Wk+2}
        s_lshl_b32 s9, s6, 2
        v_subrev_u32 v{Wk+4}, s9, v{vL}
        v_cmp_gt_u32 vcc, 4, v{Wk+4}
        v_lshlrev_b32 v{Wk+4}, 2, v{Wk+4}
        s_and_saveexec_b64 s[10:11], vcc
        ds_write_b32 v{Wk+4}, v{Wk+3} offset:{L_SCALE}
        s_mov_b64 exec, -1
        L_nostat:""")
        a(f"""s_lshl_b32 s67, s6, 5
        s_add_u32 s67, s67, s4
        s_mov_b32 s68, 0
        s_cmp_lg_u32 s3, 2
        s_cbranch_scc1 L_noown
        s_cmp_ge_u32 s67, 40
        s_cbranch_scc1 L_noown
        s_mov_b32 s68, 1""")
        self.srd(60, 28, 1280)
        W = Wk
        a(f"""v_lshlrev_b32 v{W+20}, 2, v{vL}
        s_mul_i32 s9, s5, 1280
        v_add_u32 v{W+21}, s9, v{W+20}""")
        for t in range(5):
            a(f"buffer_load_dword v{W+t}, v{W+20}, s[60:63], 0 offen offset:{256*t}")
            a(f"ds_read_b32 v{W+5+t}, v{W+21} offset:{L_XN + 256*t}")
        self.srd(60, 16, 2560)
        a(f"""v_and_b32 v{W+22}, 3, v{vL}
        v_lshl_add_u32 v{vOUTA}, v{W+22}, 2, v{vT2}
        v_lshlrev_b32 v{vOUTA}, 1, v{vOUTA}
        s_lshl_b32 s10, s67, 5
        s_add_u32 s10, s10, s9
        v_add_u32 v{vOUTA}, s10, v{vOUTA}
        buffer_load_ushort v{vXC}, v{vOUTA}, s[60:63], 0 offen
        ds_read_u16 v{W+23}, v{vOUTA} offset:{L_XN}
        s_waitcnt vmcnt(0) lgkmcnt(0)""")
        for t in range(5):
            c = "0" if t == 0 else f"v{W+24}"
            a(f"v_dot2_f32_bf16 v{W+24}, v{W+t}, v{W+5+t}, {c}")
        a(f"v_lshlrev_b32 v{vXC}, 16, v{vXC}\nv_lshlrev_b32 v{W+23}, 16, v{W+23}\ns_nop 1")
        self.row_reduce("v_add_f32", W + 24)
        self.swap_reduce("v_add_f32", W + 24, W + 25, 16)
        self.swap_reduce("v_add_f32", W + 24, W + 25, 32)
        self.rbf(W + 24)
        self.sigmoid_like(W + 24, W + 24)
        self.rbf(W + 24)
        Ly, Lyd = self.lab("y"), self.lab("yd")
        a(f"""v_lshrrev_b32 v{W+20}, 2, v{vL}
        v_mul_u32_u24 v{W+21}, 5120, v{W+20}
        v_lshl_add_u32 v{W+21}, v{W+22}, 4, v{W+21}
        v_mul_u32_u24 v{vPA}, 2560, v{W+20}
        v_lshl_add_u32 v{vPA}, v{W+22}, 4, v{vPA}
        s_mul_i32 s9, s5, 2560
        s_lshl_b32 s10, s67, 6
        s_add_u32 s9, s9, s10
        s_add_u32 s9, s9, {Y_OFF}
        s_add_u32 s10, s9, {16*5120}
        s_add_u32 s11, s9, {32*5120}
        s_mov_b32 s12, {self.poll_max}
        {Ly}:
        buffer_load_dwordx4 v[{W}:{W+3}], v{W+21}, s[56:59], s9 offen sc1
        buffer_load_dwordx4 v[{W+4}:{W+7}], v{W+21}, s[56:59], s10 offen sc1
        buffer_load_dwordx4 v[{W+8}:{W+11}], v{W+21}, s[56:59], s11 offen sc1
        s_waitcnt vmcnt(0)""")
        self.chk4(vCK, W, vTG, first=True, n=12)
        if self.nomoe:
            a(f"{Lyd}:")
        else:
            self.poll_tail(vCK, Ly, Lyd, 32)
        for r in range(4):
            a(f"v_add_f32 v{W+r}, v{W+r}, v{W+4+r}\nv_add_f32 v{W+r}, v{W+r}, v{W+8+r}")
        self.merge4(W)
        self.rbf(W)
        a(f"v_mul_f32 v{W}, v{W}, v{W+24}")
        self.rbf(W)
        a(f"v_add_f32 v{W}, v{W}, v{W+23}")
        self.rbf(W)
        self.sigmoid_like(W + 1, W)
        a(f"v_mul_f32 v{vG}, v{W}, v{W+1}")
        self.rbf(vG)
        a(f"""s_mul_i32 s70, s5, {128*2560}
        s_lshl_b32 s10, s67, 6
        s_add_u32 s70, s70, s10""")
        for t in range(1, 8):
            a(f"s_add_u32 s{70+t}, s70, {t*40960}")
        a("L_noown:")
        self.srd(60, 36, 2560)
        a(f"""v_and_b32 v{vAR}, 7, v{vL}
        v_mul_u32_u24 v{vAR}, {OS}, v{vAR}
        v_lshl_add_u32 v{vAR}, v{vT2}, 4, v{vAR}
        v_and_b32 v{vT3}, 1, v{vT2}
        v_lshlrev_b32 v{vST}, 5, v{vT1}
        v_lshl_add_u32 v{vST}, v{vT3}, 4, v{vST}
        v_lshlrev_b32 v{vT3}, 3, v{vT3}
        s_mul_i32 s9, s7, 2560
        s_lshl_b32 s10, s3, 9
        s_add_u32 s9, s9, s10
        s_waitcnt vmcnt(0) lgkmcnt(0)""")
        self.stamp(5, 60)
        a(f"s_setprio {self.hprio2}")
        a("s_barrier")
        self.stamp(6, 60)
        Aop = [16, 20, 28, REG(1), REG(1) + 4, REG(1) + 8]
        for k in range(3):
            a(f"ds_read_b128 v[{Aop[k]}:{Aop[k]+3}], v{vAR} offset:{L_O + 64*k}")
        a(f"ds_read_b64 v[{vSC}:{vSC+1}], v{vT3} offset:{L_SCALE}")
        waits = [3, 5, 4, 2, 1, 0]
        for k in range(6):
            a(f"s_waitcnt lgkmcnt({waits[k]})")
            for c in range(8):
                self.mfma(32 + 4 * c, Aop[k], REG(k + 1) + 4 * c, None if k == 0 else 32 + 4 * c)
            if k == 0:
                for kk in (3, 4, 5):
                    a(f"ds_read_b128 v[{Aop[kk]}:{Aop[kk]+3}], v{vAR} offset:{L_O + 64*kk}")
        a("s_nop 1")
        for c in range(8):
            D = 32 + 4 * c
            a(f"""v_add_f32 v{D}, v{D}, v{D+1}
            v_add_f32 v{D+2}, v{D+2}, v{D+3}
            v_mul_f32 v{D}, v{D}, v{vSC}
            v_fmac_f32 v{D}, v{D+2}, v{vSC+1}""")
        a("s_nop 1")
        for c in range(4):
            a(f"v_permlane16_swap_b32 v{32+4*c}, v{48+4*c}")
        a("s_nop 1")
        for c in range(4):
            a(f"v_add_f32 v{16+c}, v{32+4*c}, v{48+4*c}")
        for c in range(4):
            self.tag(16 + c, 16 + c, vTG)
        a(f"""s_mov_b32 exec_hi, 0
        buffer_store_dwordx4 v[16:19], v{vST}, s[56:59], s9 offen sc1
        s_mov_b32 exec_hi, -1""")
        self.stamp(7, 60)
        a("""s_cmp_eq_u32 s68, 0
        s_cbranch_scc1 L_end""")
        Lp, Lpd = self.lab("p"), self.lab("pd")
        Z = 64
        a(f"s_mov_b32 s12, {self.poll_max}\n{Lp}:")
        for t in range(8):
            a(f"buffer_load_dwordx4 v[{Z+4*t}:{Z+4*t+3}], v{vPA}, s[56:59], s{70+t} offen sc1")
        for t in range(8):
            a(f"s_waitcnt vmcnt({7-t})")
            self.chk4(vCK, Z + 4 * t, vTG, first=(t == 0))
            if t:
                for r in range(4):
                    a(f"v_add_f32 v{Z+r}, v{Z+r}, v{Z+4*t+r}")
        self.poll_tail(vCK, Lp, Lpd, 0)
        self.merge4(Z)
        self.rbf(Z)
        a(f"v_mul_f32 v{Z}, v{Z}, v{vG}")
        self.rbf(Z)
        a(f"""v_add_f32 v{Z}, v{Z}, v{vXC}
        v_cvt_pk_bf16_f32 v{Z}, v{Z}, v{Z}
        s_mov_b32 exec_lo, 0x000f000f
        s_mov_b32 exec_hi, 0x000f000f
        buffer_store_short v{Z}, v{vOUTA}, s[60:63], 0 offen""")
        self.stamp(8, 60)

    def gen_moe1(self, vL, vT1, vT2, vT3, vT4, vT5, vSEL, vA, vACC, vTG, TI):
        a = self.a
        vAD = 52
        vCA = 54
        a(f"""v_cmp_gt_u32 vcc, 8, v{vT1}
        v_mov_b32 v{vT3}, s32
        v_mov_b32 v{vT4}, s30
        v_cndmask_b32 v{vAD}, v{vT3}, v{vT4}, vcc
        v_mov_b32 v{vT3}, s33
        v_mov_b32 v{vT4}, s31
        v_cndmask_b32 v{vAD+1}, v{vT3}, v{vT4}, vcc
        v_mul_u32_u24 v{vT3}, {16*3072}, v{vT2}
        v_and_b32 v{vT4}, 7, v{vL}
        v_lshl_add_u32 v{vT3}, v{vT4}, 4, v{vT3}
        s_lshl_b32 s9, s80, 7
        s_mul_i32 s10, s81, {64*3072}
        s_add_u32 s9, s9, s10
        v_add_u32 v{vT4}, s9, v{vT3}
        v_mov_b32 v{vT5}, 0
        v_add_co_u32 v{vAD}, vcc, v{vAD}, v{vT4}
        s_nop 1
        v_addc_co_u32 v{vAD+1}, vcc, v{vAD+1}, v{vT5}, vcc
        v_lshrrev_b32 v{vT3}, 3, v{vT1}
        v_mul_u32_u24 v{vCA}, 1280, v{vT3}
        v_lshl_add_u32 v{vCA}, v{vT2}, 5, v{vCA}
        s_lshl_b32 s9, s81, 7
        v_add_u32 v{vCA}, s9, v{vCA}
        s_mov_b32 s10, 6144
        s_mov_b32 s11, 0
        ds_read_b128 v[8:11], v{vCA} offset:{L_XN}
        ds_read_b128 v[12:15], v{vCA} offset:{L_XN+16}""")
        for half in range(2):
            for t in range(8):
                a(f"global_load_dwordx4 v[{TI+4*t}:{TI+4*t+3}], v[{vAD}:{vAD+1}], off offset:{3072*(t&1)} {self.mf}")
                if t & 1:
                    a(f"v_lshl_add_u64 v[{vAD}:{vAD+1}], v[{vAD}:{vAD+1}], 0, s[10:11]")
            a("s_waitcnt lgkmcnt(0)")
            for t in range(8):
                Gd = half * 8 + t
                A = vA + 4 * (t & 1)
                self.buildA(A, 8 + Gd // 2, Gd & 1, vSEL)
                a(f"s_waitcnt vmcnt({7-t})\ns_nop 0")
                self.mfma(vACC, A, TI + 4 * t, None if Gd == 0 else vACC)
        a(f"""s_mul_i32 s9, s80, 10240
        s_lshl_b32 s10, s81, 10
        s_add_u32 s9, s9, s10
        s_add_u32 s9, s9, {G1_OFF}
        v_lshlrev_b32 v{vT3}, 4, v{vL}
        s_nop 7""")
        for r in range(4):
            self.tag(vACC + r, vACC + r, vTG, rn=True)
        a(f"buffer_store_dwordx4 v[{vACC}:{vACC+3}], v{vT3}, s[56:59], s9 offen sc1")

    def gen_moe2(self, vL, vT1, vT2, vT3, vT4, vT5, vSEL, vA, vACC, vTG, vCK, TI):
        a = self.a
        DT = TI + 64
        vD = 52
        a(f"""s_cmp_ge_u32 s81, 5
        s_cselect_b32 s83, 1, 0
        s_mul_i32 s84, s83, 5
        s_sub_u32 s84, s81, s84""")
        self.srd(60, 34, 1536 * 1280)
        a(f"""v_mul_u32_u24 v{vD}, {8*1280}, v{vT2}
        v_lshl_add_u32 v{vD}, v{vT1}, 4, v{vD}
        s_mul_i32 s9, s80, {64*1280}
        s_mul_i32 s10, s83, {32*1280}
        s_add_u32 s9, s9, s10
        s_lshl_b32 s10, s84, 8
        s_add_u32 s9, s9, s10
        s_add_u32 s10, s9, {4*1280}""")
        for Gd in range(8):
            a(f"buffer_load_dwordx4 v[{DT+4*Gd}:{DT+4*Gd+3}], v{vD}, s[60:63], s{9 + Gd//4} offen offset:{(Gd%4)*1280} {self.mf}")
        Lg, Lgd = self.lab("g"), self.lab("gd")
        a(f"""s_mul_i32 s9, s80, 10240
        s_add_u32 s9, s9, {G1_OFF}
        s_add_u32 s10, s9, 4096
        s_add_u32 s11, s9, 8192
        v_lshlrev_b32 v{vT3}, 4, v{vL}
        s_mov_b32 s12, {self.poll_max}
        {Lg}:""")
        for t in range(10):
            a(f"buffer_load_dwordx4 v[{TI+4*t}:{TI+4*t+3}], v{vT3}, s[56:59], s{9 + t//4} offen offset:{(t%4)*1024} sc1")
        a("s_waitcnt vmcnt(0)")
        self.chk4(vCK, TI, vTG, first=True, n=40)
        self.poll_tail(vCK, Lg, Lgd, 32)
        for t in range(1, 10):
            for r in range(4):
                a(f"v_add_f32 v{TI+r}, v{TI+r}, v{TI+4*t+r}")
        for r in range(4):
            self.rbf(TI + r)
        a("s_nop 1")
        for r in range(4):
            a(f"v_mov_b32_dpp v{TI+4+r}, v{TI+r} row_ror:8 row_mask:0xf bank_mask:0xf")
        for r in range(4):
            self.sigmoid_like(vT3, TI + r)
            a(f"v_mul_f32 v{TI+r}, v{TI+r}, v{vT3}")
            self.rbf(TI + r)
            a(f"v_mul_f32 v{TI+r}, v{TI+r}, v{TI+4+r}")
        a(f"""v_cvt_pk_bf16_f32 v{TI+4}, v{TI}, v{TI+1}
        v_cvt_pk_bf16_f32 v{TI+5}, v{TI+2}, v{TI+3}
        v_lshrrev_b32 v{vT3}, 1, v{vT2}
        v_lshlrev_b32 v{vT3}, 7, v{vT3}
        v_lshl_add_u32 v{vT3}, v{vT1}, 4, v{vT3}
        v_and_b32 v{vT4}, 1, v{vT2}
        v_lshl_add_u32 v{vT3}, v{vT4}, 3, v{vT3}
        s_mov_b32 exec_lo, 0x00ff00ff
        s_mov_b32 exec_hi, 0x00ff00ff
        ds_write_b64 v{vT3}, v[{TI+4}:{TI+5}] offset:{L_HB}
        s_mov_b64 exec, -1
        v_lshrrev_b32 v{vT3}, 3, v{vT1}
        v_lshlrev_b32 v{vT3}, 7, v{vT3}
        v_lshl_add_u32 v{vT3}, v{vT2}, 4, v{vT3}
        s_lshl_b32 s9, s83, 6
        v_add_u32 v{vT3}, s9, v{vT3}
        s_waitcnt lgkmcnt(0)
        ds_read_b128 v[8:11], v{vT3} offset:{L_HB}
        s_waitcnt lgkmcnt(0)""")
        for Gd in range(8):
            A = vA + 4 * (Gd & 1)
            self.buildA(A, 8 + Gd // 2, Gd & 1, vSEL)
            a("s_nop 1")
            self.mfma(vACC, A, DT + 4 * Gd, None if Gd == 0 else vACC)
        a(f"""v_lshrrev_b32 v{vT3}, 1, v{vT2}
        v_mul_u32_u24 v{vT3}, 2560, v{vT3}
        v_lshl_add_u32 v{vT3}, v{vT1}, 5, v{vT3}
        v_lshl_add_u32 v{vT3}, v{vT4}, 4, v{vT3}
        s_lshl_b32 s9, s80, 1
        s_add_u32 s9, s9, s83
        s_mul_i32 s9, s9, 5120
        s_lshl_b32 s10, s84, 9
        s_add_u32 s9, s9, s10
        s_add_u32 s9, s9, {Y_OFF}
        s_nop 3""")
        for r in range(4):
            self.tag(vACC + r, vACC + r, vTG, rn=True)
        a(f"buffer_store_dwordx4 v[{vACC}:{vACC+3}], v{vT3}, s[56:59], s9 offen sc1\ns_waitcnt vmcnt(0)")

    def text(self):
        hdr = open("recurrent_scan__mha_block_cached__moe_arch_mod__decode.s.ref").read().split("; Override launch")[0]
        self.gen()
        return hdr + f"""; @launch grid=(256,1,1) block=(512,1,1) lds={LDS_BYTES}
.amdgcn_target "amdgcn-amd-amdhsa--gfx950"
.text
.globl {KNAME}
.p2align 8
.type {KNAME},@function
{KNAME}:
""" + "\n".join(self.o) + f"""
.section .rodata,"a"
.p2align 6
.amdhsa_kernel {KNAME}
  .amdhsa_next_free_vgpr 256
  .amdhsa_next_free_sgpr 96
  .amdhsa_accum_offset 256
  .amdhsa_group_segment_fixed_size 0
  .amdhsa_kernarg_size 104
  .amdhsa_user_sgpr_count 2
  .amdhsa_user_sgpr_kernarg_segment_ptr 1
  .amdhsa_system_sgpr_workgroup_id_x 1
  .amdhsa_float_denorm_mode_32 3
.end_amdhsa_kernel
"""


if __name__ == "__main__":
    out = sys.argv[1]
    kw = {}
    for arg in sys.argv[2:]:
        k, v = arg.split("=", 1)
        try:
            v = int(v)
        except ValueError:
            pass
        kw[k] = v
    open(out, "w").write(G(**kw).text())
```

```python
import sys, struct

KNAME = "recurrent_scan__mha_block_cached__moe_arch_mod__decode_kernel"
TB = 201326592
CH = 786432
STEP = 12288

P_OFF = 0
ST_OFF = 256 * 2560
EP_OFF = ST_OFF + 64 * 256
Y_OFF = EP_OFF + 256
QX_OFF = Y_OFF + 48 * 5120
G1_OFF = QX_OFF + 32 * 8 * 2 * 768
WS_USED = G1_OFF + 240 * 1024
STAMP_OFF = 2 << 20
WS_SRD = 4 << 20
assert WS_USED <= STAMP_OFF

L_XN = 0
L_QB = 2560
L_SC = L_QB + 512
OS = 416
L_O = L_SC + 4 * 1152
L_SCALE = L_O + 8 * OS
L_FLAG = L_SCALE + 48
L_HB = L_SCALE + 64
L_WX = (L_HB + 256 + 1023) // 1024 * 1024
LDS_BYTES = L_WX + 4 * 12 * 1024

LOG2E = 0x3fb8aa3b
SCALE_F32 = 0x3d93cd3a
assert struct.unpack("<I", struct.pack("<f", 192 ** -0.5))[0] == SCALE_F32
def f32(x): return "0x%08x" % struct.unpack("<I", struct.pack("<f", x))[0]
NLOG2E = f32(-1.4426950408889634)

sWAVE, sH, sB, sSPLIT, sCHUNK, sBH = 3, 4, 5, 6, 7, 8
sT = 78
sMASK = 79
sWV = 69


class G:
    def __init__(self, R0=16, R1=8, W=4, W0=3, kvflags="nt", wflags="nt", woflags="pl", moeflags="nt", rot=1, stamps=0,
                 poll_max=1 << 18, hprio=3, hprio1=0, hprio2=3, wobatch=8, nowo=0, nomoe=0, noq=0, nob0=0, D=2, GI=4, early=0, nok=0, nopoll=0, hskip=0, stsleep=127, DV=0, earlyV=-1, D0=0, hsleep=0, diagx=0):
        self.diagx = diagx
        self.DV = DV or D
        self.earlyV = early if earlyV < 0 else earlyV
        self.D0 = D0 or D
        self.hsleep = hsleep
        self.nok, self.nopoll, self.hskip, self.stsleep = nok, nopoll, hskip, stsleep
        self.D, self.GI, self.early = D, GI, early
        self.nowo, self.nomoe, self.noq, self.nob0 = nowo, nomoe, noq, nob0
        self.hprio1, self.hprio2 = hprio1, hprio2
        self.o = []
        self.R0, self.R1, self.W, self.W0 = R0, R1, W, W0
        fl = lambda x: '' if x == 'pl' else x.replace('_', ' ')
        self.kvf, self.wf, self.mf = fl(kvflags), fl(wflags), fl(moeflags)
        self.wof = fl(woflags)
        self.rot = rot
        self.stamps = stamps
        self.poll_max = poll_max
        self.hprio = hprio
        self.wobatch = wobatch
        self.nlab = 0

    def a(self, s):
        for ln in s.split("\n"):
            ln = ln.strip()
            if ln:
                self.o.append(("" if ln.endswith(":") else "    ") + ln)

    def lab(self, p="L"):
        self.nlab += 1
        return f"{p}_{self.nlab}"

    def srd(self, q, lo, nbytes):
        self.a(f"s_mov_b32 s{q}, s{lo}\ns_mov_b32 s{q+1}, s{lo+1}\ns_mov_b32 s{q+2}, {nbytes}\ns_mov_b32 s{q+3}, 0x20000")

    def dpp(self, op, d, s0, s1, ctrl):
        self.a(f"{op}_dpp v{d}, v{s0}, v{s1} {ctrl} row_mask:0xf bank_mask:0xf")

    def row_reduce(self, op, v, steps=(1, 2, 4, 8)):
        for s in steps:
            self.a("s_nop 1")
            self.dpp(op, v, v, v, f"row_ror:{s}")

    def swap_reduce(self, op, v, t, which):
        self.a(f"v_mov_b32 v{t}, v{v}\ns_nop 1\nv_permlane{which}_swap_b32 v{v}, v{t}\ns_nop 1\n{op} v{v}, v{v}, v{t}")

    def stamp(self, idx, vt, st=90, src=None):
        if not self.stamps:
            return
        if src is None:
            self.a(f"s_memrealtime s[{st}:{st+1}]")
            src = st
        if self.stamps == 2:
            slot = (idx if idx < 15 else 0) + (1 if self.cls == "S" else 7)
            if self.cls == "H" and idx not in (1, 2, 4, 7, 8):
                return
            if self.cls == "H":
                slot = {1: 8, 2: 9, 4: 10, 7: 11, 8: 12}[idx]
            elif idx == 15:
                slot = 1
            else:
                slot = 2 + idx
            inv = f"s_mov_b32 s{st+2}, s{src}"
            Lsk = self.lab("sk")
            if not (self.cls == "H" and idx == 8):
                self.a(f"""s_waitcnt lgkmcnt(0)
                s_cmp_lg_u32 s2, 0
                s_cbranch_scc1 {Lsk}""")
            self.a(f"""s_waitcnt lgkmcnt(0)
            {inv}
            v_mov_b32 v{vt}, s{st+2}
            v_mov_b32 v{vt+2}, {slot*4}
            s_mov_b64 exec, 1
            global_atomic_umax v{vt+2}, v{vt}, s[38:39] sc1
            s_mov_b64 exec, -1
            {Lsk}:""")
            return
        self.a(f"""s_lshl_b32 s{st+2}, s2, 3
        s_add_u32 s{st+2}, s{st+2}, s{sWV}
        s_lshl_b32 s{st+2}, s{st+2}, 7
        s_add_u32 s{st+2}, s{st+2}, {STAMP_OFF + idx*8}
        s_waitcnt lgkmcnt(0)
        v_mov_b32 v{vt}, s{src}
        v_mov_b32 v{vt+1}, s{src+1}
        v_mov_b32 v{vt+2}, 0
        s_mov_b64 exec, 1
        buffer_store_dwordx2 v[{vt}:{vt+1}], v{vt+2}, s[56:59], s{st+2} offen
        s_mov_b64 exec, -1""")

    def selectors(self, vL, base, t0, t1, t2):
        a = self.a
        a(f"""v_and_b32 v{t0}, 1, v{vL}
        v_cmp_eq_u32 vcc, 1, v{t0}
        v_mov_b32 v{t0}, 0x0c0c0100
        v_mov_b32 v{t1}, 0x01000c0c
        v_cndmask_b32 v{t0}, v{t0}, v{t1}, vcc
        v_mov_b32 v{t1}, 0x0c0c0302
        v_mov_b32 v{t2}, 0x03020c0c
        v_cndmask_b32 v{t1}, v{t1}, v{t2}, vcc
        v_bfe_u32 v{t2}, v{vL}, 1, 2""")
        for j in range(4):
            a(f"""v_cmp_eq_u32 vcc, {j}, v{t2}
            v_mov_b32 v{base+j}, 0x0c0c0c0c
            v_mov_b32 v{base+4+j}, 0x0c0c0c0c
            v_cndmask_b32 v{base+j}, v{base+j}, v{t0}, vcc
            v_cndmask_b32 v{base+4+j}, v{base+4+j}, v{t1}, vcc""")

    def buildA(self, A, P, hi, sel):
        for j in range(4):
            self.a(f"v_perm_b32 v{A+j}, v{P}, v{P}, v{sel + (4 if hi else 0) + j}")

    def mfma(self, D, A, B, C):
        c = "0" if C is None else f"v[{C}:{C+3}]"
        self.a(f"v_mfma_f32_16x16x32_bf16 v[{D}:{D+3}], v[{A}:{A+3}], v[{B}:{B+3}], {c}")

    def rbf(self, v):
        self.a(f"v_cvt_pk_bf16_f32 v{v}, v{v}, v{v}\nv_lshlrev_b32 v{v}, 16, v{v}")

    def tag(self, d, s, vTG, rn=False):
        if rn:
            self.a(f"v_add_u32 v{d}, 0x80, v{s}")
            s = d
        self.a(f"v_and_or_b32 v{d}, v{s}, s{sMASK}, v{vTG}")

    def chk4(self, acc, x, vTG, first=False, n=4):
        for r in range(n):
            self.a(f"v_xor_b32 v{x+r}, v{x+r}, v{vTG}")
        for r in range(0, n, 2):
            if first and r == 0:
                self.a(f"v_or_b32 v{acc}, v{x}, v{x+1}")
            else:
                self.a(f"v_or3_b32 v{acc}, v{x+r}, v{x+r+1}, v{acc}")

    def poll_tail(self, acc, Lretry, Ldone, sleep):
        self.a(f"""v_and_b32 v{acc}, 0xff, v{acc}
        v_cmp_ne_u32 vcc, 0, v{acc}
        s_cbranch_vccz {Ldone}""")
        if sleep:
            self.a(f"s_sleep {sleep}")
        self.a(f"""s_sub_u32 s12, s12, 1
        s_cmp_gt_u32 s12, 0
        s_cbranch_scc1 {Lretry}
        {Ldone}:""")

    def merge4(self, X):
        a = self.a
        a(f"""s_nop 1
        v_permlane16_swap_b32 v{X}, v{X+1}
        v_permlane16_swap_b32 v{X+2}, v{X+3}
        s_nop 1
        v_add_f32 v{X}, v{X}, v{X+1}
        v_add_f32 v{X+2}, v{X+2}, v{X+3}
        s_nop 1
        v_permlane32_swap_b32 v{X}, v{X+2}
        s_nop 1
        v_add_f32 v{X}, v{X}, v{X+2}""")
        self.row_reduce("v_add_f32", X, steps=(4, 8))

    def sigmoid_like(self, d, x):
        self.a(f"""v_mul_f32 v{d}, {NLOG2E}, v{x}
        v_exp_f32 v{d}, v{d}
        s_nop 0
        v_add_f32 v{d}, 1.0, v{d}
        v_rcp_f32 v{d}, v{d}
        s_nop 0""")

    def rotcode(self):
        if self.rot < 100:
            return f"s_mul_i32 s9, s7, {self.rot}"
        if self.rot == 100:
            return "s_lshr_b32 s9, s2, 3\ns_lshl_b32 s11, s2, 5\ns_add_u32 s9, s9, s11"
        if self.rot == 101:
            return "s_lshl_b32 s9, s5, 4\ns_add_u32 s9, s9, s7"
        if self.rot == 102:
            return "s_lshr_b32 s9, s7, 6\ns_mul_i32 s9, s9, 17\ns_add_u32 s9, s9, s7"
        raise ValueError

    def epoch_load(self):
        self.a(f"s_load_dword s{sT}, s[40:41], {EP_OFF}")

    def epoch_use(self, vTG):
        self.a(f"""s_add_u32 s{sT}, s{sT}, 1
        s_mov_b32 s{sMASK}, 0xffffff00
        s_and_b32 s9, s{sT}, 0xff
        v_mov_b32 v{vTG}, s9""")

    def gen(self):
        a = self.a
        a(f"""s_cmp_ge_u32 s2, 256
        s_cbranch_scc1 L_end
        s_load_dwordx16 s[16:31], s[0:1], 0
        s_load_dwordx8 s[32:39], s[0:1], 64
        s_load_dwordx2 s[40:41], s[0:1], 96""")
        if self.stamps:
            a("s_memrealtime s[86:87]")
        a(f"""v_lshrrev_b32 v1, 6, v0
        v_and_b32 v0, 63, v0
        v_readfirstlane_b32 s3, v1
        s_and_b32 s9, s2, 7
        s_lshr_b32 s10, s2, 3
        s_lshl_b32 s4, s9, 2
        s_lshr_b32 s11, s10, 3
        s_add_u32 s4, s4, s11
        s_bfe_u32 s5, s10, 0x10002
        s_and_b32 s6, s10, 3
        s_lshl_b32 s8, s5, 5
        s_add_u32 s8, s8, s4
        s_lshl_b32 s7, s8, 2
        s_add_u32 s7, s7, s6
        s_mov_b32 s{sWV}, s3
        s_cmp_ge_u32 s3, 4
        s_cbranch_scc1 L_H""")
        self.gen_S()
        a("L_H:")
        self.gen_H()
        a("L_end:\ns_endpgm")

    def gen_S(self):
        self.cls = "S"
        a = self.a
        R0, D, GI = self.R0, self.D, self.GI
        RS = {2: 4, 3: 6}[D]
        R1 = 4
        DV = self.DV
        RSV = {2: 4, 3: 6}[DV]
        D0 = self.D0
        assert (64 - R0) % RS == 0
        NITK = (64 - R0) // RS
        W = max(RS, RSV)
        vL = 0
        vOFF, vSCW, vSCR, vT0, vT1, vT2, vT3, vOW = 1, 2, 3, 4, 5, 6, 7, 8
        vA0, vA1, vTG = 9, 10, 11
        vQ = 12
        vSEL = 24
        vACC = 32
        vA = 44
        vP = 52
        RING = 64
        assert RING + R0 * 12 <= 256
        sOFF, sBEG, sEND, sIT, sCNT = 42, 43, 64, 66, 65
        a(f"""v_lshrrev_b32 v{vT0}, 3, v{vL}
        v_and_b32 v{vT1}, 7, v{vL}
        v_mul_u32_u24 v{vOFF}, 384, v{vT0}
        v_lshl_add_u32 v{vOFF}, v{vT1}, 4, v{vOFF}
        s_mul_i32 s9, s3, 3072""")
        if GI == 4:
            stepb = 4 * STEP
            a(f"""s_mul_i32 s11, s6, {STEP}
            s_add_u32 s9, s9, s11
            s_mul_i32 s{sBEG}, s8, {4*CH}
            s_add_u32 s{sEND}, s{sBEG}, {4*CH}
            v_add_u32 v{vOFF}, s9, v{vOFF}
            s_mul_i32 s9, s8, {self.rot}""")
        else:
            stepb = STEP
            a(f"""v_add_u32 v{vOFF}, s9, v{vOFF}
            s_mul_i32 s{sBEG}, s7, {CH}
            s_add_u32 s{sEND}, s{sBEG}, {CH}
            {self.rotcode()}""")
        a(f"""s_and_b32 s9, s9, 63
        s_mul_i32 s9, s9, {stepb}
        s_add_u32 s{sOFF}, s{sBEG}, s9
        s_mov_b32 s{sCNT}, 0
        s_waitcnt lgkmcnt(0)""")
        self.srd(52, 18, TB)

        def load(slot, sw=None):
            for j in range(3):
                r = RING + (slot * 3 + j) * 4
                a(f"buffer_load_dwordx4 v[{r}:{r+3}], v{vOFF}, s[52:55], s{sOFF} offen offset:{128*j} {self.kvf}")
            a(f"""s_add_u32 s{sOFF}, s{sOFF}, {stepb}
            s_cmp_ge_u32 s{sOFF}, s{sEND}
            s_cselect_b32 s{sOFF}, s{sBEG}, s{sOFF}""")
            if sw == "kv":
                a(f"""s_cmp_eq_u32 s{sIT}, {NITK-1}
                s_cselect_b32 s52, s20, s52
                s_cselect_b32 s53, s21, s53""")
            elif sw is not None:
                a(f"""s_cmp_eq_u32 s{sIT}, {sw}
                s_cselect_b32 s54, 0, s54""")
        thr = 3 * (D - 1) + self.early
        for s in range(D0):
            load(s)
        self.epoch_load()
        self.srd(56, 40, WS_SRD)
        self.selectors(vL, vSEL, vT2, vT3, vOW)
        a(f"""s_mul_i32 s9, s3, 1152
        s_add_u32 s9, s9, {L_SC}
        v_mul_u32_u24 v{vSCW}, 144, v{vT0}
        v_add_u32 v{vSCW}, s9, v{vSCW}
        v_mov_b32 v{vSCR}, v{vSCW}""")
        a(f"""v_lshrrev_b32 v{vT2}, 5, v{vL}
        s_lshl_b32 s9, s3, 1
        v_add_u32 v{vT2}, s9, v{vT2}
        v_mul_u32_u24 v{vOW}, {OS}, v{vT2}
        v_lshl_add_u32 v{vOW}, v{vT1}, 4, v{vOW}
        v_bfe_u32 v{vT2}, v{vL}, 4, 1
        v_lshl_add_u32 v{vOW}, v{vT2}, 3, v{vOW}
        v_add_u32 v{vOW}, {L_O}, v{vOW}
        v_lshlrev_b32 v{vT2}, 4, v{vT1}""")
        for s in range(D0, R0):
            a(f"s_waitcnt vmcnt({3*(D0-1)})")
            load(s)
        a("s_waitcnt lgkmcnt(0)")
        self.epoch_use(vTG)
        self.stamp(15, vA, src=86)
        self.stamp(0, vA)
        a("s_barrier")
        self.stamp(1, vA)
        for j in range(3):
            a(f"ds_read_b128 v[{vQ+4*j}:{vQ+4*j+3}], v{vT2} offset:{L_QB + 128*j}")
        a(f"s_mov_b32 s{sIT}, 0\ns_mov_b32 s10, {SCALE_F32}\ns_waitcnt lgkmcnt(0)")

        def kpair(s, off):
            ra, rb = RING + s * 12, RING + (s + 1) * 12
            for i in range(12):
                c0 = "0" if i == 0 else f"v{vA0}"
                c1 = "0" if i == 0 else f"v{vA1}"
                a(f"v_dot2_f32_bf16 v{vA0}, v{ra+i}, v{vQ+i}, {c0}")
                a(f"v_dot2_f32_bf16 v{vA1}, v{rb+i}, v{vQ+i}, {c1}")
            a("s_nop 2")
            self.dpp("v_add_f32", vA0, vA0, vA0, "quad_perm:[1,0,3,2]")
            self.dpp("v_add_f32", vA1, vA1, vA1, "quad_perm:[1,0,3,2]")
            a("s_nop 0")
            self.dpp("v_add_f32", vA0, vA0, vA0, "quad_perm:[2,3,0,1]")
            self.dpp("v_add_f32", vA1, vA1, vA1, "quad_perm:[2,3,0,1]")
            a("s_nop 0")
            self.dpp("v_add_f32", vA0, vA0, vA0, "row_half_mirror")
            self.dpp("v_add_f32", vA1, vA1, vA1, "row_half_mirror")
            a(f"""v_cvt_pk_bf16_f32 v{vT2}, v{vA0}, v{vA1}
            v_lshlrev_b32 v{vA0}, 16, v{vT2}
            v_and_b32 v{vA1}, 0xffff0000, v{vT2}
            v_mul_f32 v{vA0}, s10, v{vA0}
            v_mul_f32 v{vA1}, s10, v{vA1}
            v_cvt_pk_bf16_f32 v{vT2}, v{vA0}, v{vA1}
            ds_write_b32 v{vSCW}, v{vT2} offset:{off}""")
        npairs = R0 // 2
        issue_after = {0: 0, 3: 1} if D == 2 else {0: 0, 2: 1, 4: 2}
        issued = 0
        for p in range(npairs):
            a(f"s_waitcnt vmcnt({3 * ((R0 - 2*p - 2) + issued)})")
            kpair(2 * p, p * 4)
            if p in issue_after:
                a(f"s_waitcnt vmcnt({thr})")
                load(issue_after[p])
                issued += 1
        a(f"v_add_u32 v{vSCW}, {2*R0}, v{vSCW}")
        a("L_kloop:")
        for s in range(RS):
            a(f"s_waitcnt vmcnt({thr})")
            load((s + D) % RS, "kv" if s == RS - D - 1 else None)
            if s & 1:
                if self.early:
                    a(f"s_waitcnt vmcnt({3*D})")
                if not self.nok:
                    kpair(s - 1, (s // 2) * 4)
        a(f"""v_add_u32 v{vSCW}, {2*RS}, v{vSCW}
        s_add_u32 s{sIT}, s{sIT}, 1
        s_cmp_lt_u32 s{sIT}, {NITK}
        s_cbranch_scc1 L_kloop""")
        for s in range(D, R1):
            load(s)
        self.stamp(2, vA)
        F = 32
        a(f"""v_lshl_add_u32 v{vT2}, v{vT1}, 4, v{vSCR}
        s_waitcnt lgkmcnt(0)
        ds_read_b128 v[40:43], v{vT2}
        s_waitcnt lgkmcnt(0)""")
        for i in range(4):
            a(f"v_lshlrev_b32 v{F+2*i}, 16, v{40+i}\nv_and_b32 v{F+2*i+1}, 0xffff0000, v{40+i}")
        a(f"""v_max3_f32 v{vA0}, v{F}, v{F+1}, v{F+2}
        v_max3_f32 v{vA0}, v{vA0}, v{F+3}, v{F+4}
        v_max3_f32 v{vA0}, v{vA0}, v{F+5}, v{F+6}
        v_max_f32 v{vA0}, v{vA0}, v{F+7}""")
        self.row_reduce("v_max_f32", vA0)
        self.swap_reduce("v_max_f32", vA0, vT3, 16)
        self.swap_reduce("v_max_f32", vA0, vT3, 32)
        for i in range(8):
            a(f"v_sub_f32 v{F+i}, v{F+i}, v{vA0}\nv_mul_f32 v{F+i}, {LOG2E}, v{F+i}")
        for i in range(8):
            a(f"v_exp_f32 v{F+i}, v{F+i}")
        a("s_nop 0")
        a(f"v_add_f32 v{vA1}, v{F}, v{F+1}")
        for i in range(2, 8):
            a(f"v_add_f32 v{vA1}, v{vA1}, v{F+i}")
        for i in range(4):
            a(f"v_cvt_pk_bf16_f32 v{40+i}, v{F+2*i}, v{F+2*i+1}")
        a(f"ds_write_b128 v{vT2}, v[40:43]")
        self.row_reduce("v_add_f32", vA1)
        self.swap_reduce("v_add_f32", vA1, vT3, 16)
        self.swap_reduce("v_add_f32", vA1, vT3, 32)
        a("s_waitcnt lgkmcnt(0)")
        def pread(n):
            if n == 2: a(f"ds_read_b64 v[{vP}:{vP+1}], v{vSCR}")
            elif n == 3: a(f"ds_read_b32 v{vP}, v{vSCR}\nds_read_b32 v{vP+1}, v{vSCR} offset:4\nds_read_b32 v{vP+2}, v{vSCR} offset:8")
            else: raise ValueError(n)
            a(f"v_add_u32 v{vSCR}, {4*n}, v{vSCR}")
        pread(R1 // 2)
        self.tag(44, vA0, vTG)
        self.tag(45, vA1, vTG)
        if self.diagx:
            a(f"s_getreg_b32 s9, hwreg(HW_REG_XCC_ID, 0, 4)\ns_lshl_b32 s9, s9, 8\nv_or_b32 v44, s9, v44")
        a(f"""v_mov_b32 v46, s{sT}
        v_mov_b32 v47, s{sT}
        s_lshl_b32 s9, s7, 6
        s_lshl_b32 s11, s3, 4
        s_add_u32 s9, s9, s11
        s_add_u32 s9, s9, {ST_OFF}
        v_mov_b32 v{vA0}, 0
        s_mov_b64 exec, 1
        buffer_store_dwordx4 v[44:47], v{vA0}, s[56:59], s9 offen sc1
        s_mov_b64 exec, -1""")
        for i in range(12):
            a(f"v_mov_b32 v{vACC+i}, 0")
        a(f"s_mov_b32 s{sIT}, 0\ns_waitcnt lgkmcnt(0)")
        self.stamp(3, 60)

        def vmf(g, slot):
            A = vA + 4 * ((g + 1) & 1)
            for j in range(3):
                self.mfma(vACC + 4 * j, A, RING + (slot * 3 + j) * 4, vACC + 4 * j)
        def vA_(g):
            self.buildA(vA + 4 * ((g + 1) & 1), vP + g // 2, g & 1, vSEL)
        thrV = 3 * (DV - 1) + self.earlyV
        NITV = (64 - R1) // RSV
        assert (64 - R1) % RSV == 0
        issued = 0
        for g in range(R1):
            vA_(g)
            if g == R1 - 1:
                pread(RSV // 2)
            if g >= R1 - DV:
                a(f"s_waitcnt vmcnt({thrV})")
                load((R1 + issued) % RSV)
                issued += 1
                if self.earlyV:
                    a(f"s_waitcnt vmcnt({3*DV})")
            else:
                a(f"s_waitcnt vmcnt({3*(R1 - g - 1)})\ns_nop 0")
            vmf(g, g)
        a("L_vloop:\ns_waitcnt lgkmcnt(0)")
        for s in range(RSV):
            slot = (R1 + s) % RSV
            vA_(s)
            if s == RSV - 1:
                pread(RSV // 2)
            a(f"s_waitcnt vmcnt({thrV})")
            load((slot + DV) % RSV, (NITV - 1) if s == RSV - DV - 1 else None)
            if self.earlyV:
                a(f"s_waitcnt vmcnt({3*DV})")
            vmf(s, slot)
        a(f"""s_add_u32 s{sIT}, s{sIT}, 1
        s_cmp_lt_u32 s{sIT}, {NITV}
        s_cbranch_scc1 L_vloop
        s_nop 3""")
        a("s_nop 3")
        for j in range(3):
            a(f"""v_cvt_pk_bf16_f32 v{vA+2*j}, v{vACC+4*j}, v{vACC+4*j+1}
            v_cvt_pk_bf16_f32 v{vA+2*j+1}, v{vACC+4*j+2}, v{vACC+4*j+3}""")
        a("s_mov_b32 exec_lo, 0x00ff00ff\ns_mov_b32 exec_hi, 0xff00ff00")
        for j in range(3):
            a(f"ds_write_b64 v{vOW}, v[{vA+2*j}:{vA+2*j+1}] offset:{128*j}")
        a("s_mov_b64 exec, -1")
        a(f"""v_and_b32 v{vT0}, 7, v{vL}
        v_mul_u32_u24 v{vT0}, {OS}, v{vT0}
        v_lshrrev_b32 v{vT1}, 4, v{vL}
        v_lshl_add_u32 v{vT0}, v{vT1}, 4, v{vT0}
        v_and_b32 v{vT2}, 1, v{vT1}
        v_and_b32 v{vT3}, 15, v{vL}
        v_lshl_add_u32 v{vT3}, v{vT3}, 1, v{vT2}
        v_lshlrev_b32 v{vT3}, 2, v{vT3}
        v_lshlrev_b32 v{vT2}, 3, v{vT2}
        s_mul_i32 s9, s3, 12288
        s_add_u32 s9, s9, {L_WX}
        v_lshlrev_b32 v{vT1}, 4, v{vL}
        v_add_u32 v{vT1}, s9, v{vT1}
        s_mul_i32 s9, s7, 2560
        s_lshl_b32 s11, s3, 7
        s_add_u32 s9, s9, s11
        s_add_u32 s9, s9, {P_OFF + 2048}
        s_waitcnt lgkmcnt(0)""")
        self.stamp(4, 12)
        a("s_barrier")
        AA = RING + 12 * W
        BB = AA + 24
        assert BB + 48 <= 256
        D0, D1, SCL = 32, 36, 40
        for k in range(6):
            a(f"ds_read_b128 v[{AA+4*k}:{AA+4*k+3}], v{vT0} offset:{L_O + 64*k}")
            a(f"ds_read_b128 v[{BB+8*k}:{BB+8*k+3}], v{vT1} offset:{2048*k}")
            a(f"ds_read_b128 v[{BB+8*k+4}:{BB+8*k+7}], v{vT1} offset:{2048*k+1024}")
            if k == 3:
                a("s_waitcnt lgkmcnt(6)")
        a(f"ds_read_b64 v[{SCL}:{SCL+1}], v{vT2} offset:{L_SCALE}")
        for k in range(6):
            a(f"s_waitcnt lgkmcnt({min(15, 3*(5-k)+1)})")
            self.mfma(D0, AA + 4 * k, BB + 8 * k, None if k == 0 else D0)
            self.mfma(D1, AA + 4 * k, BB + 8 * k + 4, None if k == 0 else D1)
        a("s_waitcnt lgkmcnt(0)\ns_nop 7")
        for D in (D0, D1):
            a(f"""v_add_f32 v{D}, v{D}, v{D+1}
            v_add_f32 v{D+2}, v{D+2}, v{D+3}
            v_mul_f32 v{D}, v{D}, v{SCL}
            v_fmac_f32 v{D}, v{D+2}, v{SCL+1}""")
        a(f"""s_nop 1
        v_permlane16_swap_b32 v{D0}, v{D1}
        s_nop 1
        v_add_f32 v{D0}, v{D0}, v{D1}""")
        self.tag(D0, D0, vTG)
        a(f"""s_mov_b32 exec_hi, 0
        buffer_store_dword v{D0}, v{vT3}, s[56:59], s9 offen sc1
        s_mov_b64 exec, -1""")
        self.stamp(5, 12)
        a("s_endpgm")

    def gen_H(self):
        self.cls = "H"
        a = self.a
        vL = 0
        vT0, vT1, vT2, vT3, vT4, vT5, vW = 1, 2, 3, 4, 5, 6, 7
        vX = 8
        vSEL = 18
        vTG = 26
        vCK = 27
        vF = 28
        vA, vACC = 28, 36
        vE = 52
        TI = 64
        if self.hprio:
            a(f"s_setprio {self.hprio}")
        a("s_sub_u32 s3, s3, 4")
        a(f"""s_and_b32 s14, s10, 7
        v_lshrrev_b32 v{vT0}, 5, v{vL}
        v_mul_u32_u24 v{vT0}, 1280, v{vT0}
        v_and_b32 v{vT1}, 31, v{vL}
        v_lshl_add_u32 v{vT0}, v{vT1}, 3, v{vT0}
        v_lshrrev_b32 v{vT1}, 3, v{vL}
        v_mul_u32_u24 v{vW}, {10*12288}, v{vT1}
        v_and_b32 v{vT2}, 7, v{vL}
        v_lshl_add_u32 v{vW}, v{vT2}, 4, v{vW}
        s_mul_i32 s9, s4, 384
        s_mul_i32 s11, s14, {80*12288}
        s_add_u32 s9, s9, s11
        s_lshl_b32 s11, s3, 7
        s_add_u32 s9, s9, s11
        v_add_u32 v{vW}, s9, v{vW}
        s_waitcnt lgkmcnt(0)""")
        self.srd(60, 16, 2560)
        self.srd(44, 22, 640 * 12288)
        for t in range(5):
            a(f"buffer_load_dwordx2 v[{vX+2*t}:{vX+2*t+1}], v{vT0}, s[60:63], 0 offen offset:{256*t}")
        a("s_cmp_eq_u32 s3, 3\ns_cselect_b32 s46, 0, s46")
        for G in range(10):
            a(f"s_mov_b32 s9, {G*12288}")
            a(f"buffer_load_dwordx4 v[{TI+4*G}:{TI+4*G+3}], v{vW}, s[44:47], s9 offen {self.wf}")
        self.epoch_load()
        self.srd(56, 40, WS_SRD)
        self.selectors(vL, vSEL, vT3, vT4, vT5)
        a(f"s_mov_b32 s9, 0x3f803f80\ns_waitcnt vmcnt(10)")
        self.stamp(11, 60)
        for i in range(10):
            c = "0" if i == 0 else f"v{vT3}"
            a(f"v_dot2_f32_bf16 v{vT3}, v{vX+i}, s9, {c}")
        for i in range(2):
            a(f"v_lshlrev_b32 v{vF+2*i}, 16, v{vX+i}\nv_and_b32 v{vF+2*i+1}, 0xffff0000, v{vX+i}")
        k = 2
        for st in (1, 2, 4, 8):
            self.dpp("v_add_f32", vT3, vT3, vT3, f"row_ror:{st}")
            a(f"v_lshlrev_b32 v{vF+2*k}, 16, v{vX+k}\nv_and_b32 v{vF+2*k+1}, 0xffff0000, v{vX+k}")
            k += 1
        a(f"v_mov_b32 v{vT4}, v{vT3}")
        a(f"v_lshlrev_b32 v{vF+2*k}, 16, v{vX+k}\nv_and_b32 v{vF+2*k+1}, 0xffff0000, v{vX+k}")
        k += 1
        a(f"v_permlane16_swap_b32 v{vT3}, v{vT4}")
        while k < 10:
            a(f"v_lshlrev_b32 v{vF+2*k}, 16, v{vX+k}\nv_and_b32 v{vF+2*k+1}, 0xffff0000, v{vX+k}")
            k += 1
        a(f"v_add_f32 v{vT3}, v{vT3}, v{vT4}")
        def div640(v, t):
            a(f"""v_mul_f32 v{t}, {f32(1/640)}, v{v}
            v_fmac_f32 v{v}, {f32(-640.0)}, v{t}
            v_fmac_f32 v{t}, {f32(1/640)}, v{v}""")
        M2 = vE
        D2 = vE + 2
        Q2 = vE + 4
        div640(vT3, M2)
        a(f"v_mov_b32 v{M2+1}, v{M2}")
        for i in range(10):
            a(f"v_pk_add_f32 v[{D2}:{D2+1}], v[{vF+2*i}:{vF+2*i+1}], v[{M2}:{M2+1}] neg_lo:[0,1] neg_hi:[0,1]")
            if i == 0:
                a(f"v_pk_mul_f32 v[{Q2}:{Q2+1}], v[{D2}:{D2+1}], v[{D2}:{D2+1}]")
            else:
                a(f"v_pk_fma_f32 v[{Q2}:{Q2+1}], v[{D2}:{D2+1}], v[{D2}:{D2+1}], v[{Q2}:{Q2+1}]")
        a(f"v_add_f32 v{vT4}, v{Q2}, v{Q2+1}")
        self.rbf(M2)
        a(f"v_mov_b32 v{M2+1}, v{M2}")
        def xc(i):
            a(f"""v_pk_add_f32 v[{vF+2*i}:{vF+2*i+1}], v[{vF+2*i}:{vF+2*i+1}], v[{M2}:{M2+1}] neg_lo:[0,1] neg_hi:[0,1]
            v_cvt_pk_bf16_f32 v{vF+2*i+1}, v{vF+2*i}, v{vF+2*i+1}
            v_lshlrev_b32 v{vF+2*i}, 16, v{vF+2*i+1}
            v_and_b32 v{vF+2*i+1}, 0xffff0000, v{vF+2*i+1}""")
        k = 0
        for st in (1, 2, 4, 8):
            self.dpp("v_add_f32", vT4, vT4, vT4, f"row_ror:{st}")
            xc(k); k += 1
        a(f"v_mov_b32 v{vT5}, v{vT4}")
        xc(k); k += 1
        a(f"v_permlane16_swap_b32 v{vT4}, v{vT5}")
        xc(k); k += 1
        a(f"v_add_f32 v{vT4}, v{vT4}, v{vT5}")
        div640(vT4, vT5)
        self.rbf(vT5)
        a(f"v_add_f32 v{vT5}, {f32(1e-5)}, v{vT5}")
        self.rbf(vT5)
        a(f"v_sqrt_f32 v{vT5}, v{vT5}")
        xc(k); k += 1
        self.rbf(vT5)
        a(f"v_rcp_f32 v{D2}, v{vT5}")
        xc(k); k += 1
        a(f"v_mov_b32 v{D2+1}, v{D2}\nv_mov_b32 v{Q2}, v{vT5}\nv_mov_b32 v{Q2+1}, v{vT5}")
        while k < 10:
            xc(k); k += 1
        R2 = vE + 6
        for i in range(10):
            f = vF + 2 * i
            a(f"""v_pk_mul_f32 v[{R2}:{R2+1}], v[{f}:{f+1}], v[{D2}:{D2+1}]
            v_pk_fma_f32 v[{f}:{f+1}], v[{R2}:{R2+1}], v[{Q2}:{Q2+1}], v[{f}:{f+1}] neg_lo:[1,0,0] neg_hi:[1,0,0]
            v_pk_fma_f32 v[{R2}:{R2+1}], v[{f}:{f+1}], v[{D2}:{D2+1}], v[{R2}:{R2+1}]
            v_cvt_pk_bf16_f32 v{vX+i}, v{R2}, v{R2+1}""")
            if i & 1:
                t = i // 2
                a(f"ds_write_b64 v{vT0}, v[{vX+2*t}:{vX+2*t+1}] offset:{L_XN + 256*t}")
        a("s_waitcnt lgkmcnt(0)")
        self.epoch_use(vTG)
        self.stamp(15, 60, src=86)
        self.stamp(1, 60)
        a("s_cmp_eq_u32 s3, 3\ns_cbranch_scc1 L_qcons")
        a(f"""v_mul_u32_u24 v{vT3}, 20, v{vT1}
        s_mul_i32 s9, s14, 160
        v_add_u32 v{vT3}, s9, v{vT3}""")
        for bb in range(2):
            for t in range(5):
                a(f"ds_read_b32 v{vX+5*bb+t}, v{vT3} offset:{L_XN + 1280*bb + 4*t}")
        a(f"""v_lshrrev_b32 v{vT4}, 5, v{vL}
        v_mul_u32_u24 v{vT4}, 768, v{vT4}
        v_lshl_add_u32 v{vT4}, v{vT2}, 5, v{vT4}
        v_bfe_u32 v{vT5}, v{vL}, 4, 1
        v_lshl_add_u32 v{vT4}, v{vT5}, 4, v{vT4}
        s_lshl_b32 s9, s4, 3
        s_add_u32 s9, s9, s14
        s_mul_i32 s9, s9, 1536
        s_lshl_b32 s11, s3, 8
        s_add_u32 s9, s9, s11
        s_add_u32 s9, s9, {QX_OFF}
        s_waitcnt lgkmcnt(0)""")
        for G in range(10):
            self.buildA(vA, vX + G // 2, G & 1, vSEL)
            self.buildA(vA + 4, vX + 5 + G // 2, G & 1, vSEL)
            a(f"s_waitcnt vmcnt({9-G})\ns_nop 0")
            self.mfma(vACC, vA, TI + 4 * G, None if G == 0 else vACC)
            self.mfma(vACC + 4, vA + 4, TI + 4 * G, None if G == 0 else vACC + 4)
        a("s_nop 7")
        for r in range(4):
            a(f"v_permlane32_swap_b32 v{vACC+r}, v{vACC+4+r}")
        a("s_nop 1")
        for r in range(4):
            self.dpp("v_add_f32", vACC + r, vACC + 4 + r, vACC + r, "row_ror:8")
        for r in range(4):
            self.tag(vACC + r, vACC + r, vTG, rn=True)
        a(f"""s_mov_b32 exec_lo, 0x00ff00ff
        s_mov_b32 exec_hi, 0x00ff00ff
        buffer_store_dwordx4 v[{vACC}:{vACC+3}], v{vT4}, s[56:59], s9 offen sc1
        s_mov_b64 exec, -1
        s_branch L_qdone
        L_qcons:""")
        Lq, Lqd = self.lab("q"), self.lab("qd")
        a(f"""v_lshlrev_b32 v{vT3}, 4, v{vL}
        v_lshlrev_b32 v{vT4}, 3, v{vL}
        s_mul_i32 s9, s4, {8*1536}
        s_mul_i32 s11, s5, 768
        s_add_u32 s9, s9, s11
        s_add_u32 s70, s9, {QX_OFF}
        s_add_u32 s71, s70, 3072
        s_add_u32 s72, s70, 6144
        s_add_u32 s73, s70, 9216
        s_mov_b32 s12, {self.poll_max}
        s_mov_b32 exec_hi, 0xffff
        {Lq}:""")
        for k in range(8):
            a(f"buffer_load_dwordx4 v[{TI+4*k}:{TI+4*k+3}], v{vT3}, s[56:59], s{70+k//2} offen offset:{1536*(k&1)} sc1")
        for k in range(8):
            a(f"s_waitcnt vmcnt({7-k})")
            self.chk4(vCK, TI + 4 * k, vTG, first=(k == 0))
            if k:
                for r in range(4):
                    a(f"v_add_f32 v{TI+r}, v{TI+r}, v{TI+4*k+r}")
        self.poll_tail(vCK, Lq, Lqd, 0)
        a(f"""v_cvt_pk_bf16_f32 v{TI}, v{TI}, v{TI+1}
        v_cvt_pk_bf16_f32 v{TI+1}, v{TI+2}, v{TI+3}
        ds_write_b64 v{vT4}, v[{TI}:{TI+1}] offset:{L_QB}
        s_mov_b64 exec, -1
        s_waitcnt lgkmcnt(0)
        L_qdone:""")
        self.stamp(2, 60)
        a(f"s_setprio {self.hprio1}")
        a("s_barrier")
        a(f"v_and_b32 v{vT1}, 15, v{vL}\nv_lshrrev_b32 v{vT2}, 4, v{vL}")
        if self.hskip:
            a("s_mov_b32 s68, 0\ns_branch L_noown")
        a(f"""s_mul_hi_u32 s81, s2, {(2**32 + 23)//24}
        s_mul_i32 s80, s81, 24
        s_sub_u32 s80, s2, s80
        s_mov_b32 s82, 0
        s_cmp_ge_u32 s2, {0 if self.nomoe else 240}
        s_cbranch_scc1 L_nomoe1
        s_cmp_lg_u32 s3, 1
        s_cbranch_scc1 L_nomoe1
        s_mov_b32 s82, 1""")
        self.gen_moe1(vL, vT1, vT2, vT3, vT4, vT5, vSEL, vA, vACC, vTG, TI)
        a("L_nomoe1:")
        self.srd(44, 24, 0 if self.nowo else 6144 * 1280)
        a(f"""v_mul_u32_u24 v{vW}, {8*1280}, v{vT2}
        s_mul_i32 s9, s4, {192*1280}
        v_add_u32 v{vW}, s9, v{vW}
        v_lshl_add_u32 v{vT3}, v{vT1}, 2, v{vW}
        s_lshl_b32 s9, s3, 6
        s_add_u32 s9, s9, 1024
        v_add_u32 v{vT3}, s9, v{vT3}
        v_lshl_add_u32 v{vW}, v{vT1}, 4, v{vW}
        s_lshl_b32 s9, s3, 8
        v_add_u32 v{vW}, s9, v{vW}
        s_mov_b32 s14, 0x05040100
        s_mov_b32 s15, 0x07060302
        s_mul_i32 s9, s3, 12288
        s_add_u32 s9, s9, {L_WX}
        v_lshlrev_b32 v{vT4}, 4, v{vL}
        v_add_u32 v{vT4}, s9, v{vT4}""")
        for K0 in range(0, 6, 2):
            for K in (K0, K0 + 1):
                for e in range(8):
                    if e % 4 == 0:
                        a(f"s_mov_b32 s9, {(32*K + e)*1280}")
                    a(f"buffer_load_dword v{TI+8*K+e}, v{vT3}, s[44:47], s9 offen offset:{(e%4)*1280} {self.wof}")
            for K in (K0, K0 + 1):
                a(f"s_waitcnt vmcnt({8*(K0+1-K)})")
                d = TI + 48 + 8 * K
                for t in range(4):
                    a(f"v_perm_b32 v{d+t}, v{TI+8*K+2*t+1}, v{TI+8*K+2*t}, s14")
                    a(f"v_perm_b32 v{d+4+t}, v{TI+8*K+2*t+1}, v{TI+8*K+2*t}, s15")
                a(f"ds_write_b128 v{vT4}, v[{d}:{d+3}] offset:{2048*K}")
                a(f"ds_write_b128 v{vT4}, v[{d+4}:{d+7}] offset:{2048*K+1024}")
        a("s_waitcnt lgkmcnt(0)")
        self.stamp(3, 60)
        a("s_cmp_eq_u32 s82, 0\ns_cbranch_scc1 L_nomoe2")
        self.gen_moe2(vL, vT1, vT2, vT3, vT4, vT5, vSEL, vA, vACC, vTG, vCK, TI)
        self.stamp(9, 60)
        a("L_nomoe2:")
        def REG(k): return 32 + 32 * k
        for K in range(6):
            for e in range(8):
                if e % 4 == 0:
                    a(f"s_mov_b32 s9, {(32*K + e)*1280}")
                r = REG(0) + 4 * e
                a(f"buffer_load_dwordx4 v[{r}:{r+3}], v{vW}, s[44:47], s9 offen offset:{(e%4)*1280} {self.wof}")
                if self.wobatch == 4 and e == 3:
                    a("s_waitcnt vmcnt(0)")
            s, d = REG(0), REG(K + 1)
            for t in range(4):
                a(f"s_waitcnt vmcnt({6-2*t})")
                for dd in range(4):
                    a(f"v_perm_b32 v{d+(2*dd)*4+t}, v{s+(2*t+1)*4+dd}, v{s+(2*t)*4+dd}, s14")
                    a(f"v_perm_b32 v{d+(2*dd+1)*4+t}, v{s+(2*t+1)*4+dd}, v{s+(2*t)*4+dd}, s15")
        vG, vXC, vOUTA, vPA, vSC = 8, 9, 10, 11, 12
        vAR, vST = 14, 15
        Wk = 32
        self.stamp(4, 60)
        a(f"""s_cmp_lg_u32 s3, 3
        s_cbranch_scc1 L_noep
        s_cmp_lg_u32 s2, 0
        s_cbranch_scc1 L_noep""")
        Lc, Lcd = self.lab("c0"), self.lab("c0d")
        a(f"""s_mov_b32 s12, {self.poll_max}
        v_lshlrev_b32 v{Wk+8}, 6, v{vL}
        v_mov_b32 v{Wk+9}, s{sT}
        s_mov_b32 s9, {ST_OFF + 8}
        s_mov_b32 s10, {ST_OFF + 8 + 4096}
        s_mov_b32 s11, {ST_OFF + 8 + 8192}
        s_mov_b32 s13, {ST_OFF + 8 + 12288}
        {Lc}:
        s_sleep 127
        buffer_load_dwordx2 v[{Wk}:{Wk+1}], v{Wk+8}, s[56:59], s9 offen sc1
        buffer_load_dwordx2 v[{Wk+2}:{Wk+3}], v{Wk+8}, s[56:59], s10 offen sc1
        buffer_load_dwordx2 v[{Wk+4}:{Wk+5}], v{Wk+8}, s[56:59], s11 offen sc1
        buffer_load_dwordx2 v[{Wk+6}:{Wk+7}], v{Wk+8}, s[56:59], s13 offen sc1
        s_waitcnt vmcnt(0)""")
        self.chk4(vCK, Wk, Wk + 9, first=True, n=8)
        a(f"""v_cmp_ne_u32 vcc, 0, v{vCK}
        s_cbranch_vccz {Lcd}
        s_sub_u32 s12, s12, 1
        s_cmp_gt_u32 s12, 0
        s_cbranch_scc1 {Lc}
        {Lcd}:
        v_mov_b32 v{Wk}, 0
        s_mov_b32 s9, {EP_OFF}
        s_mov_b64 exec, 1
        buffer_store_dword v{Wk+9}, v{Wk}, s[56:59], s9 offen sc1
        s_mov_b64 exec, -1
        L_noep:""")
        a("s_cmp_lg_u32 s3, 0\ns_cbranch_scc1 L_nostat")
        if self.nopoll:
            a("s_branch L_nostat")
        Ls, Lsd = self.lab("st"), self.lab("std")
        a(f"""s_lshl_b32 s9, s8, 8
        s_add_u32 s9, s9, {ST_OFF}
        v_lshlrev_b32 v{Wk+4}, 4, v{vT1}
        v_mov_b32 v{Wk+5}, s{sT}
        s_mov_b32 s12, {self.poll_max}
        {Ls}:
        buffer_load_dwordx4 v[{Wk}:{Wk+3}], v{Wk+4}, s[56:59], s9 offen sc1
        s_waitcnt vmcnt(0)""")
        self.chk4(vCK, Wk, vTG, first=True, n=2)
        a(f"""v_and_b32 v{vCK}, 0xff, v{vCK}
        v_bitop3_b32 v{vCK}, v{Wk+2}, v{Wk+5}, v{vCK} bitop3:0xbe
        v_bitop3_b32 v{vCK}, v{Wk+3}, v{Wk+5}, v{vCK} bitop3:0xbe
        v_cmp_ne_u32 vcc, 0, v{vCK}
        s_cbranch_vccz {Lsd}
        s_sleep {self.stsleep}
        s_sub_u32 s12, s12, 1
        s_cmp_gt_u32 s12, 0
        s_cbranch_scc1 {Ls}
        {Lsd}:""")
        if self.diagx:
            a(f"""v_bfe_u32 v{Wk+2}, v{Wk}, 8, 4
            v_and_b32 v{Wk}, 0xffff0000, v{Wk}
            s_getreg_b32 s9, hwreg(HW_REG_XCC_ID, 0, 4)
            v_cmp_ne_u32 vcc, s9, v{Wk+2}
            s_cbranch_vccz L_dx
            s_mov_b32 s12, 40
            L_dx1:
            s_sleep 127
            s_sub_u32 s12, s12, 1
            s_cmp_gt_u32 s12, 0
            s_cbranch_scc1 L_dx1
            L_dx:""")
        a(f"v_mov_b32 v{Wk+2}, v{Wk}")
        self.row_reduce("v_max_f32", Wk + 2)
        a(f"""v_sub_f32 v{Wk}, v{Wk}, v{Wk+2}
        v_mul_f32 v{Wk}, {LOG2E}, v{Wk}
        v_exp_f32 v{Wk}, v{Wk}
        s_nop 0
        v_mul_f32 v{Wk+1}, v{Wk+1}, v{Wk}""")
        self.row_reduce("v_add_f32", Wk + 1)
        a(f"""v_rcp_f32 v{Wk+2}, v{Wk+1}
        s_nop 0
        v_mul_f32 v{Wk+3}, v{Wk}, v{Wk+2}
        v_fma_f32 v{Wk}, -v{Wk+3}, v{Wk+1}, v{Wk}
        v_fmac_f32 v{Wk+3}, v{Wk}, v{Wk+2}
        s_lshl_b32 s9, s6, 2
        v_subrev_u32 v{Wk+4}, s9, v{vL}
        v_cmp_gt_u32 vcc, 4, v{Wk+4}
        v_lshlrev_b32 v{Wk+4}, 2, v{Wk+4}
        s_and_saveexec_b64 s[10:11], vcc
        ds_write_b32 v{Wk+4}, v{Wk+3} offset:{L_SCALE}
        s_mov_b64 exec, -1
        L_nostat:""")
        a(f"""s_lshl_b32 s67, s6, 5
        s_add_u32 s67, s67, s4
        s_mov_b32 s68, 0
        s_cmp_lg_u32 s3, 2
        s_cbranch_scc1 L_noown
        s_cmp_ge_u32 s67, 40
        s_cbranch_scc1 L_noown
        s_mov_b32 s68, 1""")
        self.srd(60, 28, 1280)
        W = Wk
        a(f"""v_lshlrev_b32 v{W+20}, 2, v{vL}
        s_mul_i32 s9, s5, 1280
        v_add_u32 v{W+21}, s9, v{W+20}""")
        for t in range(5):
            a(f"buffer_load_dword v{W+t}, v{W+20}, s[60:63], 0 offen offset:{256*t}")
            a(f"ds_read_b32 v{W+5+t}, v{W+21} offset:{L_XN + 256*t}")
        self.srd(60, 16, 2560)
        a(f"""v_and_b32 v{W+22}, 3, v{vL}
        v_lshl_add_u32 v{vOUTA}, v{W+22}, 2, v{vT2}
        v_lshlrev_b32 v{vOUTA}, 1, v{vOUTA}
        s_lshl_b32 s10, s67, 5
        s_add_u32 s10, s10, s9
        v_add_u32 v{vOUTA}, s10, v{vOUTA}
        buffer_load_ushort v{vXC}, v{vOUTA}, s[60:63], 0 offen
        ds_read_u16 v{W+23}, v{vOUTA} offset:{L_XN}
        s_waitcnt vmcnt(0) lgkmcnt(0)""")
        for t in range(5):
            c = "0" if t == 0 else f"v{W+24}"
            a(f"v_dot2_f32_bf16 v{W+24}, v{W+t}, v{W+5+t}, {c}")
        a(f"v_lshlrev_b32 v{vXC}, 16, v{vXC}\nv_lshlrev_b32 v{W+23}, 16, v{W+23}\ns_nop 1")
        self.row_reduce("v_add_f32", W + 24)
        self.swap_reduce("v_add_f32", W + 24, W + 25, 16)
        self.swap_reduce("v_add_f32", W + 24, W + 25, 32)
        self.rbf(W + 24)
        self.sigmoid_like(W + 24, W + 24)
        self.rbf(W + 24)
        Ly, Lyd = self.lab("y"), self.lab("yd")
        a(f"""v_lshrrev_b32 v{W+20}, 2, v{vL}
        v_mul_u32_u24 v{W+21}, 5120, v{W+20}
        v_lshl_add_u32 v{W+21}, v{W+22}, 4, v{W+21}
        v_mul_u32_u24 v{vPA}, 2560, v{W+20}
        v_lshl_add_u32 v{vPA}, v{W+22}, 4, v{vPA}
        s_mul_i32 s9, s5, 2560
        s_lshl_b32 s10, s67, 6
        s_add_u32 s9, s9, s10
        s_add_u32 s9, s9, {Y_OFF}
        s_add_u32 s10, s9, {16*5120}
        s_add_u32 s11, s9, {32*5120}
        s_mov_b32 s12, {self.poll_max}
        {Ly}:
        buffer_load_dwordx4 v[{W}:{W+3}], v{W+21}, s[56:59], s9 offen sc1
        buffer_load_dwordx4 v[{W+4}:{W+7}], v{W+21}, s[56:59], s10 offen sc1
        buffer_load_dwordx4 v[{W+8}:{W+11}], v{W+21}, s[56:59], s11 offen sc1
        s_waitcnt vmcnt(0)""")
        self.chk4(vCK, W, vTG, first=True, n=12)
        if self.nomoe:
            a(f"{Lyd}:")
        else:
            self.poll_tail(vCK, Ly, Lyd, 32)
        for r in range(4):
            a(f"v_add_f32 v{W+r}, v{W+r}, v{W+4+r}\nv_add_f32 v{W+r}, v{W+r}, v{W+8+r}")
        self.merge4(W)
        self.rbf(W)
        a(f"v_mul_f32 v{W}, v{W}, v{W+24}")
        self.rbf(W)
        a(f"v_add_f32 v{W}, v{W}, v{W+23}")
        self.rbf(W)
        self.sigmoid_like(W + 1, W)
        a(f"v_mul_f32 v{vG}, v{W}, v{W+1}")
        self.rbf(vG)
        a(f"""s_mul_i32 s70, s5, {128*2560}
        s_lshl_b32 s10, s67, 6
        s_add_u32 s70, s70, s10""")
        for t in range(1, 8):
            a(f"s_add_u32 s{70+t}, s70, {t*40960}")
        a("L_noown:")
        self.srd(60, 36, 2560)
        a(f"""v_and_b32 v{vAR}, 7, v{vL}
        v_mul_u32_u24 v{vAR}, {OS}, v{vAR}
        v_lshl_add_u32 v{vAR}, v{vT2}, 4, v{vAR}
        v_and_b32 v{vT3}, 1, v{vT2}
        v_lshlrev_b32 v{vST}, 5, v{vT1}
        v_lshl_add_u32 v{vST}, v{vT3}, 4, v{vST}
        v_lshlrev_b32 v{vT3}, 3, v{vT3}
        s_mul_i32 s9, s7, 2560
        s_lshl_b32 s10, s3, 9
        s_add_u32 s9, s9, s10
        s_waitcnt vmcnt(0) lgkmcnt(0)""")
        self.stamp(5, 60)
        a(f"s_setprio {self.hprio2}")
        a("s_barrier")
        self.stamp(6, 60)
        Aop = [16, 20, 28, REG(1), REG(1) + 4, REG(1) + 8]
        for k in range(3):
            a(f"ds_read_b128 v[{Aop[k]}:{Aop[k]+3}], v{vAR} offset:{L_O + 64*k}")
        a(f"ds_read_b64 v[{vSC}:{vSC+1}], v{vT3} offset:{L_SCALE}")
        waits = [3, 5, 4, 2, 1, 0]
        for k in range(6):
            a(f"s_waitcnt lgkmcnt({waits[k]})")
            for c in range(8):
                self.mfma(32 + 4 * c, Aop[k], REG(k + 1) + 4 * c, None if k == 0 else 32 + 4 * c)
            if k == 0:
                for kk in (3, 4, 5):
                    a(f"ds_read_b128 v[{Aop[kk]}:{Aop[kk]+3}], v{vAR} offset:{L_O + 64*kk}")
        a("s_nop 1")
        for c in range(8):
            D = 32 + 4 * c
            a(f"""v_add_f32 v{D}, v{D}, v{D+1}
            v_add_f32 v{D+2}, v{D+2}, v{D+3}
            v_mul_f32 v{D}, v{D}, v{vSC}
            v_fmac_f32 v{D}, v{D+2}, v{vSC+1}""")
        a("s_nop 1")
        for c in range(4):
            a(f"v_permlane16_swap_b32 v{32+4*c}, v{48+4*c}")
        a("s_nop 1")
        for c in range(4):
            a(f"v_add_f32 v{16+c}, v{32+4*c}, v{48+4*c}")
        for c in range(4):
            self.tag(16 + c, 16 + c, vTG)
        a(f"""s_mov_b32 exec_hi, 0
        buffer_store_dwordx4 v[16:19], v{vST}, s[56:59], s9 offen sc1
        s_mov_b32 exec_hi, -1""")
        self.stamp(7, 60)
        a("""s_cmp_eq_u32 s68, 0
        s_cbranch_scc1 L_end""")
        Lp, Lpd = self.lab("p"), self.lab("pd")
        Z = 64
        a(f"s_mov_b32 s12, {self.poll_max}\n{Lp}:")
        for t in range(8):
            a(f"buffer_load_dwordx4 v[{Z+4*t}:{Z+4*t+3}], v{vPA}, s[56:59], s{70+t} offen sc1")
        for t in range(8):
            a(f"s_waitcnt vmcnt({7-t})")
            self.chk4(vCK, Z + 4 * t, vTG, first=(t == 0))
            if t:
                for r in range(4):
                    a(f"v_add_f32 v{Z+r}, v{Z+r}, v{Z+4*t+r}")
        self.poll_tail(vCK, Lp, Lpd, 0)
        self.merge4(Z)
        self.rbf(Z)
        a(f"v_mul_f32 v{Z}, v{Z}, v{vG}")
        self.rbf(Z)
        a(f"""v_add_f32 v{Z}, v{Z}, v{vXC}
        v_cvt_pk_bf16_f32 v{Z}, v{Z}, v{Z}
        s_mov_b32 exec_lo, 0x000f000f
        s_mov_b32 exec_hi, 0x000f000f
        buffer_store_short v{Z}, v{vOUTA}, s[60:63], 0 offen""")
        self.stamp(8, 60)

    def gen_moe1(self, vL, vT1, vT2, vT3, vT4, vT5, vSEL, vA, vACC, vTG, TI):
        a = self.a
        vAD = 52
        vCA = 54
        a(f"""v_cmp_gt_u32 vcc, 8, v{vT1}
        v_mov_b32 v{vT3}, s32
        v_mov_b32 v{vT4}, s30
        v_cndmask_b32 v{vAD}, v{vT3}, v{vT4}, vcc
        v_mov_b32 v{vT3}, s33
        v_mov_b32 v{vT4}, s31
        v_cndmask_b32 v{vAD+1}, v{vT3}, v{vT4}, vcc
        v_mul_u32_u24 v{vT3}, {16*3072}, v{vT2}
        v_and_b32 v{vT4}, 7, v{vL}
        v_lshl_add_u32 v{vT3}, v{vT4}, 4, v{vT3}
        s_lshl_b32 s9, s80, 7
        s_mul_i32 s10, s81, {64*3072}
        s_add_u32 s9, s9, s10
        v_add_u32 v{vT4}, s9, v{vT3}
        v_mov_b32 v{vT5}, 0
        v_add_co_u32 v{vAD}, vcc, v{vAD}, v{vT4}
        s_nop 1
        v_addc_co_u32 v{vAD+1}, vcc, v{vAD+1}, v{vT5}, vcc
        v_lshrrev_b32 v{vT3}, 3, v{vT1}
        v_mul_u32_u24 v{vCA}, 1280, v{vT3}
        v_lshl_add_u32 v{vCA}, v{vT2}, 5, v{vCA}
        s_lshl_b32 s9, s81, 7
        v_add_u32 v{vCA}, s9, v{vCA}
        s_mov_b32 s10, 6144
        s_mov_b32 s11, 0
        ds_read_b128 v[8:11], v{vCA} offset:{L_XN}
        ds_read_b128 v[12:15], v{vCA} offset:{L_XN+16}""")
        for half in range(2):
            for t in range(8):
                a(f"global_load_dwordx4 v[{TI+4*t}:{TI+4*t+3}], v[{vAD}:{vAD+1}], off offset:{3072*(t&1)} {self.mf}")
                if t & 1:
                    a(f"v_lshl_add_u64 v[{vAD}:{vAD+1}], v[{vAD}:{vAD+1}], 0, s[10:11]")
            a("s_waitcnt lgkmcnt(0)")
            for t in range(8):
                Gd = half * 8 + t
                A = vA + 4 * (t & 1)
                self.buildA(A, 8 + Gd // 2, Gd & 1, vSEL)
                a(f"s_waitcnt vmcnt({7-t})\ns_nop 0")
                self.mfma(vACC, A, TI + 4 * t, None if Gd == 0 else vACC)
        a(f"""s_mul_i32 s9, s80, 10240
        s_lshl_b32 s10, s81, 10
        s_add_u32 s9, s9, s10
        s_add_u32 s9, s9, {G1_OFF}
        v_lshlrev_b32 v{vT3}, 4, v{vL}
        s_nop 7""")
        for r in range(4):
            self.tag(vACC + r, vACC + r, vTG, rn=True)
        a(f"buffer_store_dwordx4 v[{vACC}:{vACC+3}], v{vT3}, s[56:59], s9 offen sc1")

    def gen_moe2(self, vL, vT1, vT2, vT3, vT4, vT5, vSEL, vA, vACC, vTG, vCK, TI):
        a = self.a
        DT = TI + 64
        vD = 52
        a(f"""s_cmp_ge_u32 s81, 5
        s_cselect_b32 s83, 1, 0
        s_mul_i32 s84, s83, 5
        s_sub_u32 s84, s81, s84""")
        self.srd(60, 34, 1536 * 1280)
        a(f"""v_mul_u32_u24 v{vD}, {8*1280}, v{vT2}
        v_lshl_add_u32 v{vD}, v{vT1}, 4, v{vD}
        s_mul_i32 s9, s80, {64*1280}
        s_mul_i32 s10, s83, {32*1280}
        s_add_u32 s9, s9, s10
        s_lshl_b32 s10, s84, 8
        s_add_u32 s9, s9, s10
        s_add_u32 s10, s9, {4*1280}""")
        for Gd in range(8):
            a(f"buffer_load_dwordx4 v[{DT+4*Gd}:{DT+4*Gd+3}], v{vD}, s[60:63], s{9 + Gd//4} offen offset:{(Gd%4)*1280} {self.mf}")
        Lg, Lgd = self.lab("g"), self.lab("gd")
        a(f"""s_mul_i32 s9, s80, 10240
        s_add_u32 s9, s9, {G1_OFF}
        s_add_u32 s10, s9, 4096
        s_add_u32 s11, s9, 8192
        v_lshlrev_b32 v{vT3}, 4, v{vL}
        s_mov_b32 s12, {self.poll_max}
        {Lg}:""")
        for t in range(10):
            a(f"buffer_load_dwordx4 v[{TI+4*t}:{TI+4*t+3}], v{vT3}, s[56:59], s{9 + t//4} offen offset:{(t%4)*1024} sc1")
        a("s_waitcnt vmcnt(0)")
        self.chk4(vCK, TI, vTG, first=True, n=40)
        self.poll_tail(vCK, Lg, Lgd, 32)
        for t in range(1, 10):
            for r in range(4):
                a(f"v_add_f32 v{TI+r}, v{TI+r}, v{TI+4*t+r}")
        for r in range(4):
            self.rbf(TI + r)
        a("s_nop 1")
        for r in range(4):
            a(f"v_mov_b32_dpp v{TI+4+r}, v{TI+r} row_ror:8 row_mask:0xf bank_mask:0xf")
        for r in range(4):
            self.sigmoid_like(vT3, TI + r)
            a(f"v_mul_f32 v{TI+r}, v{TI+r}, v{vT3}")
            self.rbf(TI + r)
            a(f"v_mul_f32 v{TI+r}, v{TI+r}, v{TI+4+r}")
        a(f"""v_cvt_pk_bf16_f32 v{TI+4}, v{TI}, v{TI+1}
        v_cvt_pk_bf16_f32 v{TI+5}, v{TI+2}, v{TI+3}
        v_lshrrev_b32 v{vT3}, 1, v{vT2}
        v_lshlrev_b32 v{vT3}, 7, v{vT3}
        v_lshl_add_u32 v{vT3}, v{vT1}, 4, v{vT3}
        v_and_b32 v{vT4}, 1, v{vT2}
        v_lshl_add_u32 v{vT3}, v{vT4}, 3, v{vT3}
        s_mov_b32 exec_lo, 0x00ff00ff
        s_mov_b32 exec_hi, 0x00ff00ff
        ds_write_b64 v{vT3}, v[{TI+4}:{TI+5}] offset:{L_HB}
        s_mov_b64 exec, -1
        v_lshrrev_b32 v{vT3}, 3, v{vT1}
        v_lshlrev_b32 v{vT3}, 7, v{vT3}
        v_lshl_add_u32 v{vT3}, v{vT2}, 4, v{vT3}
        s_lshl_b32 s9, s83, 6
        v_add_u32 v{vT3}, s9, v{vT3}
        s_waitcnt lgkmcnt(0)
        ds_read_b128 v[8:11], v{vT3} offset:{L_HB}
        s_waitcnt lgkmcnt(0)""")
        for Gd in range(8):
            A = vA + 4 * (Gd & 1)
            self.buildA(A, 8 + Gd // 2, Gd & 1, vSEL)
            a("s_nop 1")
            self.mfma(vACC, A, DT + 4 * Gd, None if Gd == 0 else vACC)
        a(f"""v_lshrrev_b32 v{vT3}, 1, v{vT2}
        v_mul_u32_u24 v{vT3}, 2560, v{vT3}
        v_lshl_add_u32 v{vT3}, v{vT1}, 5, v{vT3}
        v_lshl_add_u32 v{vT3}, v{vT4}, 4, v{vT3}
        s_lshl_b32 s9, s80, 1
        s_add_u32 s9, s9, s83
        s_mul_i32 s9, s9, 5120
        s_lshl_b32 s10, s84, 9
        s_add_u32 s9, s9, s10
        s_add_u32 s9, s9, {Y_OFF}
        s_nop 3""")
        for r in range(4):
            self.tag(vACC + r, vACC + r, vTG, rn=True)
        a(f"buffer_store_dwordx4 v[{vACC}:{vACC+3}], v{vT3}, s[56:59], s9 offen sc1\ns_waitcnt vmcnt(0)")

    def text(self):
        hdr = open("recurrent_scan__mha_block_cached__moe_arch_mod__decode.s.ref").read().split("; Override launch")[0]
        self.gen()
        return hdr + f"""; @launch grid=(256,1,1) block=(512,1,1) lds={LDS_BYTES}
.amdgcn_target "amdgcn-amd-amdhsa--gfx950"
.text
.globl {KNAME}
.p2align 8
.type {KNAME},@function
{KNAME}:
""" + "\n".join(self.o) + f"""
.section .rodata,"a"
.p2align 6
.amdhsa_kernel {KNAME}
  .amdhsa_next_free_vgpr 256
  .amdhsa_next_free_sgpr 96
  .amdhsa_accum_offset 256
  .amdhsa_group_segment_fixed_size 0
  .amdhsa_kernarg_size 104
  .amdhsa_user_sgpr_count 2
  .amdhsa_user_sgpr_kernarg_segment_ptr 1
  .amdhsa_system_sgpr_workgroup_id_x 1
  .amdhsa_float_denorm_mode_32 3
.end_amdhsa_kernel
"""


if __name__ == "__main__":
    out = sys.argv[1]
    kw = {}
    for arg in sys.argv[2:]:
        k, v = arg.split("=", 1)
        try:
            v = int(v)
        except ValueError:
            pass
        kw[k] = v
    open(out, "w").write(G(**kw).text())
```

```python
import sys, struct

KNAME = "recurrent_scan__mha_block_cached__moe_arch_mod__decode_kernel"
TB = 201326592
CH = 786432
STEP = 12288

P_OFF = 0
ST_OFF = 256 * 2560
EP_OFF = ST_OFF + 64 * 256
Y_OFF = EP_OFF + 256
QX_OFF = Y_OFF + 48 * 5120
G1_OFF = QX_OFF + 32 * 8 * 2 * 768
WS_USED = G1_OFF + 240 * 1024
STAMP_OFF = 2 << 20
WS_SRD = 4 << 20
assert WS_USED <= STAMP_OFF

L_XN = 0
L_QB = 2560
L_SC = L_QB + 512
OS = 416
L_O = L_SC + 4 * 1152
L_SCALE = L_O + 8 * OS
L_FLAG = L_SCALE + 48
L_HB = L_SCALE + 64
L_WX = (L_HB + 256 + 1023) // 1024 * 1024
LDS_BYTES = L_WX + 4 * 12 * 1024

LOG2E = 0x3fb8aa3b
SCALE_F32 = 0x3d93cd3a
assert struct.unpack("<I", struct.pack("<f", 192 ** -0.5))[0] == SCALE_F32
def f32(x): return "0x%08x" % struct.unpack("<I", struct.pack("<f", x))[0]
NLOG2E = f32(-1.4426950408889634)

sWAVE, sH, sB, sSPLIT, sCHUNK, sBH = 3, 4, 5, 6, 7, 8
sT = 78
sMASK = 79
sWV = 69


class G:
    def __init__(self, R0=16, R1=8, W=4, W0=3, kvflags="nt", wflags="nt", woflags="pl", moeflags="nt", rot=1, stamps=0,
                 poll_max=1 << 18, hprio=3, hprio1=0, hprio2=3, wobatch=8, nowo=0, nomoe=0, noq=0, nob0=0, D=2, GI=4, early=0, nok=0, nopoll=0, hskip=0, stsleep=127, DV=0, earlyV=-1, D0=0, hsleep=0, diagx=0, padto=0):
        self.padto = padto
        self.diagx = diagx
        self.DV = DV or D
        self.earlyV = early if earlyV < 0 else earlyV
        self.D0 = D0 or D
        self.hsleep = hsleep
        self.nok, self.nopoll, self.hskip, self.stsleep = nok, nopoll, hskip, stsleep
        self.D, self.GI, self.early = D, GI, early
        self.nowo, self.nomoe, self.noq, self.nob0 = nowo, nomoe, noq, nob0
        self.hprio1, self.hprio2 = hprio1, hprio2
        self.o = []
        self.R0, self.R1, self.W, self.W0 = R0, R1, W, W0
        fl = lambda x: '' if x == 'pl' else x.replace('_', ' ')
        self.kvf, self.wf, self.mf = fl(kvflags), fl(wflags), fl(moeflags)
        self.wof = fl(woflags)
        self.rot = rot
        self.stamps = stamps
        self.poll_max = poll_max
        self.hprio = hprio
        self.wobatch = wobatch
        self.nlab = 0

    def a(self, s):
        for ln in s.split("\n"):
            ln = ln.strip()
            if ln:
                self.o.append(("" if ln.endswith(":") else "    ") + ln)

    def lab(self, p="L"):
        self.nlab += 1
        return f"{p}_{self.nlab}"

    def srd(self, q, lo, nbytes):
        self.a(f"s_mov_b32 s{q}, s{lo}\ns_mov_b32 s{q+1}, s{lo+1}\ns_mov_b32 s{q+2}, {nbytes}\ns_mov_b32 s{q+3}, 0x20000")

    def dpp(self, op, d, s0, s1, ctrl):
        self.a(f"{op}_dpp v{d}, v{s0}, v{s1} {ctrl} row_mask:0xf bank_mask:0xf")

    def row_reduce(self, op, v, steps=(1, 2, 4, 8)):
        for s in steps:
            self.a("s_nop 1")
            self.dpp(op, v, v, v, f"row_ror:{s}")

    def swap_reduce(self, op, v, t, which):
        self.a(f"v_mov_b32 v{t}, v{v}\ns_nop 1\nv_permlane{which}_swap_b32 v{v}, v{t}\ns_nop 1\n{op} v{v}, v{v}, v{t}")

    def stamp(self, idx, vt, st=90, src=None):
        if not self.stamps:
            return
        if src is None:
            self.a(f"s_memrealtime s[{st}:{st+1}]")
            src = st
        if self.stamps == 2:
            slot = (idx if idx < 15 else 0) + (1 if self.cls == "S" else 7)
            if self.cls == "H" and idx not in (1, 2, 4, 7, 8):
                return
            if self.cls == "H":
                slot = {1: 8, 2: 9, 4: 10, 7: 11, 8: 12}[idx]
            elif idx == 15:
                slot = 1
            else:
                slot = 2 + idx
            inv = f"s_mov_b32 s{st+2}, s{src}"
            Lsk = self.lab("sk")
            if not (self.cls == "H" and idx == 8):
                self.a(f"""s_waitcnt lgkmcnt(0)
                s_cmp_lg_u32 s2, 0
                s_cbranch_scc1 {Lsk}""")
            self.a(f"""s_waitcnt lgkmcnt(0)
            {inv}
            v_mov_b32 v{vt}, s{st+2}
            v_mov_b32 v{vt+2}, {slot*4}
            s_mov_b64 exec, 1
            global_atomic_umax v{vt+2}, v{vt}, s[38:39] sc1
            s_mov_b64 exec, -1
            {Lsk}:""")
            return
        self.a(f"""s_lshl_b32 s{st+2}, s2, 3
        s_add_u32 s{st+2}, s{st+2}, s{sWV}
        s_lshl_b32 s{st+2}, s{st+2}, 7
        s_add_u32 s{st+2}, s{st+2}, {STAMP_OFF + idx*8}
        s_waitcnt lgkmcnt(0)
        v_mov_b32 v{vt}, s{src}
        v_mov_b32 v{vt+1}, s{src+1}
        v_mov_b32 v{vt+2}, 0
        s_mov_b64 exec, 1
        buffer_store_dwordx2 v[{vt}:{vt+1}], v{vt+2}, s[56:59], s{st+2} offen
        s_mov_b64 exec, -1""")

    def selectors(self, vL, base, t0, t1, t2):
        a = self.a
        a(f"""v_and_b32 v{t0}, 1, v{vL}
        v_cmp_eq_u32 vcc, 1, v{t0}
        v_mov_b32 v{t0}, 0x0c0c0100
        v_mov_b32 v{t1}, 0x01000c0c
        v_cndmask_b32 v{t0}, v{t0}, v{t1}, vcc
        v_mov_b32 v{t1}, 0x0c0c0302
        v_mov_b32 v{t2}, 0x03020c0c
        v_cndmask_b32 v{t1}, v{t1}, v{t2}, vcc
        v_bfe_u32 v{t2}, v{vL}, 1, 2""")
        for j in range(4):
            a(f"""v_cmp_eq_u32 vcc, {j}, v{t2}
            v_mov_b32 v{base+j}, 0x0c0c0c0c
            v_mov_b32 v{base+4+j}, 0x0c0c0c0c
            v_cndmask_b32 v{base+j}, v{base+j}, v{t0}, vcc
            v_cndmask_b32 v{base+4+j}, v{base+4+j}, v{t1}, vcc""")

    def buildA(self, A, P, hi, sel):
        for j in range(4):
            self.a(f"v_perm_b32 v{A+j}, v{P}, v{P}, v{sel + (4 if hi else 0) + j}")

    def mfma(self, D, A, B, C):
        c = "0" if C is None else f"v[{C}:{C+3}]"
        self.a(f"v_mfma_f32_16x16x32_bf16 v[{D}:{D+3}], v[{A}:{A+3}], v[{B}:{B+3}], {c}")

    def rbf(self, v):
        self.a(f"v_cvt_pk_bf16_f32 v{v}, v{v}, v{v}\nv_lshlrev_b32 v{v}, 16, v{v}")

    def tag(self, d, s, vTG, rn=False):
        if rn:
            self.a(f"v_add_u32 v{d}, 0x80, v{s}")
            s = d
        self.a(f"v_and_or_b32 v{d}, v{s}, s{sMASK}, v{vTG}")

    def chk4(self, acc, x, vTG, first=False, n=4):
        for r in range(n):
            self.a(f"v_xor_b32 v{x+r}, v{x+r}, v{vTG}")
        for r in range(0, n, 2):
            if first and r == 0:
                self.a(f"v_or_b32 v{acc}, v{x}, v{x+1}")
            else:
                self.a(f"v_or3_b32 v{acc}, v{x+r}, v{x+r+1}, v{acc}")

    def poll_tail(self, acc, Lretry, Ldone, sleep):
        self.a(f"""v_and_b32 v{acc}, 0xff, v{acc}
        v_cmp_ne_u32 vcc, 0, v{acc}
        s_cbranch_vccz {Ldone}""")
        if sleep:
            self.a(f"s_sleep {sleep}")
        self.a(f"""s_sub_u32 s12, s12, 1
        s_cmp_gt_u32 s12, 0
        s_cbranch_scc1 {Lretry}
        {Ldone}:""")

    def merge4(self, X):
        a = self.a
        a(f"""s_nop 1
        v_permlane16_swap_b32 v{X}, v{X+1}
        v_permlane16_swap_b32 v{X+2}, v{X+3}
        s_nop 1
        v_add_f32 v{X}, v{X}, v{X+1}
        v_add_f32 v{X+2}, v{X+2}, v{X+3}
        s_nop 1
        v_permlane32_swap_b32 v{X}, v{X+2}
        s_nop 1
        v_add_f32 v{X}, v{X}, v{X+2}""")
        self.row_reduce("v_add_f32", X, steps=(4, 8))

    def sigmoid_like(self, d, x):
        self.a(f"""v_mul_f32 v{d}, {NLOG2E}, v{x}
        v_exp_f32 v{d}, v{d}
        s_nop 0
        v_add_f32 v{d}, 1.0, v{d}
        v_rcp_f32 v{d}, v{d}
        s_nop 0""")

    def rotcode(self):
        if self.rot < 100:
            return f"s_mul_i32 s9, s7, {self.rot}"
        if self.rot == 100:
            return "s_lshr_b32 s9, s2, 3\ns_lshl_b32 s11, s2, 5\ns_add_u32 s9, s9, s11"
        if self.rot == 101:
            return "s_lshl_b32 s9, s5, 4\ns_add_u32 s9, s9, s7"
        if self.rot == 102:
            return "s_lshr_b32 s9, s7, 6\ns_mul_i32 s9, s9, 17\ns_add_u32 s9, s9, s7"
        raise ValueError

    def epoch_load(self):
        self.a(f"s_load_dword s{sT}, s[40:41], {EP_OFF}")

    def epoch_use(self, vTG):
        self.a(f"""s_add_u32 s{sT}, s{sT}, 1
        s_mov_b32 s{sMASK}, 0xffffff00
        s_and_b32 s9, s{sT}, 0xff
        v_mov_b32 v{vTG}, s9""")

    def gen(self):
        a = self.a
        a(f"""s_cmp_ge_u32 s2, 256
        s_cbranch_scc1 L_end
        s_load_dwordx16 s[16:31], s[0:1], 0
        s_load_dwordx8 s[32:39], s[0:1], 64
        s_load_dwordx2 s[40:41], s[0:1], 96""")
        if self.stamps or self.padto:
            a("s_memrealtime s[86:87]")
        a(f"""v_lshrrev_b32 v1, 6, v0
        v_and_b32 v0, 63, v0
        v_readfirstlane_b32 s3, v1
        s_and_b32 s9, s2, 7
        s_lshr_b32 s10, s2, 3
        s_lshl_b32 s4, s9, 2
        s_lshr_b32 s11, s10, 3
        s_add_u32 s4, s4, s11
        s_bfe_u32 s5, s10, 0x10002
        s_and_b32 s6, s10, 3
        s_lshl_b32 s8, s5, 5
        s_add_u32 s8, s8, s4
        s_lshl_b32 s7, s8, 2
        s_add_u32 s7, s7, s6
        s_mov_b32 s{sWV}, s3
        s_cmp_ge_u32 s3, 4
        s_cbranch_scc1 L_H""")
        self.gen_S()
        a("L_H:")
        self.gen_H()
        a("L_end:\ns_endpgm")

    def gen_S(self):
        self.cls = "S"
        a = self.a
        R0, D, GI = self.R0, self.D, self.GI
        RS = {2: 4, 3: 6}[D]
        R1 = 4
        DV = self.DV
        RSV = {2: 4, 3: 6}[DV]
        D0 = self.D0
        assert (64 - R0) % RS == 0
        NITK = (64 - R0) // RS
        W = max(RS, RSV)
        vL = 0
        vOFF, vSCW, vSCR, vT0, vT1, vT2, vT3, vOW = 1, 2, 3, 4, 5, 6, 7, 8
        vA0, vA1, vTG = 9, 10, 11
        vQ = 12
        vSEL = 24
        vACC = 32
        vA = 44
        vP = 52
        RING = 64
        assert RING + R0 * 12 <= 256
        sOFF, sBEG, sEND, sIT, sCNT = 42, 43, 64, 66, 65
        a(f"""v_lshrrev_b32 v{vT0}, 3, v{vL}
        v_and_b32 v{vT1}, 7, v{vL}
        v_mul_u32_u24 v{vOFF}, 384, v{vT0}
        v_lshl_add_u32 v{vOFF}, v{vT1}, 4, v{vOFF}
        s_mul_i32 s9, s3, 3072""")
        if GI == 4:
            stepb = 4 * STEP
            a(f"""s_mul_i32 s11, s6, {STEP}
            s_add_u32 s9, s9, s11
            s_mul_i32 s{sBEG}, s8, {4*CH}
            s_add_u32 s{sEND}, s{sBEG}, {4*CH}
            v_add_u32 v{vOFF}, s9, v{vOFF}
            s_mul_i32 s9, s8, {self.rot}""")
        else:
            stepb = STEP
            a(f"""v_add_u32 v{vOFF}, s9, v{vOFF}
            s_mul_i32 s{sBEG}, s7, {CH}
            s_add_u32 s{sEND}, s{sBEG}, {CH}
            {self.rotcode()}""")
        a(f"""s_and_b32 s9, s9, 63
        s_mul_i32 s9, s9, {stepb}
        s_add_u32 s{sOFF}, s{sBEG}, s9
        s_mov_b32 s{sCNT}, 0
        s_waitcnt lgkmcnt(0)""")
        self.srd(52, 18, TB)

        def load(slot, sw=None):
            for j in range(3):
                r = RING + (slot * 3 + j) * 4
                a(f"buffer_load_dwordx4 v[{r}:{r+3}], v{vOFF}, s[52:55], s{sOFF} offen offset:{128*j} {self.kvf}")
            a(f"""s_add_u32 s{sOFF}, s{sOFF}, {stepb}
            s_cmp_ge_u32 s{sOFF}, s{sEND}
            s_cselect_b32 s{sOFF}, s{sBEG}, s{sOFF}""")
            if sw == "kv":
                a(f"""s_cmp_eq_u32 s{sIT}, {NITK-1}
                s_cselect_b32 s52, s20, s52
                s_cselect_b32 s53, s21, s53""")
            elif sw is not None:
                a(f"""s_cmp_eq_u32 s{sIT}, {sw}
                s_cselect_b32 s54, 0, s54""")
        thr = 3 * (D - 1) + self.early
        for s in range(D0):
            load(s)
        self.epoch_load()
        self.srd(56, 40, WS_SRD)
        self.selectors(vL, vSEL, vT2, vT3, vOW)
        a(f"""s_mul_i32 s9, s3, 1152
        s_add_u32 s9, s9, {L_SC}
        v_mul_u32_u24 v{vSCW}, 144, v{vT0}
        v_add_u32 v{vSCW}, s9, v{vSCW}
        v_mov_b32 v{vSCR}, v{vSCW}""")
        a(f"""v_lshrrev_b32 v{vT2}, 5, v{vL}
        s_lshl_b32 s9, s3, 1
        v_add_u32 v{vT2}, s9, v{vT2}
        v_mul_u32_u24 v{vOW}, {OS}, v{vT2}
        v_lshl_add_u32 v{vOW}, v{vT1}, 4, v{vOW}
        v_bfe_u32 v{vT2}, v{vL}, 4, 1
        v_lshl_add_u32 v{vOW}, v{vT2}, 3, v{vOW}
        v_add_u32 v{vOW}, {L_O}, v{vOW}
        v_lshlrev_b32 v{vT2}, 4, v{vT1}""")
        for s in range(D0, R0):
            a(f"s_waitcnt vmcnt({3*(D0-1)})")
            load(s)
        a("s_waitcnt lgkmcnt(0)")
        self.epoch_use(vTG)
        self.stamp(15, vA, src=86)
        self.stamp(0, vA)
        a("s_barrier")
        self.stamp(1, vA)
        for j in range(3):
            a(f"ds_read_b128 v[{vQ+4*j}:{vQ+4*j+3}], v{vT2} offset:{L_QB + 128*j}")
        a(f"s_mov_b32 s{sIT}, 0\ns_mov_b32 s10, {SCALE_F32}\ns_waitcnt lgkmcnt(0)")

        def kpair(s, off):
            ra, rb = RING + s * 12, RING + (s + 1) * 12
            for i in range(12):
                c0 = "0" if i == 0 else f"v{vA0}"
                c1 = "0" if i == 0 else f"v{vA1}"
                a(f"v_dot2_f32_bf16 v{vA0}, v{ra+i}, v{vQ+i}, {c0}")
                a(f"v_dot2_f32_bf16 v{vA1}, v{rb+i}, v{vQ+i}, {c1}")
            a("s_nop 2")
            self.dpp("v_add_f32", vA0, vA0, vA0, "quad_perm:[1,0,3,2]")
            self.dpp("v_add_f32", vA1, vA1, vA1, "quad_perm:[1,0,3,2]")
            a("s_nop 0")
            self.dpp("v_add_f32", vA0, vA0, vA0, "quad_perm:[2,3,0,1]")
            self.dpp("v_add_f32", vA1, vA1, vA1, "quad_perm:[2,3,0,1]")
            a("s_nop 0")
            self.dpp("v_add_f32", vA0, vA0, vA0, "row_half_mirror")
            self.dpp("v_add_f32", vA1, vA1, vA1, "row_half_mirror")
            a(f"""v_cvt_pk_bf16_f32 v{vT2}, v{vA0}, v{vA1}
            v_lshlrev_b32 v{vA0}, 16, v{vT2}
            v_and_b32 v{vA1}, 0xffff0000, v{vT2}
            v_mul_f32 v{vA0}, s10, v{vA0}
            v_mul_f32 v{vA1}, s10, v{vA1}
            v_cvt_pk_bf16_f32 v{vT2}, v{vA0}, v{vA1}
            ds_write_b32 v{vSCW}, v{vT2} offset:{off}""")
        npairs = R0 // 2
        issue_after = {0: 0, 3: 1} if D == 2 else {0: 0, 2: 1, 4: 2}
        issued = 0
        for p in range(npairs):
            a(f"s_waitcnt vmcnt({3 * ((R0 - 2*p - 2) + issued)})")
            kpair(2 * p, p * 4)
            if p in issue_after:
                a(f"s_waitcnt vmcnt({thr})")
                load(issue_after[p])
                issued += 1
        a(f"v_add_u32 v{vSCW}, {2*R0}, v{vSCW}")
        a("L_kloop:")
        for s in range(RS):
            a(f"s_waitcnt vmcnt({thr})")
            load((s + D) % RS, "kv" if s == RS - D - 1 else None)
            if s & 1:
                if self.early:
                    a(f"s_waitcnt vmcnt({3*D})")
                if not self.nok:
                    kpair(s - 1, (s // 2) * 4)
        a(f"""v_add_u32 v{vSCW}, {2*RS}, v{vSCW}
        s_add_u32 s{sIT}, s{sIT}, 1
        s_cmp_lt_u32 s{sIT}, {NITK}
        s_cbranch_scc1 L_kloop""")
        for s in range(D, R1):
            load(s)
        self.stamp(2, vA)
        F = 32
        a(f"""v_lshl_add_u32 v{vT2}, v{vT1}, 4, v{vSCR}
        s_waitcnt lgkmcnt(0)
        ds_read_b128 v[40:43], v{vT2}
        s_waitcnt lgkmcnt(0)""")
        for i in range(4):
            a(f"v_lshlrev_b32 v{F+2*i}, 16, v{40+i}\nv_and_b32 v{F+2*i+1}, 0xffff0000, v{40+i}")
        a(f"""v_max3_f32 v{vA0}, v{F}, v{F+1}, v{F+2}
        v_max3_f32 v{vA0}, v{vA0}, v{F+3}, v{F+4}
        v_max3_f32 v{vA0}, v{vA0}, v{F+5}, v{F+6}
        v_max_f32 v{vA0}, v{vA0}, v{F+7}""")
        self.row_reduce("v_max_f32", vA0)
        self.swap_reduce("v_max_f32", vA0, vT3, 16)
        self.swap_reduce("v_max_f32", vA0, vT3, 32)
        for i in range(8):
            a(f"v_sub_f32 v{F+i}, v{F+i}, v{vA0}\nv_mul_f32 v{F+i}, {LOG2E}, v{F+i}")
        for i in range(8):
            a(f"v_exp_f32 v{F+i}, v{F+i}")
        a("s_nop 0")
        a(f"v_add_f32 v{vA1}, v{F}, v{F+1}")
        for i in range(2, 8):
            a(f"v_add_f32 v{vA1}, v{vA1}, v{F+i}")
        for i in range(4):
            a(f"v_cvt_pk_bf16_f32 v{40+i}, v{F+2*i}, v{F+2*i+1}")
        a(f"ds_write_b128 v{vT2}, v[40:43]")
        self.row_reduce("v_add_f32", vA1)
        self.swap_reduce("v_add_f32", vA1, vT3, 16)
        self.swap_reduce("v_add_f32", vA1, vT3, 32)
        a("s_waitcnt lgkmcnt(0)")
        def pread(n):
            if n == 2: a(f"ds_read_b64 v[{vP}:{vP+1}], v{vSCR}")
            elif n == 3: a(f"ds_read_b32 v{vP}, v{vSCR}\nds_read_b32 v{vP+1}, v{vSCR} offset:4\nds_read_b32 v{vP+2}, v{vSCR} offset:8")
            else: raise ValueError(n)
            a(f"v_add_u32 v{vSCR}, {4*n}, v{vSCR}")
        pread(R1 // 2)
        self.tag(44, vA0, vTG)
        self.tag(45, vA1, vTG)
        if self.diagx:
            a(f"s_getreg_b32 s9, hwreg(HW_REG_XCC_ID, 0, 4)\ns_lshl_b32 s9, s9, 8\nv_or_b32 v44, s9, v44")
        a(f"""v_mov_b32 v46, s{sT}
        v_mov_b32 v47, s{sT}
        s_lshl_b32 s9, s7, 6
        s_lshl_b32 s11, s3, 4
        s_add_u32 s9, s9, s11
        s_add_u32 s9, s9, {ST_OFF}
        v_mov_b32 v{vA0}, 0
        s_mov_b64 exec, 1
        buffer_store_dwordx4 v[44:47], v{vA0}, s[56:59], s9 offen sc1
        s_mov_b64 exec, -1""")
        for i in range(12):
            a(f"v_mov_b32 v{vACC+i}, 0")
        a(f"s_mov_b32 s{sIT}, 0\ns_waitcnt lgkmcnt(0)")
        self.stamp(3, 60)

        def vmf(g, slot):
            A = vA + 4 * ((g + 1) & 1)
            for j in range(3):
                self.mfma(vACC + 4 * j, A, RING + (slot * 3 + j) * 4, vACC + 4 * j)
        def vA_(g):
            self.buildA(vA + 4 * ((g + 1) & 1), vP + g // 2, g & 1, vSEL)
        thrV = 3 * (DV - 1) + self.earlyV
        NITV = (64 - R1) // RSV
        assert (64 - R1) % RSV == 0
        issued = 0
        for g in range(R1):
            vA_(g)
            if g == R1 - 1:
                pread(RSV // 2)
            if g >= R1 - DV:
                a(f"s_waitcnt vmcnt({thrV})")
                load((R1 + issued) % RSV)
                issued += 1
                if self.earlyV:
                    a(f"s_waitcnt vmcnt({3*DV})")
            else:
                a(f"s_waitcnt vmcnt({3*(R1 - g - 1)})\ns_nop 0")
            vmf(g, g)
        a("L_vloop:\ns_waitcnt lgkmcnt(0)")
        for s in range(RSV):
            slot = (R1 + s) % RSV
            vA_(s)
            if s == RSV - 1:
                pread(RSV // 2)
            a(f"s_waitcnt vmcnt({thrV})")
            load((slot + DV) % RSV, (NITV - 1) if s == RSV - DV - 1 else None)
            if self.earlyV:
                a(f"s_waitcnt vmcnt({3*DV})")
            vmf(s, slot)
        a(f"""s_add_u32 s{sIT}, s{sIT}, 1
        s_cmp_lt_u32 s{sIT}, {NITV}
        s_cbranch_scc1 L_vloop
        s_nop 3""")
        a("s_nop 3")
        for j in range(3):
            a(f"""v_cvt_pk_bf16_f32 v{vA+2*j}, v{vACC+4*j}, v{vACC+4*j+1}
            v_cvt_pk_bf16_f32 v{vA+2*j+1}, v{vACC+4*j+2}, v{vACC+4*j+3}""")
        a("s_mov_b32 exec_lo, 0x00ff00ff\ns_mov_b32 exec_hi, 0xff00ff00")
        for j in range(3):
            a(f"ds_write_b64 v{vOW}, v[{vA+2*j}:{vA+2*j+1}] offset:{128*j}")
        a("s_mov_b64 exec, -1")
        a(f"""v_and_b32 v{vT0}, 7, v{vL}
        v_mul_u32_u24 v{vT0}, {OS}, v{vT0}
        v_lshrrev_b32 v{vT1}, 4, v{vL}
        v_lshl_add_u32 v{vT0}, v{vT1}, 4, v{vT0}
        v_and_b32 v{vT2}, 1, v{vT1}
        v_and_b32 v{vT3}, 15, v{vL}
        v_lshl_add_u32 v{vT3}, v{vT3}, 1, v{vT2}
        v_lshlrev_b32 v{vT3}, 2, v{vT3}
        v_lshlrev_b32 v{vT2}, 3, v{vT2}
        s_mul_i32 s9, s3, 12288
        s_add_u32 s9, s9, {L_WX}
        v_lshlrev_b32 v{vT1}, 4, v{vL}
        v_add_u32 v{vT1}, s9, v{vT1}
        s_mul_i32 s9, s7, 2560
        s_lshl_b32 s11, s3, 7
        s_add_u32 s9, s9, s11
        s_add_u32 s9, s9, {P_OFF + 2048}
        s_waitcnt lgkmcnt(0)""")
        self.stamp(4, 12)
        a("s_barrier")
        AA = RING + 12 * W
        BB = AA + 24
        assert BB + 48 <= 256
        D0, D1, SCL = 32, 36, 40
        for k in range(6):
            a(f"ds_read_b128 v[{AA+4*k}:{AA+4*k+3}], v{vT0} offset:{L_O + 64*k}")
            a(f"ds_read_b128 v[{BB+8*k}:{BB+8*k+3}], v{vT1} offset:{2048*k}")
            a(f"ds_read_b128 v[{BB+8*k+4}:{BB+8*k+7}], v{vT1} offset:{2048*k+1024}")
            if k == 3:
                a("s_waitcnt lgkmcnt(6)")
        a(f"ds_read_b64 v[{SCL}:{SCL+1}], v{vT2} offset:{L_SCALE}")
        for k in range(6):
            a(f"s_waitcnt lgkmcnt({min(15, 3*(5-k)+1)})")
            self.mfma(D0, AA + 4 * k, BB + 8 * k, None if k == 0 else D0)
            self.mfma(D1, AA + 4 * k, BB + 8 * k + 4, None if k == 0 else D1)
        a("s_waitcnt lgkmcnt(0)\ns_nop 7")
        for D in (D0, D1):
            a(f"""v_add_f32 v{D}, v{D}, v{D+1}
            v_add_f32 v{D+2}, v{D+2}, v{D+3}
            v_mul_f32 v{D}, v{D}, v{SCL}
            v_fmac_f32 v{D}, v{D+2}, v{SCL+1}""")
        a(f"""s_nop 1
        v_permlane16_swap_b32 v{D0}, v{D1}
        s_nop 1
        v_add_f32 v{D0}, v{D0}, v{D1}""")
        self.tag(D0, D0, vTG)
        a(f"""s_mov_b32 exec_hi, 0
        buffer_store_dword v{D0}, v{vT3}, s[56:59], s9 offen sc1
        s_mov_b64 exec, -1""")
        self.stamp(5, 12)
        a("s_endpgm")

    def gen_H(self):
        self.cls = "H"
        a = self.a
        vL = 0
        vT0, vT1, vT2, vT3, vT4, vT5, vW = 1, 2, 3, 4, 5, 6, 7
        vX = 8
        vSEL = 18
        vTG = 26
        vCK = 27
        vF = 28
        vA, vACC = 28, 36
        vE = 52
        TI = 64
        if self.hprio:
            a(f"s_setprio {self.hprio}")
        a("s_sub_u32 s3, s3, 4")
        a(f"""s_and_b32 s14, s10, 7
        v_lshrrev_b32 v{vT0}, 5, v{vL}
        v_mul_u32_u24 v{vT0}, 1280, v{vT0}
        v_and_b32 v{vT1}, 31, v{vL}
        v_lshl_add_u32 v{vT0}, v{vT1}, 3, v{vT0}
        v_lshrrev_b32 v{vT1}, 3, v{vL}
        v_mul_u32_u24 v{vW}, {10*12288}, v{vT1}
        v_and_b32 v{vT2}, 7, v{vL}
        v_lshl_add_u32 v{vW}, v{vT2}, 4, v{vW}
        s_mul_i32 s9, s4, 384
        s_mul_i32 s11, s14, {80*12288}
        s_add_u32 s9, s9, s11
        s_lshl_b32 s11, s3, 7
        s_add_u32 s9, s9, s11
        v_add_u32 v{vW}, s9, v{vW}
        s_waitcnt lgkmcnt(0)""")
        self.srd(60, 16, 2560)
        self.srd(44, 22, 640 * 12288)
        for t in range(5):
            a(f"buffer_load_dwordx2 v[{vX+2*t}:{vX+2*t+1}], v{vT0}, s[60:63], 0 offen offset:{256*t}")
        a("s_cmp_eq_u32 s3, 3\ns_cselect_b32 s46, 0, s46")
        for G in range(10):
            a(f"s_mov_b32 s9, {G*12288}")
            a(f"buffer_load_dwordx4 v[{TI+4*G}:{TI+4*G+3}], v{vW}, s[44:47], s9 offen {self.wf}")
        self.epoch_load()
        self.srd(56, 40, WS_SRD)
        self.selectors(vL, vSEL, vT3, vT4, vT5)
        a(f"s_mov_b32 s9, 0x3f803f80\ns_waitcnt vmcnt(10)")
        self.stamp(11, 60)
        for i in range(10):
            c = "0" if i == 0 else f"v{vT3}"
            a(f"v_dot2_f32_bf16 v{vT3}, v{vX+i}, s9, {c}")
        for i in range(2):
            a(f"v_lshlrev_b32 v{vF+2*i}, 16, v{vX+i}\nv_and_b32 v{vF+2*i+1}, 0xffff0000, v{vX+i}")
        k = 2
        for st in (1, 2, 4, 8):
            self.dpp("v_add_f32", vT3, vT3, vT3, f"row_ror:{st}")
            a(f"v_lshlrev_b32 v{vF+2*k}, 16, v{vX+k}\nv_and_b32 v{vF+2*k+1}, 0xffff0000, v{vX+k}")
            k += 1
        a(f"v_mov_b32 v{vT4}, v{vT3}")
        a(f"v_lshlrev_b32 v{vF+2*k}, 16, v{vX+k}\nv_and_b32 v{vF+2*k+1}, 0xffff0000, v{vX+k}")
        k += 1
        a(f"v_permlane16_swap_b32 v{vT3}, v{vT4}")
        while k < 10:
            a(f"v_lshlrev_b32 v{vF+2*k}, 16, v{vX+k}\nv_and_b32 v{vF+2*k+1}, 0xffff0000, v{vX+k}")
            k += 1
        a(f"v_add_f32 v{vT3}, v{vT3}, v{vT4}")
        def div640(v, t):
            a(f"""v_mul_f32 v{t}, {f32(1/640)}, v{v}
            v_fmac_f32 v{v}, {f32(-640.0)}, v{t}
            v_fmac_f32 v{t}, {f32(1/640)}, v{v}""")
        M2 = vE
        D2 = vE + 2
        Q2 = vE + 4
        div640(vT3, M2)
        a(f"v_mov_b32 v{M2+1}, v{M2}")
        for i in range(10):
            a(f"v_pk_add_f32 v[{D2}:{D2+1}], v[{vF+2*i}:{vF+2*i+1}], v[{M2}:{M2+1}] neg_lo:[0,1] neg_hi:[0,1]")
            if i == 0:
                a(f"v_pk_mul_f32 v[{Q2}:{Q2+1}], v[{D2}:{D2+1}], v[{D2}:{D2+1}]")
            else:
                a(f"v_pk_fma_f32 v[{Q2}:{Q2+1}], v[{D2}:{D2+1}], v[{D2}:{D2+1}], v[{Q2}:{Q2+1}]")
        a(f"v_add_f32 v{vT4}, v{Q2}, v{Q2+1}")
        self.rbf(M2)
        a(f"v_mov_b32 v{M2+1}, v{M2}")
        def xc(i):
            a(f"""v_pk_add_f32 v[{vF+2*i}:{vF+2*i+1}], v[{vF+2*i}:{vF+2*i+1}], v[{M2}:{M2+1}] neg_lo:[0,1] neg_hi:[0,1]
            v_cvt_pk_bf16_f32 v{vF+2*i+1}, v{vF+2*i}, v{vF+2*i+1}
            v_lshlrev_b32 v{vF+2*i}, 16, v{vF+2*i+1}
            v_and_b32 v{vF+2*i+1}, 0xffff0000, v{vF+2*i+1}""")
        k = 0
        for st in (1, 2, 4, 8):
            self.dpp("v_add_f32", vT4, vT4, vT4, f"row_ror:{st}")
            xc(k); k += 1
        a(f"v_mov_b32 v{vT5}, v{vT4}")
        xc(k); k += 1
        a(f"v_permlane16_swap_b32 v{vT4}, v{vT5}")
        xc(k); k += 1
        a(f"v_add_f32 v{vT4}, v{vT4}, v{vT5}")
        div640(vT4, vT5)
        self.rbf(vT5)
        a(f"v_add_f32 v{vT5}, {f32(1e-5)}, v{vT5}")
        self.rbf(vT5)
        a(f"v_sqrt_f32 v{vT5}, v{vT5}")
        xc(k); k += 1
        self.rbf(vT5)
        a(f"v_rcp_f32 v{D2}, v{vT5}")
        xc(k); k += 1
        a(f"v_mov_b32 v{D2+1}, v{D2}\nv_mov_b32 v{Q2}, v{vT5}\nv_mov_b32 v{Q2+1}, v{vT5}")
        while k < 10:
            xc(k); k += 1
        R2 = vE + 6
        for i in range(10):
            f = vF + 2 * i
            a(f"""v_pk_mul_f32 v[{R2}:{R2+1}], v[{f}:{f+1}], v[{D2}:{D2+1}]
            v_pk_fma_f32 v[{f}:{f+1}], v[{R2}:{R2+1}], v[{Q2}:{Q2+1}], v[{f}:{f+1}] neg_lo:[1,0,0] neg_hi:[1,0,0]
            v_pk_fma_f32 v[{R2}:{R2+1}], v[{f}:{f+1}], v[{D2}:{D2+1}], v[{R2}:{R2+1}]
            v_cvt_pk_bf16_f32 v{vX+i}, v{R2}, v{R2+1}""")
            if i & 1:
                t = i // 2
                a(f"ds_write_b64 v{vT0}, v[{vX+2*t}:{vX+2*t+1}] offset:{L_XN + 256*t}")
        a("s_waitcnt lgkmcnt(0)")
        self.epoch_use(vTG)
        self.stamp(15, 60, src=86)
        self.stamp(1, 60)
        a("s_cmp_eq_u32 s3, 3\ns_cbranch_scc1 L_qcons")
        a(f"""v_mul_u32_u24 v{vT3}, 20, v{vT1}
        s_mul_i32 s9, s14, 160
        v_add_u32 v{vT3}, s9, v{vT3}""")
        for bb in range(2):
            for t in range(5):
                a(f"ds_read_b32 v{vX+5*bb+t}, v{vT3} offset:{L_XN + 1280*bb + 4*t}")
        a(f"""v_lshrrev_b32 v{vT4}, 5, v{vL}
        v_mul_u32_u24 v{vT4}, 768, v{vT4}
        v_lshl_add_u32 v{vT4}, v{vT2}, 5, v{vT4}
        v_bfe_u32 v{vT5}, v{vL}, 4, 1
        v_lshl_add_u32 v{vT4}, v{vT5}, 4, v{vT4}
        s_lshl_b32 s9, s4, 3
        s_add_u32 s9, s9, s14
        s_mul_i32 s9, s9, 1536
        s_lshl_b32 s11, s3, 8
        s_add_u32 s9, s9, s11
        s_add_u32 s9, s9, {QX_OFF}
        s_waitcnt lgkmcnt(0)""")
        for G in range(10):
            self.buildA(vA, vX + G // 2, G & 1, vSEL)
            self.buildA(vA + 4, vX + 5 + G // 2, G & 1, vSEL)
            a(f"s_waitcnt vmcnt({9-G})\ns_nop 0")
            self.mfma(vACC, vA, TI + 4 * G, None if G == 0 else vACC)
            self.mfma(vACC + 4, vA + 4, TI + 4 * G, None if G == 0 else vACC + 4)
        a("s_nop 7")
        for r in range(4):
            a(f"v_permlane32_swap_b32 v{vACC+r}, v{vACC+4+r}")
        a("s_nop 1")
        for r in range(4):
            self.dpp("v_add_f32", vACC + r, vACC + 4 + r, vACC + r, "row_ror:8")
        for r in range(4):
            self.tag(vACC + r, vACC + r, vTG, rn=True)
        a(f"""s_mov_b32 exec_lo, 0x00ff00ff
        s_mov_b32 exec_hi, 0x00ff00ff
        buffer_store_dwordx4 v[{vACC}:{vACC+3}], v{vT4}, s[56:59], s9 offen sc1
        s_mov_b64 exec, -1
        s_branch L_qdone
        L_qcons:""")
        Lq, Lqd = self.lab("q"), self.lab("qd")
        a(f"""v_lshlrev_b32 v{vT3}, 4, v{vL}
        v_lshlrev_b32 v{vT4}, 3, v{vL}
        s_mul_i32 s9, s4, {8*1536}
        s_mul_i32 s11, s5, 768
        s_add_u32 s9, s9, s11
        s_add_u32 s70, s9, {QX_OFF}
        s_add_u32 s71, s70, 3072
        s_add_u32 s72, s70, 6144
        s_add_u32 s73, s70, 9216
        s_mov_b32 s12, {self.poll_max}
        s_mov_b32 exec_hi, 0xffff
        {Lq}:""")
        for k in range(8):
            a(f"buffer_load_dwordx4 v[{TI+4*k}:{TI+4*k+3}], v{vT3}, s[56:59], s{70+k//2} offen offset:{1536*(k&1)} sc1")
        for k in range(8):
            a(f"s_waitcnt vmcnt({7-k})")
            self.chk4(vCK, TI + 4 * k, vTG, first=(k == 0))
            if k:
                for r in range(4):
                    a(f"v_add_f32 v{TI+r}, v{TI+r}, v{TI+4*k+r}")
        self.poll_tail(vCK, Lq, Lqd, 0)
        a(f"""v_cvt_pk_bf16_f32 v{TI}, v{TI}, v{TI+1}
        v_cvt_pk_bf16_f32 v{TI+1}, v{TI+2}, v{TI+3}
        ds_write_b64 v{vT4}, v[{TI}:{TI+1}] offset:{L_QB}
        s_mov_b64 exec, -1
        s_waitcnt lgkmcnt(0)
        L_qdone:""")
        self.stamp(2, 60)
        a(f"s_setprio {self.hprio1}")
        a("s_barrier")
        a(f"v_and_b32 v{vT1}, 15, v{vL}\nv_lshrrev_b32 v{vT2}, 4, v{vL}")
        if self.hskip:
            a("s_mov_b32 s68, 0\ns_branch L_noown")
        a(f"""s_mul_hi_u32 s81, s2, {(2**32 + 23)//24}
        s_mul_i32 s80, s81, 24
        s_sub_u32 s80, s2, s80
        s_mov_b32 s82, 0
        s_cmp_ge_u32 s2, {0 if self.nomoe else 240}
        s_cbranch_scc1 L_nomoe1
        s_cmp_lg_u32 s3, 1
        s_cbranch_scc1 L_nomoe1
        s_mov_b32 s82, 1""")
        self.gen_moe1(vL, vT1, vT2, vT3, vT4, vT5, vSEL, vA, vACC, vTG, TI)
        a("L_nomoe1:")
        self.srd(44, 24, 0 if self.nowo else 6144 * 1280)
        a(f"""v_mul_u32_u24 v{vW}, {8*1280}, v{vT2}
        s_mul_i32 s9, s4, {192*1280}
        v_add_u32 v{vW}, s9, v{vW}
        v_lshl_add_u32 v{vT3}, v{vT1}, 2, v{vW}
        s_lshl_b32 s9, s3, 6
        s_add_u32 s9, s9, 1024
        v_add_u32 v{vT3}, s9, v{vT3}
        v_lshl_add_u32 v{vW}, v{vT1}, 4, v{vW}
        s_lshl_b32 s9, s3, 8
        v_add_u32 v{vW}, s9, v{vW}
        s_mov_b32 s14, 0x05040100
        s_mov_b32 s15, 0x07060302
        s_mul_i32 s9, s3, 12288
        s_add_u32 s9, s9, {L_WX}
        v_lshlrev_b32 v{vT4}, 4, v{vL}
        v_add_u32 v{vT4}, s9, v{vT4}""")
        for K0 in range(0, 6, 2):
            for K in (K0, K0 + 1):
                for e in range(8):
                    if e % 4 == 0:
                        a(f"s_mov_b32 s9, {(32*K + e)*1280}")
                    a(f"buffer_load_dword v{TI+8*K+e}, v{vT3}, s[44:47], s9 offen offset:{(e%4)*1280} {self.wof}")
            for K in (K0, K0 + 1):
                a(f"s_waitcnt vmcnt({8*(K0+1-K)})")
                d = TI + 48 + 8 * K
                for t in range(4):
                    a(f"v_perm_b32 v{d+t}, v{TI+8*K+2*t+1}, v{TI+8*K+2*t}, s14")
                    a(f"v_perm_b32 v{d+4+t}, v{TI+8*K+2*t+1}, v{TI+8*K+2*t}, s15")
                a(f"ds_write_b128 v{vT4}, v[{d}:{d+3}] offset:{2048*K}")
                a(f"ds_write_b128 v{vT4}, v[{d+4}:{d+7}] offset:{2048*K+1024}")
        a("s_waitcnt lgkmcnt(0)")
        self.stamp(3, 60)
        a("s_cmp_eq_u32 s82, 0\ns_cbranch_scc1 L_nomoe2")
        self.gen_moe2(vL, vT1, vT2, vT3, vT4, vT5, vSEL, vA, vACC, vTG, vCK, TI)
        self.stamp(9, 60)
        a("L_nomoe2:")
        def REG(k): return 32 + 32 * k
        for K in range(6):
            for e in range(8):
                if e % 4 == 0:
                    a(f"s_mov_b32 s9, {(32*K + e)*1280}")
                r = REG(0) + 4 * e
                a(f"buffer_load_dwordx4 v[{r}:{r+3}], v{vW}, s[44:47], s9 offen offset:{(e%4)*1280} {self.wof}")
                if self.wobatch == 4 and e == 3:
                    a("s_waitcnt vmcnt(0)")
            s, d = REG(0), REG(K + 1)
            for t in range(4):
                a(f"s_waitcnt vmcnt({6-2*t})")
                for dd in range(4):
                    a(f"v_perm_b32 v{d+(2*dd)*4+t}, v{s+(2*t+1)*4+dd}, v{s+(2*t)*4+dd}, s14")
                    a(f"v_perm_b32 v{d+(2*dd+1)*4+t}, v{s+(2*t+1)*4+dd}, v{s+(2*t)*4+dd}, s15")
        vG, vXC, vOUTA, vPA, vSC = 8, 9, 10, 11, 12
        vAR, vST = 14, 15
        Wk = 32
        self.stamp(4, 60)
        a(f"""s_cmp_lg_u32 s3, 3
        s_cbranch_scc1 L_noep
        s_cmp_lg_u32 s2, 0
        s_cbranch_scc1 L_noep""")
        Lc, Lcd = self.lab("c0"), self.lab("c0d")
        a(f"""s_mov_b32 s12, {self.poll_max}
        v_lshlrev_b32 v{Wk+8}, 6, v{vL}
        v_mov_b32 v{Wk+9}, s{sT}
        s_mov_b32 s9, {ST_OFF + 8}
        s_mov_b32 s10, {ST_OFF + 8 + 4096}
        s_mov_b32 s11, {ST_OFF + 8 + 8192}
        s_mov_b32 s13, {ST_OFF + 8 + 12288}
        {Lc}:
        s_sleep 127
        buffer_load_dwordx2 v[{Wk}:{Wk+1}], v{Wk+8}, s[56:59], s9 offen sc1
        buffer_load_dwordx2 v[{Wk+2}:{Wk+3}], v{Wk+8}, s[56:59], s10 offen sc1
        buffer_load_dwordx2 v[{Wk+4}:{Wk+5}], v{Wk+8}, s[56:59], s11 offen sc1
        buffer_load_dwordx2 v[{Wk+6}:{Wk+7}], v{Wk+8}, s[56:59], s13 offen sc1
        s_waitcnt vmcnt(0)""")
        self.chk4(vCK, Wk, Wk + 9, first=True, n=8)
        a(f"""v_cmp_ne_u32 vcc, 0, v{vCK}
        s_cbranch_vccz {Lcd}
        s_sub_u32 s12, s12, 1
        s_cmp_gt_u32 s12, 0
        s_cbranch_scc1 {Lc}
        {Lcd}:
        v_mov_b32 v{Wk}, 0
        s_mov_b32 s9, {EP_OFF}
        s_mov_b64 exec, 1
        buffer_store_dword v{Wk+9}, v{Wk}, s[56:59], s9 offen sc1
        s_mov_b64 exec, -1
        L_noep:""")
        a("s_cmp_lg_u32 s3, 0\ns_cbranch_scc1 L_nostat")
        if self.nopoll:
            a("s_branch L_nostat")
        Ls, Lsd = self.lab("st"), self.lab("std")
        a(f"""s_lshl_b32 s9, s8, 8
        s_add_u32 s9, s9, {ST_OFF}
        v_lshlrev_b32 v{Wk+4}, 4, v{vT1}
        v_mov_b32 v{Wk+5}, s{sT}
        s_mov_b32 s12, {self.poll_max}
        {Ls}:
        buffer_load_dwordx4 v[{Wk}:{Wk+3}], v{Wk+4}, s[56:59], s9 offen sc1
        s_waitcnt vmcnt(0)""")
        self.chk4(vCK, Wk, vTG, first=True, n=2)
        a(f"""v_and_b32 v{vCK}, 0xff, v{vCK}
        v_bitop3_b32 v{vCK}, v{Wk+2}, v{Wk+5}, v{vCK} bitop3:0xbe
        v_bitop3_b32 v{vCK}, v{Wk+3}, v{Wk+5}, v{vCK} bitop3:0xbe
        v_cmp_ne_u32 vcc, 0, v{vCK}
        s_cbranch_vccz {Lsd}
        s_sleep {self.stsleep}
        s_sub_u32 s12, s12, 1
        s_cmp_gt_u32 s12, 0
        s_cbranch_scc1 {Ls}
        {Lsd}:""")
        if self.diagx:
            a(f"""v_bfe_u32 v{Wk+2}, v{Wk}, 8, 4
            v_and_b32 v{Wk}, 0xffff0000, v{Wk}
            s_getreg_b32 s9, hwreg(HW_REG_XCC_ID, 0, 4)
            v_cmp_ne_u32 vcc, s9, v{Wk+2}
            s_cbranch_vccz L_dx
            s_mov_b32 s12, 40
            L_dx1:
            s_sleep 127
            s_sub_u32 s12, s12, 1
            s_cmp_gt_u32 s12, 0
            s_cbranch_scc1 L_dx1
            L_dx:""")
        a(f"v_mov_b32 v{Wk+2}, v{Wk}")
        self.row_reduce("v_max_f32", Wk + 2)
        a(f"""v_sub_f32 v{Wk}, v{Wk}, v{Wk+2}
        v_mul_f32 v{Wk}, {LOG2E}, v{Wk}
        v_exp_f32 v{Wk}, v{Wk}
        s_nop 0
        v_mul_f32 v{Wk+1}, v{Wk+1}, v{Wk}""")
        self.row_reduce("v_add_f32", Wk + 1)
        a(f"""v_rcp_f32 v{Wk+2}, v{Wk+1}
        s_nop 0
        v_mul_f32 v{Wk+3}, v{Wk}, v{Wk+2}
        v_fma_f32 v{Wk}, -v{Wk+3}, v{Wk+1}, v{Wk}
        v_fmac_f32 v{Wk+3}, v{Wk}, v{Wk+2}
        s_lshl_b32 s9, s6, 2
        v_subrev_u32 v{Wk+4}, s9, v{vL}
        v_cmp_gt_u32 vcc, 4, v{Wk+4}
        v_lshlrev_b32 v{Wk+4}, 2, v{Wk+4}
        s_and_saveexec_b64 s[10:11], vcc
        ds_write_b32 v{Wk+4}, v{Wk+3} offset:{L_SCALE}
        s_mov_b64 exec, -1
        L_nostat:""")
        a(f"""s_lshl_b32 s67, s6, 5
        s_add_u32 s67, s67, s4
        s_mov_b32 s68, 0
        s_cmp_lg_u32 s3, 2
        s_cbranch_scc1 L_noown
        s_cmp_ge_u32 s67, 40
        s_cbranch_scc1 L_noown
        s_mov_b32 s68, 1""")
        self.srd(60, 28, 1280)
        W = Wk
        a(f"""v_lshlrev_b32 v{W+20}, 2, v{vL}
        s_mul_i32 s9, s5, 1280
        v_add_u32 v{W+21}, s9, v{W+20}""")
        for t in range(5):
            a(f"buffer_load_dword v{W+t}, v{W+20}, s[60:63], 0 offen offset:{256*t}")
            a(f"ds_read_b32 v{W+5+t}, v{W+21} offset:{L_XN + 256*t}")
        self.srd(60, 16, 2560)
        a(f"""v_and_b32 v{W+22}, 3, v{vL}
        v_lshl_add_u32 v{vOUTA}, v{W+22}, 2, v{vT2}
        v_lshlrev_b32 v{vOUTA}, 1, v{vOUTA}
        s_lshl_b32 s10, s67, 5
        s_add_u32 s10, s10, s9
        v_add_u32 v{vOUTA}, s10, v{vOUTA}
        buffer_load_ushort v{vXC}, v{vOUTA}, s[60:63], 0 offen
        ds_read_u16 v{W+23}, v{vOUTA} offset:{L_XN}
        s_waitcnt vmcnt(0) lgkmcnt(0)""")
        for t in range(5):
            c = "0" if t == 0 else f"v{W+24}"
            a(f"v_dot2_f32_bf16 v{W+24}, v{W+t}, v{W+5+t}, {c}")
        a(f"v_lshlrev_b32 v{vXC}, 16, v{vXC}\nv_lshlrev_b32 v{W+23}, 16, v{W+23}\ns_nop 1")
        self.row_reduce("v_add_f32", W + 24)
        self.swap_reduce("v_add_f32", W + 24, W + 25, 16)
        self.swap_reduce("v_add_f32", W + 24, W + 25, 32)
        self.rbf(W + 24)
        self.sigmoid_like(W + 24, W + 24)
        self.rbf(W + 24)
        Ly, Lyd = self.lab("y"), self.lab("yd")
        a(f"""v_lshrrev_b32 v{W+20}, 2, v{vL}
        v_mul_u32_u24 v{W+21}, 5120, v{W+20}
        v_lshl_add_u32 v{W+21}, v{W+22}, 4, v{W+21}
        v_mul_u32_u24 v{vPA}, 2560, v{W+20}
        v_lshl_add_u32 v{vPA}, v{W+22}, 4, v{vPA}
        s_mul_i32 s9, s5, 2560
        s_lshl_b32 s10, s67, 6
        s_add_u32 s9, s9, s10
        s_add_u32 s9, s9, {Y_OFF}
        s_add_u32 s10, s9, {16*5120}
        s_add_u32 s11, s9, {32*5120}
        s_mov_b32 s12, {self.poll_max}
        {Ly}:
        buffer_load_dwordx4 v[{W}:{W+3}], v{W+21}, s[56:59], s9 offen sc1
        buffer_load_dwordx4 v[{W+4}:{W+7}], v{W+21}, s[56:59], s10 offen sc1
        buffer_load_dwordx4 v[{W+8}:{W+11}], v{W+21}, s[56:59], s11 offen sc1
        s_waitcnt vmcnt(0)""")
        self.chk4(vCK, W, vTG, first=True, n=12)
        if self.nomoe:
            a(f"{Lyd}:")
        else:
            self.poll_tail(vCK, Ly, Lyd, 32)
        for r in range(4):
            a(f"v_add_f32 v{W+r}, v{W+r}, v{W+4+r}\nv_add_f32 v{W+r}, v{W+r}, v{W+8+r}")
        self.merge4(W)
        self.rbf(W)
        a(f"v_mul_f32 v{W}, v{W}, v{W+24}")
        self.rbf(W)
        a(f"v_add_f32 v{W}, v{W}, v{W+23}")
        self.rbf(W)
        self.sigmoid_like(W + 1, W)
        a(f"v_mul_f32 v{vG}, v{W}, v{W+1}")
        self.rbf(vG)
        a(f"""s_mul_i32 s70, s5, {128*2560}
        s_lshl_b32 s10, s67, 6
        s_add_u32 s70, s70, s10""")
        for t in range(1, 8):
            a(f"s_add_u32 s{70+t}, s70, {t*40960}")
        a("L_noown:")
        self.srd(60, 36, 2560)
        a(f"""v_and_b32 v{vAR}, 7, v{vL}
        v_mul_u32_u24 v{vAR}, {OS}, v{vAR}
        v_lshl_add_u32 v{vAR}, v{vT2}, 4, v{vAR}
        v_and_b32 v{vT3}, 1, v{vT2}
        v_lshlrev_b32 v{vST}, 5, v{vT1}
        v_lshl_add_u32 v{vST}, v{vT3}, 4, v{vST}
        v_lshlrev_b32 v{vT3}, 3, v{vT3}
        s_mul_i32 s9, s7, 2560
        s_lshl_b32 s10, s3, 9
        s_add_u32 s9, s9, s10
        s_waitcnt vmcnt(0) lgkmcnt(0)""")
        self.stamp(5, 60)
        a(f"s_setprio {self.hprio2}")
        a("s_barrier")
        self.stamp(6, 60)
        Aop = [16, 20, 28, REG(1), REG(1) + 4, REG(1) + 8]
        for k in range(3):
            a(f"ds_read_b128 v[{Aop[k]}:{Aop[k]+3}], v{vAR} offset:{L_O + 64*k}")
        a(f"ds_read_b64 v[{vSC}:{vSC+1}], v{vT3} offset:{L_SCALE}")
        waits = [3, 5, 4, 2, 1, 0]
        for k in range(6):
            a(f"s_waitcnt lgkmcnt({waits[k]})")
            for c in range(8):
                self.mfma(32 + 4 * c, Aop[k], REG(k + 1) + 4 * c, None if k == 0 else 32 + 4 * c)
            if k == 0:
                for kk in (3, 4, 5):
                    a(f"ds_read_b128 v[{Aop[kk]}:{Aop[kk]+3}], v{vAR} offset:{L_O + 64*kk}")
        a("s_nop 1")
        for c in range(8):
            D = 32 + 4 * c
            a(f"""v_add_f32 v{D}, v{D}, v{D+1}
            v_add_f32 v{D+2}, v{D+2}, v{D+3}
            v_mul_f32 v{D}, v{D}, v{vSC}
            v_fmac_f32 v{D}, v{D+2}, v{vSC+1}""")
        a("s_nop 1")
        for c in range(4):
            a(f"v_permlane16_swap_b32 v{32+4*c}, v{48+4*c}")
        a("s_nop 1")
        for c in range(4):
            a(f"v_add_f32 v{16+c}, v{32+4*c}, v{48+4*c}")
        for c in range(4):
            self.tag(16 + c, 16 + c, vTG)
        a(f"""s_mov_b32 exec_hi, 0
        buffer_store_dwordx4 v[16:19], v{vST}, s[56:59], s9 offen sc1
        s_mov_b32 exec_hi, -1""")
        self.stamp(7, 60)
        a("""s_cmp_eq_u32 s68, 0
        s_cbranch_scc1 L_end""")
        Lp, Lpd = self.lab("p"), self.lab("pd")
        Z = 64
        a(f"s_mov_b32 s12, {self.poll_max}\n{Lp}:")
        for t in range(8):
            a(f"buffer_load_dwordx4 v[{Z+4*t}:{Z+4*t+3}], v{vPA}, s[56:59], s{70+t} offen sc1")
        for t in range(8):
            a(f"s_waitcnt vmcnt({7-t})")
            self.chk4(vCK, Z + 4 * t, vTG, first=(t == 0))
            if t:
                for r in range(4):
                    a(f"v_add_f32 v{Z+r}, v{Z+r}, v{Z+4*t+r}")
        self.poll_tail(vCK, Lp, Lpd, 0)
        self.merge4(Z)
        self.rbf(Z)
        a(f"v_mul_f32 v{Z}, v{Z}, v{vG}")
        self.rbf(Z)
        a(f"""v_add_f32 v{Z}, v{Z}, v{vXC}
        v_cvt_pk_bf16_f32 v{Z}, v{Z}, v{Z}
        s_mov_b32 exec_lo, 0x000f000f
        s_mov_b32 exec_hi, 0x000f000f
        buffer_store_short v{Z}, v{vOUTA}, s[60:63], 0 offen""")
        if self.padto:
            a(f"""L_pad:
            s_memrealtime s[90:91]
            s_waitcnt lgkmcnt(0)
            s_sub_u32 s90, s90, s86
            s_cmp_lt_u32 s90, {self.padto}
            s_cbranch_scc1 L_pad""")
        self.stamp(8, 60)

    def gen_moe1(self, vL, vT1, vT2, vT3, vT4, vT5, vSEL, vA, vACC, vTG, TI):
        a = self.a
        vAD = 52
        vCA = 54
        a(f"""v_cmp_gt_u32 vcc, 8, v{vT1}
        v_mov_b32 v{vT3}, s32
        v_mov_b32 v{vT4}, s30
        v_cndmask_b32 v{vAD}, v{vT3}, v{vT4}, vcc
        v_mov_b32 v{vT3}, s33
        v_mov_b32 v{vT4}, s31
        v_cndmask_b32 v{vAD+1}, v{vT3}, v{vT4}, vcc
        v_mul_u32_u24 v{vT3}, {16*3072}, v{vT2}
        v_and_b32 v{vT4}, 7, v{vL}
        v_lshl_add_u32 v{vT3}, v{vT4}, 4, v{vT3}
        s_lshl_b32 s9, s80, 7
        s_mul_i32 s10, s81, {64*3072}
        s_add_u32 s9, s9, s10
        v_add_u32 v{vT4}, s9, v{vT3}
        v_mov_b32 v{vT5}, 0
        v_add_co_u32 v{vAD}, vcc, v{vAD}, v{vT4}
        s_nop 1
        v_addc_co_u32 v{vAD+1}, vcc, v{vAD+1}, v{vT5}, vcc
        v_lshrrev_b32 v{vT3}, 3, v{vT1}
        v_mul_u32_u24 v{vCA}, 1280, v{vT3}
        v_lshl_add_u32 v{vCA}, v{vT2}, 5, v{vCA}
        s_lshl_b32 s9, s81, 7
        v_add_u32 v{vCA}, s9, v{vCA}
        s_mov_b32 s10, 6144
        s_mov_b32 s11, 0
        ds_read_b128 v[8:11], v{vCA} offset:{L_XN}
        ds_read_b128 v[12:15], v{vCA} offset:{L_XN+16}""")
        for half in range(2):
            for t in range(8):
                a(f"global_load_dwordx4 v[{TI+4*t}:{TI+4*t+3}], v[{vAD}:{vAD+1}], off offset:{3072*(t&1)} {self.mf}")
                if t & 1:
                    a(f"v_lshl_add_u64 v[{vAD}:{vAD+1}], v[{vAD}:{vAD+1}], 0, s[10:11]")
            a("s_waitcnt lgkmcnt(0)")
            for t in range(8):
                Gd = half * 8 + t
                A = vA + 4 * (t & 1)
                self.buildA(A, 8 + Gd // 2, Gd & 1, vSEL)
                a(f"s_waitcnt vmcnt({7-t})\ns_nop 0")
                self.mfma(vACC, A, TI + 4 * t, None if Gd == 0 else vACC)
        a(f"""s_mul_i32 s9, s80, 10240
        s_lshl_b32 s10, s81, 10
        s_add_u32 s9, s9, s10
        s_add_u32 s9, s9, {G1_OFF}
        v_lshlrev_b32 v{vT3}, 4, v{vL}
        s_nop 7""")
        for r in range(4):
            self.tag(vACC + r, vACC + r, vTG, rn=True)
        a(f"buffer_store_dwordx4 v[{vACC}:{vACC+3}], v{vT3}, s[56:59], s9 offen sc1")

    def gen_moe2(self, vL, vT1, vT2, vT3, vT4, vT5, vSEL, vA, vACC, vTG, vCK, TI):
        a = self.a
        DT = TI + 64
        vD = 52
        a(f"""s_cmp_ge_u32 s81, 5
        s_cselect_b32 s83, 1, 0
        s_mul_i32 s84, s83, 5
        s_sub_u32 s84, s81, s84""")
        self.srd(60, 34, 1536 * 1280)
        a(f"""v_mul_u32_u24 v{vD}, {8*1280}, v{vT2}
        v_lshl_add_u32 v{vD}, v{vT1}, 4, v{vD}
        s_mul_i32 s9, s80, {64*1280}
        s_mul_i32 s10, s83, {32*1280}
        s_add_u32 s9, s9, s10
        s_lshl_b32 s10, s84, 8
        s_add_u32 s9, s9, s10
        s_add_u32 s10, s9, {4*1280}""")
        for Gd in range(8):
            a(f"buffer_load_dwordx4 v[{DT+4*Gd}:{DT+4*Gd+3}], v{vD}, s[60:63], s{9 + Gd//4} offen offset:{(Gd%4)*1280} {self.mf}")
        Lg, Lgd = self.lab("g"), self.lab("gd")
        a(f"""s_mul_i32 s9, s80, 10240
        s_add_u32 s9, s9, {G1_OFF}
        s_add_u32 s10, s9, 4096
        s_add_u32 s11, s9, 8192
        v_lshlrev_b32 v{vT3}, 4, v{vL}
        s_mov_b32 s12, {self.poll_max}
        {Lg}:""")
        for t in range(10):
            a(f"buffer_load_dwordx4 v[{TI+4*t}:{TI+4*t+3}], v{vT3}, s[56:59], s{9 + t//4} offen offset:{(t%4)*1024} sc1")
        a("s_waitcnt vmcnt(0)")
        self.chk4(vCK, TI, vTG, first=True, n=40)
        self.poll_tail(vCK, Lg, Lgd, 32)
        for t in range(1, 10):
            for r in range(4):
                a(f"v_add_f32 v{TI+r}, v{TI+r}, v{TI+4*t+r}")
        for r in range(4):
            self.rbf(TI + r)
        a("s_nop 1")
        for r in range(4):
            a(f"v_mov_b32_dpp v{TI+4+r}, v{TI+r} row_ror:8 row_mask:0xf bank_mask:0xf")
        for r in range(4):
            self.sigmoid_like(vT3, TI + r)
            a(f"v_mul_f32 v{TI+r}, v{TI+r}, v{vT3}")
            self.rbf(TI + r)
            a(f"v_mul_f32 v{TI+r}, v{TI+r}, v{TI+4+r}")
        a(f"""v_cvt_pk_bf16_f32 v{TI+4}, v{TI}, v{TI+1}
        v_cvt_pk_bf16_f32 v{TI+5}, v{TI+2}, v{TI+3}
        v_lshrrev_b32 v{vT3}, 1, v{vT2}
        v_lshlrev_b32 v{vT3}, 7, v{vT3}
        v_lshl_add_u32 v{vT3}, v{vT1}, 4, v{vT3}
        v_and_b32 v{vT4}, 1, v{vT2}
        v_lshl_add_u32 v{vT3}, v{vT4}, 3, v{vT3}
        s_mov_b32 exec_lo, 0x00ff00ff
        s_mov_b32 exec_hi, 0x00ff00ff
        ds_write_b64 v{vT3}, v[{TI+4}:{TI+5}] offset:{L_HB}
        s_mov_b64 exec, -1
        v_lshrrev_b32 v{vT3}, 3, v{vT1}
        v_lshlrev_b32 v{vT3}, 7, v{vT3}
        v_lshl_add_u32 v{vT3}, v{vT2}, 4, v{vT3}
        s_lshl_b32 s9, s83, 6
        v_add_u32 v{vT3}, s9, v{vT3}
        s_waitcnt lgkmcnt(0)
        ds_read_b128 v[8:11], v{vT3} offset:{L_HB}
        s_waitcnt lgkmcnt(0)""")
        for Gd in range(8):
            A = vA + 4 * (Gd & 1)
            self.buildA(A, 8 + Gd // 2, Gd & 1, vSEL)
            a("s_nop 1")
            self.mfma(vACC, A, DT + 4 * Gd, None if Gd == 0 else vACC)
        a(f"""v_lshrrev_b32 v{vT3}, 1, v{vT2}
        v_mul_u32_u24 v{vT3}, 2560, v{vT3}
        v_lshl_add_u32 v{vT3}, v{vT1}, 5, v{vT3}
        v_lshl_add_u32 v{vT3}, v{vT4}, 4, v{vT3}
        s_lshl_b32 s9, s80, 1
        s_add_u32 s9, s9, s83
        s_mul_i32 s9, s9, 5120
        s_lshl_b32 s10, s84, 9
        s_add_u32 s9, s9, s10
        s_add_u32 s9, s9, {Y_OFF}
        s_nop 3""")
        for r in range(4):
            self.tag(vACC + r, vACC + r, vTG, rn=True)
        a(f"buffer_store_dwordx4 v[{vACC}:{vACC+3}], v{vT3}, s[56:59], s9 offen sc1\ns_waitcnt vmcnt(0)")

    def text(self):
        hdr = open("recurrent_scan__mha_block_cached__moe_arch_mod__decode.s.ref").read().split("; Override launch")[0]
        self.gen()
        return hdr + f"""; @launch grid=(256,1,1) block=(512,1,1) lds={LDS_BYTES}
.amdgcn_target "amdgcn-amd-amdhsa--gfx950"
.text
.globl {KNAME}
.p2align 8
.type {KNAME},@function
{KNAME}:
""" + "\n".join(self.o) + f"""
.section .rodata,"a"
.p2align 6
.amdhsa_kernel {KNAME}
  .amdhsa_next_free_vgpr 256
  .amdhsa_next_free_sgpr 96
  .amdhsa_accum_offset 256
  .amdhsa_group_segment_fixed_size 0
  .amdhsa_kernarg_size 104
  .amdhsa_user_sgpr_count 2
  .amdhsa_user_sgpr_kernarg_segment_ptr 1
  .amdhsa_system_sgpr_workgroup_id_x 1
  .amdhsa_float_denorm_mode_32 3
.end_amdhsa_kernel
"""


if __name__ == "__main__":
    out = sys.argv[1]
    kw = {}
    for arg in sys.argv[2:]:
        k, v = arg.split("=", 1)
        try:
            v = int(v)
        except ValueError:
            pass
        kw[k] = v
    open(out, "w").write(G(**kw).text())
```

```python
import sys, struct

KNAME = "recurrent_scan__mha_block_cached__moe_arch_mod__decode_kernel"
TB = 201326592
CH = 786432
STEP = 12288

P_OFF = 0
ST_OFF = 256 * 2560
EP_OFF = ST_OFF + 64 * 256
Y_OFF = EP_OFF + 256
QX_OFF = Y_OFF + 48 * 5120
G1_OFF = QX_OFF + 32 * 8 * 2 * 768
WS_USED = G1_OFF + 240 * 1024
STAMP_OFF = 2 << 20
WS_SRD = 4 << 20
assert WS_USED <= STAMP_OFF

L_XN = 0
L_QB = 2560
L_SC = L_QB + 512
OS = 416
L_O = L_SC + 4 * 1152
L_SCALE = L_O + 8 * OS
L_FLAG = L_SCALE + 48
L_HB = L_SCALE + 64
L_WX = (L_HB + 256 + 1023) // 1024 * 1024
LDS_BYTES = L_WX + 4 * 12 * 1024

LOG2E = 0x3fb8aa3b
SCALE_F32 = 0x3d93cd3a
assert struct.unpack("<I", struct.pack("<f", 192 ** -0.5))[0] == SCALE_F32
def f32(x): return "0x%08x" % struct.unpack("<I", struct.pack("<f", x))[0]
NLOG2E = f32(-1.4426950408889634)

sWAVE, sH, sB, sSPLIT, sCHUNK, sBH = 3, 4, 5, 6, 7, 8
sT = 78
sMASK = 79
sWV = 69


class G:
    def __init__(self, R0=16, R1=8, W=4, W0=3, kvflags="nt", wflags="nt", woflags="pl", moeflags="nt", rot=1, stamps=0,
                 poll_max=1 << 18, hprio=3, hprio1=0, hprio2=3, wobatch=8, nowo=0, nomoe=0, noq=0, nob0=0, D=2, GI=4, early=0, nok=0, nopoll=0, hskip=0, stsleep=127, DV=0, earlyV=-1, D0=0, hsleep=0, diagx=0, padto=0, padwg=-1):
        self.padwg = padwg
        self.padto = padto
        self.diagx = diagx
        self.DV = DV or D
        self.earlyV = early if earlyV < 0 else earlyV
        self.D0 = D0 or D
        self.hsleep = hsleep
        self.nok, self.nopoll, self.hskip, self.stsleep = nok, nopoll, hskip, stsleep
        self.D, self.GI, self.early = D, GI, early
        self.nowo, self.nomoe, self.noq, self.nob0 = nowo, nomoe, noq, nob0
        self.hprio1, self.hprio2 = hprio1, hprio2
        self.o = []
        self.R0, self.R1, self.W, self.W0 = R0, R1, W, W0
        fl = lambda x: '' if x == 'pl' else x.replace('_', ' ')
        self.kvf, self.wf, self.mf = fl(kvflags), fl(wflags), fl(moeflags)
        self.wof = fl(woflags)
        self.rot = rot
        self.stamps = stamps
        self.poll_max = poll_max
        self.hprio = hprio
        self.wobatch = wobatch
        self.nlab = 0

    def a(self, s):
        for ln in s.split("\n"):
            ln = ln.strip()
            if ln:
                self.o.append(("" if ln.endswith(":") else "    ") + ln)

    def lab(self, p="L"):
        self.nlab += 1
        return f"{p}_{self.nlab}"

    def srd(self, q, lo, nbytes):
        self.a(f"s_mov_b32 s{q}, s{lo}\ns_mov_b32 s{q+1}, s{lo+1}\ns_mov_b32 s{q+2}, {nbytes}\ns_mov_b32 s{q+3}, 0x20000")

    def dpp(self, op, d, s0, s1, ctrl):
        self.a(f"{op}_dpp v{d}, v{s0}, v{s1} {ctrl} row_mask:0xf bank_mask:0xf")

    def row_reduce(self, op, v, steps=(1, 2, 4, 8)):
        for s in steps:
            self.a("s_nop 1")
            self.dpp(op, v, v, v, f"row_ror:{s}")

    def swap_reduce(self, op, v, t, which):
        self.a(f"v_mov_b32 v{t}, v{v}\ns_nop 1\nv_permlane{which}_swap_b32 v{v}, v{t}\ns_nop 1\n{op} v{v}, v{v}, v{t}")

    def stamp(self, idx, vt, st=90, src=None):
        if not self.stamps:
            return
        if src is None:
            self.a(f"s_memrealtime s[{st}:{st+1}]")
            src = st
        if self.stamps == 2:
            slot = (idx if idx < 15 else 0) + (1 if self.cls == "S" else 7)
            if self.cls == "H" and idx not in (1, 2, 4, 7, 8):
                return
            if self.cls == "H":
                slot = {1: 8, 2: 9, 4: 10, 7: 11, 8: 12}[idx]
            elif idx == 15:
                slot = 1
            else:
                slot = 2 + idx
            inv = f"s_mov_b32 s{st+2}, s{src}"
            Lsk = self.lab("sk")
            if not (self.cls == "H" and idx == 8):
                self.a(f"""s_waitcnt lgkmcnt(0)
                s_cmp_lg_u32 s2, 0
                s_cbranch_scc1 {Lsk}""")
            self.a(f"""s_waitcnt lgkmcnt(0)
            {inv}
            v_mov_b32 v{vt}, s{st+2}
            v_mov_b32 v{vt+2}, {slot*4}
            s_mov_b64 exec, 1
            global_atomic_umax v{vt+2}, v{vt}, s[38:39] sc1
            s_mov_b64 exec, -1
            {Lsk}:""")
            return
        self.a(f"""s_lshl_b32 s{st+2}, s2, 3
        s_add_u32 s{st+2}, s{st+2}, s{sWV}
        s_lshl_b32 s{st+2}, s{st+2}, 7
        s_add_u32 s{st+2}, s{st+2}, {STAMP_OFF + idx*8}
        s_waitcnt lgkmcnt(0)
        v_mov_b32 v{vt}, s{src}
        v_mov_b32 v{vt+1}, s{src+1}
        v_mov_b32 v{vt+2}, 0
        s_mov_b64 exec, 1
        buffer_store_dwordx2 v[{vt}:{vt+1}], v{vt+2}, s[56:59], s{st+2} offen
        s_mov_b64 exec, -1""")

    def selectors(self, vL, base, t0, t1, t2):
        a = self.a
        a(f"""v_and_b32 v{t0}, 1, v{vL}
        v_cmp_eq_u32 vcc, 1, v{t0}
        v_mov_b32 v{t0}, 0x0c0c0100
        v_mov_b32 v{t1}, 0x01000c0c
        v_cndmask_b32 v{t0}, v{t0}, v{t1}, vcc
        v_mov_b32 v{t1}, 0x0c0c0302
        v_mov_b32 v{t2}, 0x03020c0c
        v_cndmask_b32 v{t1}, v{t1}, v{t2}, vcc
        v_bfe_u32 v{t2}, v{vL}, 1, 2""")
        for j in range(4):
            a(f"""v_cmp_eq_u32 vcc, {j}, v{t2}
            v_mov_b32 v{base+j}, 0x0c0c0c0c
            v_mov_b32 v{base+4+j}, 0x0c0c0c0c
            v_cndmask_b32 v{base+j}, v{base+j}, v{t0}, vcc
            v_cndmask_b32 v{base+4+j}, v{base+4+j}, v{t1}, vcc""")

    def buildA(self, A, P, hi, sel):
        for j in range(4):
            self.a(f"v_perm_b32 v{A+j}, v{P}, v{P}, v{sel + (4 if hi else 0) + j}")

    def mfma(self, D, A, B, C):
        c = "0" if C is None else f"v[{C}:{C+3}]"
        self.a(f"v_mfma_f32_16x16x32_bf16 v[{D}:{D+3}], v[{A}:{A+3}], v[{B}:{B+3}], {c}")

    def rbf(self, v):
        self.a(f"v_cvt_pk_bf16_f32 v{v}, v{v}, v{v}\nv_lshlrev_b32 v{v}, 16, v{v}")

    def tag(self, d, s, vTG, rn=False):
        if rn:
            self.a(f"v_add_u32 v{d}, 0x80, v{s}")
            s = d
        self.a(f"v_and_or_b32 v{d}, v{s}, s{sMASK}, v{vTG}")

    def chk4(self, acc, x, vTG, first=False, n=4):
        for r in range(n):
            self.a(f"v_xor_b32 v{x+r}, v{x+r}, v{vTG}")
        for r in range(0, n, 2):
            if first and r == 0:
                self.a(f"v_or_b32 v{acc}, v{x}, v{x+1}")
            else:
                self.a(f"v_or3_b32 v{acc}, v{x+r}, v{x+r+1}, v{acc}")

    def poll_tail(self, acc, Lretry, Ldone, sleep):
        self.a(f"""v_and_b32 v{acc}, 0xff, v{acc}
        v_cmp_ne_u32 vcc, 0, v{acc}
        s_cbranch_vccz {Ldone}""")
        if sleep:
            self.a(f"s_sleep {sleep}")
        self.a(f"""s_sub_u32 s12, s12, 1
        s_cmp_gt_u32 s12, 0
        s_cbranch_scc1 {Lretry}
        {Ldone}:""")

    def merge4(self, X):
        a = self.a
        a(f"""s_nop 1
        v_permlane16_swap_b32 v{X}, v{X+1}
        v_permlane16_swap_b32 v{X+2}, v{X+3}
        s_nop 1
        v_add_f32 v{X}, v{X}, v{X+1}
        v_add_f32 v{X+2}, v{X+2}, v{X+3}
        s_nop 1
        v_permlane32_swap_b32 v{X}, v{X+2}
        s_nop 1
        v_add_f32 v{X}, v{X}, v{X+2}""")
        self.row_reduce("v_add_f32", X, steps=(4, 8))

    def sigmoid_like(self, d, x):
        self.a(f"""v_mul_f32 v{d}, {NLOG2E}, v{x}
        v_exp_f32 v{d}, v{d}
        s_nop 0
        v_add_f32 v{d}, 1.0, v{d}
        v_rcp_f32 v{d}, v{d}
        s_nop 0""")

    def rotcode(self):
        if self.rot < 100:
            return f"s_mul_i32 s9, s7, {self.rot}"
        if self.rot == 100:
            return "s_lshr_b32 s9, s2, 3\ns_lshl_b32 s11, s2, 5\ns_add_u32 s9, s9, s11"
        if self.rot == 101:
            return "s_lshl_b32 s9, s5, 4\ns_add_u32 s9, s9, s7"
        if self.rot == 102:
            return "s_lshr_b32 s9, s7, 6\ns_mul_i32 s9, s9, 17\ns_add_u32 s9, s9, s7"
        raise ValueError

    def epoch_load(self):
        self.a(f"s_load_dword s{sT}, s[40:41], {EP_OFF}")

    def epoch_use(self, vTG):
        self.a(f"""s_add_u32 s{sT}, s{sT}, 1
        s_mov_b32 s{sMASK}, 0xffffff00
        s_and_b32 s9, s{sT}, 0xff
        v_mov_b32 v{vTG}, s9""")

    def gen(self):
        a = self.a
        a(f"""s_cmp_ge_u32 s2, 256
        s_cbranch_scc1 L_end
        s_load_dwordx16 s[16:31], s[0:1], 0
        s_load_dwordx8 s[32:39], s[0:1], 64
        s_load_dwordx2 s[40:41], s[0:1], 96""")
        if self.stamps or self.padto:
            a("s_memrealtime s[86:87]")
        a(f"""v_lshrrev_b32 v1, 6, v0
        v_and_b32 v0, 63, v0
        v_readfirstlane_b32 s3, v1
        s_and_b32 s9, s2, 7
        s_lshr_b32 s10, s2, 3
        s_lshl_b32 s4, s9, 2
        s_lshr_b32 s11, s10, 3
        s_add_u32 s4, s4, s11
        s_bfe_u32 s5, s10, 0x10002
        s_and_b32 s6, s10, 3
        s_lshl_b32 s8, s5, 5
        s_add_u32 s8, s8, s4
        s_lshl_b32 s7, s8, 2
        s_add_u32 s7, s7, s6
        s_mov_b32 s{sWV}, s3
        s_cmp_ge_u32 s3, 4
        s_cbranch_scc1 L_H""")
        self.gen_S()
        a("L_H:")
        self.gen_H()
        a("L_end:\ns_endpgm")

    def gen_S(self):
        self.cls = "S"
        a = self.a
        R0, D, GI = self.R0, self.D, self.GI
        RS = {2: 4, 3: 6}[D]
        R1 = 4
        DV = self.DV
        RSV = {2: 4, 3: 6}[DV]
        D0 = self.D0
        assert (64 - R0) % RS == 0
        NITK = (64 - R0) // RS
        W = max(RS, RSV)
        vL = 0
        vOFF, vSCW, vSCR, vT0, vT1, vT2, vT3, vOW = 1, 2, 3, 4, 5, 6, 7, 8
        vA0, vA1, vTG = 9, 10, 11
        vQ = 12
        vSEL = 24
        vACC = 32
        vA = 44
        vP = 52
        RING = 64
        assert RING + R0 * 12 <= 256
        sOFF, sBEG, sEND, sIT, sCNT = 42, 43, 64, 66, 65
        a(f"""v_lshrrev_b32 v{vT0}, 3, v{vL}
        v_and_b32 v{vT1}, 7, v{vL}
        v_mul_u32_u24 v{vOFF}, 384, v{vT0}
        v_lshl_add_u32 v{vOFF}, v{vT1}, 4, v{vOFF}
        s_mul_i32 s9, s3, 3072""")
        if GI == 4:
            stepb = 4 * STEP
            a(f"""s_mul_i32 s11, s6, {STEP}
            s_add_u32 s9, s9, s11
            s_mul_i32 s{sBEG}, s8, {4*CH}
            s_add_u32 s{sEND}, s{sBEG}, {4*CH}
            v_add_u32 v{vOFF}, s9, v{vOFF}
            s_mul_i32 s9, s8, {self.rot}""")
        else:
            stepb = STEP
            a(f"""v_add_u32 v{vOFF}, s9, v{vOFF}
            s_mul_i32 s{sBEG}, s7, {CH}
            s_add_u32 s{sEND}, s{sBEG}, {CH}
            {self.rotcode()}""")
        a(f"""s_and_b32 s9, s9, 63
        s_mul_i32 s9, s9, {stepb}
        s_add_u32 s{sOFF}, s{sBEG}, s9
        s_mov_b32 s{sCNT}, 0
        s_waitcnt lgkmcnt(0)""")
        self.srd(52, 18, TB)

        def load(slot, sw=None):
            for j in range(3):
                r = RING + (slot * 3 + j) * 4
                a(f"buffer_load_dwordx4 v[{r}:{r+3}], v{vOFF}, s[52:55], s{sOFF} offen offset:{128*j} {self.kvf}")
            a(f"""s_add_u32 s{sOFF}, s{sOFF}, {stepb}
            s_cmp_ge_u32 s{sOFF}, s{sEND}
            s_cselect_b32 s{sOFF}, s{sBEG}, s{sOFF}""")
            if sw == "kv":
                a(f"""s_cmp_eq_u32 s{sIT}, {NITK-1}
                s_cselect_b32 s52, s20, s52
                s_cselect_b32 s53, s21, s53""")
            elif sw is not None:
                a(f"""s_cmp_eq_u32 s{sIT}, {sw}
                s_cselect_b32 s54, 0, s54""")
        thr = 3 * (D - 1) + self.early
        for s in range(D0):
            load(s)
        self.epoch_load()
        self.srd(56, 40, WS_SRD)
        self.selectors(vL, vSEL, vT2, vT3, vOW)
        a(f"""s_mul_i32 s9, s3, 1152
        s_add_u32 s9, s9, {L_SC}
        v_mul_u32_u24 v{vSCW}, 144, v{vT0}
        v_add_u32 v{vSCW}, s9, v{vSCW}
        v_mov_b32 v{vSCR}, v{vSCW}""")
        a(f"""v_lshrrev_b32 v{vT2}, 5, v{vL}
        s_lshl_b32 s9, s3, 1
        v_add_u32 v{vT2}, s9, v{vT2}
        v_mul_u32_u24 v{vOW}, {OS}, v{vT2}
        v_lshl_add_u32 v{vOW}, v{vT1}, 4, v{vOW}
        v_bfe_u32 v{vT2}, v{vL}, 4, 1
        v_lshl_add_u32 v{vOW}, v{vT2}, 3, v{vOW}
        v_add_u32 v{vOW}, {L_O}, v{vOW}
        v_lshlrev_b32 v{vT2}, 4, v{vT1}""")
        for s in range(D0, R0):
            a(f"s_waitcnt vmcnt({3*(D0-1)})")
            load(s)
        a("s_waitcnt lgkmcnt(0)")
        self.epoch_use(vTG)
        self.stamp(15, vA, src=86)
        self.stamp(0, vA)
        a("s_barrier")
        self.stamp(1, vA)
        for j in range(3):
            a(f"ds_read_b128 v[{vQ+4*j}:{vQ+4*j+3}], v{vT2} offset:{L_QB + 128*j}")
        a(f"s_mov_b32 s{sIT}, 0\ns_mov_b32 s10, {SCALE_F32}\ns_waitcnt lgkmcnt(0)")

        def kpair(s, off):
            ra, rb = RING + s * 12, RING + (s + 1) * 12
            for i in range(12):
                c0 = "0" if i == 0 else f"v{vA0}"
                c1 = "0" if i == 0 else f"v{vA1}"
                a(f"v_dot2_f32_bf16 v{vA0}, v{ra+i}, v{vQ+i}, {c0}")
                a(f"v_dot2_f32_bf16 v{vA1}, v{rb+i}, v{vQ+i}, {c1}")
            a("s_nop 2")
            self.dpp("v_add_f32", vA0, vA0, vA0, "quad_perm:[1,0,3,2]")
            self.dpp("v_add_f32", vA1, vA1, vA1, "quad_perm:[1,0,3,2]")
            a("s_nop 0")
            self.dpp("v_add_f32", vA0, vA0, vA0, "quad_perm:[2,3,0,1]")
            self.dpp("v_add_f32", vA1, vA1, vA1, "quad_perm:[2,3,0,1]")
            a("s_nop 0")
            self.dpp("v_add_f32", vA0, vA0, vA0, "row_half_mirror")
            self.dpp("v_add_f32", vA1, vA1, vA1, "row_half_mirror")
            a(f"""v_cvt_pk_bf16_f32 v{vT2}, v{vA0}, v{vA1}
            v_lshlrev_b32 v{vA0}, 16, v{vT2}
            v_and_b32 v{vA1}, 0xffff0000, v{vT2}
            v_mul_f32 v{vA0}, s10, v{vA0}
            v_mul_f32 v{vA1}, s10, v{vA1}
            v_cvt_pk_bf16_f32 v{vT2}, v{vA0}, v{vA1}
            ds_write_b32 v{vSCW}, v{vT2} offset:{off}""")
        npairs = R0 // 2
        issue_after = {0: 0, 3: 1} if D == 2 else {0: 0, 2: 1, 4: 2}
        issued = 0
        for p in range(npairs):
            a(f"s_waitcnt vmcnt({3 * ((R0 - 2*p - 2) + issued)})")
            kpair(2 * p, p * 4)
            if p in issue_after:
                a(f"s_waitcnt vmcnt({thr})")
                load(issue_after[p])
                issued += 1
        a(f"v_add_u32 v{vSCW}, {2*R0}, v{vSCW}")
        a("L_kloop:")
        for s in range(RS):
            a(f"s_waitcnt vmcnt({thr})")
            load((s + D) % RS, "kv" if s == RS - D - 1 else None)
            if s & 1:
                if self.early:
                    a(f"s_waitcnt vmcnt({3*D})")
                if not self.nok:
                    kpair(s - 1, (s // 2) * 4)
        a(f"""v_add_u32 v{vSCW}, {2*RS}, v{vSCW}
        s_add_u32 s{sIT}, s{sIT}, 1
        s_cmp_lt_u32 s{sIT}, {NITK}
        s_cbranch_scc1 L_kloop""")
        for s in range(D, R1):
            load(s)
        self.stamp(2, vA)
        F = 32
        a(f"""v_lshl_add_u32 v{vT2}, v{vT1}, 4, v{vSCR}
        s_waitcnt lgkmcnt(0)
        ds_read_b128 v[40:43], v{vT2}
        s_waitcnt lgkmcnt(0)""")
        for i in range(4):
            a(f"v_lshlrev_b32 v{F+2*i}, 16, v{40+i}\nv_and_b32 v{F+2*i+1}, 0xffff0000, v{40+i}")
        a(f"""v_max3_f32 v{vA0}, v{F}, v{F+1}, v{F+2}
        v_max3_f32 v{vA0}, v{vA0}, v{F+3}, v{F+4}
        v_max3_f32 v{vA0}, v{vA0}, v{F+5}, v{F+6}
        v_max_f32 v{vA0}, v{vA0}, v{F+7}""")
        self.row_reduce("v_max_f32", vA0)
        self.swap_reduce("v_max_f32", vA0, vT3, 16)
        self.swap_reduce("v_max_f32", vA0, vT3, 32)
        for i in range(8):
            a(f"v_sub_f32 v{F+i}, v{F+i}, v{vA0}\nv_mul_f32 v{F+i}, {LOG2E}, v{F+i}")
        for i in range(8):
            a(f"v_exp_f32 v{F+i}, v{F+i}")
        a("s_nop 0")
        a(f"v_add_f32 v{vA1}, v{F}, v{F+1}")
        for i in range(2, 8):
            a(f"v_add_f32 v{vA1}, v{vA1}, v{F+i}")
        for i in range(4):
            a(f"v_cvt_pk_bf16_f32 v{40+i}, v{F+2*i}, v{F+2*i+1}")
        a(f"ds_write_b128 v{vT2}, v[40:43]")
        self.row_reduce("v_add_f32", vA1)
        self.swap_reduce("v_add_f32", vA1, vT3, 16)
        self.swap_reduce("v_add_f32", vA1, vT3, 32)
        a("s_waitcnt lgkmcnt(0)")
        def pread(n):
            if n == 2: a(f"ds_read_b64 v[{vP}:{vP+1}], v{vSCR}")
            elif n == 3: a(f"ds_read_b32 v{vP}, v{vSCR}\nds_read_b32 v{vP+1}, v{vSCR} offset:4\nds_read_b32 v{vP+2}, v{vSCR} offset:8")
            else: raise ValueError(n)
            a(f"v_add_u32 v{vSCR}, {4*n}, v{vSCR}")
        pread(R1 // 2)
        self.tag(44, vA0, vTG)
        self.tag(45, vA1, vTG)
        if self.diagx:
            a(f"s_getreg_b32 s9, hwreg(HW_REG_XCC_ID, 0, 4)\ns_lshl_b32 s9, s9, 8\nv_or_b32 v44, s9, v44")
        a(f"""v_mov_b32 v46, s{sT}
        v_mov_b32 v47, s{sT}
        s_lshl_b32 s9, s7, 6
        s_lshl_b32 s11, s3, 4
        s_add_u32 s9, s9, s11
        s_add_u32 s9, s9, {ST_OFF}
        v_mov_b32 v{vA0}, 0
        s_mov_b64 exec, 1
        buffer_store_dwordx4 v[44:47], v{vA0}, s[56:59], s9 offen sc1
        s_mov_b64 exec, -1""")
        for i in range(12):
            a(f"v_mov_b32 v{vACC+i}, 0")
        a(f"s_mov_b32 s{sIT}, 0\ns_waitcnt lgkmcnt(0)")
        self.stamp(3, 60)

        def vmf(g, slot):
            A = vA + 4 * ((g + 1) & 1)
            for j in range(3):
                self.mfma(vACC + 4 * j, A, RING + (slot * 3 + j) * 4, vACC + 4 * j)
        def vA_(g):
            self.buildA(vA + 4 * ((g + 1) & 1), vP + g // 2, g & 1, vSEL)
        thrV = 3 * (DV - 1) + self.earlyV
        NITV = (64 - R1) // RSV
        assert (64 - R1) % RSV == 0
        issued = 0
        for g in range(R1):
            vA_(g)
            if g == R1 - 1:
                pread(RSV // 2)
            if g >= R1 - DV:
                a(f"s_waitcnt vmcnt({thrV})")
                load((R1 + issued) % RSV)
                issued += 1
                if self.earlyV:
                    a(f"s_waitcnt vmcnt({3*DV})")
            else:
                a(f"s_waitcnt vmcnt({3*(R1 - g - 1)})\ns_nop 0")
            vmf(g, g)
        a("L_vloop:\ns_waitcnt lgkmcnt(0)")
        for s in range(RSV):
            slot = (R1 + s) % RSV
            vA_(s)
            if s == RSV - 1:
                pread(RSV // 2)
            a(f"s_waitcnt vmcnt({thrV})")
            load((slot + DV) % RSV, (NITV - 1) if s == RSV - DV - 1 else None)
            if self.earlyV:
                a(f"s_waitcnt vmcnt({3*DV})")
            vmf(s, slot)
        a(f"""s_add_u32 s{sIT}, s{sIT}, 1
        s_cmp_lt_u32 s{sIT}, {NITV}
        s_cbranch_scc1 L_vloop
        s_nop 3""")
        a("s_nop 3")
        for j in range(3):
            a(f"""v_cvt_pk_bf16_f32 v{vA+2*j}, v{vACC+4*j}, v{vACC+4*j+1}
            v_cvt_pk_bf16_f32 v{vA+2*j+1}, v{vACC+4*j+2}, v{vACC+4*j+3}""")
        a("s_mov_b32 exec_lo, 0x00ff00ff\ns_mov_b32 exec_hi, 0xff00ff00")
        for j in range(3):
            a(f"ds_write_b64 v{vOW}, v[{vA+2*j}:{vA+2*j+1}] offset:{128*j}")
        a("s_mov_b64 exec, -1")
        a(f"""v_and_b32 v{vT0}, 7, v{vL}
        v_mul_u32_u24 v{vT0}, {OS}, v{vT0}
        v_lshrrev_b32 v{vT1}, 4, v{vL}
        v_lshl_add_u32 v{vT0}, v{vT1}, 4, v{vT0}
        v_and_b32 v{vT2}, 1, v{vT1}
        v_and_b32 v{vT3}, 15, v{vL}
        v_lshl_add_u32 v{vT3}, v{vT3}, 1, v{vT2}
        v_lshlrev_b32 v{vT3}, 2, v{vT3}
        v_lshlrev_b32 v{vT2}, 3, v{vT2}
        s_mul_i32 s9, s3, 12288
        s_add_u32 s9, s9, {L_WX}
        v_lshlrev_b32 v{vT1}, 4, v{vL}
        v_add_u32 v{vT1}, s9, v{vT1}
        s_mul_i32 s9, s7, 2560
        s_lshl_b32 s11, s3, 7
        s_add_u32 s9, s9, s11
        s_add_u32 s9, s9, {P_OFF + 2048}
        s_waitcnt lgkmcnt(0)""")
        self.stamp(4, 12)
        a("s_barrier")
        AA = RING + 12 * W
        BB = AA + 24
        assert BB + 48 <= 256
        D0, D1, SCL = 32, 36, 40
        for k in range(6):
            a(f"ds_read_b128 v[{AA+4*k}:{AA+4*k+3}], v{vT0} offset:{L_O + 64*k}")
            a(f"ds_read_b128 v[{BB+8*k}:{BB+8*k+3}], v{vT1} offset:{2048*k}")
            a(f"ds_read_b128 v[{BB+8*k+4}:{BB+8*k+7}], v{vT1} offset:{2048*k+1024}")
            if k == 3:
                a("s_waitcnt lgkmcnt(6)")
        a(f"ds_read_b64 v[{SCL}:{SCL+1}], v{vT2} offset:{L_SCALE}")
        for k in range(6):
            a(f"s_waitcnt lgkmcnt({min(15, 3*(5-k)+1)})")
            self.mfma(D0, AA + 4 * k, BB + 8 * k, None if k == 0 else D0)
            self.mfma(D1, AA + 4 * k, BB + 8 * k + 4, None if k == 0 else D1)
        a("s_waitcnt lgkmcnt(0)\ns_nop 7")
        for D in (D0, D1):
            a(f"""v_add_f32 v{D}, v{D}, v{D+1}
            v_add_f32 v{D+2}, v{D+2}, v{D+3}
            v_mul_f32 v{D}, v{D}, v{SCL}
            v_fmac_f32 v{D}, v{D+2}, v{SCL+1}""")
        a(f"""s_nop 1
        v_permlane16_swap_b32 v{D0}, v{D1}
        s_nop 1
        v_add_f32 v{D0}, v{D0}, v{D1}""")
        self.tag(D0, D0, vTG)
        a(f"""s_mov_b32 exec_hi, 0
        buffer_store_dword v{D0}, v{vT3}, s[56:59], s9 offen sc1
        s_mov_b64 exec, -1""")
        self.stamp(5, 12)
        a("s_endpgm")

    def gen_H(self):
        self.cls = "H"
        a = self.a
        vL = 0
        vT0, vT1, vT2, vT3, vT4, vT5, vW = 1, 2, 3, 4, 5, 6, 7
        vX = 8
        vSEL = 18
        vTG = 26
        vCK = 27
        vF = 28
        vA, vACC = 28, 36
        vE = 52
        TI = 64
        if self.hprio:
            a(f"s_setprio {self.hprio}")
        a("s_sub_u32 s3, s3, 4")
        a(f"""s_and_b32 s14, s10, 7
        v_lshrrev_b32 v{vT0}, 5, v{vL}
        v_mul_u32_u24 v{vT0}, 1280, v{vT0}
        v_and_b32 v{vT1}, 31, v{vL}
        v_lshl_add_u32 v{vT0}, v{vT1}, 3, v{vT0}
        v_lshrrev_b32 v{vT1}, 3, v{vL}
        v_mul_u32_u24 v{vW}, {10*12288}, v{vT1}
        v_and_b32 v{vT2}, 7, v{vL}
        v_lshl_add_u32 v{vW}, v{vT2}, 4, v{vW}
        s_mul_i32 s9, s4, 384
        s_mul_i32 s11, s14, {80*12288}
        s_add_u32 s9, s9, s11
        s_lshl_b32 s11, s3, 7
        s_add_u32 s9, s9, s11
        v_add_u32 v{vW}, s9, v{vW}
        s_waitcnt lgkmcnt(0)""")
        self.srd(60, 16, 2560)
        self.srd(44, 22, 640 * 12288)
        for t in range(5):
            a(f"buffer_load_dwordx2 v[{vX+2*t}:{vX+2*t+1}], v{vT0}, s[60:63], 0 offen offset:{256*t}")
        a("s_cmp_eq_u32 s3, 3\ns_cselect_b32 s46, 0, s46")
        for G in range(10):
            a(f"s_mov_b32 s9, {G*12288}")
            a(f"buffer_load_dwordx4 v[{TI+4*G}:{TI+4*G+3}], v{vW}, s[44:47], s9 offen {self.wf}")
        self.epoch_load()
        self.srd(56, 40, WS_SRD)
        self.selectors(vL, vSEL, vT3, vT4, vT5)
        a(f"s_mov_b32 s9, 0x3f803f80\ns_waitcnt vmcnt(10)")
        self.stamp(11, 60)
        for i in range(10):
            c = "0" if i == 0 else f"v{vT3}"
            a(f"v_dot2_f32_bf16 v{vT3}, v{vX+i}, s9, {c}")
        for i in range(2):
            a(f"v_lshlrev_b32 v{vF+2*i}, 16, v{vX+i}\nv_and_b32 v{vF+2*i+1}, 0xffff0000, v{vX+i}")
        k = 2
        for st in (1, 2, 4, 8):
            self.dpp("v_add_f32", vT3, vT3, vT3, f"row_ror:{st}")
            a(f"v_lshlrev_b32 v{vF+2*k}, 16, v{vX+k}\nv_and_b32 v{vF+2*k+1}, 0xffff0000, v{vX+k}")
            k += 1
        a(f"v_mov_b32 v{vT4}, v{vT3}")
        a(f"v_lshlrev_b32 v{vF+2*k}, 16, v{vX+k}\nv_and_b32 v{vF+2*k+1}, 0xffff0000, v{vX+k}")
        k += 1
        a(f"v_permlane16_swap_b32 v{vT3}, v{vT4}")
        while k < 10:
            a(f"v_lshlrev_b32 v{vF+2*k}, 16, v{vX+k}\nv_and_b32 v{vF+2*k+1}, 0xffff0000, v{vX+k}")
            k += 1
        a(f"v_add_f32 v{vT3}, v{vT3}, v{vT4}")
        def div640(v, t):
            a(f"""v_mul_f32 v{t}, {f32(1/640)}, v{v}
            v_fmac_f32 v{v}, {f32(-640.0)}, v{t}
            v_fmac_f32 v{t}, {f32(1/640)}, v{v}""")
        M2 = vE
        D2 = vE + 2
        Q2 = vE + 4
        div640(vT3, M2)
        a(f"v_mov_b32 v{M2+1}, v{M2}")
        for i in range(10):
            a(f"v_pk_add_f32 v[{D2}:{D2+1}], v[{vF+2*i}:{vF+2*i+1}], v[{M2}:{M2+1}] neg_lo:[0,1] neg_hi:[0,1]")
            if i == 0:
                a(f"v_pk_mul_f32 v[{Q2}:{Q2+1}], v[{D2}:{D2+1}], v[{D2}:{D2+1}]")
            else:
                a(f"v_pk_fma_f32 v[{Q2}:{Q2+1}], v[{D2}:{D2+1}], v[{D2}:{D2+1}], v[{Q2}:{Q2+1}]")
        a(f"v_add_f32 v{vT4}, v{Q2}, v{Q2+1}")
        self.rbf(M2)
        a(f"v_mov_b32 v{M2+1}, v{M2}")
        def xc(i):
            a(f"""v_pk_add_f32 v[{vF+2*i}:{vF+2*i+1}], v[{vF+2*i}:{vF+2*i+1}], v[{M2}:{M2+1}] neg_lo:[0,1] neg_hi:[0,1]
            v_cvt_pk_bf16_f32 v{vF+2*i+1}, v{vF+2*i}, v{vF+2*i+1}
            v_lshlrev_b32 v{vF+2*i}, 16, v{vF+2*i+1}
            v_and_b32 v{vF+2*i+1}, 0xffff0000, v{vF+2*i+1}""")
        k = 0
        for st in (1, 2, 4, 8):
            self.dpp("v_add_f32", vT4, vT4, vT4, f"row_ror:{st}")
            xc(k); k += 1
        a(f"v_mov_b32 v{vT5}, v{vT4}")
        xc(k); k += 1
        a(f"v_permlane16_swap_b32 v{vT4}, v{vT5}")
        xc(k); k += 1
        a(f"v_add_f32 v{vT4}, v{vT4}, v{vT5}")
        div640(vT4, vT5)
        self.rbf(vT5)
        a(f"v_add_f32 v{vT5}, {f32(1e-5)}, v{vT5}")
        self.rbf(vT5)
        a(f"v_sqrt_f32 v{vT5}, v{vT5}")
        xc(k); k += 1
        self.rbf(vT5)
        a(f"v_rcp_f32 v{D2}, v{vT5}")
        xc(k); k += 1
        a(f"v_mov_b32 v{D2+1}, v{D2}\nv_mov_b32 v{Q2}, v{vT5}\nv_mov_b32 v{Q2+1}, v{vT5}")
        while k < 10:
            xc(k); k += 1
        R2 = vE + 6
        for i in range(10):
            f = vF + 2 * i
            a(f"""v_pk_mul_f32 v[{R2}:{R2+1}], v[{f}:{f+1}], v[{D2}:{D2+1}]
            v_pk_fma_f32 v[{f}:{f+1}], v[{R2}:{R2+1}], v[{Q2}:{Q2+1}], v[{f}:{f+1}] neg_lo:[1,0,0] neg_hi:[1,0,0]
            v_pk_fma_f32 v[{R2}:{R2+1}], v[{f}:{f+1}], v[{D2}:{D2+1}], v[{R2}:{R2+1}]
            v_cvt_pk_bf16_f32 v{vX+i}, v{R2}, v{R2+1}""")
            if i & 1:
                t = i // 2
                a(f"ds_write_b64 v{vT0}, v[{vX+2*t}:{vX+2*t+1}] offset:{L_XN + 256*t}")
        a("s_waitcnt lgkmcnt(0)")
        self.epoch_use(vTG)
        self.stamp(15, 60, src=86)
        self.stamp(1, 60)
        a("s_cmp_eq_u32 s3, 3\ns_cbranch_scc1 L_qcons")
        a(f"""v_mul_u32_u24 v{vT3}, 20, v{vT1}
        s_mul_i32 s9, s14, 160
        v_add_u32 v{vT3}, s9, v{vT3}""")
        for bb in range(2):
            for t in range(5):
                a(f"ds_read_b32 v{vX+5*bb+t}, v{vT3} offset:{L_XN + 1280*bb + 4*t}")
        a(f"""v_lshrrev_b32 v{vT4}, 5, v{vL}
        v_mul_u32_u24 v{vT4}, 768, v{vT4}
        v_lshl_add_u32 v{vT4}, v{vT2}, 5, v{vT4}
        v_bfe_u32 v{vT5}, v{vL}, 4, 1
        v_lshl_add_u32 v{vT4}, v{vT5}, 4, v{vT4}
        s_lshl_b32 s9, s4, 3
        s_add_u32 s9, s9, s14
        s_mul_i32 s9, s9, 1536
        s_lshl_b32 s11, s3, 8
        s_add_u32 s9, s9, s11
        s_add_u32 s9, s9, {QX_OFF}
        s_waitcnt lgkmcnt(0)""")
        for G in range(10):
            self.buildA(vA, vX + G // 2, G & 1, vSEL)
            self.buildA(vA + 4, vX + 5 + G // 2, G & 1, vSEL)
            a(f"s_waitcnt vmcnt({9-G})\ns_nop 0")
            self.mfma(vACC, vA, TI + 4 * G, None if G == 0 else vACC)
            self.mfma(vACC + 4, vA + 4, TI + 4 * G, None if G == 0 else vACC + 4)
        a("s_nop 7")
        for r in range(4):
            a(f"v_permlane32_swap_b32 v{vACC+r}, v{vACC+4+r}")
        a("s_nop 1")
        for r in range(4):
            self.dpp("v_add_f32", vACC + r, vACC + 4 + r, vACC + r, "row_ror:8")
        for r in range(4):
            self.tag(vACC + r, vACC + r, vTG, rn=True)
        a(f"""s_mov_b32 exec_lo, 0x00ff00ff
        s_mov_b32 exec_hi, 0x00ff00ff
        buffer_store_dwordx4 v[{vACC}:{vACC+3}], v{vT4}, s[56:59], s9 offen sc1
        s_mov_b64 exec, -1
        s_branch L_qdone
        L_qcons:""")
        Lq, Lqd = self.lab("q"), self.lab("qd")
        a(f"""v_lshlrev_b32 v{vT3}, 4, v{vL}
        v_lshlrev_b32 v{vT4}, 3, v{vL}
        s_mul_i32 s9, s4, {8*1536}
        s_mul_i32 s11, s5, 768
        s_add_u32 s9, s9, s11
        s_add_u32 s70, s9, {QX_OFF}
        s_add_u32 s71, s70, 3072
        s_add_u32 s72, s70, 6144
        s_add_u32 s73, s70, 9216
        s_mov_b32 s12, {self.poll_max}
        s_mov_b32 exec_hi, 0xffff
        {Lq}:""")
        for k in range(8):
            a(f"buffer_load_dwordx4 v[{TI+4*k}:{TI+4*k+3}], v{vT3}, s[56:59], s{70+k//2} offen offset:{1536*(k&1)} sc1")
        for k in range(8):
            a(f"s_waitcnt vmcnt({7-k})")
            self.chk4(vCK, TI + 4 * k, vTG, first=(k == 0))
            if k:
                for r in range(4):
                    a(f"v_add_f32 v{TI+r}, v{TI+r}, v{TI+4*k+r}")
        self.poll_tail(vCK, Lq, Lqd, 0)
        a(f"""v_cvt_pk_bf16_f32 v{TI}, v{TI}, v{TI+1}
        v_cvt_pk_bf16_f32 v{TI+1}, v{TI+2}, v{TI+3}
        ds_write_b64 v{vT4}, v[{TI}:{TI+1}] offset:{L_QB}
        s_mov_b64 exec, -1
        s_waitcnt lgkmcnt(0)
        L_qdone:""")
        self.stamp(2, 60)
        a(f"s_setprio {self.hprio1}")
        a("s_barrier")
        a(f"v_and_b32 v{vT1}, 15, v{vL}\nv_lshrrev_b32 v{vT2}, 4, v{vL}")
        if self.hskip:
            a("s_mov_b32 s68, 0\ns_branch L_noown")
        a(f"""s_mul_hi_u32 s81, s2, {(2**32 + 23)//24}
        s_mul_i32 s80, s81, 24
        s_sub_u32 s80, s2, s80
        s_mov_b32 s82, 0
        s_cmp_ge_u32 s2, {0 if self.nomoe else 240}
        s_cbranch_scc1 L_nomoe1
        s_cmp_lg_u32 s3, 1
        s_cbranch_scc1 L_nomoe1
        s_mov_b32 s82, 1""")
        self.gen_moe1(vL, vT1, vT2, vT3, vT4, vT5, vSEL, vA, vACC, vTG, TI)
        a("L_nomoe1:")
        self.srd(44, 24, 0 if self.nowo else 6144 * 1280)
        a(f"""v_mul_u32_u24 v{vW}, {8*1280}, v{vT2}
        s_mul_i32 s9, s4, {192*1280}
        v_add_u32 v{vW}, s9, v{vW}
        v_lshl_add_u32 v{vT3}, v{vT1}, 2, v{vW}
        s_lshl_b32 s9, s3, 6
        s_add_u32 s9, s9, 1024
        v_add_u32 v{vT3}, s9, v{vT3}
        v_lshl_add_u32 v{vW}, v{vT1}, 4, v{vW}
        s_lshl_b32 s9, s3, 8
        v_add_u32 v{vW}, s9, v{vW}
        s_mov_b32 s14, 0x05040100
        s_mov_b32 s15, 0x07060302
        s_mul_i32 s9, s3, 12288
        s_add_u32 s9, s9, {L_WX}
        v_lshlrev_b32 v{vT4}, 4, v{vL}
        v_add_u32 v{vT4}, s9, v{vT4}""")
        for K0 in range(0, 6, 2):
            for K in (K0, K0 + 1):
                for e in range(8):
                    if e % 4 == 0:
                        a(f"s_mov_b32 s9, {(32*K + e)*1280}")
                    a(f"buffer_load_dword v{TI+8*K+e}, v{vT3}, s[44:47], s9 offen offset:{(e%4)*1280} {self.wof}")
            for K in (K0, K0 + 1):
                a(f"s_waitcnt vmcnt({8*(K0+1-K)})")
                d = TI + 48 + 8 * K
                for t in range(4):
                    a(f"v_perm_b32 v{d+t}, v{TI+8*K+2*t+1}, v{TI+8*K+2*t}, s14")
                    a(f"v_perm_b32 v{d+4+t}, v{TI+8*K+2*t+1}, v{TI+8*K+2*t}, s15")
                a(f"ds_write_b128 v{vT4}, v[{d}:{d+3}] offset:{2048*K}")
                a(f"ds_write_b128 v{vT4}, v[{d+4}:{d+7}] offset:{2048*K+1024}")
        a("s_waitcnt lgkmcnt(0)")
        self.stamp(3, 60)
        a("s_cmp_eq_u32 s82, 0\ns_cbranch_scc1 L_nomoe2")
        self.gen_moe2(vL, vT1, vT2, vT3, vT4, vT5, vSEL, vA, vACC, vTG, vCK, TI)
        self.stamp(9, 60)
        a("L_nomoe2:")
        def REG(k): return 32 + 32 * k
        for K in range(6):
            for e in range(8):
                if e % 4 == 0:
                    a(f"s_mov_b32 s9, {(32*K + e)*1280}")
                r = REG(0) + 4 * e
                a(f"buffer_load_dwordx4 v[{r}:{r+3}], v{vW}, s[44:47], s9 offen offset:{(e%4)*1280} {self.wof}")
                if self.wobatch == 4 and e == 3:
                    a("s_waitcnt vmcnt(0)")
            s, d = REG(0), REG(K + 1)
            for t in range(4):
                a(f"s_waitcnt vmcnt({6-2*t})")
                for dd in range(4):
                    a(f"v_perm_b32 v{d+(2*dd)*4+t}, v{s+(2*t+1)*4+dd}, v{s+(2*t)*4+dd}, s14")
                    a(f"v_perm_b32 v{d+(2*dd+1)*4+t}, v{s+(2*t+1)*4+dd}, v{s+(2*t)*4+dd}, s15")
        vG, vXC, vOUTA, vPA, vSC = 8, 9, 10, 11, 12
        vAR, vST = 14, 15
        Wk = 32
        self.stamp(4, 60)
        a(f"""s_cmp_lg_u32 s3, 3
        s_cbranch_scc1 L_noep
        s_cmp_lg_u32 s2, 0
        s_cbranch_scc1 L_noep""")
        Lc, Lcd = self.lab("c0"), self.lab("c0d")
        a(f"""s_mov_b32 s12, {self.poll_max}
        v_lshlrev_b32 v{Wk+8}, 6, v{vL}
        v_mov_b32 v{Wk+9}, s{sT}
        s_mov_b32 s9, {ST_OFF + 8}
        s_mov_b32 s10, {ST_OFF + 8 + 4096}
        s_mov_b32 s11, {ST_OFF + 8 + 8192}
        s_mov_b32 s13, {ST_OFF + 8 + 12288}
        {Lc}:
        s_sleep 127
        buffer_load_dwordx2 v[{Wk}:{Wk+1}], v{Wk+8}, s[56:59], s9 offen sc1
        buffer_load_dwordx2 v[{Wk+2}:{Wk+3}], v{Wk+8}, s[56:59], s10 offen sc1
        buffer_load_dwordx2 v[{Wk+4}:{Wk+5}], v{Wk+8}, s[56:59], s11 offen sc1
        buffer_load_dwordx2 v[{Wk+6}:{Wk+7}], v{Wk+8}, s[56:59], s13 offen sc1
        s_waitcnt vmcnt(0)""")
        self.chk4(vCK, Wk, Wk + 9, first=True, n=8)
        a(f"""v_cmp_ne_u32 vcc, 0, v{vCK}
        s_cbranch_vccz {Lcd}
        s_sub_u32 s12, s12, 1
        s_cmp_gt_u32 s12, 0
        s_cbranch_scc1 {Lc}
        {Lcd}:
        v_mov_b32 v{Wk}, 0
        s_mov_b32 s9, {EP_OFF}
        s_mov_b64 exec, 1
        buffer_store_dword v{Wk+9}, v{Wk}, s[56:59], s9 offen sc1
        s_mov_b64 exec, -1
        L_noep:""")
        a("s_cmp_lg_u32 s3, 0\ns_cbranch_scc1 L_nostat")
        if self.nopoll:
            a("s_branch L_nostat")
        Ls, Lsd = self.lab("st"), self.lab("std")
        a(f"""s_lshl_b32 s9, s8, 8
        s_add_u32 s9, s9, {ST_OFF}
        v_lshlrev_b32 v{Wk+4}, 4, v{vT1}
        v_mov_b32 v{Wk+5}, s{sT}
        s_mov_b32 s12, {self.poll_max}
        {Ls}:
        buffer_load_dwordx4 v[{Wk}:{Wk+3}], v{Wk+4}, s[56:59], s9 offen sc1
        s_waitcnt vmcnt(0)""")
        self.chk4(vCK, Wk, vTG, first=True, n=2)
        a(f"""v_and_b32 v{vCK}, 0xff, v{vCK}
        v_bitop3_b32 v{vCK}, v{Wk+2}, v{Wk+5}, v{vCK} bitop3:0xbe
        v_bitop3_b32 v{vCK}, v{Wk+3}, v{Wk+5}, v{vCK} bitop3:0xbe
        v_cmp_ne_u32 vcc, 0, v{vCK}
        s_cbranch_vccz {Lsd}
        s_sleep {self.stsleep}
        s_sub_u32 s12, s12, 1
        s_cmp_gt_u32 s12, 0
        s_cbranch_scc1 {Ls}
        {Lsd}:""")
        if self.diagx:
            a(f"""v_bfe_u32 v{Wk+2}, v{Wk}, 8, 4
            v_and_b32 v{Wk}, 0xffff0000, v{Wk}
            s_getreg_b32 s9, hwreg(HW_REG_XCC_ID, 0, 4)
            v_cmp_ne_u32 vcc, s9, v{Wk+2}
            s_cbranch_vccz L_dx
            s_mov_b32 s12, 40
            L_dx1:
            s_sleep 127
            s_sub_u32 s12, s12, 1
            s_cmp_gt_u32 s12, 0
            s_cbranch_scc1 L_dx1
            L_dx:""")
        a(f"v_mov_b32 v{Wk+2}, v{Wk}")
        self.row_reduce("v_max_f32", Wk + 2)
        a(f"""v_sub_f32 v{Wk}, v{Wk}, v{Wk+2}
        v_mul_f32 v{Wk}, {LOG2E}, v{Wk}
        v_exp_f32 v{Wk}, v{Wk}
        s_nop 0
        v_mul_f32 v{Wk+1}, v{Wk+1}, v{Wk}""")
        self.row_reduce("v_add_f32", Wk + 1)
        a(f"""v_rcp_f32 v{Wk+2}, v{Wk+1}
        s_nop 0
        v_mul_f32 v{Wk+3}, v{Wk}, v{Wk+2}
        v_fma_f32 v{Wk}, -v{Wk+3}, v{Wk+1}, v{Wk}
        v_fmac_f32 v{Wk+3}, v{Wk}, v{Wk+2}
        s_lshl_b32 s9, s6, 2
        v_subrev_u32 v{Wk+4}, s9, v{vL}
        v_cmp_gt_u32 vcc, 4, v{Wk+4}
        v_lshlrev_b32 v{Wk+4}, 2, v{Wk+4}
        s_and_saveexec_b64 s[10:11], vcc
        ds_write_b32 v{Wk+4}, v{Wk+3} offset:{L_SCALE}
        s_mov_b64 exec, -1
        L_nostat:""")
        a(f"""s_lshl_b32 s67, s6, 5
        s_add_u32 s67, s67, s4
        s_mov_b32 s68, 0
        s_cmp_lg_u32 s3, 2
        s_cbranch_scc1 L_noown
        s_cmp_ge_u32 s67, 40
        s_cbranch_scc1 L_noown
        s_mov_b32 s68, 1""")
        self.srd(60, 28, 1280)
        W = Wk
        a(f"""v_lshlrev_b32 v{W+20}, 2, v{vL}
        s_mul_i32 s9, s5, 1280
        v_add_u32 v{W+21}, s9, v{W+20}""")
        for t in range(5):
            a(f"buffer_load_dword v{W+t}, v{W+20}, s[60:63], 0 offen offset:{256*t}")
            a(f"ds_read_b32 v{W+5+t}, v{W+21} offset:{L_XN + 256*t}")
        self.srd(60, 16, 2560)
        a(f"""v_and_b32 v{W+22}, 3, v{vL}
        v_lshl_add_u32 v{vOUTA}, v{W+22}, 2, v{vT2}
        v_lshlrev_b32 v{vOUTA}, 1, v{vOUTA}
        s_lshl_b32 s10, s67, 5
        s_add_u32 s10, s10, s9
        v_add_u32 v{vOUTA}, s10, v{vOUTA}
        buffer_load_ushort v{vXC}, v{vOUTA}, s[60:63], 0 offen
        ds_read_u16 v{W+23}, v{vOUTA} offset:{L_XN}
        s_waitcnt vmcnt(0) lgkmcnt(0)""")
        for t in range(5):
            c = "0" if t == 0 else f"v{W+24}"
            a(f"v_dot2_f32_bf16 v{W+24}, v{W+t}, v{W+5+t}, {c}")
        a(f"v_lshlrev_b32 v{vXC}, 16, v{vXC}\nv_lshlrev_b32 v{W+23}, 16, v{W+23}\ns_nop 1")
        self.row_reduce("v_add_f32", W + 24)
        self.swap_reduce("v_add_f32", W + 24, W + 25, 16)
        self.swap_reduce("v_add_f32", W + 24, W + 25, 32)
        self.rbf(W + 24)
        self.sigmoid_like(W + 24, W + 24)
        self.rbf(W + 24)
        Ly, Lyd = self.lab("y"), self.lab("yd")
        a(f"""v_lshrrev_b32 v{W+20}, 2, v{vL}
        v_mul_u32_u24 v{W+21}, 5120, v{W+20}
        v_lshl_add_u32 v{W+21}, v{W+22}, 4, v{W+21}
        v_mul_u32_u24 v{vPA}, 2560, v{W+20}
        v_lshl_add_u32 v{vPA}, v{W+22}, 4, v{vPA}
        s_mul_i32 s9, s5, 2560
        s_lshl_b32 s10, s67, 6
        s_add_u32 s9, s9, s10
        s_add_u32 s9, s9, {Y_OFF}
        s_add_u32 s10, s9, {16*5120}
        s_add_u32 s11, s9, {32*5120}
        s_mov_b32 s12, {self.poll_max}
        {Ly}:
        buffer_load_dwordx4 v[{W}:{W+3}], v{W+21}, s[56:59], s9 offen sc1
        buffer_load_dwordx4 v[{W+4}:{W+7}], v{W+21}, s[56:59], s10 offen sc1
        buffer_load_dwordx4 v[{W+8}:{W+11}], v{W+21}, s[56:59], s11 offen sc1
        s_waitcnt vmcnt(0)""")
        self.chk4(vCK, W, vTG, first=True, n=12)
        if self.nomoe:
            a(f"{Lyd}:")
        else:
            self.poll_tail(vCK, Ly, Lyd, 32)
        for r in range(4):
            a(f"v_add_f32 v{W+r}, v{W+r}, v{W+4+r}\nv_add_f32 v{W+r}, v{W+r}, v{W+8+r}")
        self.merge4(W)
        self.rbf(W)
        a(f"v_mul_f32 v{W}, v{W}, v{W+24}")
        self.rbf(W)
        a(f"v_add_f32 v{W}, v{W}, v{W+23}")
        self.rbf(W)
        self.sigmoid_like(W + 1, W)
        a(f"v_mul_f32 v{vG}, v{W}, v{W+1}")
        self.rbf(vG)
        a(f"""s_mul_i32 s70, s5, {128*2560}
        s_lshl_b32 s10, s67, 6
        s_add_u32 s70, s70, s10""")
        for t in range(1, 8):
            a(f"s_add_u32 s{70+t}, s70, {t*40960}")
        a("L_noown:")
        self.srd(60, 36, 2560)
        a(f"""v_and_b32 v{vAR}, 7, v{vL}
        v_mul_u32_u24 v{vAR}, {OS}, v{vAR}
        v_lshl_add_u32 v{vAR}, v{vT2}, 4, v{vAR}
        v_and_b32 v{vT3}, 1, v{vT2}
        v_lshlrev_b32 v{vST}, 5, v{vT1}
        v_lshl_add_u32 v{vST}, v{vT3}, 4, v{vST}
        v_lshlrev_b32 v{vT3}, 3, v{vT3}
        s_mul_i32 s9, s7, 2560
        s_lshl_b32 s10, s3, 9
        s_add_u32 s9, s9, s10
        s_waitcnt vmcnt(0) lgkmcnt(0)""")
        self.stamp(5, 60)
        a(f"s_setprio {self.hprio2}")
        a("s_barrier")
        self.stamp(6, 60)
        Aop = [16, 20, 28, REG(1), REG(1) + 4, REG(1) + 8]
        for k in range(3):
            a(f"ds_read_b128 v[{Aop[k]}:{Aop[k]+3}], v{vAR} offset:{L_O + 64*k}")
        a(f"ds_read_b64 v[{vSC}:{vSC+1}], v{vT3} offset:{L_SCALE}")
        waits = [3, 5, 4, 2, 1, 0]
        for k in range(6):
            a(f"s_waitcnt lgkmcnt({waits[k]})")
            for c in range(8):
                self.mfma(32 + 4 * c, Aop[k], REG(k + 1) + 4 * c, None if k == 0 else 32 + 4 * c)
            if k == 0:
                for kk in (3, 4, 5):
                    a(f"ds_read_b128 v[{Aop[kk]}:{Aop[kk]+3}], v{vAR} offset:{L_O + 64*kk}")
        a("s_nop 1")
        for c in range(8):
            D = 32 + 4 * c
            a(f"""v_add_f32 v{D}, v{D}, v{D+1}
            v_add_f32 v{D+2}, v{D+2}, v{D+3}
            v_mul_f32 v{D}, v{D}, v{vSC}
            v_fmac_f32 v{D}, v{D+2}, v{vSC+1}""")
        a("s_nop 1")
        for c in range(4):
            a(f"v_permlane16_swap_b32 v{32+4*c}, v{48+4*c}")
        a("s_nop 1")
        for c in range(4):
            a(f"v_add_f32 v{16+c}, v{32+4*c}, v{48+4*c}")
        for c in range(4):
            self.tag(16 + c, 16 + c, vTG)
        a(f"""s_mov_b32 exec_hi, 0
        buffer_store_dwordx4 v[16:19], v{vST}, s[56:59], s9 offen sc1
        s_mov_b32 exec_hi, -1""")
        self.stamp(7, 60)
        a("""s_cmp_eq_u32 s68, 0
        s_cbranch_scc1 L_end""")
        Lp, Lpd = self.lab("p"), self.lab("pd")
        Z = 64
        a(f"s_mov_b32 s12, {self.poll_max}\n{Lp}:")
        for t in range(8):
            a(f"buffer_load_dwordx4 v[{Z+4*t}:{Z+4*t+3}], v{vPA}, s[56:59], s{70+t} offen sc1")
        for t in range(8):
            a(f"s_waitcnt vmcnt({7-t})")
            self.chk4(vCK, Z + 4 * t, vTG, first=(t == 0))
            if t:
                for r in range(4):
                    a(f"v_add_f32 v{Z+r}, v{Z+r}, v{Z+4*t+r}")
        self.poll_tail(vCK, Lp, Lpd, 0)
        self.merge4(Z)
        self.rbf(Z)
        a(f"v_mul_f32 v{Z}, v{Z}, v{vG}")
        self.rbf(Z)
        a(f"""v_add_f32 v{Z}, v{Z}, v{vXC}
        v_cvt_pk_bf16_f32 v{Z}, v{Z}, v{Z}
        s_mov_b32 exec_lo, 0x000f000f
        s_mov_b32 exec_hi, 0x000f000f
        buffer_store_short v{Z}, v{vOUTA}, s[60:63], 0 offen""")
        if self.padto:
            if self.padwg >= 0:
                a(f"s_cmp_lg_u32 s2, {self.padwg}\ns_cbranch_scc1 L_end")
            a(f"""L_pad:
            s_memrealtime s[90:91]
            s_waitcnt lgkmcnt(0)
            s_sub_u32 s90, s90, s86
            s_cmp_lt_u32 s90, {self.padto}
            s_cbranch_scc1 L_pad""")
        self.stamp(8, 60)

    def gen_moe1(self, vL, vT1, vT2, vT3, vT4, vT5, vSEL, vA, vACC, vTG, TI):
        a = self.a
        vAD = 52
        vCA = 54
        a(f"""v_cmp_gt_u32 vcc, 8, v{vT1}
        v_mov_b32 v{vT3}, s32
        v_mov_b32 v{vT4}, s30
        v_cndmask_b32 v{vAD}, v{vT3}, v{vT4}, vcc
        v_mov_b32 v{vT3}, s33
        v_mov_b32 v{vT4}, s31
        v_cndmask_b32 v{vAD+1}, v{vT3}, v{vT4}, vcc
        v_mul_u32_u24 v{vT3}, {16*3072}, v{vT2}
        v_and_b32 v{vT4}, 7, v{vL}
        v_lshl_add_u32 v{vT3}, v{vT4}, 4, v{vT3}
        s_lshl_b32 s9, s80, 7
        s_mul_i32 s10, s81, {64*3072}
        s_add_u32 s9, s9, s10
        v_add_u32 v{vT4}, s9, v{vT3}
        v_mov_b32 v{vT5}, 0
        v_add_co_u32 v{vAD}, vcc, v{vAD}, v{vT4}
        s_nop 1
        v_addc_co_u32 v{vAD+1}, vcc, v{vAD+1}, v{vT5}, vcc
        v_lshrrev_b32 v{vT3}, 3, v{vT1}
        v_mul_u32_u24 v{vCA}, 1280, v{vT3}
        v_lshl_add_u32 v{vCA}, v{vT2}, 5, v{vCA}
        s_lshl_b32 s9, s81, 7
        v_add_u32 v{vCA}, s9, v{vCA}
        s_mov_b32 s10, 6144
        s_mov_b32 s11, 0
        ds_read_b128 v[8:11], v{vCA} offset:{L_XN}
        ds_read_b128 v[12:15], v{vCA} offset:{L_XN+16}""")
        for half in range(2):
            for t in range(8):
                a(f"global_load_dwordx4 v[{TI+4*t}:{TI+4*t+3}], v[{vAD}:{vAD+1}], off offset:{3072*(t&1)} {self.mf}")
                if t & 1:
                    a(f"v_lshl_add_u64 v[{vAD}:{vAD+1}], v[{vAD}:{vAD+1}], 0, s[10:11]")
            a("s_waitcnt lgkmcnt(0)")
            for t in range(8):
                Gd = half * 8 + t
                A = vA + 4 * (t & 1)
                self.buildA(A, 8 + Gd // 2, Gd & 1, vSEL)
                a(f"s_waitcnt vmcnt({7-t})\ns_nop 0")
                self.mfma(vACC, A, TI + 4 * t, None if Gd == 0 else vACC)
        a(f"""s_mul_i32 s9, s80, 10240
        s_lshl_b32 s10, s81, 10
        s_add_u32 s9, s9, s10
        s_add_u32 s9, s9, {G1_OFF}
        v_lshlrev_b32 v{vT3}, 4, v{vL}
        s_nop 7""")
        for r in range(4):
            self.tag(vACC + r, vACC + r, vTG, rn=True)
        a(f"buffer_store_dwordx4 v[{vACC}:{vACC+3}], v{vT3}, s[56:59], s9 offen sc1")

    def gen_moe2(self, vL, vT1, vT2, vT3, vT4, vT5, vSEL, vA, vACC, vTG, vCK, TI):
        a = self.a
        DT = TI + 64
        vD = 52
        a(f"""s_cmp_ge_u32 s81, 5
        s_cselect_b32 s83, 1, 0
        s_mul_i32 s84, s83, 5
        s_sub_u32 s84, s81, s84""")
        self.srd(60, 34, 1536 * 1280)
        a(f"""v_mul_u32_u24 v{vD}, {8*1280}, v{vT2}
        v_lshl_add_u32 v{vD}, v{vT1}, 4, v{vD}
        s_mul_i32 s9, s80, {64*1280}
        s_mul_i32 s10, s83, {32*1280}
        s_add_u32 s9, s9, s10
        s_lshl_b32 s10, s84, 8
        s_add_u32 s9, s9, s10
        s_add_u32 s10, s9, {4*1280}""")
        for Gd in range(8):
            a(f"buffer_load_dwordx4 v[{DT+4*Gd}:{DT+4*Gd+3}], v{vD}, s[60:63], s{9 + Gd//4} offen offset:{(Gd%4)*1280} {self.mf}")
        Lg, Lgd = self.lab("g"), self.lab("gd")
        a(f"""s_mul_i32 s9, s80, 10240
        s_add_u32 s9, s9, {G1_OFF}
        s_add_u32 s10, s9, 4096
        s_add_u32 s11, s9, 8192
        v_lshlrev_b32 v{vT3}, 4, v{vL}
        s_mov_b32 s12, {self.poll_max}
        {Lg}:""")
        for t in range(10):
            a(f"buffer_load_dwordx4 v[{TI+4*t}:{TI+4*t+3}], v{vT3}, s[56:59], s{9 + t//4} offen offset:{(t%4)*1024} sc1")
        a("s_waitcnt vmcnt(0)")
        self.chk4(vCK, TI, vTG, first=True, n=40)
        self.poll_tail(vCK, Lg, Lgd, 32)
        for t in range(1, 10):
            for r in range(4):
                a(f"v_add_f32 v{TI+r}, v{TI+r}, v{TI+4*t+r}")
        for r in range(4):
            self.rbf(TI + r)
        a("s_nop 1")
        for r in range(4):
            a(f"v_mov_b32_dpp v{TI+4+r}, v{TI+r} row_ror:8 row_mask:0xf bank_mask:0xf")
        for r in range(4):
            self.sigmoid_like(vT3, TI + r)
            a(f"v_mul_f32 v{TI+r}, v{TI+r}, v{vT3}")
            self.rbf(TI + r)
            a(f"v_mul_f32 v{TI+r}, v{TI+r}, v{TI+4+r}")
        a(f"""v_cvt_pk_bf16_f32 v{TI+4}, v{TI}, v{TI+1}
        v_cvt_pk_bf16_f32 v{TI+5}, v{TI+2}, v{TI+3}
        v_lshrrev_b32 v{vT3}, 1, v{vT2}
        v_lshlrev_b32 v{vT3}, 7, v{vT3}
        v_lshl_add_u32 v{vT3}, v{vT1}, 4, v{vT3}
        v_and_b32 v{vT4}, 1, v{vT2}
        v_lshl_add_u32 v{vT3}, v{vT4}, 3, v{vT3}
        s_mov_b32 exec_lo, 0x00ff00ff
        s_mov_b32 exec_hi, 0x00ff00ff
        ds_write_b64 v{vT3}, v[{TI+4}:{TI+5}] offset:{L_HB}
        s_mov_b64 exec, -1
        v_lshrrev_b32 v{vT3}, 3, v{vT1}
        v_lshlrev_b32 v{vT3}, 7, v{vT3}
        v_lshl_add_u32 v{vT3}, v{vT2}, 4, v{vT3}
        s_lshl_b32 s9, s83, 6
        v_add_u32 v{vT3}, s9, v{vT3}
        s_waitcnt lgkmcnt(0)
        ds_read_b128 v[8:11], v{vT3} offset:{L_HB}
        s_waitcnt lgkmcnt(0)""")
        for Gd in range(8):
            A = vA + 4 * (Gd & 1)
            self.buildA(A, 8 + Gd // 2, Gd & 1, vSEL)
            a("s_nop 1")
            self.mfma(vACC, A, DT + 4 * Gd, None if Gd == 0 else vACC)
        a(f"""v_lshrrev_b32 v{vT3}, 1, v{vT2}
        v_mul_u32_u24 v{vT3}, 2560, v{vT3}
        v_lshl_add_u32 v{vT3}, v{vT1}, 5, v{vT3}
        v_lshl_add_u32 v{vT3}, v{vT4}, 4, v{vT3}
        s_lshl_b32 s9, s80, 1
        s_add_u32 s9, s9, s83
        s_mul_i32 s9, s9, 5120
        s_lshl_b32 s10, s84, 9
        s_add_u32 s9, s9, s10
        s_add_u32 s9, s9, {Y_OFF}
        s_nop 3""")
        for r in range(4):
            self.tag(vACC + r, vACC + r, vTG, rn=True)
        a(f"buffer_store_dwordx4 v[{vACC}:{vACC+3}], v{vT3}, s[56:59], s9 offen sc1\ns_waitcnt vmcnt(0)")

    def text(self):
        hdr = open("recurrent_scan__mha_block_cached__moe_arch_mod__decode.s.ref").read().split("; Override launch")[0]
        self.gen()
        return hdr + f"""; @launch grid=(256,1,1) block=(512,1,1) lds={LDS_BYTES}
.amdgcn_target "amdgcn-amd-amdhsa--gfx950"
.text
.globl {KNAME}
.p2align 8
.type {KNAME},@function
{KNAME}:
""" + "\n".join(self.o) + f"""
.section .rodata,"a"
.p2align 6
.amdhsa_kernel {KNAME}
  .amdhsa_next_free_vgpr 256
  .amdhsa_next_free_sgpr 96
  .amdhsa_accum_offset 256
  .amdhsa_group_segment_fixed_size 0
  .amdhsa_kernarg_size 104
  .amdhsa_user_sgpr_count 2
  .amdhsa_user_sgpr_kernarg_segment_ptr 1
  .amdhsa_system_sgpr_workgroup_id_x 1
  .amdhsa_float_denorm_mode_32 3
.end_amdhsa_kernel
"""


if __name__ == "__main__":
    out = sys.argv[1]
    kw = {}
    for arg in sys.argv[2:]:
        k, v = arg.split("=", 1)
        try:
            v = int(v)
        except ValueError:
            pass
        kw[k] = v
    open(out, "w").write(G(**kw).text())
```

```python
import sys, struct

KNAME = "recurrent_scan__mha_block_cached__moe_arch_mod__decode_kernel"
TB = 201326592
CH = 786432
STEP = 12288

P_OFF = 0
ST_OFF = 256 * 2560
EP_OFF = ST_OFF + 64 * 256
Y_OFF = EP_OFF + 256
QX_OFF = Y_OFF + 48 * 5120
G1_OFF = QX_OFF + 32 * 8 * 2 * 768
HX_OFF = G1_OFF + 240 * 1024
WS_USED = HX_OFF + 24 * 512
STAMP_OFF = 2 << 20
WS_SRD = 4 << 20
assert WS_USED <= STAMP_OFF

L_XN = 0
L_QB = 2560
L_SC = L_QB + 512
OS = 416
L_O = L_SC + 4 * 1152
L_SCALE = L_O + 8 * OS
L_FLAG = L_SCALE + 48
L_HB = L_SCALE + 64
L_WX = (L_HB + 256 + 1023) // 1024 * 1024
LDS_BYTES = L_WX + 4 * 12 * 1024

LOG2E = 0x3fb8aa3b
SCALE_F32 = 0x3d93cd3a
assert struct.unpack("<I", struct.pack("<f", 192 ** -0.5))[0] == SCALE_F32
def f32(x): return "0x%08x" % struct.unpack("<I", struct.pack("<f", x))[0]
NLOG2E = f32(-1.4426950408889634)

sWAVE, sH, sB, sSPLIT, sCHUNK, sBH = 3, 4, 5, 6, 7, 8
sT = 78
sMASK = 79
sWV = 69


class G:
    def __init__(self, R0=16, R1=8, W=4, W0=3, kvflags="nt", wflags="nt", woflags="pl", moeflags="nt", rot=1, stamps=0,
                 poll_max=1 << 18, hprio=3, hprio1=0, hprio2=3, wobatch=8, nowo=0, nomoe=0, noq=0, nob0=0, D=2, GI=4, early=0, nok=0, nopoll=0, hskip=0, stsleep=127, DV=0, earlyV=-1, D0=0, hsleep=0, diagx=0, padto=0, padwg=-1, qsleep=0, psleep=0, NE=0, DE=4, qsleep2=0):
        self.NE, self.DE, self.qsleep2 = NE, DE, qsleep2
        self.qsleep, self.psleep = qsleep, psleep
        self.padwg = padwg
        self.padto = padto
        self.diagx = diagx
        self.DV = DV or D
        self.earlyV = early if earlyV < 0 else earlyV
        self.D0 = D0 or D
        self.hsleep = hsleep
        self.nok, self.nopoll, self.hskip, self.stsleep = nok, nopoll, hskip, stsleep
        self.D, self.GI, self.early = D, GI, early
        self.nowo, self.nomoe, self.noq, self.nob0 = nowo, nomoe, noq, nob0
        self.hprio1, self.hprio2 = hprio1, hprio2
        self.o = []
        self.R0, self.R1, self.W, self.W0 = R0, R1, W, W0
        fl = lambda x: '' if x == 'pl' else x.replace('_', ' ')
        self.kvf, self.wf, self.mf = fl(kvflags), fl(wflags), fl(moeflags)
        self.wof = fl(woflags)
        self.rot = rot
        self.stamps = stamps
        self.poll_max = poll_max
        self.hprio = hprio
        self.wobatch = wobatch
        self.nlab = 0

    def a(self, s):
        for ln in s.split("\n"):
            ln = ln.strip()
            if ln:
                self.o.append(("" if ln.endswith(":") else "    ") + ln)

    def lab(self, p="L"):
        self.nlab += 1
        return f"{p}_{self.nlab}"

    def srd(self, q, lo, nbytes):
        self.a(f"s_mov_b32 s{q}, s{lo}\ns_mov_b32 s{q+1}, s{lo+1}\ns_mov_b32 s{q+2}, {nbytes}\ns_mov_b32 s{q+3}, 0x20000")

    def dpp(self, op, d, s0, s1, ctrl):
        self.a(f"{op}_dpp v{d}, v{s0}, v{s1} {ctrl} row_mask:0xf bank_mask:0xf")

    def row_reduce(self, op, v, steps=(1, 2, 4, 8)):
        for s in steps:
            self.a("s_nop 1")
            self.dpp(op, v, v, v, f"row_ror:{s}")

    def swap_reduce(self, op, v, t, which):
        self.a(f"v_mov_b32 v{t}, v{v}\ns_nop 1\nv_permlane{which}_swap_b32 v{v}, v{t}\ns_nop 1\n{op} v{v}, v{v}, v{t}")

    def stamp(self, idx, vt, st=50, src=None):
        if not self.stamps:
            return
        if self.stamps == 3 and (self.cls == "H" or idx in (0, 1, 2, 3, 4)):
            return
        if src is None:
            self.a(f"s_memrealtime s[{st}:{st+1}]")
            src = st
        if self.stamps == 2:
            slot = (idx if idx < 15 else 0) + (1 if self.cls == "S" else 7)
            if self.cls == "H" and idx not in (1, 2, 4, 7, 8):
                return
            if self.cls == "H":
                slot = {1: 8, 2: 9, 4: 10, 7: 11, 8: 12}[idx]
            elif idx == 15:
                slot = 1
            else:
                slot = 2 + idx
            inv = f"s_mov_b32 s65, s{src}"
            Lsk = self.lab("sk")
            if not (self.cls == "H" and idx == 8):
                self.a(f"""s_waitcnt lgkmcnt(0)
                s_cmp_lg_u32 s2, 0
                s_cbranch_scc1 {Lsk}""")
            self.a(f"""s_waitcnt lgkmcnt(0)
            {inv}
            v_mov_b32 v{vt}, s65
            v_mov_b32 v{vt+2}, {slot*4}
            s_mov_b64 exec, 1
            global_atomic_umax v{vt+2}, v{vt}, s[38:39] sc1
            s_mov_b64 exec, -1
            {Lsk}:""")
            return
        self.a(f"""s_lshl_b32 s65, s2, 3
        s_add_u32 s65, s65, s{sWV}
        s_lshl_b32 s65, s65, 7
        s_add_u32 s65, s65, {STAMP_OFF + idx*8}
        s_waitcnt lgkmcnt(0)
        v_mov_b32 v{vt}, s{src}
        v_mov_b32 v{vt+1}, s{src+1}
        v_mov_b32 v{vt+2}, 0
        s_mov_b64 exec, 1
        buffer_store_dwordx2 v[{vt}:{vt+1}], v{vt+2}, s[56:59], s65 offen
        s_mov_b64 exec, -1""")

    def selectors(self, vL, base, t0, t1, t2):
        a = self.a
        a(f"""v_and_b32 v{t0}, 1, v{vL}
        v_cmp_eq_u32 vcc, 1, v{t0}
        v_mov_b32 v{t0}, 0x0c0c0100
        v_mov_b32 v{t1}, 0x01000c0c
        v_cndmask_b32 v{t0}, v{t0}, v{t1}, vcc
        v_mov_b32 v{t1}, 0x0c0c0302
        v_mov_b32 v{t2}, 0x03020c0c
        v_cndmask_b32 v{t1}, v{t1}, v{t2}, vcc
        v_bfe_u32 v{t2}, v{vL}, 1, 2""")
        for j in range(4):
            a(f"""v_cmp_eq_u32 vcc, {j}, v{t2}
            v_mov_b32 v{base+j}, 0x0c0c0c0c
            v_mov_b32 v{base+4+j}, 0x0c0c0c0c
            v_cndmask_b32 v{base+j}, v{base+j}, v{t0}, vcc
            v_cndmask_b32 v{base+4+j}, v{base+4+j}, v{t1}, vcc""")

    def buildA(self, A, P, hi, sel):
        for j in range(4):
            self.a(f"v_perm_b32 v{A+j}, v{P}, v{P}, v{sel + (4 if hi else 0) + j}")

    def mfma(self, D, A, B, C):
        c = "0" if C is None else f"v[{C}:{C+3}]"
        self.a(f"v_mfma_f32_16x16x32_bf16 v[{D}:{D+3}], v[{A}:{A+3}], v[{B}:{B+3}], {c}")

    def rbf(self, v):
        self.a(f"v_cvt_pk_bf16_f32 v{v}, v{v}, v{v}\nv_lshlrev_b32 v{v}, 16, v{v}")

    def tag(self, d, s, vTG, rn=False):
        if rn:
            self.a(f"v_add_u32 v{d}, 0x80, v{s}")
            s = d
        self.a(f"v_and_or_b32 v{d}, v{s}, s{sMASK}, v{vTG}")

    def chk4(self, acc, x, vTG, first=False, n=4):
        for r in range(n):
            self.a(f"v_xor_b32 v{x+r}, v{x+r}, v{vTG}")
        for r in range(0, n, 2):
            if first and r == 0:
                self.a(f"v_or_b32 v{acc}, v{x}, v{x+1}")
            else:
                self.a(f"v_or3_b32 v{acc}, v{x+r}, v{x+r+1}, v{acc}")

    def poll_tail(self, acc, Lretry, Ldone, sleep):
        self.a(f"""v_and_b32 v{acc}, 0xff, v{acc}
        v_cmp_ne_u32 vcc, 0, v{acc}
        s_cbranch_vccz {Ldone}""")
        if sleep:
            self.a(f"s_sleep {sleep}")
        self.a(f"""s_sub_u32 s12, s12, 1
        s_cmp_gt_u32 s12, 0
        s_cbranch_scc1 {Lretry}
        {Ldone}:""")

    def mpoll(self, loads, vTG, vCK, sleep, mask=None, nd=4, M0=80):
        a = self.a
        L, Ld = self.lab("mp"), self.lab("mpd")
        for t in range(len(loads)):
            if mask is None:
                a(f"s_mov_b64 s[{M0+2*t}:{M0+2*t+1}], -1")
            else:
                a(f"s_mov_b32 s{M0+2*t}, {mask[0]}\ns_mov_b32 s{M0+2*t+1}, {mask[1]}")
        a(f"s_mov_b32 s12, {self.poll_max}\n{L}:")
        for t, (r, txt) in enumerate(loads):
            sk = self.lab("ml")
            a(f"s_mov_b64 exec, s[{M0+2*t}:{M0+2*t+1}]\ns_cbranch_execz {sk}\n{txt}\n{sk}:")
        a("s_mov_b64 s[100:101], 0\ns_waitcnt vmcnt(0)")
        for t, (r, txt) in enumerate(loads):
            sk = self.lab("mc")
            a(f"s_mov_b64 exec, s[{M0+2*t}:{M0+2*t+1}]\ns_cbranch_execz {sk}")
            self.chk4(vCK, r, vTG, first=True, n=nd)
            a(f"""v_and_b32 v{vCK}, 0xff, v{vCK}
            v_cmp_ne_u32 s[{M0+2*t}:{M0+2*t+1}], 0, v{vCK}
            s_or_b64 s[100:101], s[100:101], s[{M0+2*t}:{M0+2*t+1}]
            {sk}:""")
        a(f"""s_mov_b64 exec, -1
        s_cmp_eq_u64 s[100:101], 0
        s_cbranch_scc1 {Ld}""")
        if sleep:
            a(f"s_sleep {sleep}")
        a(f"""s_sub_u32 s12, s12, 1
        s_cmp_gt_u32 s12, 0
        s_cbranch_scc1 {L}
        {Ld}:""")

    def sum_quads(self, X, n):
        for t in range(1, n):
            self.a(f"v_pk_add_f32 v[{X}:{X+1}], v[{X}:{X+1}], v[{X+4*t}:{X+4*t+1}]")
            self.a(f"v_pk_add_f32 v[{X+2}:{X+3}], v[{X+2}:{X+3}], v[{X+4*t+2}:{X+4*t+3}]")

    def merge4(self, X):
        a = self.a
        a(f"""s_nop 1
        v_permlane16_swap_b32 v{X}, v{X+1}
        v_permlane16_swap_b32 v{X+2}, v{X+3}
        s_nop 1
        v_add_f32 v{X}, v{X}, v{X+1}
        v_add_f32 v{X+2}, v{X+2}, v{X+3}
        s_nop 1
        v_permlane32_swap_b32 v{X}, v{X+2}
        s_nop 1
        v_add_f32 v{X}, v{X}, v{X+2}""")
        self.row_reduce("v_add_f32", X, steps=(4, 8))

    def sigmoid_like(self, d, x):
        self.a(f"""v_mul_f32 v{d}, {NLOG2E}, v{x}
        v_exp_f32 v{d}, v{d}
        s_nop 0
        v_add_f32 v{d}, 1.0, v{d}
        v_rcp_f32 v{d}, v{d}
        s_nop 0""")

    def rotcode(self):
        if self.rot < 100:
            return f"s_mul_i32 s9, s7, {self.rot}"
        if self.rot == 100:
            return "s_lshr_b32 s9, s2, 3\ns_lshl_b32 s11, s2, 5\ns_add_u32 s9, s9, s11"
        if self.rot == 101:
            return "s_lshl_b32 s9, s5, 4\ns_add_u32 s9, s9, s7"
        if self.rot == 102:
            return "s_lshr_b32 s9, s7, 6\ns_mul_i32 s9, s9, 17\ns_add_u32 s9, s9, s7"
        raise ValueError

    def epoch_load(self):
        self.a(f"s_load_dword s{sT}, s[40:41], {EP_OFF}")

    def epoch_use(self, vTG):
        self.a(f"""s_add_u32 s{sT}, s{sT}, 1
        s_mov_b32 s{sMASK}, 0xffffff00
        s_and_b32 s9, s{sT}, 0xff
        v_mov_b32 v{vTG}, s9""")

    def gen(self):
        a = self.a
        a(f"""s_cmp_ge_u32 s2, 256
        s_cbranch_scc1 L_end
        s_load_dwordx16 s[16:31], s[0:1], 0
        s_load_dwordx8 s[32:39], s[0:1], 64
        s_load_dwordx2 s[40:41], s[0:1], 96""")
        if self.stamps or self.padto:
            a("s_memrealtime s[48:49]")
        a(f"""v_lshrrev_b32 v1, 6, v0
        v_and_b32 v0, 63, v0
        v_readfirstlane_b32 s3, v1
        s_and_b32 s9, s2, 7
        s_lshr_b32 s10, s2, 3
        s_lshl_b32 s4, s9, 2
        s_lshr_b32 s11, s10, 3
        s_add_u32 s4, s4, s11
        s_bfe_u32 s5, s10, 0x10002
        s_and_b32 s6, s10, 3
        s_lshl_b32 s8, s5, 5
        s_add_u32 s8, s8, s4
        s_lshl_b32 s7, s8, 2
        s_add_u32 s7, s7, s6
        s_mov_b32 s{sWV}, s3
        s_cmp_ge_u32 s3, 4
        s_cbranch_scc1 L_H""")
        self.gen_S()
        a("L_H:")
        self.gen_H()
        a("L_end:\ns_endpgm")

    def gen_S(self):
        self.cls = "S"
        a = self.a
        R0, D, GI = self.R0, self.D, self.GI
        RS = {2: 4, 3: 6}[D]
        R1 = 4
        DV = self.DV
        RSV = {2: 4, 3: 6}[DV]
        D0 = self.D0
        assert (64 - R0) % RS == 0
        NITK = (64 - R0) // RS
        W = max(RS, RSV)
        vL = 0
        vOFF, vSCW, vSCR, vT0, vT1, vT2, vT3, vOW = 1, 2, 3, 4, 5, 6, 7, 8
        vA0, vA1, vTG = 9, 10, 11
        vQ = 12
        vSEL = 24
        vACC = 32
        vA = 44
        vP = 52
        RING = 64
        assert RING + R0 * 12 <= 256
        sOFF, sBEG, sEND, sIT, sCNT = 42, 43, 64, 66, 65
        a(f"""v_lshrrev_b32 v{vT0}, 3, v{vL}
        v_and_b32 v{vT1}, 7, v{vL}
        v_mul_u32_u24 v{vOFF}, 384, v{vT0}
        v_lshl_add_u32 v{vOFF}, v{vT1}, 4, v{vOFF}
        s_mul_i32 s9, s3, 3072""")
        if GI == 4:
            stepb = 4 * STEP
            a(f"""s_mul_i32 s11, s6, {STEP}
            s_add_u32 s9, s9, s11
            s_mul_i32 s{sBEG}, s8, {4*CH}
            s_add_u32 s{sEND}, s{sBEG}, {4*CH}
            v_add_u32 v{vOFF}, s9, v{vOFF}
            s_mul_i32 s9, s8, {self.rot}""")
        else:
            stepb = STEP
            a(f"""v_add_u32 v{vOFF}, s9, v{vOFF}
            s_mul_i32 s{sBEG}, s7, {CH}
            s_add_u32 s{sEND}, s{sBEG}, {CH}
            {self.rotcode()}""")
        a(f"""s_and_b32 s9, s9, 63
        s_mul_i32 s9, s9, {stepb}
        s_add_u32 s{sOFF}, s{sBEG}, s9
        s_waitcnt lgkmcnt(0)""")
        self.srd(52, 18, TB)
        self.fs = []
        def fstamp():
            if self.stamps == 3 and len(self.fs) < 9:
                r = 80 + 2 * len(self.fs)
                a(f"s_memrealtime s[{r}:{r+1}]")
                self.fs.append(r)
        fstamp()

        def load(slot, sw=None):
            for j in range(3):
                r = RING + (slot * 3 + j) * 4
                a(f"buffer_load_dwordx4 v[{r}:{r+3}], v{vOFF}, s[52:55], s{sOFF} offen offset:{128*j} {self.kvf}")
            a(f"""s_add_u32 s{sOFF}, s{sOFF}, {stepb}
            s_cmp_ge_u32 s{sOFF}, s{sEND}
            s_cselect_b32 s{sOFF}, s{sBEG}, s{sOFF}""")
            if sw == "kv":
                a(f"""s_cmp_eq_u32 s{sIT}, {NITK-1}
                s_cselect_b32 s52, s20, s52
                s_cselect_b32 s53, s21, s53""")
            elif sw is not None:
                a(f"""s_cmp_eq_u32 s{sIT}, {sw}
                s_cselect_b32 s54, 0, s54""")
        thr = 3 * (D - 1) + self.early
        for s in range(D0):
            load(s)
        self.epoch_load()
        self.srd(56, 40, WS_SRD)
        self.selectors(vL, vSEL, vT2, vT3, vOW)
        a(f"""s_mul_i32 s9, s3, 1152
        s_add_u32 s9, s9, {L_SC}
        v_mul_u32_u24 v{vSCW}, 144, v{vT0}
        v_add_u32 v{vSCW}, s9, v{vSCW}
        v_mov_b32 v{vSCR}, v{vSCW}""")
        a(f"""v_lshrrev_b32 v{vT2}, 5, v{vL}
        s_lshl_b32 s9, s3, 1
        v_add_u32 v{vT2}, s9, v{vT2}
        v_mul_u32_u24 v{vOW}, {OS}, v{vT2}
        v_lshl_add_u32 v{vOW}, v{vT1}, 4, v{vOW}
        v_bfe_u32 v{vT2}, v{vL}, 4, 1
        v_lshl_add_u32 v{vOW}, v{vT2}, 3, v{vOW}
        v_add_u32 v{vOW}, {L_O}, v{vOW}
        v_lshlrev_b32 v{vT2}, 4, v{vT1}""")
        for s in range(D0, R0):
            a(f"s_waitcnt vmcnt({3*(D0-1)})")
            if s in (2, 3, 4, 6, 8, 10, 12, 14):
                fstamp()
            load(s)
        a("s_waitcnt lgkmcnt(0)")
        self.epoch_use(vTG)
        self.stamp(15, vA, src=48)
        self.stamp(0, vA)
        a("s_barrier")
        self.stamp(1, vA)
        for j in range(3):
            a(f"ds_read_b128 v[{vQ+4*j}:{vQ+4*j+3}], v{vT2} offset:{L_QB + 128*j}")
        a(f"s_mov_b32 s{sIT}, 0\ns_mov_b32 s10, {SCALE_F32}\ns_waitcnt lgkmcnt(0)")

        def kpair(s, off):
            ra, rb = RING + s * 12, RING + (s + 1) * 12
            for i in range(12):
                c0 = "0" if i == 0 else f"v{vA0}"
                c1 = "0" if i == 0 else f"v{vA1}"
                a(f"v_dot2_f32_bf16 v{vA0}, v{ra+i}, v{vQ+i}, {c0}")
                a(f"v_dot2_f32_bf16 v{vA1}, v{rb+i}, v{vQ+i}, {c1}")
            a("s_nop 2")
            self.dpp("v_add_f32", vA0, vA0, vA0, "quad_perm:[1,0,3,2]")
            self.dpp("v_add_f32", vA1, vA1, vA1, "quad_perm:[1,0,3,2]")
            a("s_nop 0")
            self.dpp("v_add_f32", vA0, vA0, vA0, "quad_perm:[2,3,0,1]")
            self.dpp("v_add_f32", vA1, vA1, vA1, "quad_perm:[2,3,0,1]")
            a("s_nop 0")
            self.dpp("v_add_f32", vA0, vA0, vA0, "row_half_mirror")
            self.dpp("v_add_f32", vA1, vA1, vA1, "row_half_mirror")
            a(f"""v_cvt_pk_bf16_f32 v{vT2}, v{vA0}, v{vA1}
            v_lshlrev_b32 v{vA0}, 16, v{vT2}
            v_and_b32 v{vA1}, 0xffff0000, v{vT2}
            v_mul_f32 v{vA0}, s10, v{vA0}
            v_mul_f32 v{vA1}, s10, v{vA1}
            v_cvt_pk_bf16_f32 v{vT2}, v{vA0}, v{vA1}
            ds_write_b32 v{vSCW}, v{vT2} offset:{off}""")
        npairs = R0 // 2
        issue_after = {0: 0, 3: 1} if D == 2 else {0: 0, 2: 1, 4: 2}
        issued = 0
        for p in range(npairs):
            a(f"s_waitcnt vmcnt({3 * ((R0 - 2*p - 2) + issued)})")
            kpair(2 * p, p * 4)
            if p in issue_after:
                a(f"s_waitcnt vmcnt({thr})")
                load(issue_after[p])
                issued += 1
        a(f"v_add_u32 v{vSCW}, {2*R0}, v{vSCW}")
        a("L_kloop:")
        for s in range(RS):
            a(f"s_waitcnt vmcnt({thr})")
            load((s + D) % RS, "kv" if s == RS - D - 1 else None)
            if s & 1:
                if self.early:
                    a(f"s_waitcnt vmcnt({3*D})")
                if not self.nok:
                    kpair(s - 1, (s // 2) * 4)
        a(f"""v_add_u32 v{vSCW}, {2*RS}, v{vSCW}
        s_add_u32 s{sIT}, s{sIT}, 1
        s_cmp_lt_u32 s{sIT}, {NITK}
        s_cbranch_scc1 L_kloop""")
        for s in range(D, R1):
            load(s)
        self.stamp(2, vA)
        F = 32
        a(f"""v_lshl_add_u32 v{vT2}, v{vT1}, 4, v{vSCR}
        s_waitcnt lgkmcnt(0)
        ds_read_b128 v[40:43], v{vT2}
        s_waitcnt lgkmcnt(0)""")
        for i in range(4):
            a(f"v_lshlrev_b32 v{F+2*i}, 16, v{40+i}\nv_and_b32 v{F+2*i+1}, 0xffff0000, v{40+i}")
        a(f"""v_max3_f32 v{vA0}, v{F}, v{F+1}, v{F+2}
        v_max3_f32 v{vA0}, v{vA0}, v{F+3}, v{F+4}
        v_max3_f32 v{vA0}, v{vA0}, v{F+5}, v{F+6}
        v_max_f32 v{vA0}, v{vA0}, v{F+7}""")
        self.row_reduce("v_max_f32", vA0)
        self.swap_reduce("v_max_f32", vA0, vT3, 16)
        self.swap_reduce("v_max_f32", vA0, vT3, 32)
        for i in range(8):
            a(f"v_sub_f32 v{F+i}, v{F+i}, v{vA0}\nv_mul_f32 v{F+i}, {LOG2E}, v{F+i}")
        for i in range(8):
            a(f"v_exp_f32 v{F+i}, v{F+i}")
        a("s_nop 0")
        a(f"v_add_f32 v{vA1}, v{F}, v{F+1}")
        for i in range(2, 8):
            a(f"v_add_f32 v{vA1}, v{vA1}, v{F+i}")
        for i in range(4):
            a(f"v_cvt_pk_bf16_f32 v{40+i}, v{F+2*i}, v{F+2*i+1}")
        a(f"ds_write_b128 v{vT2}, v[40:43]")
        self.row_reduce("v_add_f32", vA1)
        self.swap_reduce("v_add_f32", vA1, vT3, 16)
        self.swap_reduce("v_add_f32", vA1, vT3, 32)
        a("s_waitcnt lgkmcnt(0)")
        def pread(n):
            if n == 2: a(f"ds_read_b64 v[{vP}:{vP+1}], v{vSCR}")
            elif n == 3: a(f"ds_read_b32 v{vP}, v{vSCR}\nds_read_b32 v{vP+1}, v{vSCR} offset:4\nds_read_b32 v{vP+2}, v{vSCR} offset:8")
            else: raise ValueError(n)
            a(f"v_add_u32 v{vSCR}, {4*n}, v{vSCR}")
        pread(R1 // 2)
        self.tag(44, vA0, vTG)
        self.tag(45, vA1, vTG)
        if self.diagx:
            a(f"s_getreg_b32 s9, hwreg(HW_REG_XCC_ID, 0, 4)\ns_lshl_b32 s9, s9, 8\nv_or_b32 v44, s9, v44")
        a(f"""v_mov_b32 v46, s{sT}
        v_mov_b32 v47, s{sT}
        s_lshl_b32 s9, s7, 6
        s_lshl_b32 s11, s3, 4
        s_add_u32 s9, s9, s11
        s_add_u32 s9, s9, {ST_OFF}
        v_mov_b32 v{vA0}, 0
        s_mov_b64 exec, 1
        buffer_store_dwordx4 v[44:47], v{vA0}, s[56:59], s9 offen sc1
        s_mov_b64 exec, -1""")
        for i in range(12):
            a(f"v_mov_b32 v{vACC+i}, 0")
        a(f"s_mov_b32 s{sIT}, 0\ns_waitcnt lgkmcnt(0)")
        self.stamp(3, 60)

        def vmf(g, slot):
            A = vA + 4 * ((g + 1) & 1)
            for j in range(3):
                self.mfma(vACC + 4 * j, A, RING + (slot * 3 + j) * 4, vACC + 4 * j)
        def vA_(g):
            self.buildA(vA + 4 * ((g + 1) & 1), vP + g // 2, g & 1, vSEL)
        thrV = 3 * (DV - 1) + self.earlyV
        NE, DE = self.NE, self.DE
        assert (64 - R1 - NE) % RSV == 0 and NE % 4 == 0 and NE <= 12 and (NE == 0 or DV == 2)
        NITV = (64 - R1 - NE) // RSV
        issued = 0
        for g in range(R1):
            vA_(g)
            if g == R1 - 1:
                pread(RSV // 2)
            if g >= R1 - DV:
                a(f"s_waitcnt vmcnt({thrV})")
                load((R1 + issued) % RSV)
                issued += 1
                if self.earlyV:
                    a(f"s_waitcnt vmcnt({3*DV})")
            else:
                a(f"s_waitcnt vmcnt({3*(R1 - g - 1)})\ns_nop 0")
            vmf(g, g)
        a("L_vloop:\ns_waitcnt lgkmcnt(0)")
        for s in range(RSV):
            slot = (R1 + s) % RSV
            vA_(s)
            if s == RSV - 1:
                pread(RSV // 2)
            a(f"s_waitcnt vmcnt({thrV})")
            load((slot + DV) % RSV, (NITV - 1) if (s == RSV - DV - 1 and NE == 0) else None)
            if self.earlyV:
                a(f"s_waitcnt vmcnt({3*DV})")
            vmf(s, slot)
        a(f"""s_add_u32 s{sIT}, s{sIT}, 1
        s_cmp_lt_u32 s{sIT}, {NITV}
        s_cbranch_scc1 L_vloop""")
        if NE:
            slot_of = lambda e: e if e < 2 else e + 2
            nxt = 2
            while nxt < min(DE, NE):
                load(slot_of(nxt)); nxt += 1
            for e in range(NE):
                if e % 4 == 0:
                    a("s_waitcnt lgkmcnt(0)")
                vA_(e % 4)
                if e % 4 == 3 and e != NE - 1:
                    pread(2)
                a(f"s_waitcnt vmcnt({3*(nxt - e - 1)})")
                if nxt < NE:
                    load(slot_of(nxt)); nxt += 1
                else:
                    a("s_nop 0")
                vmf(e % 4, slot_of(e))
            a("s_nop 3")
        a("s_nop 3")
        a("s_nop 3")
        for j in range(3):
            a(f"""v_cvt_pk_bf16_f32 v{vA+2*j}, v{vACC+4*j}, v{vACC+4*j+1}
            v_cvt_pk_bf16_f32 v{vA+2*j+1}, v{vACC+4*j+2}, v{vACC+4*j+3}""")
        a("s_mov_b32 exec_lo, 0x00ff00ff\ns_mov_b32 exec_hi, 0xff00ff00")
        for j in range(3):
            a(f"ds_write_b64 v{vOW}, v[{vA+2*j}:{vA+2*j+1}] offset:{128*j}")
        a("s_mov_b64 exec, -1")
        a(f"""v_and_b32 v{vT0}, 7, v{vL}
        v_mul_u32_u24 v{vT0}, {OS}, v{vT0}
        v_lshrrev_b32 v{vT1}, 4, v{vL}
        v_lshl_add_u32 v{vT0}, v{vT1}, 4, v{vT0}
        v_and_b32 v{vT2}, 1, v{vT1}
        v_and_b32 v{vT3}, 15, v{vL}
        v_lshl_add_u32 v{vT3}, v{vT3}, 1, v{vT2}
        v_lshlrev_b32 v{vT3}, 2, v{vT3}
        v_lshlrev_b32 v{vT2}, 3, v{vT2}
        s_mul_i32 s9, s3, 12288
        s_add_u32 s9, s9, {L_WX}
        v_lshlrev_b32 v{vT1}, 4, v{vL}
        v_add_u32 v{vT1}, s9, v{vT1}
        s_mul_i32 s9, s7, 2560
        s_lshl_b32 s11, s3, 7
        s_add_u32 s9, s9, s11
        s_add_u32 s9, s9, {P_OFF + 2048}
        s_waitcnt lgkmcnt(0)""")
        self.stamp(4, 12)
        a("s_barrier")
        AA = RING + 12 * W
        BB = AA + 24
        assert BB + 48 <= 256
        D0, D1, SCL = 32, 36, 40
        for k in range(6):
            a(f"ds_read_b128 v[{AA+4*k}:{AA+4*k+3}], v{vT0} offset:{L_O + 64*k}")
            a(f"ds_read_b128 v[{BB+8*k}:{BB+8*k+3}], v{vT1} offset:{2048*k}")
            a(f"ds_read_b128 v[{BB+8*k+4}:{BB+8*k+7}], v{vT1} offset:{2048*k+1024}")
            if k == 3:
                a("s_waitcnt lgkmcnt(6)")
        a(f"ds_read_b64 v[{SCL}:{SCL+1}], v{vT2} offset:{L_SCALE}")
        for k in range(6):
            a(f"s_waitcnt lgkmcnt({min(15, 3*(5-k)+1)})")
            self.mfma(D0, AA + 4 * k, BB + 8 * k, None if k == 0 else D0)
            self.mfma(D1, AA + 4 * k, BB + 8 * k + 4, None if k == 0 else D1)
        a("s_waitcnt lgkmcnt(0)\ns_nop 7")
        for D in (D0, D1):
            a(f"""v_add_f32 v{D}, v{D}, v{D+1}
            v_add_f32 v{D+2}, v{D+2}, v{D+3}
            v_mul_f32 v{D}, v{D}, v{SCL}
            v_fmac_f32 v{D}, v{D+2}, v{SCL+1}""")
        a(f"""s_nop 1
        v_permlane16_swap_b32 v{D0}, v{D1}
        s_nop 1
        v_add_f32 v{D0}, v{D0}, v{D1}""")
        self.tag(D0, D0, vTG)
        a(f"""s_mov_b32 exec_hi, 0
        buffer_store_dword v{D0}, v{vT3}, s[56:59], s9 offen sc1
        s_mov_b64 exec, -1""")
        self.stamp(5, 12)
        for i, r in enumerate(self.fs):
            self.stamp(6 + i, 12, src=r)
        a("s_endpgm")

    def gen_H(self):
        self.cls = "H"
        a = self.a
        vL = 0
        vT0, vT1, vT2, vT3, vT4, vT5, vW = 1, 2, 3, 4, 5, 6, 7
        vX = 8
        vSEL = 18
        vTG = 26
        vCK = 27
        vF = 28
        vA, vACC = 28, 36
        vE = 52
        TI = 64
        if self.hprio:
            a(f"s_setprio {self.hprio}")
        a("s_sub_u32 s3, s3, 4")
        a(f"""s_and_b32 s14, s10, 7
        v_lshrrev_b32 v{vT0}, 5, v{vL}
        v_mul_u32_u24 v{vT0}, 1280, v{vT0}
        v_and_b32 v{vT1}, 31, v{vL}
        v_lshl_add_u32 v{vT0}, v{vT1}, 3, v{vT0}
        v_lshrrev_b32 v{vT1}, 3, v{vL}
        v_mul_u32_u24 v{vW}, {10*12288}, v{vT1}
        v_and_b32 v{vT2}, 7, v{vL}
        v_lshl_add_u32 v{vW}, v{vT2}, 4, v{vW}
        s_mul_i32 s9, s4, 384
        s_mul_i32 s11, s14, {80*12288}
        s_add_u32 s9, s9, s11
        s_lshl_b32 s11, s3, 7
        s_add_u32 s9, s9, s11
        v_add_u32 v{vW}, s9, v{vW}
        s_waitcnt lgkmcnt(0)""")
        self.srd(60, 16, 2560)
        self.srd(44, 22, 640 * 12288)
        for t in range(5):
            a(f"buffer_load_dwordx2 v[{vX+2*t}:{vX+2*t+1}], v{vT0}, s[60:63], 0 offen offset:{256*t}")
        a(f"""s_mul_hi_u32 s53, s2, {(2**32 + 23)//24}
        s_mul_i32 s52, s53, 24
        s_sub_u32 s52, s2, s52
        s_min_u32 s53, s53, 9
        s_cmp_eq_u32 s3, 3
        s_cbranch_scc1 L_ld3""")
        for G in range(10):
            a(f"s_mov_b32 s9, {G*12288}")
            a(f"buffer_load_dwordx4 v[{TI+4*G}:{TI+4*G+3}], v{vW}, s[44:47], s9 offen {self.wf}")
        a("s_branch L_ldd\nL_ld3:")
        self.gen_moe1_loads(vL, vT3, vT4, vT5, TI)
        a("L_ldd:")
        self.epoch_load()
        self.srd(56, 40, WS_SRD)
        self.selectors(vL, vSEL, vT3, vT4, vT5)
        a(f"s_mov_b32 s9, 0x3f803f80\ns_waitcnt vmcnt(10)")
        self.stamp(11, 60)
        for i in range(10):
            c = "0" if i == 0 else f"v{vT3}"
            a(f"v_dot2_f32_bf16 v{vT3}, v{vX+i}, s9, {c}")
        for i in range(2):
            a(f"v_lshlrev_b32 v{vF+2*i}, 16, v{vX+i}\nv_and_b32 v{vF+2*i+1}, 0xffff0000, v{vX+i}")
        k = 2
        for st in (1, 2, 4, 8):
            self.dpp("v_add_f32", vT3, vT3, vT3, f"row_ror:{st}")
            a(f"v_lshlrev_b32 v{vF+2*k}, 16, v{vX+k}\nv_and_b32 v{vF+2*k+1}, 0xffff0000, v{vX+k}")
            k += 1
        a(f"v_mov_b32 v{vT4}, v{vT3}")
        a(f"v_lshlrev_b32 v{vF+2*k}, 16, v{vX+k}\nv_and_b32 v{vF+2*k+1}, 0xffff0000, v{vX+k}")
        k += 1
        a(f"v_permlane16_swap_b32 v{vT3}, v{vT4}")
        while k < 10:
            a(f"v_lshlrev_b32 v{vF+2*k}, 16, v{vX+k}\nv_and_b32 v{vF+2*k+1}, 0xffff0000, v{vX+k}")
            k += 1
        a(f"v_add_f32 v{vT3}, v{vT3}, v{vT4}")
        def div640(v, t):
            a(f"""v_mul_f32 v{t}, {f32(1/640)}, v{v}
            v_fmac_f32 v{v}, {f32(-640.0)}, v{t}
            v_fmac_f32 v{t}, {f32(1/640)}, v{v}""")
        M2 = vE
        D2 = vE + 2
        Q2 = vE + 4
        div640(vT3, M2)
        a(f"v_mov_b32 v{M2+1}, v{M2}")
        for i in range(10):
            a(f"v_pk_add_f32 v[{D2}:{D2+1}], v[{vF+2*i}:{vF+2*i+1}], v[{M2}:{M2+1}] neg_lo:[0,1] neg_hi:[0,1]")
            if i == 0:
                a(f"v_pk_mul_f32 v[{Q2}:{Q2+1}], v[{D2}:{D2+1}], v[{D2}:{D2+1}]")
            else:
                a(f"v_pk_fma_f32 v[{Q2}:{Q2+1}], v[{D2}:{D2+1}], v[{D2}:{D2+1}], v[{Q2}:{Q2+1}]")
        a(f"v_add_f32 v{vT4}, v{Q2}, v{Q2+1}")
        self.rbf(M2)
        a(f"v_mov_b32 v{M2+1}, v{M2}")
        def xc(i):
            a(f"""v_pk_add_f32 v[{vF+2*i}:{vF+2*i+1}], v[{vF+2*i}:{vF+2*i+1}], v[{M2}:{M2+1}] neg_lo:[0,1] neg_hi:[0,1]
            v_cvt_pk_bf16_f32 v{vF+2*i+1}, v{vF+2*i}, v{vF+2*i+1}
            v_lshlrev_b32 v{vF+2*i}, 16, v{vF+2*i+1}
            v_and_b32 v{vF+2*i+1}, 0xffff0000, v{vF+2*i+1}""")
        k = 0
        for st in (1, 2, 4, 8):
            self.dpp("v_add_f32", vT4, vT4, vT4, f"row_ror:{st}")
            xc(k); k += 1
        a(f"v_mov_b32 v{vT5}, v{vT4}")
        xc(k); k += 1
        a(f"v_permlane16_swap_b32 v{vT4}, v{vT5}")
        xc(k); k += 1
        a(f"v_add_f32 v{vT4}, v{vT4}, v{vT5}")
        div640(vT4, vT5)
        self.rbf(vT5)
        a(f"v_add_f32 v{vT5}, {f32(1e-5)}, v{vT5}")
        self.rbf(vT5)
        a(f"v_sqrt_f32 v{vT5}, v{vT5}")
        xc(k); k += 1
        self.rbf(vT5)
        a(f"v_rcp_f32 v{D2}, v{vT5}")
        xc(k); k += 1
        a(f"v_mov_b32 v{D2+1}, v{D2}\nv_mov_b32 v{Q2}, v{vT5}\nv_mov_b32 v{Q2+1}, v{vT5}")
        while k < 10:
            xc(k); k += 1
        R2 = vE + 6
        for i in range(10):
            f = vF + 2 * i
            a(f"""v_pk_mul_f32 v[{R2}:{R2+1}], v[{f}:{f+1}], v[{D2}:{D2+1}]
            v_pk_fma_f32 v[{f}:{f+1}], v[{R2}:{R2+1}], v[{Q2}:{Q2+1}], v[{f}:{f+1}] neg_lo:[1,0,0] neg_hi:[1,0,0]
            v_pk_fma_f32 v[{R2}:{R2+1}], v[{f}:{f+1}], v[{D2}:{D2+1}], v[{R2}:{R2+1}]
            v_cvt_pk_bf16_f32 v{vX+i}, v{R2}, v{R2+1}""")
            if i & 1:
                t = i // 2
                a(f"ds_write_b64 v{vT0}, v[{vX+2*t}:{vX+2*t+1}] offset:{L_XN + 256*t}")
        a("s_waitcnt lgkmcnt(0)")
        self.epoch_use(vTG)
        self.stamp(15, 60, src=48)
        self.stamp(1, 60)
        a("s_cmp_eq_u32 s3, 3\ns_cbranch_scc1 L_qcons")
        a(f"""v_mul_u32_u24 v{vT3}, 20, v{vT1}
        s_mul_i32 s9, s14, 160
        v_add_u32 v{vT3}, s9, v{vT3}""")
        for bb in range(2):
            for t in range(5):
                a(f"ds_read_b32 v{vX+5*bb+t}, v{vT3} offset:{L_XN + 1280*bb + 4*t}")
        a(f"""v_lshrrev_b32 v{vT4}, 5, v{vL}
        v_mul_u32_u24 v{vT4}, 768, v{vT4}
        v_lshl_add_u32 v{vT4}, v{vT2}, 5, v{vT4}
        v_bfe_u32 v{vT5}, v{vL}, 4, 1
        v_lshl_add_u32 v{vT4}, v{vT5}, 4, v{vT4}
        s_lshl_b32 s9, s4, 3
        s_add_u32 s9, s9, s14
        s_mul_i32 s9, s9, 1536
        s_lshl_b32 s11, s3, 8
        s_add_u32 s9, s9, s11
        s_add_u32 s9, s9, {QX_OFF}
        s_waitcnt lgkmcnt(0)""")
        for G in range(10):
            self.buildA(vA, vX + G // 2, G & 1, vSEL)
            self.buildA(vA + 4, vX + 5 + G // 2, G & 1, vSEL)
            a(f"s_waitcnt vmcnt({9-G})\ns_nop 0")
            self.mfma(vACC, vA, TI + 4 * G, None if G == 0 else vACC)
            self.mfma(vACC + 4, vA + 4, TI + 4 * G, None if G == 0 else vACC + 4)
        a("s_nop 7")
        for r in range(4):
            a(f"v_permlane32_swap_b32 v{vACC+r}, v{vACC+4+r}")
        a("s_nop 1")
        for r in range(4):
            self.dpp("v_add_f32", vACC + r, vACC + 4 + r, vACC + r, "row_ror:8")
        for r in range(4):
            self.tag(vACC + r, vACC + r, vTG, rn=True)
        a(f"""s_mov_b32 exec_lo, 0x00ff00ff
        s_mov_b32 exec_hi, 0x00ff00ff
        buffer_store_dwordx4 v[{vACC}:{vACC+3}], v{vT4}, s[56:59], s9 offen sc1
        s_mov_b64 exec, -1
        s_branch L_qdone
        L_qcons:""")
        self.gen_moe1(vL, vT3, vT4, vT5, vSEL, vA, vACC, vTG, TI)
        a(f"""v_lshlrev_b32 v{vT3}, 4, v{vL}
        v_lshlrev_b32 v{vT4}, 3, v{vL}
        s_mul_i32 s9, s4, {8*1536}
        s_mul_i32 s11, s5, 768
        s_add_u32 s9, s9, s11
        s_add_u32 s70, s9, {QX_OFF}
        s_add_u32 s71, s70, 3072
        s_add_u32 s72, s70, 6144
        s_add_u32 s73, s70, 9216""")
        if self.qsleep:
            a(f"s_sleep {self.qsleep}")
        self.mpoll([(TI + 4 * k, f"buffer_load_dwordx4 v[{TI+4*k}:{TI+4*k+3}], v{vT3}, s[56:59], s{70+k//2} offen offset:{1536*(k&1)} sc1") for k in range(8)],
                   vTG, vCK, self.qsleep2, mask=("-1", "0xffff"))
        self.sum_quads(TI, 8)
        a("s_mov_b32 exec_hi, 0xffff")
        a(f"""v_cvt_pk_bf16_f32 v{TI}, v{TI}, v{TI+1}
        v_cvt_pk_bf16_f32 v{TI+1}, v{TI+2}, v{TI+3}
        ds_write_b64 v{vT4}, v[{TI}:{TI+1}] offset:{L_QB}
        s_mov_b64 exec, -1
        s_waitcnt lgkmcnt(0)
        L_qdone:""")
        self.stamp(2, 60)
        a(f"s_setprio {self.hprio1}")
        a("s_barrier")
        a(f"v_and_b32 v{vT1}, 15, v{vL}\nv_lshrrev_b32 v{vT2}, 4, v{vL}")
        if self.hskip:
            a("s_mov_b32 s68, 0\ns_branch L_noown")
        a(f"""s_cmp_ge_u32 s2, {0 if self.nomoe else 24}
        s_cbranch_scc1 L_nomoe1
        s_cmp_lg_u32 s3, 1
        s_cbranch_scc1 L_nomoe1""")
        self.gen_moe_red(vL, vT1, vT2, vT3, vT4, vT5, vTG, vCK, TI)
        a("L_nomoe1:")
        self.srd(44, 24, 0 if self.nowo else 6144 * 1280)
        a(f"""v_mul_u32_u24 v{vW}, {8*1280}, v{vT2}
        s_mul_i32 s9, s4, {192*1280}
        v_add_u32 v{vW}, s9, v{vW}
        v_lshl_add_u32 v{vT3}, v{vT1}, 2, v{vW}
        s_lshl_b32 s9, s3, 6
        s_add_u32 s9, s9, 1024
        v_add_u32 v{vT3}, s9, v{vT3}
        v_lshl_add_u32 v{vW}, v{vT1}, 4, v{vW}
        s_lshl_b32 s9, s3, 8
        v_add_u32 v{vW}, s9, v{vW}
        s_mov_b32 s14, 0x05040100
        s_mov_b32 s15, 0x07060302
        s_mul_i32 s9, s3, 12288
        s_add_u32 s9, s9, {L_WX}
        v_lshlrev_b32 v{vT4}, 4, v{vL}
        v_add_u32 v{vT4}, s9, v{vT4}""")
        for K0 in range(0, 6, 2):
            for K in (K0, K0 + 1):
                for e in range(8):
                    if e % 4 == 0:
                        a(f"s_mov_b32 s9, {(32*K + e)*1280}")
                    a(f"buffer_load_dword v{TI+8*K+e}, v{vT3}, s[44:47], s9 offen offset:{(e%4)*1280} {self.wof}")
            for K in (K0, K0 + 1):
                a(f"s_waitcnt vmcnt({8*(K0+1-K)})")
                d = TI + 48 + 8 * K
                for t in range(4):
                    a(f"v_perm_b32 v{d+t}, v{TI+8*K+2*t+1}, v{TI+8*K+2*t}, s14")
                    a(f"v_perm_b32 v{d+4+t}, v{TI+8*K+2*t+1}, v{TI+8*K+2*t}, s15")
                a(f"ds_write_b128 v{vT4}, v[{d}:{d+3}] offset:{2048*K}")
                a(f"ds_write_b128 v{vT4}, v[{d+4}:{d+7}] offset:{2048*K+1024}")
        a("s_waitcnt lgkmcnt(0)")
        self.stamp(3, 60)
        a(f"""s_cmp_ge_u32 s2, {0 if self.nomoe else 240}
        s_cbranch_scc1 L_nomoe2
        s_cmp_lg_u32 s3, 1
        s_cbranch_scc1 L_nomoe2""")
        self.gen_moe2(vL, vT1, vT2, vT3, vT4, vT5, vSEL, vA, vACC, vTG, vCK, TI)
        self.stamp(9, 60)
        a("L_nomoe2:")
        def REG(k): return 32 + 32 * k
        for K in range(6):
            for e in range(8):
                if e % 4 == 0:
                    a(f"s_mov_b32 s9, {(32*K + e)*1280}")
                r = REG(0) + 4 * e
                a(f"buffer_load_dwordx4 v[{r}:{r+3}], v{vW}, s[44:47], s9 offen offset:{(e%4)*1280} {self.wof}")
                if self.wobatch == 4 and e == 3:
                    a("s_waitcnt vmcnt(0)")
            s, d = REG(0), REG(K + 1)
            for t in range(4):
                a(f"s_waitcnt vmcnt({6-2*t})")
                for dd in range(4):
                    a(f"v_perm_b32 v{d+(2*dd)*4+t}, v{s+(2*t+1)*4+dd}, v{s+(2*t)*4+dd}, s14")
                    a(f"v_perm_b32 v{d+(2*dd+1)*4+t}, v{s+(2*t+1)*4+dd}, v{s+(2*t)*4+dd}, s15")
        vG, vXC, vOUTA, vPA, vSC = 8, 9, 10, 11, 12
        vAR, vST = 14, 15
        Wk = 32
        self.stamp(4, 60)
        a(f"""s_cmp_lg_u32 s3, 3
        s_cbranch_scc1 L_noep
        s_cmp_lg_u32 s2, 0
        s_cbranch_scc1 L_noep""")
        Lc, Lcd = self.lab("c0"), self.lab("c0d")
        a(f"""s_mov_b32 s12, {self.poll_max}
        v_lshlrev_b32 v{Wk+8}, 6, v{vL}
        v_mov_b32 v{Wk+9}, s{sT}
        s_mov_b32 s9, {ST_OFF + 8}
        s_mov_b32 s10, {ST_OFF + 8 + 4096}
        s_mov_b32 s11, {ST_OFF + 8 + 8192}
        s_mov_b32 s13, {ST_OFF + 8 + 12288}
        {Lc}:
        s_sleep 127
        buffer_load_dwordx2 v[{Wk}:{Wk+1}], v{Wk+8}, s[56:59], s9 offen sc1
        buffer_load_dwordx2 v[{Wk+2}:{Wk+3}], v{Wk+8}, s[56:59], s10 offen sc1
        buffer_load_dwordx2 v[{Wk+4}:{Wk+5}], v{Wk+8}, s[56:59], s11 offen sc1
        buffer_load_dwordx2 v[{Wk+6}:{Wk+7}], v{Wk+8}, s[56:59], s13 offen sc1
        s_waitcnt vmcnt(0)""")
        self.chk4(vCK, Wk, Wk + 9, first=True, n=8)
        a(f"""v_cmp_ne_u32 vcc, 0, v{vCK}
        s_cbranch_vccz {Lcd}
        s_sub_u32 s12, s12, 1
        s_cmp_gt_u32 s12, 0
        s_cbranch_scc1 {Lc}
        {Lcd}:
        v_mov_b32 v{Wk}, 0
        s_mov_b32 s9, {EP_OFF}
        s_mov_b64 exec, 1
        buffer_store_dword v{Wk+9}, v{Wk}, s[56:59], s9 offen sc1
        s_mov_b64 exec, -1
        L_noep:""")
        a("s_cmp_lg_u32 s3, 0\ns_cbranch_scc1 L_nostat")
        if self.nopoll:
            a("s_branch L_nostat")
        Ls, Lsd = self.lab("st"), self.lab("std")
        a(f"""s_lshl_b32 s9, s8, 8
        s_add_u32 s9, s9, {ST_OFF}
        v_lshlrev_b32 v{Wk+4}, 4, v{vT1}
        v_mov_b32 v{Wk+5}, s{sT}
        s_mov_b32 s12, {self.poll_max}
        {Ls}:
        buffer_load_dwordx4 v[{Wk}:{Wk+3}], v{Wk+4}, s[56:59], s9 offen sc1
        s_waitcnt vmcnt(0)""")
        self.chk4(vCK, Wk, vTG, first=True, n=2)
        a(f"""v_and_b32 v{vCK}, 0xff, v{vCK}
        v_bitop3_b32 v{vCK}, v{Wk+2}, v{Wk+5}, v{vCK} bitop3:0xbe
        v_bitop3_b32 v{vCK}, v{Wk+3}, v{Wk+5}, v{vCK} bitop3:0xbe
        v_cmp_ne_u32 vcc, 0, v{vCK}
        s_cbranch_vccz {Lsd}
        s_sleep {self.stsleep}
        s_sub_u32 s12, s12, 1
        s_cmp_gt_u32 s12, 0
        s_cbranch_scc1 {Ls}
        {Lsd}:""")
        if self.diagx:
            a(f"""v_bfe_u32 v{Wk+2}, v{Wk}, 8, 4
            v_and_b32 v{Wk}, 0xffff0000, v{Wk}
            s_getreg_b32 s9, hwreg(HW_REG_XCC_ID, 0, 4)
            v_cmp_ne_u32 vcc, s9, v{Wk+2}
            s_cbranch_vccz L_dx
            s_mov_b32 s12, 40
            L_dx1:
            s_sleep 127
            s_sub_u32 s12, s12, 1
            s_cmp_gt_u32 s12, 0
            s_cbranch_scc1 L_dx1
            L_dx:""")
        a(f"v_mov_b32 v{Wk+2}, v{Wk}")
        self.row_reduce("v_max_f32", Wk + 2)
        a(f"""v_sub_f32 v{Wk}, v{Wk}, v{Wk+2}
        v_mul_f32 v{Wk}, {LOG2E}, v{Wk}
        v_exp_f32 v{Wk}, v{Wk}
        s_nop 0
        v_mul_f32 v{Wk+1}, v{Wk+1}, v{Wk}""")
        self.row_reduce("v_add_f32", Wk + 1)
        a(f"""v_rcp_f32 v{Wk+2}, v{Wk+1}
        s_nop 0
        v_mul_f32 v{Wk+3}, v{Wk}, v{Wk+2}
        v_fma_f32 v{Wk}, -v{Wk+3}, v{Wk+1}, v{Wk}
        v_fmac_f32 v{Wk+3}, v{Wk}, v{Wk+2}
        s_lshl_b32 s9, s6, 2
        v_subrev_u32 v{Wk+4}, s9, v{vL}
        v_cmp_gt_u32 vcc, 4, v{Wk+4}
        v_lshlrev_b32 v{Wk+4}, 2, v{Wk+4}
        s_and_saveexec_b64 s[10:11], vcc
        ds_write_b32 v{Wk+4}, v{Wk+3} offset:{L_SCALE}
        s_mov_b64 exec, -1
        L_nostat:""")
        a(f"""s_lshl_b32 s67, s6, 5
        s_add_u32 s67, s67, s4
        s_mov_b32 s68, 0
        s_cmp_lg_u32 s3, 2
        s_cbranch_scc1 L_noown
        s_cmp_ge_u32 s67, 40
        s_cbranch_scc1 L_noown
        s_mov_b32 s68, 1""")
        self.srd(60, 28, 1280)
        W = Wk
        a(f"""v_lshlrev_b32 v{W+20}, 2, v{vL}
        s_mul_i32 s9, s5, 1280
        v_add_u32 v{W+21}, s9, v{W+20}""")
        for t in range(5):
            a(f"buffer_load_dword v{W+t}, v{W+20}, s[60:63], 0 offen offset:{256*t}")
            a(f"ds_read_b32 v{W+5+t}, v{W+21} offset:{L_XN + 256*t}")
        self.srd(60, 16, 2560)
        a(f"""v_and_b32 v{W+22}, 3, v{vL}
        v_lshl_add_u32 v{vOUTA}, v{W+22}, 2, v{vT2}
        v_lshlrev_b32 v{vOUTA}, 1, v{vOUTA}
        s_lshl_b32 s10, s67, 5
        s_add_u32 s10, s10, s9
        v_add_u32 v{vOUTA}, s10, v{vOUTA}
        buffer_load_ushort v{vXC}, v{vOUTA}, s[60:63], 0 offen
        ds_read_u16 v{W+23}, v{vOUTA} offset:{L_XN}
        s_waitcnt vmcnt(0) lgkmcnt(0)""")
        for t in range(5):
            c = "0" if t == 0 else f"v{W+24}"
            a(f"v_dot2_f32_bf16 v{W+24}, v{W+t}, v{W+5+t}, {c}")
        a(f"v_lshlrev_b32 v{vXC}, 16, v{vXC}\nv_lshlrev_b32 v{W+23}, 16, v{W+23}\ns_nop 1")
        self.row_reduce("v_add_f32", W + 24)
        self.swap_reduce("v_add_f32", W + 24, W + 25, 16)
        self.swap_reduce("v_add_f32", W + 24, W + 25, 32)
        self.rbf(W + 24)
        self.sigmoid_like(W + 24, W + 24)
        self.rbf(W + 24)
        Ly, Lyd = self.lab("y"), self.lab("yd")
        a(f"""v_lshrrev_b32 v{W+20}, 2, v{vL}
        v_mul_u32_u24 v{W+21}, 5120, v{W+20}
        v_lshl_add_u32 v{W+21}, v{W+22}, 4, v{W+21}
        v_mul_u32_u24 v{vPA}, 2560, v{W+20}
        v_lshl_add_u32 v{vPA}, v{W+22}, 4, v{vPA}
        s_mul_i32 s9, s5, 2560
        s_lshl_b32 s10, s67, 6
        s_add_u32 s9, s9, s10
        s_add_u32 s9, s9, {Y_OFF}
        s_add_u32 s10, s9, {16*5120}
        s_add_u32 s11, s9, {32*5120}
        """)
        ylds = [(W + 4 * t, f"buffer_load_dwordx4 v[{W+4*t}:{W+4*t+3}], v{W+21}, s[56:59], s{9+t} offen sc1") for t in range(3)]
        if self.nomoe:
            for r, txt in ylds:
                a(txt)
            a("s_waitcnt vmcnt(0)")
        else:
            self.mpoll(ylds, vTG, vCK, 64)
        self.sum_quads(W, 3)
        self.merge4(W)
        self.rbf(W)
        a(f"v_mul_f32 v{W}, v{W}, v{W+24}")
        self.rbf(W)
        a(f"v_add_f32 v{W}, v{W}, v{W+23}")
        self.rbf(W)
        self.sigmoid_like(W + 1, W)
        a(f"v_mul_f32 v{vG}, v{W}, v{W+1}")
        self.rbf(vG)
        a(f"""s_mul_i32 s70, s5, {128*2560}
        s_lshl_b32 s10, s67, 6
        s_add_u32 s70, s70, s10""")
        for t in range(1, 8):
            a(f"s_add_u32 s{70+t}, s70, {t*40960}")
        a("L_noown:")
        self.srd(60, 36, 2560)
        a(f"""v_and_b32 v{vAR}, 7, v{vL}
        v_mul_u32_u24 v{vAR}, {OS}, v{vAR}
        v_lshl_add_u32 v{vAR}, v{vT2}, 4, v{vAR}
        v_and_b32 v{vT3}, 1, v{vT2}
        v_lshlrev_b32 v{vST}, 5, v{vT1}
        v_lshl_add_u32 v{vST}, v{vT3}, 4, v{vST}
        v_lshlrev_b32 v{vT3}, 3, v{vT3}
        s_mul_i32 s9, s7, 2560
        s_lshl_b32 s10, s3, 9
        s_add_u32 s9, s9, s10
        s_waitcnt vmcnt(0) lgkmcnt(0)""")
        self.stamp(5, 60)
        a(f"s_setprio {self.hprio2}")
        a("s_barrier")
        self.stamp(6, 60)
        Aop = [16, 20, 28, REG(1), REG(1) + 4, REG(1) + 8]
        for k in range(3):
            a(f"ds_read_b128 v[{Aop[k]}:{Aop[k]+3}], v{vAR} offset:{L_O + 64*k}")
        a(f"ds_read_b64 v[{vSC}:{vSC+1}], v{vT3} offset:{L_SCALE}")
        waits = [3, 5, 4, 2, 1, 0]
        for k in range(6):
            a(f"s_waitcnt lgkmcnt({waits[k]})")
            for c in range(8):
                self.mfma(32 + 4 * c, Aop[k], REG(k + 1) + 4 * c, None if k == 0 else 32 + 4 * c)
            if k == 0:
                for kk in (3, 4, 5):
                    a(f"ds_read_b128 v[{Aop[kk]}:{Aop[kk]+3}], v{vAR} offset:{L_O + 64*kk}")
        a("s_nop 1")
        for c in range(8):
            D = 32 + 4 * c
            a(f"""v_add_f32 v{D}, v{D}, v{D+1}
            v_add_f32 v{D+2}, v{D+2}, v{D+3}
            v_mul_f32 v{D}, v{D}, v{vSC}
            v_fmac_f32 v{D}, v{D+2}, v{vSC+1}""")
        a("s_nop 1")
        for c in range(4):
            a(f"v_permlane16_swap_b32 v{32+4*c}, v{48+4*c}")
        a("s_nop 1")
        for c in range(4):
            a(f"v_add_f32 v{16+c}, v{32+4*c}, v{48+4*c}")
        for c in range(4):
            self.tag(16 + c, 16 + c, vTG)
        a(f"""s_mov_b32 exec_hi, 0
        buffer_store_dwordx4 v[16:19], v{vST}, s[56:59], s9 offen sc1
        s_mov_b32 exec_hi, -1""")
        self.stamp(7, 60)
        a("""s_cmp_eq_u32 s68, 0
        s_cbranch_scc1 L_end""")
        Lp, Lpd = self.lab("p"), self.lab("pd")
        Z = 64
        self.mpoll([(Z + 4 * t, f"buffer_load_dwordx4 v[{Z+4*t}:{Z+4*t+3}], v{vPA}, s[56:59], s{70+t} offen sc1") for t in range(8)],
                   vTG, vCK, self.psleep)
        self.sum_quads(Z, 8)
        self.merge4(Z)
        self.rbf(Z)
        a(f"v_mul_f32 v{Z}, v{Z}, v{vG}")
        self.rbf(Z)
        a(f"""v_add_f32 v{Z}, v{Z}, v{vXC}
        v_cvt_pk_bf16_f32 v{Z}, v{Z}, v{Z}
        s_mov_b32 exec_lo, 0x000f000f
        s_mov_b32 exec_hi, 0x000f000f
        buffer_store_short v{Z}, v{vOUTA}, s[60:63], 0 offen""")
        if self.padto:
            if self.padwg >= 0:
                a(f"s_cmp_lg_u32 s2, {self.padwg}\ns_cbranch_scc1 L_end")
            a(f"""L_pad:
            s_memrealtime s[50:51]
            s_waitcnt lgkmcnt(0)
            s_sub_u32 s50, s50, s48
            s_cmp_lt_u32 s50, {self.padto}
            s_cbranch_scc1 L_pad""")
        self.stamp(8, 60)

    def gen_moe1_loads(self, vL, vT3, vT4, vT5, TI):
        a = self.a
        vAD = 48
        a(f"""v_and_b32 v{vT5}, 8, v{vL}
        v_cmp_eq_u32 vcc, 0, v{vT5}
        v_mov_b32 v{vT3}, s32
        v_mov_b32 v{vT4}, s30
        v_cndmask_b32 v{vAD}, v{vT3}, v{vT4}, vcc
        v_mov_b32 v{vT3}, s33
        v_mov_b32 v{vT4}, s31
        v_cndmask_b32 v{vAD+1}, v{vT3}, v{vT4}, vcc
        v_lshrrev_b32 v{vT3}, 4, v{vL}
        v_mul_u32_u24 v{vT3}, {16*3072}, v{vT3}
        v_and_b32 v{vT4}, 7, v{vL}
        v_lshl_add_u32 v{vT3}, v{vT4}, 4, v{vT3}
        s_lshl_b32 s9, s52, 7
        s_mul_i32 s10, s53, {64*3072}
        s_add_u32 s9, s9, s10
        v_add_u32 v{vT4}, s9, v{vT3}
        v_mov_b32 v{vT5}, 0
        v_add_co_u32 v{vAD}, vcc, v{vAD}, v{vT4}
        s_mov_b32 s10, 6144
        s_mov_b32 s11, 0
        v_addc_co_u32 v{vAD+1}, vcc, v{vAD+1}, v{vT5}, vcc""")
        for t in range(16):
            a(f"global_load_dwordx4 v[{TI+4*t}:{TI+4*t+3}], v[{vAD}:{vAD+1}], off offset:{3072*(t&1)} {self.mf}")
            if t & 1 and t < 15:
                a(f"v_lshl_add_u64 v[{vAD}:{vAD+1}], v[{vAD}:{vAD+1}], 0, s[10:11]")

    def gen_moe1(self, vL, vT3, vT4, vT5, vSEL, vA, vACC, vTG, TI):
        a = self.a
        a(f"""v_bfe_u32 v{vT3}, v{vL}, 3, 1
        v_mul_u32_u24 v{vT3}, 1280, v{vT3}
        v_lshrrev_b32 v{vT4}, 4, v{vL}
        v_lshl_add_u32 v{vT3}, v{vT4}, 5, v{vT3}
        s_lshl_b32 s9, s53, 7
        v_add_u32 v{vT3}, s9, v{vT3}
        ds_read_b128 v[8:11], v{vT3} offset:{L_XN}
        ds_read_b128 v[12:15], v{vT3} offset:{L_XN+16}
        s_mul_i32 s9, s52, 10240
        s_lshl_b32 s10, s53, 10
        s_add_u32 s9, s9, s10
        s_add_u32 s9, s9, {G1_OFF}
        v_lshlrev_b32 v{vT3}, 4, v{vL}
        s_waitcnt lgkmcnt(0)""")
        for t in range(16):
            A = vA + 4 * (t & 1)
            self.buildA(A, 8 + t // 2, t & 1, vSEL)
            a(f"s_waitcnt vmcnt({15-t})\ns_nop 0")
            self.mfma(vACC, A, TI + 4 * t, None if t == 0 else vACC)
        a(f"""s_nop 7
        s_cmp_ge_u32 s2, {0 if self.nomoe else 240}
        s_cbranch_scc1 L_nog1""")
        for r in range(4):
            self.tag(vACC + r, vACC + r, vTG, rn=True)
        a(f"buffer_store_dwordx4 v[{vACC}:{vACC+3}], v{vT3}, s[56:59], s9 offen sc1\nL_nog1:")

    def gen_moe_red(self, vL, vT1, vT2, vT3, vT4, vT5, vTG, vCK, TI):
        a = self.a
        a(f"""s_mul_i32 s9, s52, 10240
        s_add_u32 s9, s9, {G1_OFF}
        s_add_u32 s10, s9, 4096
        s_add_u32 s11, s9, 8192
        v_lshlrev_b32 v{vT3}, 4, v{vL}""")
        self.mpoll([(TI + 4 * t, f"buffer_load_dwordx4 v[{TI+4*t}:{TI+4*t+3}], v{vT3}, s[56:59], s{9 + t//4} offen offset:{(t%4)*1024} sc1") for t in range(10)],
                   vTG, vCK, 32)
        self.sum_quads(TI, 10)
        for r in range(4):
            self.rbf(TI + r)
        a("s_nop 1")
        for r in range(4):
            a(f"v_mov_b32_dpp v{TI+4+r}, v{TI+r} row_ror:8 row_mask:0xf bank_mask:0xf")
        for r in range(4):
            self.sigmoid_like(vT3, TI + r)
            a(f"v_mul_f32 v{TI+r}, v{TI+r}, v{vT3}")
            self.rbf(TI + r)
            a(f"v_mul_f32 v{TI+r}, v{TI+r}, v{TI+4+r}")
            self.rbf(TI + r)
            a(f"v_or_b32 v{TI+r}, v{TI+r}, v{vTG}")
        a(f"""v_lshrrev_b32 v{vT3}, 1, v{vT2}
        v_lshlrev_b32 v{vT3}, 8, v{vT3}
        v_lshl_add_u32 v{vT3}, v{vT1}, 5, v{vT3}
        v_and_b32 v{vT4}, 1, v{vT2}
        v_lshl_add_u32 v{vT3}, v{vT4}, 4, v{vT3}
        s_lshl_b32 s9, s52, 9
        s_add_u32 s9, s9, {HX_OFF}
        s_mov_b32 exec_lo, 0x00ff00ff
        s_mov_b32 exec_hi, 0x00ff00ff
        buffer_store_dwordx4 v[{TI}:{TI+3}], v{vT3}, s[56:59], s9 offen sc1
        s_mov_b64 exec, -1
        s_waitcnt vmcnt(0)""")

    def gen_moe2(self, vL, vT1, vT2, vT3, vT4, vT5, vSEL, vA, vACC, vTG, vCK, TI):
        a = self.a
        DT = TI + 64
        vD = 52
        a(f"""s_cmp_ge_u32 s53, 5
        s_cselect_b32 s54, 1, 0
        s_mul_i32 s55, s54, 5
        s_sub_u32 s55, s53, s55""")
        self.srd(60, 34, 1536 * 1280)
        a(f"""v_mul_u32_u24 v{vD}, {8*1280}, v{vT2}
        v_lshl_add_u32 v{vD}, v{vT1}, 4, v{vD}
        s_mul_i32 s9, s52, {64*1280}
        s_mul_i32 s10, s54, {32*1280}
        s_add_u32 s9, s9, s10
        s_lshl_b32 s10, s55, 8
        s_add_u32 s9, s9, s10
        s_add_u32 s10, s9, {4*1280}""")
        for Gd in range(8):
            a(f"buffer_load_dwordx4 v[{DT+4*Gd}:{DT+4*Gd+3}], v{vD}, s[60:63], s{9 + Gd//4} offen offset:{(Gd%4)*1280} {self.mf}")
        a(f"""v_lshrrev_b32 v{vT3}, 3, v{vT1}
        v_lshlrev_b32 v{vT3}, 8, v{vT3}
        v_lshl_add_u32 v{vT3}, v{vT2}, 5, v{vT3}
        s_lshl_b32 s9, s52, 9
        s_lshl_b32 s10, s54, 7
        s_add_u32 s9, s9, s10
        s_add_u32 s9, s9, {HX_OFF}""")
        self.mpoll([(TI + 4 * t, f"buffer_load_dwordx4 v[{TI+4*t}:{TI+4*t+3}], v{vT3}, s[56:59], s9 offen offset:{16*t} sc1") for t in range(2)],
                   vTG, vCK, 32)
        for Gd in range(8):
            A = vA + 4 * (Gd & 1)
            self.buildA(A, TI + Gd, 1, vSEL)
            a("s_nop 1")
            self.mfma(vACC, A, DT + 4 * Gd, None if Gd == 0 else vACC)
        a(f"""v_lshrrev_b32 v{vT3}, 1, v{vT2}
        v_mul_u32_u24 v{vT3}, 2560, v{vT3}
        v_lshl_add_u32 v{vT3}, v{vT1}, 5, v{vT3}
        v_and_b32 v{vT4}, 1, v{vT2}
        v_lshl_add_u32 v{vT3}, v{vT4}, 4, v{vT3}
        s_lshl_b32 s9, s52, 1
        s_add_u32 s9, s9, s54
        s_mul_i32 s9, s9, 5120
        s_lshl_b32 s10, s55, 9
        s_add_u32 s9, s9, s10
        s_add_u32 s9, s9, {Y_OFF}
        s_nop 3""")
        for r in range(4):
            self.tag(vACC + r, vACC + r, vTG, rn=True)
        a(f"buffer_store_dwordx4 v[{vACC}:{vACC+3}], v{vT3}, s[56:59], s9 offen sc1\ns_waitcnt vmcnt(0)")

    def text(self):
        hdr = open("recurrent_scan__mha_block_cached__moe_arch_mod__decode.s.ref").read().split("; Override launch")[0]
        self.gen()
        return hdr + f"""; @launch grid=(256,1,1) block=(512,1,1) lds={LDS_BYTES}
.amdgcn_target "amdgcn-amd-amdhsa--gfx950"
.text
.globl {KNAME}
.p2align 8
.type {KNAME},@function
{KNAME}:
""" + "\n".join(self.o) + f"""
.section .rodata,"a"
.p2align 6
.amdhsa_kernel {KNAME}
  .amdhsa_next_free_vgpr 256
  .amdhsa_next_free_sgpr 102
  .amdhsa_accum_offset 256
  .amdhsa_group_segment_fixed_size 0
  .amdhsa_kernarg_size 104
  .amdhsa_user_sgpr_count 2
  .amdhsa_user_sgpr_kernarg_segment_ptr 1
  .amdhsa_system_sgpr_workgroup_id_x 1
  .amdhsa_float_denorm_mode_32 3
.end_amdhsa_kernel
"""


if __name__ == "__main__":
    out = sys.argv[1]
    kw = {}
    for arg in sys.argv[2:]:
        k, v = arg.split("=", 1)
        try:
            v = int(v)
        except ValueError:
            pass
        kw[k] = v
    open(out, "w").write(G(**kw).text())
```

```python
import sys, struct

KNAME = "recurrent_scan__mha_block_cached__moe_arch_mod__decode_kernel"
TB = 201326592
CH = 786432
STEP = 12288

P_OFF = 0
ST_OFF = 256 * 2560
EP_OFF = ST_OFF + 64 * 256
Y_OFF = EP_OFF + 256
QX_OFF = Y_OFF + 48 * 5120
G1_OFF = QX_OFF + 32 * 8 * 2 * 768
HX_OFF = G1_OFF + 240 * 1024
TS_OFF = HX_OFF + 24 * 512
WS_USED = TS_OFF + 4 * 8192
STAMP_OFF = 2 << 20
WS_SRD = 4 << 20
assert WS_USED <= STAMP_OFF

L_XN = 0
L_QB = 2560
L_SC = L_QB + 512
OS = 416
L_O = L_SC + 4 * 1152
L_SCALE = L_O + 8 * OS
L_PROG = L_SCALE + 48
L_BOOST = L_SCALE + 52
L_HB = L_SCALE + 64
L_WX = (L_HB + 256 + 1023) // 1024 * 1024
LDS_BYTES = L_WX + 4 * 12 * 1024

LOG2E = 0x3fb8aa3b
SCALE_F32 = 0x3d93cd3a
assert struct.unpack("<I", struct.pack("<f", 192 ** -0.5))[0] == SCALE_F32
def f32(x): return "0x%08x" % struct.unpack("<I", struct.pack("<f", x))[0]
NLOG2E = f32(-1.4426950408889634)

sWAVE, sH, sB, sSPLIT, sCHUNK, sBH = 3, 4, 5, 6, 7, 8
sT = 78
sMASK = 79
sWV = 69


class G:
    def __init__(self, R0=16, R1=8, W=4, W0=3, kvflags="nt", wflags="nt", woflags="pl", moeflags="nt", rot=1, stamps=0,
                 poll_max=1 << 18, hprio=3, hprio1=0, hprio2=3, wobatch=8, nowo=0, nomoe=0, noq=0, nob0=0, D=2, GI=4, early=0, nok=0, nopoll=0, hskip=0, stsleep=16, DV=0, earlyV=-1, D0=0, hsleep=0, diagx=0, padto=0, padwg=-1, qsleep=0, psleep=0, NE=0, DE=4, qsleep2=0, NB=0, ctl=1, cps='1,5,8', gains='9,7,7', dead=30, cdelay='48,32,16', gb=0, brk=1, mix=1, kboost=-1, pre=0, wosleep=0, dry=1, pthr=32, pslow=8, pcap=24):
        self.dry, self.pthr, self.pslow, self.pcap = dry, pthr, pslow, pcap
        self.kboost, self.pre, self.wosleep = kboost, pre, wosleep
        self.gb, self.brk, self.mix = gb, brk, mix
        self.ctl = ctl
        self.NB = NB
        self.cps = [int(x) for x in str(cps).split(',')]
        self.gains = [float(x) for x in str(gains).split(',')]
        self.dead = dead
        self.cdelay = [int(x) for x in str(cdelay).split(',')]
        self.NE, self.DE, self.qsleep2 = NE, DE, qsleep2
        self.qsleep, self.psleep = qsleep, psleep
        self.padwg = padwg
        self.padto = padto
        self.diagx = diagx
        self.DV = DV or D
        self.earlyV = early if earlyV < 0 else earlyV
        self.D0 = D0 or D
        self.hsleep = hsleep
        self.nok, self.nopoll, self.hskip, self.stsleep = nok, nopoll, hskip, stsleep
        self.D, self.GI, self.early = D, GI, early
        self.nowo, self.nomoe, self.noq, self.nob0 = nowo, nomoe, noq, nob0
        self.hprio1, self.hprio2 = hprio1, hprio2
        self.o = []
        self.R0, self.R1, self.W, self.W0 = R0, R1, W, W0
        fl = lambda x: '' if x == 'pl' else x.replace('_', ' ')
        self.kvf, self.wf, self.mf = fl(kvflags), fl(wflags), fl(moeflags)
        self.wof = fl(woflags)
        self.rot = rot
        self.stamps = stamps
        self.poll_max = poll_max
        self.hprio = hprio
        self.wobatch = wobatch
        self.nlab = 0

    def a(self, s):
        for ln in s.split("\n"):
            ln = ln.strip()
            if ln:
                self.o.append(("" if ln.endswith(":") else "    ") + ln)

    def lab(self, p="L"):
        self.nlab += 1
        return f"{p}_{self.nlab}"

    def srd(self, q, lo, nbytes):
        self.a(f"s_mov_b32 s{q}, s{lo}\ns_mov_b32 s{q+1}, s{lo+1}\ns_mov_b32 s{q+2}, {nbytes}\ns_mov_b32 s{q+3}, 0x20000")

    def dpp(self, op, d, s0, s1, ctrl):
        self.a(f"{op}_dpp v{d}, v{s0}, v{s1} {ctrl} row_mask:0xf bank_mask:0xf")

    def row_reduce(self, op, v, steps=(1, 2, 4, 8)):
        for s in steps:
            self.a("s_nop 1")
            self.dpp(op, v, v, v, f"row_ror:{s}")

    def swap_reduce(self, op, v, t, which):
        self.a(f"v_mov_b32 v{t}, v{v}\ns_nop 1\nv_permlane{which}_swap_b32 v{v}, v{t}\ns_nop 1\n{op} v{v}, v{v}, v{t}")

    def stamp(self, idx, vt, st=50, src=None):
        if not self.stamps:
            return
        if self.stamps == 3 and (self.cls == "H" or idx in (0, 1, 2, 3, 4)):
            return
        if src is None:
            self.a(f"s_memrealtime s[{st}:{st+1}]")
            src = st
        if self.stamps == 2:
            slot = (idx if idx < 15 else 0) + (1 if self.cls == "S" else 7)
            if self.cls == "H" and idx not in (1, 2, 4, 7, 8):
                return
            if self.cls == "H":
                slot = {1: 8, 2: 9, 4: 10, 7: 11, 8: 12}[idx]
            elif idx == 15:
                slot = 1
            else:
                slot = 2 + idx
            inv = f"s_mov_b32 s65, s{src}"
            Lsk = self.lab("sk")
            if not (self.cls == "H" and idx == 8):
                self.a(f"""s_waitcnt lgkmcnt(0)
                s_cmp_lg_u32 s2, 0
                s_cbranch_scc1 {Lsk}""")
            self.a(f"""s_waitcnt lgkmcnt(0)
            {inv}
            v_mov_b32 v{vt}, s65
            v_mov_b32 v{vt+2}, {slot*4}
            s_mov_b64 exec, 1
            global_atomic_umax v{vt+2}, v{vt}, s[38:39] sc1
            s_mov_b64 exec, -1
            {Lsk}:""")
            return
        self.a(f"""s_lshl_b32 s65, s2, 3
        s_add_u32 s65, s65, s{sWV}
        s_lshl_b32 s65, s65, 7
        s_add_u32 s65, s65, {STAMP_OFF + idx*8}
        s_waitcnt lgkmcnt(0)
        v_mov_b32 v{vt}, s{src}
        v_mov_b32 v{vt+1}, s{src+1}
        v_mov_b32 v{vt+2}, 0
        s_mov_b64 exec, 1
        buffer_store_dwordx2 v[{vt}:{vt+1}], v{vt+2}, s[56:59], s65 offen
        s_mov_b64 exec, -1""")

    def selectors(self, vL, base, t0, t1, t2):
        a = self.a
        a(f"""v_and_b32 v{t0}, 1, v{vL}
        v_cmp_eq_u32 vcc, 1, v{t0}
        v_mov_b32 v{t0}, 0x0c0c0100
        v_mov_b32 v{t1}, 0x01000c0c
        v_cndmask_b32 v{t0}, v{t0}, v{t1}, vcc
        v_mov_b32 v{t1}, 0x0c0c0302
        v_mov_b32 v{t2}, 0x03020c0c
        v_cndmask_b32 v{t1}, v{t1}, v{t2}, vcc
        v_bfe_u32 v{t2}, v{vL}, 1, 2""")
        for j in range(4):
            a(f"""v_cmp_eq_u32 vcc, {j}, v{t2}
            v_mov_b32 v{base+j}, 0x0c0c0c0c
            v_mov_b32 v{base+4+j}, 0x0c0c0c0c
            v_cndmask_b32 v{base+j}, v{base+j}, v{t0}, vcc
            v_cndmask_b32 v{base+4+j}, v{base+4+j}, v{t1}, vcc""")

    def buildA(self, A, P, hi, sel):
        for j in range(4):
            self.a(f"v_perm_b32 v{A+j}, v{P}, v{P}, v{sel + (4 if hi else 0) + j}")

    def mfma(self, D, A, B, C):
        c = "0" if C is None else f"v[{C}:{C+3}]"
        self.a(f"v_mfma_f32_16x16x32_bf16 v[{D}:{D+3}], v[{A}:{A+3}], v[{B}:{B+3}], {c}")

    def rbf(self, v):
        self.a(f"v_cvt_pk_bf16_f32 v{v}, v{v}, v{v}\nv_lshlrev_b32 v{v}, 16, v{v}")

    def tag(self, d, s, vTG, rn=False):
        if rn:
            self.a(f"v_add_u32 v{d}, 0x80, v{s}")
            s = d
        self.a(f"v_and_or_b32 v{d}, v{s}, s{sMASK}, v{vTG}")

    def chk4(self, acc, x, vTG, first=False, n=4):
        for r in range(n):
            self.a(f"v_xor_b32 v{x+r}, v{x+r}, v{vTG}")
        for r in range(0, n, 2):
            if first and r == 0:
                self.a(f"v_or_b32 v{acc}, v{x}, v{x+1}")
            else:
                self.a(f"v_or3_b32 v{acc}, v{x+r}, v{x+r+1}, v{acc}")

    def poll_tail(self, acc, Lretry, Ldone, sleep):
        self.a(f"""v_and_b32 v{acc}, 0xff, v{acc}
        v_cmp_ne_u32 vcc, 0, v{acc}
        s_cbranch_vccz {Ldone}""")
        if sleep:
            self.a(f"s_sleep {sleep}")
        self.a(f"""s_sub_u32 s12, s12, 1
        s_cmp_gt_u32 s12, 0
        s_cbranch_scc1 {Lretry}
        {Ldone}:""")

    def mpoll(self, loads, vTG, vCK, sleep, mask=None, nd=4, M0=80):
        a = self.a
        L, Ld = self.lab("mp"), self.lab("mpd")
        for t in range(len(loads)):
            if mask is None:
                a(f"s_mov_b64 s[{M0+2*t}:{M0+2*t+1}], -1")
            else:
                a(f"s_mov_b32 s{M0+2*t}, {mask[0]}\ns_mov_b32 s{M0+2*t+1}, {mask[1]}")
        a(f"s_mov_b32 s12, {self.poll_max}\n{L}:")
        for t, (r, txt) in enumerate(loads):
            sk = self.lab("ml")
            a(f"s_mov_b64 exec, s[{M0+2*t}:{M0+2*t+1}]\ns_cbranch_execz {sk}\n{txt}\n{sk}:")
        a("s_mov_b64 s[100:101], 0\ns_waitcnt vmcnt(0)")
        for t, (r, txt) in enumerate(loads):
            sk = self.lab("mc")
            a(f"s_mov_b64 exec, s[{M0+2*t}:{M0+2*t+1}]\ns_cbranch_execz {sk}")
            self.chk4(vCK, r, vTG, first=True, n=nd)
            a(f"""v_and_b32 v{vCK}, 0xff, v{vCK}
            v_cmp_ne_u32 s[{M0+2*t}:{M0+2*t+1}], 0, v{vCK}
            s_or_b64 s[100:101], s[100:101], s[{M0+2*t}:{M0+2*t+1}]
            {sk}:""")
        a(f"""s_mov_b64 exec, -1
        s_cmp_eq_u64 s[100:101], 0
        s_cbranch_scc1 {Ld}""")
        if sleep:
            a(f"s_sleep {sleep}")
        a(f"""s_sub_u32 s12, s12, 1
        s_cmp_gt_u32 s12, 0
        s_cbranch_scc1 {L}
        {Ld}:""")

    def decide(self, v, t, ci, vZ0):
        self.a(f"""v_add_f32 v{t}, {f32(float(self.dead))}, v{v}
        v_mul_f32 v{t}, {f32(self.gb / 100.0)}, v{t}
        v_min_f32 v{t}, 0, v{t}
        v_subrev_f32 v{v}, {f32(float(self.dead))}, v{v}
        v_mul_f32 v{v}, {f32(self.gains[ci] / 100.0)}, v{v}
        v_max_f32 v{v}, 0, v{v}
        v_add_f32 v{v}, v{v}, v{t}
        v_min_f32 v{v}, 64.0, v{v}
        v_max_f32 v{v}, {f32(-24.0)}, v{v}
        v_cvt_i32_f32 v{v}, v{v}
        v_and_b32 v{v}, 0xffff, v{v}
        v_or_b32 v{v}, {(ci+1) << 16}, v{v}
        ds_write_b32 v{vZ0}, v{v} offset:{L_BOOST}""")

    def sum_quads(self, X, n):
        for t in range(1, n):
            self.a(f"v_pk_add_f32 v[{X}:{X+1}], v[{X}:{X+1}], v[{X+4*t}:{X+4*t+1}]")
            self.a(f"v_pk_add_f32 v[{X+2}:{X+3}], v[{X+2}:{X+3}], v[{X+4*t+2}:{X+4*t+3}]")

    def merge4(self, X):
        a = self.a
        a(f"""s_nop 1
        v_permlane16_swap_b32 v{X}, v{X+1}
        v_permlane16_swap_b32 v{X+2}, v{X+3}
        s_nop 1
        v_add_f32 v{X}, v{X}, v{X+1}
        v_add_f32 v{X+2}, v{X+2}, v{X+3}
        s_nop 1
        v_permlane32_swap_b32 v{X}, v{X+2}
        s_nop 1
        v_add_f32 v{X}, v{X}, v{X+2}""")
        self.row_reduce("v_add_f32", X, steps=(4, 8))

    def sigmoid_like(self, d, x):
        self.a(f"""v_mul_f32 v{d}, {NLOG2E}, v{x}
        v_exp_f32 v{d}, v{d}
        s_nop 0
        v_add_f32 v{d}, 1.0, v{d}
        v_rcp_f32 v{d}, v{d}
        s_nop 0""")

    def rotcode(self):
        if self.rot < 100:
            return f"s_mul_i32 s9, s7, {self.rot}"
        if self.rot == 100:
            return "s_lshr_b32 s9, s2, 3\ns_lshl_b32 s11, s2, 5\ns_add_u32 s9, s9, s11"
        if self.rot == 101:
            return "s_lshl_b32 s9, s5, 4\ns_add_u32 s9, s9, s7"
        if self.rot == 102:
            return "s_lshr_b32 s9, s7, 6\ns_mul_i32 s9, s9, 17\ns_add_u32 s9, s9, s7"
        raise ValueError

    def epoch_load(self):
        self.a(f"s_load_dword s{sT}, s[40:41], {EP_OFF}")

    def epoch_use(self, vTG):
        self.a(f"""s_add_u32 s{sT}, s{sT}, 1
        s_mov_b32 s{sMASK}, 0xffffff00
        s_and_b32 s9, s{sT}, 0xff
        v_mov_b32 v{vTG}, s9""")

    def gen(self):
        a = self.a
        a(f"""s_cmp_ge_u32 s2, 256
        s_cbranch_scc1 L_end
        s_load_dwordx16 s[16:31], s[0:1], 0
        s_load_dwordx8 s[32:39], s[0:1], 64
        s_load_dwordx2 s[40:41], s[0:1], 96""")
        if self.stamps or self.padto:
            a("s_memrealtime s[48:49]")
        a(f"""v_lshrrev_b32 v1, 6, v0
        v_and_b32 v0, 63, v0
        v_readfirstlane_b32 s3, v1
        s_and_b32 s9, s2, 7
        s_lshr_b32 s10, s2, 3
        s_lshl_b32 s4, s9, 2
        s_lshr_b32 s11, s10, 3
        s_add_u32 s4, s4, s11
        s_bfe_u32 s5, s10, 0x10002
        s_and_b32 s6, s10, 3
        s_lshl_b32 s8, s5, 5
        s_add_u32 s8, s8, s4
        s_lshl_b32 s7, s8, 2
        s_add_u32 s7, s7, s6
        s_mov_b32 s{sWV}, s3
        s_cmp_ge_u32 s3, 4
        s_cbranch_scc1 L_H""")
        self.gen_S()
        a("L_H:")
        self.gen_H()
        a("L_end:\ns_endpgm")

    def gen_S(self):
        self.cls = "S"
        a = self.a
        R0, D, GI = self.R0, self.D, self.GI
        RS = {2: 4, 3: 6}[D]
        R1 = 4
        DV = self.DV
        RSV = {2: 4, 3: 6}[DV]
        D0 = self.D0
        assert (64 - R0) % RS == 0
        NITK = (64 - R0) // RS
        W = 6
        vL = 0
        vOFF, vSCW, vSCR, vT0, vT1, vT2, vT3, vOW = 1, 2, 3, 4, 5, 6, 7, 8
        vA0, vA1, vTG = 9, 10, 11
        vQ = 12
        vSEL = 24
        vACC = 32
        vA = 44
        vP = 52
        RING = 64
        assert RING + R0 * 12 <= 256
        sOFF, sBEG, sEND, sIT, sCNT = 42, 43, 64, 66, 65
        a(f"""v_lshrrev_b32 v{vT0}, 3, v{vL}
        v_and_b32 v{vT1}, 7, v{vL}
        v_mul_u32_u24 v{vOFF}, 384, v{vT0}
        v_lshl_add_u32 v{vOFF}, v{vT1}, 4, v{vOFF}
        s_mul_i32 s9, s3, 3072""")
        if GI == 4:
            stepb = 4 * STEP
            a(f"""s_mul_i32 s11, s6, {STEP}
            s_add_u32 s9, s9, s11
            s_mul_i32 s{sBEG}, s8, {4*CH}
            s_add_u32 s{sEND}, s{sBEG}, {4*CH}
            v_add_u32 v{vOFF}, s9, v{vOFF}
            s_mul_i32 s9, s8, {self.rot}""")
        else:
            stepb = STEP
            a(f"""v_add_u32 v{vOFF}, s9, v{vOFF}
            s_mul_i32 s{sBEG}, s7, {CH}
            s_add_u32 s{sEND}, s{sBEG}, {CH}
            {self.rotcode()}""")
        a(f"""s_and_b32 s9, s9, 63
        s_mul_i32 s9, s9, {stepb}
        s_add_u32 s{sOFF}, s{sBEG}, s9
        s_waitcnt lgkmcnt(0)""")
        self.srd(52, 18, TB)
        self.fs = []
        def fstamp():
            if self.stamps == 3 and len(self.fs) < 9:
                r = 80 + 2 * len(self.fs)
                a(f"s_memrealtime s[{r}:{r+1}]")
                self.fs.append(r)
        fstamp()

        def load(slot, sw=None):
            for j in range(3):
                r = RING + (slot * 3 + j) * 4
                a(f"buffer_load_dwordx4 v[{r}:{r+3}], v{vOFF}, s[52:55], s{sOFF} offen offset:{128*j} {self.kvf}")
            a(f"""s_add_u32 s{sOFF}, s{sOFF}, {stepb}
            s_cmp_ge_u32 s{sOFF}, s{sEND}
            s_cselect_b32 s{sOFF}, s{sBEG}, s{sOFF}""")
            if sw == "kv":
                a(f"""s_cmp_eq_u32 s{sIT}, {NITK-1}
                s_cselect_b32 s52, s20, s52
                s_cselect_b32 s53, s21, s53""")
            elif sw is not None:
                a(f"""s_cmp_eq_u32 s{sIT}, {sw}
                s_cselect_b32 s54, 0, s54""")
        thr = 3 * (D - 1) + self.early
        for s in range(D0):
            load(s)
        self.epoch_load()
        self.srd(56, 40, WS_SRD)
        self.selectors(vL, vSEL, vT2, vT3, vOW)
        a(f"""s_mul_i32 s9, s3, 1152
        s_add_u32 s9, s9, {L_SC}
        v_mul_u32_u24 v{vSCW}, 144, v{vT0}
        v_add_u32 v{vSCW}, s9, v{vSCW}
        v_mov_b32 v{vSCR}, v{vSCW}""")
        a(f"""v_lshrrev_b32 v{vT2}, 5, v{vL}
        s_lshl_b32 s9, s3, 1
        v_add_u32 v{vT2}, s9, v{vT2}
        v_mul_u32_u24 v{vOW}, {OS}, v{vT2}
        v_lshl_add_u32 v{vOW}, v{vT1}, 4, v{vOW}
        v_bfe_u32 v{vT2}, v{vL}, 4, 1
        v_lshl_add_u32 v{vOW}, v{vT2}, 3, v{vOW}
        v_add_u32 v{vOW}, {L_O}, v{vOW}
        v_lshlrev_b32 v{vT2}, 4, v{vT1}""")
        for s in range(D0, R0):
            a(f"s_waitcnt vmcnt({3*(D0-1)})")
            if s in (2, 3, 4, 6, 8, 10, 12, 14):
                fstamp()
            load(s)
        a("s_waitcnt lgkmcnt(0)")
        self.epoch_use(vTG)
        self.stamp(15, vA, src=48)
        self.stamp(0, vA)
        a("s_barrier")
        self.stamp(1, vA)
        for j in range(3):
            a(f"ds_read_b128 v[{vQ+4*j}:{vQ+4*j+3}], v{vT2} offset:{L_QB + 128*j}")
        a(f"s_mov_b32 s{sIT}, 0\ns_mov_b32 s10, {SCALE_F32}\ns_waitcnt lgkmcnt(0)")

        sUSED, sTGT = 44, 45
        def throttle():
            Lb, Lc = self.lab("bo"), self.lab("bc")
            a(f"""s_waitcnt vmcnt(6)
            s_cmp_gt_i32 s{sUSED}, 0
            s_cbranch_scc1 {Lb}
            s_waitcnt vmcnt(3)
            s_cmp_eq_u32 s{sUSED}, 0
            s_cbranch_scc1 {Lc}
            s_waitcnt vmcnt({self.brk})
            s_add_i32 s{sUSED}, s{sUSED}, 2
            {Lb}:
            s_sub_i32 s{sUSED}, s{sUSED}, 1
            {Lc}:""")
        def kpair(s, off):
            ra, rb = RING + s * 12, RING + (s + 1) * 12
            for i in range(12):
                c0 = "0" if i == 0 else f"v{vA0}"
                c1 = "0" if i == 0 else f"v{vA1}"
                a(f"v_dot2_f32_bf16 v{vA0}, v{ra+i}, v{vQ+i}, {c0}")
                a(f"v_dot2_f32_bf16 v{vA1}, v{rb+i}, v{vQ+i}, {c1}")
            a("s_nop 2")
            self.dpp("v_add_f32", vA0, vA0, vA0, "quad_perm:[1,0,3,2]")
            self.dpp("v_add_f32", vA1, vA1, vA1, "quad_perm:[1,0,3,2]")
            a("s_nop 0")
            self.dpp("v_add_f32", vA0, vA0, vA0, "quad_perm:[2,3,0,1]")
            self.dpp("v_add_f32", vA1, vA1, vA1, "quad_perm:[2,3,0,1]")
            a("s_nop 0")
            self.dpp("v_add_f32", vA0, vA0, vA0, "row_half_mirror")
            self.dpp("v_add_f32", vA1, vA1, vA1, "row_half_mirror")
            a(f"""v_cvt_pk_bf16_f32 v{vT2}, v{vA0}, v{vA1}
            v_lshlrev_b32 v{vA0}, 16, v{vT2}
            v_and_b32 v{vA1}, 0xffff0000, v{vT2}
            v_mul_f32 v{vA0}, s10, v{vA0}
            v_mul_f32 v{vA1}, s10, v{vA1}
            v_cvt_pk_bf16_f32 v{vT2}, v{vA0}, v{vA1}
            ds_write_b32 v{vSCW}, v{vT2} offset:{off}""")
        npairs = R0 // 2
        issue_after = {0: 0, 3: 1} if D == 2 else {0: 0, 2: 1, 4: 2}
        issued = 0
        for p in range(npairs):
            a(f"s_waitcnt vmcnt({3 * ((R0 - 2*p - 2) + issued)})")
            kpair(2 * p, p * 4)
            if p in issue_after:
                a(f"s_waitcnt vmcnt({thr})")
                load(issue_after[p])
                issued += 1
        a(f"v_add_u32 v{vSCW}, {2*R0}, v{vSCW}")
        if self.kboost >= 0:
            assert D == 3
            a(f"s_mov_b32 s{sUSED}, {self.kboost}")
        a("L_kloop:")
        for s in range(RS):
            if self.kboost >= 0:
                throttle()
            else:
                a(f"s_waitcnt vmcnt({thr})")
            load((s + D) % RS, "kv" if s == RS - D - 1 else None)
            if s & 1:
                if self.early:
                    a(f"s_waitcnt vmcnt({3*D})")
                if not self.nok:
                    kpair(s - 1, (s // 2) * 4)
        a(f"""v_add_u32 v{vSCW}, {2*RS}, v{vSCW}
        s_add_u32 s{sIT}, s{sIT}, 1
        s_cmp_lt_u32 s{sIT}, {NITK}
        s_cbranch_scc1 L_kloop""")
        for s in range(D, R1):
            load(s)
        self.stamp(2, vA)
        F = 32
        a(f"""v_lshl_add_u32 v{vT2}, v{vT1}, 4, v{vSCR}
        s_memrealtime s[46:47]
        s_waitcnt lgkmcnt(0)
        ds_read_b128 v[40:43], v{vT2}
        s_waitcnt lgkmcnt(0)""")
        for i in range(4):
            a(f"v_lshlrev_b32 v{F+2*i}, 16, v{40+i}\nv_and_b32 v{F+2*i+1}, 0xffff0000, v{40+i}")
        a(f"""v_max3_f32 v{vA0}, v{F}, v{F+1}, v{F+2}
        v_max3_f32 v{vA0}, v{vA0}, v{F+3}, v{F+4}
        v_max3_f32 v{vA0}, v{vA0}, v{F+5}, v{F+6}
        v_max_f32 v{vA0}, v{vA0}, v{F+7}""")
        self.row_reduce("v_max_f32", vA0)
        self.swap_reduce("v_max_f32", vA0, vT3, 16)
        self.swap_reduce("v_max_f32", vA0, vT3, 32)
        for i in range(8):
            a(f"v_sub_f32 v{F+i}, v{F+i}, v{vA0}\nv_mul_f32 v{F+i}, {LOG2E}, v{F+i}")
        for i in range(8):
            a(f"v_exp_f32 v{F+i}, v{F+i}")
        a("s_nop 0")
        a(f"v_add_f32 v{vA1}, v{F}, v{F+1}")
        for i in range(2, 8):
            a(f"v_add_f32 v{vA1}, v{vA1}, v{F+i}")
        for i in range(4):
            a(f"v_cvt_pk_bf16_f32 v{40+i}, v{F+2*i}, v{F+2*i+1}")
        a(f"ds_write_b128 v{vT2}, v[40:43]")
        self.row_reduce("v_add_f32", vA1)
        self.swap_reduce("v_add_f32", vA1, vT3, 16)
        self.swap_reduce("v_add_f32", vA1, vT3, 32)
        a("s_waitcnt lgkmcnt(0)")
        def pread(n):
            if n == 2: a(f"ds_read_b64 v[{vP}:{vP+1}], v{vSCR}")
            elif n == 3: a(f"ds_read_b32 v{vP}, v{vSCR}\nds_read_b32 v{vP+1}, v{vSCR} offset:4\nds_read_b32 v{vP+2}, v{vSCR} offset:8")
            else: raise ValueError(n)
            a(f"v_add_u32 v{vSCR}, {4*n}, v{vSCR}")
        pread(R1 // 2)
        self.tag(44, vA0, vTG)
        self.tag(45, vA1, vTG)
        if self.diagx:
            a(f"s_getreg_b32 s9, hwreg(HW_REG_XCC_ID, 0, 4)\ns_lshl_b32 s9, s9, 8\nv_or_b32 v44, s9, v44")
        a(f"""v_mov_b32 v46, s{sT}
        v_mov_b32 v47, s46
        s_lshl_b32 s9, s7, 6
        s_lshl_b32 s11, s3, 4
        s_add_u32 s9, s9, s11
        s_add_u32 s9, s9, {ST_OFF}
        v_mov_b32 v{vA0}, 0
        s_mov_b64 exec, 1
        buffer_store_dwordx4 v[44:47], v{vA0}, s[56:59], s9 offen sc1
        s_mov_b64 exec, -1""")
        for i in range(12):
            a(f"v_mov_b32 v{vACC+i}, 0")
        a(f"s_mov_b32 s{sIT}, 0\ns_waitcnt lgkmcnt(0)")
        self.stamp(3, 60)

        def vmf(g, slot):
            A = vA + 4 * ((g + 1) & 1)
            for j in range(3):
                self.mfma(vACC + 4 * j, A, RING + (slot * 3 + j) * 4, vACC + 4 * j)
        def vA_(g):
            self.buildA(vA + 4 * ((g + 1) & 1), vP + g // 2, g & 1, vSEL)
        NE, DE = self.NE, self.DE
        RSV = 6
        sUSED, sTGT = 44, 45
        vZ, vB = 62, 63
        assert (64 - R1 - NE) % RSV == 0 and NE == 12
        NITV = (64 - R1 - NE) // RSV
        def prog(val):
            L = self.lab("pg")
            a(f"""s_cmp_lg_u32 s3, 0
            s_cbranch_scc1 {L}
            v_mov_b32 v{vB}, {val}
            ds_write_b32 v{vZ}, v{vB} offset:{L_PROG}
            {L}:""")
        a(f"v_mov_b32 v{vZ}, 0\ns_mov_b32 s{sUSED}, 0\ns_mov_b32 s{sTGT}, 0")
        prog(1)
        issued = 0
        for g in range(R1):
            vA_(g)
            if g == R1 - 1:
                pread(3)
                a(f"ds_read_b32 v{vB}, v{vZ} offset:{L_BOOST}")
            if g >= 1:
                a(f"s_waitcnt vmcnt(3)")
                load((R1 + issued) % RSV)
                issued += 1
            else:
                a(f"s_waitcnt vmcnt({3*(R1 - g - 1)})\ns_nop 0")
            vmf(g, g)
        a(f"""L_vloop:
        s_waitcnt lgkmcnt(0)
        v_readfirstlane_b32 s9, v{vB}
        s_sext_i32_i16 s11, s9
        s_cmp_lg_u32 s9, s{sTGT}
        s_cselect_b32 s{sUSED}, s11, s{sUSED}
        s_mov_b32 s{sTGT}, s9
        s_add_u32 s9, s{sIT}, 2""")
        prog("s9")
        for s in range(RSV):
            slot = (R1 + s) % RSV
            vA_(s)
            if s == RSV - 1:
                pread(3)
                a(f"ds_read_b32 v{vB}, v{vZ} offset:{L_BOOST}")
            throttle()
            load((slot + 3) % RSV)
            vmf(s, slot)
        a(f"""s_add_u32 s{sIT}, s{sIT}, 1
        s_cmp_lt_u32 s{sIT}, {NITV}
        s_cbranch_scc1 L_vloop""")
        slot_of = lambda e: (R1 + e) % RSV if e < 3 else e + 3
        nxt = 3
        a(f"""s_waitcnt lgkmcnt(0)
        v_readfirstlane_b32 s9, v{vB}
        s_sext_i32_i16 s11, s9
        s_cmp_lg_u32 s9, s{sTGT}
        s_cselect_b32 s{sUSED}, s11, s{sUSED}""")
        for e in range(NE):
            if e == 6:
                a("s_waitcnt lgkmcnt(0)")
            vA_(e % 6)
            if e == 5:
                pread(3)
            if e < self.NB:
                throttle()
                load(slot_of(nxt)); nxt += 1
            else:
                a(f"s_waitcnt vmcnt({3*(nxt - e - 1)})")
                n0 = nxt
                while nxt < NE and nxt - e - 1 < DE:
                    load(slot_of(nxt)); nxt += 1
                if nxt == n0:
                    a("s_nop 0")
            vmf(e % 6, slot_of(e))
        a("s_nop 7")
        a("s_nop 3")
        for j in range(3):
            a(f"""v_cvt_pk_bf16_f32 v{vA+2*j}, v{vACC+4*j}, v{vACC+4*j+1}
            v_cvt_pk_bf16_f32 v{vA+2*j+1}, v{vACC+4*j+2}, v{vACC+4*j+3}""")
        a("s_mov_b32 exec_lo, 0x00ff00ff\ns_mov_b32 exec_hi, 0xff00ff00")
        for j in range(3):
            a(f"ds_write_b64 v{vOW}, v[{vA+2*j}:{vA+2*j+1}] offset:{128*j}")
        a("s_mov_b64 exec, -1")
        a(f"""v_and_b32 v{vT0}, 7, v{vL}
        v_mul_u32_u24 v{vT0}, {OS}, v{vT0}
        v_lshrrev_b32 v{vT1}, 4, v{vL}
        v_lshl_add_u32 v{vT0}, v{vT1}, 4, v{vT0}
        v_and_b32 v{vT2}, 1, v{vT1}
        v_and_b32 v{vT3}, 15, v{vL}
        v_lshl_add_u32 v{vT3}, v{vT3}, 1, v{vT2}
        v_lshlrev_b32 v{vT3}, 2, v{vT3}
        v_lshlrev_b32 v{vT2}, 3, v{vT2}
        s_mul_i32 s9, s3, 12288
        s_add_u32 s9, s9, {L_WX}
        v_lshlrev_b32 v{vT1}, 4, v{vL}
        v_add_u32 v{vT1}, s9, v{vT1}
        s_mul_i32 s9, s7, 2560
        s_lshl_b32 s11, s3, 7
        s_add_u32 s9, s9, s11
        s_add_u32 s9, s9, {P_OFF + 2048}
        s_waitcnt lgkmcnt(0)""")
        self.stamp(4, 12)
        a("s_barrier")
        AA = RING + 12 * W
        BB = AA + 24
        assert BB + 48 <= 256
        D0, D1, SCL = 32, 36, 40
        for k in range(6):
            a(f"ds_read_b128 v[{AA+4*k}:{AA+4*k+3}], v{vT0} offset:{L_O + 64*k}")
            a(f"ds_read_b128 v[{BB+8*k}:{BB+8*k+3}], v{vT1} offset:{2048*k}")
            a(f"ds_read_b128 v[{BB+8*k+4}:{BB+8*k+7}], v{vT1} offset:{2048*k+1024}")
            if k == 3:
                a("s_waitcnt lgkmcnt(6)")
        a(f"ds_read_b64 v[{SCL}:{SCL+1}], v{vT2} offset:{L_SCALE}")
        for k in range(6):
            a(f"s_waitcnt lgkmcnt({min(15, 3*(5-k)+1)})")
            self.mfma(D0, AA + 4 * k, BB + 8 * k, None if k == 0 else D0)
            self.mfma(D1, AA + 4 * k, BB + 8 * k + 4, None if k == 0 else D1)
        a("s_waitcnt lgkmcnt(0)\ns_nop 7")
        for D in (D0, D1):
            a(f"""v_add_f32 v{D}, v{D}, v{D+1}
            v_add_f32 v{D+2}, v{D+2}, v{D+3}
            v_mul_f32 v{D}, v{D}, v{SCL}
            v_fmac_f32 v{D}, v{D+2}, v{SCL+1}""")
        a(f"""s_nop 1
        v_permlane16_swap_b32 v{D0}, v{D1}
        s_nop 1
        v_add_f32 v{D0}, v{D0}, v{D1}""")
        self.tag(D0, D0, vTG)
        a(f"""s_mov_b32 exec_hi, 0
        buffer_store_dword v{D0}, v{vT3}, s[56:59], s9 offen sc1
        s_mov_b64 exec, -1""")
        self.stamp(5, 12)
        for i, r in enumerate(self.fs):
            self.stamp(6 + i, 12, src=r)
        a("s_endpgm")

    def gen_H(self):
        self.cls = "H"
        a = self.a
        vL = 0
        vT0, vT1, vT2, vT3, vT4, vT5, vW = 1, 2, 3, 4, 5, 6, 7
        vX = 8
        vSEL = 18
        vTG = 26
        vCK = 27
        vF = 28
        vA, vACC = 28, 36
        vE = 52
        TI = 64
        if self.hprio:
            a(f"s_setprio {self.hprio}")
        a("s_sub_u32 s3, s3, 4")
        a(f"""s_and_b32 s14, s10, 7
        v_lshrrev_b32 v{vT0}, 5, v{vL}
        v_mul_u32_u24 v{vT0}, 1280, v{vT0}
        v_and_b32 v{vT1}, 31, v{vL}
        v_lshl_add_u32 v{vT0}, v{vT1}, 3, v{vT0}
        v_lshrrev_b32 v{vT1}, 3, v{vL}
        v_mul_u32_u24 v{vW}, {10*12288}, v{vT1}
        v_and_b32 v{vT2}, 7, v{vL}
        v_lshl_add_u32 v{vW}, v{vT2}, 4, v{vW}
        s_mul_i32 s9, s4, 384
        s_mul_i32 s11, s14, {80*12288}
        s_add_u32 s9, s9, s11
        s_lshl_b32 s11, s3, 7
        s_add_u32 s9, s9, s11
        v_add_u32 v{vW}, s9, v{vW}
        s_waitcnt lgkmcnt(0)""")
        self.srd(60, 16, 2560)
        self.srd(44, 22, 640 * 12288)
        for t in range(5):
            a(f"buffer_load_dwordx2 v[{vX+2*t}:{vX+2*t+1}], v{vT0}, s[60:63], 0 offen offset:{256*t}")
        a(f"""s_mul_hi_u32 s53, s2, {(2**32 + 23)//24}
        s_mul_i32 s52, s53, 24
        s_sub_u32 s52, s2, s52
        s_min_u32 s53, s53, 9
        s_cmp_eq_u32 s3, 3
        s_cbranch_scc1 L_ld3""")
        for G in range(10):
            a(f"s_mov_b32 s9, {G*12288}")
            a(f"buffer_load_dwordx4 v[{TI+4*G}:{TI+4*G+3}], v{vW}, s[44:47], s9 offen {self.wf}")
        a("s_branch L_ldd\nL_ld3:")
        self.gen_moe1_loads(vL, vT3, vT4, vT5, TI)
        a("L_ldd:")
        self.epoch_load()
        self.srd(56, 40, WS_SRD)
        self.selectors(vL, vSEL, vT3, vT4, vT5)
        a(f"s_mov_b32 s9, 0x3f803f80\ns_waitcnt vmcnt(10)")
        self.stamp(11, 60)
        for i in range(10):
            c = "0" if i == 0 else f"v{vT3}"
            a(f"v_dot2_f32_bf16 v{vT3}, v{vX+i}, s9, {c}")
        for i in range(2):
            a(f"v_lshlrev_b32 v{vF+2*i}, 16, v{vX+i}\nv_and_b32 v{vF+2*i+1}, 0xffff0000, v{vX+i}")
        k = 2
        for st in (1, 2, 4, 8):
            self.dpp("v_add_f32", vT3, vT3, vT3, f"row_ror:{st}")
            a(f"v_lshlrev_b32 v{vF+2*k}, 16, v{vX+k}\nv_and_b32 v{vF+2*k+1}, 0xffff0000, v{vX+k}")
            k += 1
        a(f"v_mov_b32 v{vT4}, v{vT3}")
        a(f"v_lshlrev_b32 v{vF+2*k}, 16, v{vX+k}\nv_and_b32 v{vF+2*k+1}, 0xffff0000, v{vX+k}")
        k += 1
        a(f"v_permlane16_swap_b32 v{vT3}, v{vT4}")
        while k < 10:
            a(f"v_lshlrev_b32 v{vF+2*k}, 16, v{vX+k}\nv_and_b32 v{vF+2*k+1}, 0xffff0000, v{vX+k}")
            k += 1
        a(f"v_add_f32 v{vT3}, v{vT3}, v{vT4}")
        def div640(v, t):
            a(f"""v_mul_f32 v{t}, {f32(1/640)}, v{v}
            v_fmac_f32 v{v}, {f32(-640.0)}, v{t}
            v_fmac_f32 v{t}, {f32(1/640)}, v{v}""")
        M2 = vE
        D2 = vE + 2
        Q2 = vE + 4
        div640(vT3, M2)
        a(f"v_mov_b32 v{M2+1}, v{M2}")
        for i in range(10):
            a(f"v_pk_add_f32 v[{D2}:{D2+1}], v[{vF+2*i}:{vF+2*i+1}], v[{M2}:{M2+1}] neg_lo:[0,1] neg_hi:[0,1]")
            if i == 0:
                a(f"v_pk_mul_f32 v[{Q2}:{Q2+1}], v[{D2}:{D2+1}], v[{D2}:{D2+1}]")
            else:
                a(f"v_pk_fma_f32 v[{Q2}:{Q2+1}], v[{D2}:{D2+1}], v[{D2}:{D2+1}], v[{Q2}:{Q2+1}]")
        a(f"v_add_f32 v{vT4}, v{Q2}, v{Q2+1}")
        self.rbf(M2)
        a(f"v_mov_b32 v{M2+1}, v{M2}")
        def xc(i):
            a(f"""v_pk_add_f32 v[{vF+2*i}:{vF+2*i+1}], v[{vF+2*i}:{vF+2*i+1}], v[{M2}:{M2+1}] neg_lo:[0,1] neg_hi:[0,1]
            v_cvt_pk_bf16_f32 v{vF+2*i+1}, v{vF+2*i}, v{vF+2*i+1}
            v_lshlrev_b32 v{vF+2*i}, 16, v{vF+2*i+1}
            v_and_b32 v{vF+2*i+1}, 0xffff0000, v{vF+2*i+1}""")
        k = 0
        for st in (1, 2, 4, 8):
            self.dpp("v_add_f32", vT4, vT4, vT4, f"row_ror:{st}")
            xc(k); k += 1
        a(f"v_mov_b32 v{vT5}, v{vT4}")
        xc(k); k += 1
        a(f"v_permlane16_swap_b32 v{vT4}, v{vT5}")
        xc(k); k += 1
        a(f"v_add_f32 v{vT4}, v{vT4}, v{vT5}")
        div640(vT4, vT5)
        self.rbf(vT5)
        a(f"v_add_f32 v{vT5}, {f32(1e-5)}, v{vT5}")
        self.rbf(vT5)
        a(f"v_sqrt_f32 v{vT5}, v{vT5}")
        xc(k); k += 1
        self.rbf(vT5)
        a(f"v_rcp_f32 v{D2}, v{vT5}")
        xc(k); k += 1
        a(f"v_mov_b32 v{D2+1}, v{D2}\nv_mov_b32 v{Q2}, v{vT5}\nv_mov_b32 v{Q2+1}, v{vT5}")
        while k < 10:
            xc(k); k += 1
        R2 = vE + 6
        for i in range(10):
            f = vF + 2 * i
            a(f"""v_pk_mul_f32 v[{R2}:{R2+1}], v[{f}:{f+1}], v[{D2}:{D2+1}]
            v_pk_fma_f32 v[{f}:{f+1}], v[{R2}:{R2+1}], v[{Q2}:{Q2+1}], v[{f}:{f+1}] neg_lo:[1,0,0] neg_hi:[1,0,0]
            v_pk_fma_f32 v[{R2}:{R2+1}], v[{f}:{f+1}], v[{D2}:{D2+1}], v[{R2}:{R2+1}]
            v_cvt_pk_bf16_f32 v{vX+i}, v{R2}, v{R2+1}""")
            if i & 1:
                t = i // 2
                a(f"ds_write_b64 v{vT0}, v[{vX+2*t}:{vX+2*t+1}] offset:{L_XN + 256*t}")
        a("s_waitcnt lgkmcnt(0)")
        self.epoch_use(vTG)
        self.stamp(15, 60, src=48)
        self.stamp(1, 60)
        a("s_cmp_eq_u32 s3, 3\ns_cbranch_scc1 L_qcons")
        a(f"""v_mul_u32_u24 v{vT3}, 20, v{vT1}
        s_mul_i32 s9, s14, 160
        v_add_u32 v{vT3}, s9, v{vT3}""")
        for bb in range(2):
            for t in range(5):
                a(f"ds_read_b32 v{vX+5*bb+t}, v{vT3} offset:{L_XN + 1280*bb + 4*t}")
        a(f"""v_lshrrev_b32 v{vT4}, 5, v{vL}
        v_mul_u32_u24 v{vT4}, 768, v{vT4}
        v_lshl_add_u32 v{vT4}, v{vT2}, 5, v{vT4}
        v_bfe_u32 v{vT5}, v{vL}, 4, 1
        v_lshl_add_u32 v{vT4}, v{vT5}, 4, v{vT4}
        s_lshl_b32 s9, s4, 3
        s_add_u32 s9, s9, s14
        s_mul_i32 s9, s9, 1536
        s_lshl_b32 s11, s3, 8
        s_add_u32 s9, s9, s11
        s_add_u32 s9, s9, {QX_OFF}
        s_waitcnt lgkmcnt(0)""")
        for G in range(10):
            self.buildA(vA, vX + G // 2, G & 1, vSEL)
            self.buildA(vA + 4, vX + 5 + G // 2, G & 1, vSEL)
            a(f"s_waitcnt vmcnt({9-G})\ns_nop 0")
            self.mfma(vACC, vA, TI + 4 * G, None if G == 0 else vACC)
            self.mfma(vACC + 4, vA + 4, TI + 4 * G, None if G == 0 else vACC + 4)
        a("s_nop 7")
        for r in range(4):
            a(f"v_permlane32_swap_b32 v{vACC+r}, v{vACC+4+r}")
        a("s_nop 1")
        for r in range(4):
            self.dpp("v_add_f32", vACC + r, vACC + 4 + r, vACC + r, "row_ror:8")
        for r in range(4):
            self.tag(vACC + r, vACC + r, vTG, rn=True)
        a(f"""s_mov_b32 exec_lo, 0x00ff00ff
        s_mov_b32 exec_hi, 0x00ff00ff
        buffer_store_dwordx4 v[{vACC}:{vACC+3}], v{vT4}, s[56:59], s9 offen sc1
        s_mov_b64 exec, -1
        s_branch L_qdone
        L_qcons:""")
        self.gen_moe1(vL, vT3, vT4, vT5, vSEL, vA, vACC, vTG, TI)
        a(f"""v_lshlrev_b32 v{vT3}, 4, v{vL}
        v_lshlrev_b32 v{vT4}, 3, v{vL}
        s_mul_i32 s9, s4, {8*1536}
        s_mul_i32 s11, s5, 768
        s_add_u32 s9, s9, s11
        s_add_u32 s70, s9, {QX_OFF}
        s_add_u32 s71, s70, 3072
        s_add_u32 s72, s70, 6144
        s_add_u32 s73, s70, 9216""")
        if self.qsleep:
            a(f"s_sleep {self.qsleep}")
        self.mpoll([(TI + 4 * k, f"buffer_load_dwordx4 v[{TI+4*k}:{TI+4*k+3}], v{vT3}, s[56:59], s{70+k//2} offen offset:{1536*(k&1)} sc1") for k in range(8)],
                   vTG, vCK, self.qsleep2, mask=("-1", "0xffff"))
        self.sum_quads(TI, 8)
        a("s_mov_b32 exec_hi, 0xffff")
        a(f"""v_cvt_pk_bf16_f32 v{TI}, v{TI}, v{TI+1}
        v_cvt_pk_bf16_f32 v{TI+1}, v{TI+2}, v{TI+3}
        ds_write_b64 v{vT4}, v[{TI}:{TI+1}] offset:{L_QB}
        s_mov_b64 exec, -1
        s_waitcnt lgkmcnt(0)
        L_qdone:
        v_mov_b32 v{vT3}, 0
        v_mov_b32 v{vT4}, 0
        v_mov_b32 v{vT5}, 0
        ds_write_b32 v{vT3}, v{vT3} offset:{L_PROG}
        ds_write_b32 v{vT3}, v{vT3} offset:{L_BOOST}
        s_waitcnt lgkmcnt(0)""")
        self.stamp(2, 60)
        a(f"s_setprio {self.hprio1}")
        a("s_barrier")
        a(f"v_and_b32 v{vT1}, 15, v{vL}\nv_lshrrev_b32 v{vT2}, 4, v{vL}")
        if self.hskip:
            a("s_mov_b32 s68, 0\ns_branch L_noown")
        a(f"""s_cmp_ge_u32 s2, {0 if self.nomoe else 24}
        s_cbranch_scc1 L_nomoe1
        s_cmp_lg_u32 s3, 1
        s_cbranch_scc1 L_nomoe1""")
        self.gen_moe_red(vL, vT1, vT2, vT3, vT4, vT5, vTG, vCK, TI)
        a("L_nomoe1:")
        self.srd(44, 24, 0 if self.nowo else 6144 * 1280)
        a(f"""v_mul_u32_u24 v{vW}, {8*1280}, v{vT2}
        s_mul_i32 s9, s4, {192*1280}
        v_add_u32 v{vW}, s9, v{vW}
        v_lshl_add_u32 v{vT3}, v{vT1}, 2, v{vW}
        s_lshl_b32 s9, s3, 6
        s_add_u32 s9, s9, 1024
        v_add_u32 v{vT3}, s9, v{vT3}
        v_lshl_add_u32 v{vW}, v{vT1}, 4, v{vW}
        s_lshl_b32 s9, s3, 8
        v_add_u32 v{vW}, s9, v{vW}
        s_mov_b32 s14, 0x05040100
        s_mov_b32 s15, 0x07060302
        s_mul_i32 s9, s3, 12288
        s_add_u32 s9, s9, {L_WX}
        v_lshlrev_b32 v{vT4}, 4, v{vL}
        v_add_u32 v{vT4}, s9, v{vT4}""")
        for K0 in range(0, 6, 2):
            for K in (K0, K0 + 1):
                for e in range(8):
                    if e % 4 == 0:
                        a(f"s_mov_b32 s9, {(32*K + e)*1280}")
                    a(f"buffer_load_dword v{TI+8*K+e}, v{vT3}, s[44:47], s9 offen offset:{(e%4)*1280} {self.wof}")
            for K in (K0, K0 + 1):
                a(f"s_waitcnt vmcnt({8*(K0+1-K)})")
                d = TI + 48 + 8 * K
                for t in range(4):
                    a(f"v_perm_b32 v{d+t}, v{TI+8*K+2*t+1}, v{TI+8*K+2*t}, s14")
                    a(f"v_perm_b32 v{d+4+t}, v{TI+8*K+2*t+1}, v{TI+8*K+2*t}, s15")
                a(f"ds_write_b128 v{vT4}, v[{d}:{d+3}] offset:{2048*K}")
                a(f"ds_write_b128 v{vT4}, v[{d+4}:{d+7}] offset:{2048*K+1024}")
        a("s_waitcnt lgkmcnt(0)")
        self.stamp(3, 60)
        a(f"""s_cmp_ge_u32 s2, {0 if self.nomoe else 240}
        s_cbranch_scc1 L_nomoe2
        s_cmp_lg_u32 s3, 1
        s_cbranch_scc1 L_nomoe2""")
        self.gen_moe2(vL, vT1, vT2, vT3, vT4, vT5, vSEL, vA, vACC, vTG, vCK, TI)
        self.stamp(9, 60)
        a("L_nomoe2:")
        def REG(k): return 32 + 32 * k
        for K in range(6):
            for e in range(8):
                if e % 4 == 0:
                    a(f"s_mov_b32 s9, {(32*K + e)*1280}")
                r = REG(0) + 4 * e
                a(f"buffer_load_dwordx4 v[{r}:{r+3}], v{vW}, s[44:47], s9 offen offset:{(e%4)*1280} {self.wof}")
                if self.wobatch == 4 and e == 3:
                    a("s_waitcnt vmcnt(0)")
                    if self.wosleep:
                        a(f"s_sleep {self.wosleep}")
                if self.wobatch == 2 and e in (1, 3, 5):
                    a("s_waitcnt vmcnt(0)")
            s, d = REG(0), REG(K + 1)
            for t in range(4):
                a(f"s_waitcnt vmcnt({6-2*t})")
                for dd in range(4):
                    a(f"v_perm_b32 v{d+(2*dd)*4+t}, v{s+(2*t+1)*4+dd}, v{s+(2*t)*4+dd}, s14")
                    a(f"v_perm_b32 v{d+(2*dd+1)*4+t}, v{s+(2*t+1)*4+dd}, v{s+(2*t)*4+dd}, s15")
        vG, vXC, vOUTA, vPA, vSC = 8, 9, 10, 11, 12
        vAR, vST = 14, 15
        Wk = 32
        self.stamp(4, 60)
        a(f"""s_cmp_lg_u32 s3, 3
        s_cbranch_scc1 L_noep
        s_cmp_lg_u32 s2, 0
        s_cbranch_scc1 L_noep""")
        Lc, Lcd = self.lab("c0"), self.lab("c0d")
        a(f"""s_mov_b32 s12, {self.poll_max}
        v_lshlrev_b32 v{Wk+8}, 6, v{vL}
        v_mov_b32 v{Wk+9}, s{sT}
        s_mov_b32 s9, {ST_OFF + 8}
        s_mov_b32 s10, {ST_OFF + 8 + 4096}
        s_mov_b32 s11, {ST_OFF + 8 + 8192}
        s_mov_b32 s13, {ST_OFF + 8 + 12288}
        {Lc}:
        s_sleep 127
        buffer_load_dword v{Wk}, v{Wk+8}, s[56:59], s9 offen sc1
        buffer_load_dword v{Wk+1}, v{Wk+8}, s[56:59], s10 offen sc1
        buffer_load_dword v{Wk+2}, v{Wk+8}, s[56:59], s11 offen sc1
        buffer_load_dword v{Wk+3}, v{Wk+8}, s[56:59], s13 offen sc1
        s_waitcnt vmcnt(0)""")
        self.chk4(vCK, Wk, Wk + 9, first=True, n=4)
        a(f"""v_cmp_ne_u32 vcc, 0, v{vCK}
        s_cbranch_vccz {Lcd}
        s_sub_u32 s12, s12, 1
        s_cmp_gt_u32 s12, 0
        s_cbranch_scc1 {Lc}
        {Lcd}:
        v_mov_b32 v{Wk}, 0
        s_mov_b32 s9, {EP_OFF}
        s_mov_b64 exec, 1
        buffer_store_dword v{Wk+9}, v{Wk}, s[56:59], s9 offen sc1
        s_mov_b64 exec, -1
        L_noep:""")
        a("s_cmp_lg_u32 s3, 0\ns_cbranch_scc1 L_nostat")
        if self.nopoll:
            a("s_branch L_nostat")
        vZ0 = Wk + 16
        L, Ld = self.lab("cw"), self.lab("cwd")
        a(f"""v_mov_b32 v{vZ0}, 0
        s_mov_b32 s12, {self.poll_max * 16}
        {L}:
        ds_read_b32 v{Wk}, v{vZ0} offset:{L_PROG}
        s_waitcnt lgkmcnt(0)
        v_readfirstlane_b32 s9, v{Wk}
        s_cmp_ge_u32 s9, 1
        s_cbranch_scc1 {Ld}
        s_sleep 8
        s_sub_u32 s12, s12, 1
        s_cmp_gt_u32 s12, 0
        s_cbranch_scc1 {L}
        {Ld}:
        s_sleep {self.cdelay[0]}""")
        Ls, Lsd = self.lab("st"), self.lab("std")
        a(f"""v_lshlrev_b32 v{Wk+4}, 3, v{vT2}
        v_and_b32 v{Wk+5}, {self.mix}, v{vT2}
        v_lshl_add_u32 v{Wk+4}, v{Wk+5}, 2, v{Wk+4}
        v_add_u32 v{Wk+4}, s4, v{Wk+4}
        v_and_b32 v{Wk+4}, 31, v{Wk+4}
        v_lshlrev_b32 v{Wk+4}, 8, v{Wk+4}
        v_lshl_add_u32 v{Wk+4}, v{vT1}, 4, v{Wk+4}
        s_lshl_b32 s9, s5, 13
        s_add_u32 s9, s9, {ST_OFF}
        v_mov_b32 v{Wk+5}, s{sT}
        s_mov_b32 s12, {self.poll_max}""")
        if not self.ctl:
            a("s_mov_b64 exec, 0xffff")
        a(f"""{Ls}:
        buffer_load_dwordx4 v[{Wk}:{Wk+3}], v{Wk+4}, s[56:59], s9 offen sc1
        s_memrealtime s[10:11]
        s_waitcnt vmcnt(0) lgkmcnt(0)""")
        self.chk4(vCK, Wk, vTG, first=True, n=2)
        a(f"""v_and_b32 v{vCK}, 0xff, v{vCK}
        v_bitop3_b32 v{vCK}, v{Wk+2}, v{Wk+5}, v{vCK} bitop3:0xbe
        v_cmp_ne_u32 vcc, 0, v{vCK}
        s_and_b32 s13, vcc_lo, 0xffff
        s_cbranch_scc0 {Lsd}
        s_sleep {self.stsleep}
        s_sub_u32 s12, s12, 1
        s_cmp_gt_u32 s12, 0
        s_cbranch_scc1 {Ls}
        {Lsd}:
        s_mov_b64 exec, -1""")
        if self.ctl:
            a(f"""v_sub_u32 v{Wk+6}, s10, v{Wk+3}
            v_cvt_f32_i32 v{Wk+6}, v{Wk+6}
            v_cndmask_b32 v{Wk+6}, v{Wk+6}, 0, vcc
            s_lshl_b32 s9, s6, 2
            v_subrev_u32 v{Wk+7}, s9, v{vL}
            v_cmp_gt_u32 vcc, 4, v{Wk+7}
            v_mul_f32 v{Wk+7}, {f32(-15.0)}, v{Wk+6}
            s_nop 0
            v_cndmask_b32 v{Wk+6}, v{Wk+6}, v{Wk+7}, vcc""")
            self.row_reduce("v_add_f32", Wk + 6)
            self.swap_reduce("v_add_f32", Wk + 6, Wk + 7, 16)
            self.swap_reduce("v_add_f32", Wk + 6, Wk + 7, 32)
            a(f"""v_mul_f32 v{Wk+6}, {f32(1/64.0)}, v{Wk+6}
            """)
            self.decide(Wk + 6, Wk + 7, 0, vZ0)
        a(f"v_mov_b32 v{Wk+2}, v{Wk}")
        self.row_reduce("v_max_f32", Wk + 2)
        a(f"""v_sub_f32 v{Wk}, v{Wk}, v{Wk+2}
        v_mul_f32 v{Wk}, {LOG2E}, v{Wk}
        v_exp_f32 v{Wk}, v{Wk}
        s_nop 0
        v_mul_f32 v{Wk+1}, v{Wk+1}, v{Wk}""")
        self.row_reduce("v_add_f32", Wk + 1)
        a(f"""v_rcp_f32 v{Wk+2}, v{Wk+1}
        s_nop 0
        v_mul_f32 v{Wk+3}, v{Wk}, v{Wk+2}
        v_fma_f32 v{Wk}, -v{Wk+3}, v{Wk+1}, v{Wk}
        v_fmac_f32 v{Wk+3}, v{Wk}, v{Wk+2}
        s_lshl_b32 s9, s6, 2
        v_subrev_u32 v{Wk+4}, s9, v{vL}
        v_cmp_gt_u32 vcc, 4, v{Wk+4}
        v_lshlrev_b32 v{Wk+4}, 2, v{Wk+4}
        s_and_saveexec_b64 s[10:11], vcc
        ds_write_b32 v{Wk+4}, v{Wk+3} offset:{L_SCALE}
        s_mov_b64 exec, -1""")
        if self.ctl:
            a(f"""v_bfe_u32 v{Wk+4}, v{vL}, 2, 2
            v_and_b32 v{Wk+6}, {self.mix}, v{Wk+4}
            v_lshlrev_b32 v{Wk+4}, 3, v{Wk+4}
            v_lshl_add_u32 v{Wk+4}, v{Wk+6}, 2, v{Wk+4}
            v_add_u32 v{Wk+4}, s4, v{Wk+4}
            v_and_b32 v{Wk+4}, 31, v{Wk+4}
            v_lshlrev_b32 v{Wk+4}, 7, v{Wk+4}
            v_and_b32 v{Wk+6}, 3, v{vL}
            v_lshl_add_u32 v{Wk+4}, v{Wk+6}, 3, v{Wk+4}
            v_mov_b32 v{Wk+9}, s{sT}""")
            for ci in range(1, len(self.cps)):
                L, Ld = self.lab("cw"), self.lab("cwd")
                a(f"""s_mov_b32 s12, {self.poll_max * 16}
                {L}:
                ds_read_b32 v{Wk}, v{vZ0} offset:{L_PROG}
                s_waitcnt lgkmcnt(0)
                v_readfirstlane_b32 s9, v{Wk}
                s_cmp_ge_u32 s9, {self.cps[ci]}
                s_cbranch_scc1 {Ld}
                s_sleep 2
                s_sub_u32 s12, s12, 1
                s_cmp_gt_u32 s12, 0
                s_cbranch_scc1 {L}
                {Ld}:
                s_memrealtime s[10:11]
                s_lshl_b32 s9, s8, 7
                s_lshl_b32 s13, s6, 3
                s_add_u32 s9, s9, s13
                s_add_u32 s9, s9, {TS_OFF + 8192*ci}
                s_waitcnt lgkmcnt(0)
                v_mov_b32 v{Wk+8}, s10
                s_mov_b64 exec, 1
                buffer_store_dwordx2 v[{Wk+8}:{Wk+9}], v{vZ0}, s[56:59], s9 offen sc1
                s_mov_b64 exec, 0xffff
                s_sleep {self.cdelay[ci]}
                s_lshl_b32 s9, s5, 12
                s_add_u32 s9, s9, {TS_OFF + 8192*ci}
                buffer_load_dwordx2 v[{Wk}:{Wk+1}], v{Wk+4}, s[56:59], s9 offen sc1
                s_memrealtime s[12:13]
                s_waitcnt vmcnt(0) lgkmcnt(0)
                v_cmp_ne_u32 vcc, v{Wk+1}, v{Wk+9}
                v_sub_u32 v{Wk+6}, s12, v{Wk}
                v_cvt_f32_i32 v{Wk+6}, v{Wk+6}
                v_cndmask_b32 v{Wk+6}, v{Wk+6}, 0, vcc
                s_sub_u32 s12, s12, s10
                v_cvt_f32_u32 v{Wk+7}, s12""")
                self.row_reduce("v_add_f32", Wk + 6)
                a(f"""v_mul_f32 v{Wk+6}, {f32(1/16.0)}, v{Wk+6}
                v_sub_f32 v{Wk+6}, v{Wk+6}, v{Wk+7}
                """)
                self.decide(Wk + 6, Wk + 7, ci, vZ0)
                a("s_mov_b64 exec, -1")
        a("L_nostat:")
        a(f"""s_lshl_b32 s67, s6, 5
        s_add_u32 s67, s67, s4
        s_mov_b32 s68, 0
        s_cmp_lg_u32 s3, 2
        s_cbranch_scc1 L_noown
        s_cmp_ge_u32 s67, 40
        s_cbranch_scc1 L_noown
        s_mov_b32 s68, 1""")
        self.srd(60, 28, 1280)
        W = Wk
        a(f"""v_lshlrev_b32 v{W+20}, 2, v{vL}
        s_mul_i32 s9, s5, 1280
        v_add_u32 v{W+21}, s9, v{W+20}""")
        for t in range(5):
            a(f"buffer_load_dword v{W+t}, v{W+20}, s[60:63], 0 offen offset:{256*t}")
            a(f"ds_read_b32 v{W+5+t}, v{W+21} offset:{L_XN + 256*t}")
        self.srd(60, 16, 2560)
        a(f"""v_and_b32 v{W+22}, 3, v{vL}
        v_lshl_add_u32 v{vOUTA}, v{W+22}, 2, v{vT2}
        v_lshlrev_b32 v{vOUTA}, 1, v{vOUTA}
        s_lshl_b32 s10, s67, 5
        s_add_u32 s10, s10, s9
        v_add_u32 v{vOUTA}, s10, v{vOUTA}
        buffer_load_ushort v{vXC}, v{vOUTA}, s[60:63], 0 offen
        ds_read_u16 v{W+23}, v{vOUTA} offset:{L_XN}
        s_waitcnt vmcnt(0) lgkmcnt(0)""")
        for t in range(5):
            c = "0" if t == 0 else f"v{W+24}"
            a(f"v_dot2_f32_bf16 v{W+24}, v{W+t}, v{W+5+t}, {c}")
        a(f"v_lshlrev_b32 v{vXC}, 16, v{vXC}\nv_lshlrev_b32 v{W+23}, 16, v{W+23}\ns_nop 1")
        self.row_reduce("v_add_f32", W + 24)
        self.swap_reduce("v_add_f32", W + 24, W + 25, 16)
        self.swap_reduce("v_add_f32", W + 24, W + 25, 32)
        self.rbf(W + 24)
        self.sigmoid_like(W + 24, W + 24)
        self.rbf(W + 24)
        Ly, Lyd = self.lab("y"), self.lab("yd")
        a(f"""v_lshrrev_b32 v{W+20}, 2, v{vL}
        v_mul_u32_u24 v{W+21}, 5120, v{W+20}
        v_lshl_add_u32 v{W+21}, v{W+22}, 4, v{W+21}
        v_mul_u32_u24 v{vPA}, 2560, v{W+20}
        v_lshl_add_u32 v{vPA}, v{W+22}, 4, v{vPA}
        s_mul_i32 s9, s5, 2560
        s_lshl_b32 s10, s67, 6
        s_add_u32 s9, s9, s10
        s_add_u32 s9, s9, {Y_OFF}
        s_add_u32 s10, s9, {16*5120}
        s_add_u32 s11, s9, {32*5120}
        """)
        ylds = [(W + 4 * t, f"buffer_load_dwordx4 v[{W+4*t}:{W+4*t+3}], v{W+21}, s[56:59], s{9+t} offen sc1") for t in range(3)]
        if self.nomoe:
            for r, txt in ylds:
                a(txt)
            a("s_waitcnt vmcnt(0)")
        else:
            self.mpoll(ylds, vTG, vCK, 64)
        self.sum_quads(W, 3)
        self.merge4(W)
        self.rbf(W)
        a(f"v_mul_f32 v{W}, v{W}, v{W+24}")
        self.rbf(W)
        a(f"v_add_f32 v{W}, v{W}, v{W+23}")
        self.rbf(W)
        self.sigmoid_like(W + 1, W)
        a(f"v_mul_f32 v{vG}, v{W}, v{W+1}")
        self.rbf(vG)
        a(f"""s_mul_i32 s70, s5, {128*2560}
        s_lshl_b32 s10, s67, 6
        s_add_u32 s70, s70, s10""")
        for t in range(1, 8):
            a(f"s_add_u32 s{70+t}, s70, {t*40960}")
        a("L_noown:")
        self.srd(60, 36, 2560)
        a(f"""v_and_b32 v{vAR}, 7, v{vL}
        v_mul_u32_u24 v{vAR}, {OS}, v{vAR}
        v_lshl_add_u32 v{vAR}, v{vT2}, 4, v{vAR}
        v_and_b32 v{vT3}, 1, v{vT2}
        v_lshlrev_b32 v{vST}, 5, v{vT1}
        v_lshl_add_u32 v{vST}, v{vT3}, 4, v{vST}
        v_lshlrev_b32 v{vT3}, 3, v{vT3}
        s_mul_i32 s9, s7, 2560
        s_lshl_b32 s10, s3, 9
        s_add_u32 s9, s9, s10
        s_waitcnt vmcnt(0) lgkmcnt(0)""")
        self.stamp(5, 60)
        a(f"s_setprio {self.hprio2}")
        a(f"s_mov_b32 s66, {1 if self.dry else 0}")
        a("L_tail:")
        a("s_cmp_lg_u32 s66, 0\ns_cbranch_scc1 L_nobar\ns_barrier\nL_nobar:")
        AT = 32
        DA = [56, 16]
        RT = [20, 21, 22, 23, 24, 25, 28, 29]
        for k in range(6):
            a(f"ds_read_b128 v[{AT+4*k}:{AT+4*k+3}], v{vAR} offset:{L_O + 64*k}")
        a(f"ds_read_b64 v[{vSC}:{vSC+1}], v{vT3} offset:{L_SCALE}")
        DB = [[56, 16], [60, 4]]
        def epi(c, D, part):
            if part == 0:
                a(f"v_add_f32 v{D}, v{D}, v{D+1}\nv_add_f32 v{D+2}, v{D+2}, v{D+3}")
            else:
                a(f"v_mul_f32 v{RT[c]}, v{D}, v{vSC}\nv_fmac_f32 v{RT[c]}, v{D+2}, v{vSC+1}")
        for pr in range(4):
            cs = (pr, pr + 4)
            Ds = DB[pr & 1]
            for k in range(6):
                if pr == 0:
                    a(f"s_waitcnt lgkmcnt({6-k})")
                for c, D in zip(cs, Ds):
                    self.mfma(D, AT + 4 * k, REG(k + 1) + 4 * c, None if k == 0 else D)
                if pr > 0 and k >= 2:
                    pc, pD = (pr - 1, pr + 3), DB[(pr - 1) & 1]
                    if k == 4:
                        if pr == 1:
                            a("s_waitcnt lgkmcnt(0)")
                        epi(pc[0], pD[0], 0); epi(pc[1], pD[1], 0)
                    if k == 5:
                        epi(pc[0], pD[0], 1); epi(pc[1], pD[1], 1)
        for c in range(3):
            a(f"v_permlane16_swap_b32 v{RT[c]}, v{RT[c+4]}")
        a("s_nop 3")
        RES = 56
        for c in range(3):
            a(f"v_add_f32 v{RES+c}, v{RT[c]}, v{RT[c+4]}")
        epi(3, DB[1][0], 0); epi(7, DB[1][1], 0); epi(3, DB[1][0], 1); epi(7, DB[1][1], 1)
        for c in range(3):
            self.tag(RES + c, RES + c, vTG)
        a(f"""v_permlane16_swap_b32 v{RT[3]}, v{RT[7]}
        s_nop 0
        v_add_f32 v{RES+3}, v{RT[3]}, v{RT[7]}""")
        self.tag(RES + 3, RES + 3, vTG)
        a(f"""s_cmp_lg_u32 s66, 0
        s_cbranch_scc1 L_nost
        s_mov_b32 exec_hi, 0
        buffer_store_dwordx4 v[{RES}:{RES+3}], v{vST}, s[56:59], s9 offen sc1
        s_mov_b32 exec_hi, -1""")
        self.stamp(7, 20)
        a(f"""s_cmp_eq_u32 s68, 0
        s_cbranch_scc1 L_end""")
        Z = 64
        M0 = 80
        a(f"v_not_b32 v{vCK}, v{vTG}\nv_mov_b32 v30, 0xff")
        for t in range(8):
            a(f"s_mov_b64 s[{M0+2*t}:{M0+2*t+1}], -1\nv_mov_b32 v{Z+4*t}, v{vCK}")
        a(f"s_mov_b32 s12, {self.poll_max * 4}\ns_mov_b32 s13, 512\nL_pp:")
        for t in range(8):
            sk = self.lab("pl")
            a(f"""s_mov_b64 exec, s[{M0+2*t}:{M0+2*t+1}]
            s_cbranch_execz {sk}
            buffer_load_dwordx4 v[{Z+4*t}:{Z+4*t+3}], v{vPA}, s[56:59], s{70+t} offen sc1
            {sk}:""")
        a(f"""s_waitcnt vmcnt({self.pcap})
        s_cmp_le_u32 s13, {self.pthr}
        s_cbranch_scc1 L_pf
        s_waitcnt vmcnt(0)
        L_pf:
        s_mov_b32 s13, 0""")
        for t in range(8):
            sk = self.lab("pc")
            a(f"""s_mov_b64 exec, s[{M0+2*t}:{M0+2*t+1}]
            s_cbranch_execz {sk}
            v_bitop3_b32 v{vCK}, v{Z+4*t}, v{Z+4*t+1}, v{vTG} bitop3:0x7e
            v_bitop3_b32 v31, v{Z+4*t+2}, v{Z+4*t+3}, v{vTG} bitop3:0x7e
            v_bitop3_b32 v{vCK}, v{vCK}, v31, v30 bitop3:0xa8
            v_cmp_ne_u32 s[{M0+2*t}:{M0+2*t+1}], 0, v{vCK}
            s_bcnt1_i32_b64 s10, s[{M0+2*t}:{M0+2*t+1}]
            s_add_u32 s13, s13, s10
            {sk}:""")
        a(f"""s_mov_b64 exec, -1
        s_cmp_eq_u32 s13, 0
        s_cbranch_scc1 L_nost
        s_cmp_le_u32 s13, {self.pthr}
        s_cbranch_scc1 L_pn
        s_sleep {self.pslow}
        L_pn:
        s_sub_u32 s12, s12, 1
        s_cmp_gt_u32 s12, 0
        s_cbranch_scc1 L_pp
        L_nost:""")
        C = 32
        for r in range(32):
            a(f"v_and_b32 v{C+r}, s{sMASK}, v{Z+r}")
        self.sum_quads(C, 8)
        self.merge4(C)
        self.rbf(C)
        a(f"v_mul_f32 v{C}, v{C}, v{vG}")
        self.rbf(C)
        a(f"""v_add_f32 v{C}, v{C}, v{vXC}
        v_cvt_pk_bf16_f32 v{C}, v{C}, v{C}
        s_cmp_eq_u32 s66, 0
        s_cbranch_scc1 L_fin
        s_mov_b32 s66, 0
        v_and_b32 v{vT3}, 1, v{vT2}
        v_lshlrev_b32 v{vT3}, 3, v{vT3}
        s_branch L_tail
        L_fin:
        s_mov_b32 exec_lo, 0x000f000f
        s_mov_b32 exec_hi, 0x000f000f
        buffer_store_short v{C}, v{vOUTA}, s[60:63], 0 offen""")
        if self.padto:
            if self.padwg >= 0:
                a(f"s_cmp_lg_u32 s2, {self.padwg}\ns_cbranch_scc1 L_end")
            a(f"""L_pad:
            s_memrealtime s[50:51]
            s_waitcnt lgkmcnt(0)
            s_sub_u32 s50, s50, s48
            s_cmp_lt_u32 s50, {self.padto}
            s_cbranch_scc1 L_pad""")
        self.stamp(8, 60)

    def gen_moe1_loads(self, vL, vT3, vT4, vT5, TI):
        a = self.a
        vAD = 48
        a(f"""v_and_b32 v{vT5}, 8, v{vL}
        v_cmp_eq_u32 vcc, 0, v{vT5}
        v_mov_b32 v{vT3}, s32
        v_mov_b32 v{vT4}, s30
        v_cndmask_b32 v{vAD}, v{vT3}, v{vT4}, vcc
        v_mov_b32 v{vT3}, s33
        v_mov_b32 v{vT4}, s31
        v_cndmask_b32 v{vAD+1}, v{vT3}, v{vT4}, vcc
        v_lshrrev_b32 v{vT3}, 4, v{vL}
        v_mul_u32_u24 v{vT3}, {16*3072}, v{vT3}
        v_and_b32 v{vT4}, 7, v{vL}
        v_lshl_add_u32 v{vT3}, v{vT4}, 4, v{vT3}
        s_lshl_b32 s9, s52, 7
        s_mul_i32 s10, s53, {64*3072}
        s_add_u32 s9, s9, s10
        v_add_u32 v{vT4}, s9, v{vT3}
        v_mov_b32 v{vT5}, 0
        v_add_co_u32 v{vAD}, vcc, v{vAD}, v{vT4}
        s_mov_b32 s10, 6144
        s_mov_b32 s11, 0
        v_addc_co_u32 v{vAD+1}, vcc, v{vAD+1}, v{vT5}, vcc""")
        for t in range(16):
            a(f"global_load_dwordx4 v[{TI+4*t}:{TI+4*t+3}], v[{vAD}:{vAD+1}], off offset:{3072*(t&1)} {self.mf}")
            if t & 1 and t < 15:
                a(f"v_lshl_add_u64 v[{vAD}:{vAD+1}], v[{vAD}:{vAD+1}], 0, s[10:11]")

    def gen_moe1(self, vL, vT3, vT4, vT5, vSEL, vA, vACC, vTG, TI):
        a = self.a
        a(f"""v_bfe_u32 v{vT3}, v{vL}, 3, 1
        v_mul_u32_u24 v{vT3}, 1280, v{vT3}
        v_lshrrev_b32 v{vT4}, 4, v{vL}
        v_lshl_add_u32 v{vT3}, v{vT4}, 5, v{vT3}
        s_lshl_b32 s9, s53, 7
        v_add_u32 v{vT3}, s9, v{vT3}
        ds_read_b128 v[8:11], v{vT3} offset:{L_XN}
        ds_read_b128 v[12:15], v{vT3} offset:{L_XN+16}
        s_mul_i32 s9, s52, 10240
        s_lshl_b32 s10, s53, 10
        s_add_u32 s9, s9, s10
        s_add_u32 s9, s9, {G1_OFF}
        v_lshlrev_b32 v{vT3}, 4, v{vL}
        s_waitcnt lgkmcnt(0)""")
        for t in range(16):
            A = vA + 4 * (t & 1)
            self.buildA(A, 8 + t // 2, t & 1, vSEL)
            a(f"s_waitcnt vmcnt({15-t})\ns_nop 0")
            self.mfma(vACC, A, TI + 4 * t, None if t == 0 else vACC)
        a(f"""s_nop 7
        s_cmp_ge_u32 s2, {0 if self.nomoe else 240}
        s_cbranch_scc1 L_nog1""")
        for r in range(4):
            self.tag(vACC + r, vACC + r, vTG, rn=True)
        a(f"buffer_store_dwordx4 v[{vACC}:{vACC+3}], v{vT3}, s[56:59], s9 offen sc1\nL_nog1:")

    def gen_moe_red(self, vL, vT1, vT2, vT3, vT4, vT5, vTG, vCK, TI):
        a = self.a
        a(f"""s_mul_i32 s9, s52, 10240
        s_add_u32 s9, s9, {G1_OFF}
        s_add_u32 s10, s9, 4096
        s_add_u32 s11, s9, 8192
        v_lshlrev_b32 v{vT3}, 4, v{vL}""")
        self.mpoll([(TI + 4 * t, f"buffer_load_dwordx4 v[{TI+4*t}:{TI+4*t+3}], v{vT3}, s[56:59], s{9 + t//4} offen offset:{(t%4)*1024} sc1") for t in range(10)],
                   vTG, vCK, 32)
        self.sum_quads(TI, 10)
        for r in range(4):
            self.rbf(TI + r)
        a("s_nop 1")
        for r in range(4):
            a(f"v_mov_b32_dpp v{TI+4+r}, v{TI+r} row_ror:8 row_mask:0xf bank_mask:0xf")
        for r in range(4):
            self.sigmoid_like(vT3, TI + r)
            a(f"v_mul_f32 v{TI+r}, v{TI+r}, v{vT3}")
            self.rbf(TI + r)
            a(f"v_mul_f32 v{TI+r}, v{TI+r}, v{TI+4+r}")
            self.rbf(TI + r)
            a(f"v_or_b32 v{TI+r}, v{TI+r}, v{vTG}")
        a(f"""v_lshrrev_b32 v{vT3}, 1, v{vT2}
        v_lshlrev_b32 v{vT3}, 8, v{vT3}
        v_lshl_add_u32 v{vT3}, v{vT1}, 5, v{vT3}
        v_and_b32 v{vT4}, 1, v{vT2}
        v_lshl_add_u32 v{vT3}, v{vT4}, 4, v{vT3}
        s_lshl_b32 s9, s52, 9
        s_add_u32 s9, s9, {HX_OFF}
        s_mov_b32 exec_lo, 0x00ff00ff
        s_mov_b32 exec_hi, 0x00ff00ff
        buffer_store_dwordx4 v[{TI}:{TI+3}], v{vT3}, s[56:59], s9 offen sc1
        s_mov_b64 exec, -1
        s_waitcnt vmcnt(0)""")

    def gen_moe2(self, vL, vT1, vT2, vT3, vT4, vT5, vSEL, vA, vACC, vTG, vCK, TI):
        a = self.a
        DT = TI + 64
        vD = 52
        a(f"""s_cmp_ge_u32 s53, 5
        s_cselect_b32 s54, 1, 0
        s_mul_i32 s55, s54, 5
        s_sub_u32 s55, s53, s55""")
        self.srd(60, 34, 1536 * 1280)
        a(f"""v_mul_u32_u24 v{vD}, {8*1280}, v{vT2}
        v_lshl_add_u32 v{vD}, v{vT1}, 4, v{vD}
        s_mul_i32 s9, s52, {64*1280}
        s_mul_i32 s10, s54, {32*1280}
        s_add_u32 s9, s9, s10
        s_lshl_b32 s10, s55, 8
        s_add_u32 s9, s9, s10
        s_add_u32 s10, s9, {4*1280}""")
        for Gd in range(8):
            a(f"buffer_load_dwordx4 v[{DT+4*Gd}:{DT+4*Gd+3}], v{vD}, s[60:63], s{9 + Gd//4} offen offset:{(Gd%4)*1280} {self.mf}")
        a(f"""v_lshrrev_b32 v{vT3}, 3, v{vT1}
        v_lshlrev_b32 v{vT3}, 8, v{vT3}
        v_lshl_add_u32 v{vT3}, v{vT2}, 5, v{vT3}
        s_lshl_b32 s9, s52, 9
        s_lshl_b32 s10, s54, 7
        s_add_u32 s9, s9, s10
        s_add_u32 s9, s9, {HX_OFF}""")
        self.mpoll([(TI + 4 * t, f"buffer_load_dwordx4 v[{TI+4*t}:{TI+4*t+3}], v{vT3}, s[56:59], s9 offen offset:{16*t} sc1") for t in range(2)],
                   vTG, vCK, 32)
        for Gd in range(8):
            A = vA + 4 * (Gd & 1)
            self.buildA(A, TI + Gd, 1, vSEL)
            a("s_nop 1")
            self.mfma(vACC, A, DT + 4 * Gd, None if Gd == 0 else vACC)
        a(f"""v_lshrrev_b32 v{vT3}, 1, v{vT2}
        v_mul_u32_u24 v{vT3}, 2560, v{vT3}
        v_lshl_add_u32 v{vT3}, v{vT1}, 5, v{vT3}
        v_and_b32 v{vT4}, 1, v{vT2}
        v_lshl_add_u32 v{vT3}, v{vT4}, 4, v{vT3}
        s_lshl_b32 s9, s52, 1
        s_add_u32 s9, s9, s54
        s_mul_i32 s9, s9, 5120
        s_lshl_b32 s10, s55, 9
        s_add_u32 s9, s9, s10
        s_add_u32 s9, s9, {Y_OFF}
        s_nop 3""")
        for r in range(4):
            self.tag(vACC + r, vACC + r, vTG, rn=True)
        a(f"buffer_store_dwordx4 v[{vACC}:{vACC+3}], v{vT3}, s[56:59], s9 offen sc1\ns_waitcnt vmcnt(0)")

    def text(self):
        hdr = open("recurrent_scan__mha_block_cached__moe_arch_mod__decode.s.ref").read().split("; Override launch")[0]
        self.gen()
        return hdr + f"""; @launch grid=(256,1,1) block=(512,1,1) lds={LDS_BYTES}
.amdgcn_target "amdgcn-amd-amdhsa--gfx950"
.text
.globl {KNAME}
.p2align 8
.type {KNAME},@function
{KNAME}:
""" + "\n".join(self.o) + f"""
.section .rodata,"a"
.p2align 6
.amdhsa_kernel {KNAME}
  .amdhsa_next_free_vgpr 256
  .amdhsa_next_free_sgpr 102
  .amdhsa_accum_offset 256
  .amdhsa_group_segment_fixed_size 0
  .amdhsa_kernarg_size 104
  .amdhsa_user_sgpr_count 2
  .amdhsa_user_sgpr_kernarg_segment_ptr 1
  .amdhsa_system_sgpr_workgroup_id_x 1
  .amdhsa_float_denorm_mode_32 3
.end_amdhsa_kernel
"""


if __name__ == "__main__":
    out = sys.argv[1]
    kw = {}
    for arg in sys.argv[2:]:
        k, v = arg.split("=", 1)
        try:
            v = int(v)
        except ValueError:
            pass
        kw[k] = v
    open(out, "w").write(G(**kw).text())
```

```python
import sys, struct

KNAME = "recurrent_scan__mha_block_cached__moe_arch_mod__decode_kernel"
TB = 201326592
CH = 786432
STEP = 12288

P_OFF = 0
ST_OFF = 256 * 2560
EP_OFF = ST_OFF + 64 * 256
Y_OFF = EP_OFF + 256
QX_OFF = Y_OFF + 12 * 5120
GU_OFF = QX_OFF + 32 * 4 * 2 * 768
TS_OFF = GU_OFF + 192 * 512
WS_USED = TS_OFF + 4 * 8192
STAMP_OFF = 2 << 20
WS_SRD = 4 << 20
assert WS_USED <= STAMP_OFF

L_XN = 0
L_QB = 2560
L_SC = L_QB + 512
OS = 416
L_O = L_SC + 4 * 1152
L_SCALE = L_O + 8 * OS
L_PROG = L_SCALE + 48
L_BOOST = L_SCALE + 52
L_HB = L_SCALE + 64
L_STL = L_HB + 512
L_WX = (L_STL + 64 + 1023) // 1024 * 1024
WXS = 1040
L_TM = L_WX + 48 * WXS
LDS_BYTES = L_TM + 64

LOG2E = 0x3fb8aa3b
SCALE_F32 = 0x3d93cd3a
assert struct.unpack("<I", struct.pack("<f", 192 ** -0.5))[0] == SCALE_F32
def f32(x): return "0x%08x" % struct.unpack("<I", struct.pack("<f", x))[0]
NLOG2E = f32(-1.4426950408889634)

sWAVE, sH, sB, sSPLIT, sCHUNK, sBH = 3, 4, 5, 6, 7, 8
sT = 78
sMASK = 79
sWV = 69


class G:
    def __init__(self, R0=16, R1=8, W=4, W0=3, kvflags="nt", wflags="nt", woflags="pl", moeflags="nt", rot=1, stamps=0,
                 poll_max=1 << 18, hprio=3, hprio1=0, hprio2=3, wobatch=8, nowo=0, nomoe=0, noq=0, nob0=0, D=2, GI=4, early=0, nok=0, nopoll=0, hskip=0, stsleep=16, DV=0, earlyV=-1, D0=0, hsleep=0, diagx=0, padto=0, padwg=-1, qsleep=0, psleep=0, NE=0, DE=4, qsleep2=0, NB=0, ctl=1, cps='1,5,8', gains='9,7,7', dead=30, cdelay='48,32,16', gb=0, brk=1, mix=1, kboost=-1, pre=2, wosleep=0, dry=1, pthr=32, pslow=8, pcap=24, pst='sc1', pld='sc1', ppre=0):
        self.pst, self.pld, self.ppre = pst.replace('_', ' '), pld.replace('_', ' '), ppre
        self.dry, self.pthr, self.pslow, self.pcap = dry, pthr, pslow, pcap
        self.kboost, self.pre, self.wosleep = kboost, pre, wosleep
        self.gb, self.brk, self.mix = gb, brk, mix
        self.ctl = ctl
        self.NB = NB
        self.cps = [int(x) for x in str(cps).split(',')]
        self.gains = [float(x) for x in str(gains).split(',')]
        self.dead = dead
        self.cdelay = [int(x) for x in str(cdelay).split(',')]
        self.NE, self.DE, self.qsleep2 = NE, DE, qsleep2
        self.qsleep, self.psleep = qsleep, psleep
        self.padwg = padwg
        self.padto = padto
        self.diagx = diagx
        self.DV = DV or D
        self.earlyV = early if earlyV < 0 else earlyV
        self.D0 = D0 or D
        self.hsleep = hsleep
        self.nok, self.nopoll, self.hskip, self.stsleep = nok, nopoll, hskip, stsleep
        self.D, self.GI, self.early = D, GI, early
        self.nowo, self.nomoe, self.noq, self.nob0 = nowo, nomoe, noq, nob0
        self.hprio1, self.hprio2 = hprio1, hprio2
        self.o = []
        self.R0, self.R1, self.W, self.W0 = R0, R1, W, W0
        fl = lambda x: '' if x == 'pl' else x.replace('_', ' ')
        self.kvf, self.wf, self.mf = fl(kvflags), fl(wflags), fl(moeflags)
        self.wof = fl(woflags)
        self.rot = rot
        self.stamps = stamps
        self.poll_max = poll_max
        self.hprio = hprio
        self.wobatch = wobatch
        self.nlab = 0

    def a(self, s):
        for ln in s.split("\n"):
            ln = ln.strip()
            if ln:
                self.o.append(("" if ln.endswith(":") else "    ") + ln)

    def lab(self, p="L"):
        self.nlab += 1
        return f"{p}_{self.nlab}"

    def srd(self, q, lo, nbytes):
        self.a(f"s_mov_b32 s{q}, s{lo}\ns_mov_b32 s{q+1}, s{lo+1}\ns_mov_b32 s{q+2}, {nbytes}\ns_mov_b32 s{q+3}, 0x20000")

    def dpp(self, op, d, s0, s1, ctrl):
        self.a(f"{op}_dpp v{d}, v{s0}, v{s1} {ctrl} row_mask:0xf bank_mask:0xf")

    def row_reduce(self, op, v, steps=(1, 2, 4, 8)):
        for s in steps:
            self.a("s_nop 1")
            self.dpp(op, v, v, v, f"row_ror:{s}")

    def swap_reduce(self, op, v, t, which):
        self.a(f"v_mov_b32 v{t}, v{v}\ns_nop 1\nv_permlane{which}_swap_b32 v{v}, v{t}\ns_nop 1\n{op} v{v}, v{v}, v{t}")

    def stamp(self, idx, vt, st=50, src=None):
        if not self.stamps:
            return
        if self.stamps == 3 and (self.cls == "H" or idx in (0, 1, 2, 3, 4)):
            return
        if self.stamps == 4 and not getattr(self, "dump", False):
            return
        if src is None:
            self.a(f"s_memrealtime s[{st}:{st+1}]")
            src = st
        if self.stamps == 2:
            slot = (idx if idx < 15 else 0) + (1 if self.cls == "S" else 7)
            if self.cls == "H" and idx not in (1, 2, 4, 7, 8):
                return
            if self.cls == "H":
                slot = {1: 8, 2: 9, 4: 10, 7: 11, 8: 12}[idx]
            elif idx == 15:
                slot = 1
            else:
                slot = 2 + idx
            inv = f"s_mov_b32 s65, s{src}"
            Lsk = self.lab("sk")
            if not (self.cls == "H" and idx == 8):
                self.a(f"""s_waitcnt lgkmcnt(0)
                s_cmp_lg_u32 s2, 0
                s_cbranch_scc1 {Lsk}""")
            self.a(f"""s_waitcnt lgkmcnt(0)
            {inv}
            v_mov_b32 v{vt}, s65
            v_mov_b32 v{vt+2}, {slot*4}
            s_mov_b64 exec, 1
            global_atomic_umax v{vt+2}, v{vt}, s[38:39] sc1
            s_mov_b64 exec, -1
            {Lsk}:""")
            return
        self.a(f"""s_lshl_b32 s65, s2, 3
        s_add_u32 s65, s65, s{sWV}
        s_lshl_b32 s65, s65, 7
        s_add_u32 s65, s65, {STAMP_OFF + idx*8}
        s_waitcnt lgkmcnt(0)
        v_mov_b32 v{vt}, s{src}
        v_mov_b32 v{vt+1}, s{src+1}
        v_mov_b32 v{vt+2}, 0
        s_mov_b64 exec, 1
        buffer_store_dwordx2 v[{vt}:{vt+1}], v{vt+2}, s[56:59], s65 offen
        s_mov_b64 exec, -1""")

    def selectors(self, vL, base, t0, t1, t2):
        a = self.a
        a(f"""v_and_b32 v{t0}, 1, v{vL}
        v_cmp_eq_u32 vcc, 1, v{t0}
        v_mov_b32 v{t0}, 0x0c0c0100
        v_mov_b32 v{t1}, 0x01000c0c
        v_cndmask_b32 v{t0}, v{t0}, v{t1}, vcc
        v_mov_b32 v{t1}, 0x0c0c0302
        v_mov_b32 v{t2}, 0x03020c0c
        v_cndmask_b32 v{t1}, v{t1}, v{t2}, vcc
        v_bfe_u32 v{t2}, v{vL}, 1, 2""")
        for j in range(4):
            a(f"""v_cmp_eq_u32 vcc, {j}, v{t2}
            v_mov_b32 v{base+j}, 0x0c0c0c0c
            v_mov_b32 v{base+4+j}, 0x0c0c0c0c
            v_cndmask_b32 v{base+j}, v{base+j}, v{t0}, vcc
            v_cndmask_b32 v{base+4+j}, v{base+4+j}, v{t1}, vcc""")

    def buildA(self, A, P, hi, sel):
        for j in range(4):
            self.a(f"v_perm_b32 v{A+j}, v{P}, v{P}, v{sel + (4 if hi else 0) + j}")

    def mfma(self, D, A, B, C):
        c = "0" if C is None else f"v[{C}:{C+3}]"
        self.a(f"v_mfma_f32_16x16x32_bf16 v[{D}:{D+3}], v[{A}:{A+3}], v[{B}:{B+3}], {c}")

    def rbf(self, v):
        self.a(f"v_cvt_pk_bf16_f32 v{v}, v{v}, v{v}\nv_lshlrev_b32 v{v}, 16, v{v}")

    def tag(self, d, s, vTG, rn=False):
        if rn:
            self.a(f"v_add_u32 v{d}, 0x80, v{s}")
            s = d
        self.a(f"v_and_or_b32 v{d}, v{s}, s{sMASK}, v{vTG}")

    def chk4(self, acc, x, vTG, first=False, n=4):
        for r in range(n):
            self.a(f"v_xor_b32 v{x+r}, v{x+r}, v{vTG}")
        for r in range(0, n, 2):
            if first and r == 0:
                self.a(f"v_or_b32 v{acc}, v{x}, v{x+1}")
            else:
                self.a(f"v_or3_b32 v{acc}, v{x+r}, v{x+r+1}, v{acc}")

    def poll_tail(self, acc, Lretry, Ldone, sleep):
        self.a(f"""v_and_b32 v{acc}, 0xff, v{acc}
        v_cmp_ne_u32 vcc, 0, v{acc}
        s_cbranch_vccz {Ldone}""")
        if sleep:
            self.a(f"s_sleep {sleep}")
        self.a(f"""s_sub_u32 s12, s12, 1
        s_cmp_gt_u32 s12, 0
        s_cbranch_scc1 {Lretry}
        {Ldone}:""")

    def mpoll(self, loads, vTG, vCK, sleep, mask=None, nd=4, M0=80):
        a = self.a
        L, Ld = self.lab("mp"), self.lab("mpd")
        for t in range(len(loads)):
            if mask is None:
                a(f"s_mov_b64 s[{M0+2*t}:{M0+2*t+1}], -1")
            else:
                a(f"s_mov_b32 s{M0+2*t}, {mask[0]}\ns_mov_b32 s{M0+2*t+1}, {mask[1]}")
        a(f"s_mov_b32 s12, {self.poll_max}\n{L}:")
        for t, (r, txt) in enumerate(loads):
            sk = self.lab("ml")
            a(f"s_mov_b64 exec, s[{M0+2*t}:{M0+2*t+1}]\ns_cbranch_execz {sk}\n{txt}\n{sk}:")
        a("s_mov_b64 s[100:101], 0\ns_waitcnt vmcnt(0)")
        for t, (r, txt) in enumerate(loads):
            sk = self.lab("mc")
            a(f"s_mov_b64 exec, s[{M0+2*t}:{M0+2*t+1}]\ns_cbranch_execz {sk}")
            self.chk4(vCK, r, vTG, first=True, n=nd)
            a(f"""v_and_b32 v{vCK}, 0xff, v{vCK}
            v_cmp_ne_u32 s[{M0+2*t}:{M0+2*t+1}], 0, v{vCK}
            s_or_b64 s[100:101], s[100:101], s[{M0+2*t}:{M0+2*t+1}]
            {sk}:""")
        a(f"""s_mov_b64 exec, -1
        s_cmp_eq_u64 s[100:101], 0
        s_cbranch_scc1 {Ld}""")
        if sleep:
            a(f"s_sleep {sleep}")
        a(f"""s_sub_u32 s12, s12, 1
        s_cmp_gt_u32 s12, 0
        s_cbranch_scc1 {L}
        {Ld}:""")

    def decide(self, v, t, ci, vZ0):
        self.a(f"""v_add_f32 v{t}, {f32(float(self.dead))}, v{v}
        v_mul_f32 v{t}, {f32(self.gb / 100.0)}, v{t}
        v_min_f32 v{t}, 0, v{t}
        v_subrev_f32 v{v}, {f32(float(self.dead))}, v{v}
        v_mul_f32 v{v}, {f32(self.gains[ci] / 100.0)}, v{v}
        v_max_f32 v{v}, 0, v{v}
        v_add_f32 v{v}, v{v}, v{t}
        v_min_f32 v{v}, 64.0, v{v}
        v_max_f32 v{v}, {f32(-24.0)}, v{v}
        v_cvt_i32_f32 v{v}, v{v}
        v_and_b32 v{v}, 0xffff, v{v}
        v_or_b32 v{v}, {(ci+1) << 16}, v{v}
        ds_write_b32 v{vZ0}, v{v} offset:{L_BOOST}""")

    def sum_quads(self, X, n):
        for t in range(1, n):
            self.a(f"v_pk_add_f32 v[{X}:{X+1}], v[{X}:{X+1}], v[{X+4*t}:{X+4*t+1}]")
            self.a(f"v_pk_add_f32 v[{X+2}:{X+3}], v[{X+2}:{X+3}], v[{X+4*t+2}:{X+4*t+3}]")

    def merge4(self, X):
        a = self.a
        a(f"""s_nop 1
        v_permlane16_swap_b32 v{X}, v{X+1}
        v_permlane16_swap_b32 v{X+2}, v{X+3}
        s_nop 1
        v_add_f32 v{X}, v{X}, v{X+1}
        v_add_f32 v{X+2}, v{X+2}, v{X+3}
        s_nop 1
        v_permlane32_swap_b32 v{X}, v{X+2}
        s_nop 1
        v_add_f32 v{X}, v{X}, v{X+2}""")
        self.row_reduce("v_add_f32", X, steps=(4, 8))

    def sigmoid_like(self, d, x):
        self.a(f"""v_mul_f32 v{d}, {NLOG2E}, v{x}
        v_exp_f32 v{d}, v{d}
        s_nop 0
        v_add_f32 v{d}, 1.0, v{d}
        v_rcp_f32 v{d}, v{d}
        s_nop 0""")

    def rotcode(self):
        if self.rot < 100:
            return f"s_mul_i32 s9, s7, {self.rot}"
        if self.rot == 100:
            return "s_lshr_b32 s9, s2, 3\ns_lshl_b32 s11, s2, 5\ns_add_u32 s9, s9, s11"
        if self.rot == 101:
            return "s_lshl_b32 s9, s5, 4\ns_add_u32 s9, s9, s7"
        if self.rot == 102:
            return "s_lshr_b32 s9, s7, 6\ns_mul_i32 s9, s9, 17\ns_add_u32 s9, s9, s7"
        raise ValueError

    def epoch_load(self):
        self.a(f"s_load_dword s{sT}, s[40:41], {EP_OFF}")

    def epoch_use(self, vTG):
        self.a(f"""s_add_u32 s{sT}, s{sT}, 1
        s_mov_b32 s{sMASK}, 0xffffff00
        s_and_b32 s9, s{sT}, 0xff
        v_mov_b32 v{vTG}, s9""")

    def gen(self):
        a = self.a
        a(f"""s_cmp_ge_u32 s2, 256
        s_cbranch_scc1 L_end
        s_load_dwordx16 s[16:31], s[0:1], 0
        s_load_dwordx8 s[32:39], s[0:1], 64
        s_load_dwordx2 s[40:41], s[0:1], 96""")
        if self.stamps or self.padto:
            a("s_memrealtime s[48:49]")
        a(f"""v_lshrrev_b32 v1, 6, v0
        v_and_b32 v0, 63, v0
        v_readfirstlane_b32 s3, v1
        s_and_b32 s9, s2, 7
        s_lshr_b32 s10, s2, 3
        s_lshl_b32 s4, s9, 2
        s_lshr_b32 s11, s10, 3
        s_add_u32 s4, s4, s11
        s_bfe_u32 s5, s10, 0x10002
        s_and_b32 s6, s10, 3
        s_lshl_b32 s8, s5, 5
        s_add_u32 s8, s8, s4
        s_lshl_b32 s7, s8, 2
        s_add_u32 s7, s7, s6
        s_mov_b32 s{sWV}, s3
        s_cmp_ge_u32 s3, 4
        s_cbranch_scc1 L_H""")
        self.gen_S()
        a("L_H:")
        self.gen_H()
        a("L_end:\ns_endpgm")

    def gen_S(self):
        self.cls = "S"
        a = self.a
        R0, D, GI = self.R0, self.D, self.GI
        RS = {2: 4, 3: 6}[D]
        R1 = 4
        DV = self.DV
        RSV = {2: 4, 3: 6}[DV]
        D0 = self.D0
        assert (64 - R0) % RS == 0
        NITK = (64 - R0) // RS
        W = 6
        vL = 0
        vOFF, vSCW, vSCR, vT0, vT1, vT2, vT3, vOW = 1, 2, 3, 4, 5, 6, 7, 8
        vA0, vA1, vTG = 9, 10, 11
        vQ = 12
        vSEL = 24
        vACC = 32
        vA = 44
        vP = 52
        RING = 64
        assert RING + R0 * 12 <= 256
        sOFF, sBEG, sEND, sIT, sCNT = 42, 43, 64, 66, 65
        a(f"""v_lshrrev_b32 v{vT0}, 3, v{vL}
        v_and_b32 v{vT1}, 7, v{vL}
        v_mul_u32_u24 v{vOFF}, 384, v{vT0}
        v_lshl_add_u32 v{vOFF}, v{vT1}, 4, v{vOFF}
        s_mul_i32 s9, s3, 3072""")
        if GI == 4:
            stepb = 4 * STEP
            a(f"""s_mul_i32 s11, s6, {STEP}
            s_add_u32 s9, s9, s11
            s_mul_i32 s{sBEG}, s8, {4*CH}
            s_add_u32 s{sEND}, s{sBEG}, {4*CH}
            v_add_u32 v{vOFF}, s9, v{vOFF}
            s_mul_i32 s9, s8, {self.rot}""")
        else:
            stepb = STEP
            a(f"""v_add_u32 v{vOFF}, s9, v{vOFF}
            s_mul_i32 s{sBEG}, s7, {CH}
            s_add_u32 s{sEND}, s{sBEG}, {CH}
            {self.rotcode()}""")
        a(f"""s_and_b32 s9, s9, 63
        s_mul_i32 s9, s9, {stepb}
        s_add_u32 s{sOFF}, s{sBEG}, s9
        s_waitcnt lgkmcnt(0)""")
        self.srd(52, 18, TB)
        self.fs = []
        def fstamp():
            if self.stamps == 3 and len(self.fs) < 9:
                r = 80 + 2 * len(self.fs)
                a(f"s_memrealtime s[{r}:{r+1}]")
                self.fs.append(r)
        fstamp()

        def load(slot, sw=None):
            for j in range(3):
                r = RING + (slot * 3 + j) * 4
                a(f"buffer_load_dwordx4 v[{r}:{r+3}], v{vOFF}, s[52:55], s{sOFF} offen offset:{128*j} {self.kvf}")
            a(f"""s_add_u32 s{sOFF}, s{sOFF}, {stepb}
            s_cmp_ge_u32 s{sOFF}, s{sEND}
            s_cselect_b32 s{sOFF}, s{sBEG}, s{sOFF}""")
            if sw == "kv":
                a(f"""s_cmp_eq_u32 s{sIT}, {NITK-1}
                s_cselect_b32 s52, s20, s52
                s_cselect_b32 s53, s21, s53""")
            elif sw is not None:
                a(f"""s_cmp_eq_u32 s{sIT}, {sw}
                s_cselect_b32 s54, 0, s54""")
        thr = 3 * (D - 1) + self.early
        for s in range(D0):
            load(s)
        self.epoch_load()
        self.srd(56, 40, WS_SRD)
        self.selectors(vL, vSEL, vT2, vT3, vOW)
        a(f"""s_mul_i32 s9, s3, 1152
        s_add_u32 s9, s9, {L_SC}
        v_mul_u32_u24 v{vSCW}, 144, v{vT0}
        v_add_u32 v{vSCW}, s9, v{vSCW}
        v_mov_b32 v{vSCR}, v{vSCW}""")
        a(f"""v_lshrrev_b32 v{vT2}, 5, v{vL}
        s_lshl_b32 s9, s3, 1
        v_add_u32 v{vT2}, s9, v{vT2}
        v_mul_u32_u24 v{vOW}, {OS}, v{vT2}
        v_lshl_add_u32 v{vOW}, v{vT1}, 4, v{vOW}
        v_bfe_u32 v{vT2}, v{vL}, 4, 1
        v_lshl_add_u32 v{vOW}, v{vT2}, 3, v{vOW}
        v_add_u32 v{vOW}, {L_O}, v{vOW}
        v_lshlrev_b32 v{vT2}, 4, v{vT1}""")
        for s in range(D0, R0):
            a(f"s_waitcnt vmcnt({3*(D0-1)})")
            if s in (2, 3, 4, 6, 8, 10, 12, 14):
                fstamp()
            load(s)
        a("s_waitcnt lgkmcnt(0)")
        self.epoch_use(vTG)
        self.stamp(15, vA, src=48)
        self.stamp(0, vA)
        a("s_barrier")
        self.stamp(1, vA)
        for j in range(3):
            a(f"ds_read_b128 v[{vQ+4*j}:{vQ+4*j+3}], v{vT2} offset:{L_QB + 128*j}")
        a(f"s_mov_b32 s{sIT}, 0\ns_mov_b32 s10, {SCALE_F32}\ns_waitcnt lgkmcnt(0)")

        sUSED, sTGT = 44, 45
        def throttle():
            Lb, Lc = self.lab("bo"), self.lab("bc")
            a(f"""s_waitcnt vmcnt(6)
            s_cmp_gt_i32 s{sUSED}, 0
            s_cbranch_scc1 {Lb}
            s_waitcnt vmcnt(3)
            s_cmp_eq_u32 s{sUSED}, 0
            s_cbranch_scc1 {Lc}
            s_waitcnt vmcnt({self.brk})
            s_add_i32 s{sUSED}, s{sUSED}, 2
            {Lb}:
            s_sub_i32 s{sUSED}, s{sUSED}, 1
            {Lc}:""")
        def kpair(s, off):
            ra, rb = RING + s * 12, RING + (s + 1) * 12
            for i in range(12):
                c0 = "0" if i == 0 else f"v{vA0}"
                c1 = "0" if i == 0 else f"v{vA1}"
                a(f"v_dot2_f32_bf16 v{vA0}, v{ra+i}, v{vQ+i}, {c0}")
                a(f"v_dot2_f32_bf16 v{vA1}, v{rb+i}, v{vQ+i}, {c1}")
            a("s_nop 2")
            self.dpp("v_add_f32", vA0, vA0, vA0, "quad_perm:[1,0,3,2]")
            self.dpp("v_add_f32", vA1, vA1, vA1, "quad_perm:[1,0,3,2]")
            a("s_nop 0")
            self.dpp("v_add_f32", vA0, vA0, vA0, "quad_perm:[2,3,0,1]")
            self.dpp("v_add_f32", vA1, vA1, vA1, "quad_perm:[2,3,0,1]")
            a("s_nop 0")
            self.dpp("v_add_f32", vA0, vA0, vA0, "row_half_mirror")
            self.dpp("v_add_f32", vA1, vA1, vA1, "row_half_mirror")
            a(f"""v_cvt_pk_bf16_f32 v{vT2}, v{vA0}, v{vA1}
            v_lshlrev_b32 v{vA0}, 16, v{vT2}
            v_and_b32 v{vA1}, 0xffff0000, v{vT2}
            v_mul_f32 v{vA0}, s10, v{vA0}
            v_mul_f32 v{vA1}, s10, v{vA1}
            v_cvt_pk_bf16_f32 v{vT2}, v{vA0}, v{vA1}
            ds_write_b32 v{vSCW}, v{vT2} offset:{off}""")
        npairs = R0 // 2
        issue_after = {0: 0, 3: 1} if D == 2 else {0: 0, 2: 1, 4: 2}
        issued = 0
        for p in range(npairs):
            a(f"s_waitcnt vmcnt({3 * ((R0 - 2*p - 2) + issued)})")
            kpair(2 * p, p * 4)
            if p in issue_after:
                a(f"s_waitcnt vmcnt({thr})")
                load(issue_after[p])
                issued += 1
        a(f"v_add_u32 v{vSCW}, {2*R0}, v{vSCW}")
        if self.kboost >= 0:
            assert D == 3
            a(f"s_mov_b32 s{sUSED}, {self.kboost}")
        a("L_kloop:")
        for s in range(RS):
            if self.kboost >= 0:
                throttle()
            else:
                a(f"s_waitcnt vmcnt({thr})")
            load((s + D) % RS, "kv" if s == RS - D - 1 else None)
            if s & 1:
                if self.early:
                    a(f"s_waitcnt vmcnt({3*D})")
                if not self.nok:
                    kpair(s - 1, (s // 2) * 4)
        a(f"""v_add_u32 v{vSCW}, {2*RS}, v{vSCW}
        s_add_u32 s{sIT}, s{sIT}, 1
        s_cmp_lt_u32 s{sIT}, {NITK}
        s_cbranch_scc1 L_kloop""")
        for s in range(D, R1):
            load(s)
        self.stamp(2, vA)
        F = 32
        a(f"""v_lshl_add_u32 v{vT2}, v{vT1}, 4, v{vSCR}
        s_memrealtime s[46:47]
        s_waitcnt lgkmcnt(0)
        ds_read_b128 v[40:43], v{vT2}
        s_waitcnt lgkmcnt(0)""")
        for i in range(4):
            a(f"v_lshlrev_b32 v{F+2*i}, 16, v{40+i}\nv_and_b32 v{F+2*i+1}, 0xffff0000, v{40+i}")
        a(f"""v_max3_f32 v{vA0}, v{F}, v{F+1}, v{F+2}
        v_max3_f32 v{vA0}, v{vA0}, v{F+3}, v{F+4}
        v_max3_f32 v{vA0}, v{vA0}, v{F+5}, v{F+6}
        v_max_f32 v{vA0}, v{vA0}, v{F+7}""")
        self.row_reduce("v_max_f32", vA0)
        self.swap_reduce("v_max_f32", vA0, vT3, 16)
        self.swap_reduce("v_max_f32", vA0, vT3, 32)
        for i in range(8):
            a(f"v_sub_f32 v{F+i}, v{F+i}, v{vA0}\nv_mul_f32 v{F+i}, {LOG2E}, v{F+i}")
        for i in range(8):
            a(f"v_exp_f32 v{F+i}, v{F+i}")
        a("s_nop 0")
        a(f"v_add_f32 v{vA1}, v{F}, v{F+1}")
        for i in range(2, 8):
            a(f"v_add_f32 v{vA1}, v{vA1}, v{F+i}")
        for i in range(4):
            a(f"v_cvt_pk_bf16_f32 v{40+i}, v{F+2*i}, v{F+2*i+1}")
        a(f"ds_write_b128 v{vT2}, v[40:43]")
        self.row_reduce("v_add_f32", vA1)
        self.swap_reduce("v_add_f32", vA1, vT3, 16)
        self.swap_reduce("v_add_f32", vA1, vT3, 32)
        a("s_waitcnt lgkmcnt(0)")
        def pread(n):
            if n == 2: a(f"ds_read_b64 v[{vP}:{vP+1}], v{vSCR}")
            elif n == 3: a(f"ds_read_b32 v{vP}, v{vSCR}\nds_read_b32 v{vP+1}, v{vSCR} offset:4\nds_read_b32 v{vP+2}, v{vSCR} offset:8")
            else: raise ValueError(n)
            a(f"v_add_u32 v{vSCR}, {4*n}, v{vSCR}")
        pread(R1 // 2)
        self.tag(44, vA0, vTG)
        self.tag(45, vA1, vTG)
        if self.diagx:
            a(f"s_getreg_b32 s9, hwreg(HW_REG_XCC_ID, 0, 4)\ns_lshl_b32 s9, s9, 8\nv_or_b32 v44, s9, v44")
        a(f"""v_mov_b32 v46, s{sT}
        v_mov_b32 v47, s46
        s_lshl_b32 s9, s3, 4
        v_mov_b32 v{vA0}, s9
        s_mov_b64 exec, 1
        ds_write_b128 v{vA0}, v[44:47] offset:{L_STL}
        s_mov_b64 exec, -1""")
        for i in range(12):
            a(f"v_mov_b32 v{vACC+i}, 0")
        a(f"s_mov_b32 s{sIT}, 0\ns_waitcnt lgkmcnt(0)")
        self.stamp(3, 60)

        def vmf(g, slot):
            A = vA + 4 * ((g + 1) & 1)
            for j in range(3):
                self.mfma(vACC + 4 * j, A, RING + (slot * 3 + j) * 4, vACC + 4 * j)
        def vA_(g):
            self.buildA(vA + 4 * ((g + 1) & 1), vP + g // 2, g & 1, vSEL)
        NE, DE = self.NE, self.DE
        RSV = 6
        sUSED, sTGT = 44, 45
        vZ, vB = 62, 63
        assert (64 - R1 - NE) % RSV == 0 and NE == 12
        NITV = (64 - R1 - NE) // RSV
        def prog(val):
            L = self.lab("pg")
            a(f"""s_cmp_lg_u32 s3, 0
            s_cbranch_scc1 {L}
            v_mov_b32 v{vB}, {val}
            v_lshlrev_b32 v60, 2, v{vB}
            v_mov_b32 v61, s46
            ds_write_b32 v60, v61 offset:{L_TM}
            ds_write_b32 v{vZ}, v{vB} offset:{L_PROG}
            {L}:""")
        a(f"v_mov_b32 v{vZ}, 0\ns_mov_b32 s{sUSED}, 0\ns_mov_b32 s{sTGT}, 0")
        prog(1)
        issued = 0
        for g in range(R1):
            vA_(g)
            if g == R1 - 1:
                pread(3)
                a(f"ds_read_b32 v{vB}, v{vZ} offset:{L_BOOST}")
            if g >= 1:
                a(f"s_waitcnt vmcnt(3)")
                load((R1 + issued) % RSV)
                issued += 1
            else:
                a(f"s_waitcnt vmcnt({3*(R1 - g - 1)})\ns_nop 0")
            vmf(g, g)
        a(f"""L_vloop:
        s_memrealtime s[46:47]
        s_waitcnt lgkmcnt(0)
        v_readfirstlane_b32 s9, v{vB}
        s_sext_i32_i16 s11, s9
        s_cmp_lg_u32 s9, s{sTGT}
        s_cselect_b32 s{sUSED}, s11, s{sUSED}
        s_mov_b32 s{sTGT}, s9
        s_add_u32 s9, s{sIT}, 2""")
        prog("s9")
        for s in range(RSV):
            slot = (R1 + s) % RSV
            vA_(s)
            if s == RSV - 1:
                pread(3)
                a(f"ds_read_b32 v{vB}, v{vZ} offset:{L_BOOST}")
            throttle()
            load((slot + 3) % RSV)
            vmf(s, slot)
        a(f"""s_add_u32 s{sIT}, s{sIT}, 1
        s_cmp_lt_u32 s{sIT}, {NITV}
        s_cbranch_scc1 L_vloop""")
        slot_of = lambda e: (R1 + e) % RSV if e < 3 else e + 3
        nxt = 3
        a(f"""s_waitcnt lgkmcnt(0)
        v_readfirstlane_b32 s9, v{vB}
        s_sext_i32_i16 s11, s9
        s_cmp_lg_u32 s9, s{sTGT}
        s_cselect_b32 s{sUSED}, s11, s{sUSED}""")
        for e in range(NE):
            if e == 6:
                a("s_waitcnt lgkmcnt(0)")
            vA_(e % 6)
            if e == 5:
                pread(3)
            if e < self.NB:
                throttle()
                load(slot_of(nxt)); nxt += 1
            else:
                a(f"s_waitcnt vmcnt({3*(nxt - e - 1)})")
                n0 = nxt
                while nxt < NE and nxt - e - 1 < DE:
                    load(slot_of(nxt)); nxt += 1
                if nxt == n0:
                    a("s_nop 0")
            vmf(e % 6, slot_of(e))
        a("s_nop 7")
        a("s_nop 3")
        for j in range(3):
            a(f"""v_cvt_pk_bf16_f32 v{vA+2*j}, v{vACC+4*j}, v{vACC+4*j+1}
            v_cvt_pk_bf16_f32 v{vA+2*j+1}, v{vACC+4*j+2}, v{vACC+4*j+3}""")
        a("s_mov_b32 exec_lo, 0x00ff00ff\ns_mov_b32 exec_hi, 0xff00ff00")
        for j in range(3):
            a(f"ds_write_b64 v{vOW}, v[{vA+2*j}:{vA+2*j+1}] offset:{128*j}")
        a("s_mov_b64 exec, -1")
        a(f"""v_and_b32 v{vT0}, 7, v{vL}
        v_mul_u32_u24 v{vT0}, {OS}, v{vT0}
        v_lshrrev_b32 v{vT1}, 4, v{vL}
        v_lshl_add_u32 v{vT0}, v{vT1}, 4, v{vT0}
        v_and_b32 v{vT2}, 1, v{vT1}
        v_and_b32 v{vT3}, 15, v{vL}
        v_lshl_add_u32 v{vT3}, v{vT3}, 1, v{vT2}
        v_lshlrev_b32 v{vT3}, 2, v{vT3}
        v_lshlrev_b32 v{vT2}, 3, v{vT2}
        v_lshlrev_b32 v{vT1}, 8, v{vT1}
        v_bfe_u32 v{vA0}, v{vL}, 2, 2
        v_lshl_add_u32 v{vT1}, v{vA0}, 4, v{vT1}
        v_and_b32 v{vA0}, 3, v{vL}
        v_mul_u32_u24 v{vA0}, {2*WXS}, v{vA0}
        s_lshl_b32 s9, s3, 6
        s_add_u32 s9, s9, {L_WX}
        v_add3_u32 v{vT1}, v{vT1}, v{vA0}, s9
        s_mul_i32 s9, s7, 2560
        s_lshl_b32 s11, s3, 7
        s_add_u32 s9, s9, s11
        s_add_u32 s9, s9, {P_OFF + 2048}
        s_waitcnt lgkmcnt(0)""")
        self.stamp(4, 12)
        a("s_barrier")
        AA = RING + 12 * W
        BB = AA + 24
        assert BB + 48 <= 256
        D0, D1, SCL = 32, 36, 40
        for k in range(6):
            a(f"ds_read_b128 v[{AA+4*k}:{AA+4*k+3}], v{vT0} offset:{L_O + 64*k}")
            a(f"ds_read_b128 v[{BB+8*k}:{BB+8*k+3}], v{vT1} offset:{8*WXS*k}")
            a(f"ds_read_b128 v[{BB+8*k+4}:{BB+8*k+7}], v{vT1} offset:{8*WXS*k+WXS}")
            if k == 3:
                a("s_waitcnt lgkmcnt(6)")
        a(f"ds_read_b64 v[{SCL}:{SCL+1}], v{vT2} offset:{L_SCALE}")
        for k in range(6):
            a(f"s_waitcnt lgkmcnt({min(15, 3*(5-k)+1)})")
            self.mfma(D0, AA + 4 * k, BB + 8 * k, None if k == 0 else D0)
            self.mfma(D1, AA + 4 * k, BB + 8 * k + 4, None if k == 0 else D1)
        a("s_waitcnt lgkmcnt(0)\ns_nop 7")
        for D in (D0, D1):
            a(f"""v_add_f32 v{D}, v{D}, v{D+1}
            v_add_f32 v{D+2}, v{D+2}, v{D+3}
            v_mul_f32 v{D}, v{D}, v{SCL}
            v_fmac_f32 v{D}, v{D+2}, v{SCL+1}""")
        a(f"""s_nop 1
        v_permlane16_swap_b32 v{D0}, v{D1}
        s_nop 1
        v_add_f32 v{D0}, v{D0}, v{D1}""")
        self.tag(D0, D0, vTG)
        a(f"""s_mov_b32 exec_hi, 0
        buffer_store_dword v{D0}, v{vT3}, s[56:59], s9 offen {self.pst}
        s_mov_b64 exec, -1""")
        self.stamp(5, 12)
        for i, r in enumerate(self.fs):
            self.stamp(6 + i, 12, src=r)
        a("s_endpgm")

    def gen_H(self):
        self.cls = "H"
        a = self.a
        vL = 0
        vT0, vT1, vT2, vT3, vT4, vT5, vW = 1, 2, 3, 4, 5, 6, 7
        vX = 8
        vSEL = 18
        vTG = 26
        vCK = 27
        vF = 28
        vA, vACC = 28, 36
        vE = 52
        TI = 64
        if self.hprio:
            a(f"s_setprio {self.hprio}")
        a("s_sub_u32 s3, s3, 4")
        a(f"""s_and_b32 s14, s10, 7
        s_lshl_b32 s52, s14, 5
        s_add_u32 s52, s52, s4
        s_cmp_ge_u32 s14, 6
        s_cselect_b32 s52, 255, s52
        s_cmp_eq_u32 s3, 3
        s_cbranch_scc1 L_h3
        v_lshrrev_b32 v{vT0}, 5, v{vL}
        v_mul_u32_u24 v{vT0}, 1280, v{vT0}
        v_and_b32 v{vT1}, 31, v{vL}
        v_lshl_add_u32 v{vT0}, v{vT1}, 3, v{vT0}
        v_lshrrev_b32 v{vT1}, 3, v{vL}
        v_and_b32 v{vT2}, 7, v{vL}
        s_lshl_b32 s53, s4, 1
        s_add_u32 s53, s53, s14
        s_sub_u32 s53, s53, 6
        s_lshl_b32 s53, s53, 1
        s_add_u32 s53, s53, s3
        s_add_u32 s9, s52, 128
        s_cmp_eq_u32 s3, 2
        s_cselect_b32 s53, s9, s53
        s_cselect_b32 s9, 7, s14
        s_waitcnt lgkmcnt(0)""")
        self.srd(60, 16, 2560)
        for t in range(5):
            a(f"buffer_load_dwordx2 v[{vX+2*t}:{vX+2*t+1}], v{vT0}, s[60:63], 0 offen offset:{256*t}")
        a(f"""s_mov_b32 s47, 0x20000
        s_cmp_ge_u32 s9, 6
        s_cbranch_scc1 L_jgu
        s_mov_b32 s44, s22
        s_mov_b32 s45, s23
        s_mov_b32 s46, {640*12288}
        s_mov_b32 s54, 12288
        s_and_b32 s55, s14, 1
        s_lshl_b32 s55, s55, 1
        s_add_u32 s55, s55, s3
        s_lshr_b32 s11, s14, 1
        s_mul_i32 s64, s4, 384
        s_lshl_b32 s9, s11, 7
        s_add_u32 s64, s64, s9
        s_lshl_b32 s66, s4, 2
        s_add_u32 s66, s66, s55
        s_mul_i32 s66, s66, 1536
        s_lshl_b32 s9, s11, 8
        s_add_u32 s66, s66, s9
        s_add_u32 s66, s66, {QX_OFF}
        s_mov_b32 s13, 768
        s_branch L_jd
        L_jgu:
        s_bitcmp1_b32 s53, 2
        s_cselect_b32 s44, s32, s30
        s_cselect_b32 s45, s33, s31
        s_mov_b32 s46, {640*3072}
        s_mov_b32 s54, 3072
        s_and_b32 s55, s53, 3
        s_lshr_b32 s64, s53, 3
        s_lshl_b32 s64, s64, 7
        s_lshl_b32 s66, s53, 9
        s_add_u32 s66, s66, {GU_OFF}
        s_mov_b32 s13, 256
        L_jd:
        s_mul_i32 s9, s54, 20
        v_mul_lo_u32 v{vW}, v{vT1}, s9
        v_lshl_add_u32 v{vW}, v{vT2}, 4, v{vW}
        s_mul_i32 s9, s55, 160
        s_mul_i32 s9, s9, s54
        s_add_u32 s9, s9, s64
        v_add_u32 v{vW}, s9, v{vW}""")
        def job_loads():
            a("s_mov_b32 s9, 0")
            for G in range(20):
                a(f"buffer_load_dwordx4 v[{TI+4*G}:{TI+4*G+3}], v{vW}, s[44:47], s9 offen {self.wf}")
                if G < 19:
                    a("s_add_u32 s9, s9, s54")
        a("s_cmp_eq_u32 s3, 2\ns_cbranch_scc1 L_nj1")
        job_loads()
        a("L_nj1:")
        self.epoch_load()
        self.srd(56, 40, WS_SRD)
        self.selectors(vL, vSEL, vT3, vT4, vT5)
        a("s_cmp_lg_u32 s3, 2\ns_cbranch_scc1 L_nx2\ns_waitcnt vmcnt(0)\nL_nx2:")
        a(f"s_mov_b32 s9, 0x3f803f80\ns_waitcnt vmcnt(20)")
        self.stamp(11, 60)
        for i in range(10):
            c = "0" if i == 0 else f"v{vT3}"
            a(f"v_dot2_f32_bf16 v{vT3}, v{vX+i}, s9, {c}")
        for i in range(2):
            a(f"v_lshlrev_b32 v{vF+2*i}, 16, v{vX+i}\nv_and_b32 v{vF+2*i+1}, 0xffff0000, v{vX+i}")
        k = 2
        for st in (1, 2, 4, 8):
            self.dpp("v_add_f32", vT3, vT3, vT3, f"row_ror:{st}")
            a(f"v_lshlrev_b32 v{vF+2*k}, 16, v{vX+k}\nv_and_b32 v{vF+2*k+1}, 0xffff0000, v{vX+k}")
            k += 1
        a(f"v_mov_b32 v{vT4}, v{vT3}")
        a(f"v_lshlrev_b32 v{vF+2*k}, 16, v{vX+k}\nv_and_b32 v{vF+2*k+1}, 0xffff0000, v{vX+k}")
        k += 1
        a(f"v_permlane16_swap_b32 v{vT3}, v{vT4}")
        while k < 10:
            a(f"v_lshlrev_b32 v{vF+2*k}, 16, v{vX+k}\nv_and_b32 v{vF+2*k+1}, 0xffff0000, v{vX+k}")
            k += 1
        a(f"v_add_f32 v{vT3}, v{vT3}, v{vT4}")
        def div640(v, t):
            a(f"""v_mul_f32 v{t}, {f32(1/640)}, v{v}
            v_fmac_f32 v{v}, {f32(-640.0)}, v{t}
            v_fmac_f32 v{t}, {f32(1/640)}, v{v}""")
        M2 = vE
        D2 = vE + 2
        Q2 = vE + 4
        div640(vT3, M2)
        a(f"v_mov_b32 v{M2+1}, v{M2}")
        for i in range(10):
            a(f"v_pk_add_f32 v[{D2}:{D2+1}], v[{vF+2*i}:{vF+2*i+1}], v[{M2}:{M2+1}] neg_lo:[0,1] neg_hi:[0,1]")
            if i == 0:
                a(f"v_pk_mul_f32 v[{Q2}:{Q2+1}], v[{D2}:{D2+1}], v[{D2}:{D2+1}]")
            else:
                a(f"v_pk_fma_f32 v[{Q2}:{Q2+1}], v[{D2}:{D2+1}], v[{D2}:{D2+1}], v[{Q2}:{Q2+1}]")
        a(f"v_add_f32 v{vT4}, v{Q2}, v{Q2+1}")
        self.rbf(M2)
        a(f"v_mov_b32 v{M2+1}, v{M2}")
        def xc(i):
            a(f"""v_pk_add_f32 v[{vF+2*i}:{vF+2*i+1}], v[{vF+2*i}:{vF+2*i+1}], v[{M2}:{M2+1}] neg_lo:[0,1] neg_hi:[0,1]
            v_cvt_pk_bf16_f32 v{vF+2*i+1}, v{vF+2*i}, v{vF+2*i+1}
            v_lshlrev_b32 v{vF+2*i}, 16, v{vF+2*i+1}
            v_and_b32 v{vF+2*i+1}, 0xffff0000, v{vF+2*i+1}""")
        k = 0
        for st in (1, 2, 4, 8):
            self.dpp("v_add_f32", vT4, vT4, vT4, f"row_ror:{st}")
            xc(k); k += 1
        a(f"v_mov_b32 v{vT5}, v{vT4}")
        xc(k); k += 1
        a(f"v_permlane16_swap_b32 v{vT4}, v{vT5}")
        xc(k); k += 1
        a(f"v_add_f32 v{vT4}, v{vT4}, v{vT5}")
        div640(vT4, vT5)
        self.rbf(vT5)
        a(f"v_add_f32 v{vT5}, {f32(1e-5)}, v{vT5}")
        self.rbf(vT5)
        a(f"v_sqrt_f32 v{vT5}, v{vT5}")
        xc(k); k += 1
        self.rbf(vT5)
        a(f"v_rcp_f32 v{D2}, v{vT5}")
        xc(k); k += 1
        a(f"v_mov_b32 v{D2+1}, v{D2}\nv_mov_b32 v{Q2}, v{vT5}\nv_mov_b32 v{Q2+1}, v{vT5}")
        while k < 10:
            xc(k); k += 1
        R2 = vE + 6
        for i in range(10):
            f = vF + 2 * i
            a(f"""v_pk_mul_f32 v[{R2}:{R2+1}], v[{f}:{f+1}], v[{D2}:{D2+1}]
            v_pk_fma_f32 v[{f}:{f+1}], v[{R2}:{R2+1}], v[{Q2}:{Q2+1}], v[{f}:{f+1}] neg_lo:[1,0,0] neg_hi:[1,0,0]
            v_pk_fma_f32 v[{R2}:{R2+1}], v[{f}:{f+1}], v[{D2}:{D2+1}], v[{R2}:{R2+1}]
            v_cvt_pk_bf16_f32 v{vX+i}, v{R2}, v{R2+1}""")
            if i & 1:
                t = i // 2
                a(f"ds_write_b64 v{vT0}, v[{vX+2*t}:{vX+2*t+1}] offset:{L_XN + 256*t}")
        a("s_waitcnt lgkmcnt(0)")
        self.epoch_use(vTG)
        self.stamp(15, 60, src=48)
        self.stamp(1, 60)
        a(f"""s_cmp_lg_u32 s3, 2
        s_cbranch_scc1 L_job
        s_cmp_ge_u32 s52, {0 if self.nomoe else 64}
        s_cbranch_scc1 L_bar1""")
        job_loads()
        a("L_job:")
        C1 = 44
        a(f"""v_mul_u32_u24 v{vT3}, 40, v{vT1}
        s_mul_i32 s9, s55, 320
        v_add_u32 v{vT3}, s9, v{vT3}""")
        for bb, base in ((0, vX), (1, C1)):
            for t in range(5):
                a(f"ds_read_b64 v[{base+2*t}:{base+2*t+1}], v{vT3} offset:{L_XN + 1280*bb + 8*t}")
        a(f"""v_lshrrev_b32 v{vT4}, 5, v{vL}
        v_mul_lo_u32 v{vT4}, v{vT4}, s13
        v_lshl_add_u32 v{vT4}, v{vT2}, 5, v{vT4}
        v_bfe_u32 v{vT5}, v{vL}, 4, 1
        v_lshl_add_u32 v{vT4}, v{vT5}, 4, v{vT4}
        s_waitcnt lgkmcnt(0)""")
        self.job_compute(20, vX, C1, TI, vA, vACC, vSEL, vTG, vT4, "s66", True)
        a(f"s_setprio {self.hprio1}\ns_cmp_eq_u32 s3, 2\ns_cbranch_scc1 L_bar1")
        self.srd(44, 24, 0 if self.nowo else 6144 * 1280)
        a(f"""v_lshrrev_b32 v{vT3}, 4, v{vL}
        v_mul_u32_u24 v{vT3}, {8*1280}, v{vT3}
        v_and_b32 v{vT4}, 15, v{vL}
        v_lshl_add_u32 v{vT3}, v{vT4}, 4, v{vT3}
        s_mul_i32 s9, s4, {192*1280}
        s_mul_i32 s10, s3, {96*1280}
        s_add_u32 s9, s9, s10
        s_add_u32 s9, s9, 1024
        v_add_u32 v{vT3}, s9, v{vT3}
        s_mul_i32 s9, s3, {24*WXS}
        s_add_u32 s9, s9, {L_WX}
        v_lshlrev_b32 v{vT4}, 4, v{vL}
        v_add_u32 v{vT4}, s9, v{vT4}
        s_mov_b32 s14, 0x05040100
        s_mov_b32 s15, 0x07060302""")
        for kk in range(3):
            if kk == self.pre:
                a("s_barrier")
            sr, d = TI + 64 * kk, TI + 64 * kk + 32
            for e in range(8):
                if e % 4 == 0:
                    a(f"s_mov_b32 s9, {(32*kk + e)*1280}")
                a(f"buffer_load_dwordx4 v[{sr+4*e}:{sr+4*e+3}], v{vT3}, s[44:47], s9 offen offset:{(e%4)*1280} {self.wof}")
            for t in range(4):
                a(f"s_waitcnt vmcnt({6-2*t})")
                for dd in range(4):
                    a(f"v_perm_b32 v{d+(2*dd)*4+t}, v{sr+(2*t+1)*4+dd}, v{sr+(2*t)*4+dd}, s14")
                    a(f"v_perm_b32 v{d+(2*dd+1)*4+t}, v{sr+(2*t+1)*4+dd}, v{sr+(2*t)*4+dd}, s15")
            for c in range(8):
                a(f"ds_write_b128 v{vT4}, v[{d+4*c}:{d+4*c+3}] offset:{(8*kk + c)*WXS}")
        a("s_waitcnt lgkmcnt(0)\ns_branch L_h1")
        a("L_h3:\nv_mov_b32 v10, 0\nv_mov_b32 v11, 0\ns_waitcnt lgkmcnt(0)")
        self.epoch_load()
        self.srd(56, 40, WS_SRD)
        a(f"""v_lshlrev_b32 v{vT3}, 4, v{vL}
        v_lshlrev_b32 v{vT4}, 3, v{vL}
        s_mul_i32 s9, s4, {4*1536}
        s_mul_i32 s11, s5, 768
        s_add_u32 s9, s9, s11
        s_add_u32 s70, s9, {QX_OFF}
        s_add_u32 s71, s70, 3072
        s_waitcnt lgkmcnt(0)""")
        self.epoch_use(vTG)
        a(f"""v_mov_b32 v{vT5}, 0
        s_not_b32 s9, s{sT}
        v_mov_b32 v{vT0}, s9
        v_lshlrev_b32 v{vT1}, 2, v{vL}
        ds_write_b32 v{vT5}, v{vT5} offset:{L_PROG}
        ds_write_b32 v{vT5}, v{vT5} offset:{L_BOOST}
        s_mov_b64 exec, 0xffff
        ds_write_b32 v{vT1}, v{vT0} offset:{L_STL}
        s_mov_b64 exec, -1""")
        q = self.qsleep
        while q > 0:
            a(f"s_sleep {min(q, 127)}")
            q -= 127
        self.mpoll([(TI + 4 * k, f"buffer_load_dwordx4 v[{TI+4*k}:{TI+4*k+3}], v{vT3}, s[56:59], s{70+k//2} offen offset:{1536*(k&1)} sc1") for k in range(4)],
                   vTG, vCK, self.qsleep2, mask=("-1", "0xffff"))
        self.sum_quads(TI, 4)
        a(f"""s_mov_b32 exec_hi, 0xffff
        v_cvt_pk_bf16_f32 v{TI}, v{TI}, v{TI+1}
        v_cvt_pk_bf16_f32 v{TI+1}, v{TI+2}, v{TI+3}
        ds_write_b64 v{vT4}, v[{TI}:{TI+1}] offset:{L_QB}
        s_mov_b64 exec, -1
        s_waitcnt lgkmcnt(0)""")
        self.stamp(2, 60)
        a(f"""L_bar1:
        s_setprio {self.hprio1}
        s_barrier
        L_h1:""")
        a(f"v_and_b32 v{vT1}, 15, v{vL}\nv_lshrrev_b32 v{vT2}, 4, v{vL}")
        self.srd(44, 24, 0 if self.nowo else 6144 * 1280)
        a(f"""v_mul_u32_u24 v{vW}, {8*1280}, v{vT2}
        s_mul_i32 s9, s4, {192*1280}
        v_add_u32 v{vW}, s9, v{vW}
        v_lshl_add_u32 v{vW}, v{vT1}, 4, v{vW}
        s_lshl_b32 s9, s3, 8
        v_add_u32 v{vW}, s9, v{vW}
        s_mov_b32 s14, 0x05040100
        s_mov_b32 s15, 0x07060302""")
        self.stamp(3, 60)
        def REG(k): return 32 + 32 * k
        for K in (5, 4, 3, 2, 1, 0):
            if K == 2:
                a(f"""s_cmp_lg_u32 s3, 2
                s_cbranch_scc1 L_nodn
                s_sub_u32 s52, s52, 64
                s_cmp_ge_u32 s52, {0 if self.nomoe else 120}
                s_cbranch_scc1 L_nodn""")
                self.gen_dn(vL, vT3, vT4, vT5, vSEL, vTG, vCK, TI)
                self.stamp(9, 60)
                a("L_nodn:")
            for e in range(8):
                if e % 4 == 0:
                    a(f"s_mov_b32 s9, {(32*K + e)*1280}")
                r = REG(0) + 4 * e
                a(f"buffer_load_dwordx4 v[{r}:{r+3}], v{vW}, s[44:47], s9 offen offset:{(e%4)*1280} {self.wof}")
                if self.wobatch == 4 and e == 3:
                    a("s_waitcnt vmcnt(0)")
                    if self.wosleep:
                        a(f"s_sleep {self.wosleep}")
                if self.wobatch == 2 and e in (1, 3, 5):
                    a("s_waitcnt vmcnt(0)")
            s, d = REG(0), REG(K + 1)
            for t in range(4):
                a(f"s_waitcnt vmcnt({6-2*t})")
                for dd in range(4):
                    a(f"v_perm_b32 v{d+(2*dd)*4+t}, v{s+(2*t+1)*4+dd}, v{s+(2*t)*4+dd}, s14")
                    a(f"v_perm_b32 v{d+(2*dd+1)*4+t}, v{s+(2*t+1)*4+dd}, v{s+(2*t)*4+dd}, s15")
        vG, vXC, vOUTA, vPA, vSC = 8, 9, 10, 11, 12
        vAR, vST = 14, 15
        Wk = 32
        self.stamp(4, 60)
        a(f"""s_cmp_lg_u32 s3, 0
        s_cbranch_scc1 L_noep
        s_cmp_lg_u32 s2, 0
        s_cbranch_scc1 L_noep""")
        Lc, Lcd = self.lab("c0"), self.lab("c0d")
        a(f"""s_mov_b32 s12, {self.poll_max}
        v_lshlrev_b32 v{Wk+8}, 6, v{vL}
        v_mov_b32 v{Wk+9}, s{sT}
        s_mov_b32 s9, {ST_OFF + 8}
        s_mov_b32 s10, {ST_OFF + 8 + 4096}
        s_mov_b32 s11, {ST_OFF + 8 + 8192}
        s_mov_b32 s13, {ST_OFF + 8 + 12288}
        {Lc}:
        s_sleep 127
        buffer_load_dword v{Wk}, v{Wk+8}, s[56:59], s9 offen sc1
        buffer_load_dword v{Wk+1}, v{Wk+8}, s[56:59], s10 offen sc1
        buffer_load_dword v{Wk+2}, v{Wk+8}, s[56:59], s11 offen sc1
        buffer_load_dword v{Wk+3}, v{Wk+8}, s[56:59], s13 offen sc1
        s_waitcnt vmcnt(0)""")
        self.chk4(vCK, Wk, Wk + 9, first=True, n=4)
        a(f"""v_cmp_ne_u32 vcc, 0, v{vCK}
        s_cbranch_vccz {Lcd}
        s_sub_u32 s12, s12, 1
        s_cmp_gt_u32 s12, 0
        s_cbranch_scc1 {Lc}
        {Lcd}:
        v_mov_b32 v{Wk}, 0
        s_mov_b32 s9, {EP_OFF}
        s_mov_b64 exec, 1
        buffer_store_dword v{Wk+9}, v{Wk}, s[56:59], s9 offen sc1
        s_mov_b64 exec, -1
        L_noep:""")
        a("s_cmp_lg_u32 s3, 3\ns_cbranch_scc1 L_nostat")
        if self.nopoll:
            a("s_branch L_nostat")
        vZ0 = Wk + 16
        L, Ld = self.lab("cw"), self.lab("cwd")
        a(f"""v_mov_b32 v{vZ0}, 0
        v_lshlrev_b32 v{Wk+4}, 4, v{vL}
        s_mov_b32 s12, {self.poll_max * 16}
        s_mov_b64 exec, 15
        {L}:
        ds_read_b128 v[{Wk}:{Wk+3}], v{Wk+4} offset:{L_STL}
        s_waitcnt lgkmcnt(0)
        v_cmp_ne_u32 vcc, s{sT}, v{Wk+2}
        s_cbranch_vccz {Ld}
        s_sleep 8
        s_sub_u32 s12, s12, 1
        s_cmp_gt_u32 s12, 0
        s_cbranch_scc1 {L}
        {Ld}:
        s_lshl_b32 s9, s7, 6
        s_add_u32 s9, s9, {ST_OFF}
        buffer_store_dwordx4 v[{Wk}:{Wk+3}], v{Wk+4}, s[56:59], s9 offen sc1
        s_mov_b64 exec, -1
        s_sleep {self.cdelay[0]}""")
        Ls, Lsd = self.lab("st"), self.lab("std")
        a(f"""v_lshlrev_b32 v{Wk+4}, 3, v{vT2}
        v_and_b32 v{Wk+5}, {self.mix}, v{vT2}
        v_lshl_add_u32 v{Wk+4}, v{Wk+5}, 2, v{Wk+4}
        v_add_u32 v{Wk+4}, s4, v{Wk+4}
        v_and_b32 v{Wk+4}, 31, v{Wk+4}
        v_lshlrev_b32 v{Wk+4}, 8, v{Wk+4}
        v_lshl_add_u32 v{Wk+4}, v{vT1}, 4, v{Wk+4}
        s_lshl_b32 s9, s5, 13
        s_add_u32 s9, s9, {ST_OFF}
        v_mov_b32 v{Wk+5}, s{sT}
        s_mov_b32 s12, {self.poll_max}""")
        if not self.ctl:
            a("s_mov_b64 exec, 0xffff")
        a(f"""{Ls}:
        buffer_load_dwordx4 v[{Wk}:{Wk+3}], v{Wk+4}, s[56:59], s9 offen sc1
        s_memrealtime s[10:11]
        s_waitcnt vmcnt(0) lgkmcnt(0)""")
        self.chk4(vCK, Wk, vTG, first=True, n=2)
        a(f"""v_and_b32 v{vCK}, 0xff, v{vCK}
        v_bitop3_b32 v{vCK}, v{Wk+2}, v{Wk+5}, v{vCK} bitop3:0xbe
        v_cmp_ne_u32 vcc, 0, v{vCK}
        s_and_b32 s13, vcc_lo, 0xffff
        s_cbranch_scc0 {Lsd}
        s_sleep {self.stsleep}
        s_sub_u32 s12, s12, 1
        s_cmp_gt_u32 s12, 0
        s_cbranch_scc1 {Ls}
        {Lsd}:
        s_mov_b64 exec, -1""")
        if self.ctl:
            a(f"""v_sub_u32 v{Wk+6}, s10, v{Wk+3}
            v_cvt_f32_i32 v{Wk+6}, v{Wk+6}
            v_cndmask_b32 v{Wk+6}, v{Wk+6}, 0, vcc
            s_lshl_b32 s9, s6, 2
            v_subrev_u32 v{Wk+7}, s9, v{vL}
            v_cmp_gt_u32 vcc, 4, v{Wk+7}
            v_mul_f32 v{Wk+7}, {f32(-15.0)}, v{Wk+6}
            s_nop 0
            v_cndmask_b32 v{Wk+6}, v{Wk+6}, v{Wk+7}, vcc""")
            self.row_reduce("v_add_f32", Wk + 6)
            self.swap_reduce("v_add_f32", Wk + 6, Wk + 7, 16)
            self.swap_reduce("v_add_f32", Wk + 6, Wk + 7, 32)
            a(f"""v_mul_f32 v{Wk+6}, {f32(1/64.0)}, v{Wk+6}
            """)
            self.decide(Wk + 6, Wk + 7, 0, vZ0)
        a(f"v_mov_b32 v{Wk+2}, v{Wk}")
        self.row_reduce("v_max_f32", Wk + 2)
        a(f"""v_sub_f32 v{Wk}, v{Wk}, v{Wk+2}
        v_mul_f32 v{Wk}, {LOG2E}, v{Wk}
        v_exp_f32 v{Wk}, v{Wk}
        s_nop 0
        v_mul_f32 v{Wk+1}, v{Wk+1}, v{Wk}""")
        self.row_reduce("v_add_f32", Wk + 1)
        a(f"""v_rcp_f32 v{Wk+2}, v{Wk+1}
        s_nop 0
        v_mul_f32 v{Wk+3}, v{Wk}, v{Wk+2}
        v_fma_f32 v{Wk}, -v{Wk+3}, v{Wk+1}, v{Wk}
        v_fmac_f32 v{Wk+3}, v{Wk}, v{Wk+2}
        s_lshl_b32 s9, s6, 2
        v_subrev_u32 v{Wk+4}, s9, v{vL}
        v_cmp_gt_u32 vcc, 4, v{Wk+4}
        v_lshlrev_b32 v{Wk+4}, 2, v{Wk+4}
        s_and_saveexec_b64 s[10:11], vcc
        ds_write_b32 v{Wk+4}, v{Wk+3} offset:{L_SCALE}
        s_mov_b64 exec, -1""")
        if self.ctl:
            a(f"""v_bfe_u32 v{Wk+4}, v{vL}, 2, 2
            v_and_b32 v{Wk+6}, {self.mix}, v{Wk+4}
            v_lshlrev_b32 v{Wk+4}, 3, v{Wk+4}
            v_lshl_add_u32 v{Wk+4}, v{Wk+6}, 2, v{Wk+4}
            v_add_u32 v{Wk+4}, s4, v{Wk+4}
            v_and_b32 v{Wk+4}, 31, v{Wk+4}
            v_lshlrev_b32 v{Wk+4}, 7, v{Wk+4}
            v_and_b32 v{Wk+6}, 3, v{vL}
            v_lshl_add_u32 v{Wk+4}, v{Wk+6}, 3, v{Wk+4}
            v_mov_b32 v{Wk+9}, s{sT}""")
            for ci in range(1, len(self.cps)):
                L, Ld = self.lab("cw"), self.lab("cwd")
                a(f"""s_mov_b32 s12, {self.poll_max * 16}
                {L}:
                ds_read_b32 v{Wk}, v{vZ0} offset:{L_PROG}
                s_waitcnt lgkmcnt(0)
                v_readfirstlane_b32 s9, v{Wk}
                s_cmp_ge_u32 s9, {self.cps[ci]}
                s_cbranch_scc1 {Ld}
                s_sleep 2
                s_sub_u32 s12, s12, 1
                s_cmp_gt_u32 s12, 0
                s_cbranch_scc1 {L}
                {Ld}:
                ds_read_b32 v{Wk+8}, v{vZ0} offset:{L_TM + 4*self.cps[ci]}
                s_lshl_b32 s9, s8, 7
                s_lshl_b32 s13, s6, 3
                s_add_u32 s9, s9, s13
                s_add_u32 s9, s9, {TS_OFF + 8192*ci}
                s_waitcnt lgkmcnt(0)
                v_readfirstlane_b32 s10, v{Wk+8}
                s_mov_b64 exec, 1
                buffer_store_dwordx2 v[{Wk+8}:{Wk+9}], v{vZ0}, s[56:59], s9 offen sc1
                s_mov_b64 exec, 0xffff
                s_sleep {self.cdelay[ci]}
                s_lshl_b32 s9, s5, 12
                s_add_u32 s9, s9, {TS_OFF + 8192*ci}
                buffer_load_dwordx2 v[{Wk}:{Wk+1}], v{Wk+4}, s[56:59], s9 offen sc1
                s_memrealtime s[12:13]
                s_waitcnt vmcnt(0) lgkmcnt(0)
                v_cmp_ne_u32 vcc, v{Wk+1}, v{Wk+9}
                v_sub_u32 v{Wk+6}, s12, v{Wk}
                v_cvt_f32_i32 v{Wk+6}, v{Wk+6}
                v_cndmask_b32 v{Wk+6}, v{Wk+6}, 0, vcc
                s_sub_u32 s12, s12, s10
                v_cvt_f32_u32 v{Wk+7}, s12""")
                self.row_reduce("v_add_f32", Wk + 6)
                a(f"""v_mul_f32 v{Wk+6}, {f32(1/16.0)}, v{Wk+6}
                v_sub_f32 v{Wk+6}, v{Wk+6}, v{Wk+7}
                """)
                self.decide(Wk + 6, Wk + 7, ci, vZ0)
                a("s_mov_b64 exec, -1")
        a("L_nostat:")
        a(f"""s_lshl_b32 s67, s6, 5
        s_add_u32 s67, s67, s4
        s_mov_b32 s68, 0
        s_cmp_lg_u32 s3, 2
        s_cbranch_scc1 L_noown
        s_cmp_ge_u32 s67, 40
        s_cbranch_scc1 L_noown
        s_mov_b32 s68, 1""")
        self.srd(60, 28, 1280)
        W = Wk
        a(f"""v_lshlrev_b32 v{W+20}, 2, v{vL}
        s_mul_i32 s9, s5, 1280
        v_add_u32 v{W+21}, s9, v{W+20}""")
        for t in range(5):
            a(f"buffer_load_dword v{W+t}, v{W+20}, s[60:63], 0 offen offset:{256*t}")
            a(f"ds_read_b32 v{W+5+t}, v{W+21} offset:{L_XN + 256*t}")
        self.srd(60, 16, 2560)
        a(f"""v_and_b32 v{W+22}, 3, v{vL}
        v_lshl_add_u32 v{vOUTA}, v{W+22}, 2, v{vT2}
        v_lshlrev_b32 v{vOUTA}, 1, v{vOUTA}
        s_lshl_b32 s10, s67, 5
        s_add_u32 s10, s10, s9
        v_add_u32 v{vOUTA}, s10, v{vOUTA}
        buffer_load_ushort v{vXC}, v{vOUTA}, s[60:63], 0 offen
        ds_read_u16 v{W+23}, v{vOUTA} offset:{L_XN}
        s_waitcnt vmcnt(0) lgkmcnt(0)""")
        for t in range(5):
            c = "0" if t == 0 else f"v{W+24}"
            a(f"v_dot2_f32_bf16 v{W+24}, v{W+t}, v{W+5+t}, {c}")
        a(f"v_lshlrev_b32 v{vXC}, 16, v{vXC}\nv_lshlrev_b32 v{W+23}, 16, v{W+23}\ns_nop 1")
        self.row_reduce("v_add_f32", W + 24)
        self.swap_reduce("v_add_f32", W + 24, W + 25, 16)
        self.swap_reduce("v_add_f32", W + 24, W + 25, 32)
        self.rbf(W + 24)
        self.sigmoid_like(W + 24, W + 24)
        self.rbf(W + 24)
        Ly, Lyd = self.lab("y"), self.lab("yd")
        a(f"""v_lshrrev_b32 v{W+20}, 2, v{vL}
        v_mul_u32_u24 v{W+21}, 5120, v{W+20}
        v_lshl_add_u32 v{W+21}, v{W+22}, 4, v{W+21}
        v_mul_u32_u24 v{vPA}, 2560, v{W+20}
        v_lshl_add_u32 v{vPA}, v{W+22}, 4, v{vPA}
        s_mul_i32 s9, s5, 2560
        s_lshl_b32 s10, s67, 6
        s_add_u32 s9, s9, s10
        s_add_u32 s9, s9, {Y_OFF}
        v_mov_b32 v{W}, 0
        v_mov_b32 v{W+1}, 0
        v_mov_b32 v{W+2}, 0
        v_mov_b32 v{W+3}, 0""")
        if not self.nomoe:
            self.mpoll([(W, f"buffer_load_dwordx4 v[{W}:{W+3}], v{W+21}, s[56:59], s9 offen sc1")], vTG, vCK, 64, mask=("-1", "0xffff"))
        self.merge4(W)
        self.rbf(W)
        a(f"v_mul_f32 v{W}, v{W}, v{W+24}")
        self.rbf(W)
        a(f"v_add_f32 v{W}, v{W}, v{W+23}")
        self.rbf(W)
        self.sigmoid_like(W + 1, W)
        a(f"v_mul_f32 v{vG}, v{W}, v{W+1}")
        self.rbf(vG)
        a(f"""s_mul_i32 s70, s5, {128*2560}
        s_lshl_b32 s10, s67, 6
        s_add_u32 s70, s70, s10""")
        for t in range(1, 8):
            a(f"s_add_u32 s{70+t}, s70, {t*40960}")
        if self.ppre == 1:
            for t in range(8):
                a(f"buffer_load_dwordx4 v[{W+4*t}:{W+4*t+3}], v{vPA}, s[56:59], s{70+t} offen sc1")
        a("L_noown:")
        self.srd(60, 36, 2560)
        a(f"""v_and_b32 v{vAR}, 7, v{vL}
        v_mul_u32_u24 v{vAR}, {OS}, v{vAR}
        v_lshl_add_u32 v{vAR}, v{vT2}, 4, v{vAR}
        v_and_b32 v{vT3}, 1, v{vT2}
        v_lshlrev_b32 v{vST}, 5, v{vT1}
        v_lshl_add_u32 v{vST}, v{vT3}, 4, v{vST}
        v_lshlrev_b32 v{vT3}, 3, v{vT3}
        s_mul_i32 s9, s7, 2560
        s_lshl_b32 s10, s3, 9
        s_add_u32 s9, s9, s10
        s_waitcnt vmcnt(0) lgkmcnt(0)""")
        if self.ppre == 2:
            a(f"""v_not_b32 v32, v{vTG}
            v_mov_b32 v33, v32
            v_mov_b32 v34, v32
            v_mov_b32 v35, v32
            v_lshlrev_b32 v36, 4, v{vL}
            s_mul_i32 s10, s7, 2560
            s_mul_i32 s11, s3, 640
            s_add_u32 s10, s10, s11
            s_mov_b32 exec_hi, 0xff
            buffer_store_dwordx4 v[32:35], v36, s[56:59], s10 offen sc1
            s_mov_b32 exec_hi, -1
            s_waitcnt vmcnt(0)""")
        self.stamp(5, 60)
        a(f"s_setprio {self.hprio2}")
        a(f"s_mov_b32 s43, {1 if self.dry else 0}")
        a("L_tail:")
        a("s_cmp_lg_u32 s43, 0\ns_cbranch_scc1 L_nobar\ns_barrier\nL_nobar:")
        if self.stamps == 4:
            a("s_memrealtime s[44:45]")
        AT = 32
        DA = [56, 16]
        RT = [20, 21, 22, 23, 24, 25, 28, 29]
        for k in range(6):
            a(f"ds_read_b128 v[{AT+4*k}:{AT+4*k+3}], v{vAR} offset:{L_O + 64*k}")
        a(f"ds_read_b64 v[{vSC}:{vSC+1}], v{vT3} offset:{L_SCALE}")
        DB = [[56, 16], [60, 4]]
        def epi(c, D, part):
            if part == 0:
                a(f"v_add_f32 v{D}, v{D}, v{D+1}\nv_add_f32 v{D+2}, v{D+2}, v{D+3}")
            else:
                a(f"v_mul_f32 v{RT[c]}, v{D}, v{vSC}\nv_fmac_f32 v{RT[c]}, v{D+2}, v{vSC+1}")
        for pr in range(4):
            cs = (pr, pr + 4)
            Ds = DB[pr & 1]
            for k in range(6):
                if pr == 0:
                    a(f"s_waitcnt lgkmcnt({6-k})")
                for c, D in zip(cs, Ds):
                    self.mfma(D, AT + 4 * k, REG(k + 1) + 4 * c, None if k == 0 else D)
                if pr > 0 and k >= 2:
                    pc, pD = (pr - 1, pr + 3), DB[(pr - 1) & 1]
                    if k == 4:
                        if pr == 1:
                            a("s_waitcnt lgkmcnt(0)")
                        epi(pc[0], pD[0], 0); epi(pc[1], pD[1], 0)
                    if k == 5:
                        epi(pc[0], pD[0], 1); epi(pc[1], pD[1], 1)
        for c in range(3):
            a(f"v_permlane16_swap_b32 v{RT[c]}, v{RT[c+4]}")
        a("s_nop 3")
        RES = 56
        for c in range(3):
            a(f"v_add_f32 v{RES+c}, v{RT[c]}, v{RT[c+4]}")
        epi(3, DB[1][0], 0); epi(7, DB[1][1], 0); epi(3, DB[1][0], 1); epi(7, DB[1][1], 1)
        for c in range(3):
            self.tag(RES + c, RES + c, vTG)
        a(f"""v_permlane16_swap_b32 v{RT[3]}, v{RT[7]}
        s_nop 0
        v_add_f32 v{RES+3}, v{RT[3]}, v{RT[7]}""")
        self.tag(RES + 3, RES + 3, vTG)
        a(f"""s_cmp_lg_u32 s43, 0
        s_cbranch_scc1 L_nost
        s_mov_b32 exec_hi, 0
        buffer_store_dwordx4 v[{RES}:{RES+3}], v{vST}, s[56:59], s9 offen {self.pst}
        s_mov_b32 exec_hi, -1""")
        self.stamp(7, 20)
        if self.stamps == 4:
            a("s_memrealtime s[46:47]\ns_mov_b64 s[52:53], 0\ns_mov_b64 s[54:55], 0\ns_cmp_lg_u32 s3, 2\ns_cbranch_scc1 L_end\ns_cmp_eq_u32 s68, 0\ns_cbranch_scc1 L_dump")
        a(f"""s_cmp_eq_u32 s68, 0
        s_cbranch_scc1 L_end""")
        Z = 64
        M0 = 80
        a(f"v_not_b32 v{vCK}, v{vTG}\nv_mov_b32 v30, 0xff")
        for t in range(8):
            a(f"s_mov_b64 s[{M0+2*t}:{M0+2*t+1}], -1\nv_mov_b32 v{Z+4*t}, v{vCK}")
        a(f"s_mov_b32 s12, {self.poll_max * 4}\ns_mov_b32 s13, 512\nL_pp:")
        for t in range(8):
            sk = self.lab("pl")
            a(f"""s_mov_b64 exec, s[{M0+2*t}:{M0+2*t+1}]
            s_cbranch_execz {sk}
            buffer_load_dwordx4 v[{Z+4*t}:{Z+4*t+3}], v{vPA}, s[56:59], s{70+t} offen {self.pld}
            {sk}:""")
        a(f"""s_waitcnt vmcnt({self.pcap})
        s_cmp_le_u32 s13, {self.pthr}
        s_cbranch_scc1 L_pf
        s_waitcnt vmcnt(0)
        L_pf:
        s_mov_b32 s13, 0""")
        for t in range(8):
            sk = self.lab("pc")
            a(f"""s_mov_b64 exec, s[{M0+2*t}:{M0+2*t+1}]
            s_cbranch_execz {sk}
            v_bitop3_b32 v{vCK}, v{Z+4*t}, v{Z+4*t+1}, v{vTG} bitop3:0x7e
            v_bitop3_b32 v31, v{Z+4*t+2}, v{Z+4*t+3}, v{vTG} bitop3:0x7e
            v_bitop3_b32 v{vCK}, v{vCK}, v31, v30 bitop3:0xa8
            v_cmp_ne_u32 s[{M0+2*t}:{M0+2*t+1}], 0, v{vCK}
            s_bcnt1_i32_b64 s10, s[{M0+2*t}:{M0+2*t+1}]
            s_add_u32 s13, s13, s10
            {sk}:""")
        a(f"""s_mov_b64 exec, -1
        s_cmp_eq_u32 s13, 0
        s_cbranch_scc1 L_nost
        s_cmp_le_u32 s13, {self.pthr}
        s_cbranch_scc1 L_pn
        s_sleep {self.pslow}
        L_pn:
        s_sub_u32 s12, s12, 1
        s_cmp_gt_u32 s12, 0
        s_cbranch_scc1 L_pp
        L_nost:""")
        if self.stamps == 4:
            a("s_memrealtime s[52:53]")
        C = 32
        for r in range(32):
            a(f"v_and_b32 v{C+r}, s{sMASK}, v{Z+r}")
        self.sum_quads(C, 8)
        self.merge4(C)
        self.rbf(C)
        a(f"v_mul_f32 v{C}, v{C}, v{vG}")
        self.rbf(C)
        a(f"""v_add_f32 v{C}, v{C}, v{vXC}
        v_cvt_pk_bf16_f32 v{C}, v{C}, v{C}
        s_cmp_eq_u32 s43, 0
        s_cbranch_scc1 L_fin
        s_mov_b32 s43, 0
        v_and_b32 v{vT3}, 1, v{vT2}
        v_lshlrev_b32 v{vT3}, 3, v{vT3}
        s_branch L_tail
        L_fin:
        s_mov_b32 exec_lo, 0x000f000f
        s_mov_b32 exec_hi, 0x000f000f
        buffer_store_short v{C}, v{vOUTA}, s[60:63], 0 offen""")
        if self.stamps == 4:
            a("s_memrealtime s[54:55]\nL_dump:\ns_sleep 127")
            self.dump = True
            self.stamp(15, 20, src=48)
            self.stamp(6, 20, src=44)
            self.stamp(7, 20, src=46)
            self.stamp(8, 20, src=52)
            self.stamp(9, 20, src=54)
            self.dump = False
        if self.padto:
            if self.padwg >= 0:
                a(f"s_cmp_lg_u32 s2, {self.padwg}\ns_cbranch_scc1 L_end")
            a(f"""L_pad:
            s_memrealtime s[50:51]
            s_waitcnt lgkmcnt(0)
            s_sub_u32 s50, s50, s48
            s_cmp_lt_u32 s50, {self.padto}
            s_cbranch_scc1 L_pad""")
        self.stamp(8, 60)

    def job_compute(self, n, C0, C1, TILES, vA, vACC, vSEL, vTG, vOUT, sOUT, waits):
        a = self.a
        for G in range(n):
            self.buildA(vA, C0 + G // 2, G & 1, vSEL)
            self.buildA(vA + 4, C1 + G // 2, G & 1, vSEL)
            a(f"s_waitcnt vmcnt({n-1-G})\ns_nop 0" if waits else "s_nop 1")
            self.mfma(vACC, vA, TILES + 4 * G, None if G == 0 else vACC)
            self.mfma(vACC + 4, vA + 4, TILES + 4 * G, None if G == 0 else vACC + 4)
        a("s_nop 7")
        for r in range(4):
            a(f"v_permlane32_swap_b32 v{vACC+r}, v{vACC+4+r}")
        a("s_nop 1")
        for r in range(4):
            self.dpp("v_add_f32", vACC + r, vACC + 4 + r, vACC + r, "row_ror:8")
        for r in range(4):
            self.tag(vACC + r, vACC + r, vTG, rn=True)
        a(f"""s_mov_b32 exec_lo, 0x00ff00ff
        s_mov_b32 exec_hi, 0x00ff00ff
        buffer_store_dwordx4 v[{vACC}:{vACC+3}], v{vOUT}, s[56:59], {sOUT} offen sc1
        s_mov_b64 exec, -1""")

    def gen_dn(self, vL, vT3, vT4, vT5, vSEL, vTG, vCK, TI):
        a = self.a
        GP = TI + 64
        a(f"""s_mul_hi_u32 s53, s52, {(2**32 + 9)//10}
        s_mul_i32 s54, s53, 10
        s_sub_u32 s54, s52, s54""")
        self.srd(60, 34, 1536 * 1280)
        a(f"""v_lshrrev_b32 v{vT3}, 3, v{vL}
        v_mul_u32_u24 v{vT4}, {16*1280}, v{vT3}
        v_and_b32 v{vT5}, 7, v{vL}
        v_lshl_add_u32 v{vT4}, v{vT5}, 4, v{vT4}
        s_mul_i32 s9, s53, {128*1280}
        s_lshl_b32 s10, s54, 7
        s_add_u32 s9, s9, s10""")
        for G in range(16):
            a(f"buffer_load_dwordx4 v[{TI+4*G}:{TI+4*G+3}], v{vT4}, s[60:63], s9 offen offset:{(G%4)*1280} {self.mf}")
            if G % 4 == 3:
                a(f"s_add_u32 s9, s9, {4*1280}")
                if G == 7:
                    a("s_waitcnt vmcnt(0)")
        a(f"""v_lshrrev_b32 v60, 5, v{vL}
        v_lshlrev_b32 v61, 12, v60
        v_and_b32 v62, 31, v{vL}
        v_lshl_add_u32 v61, v62, 4, v61
        s_lshl_b32 s9, s53, 13
        s_add_u32 s9, s9, {GU_OFF}""")
        self.mpoll([(GP + 4 * t, f"buffer_load_dwordx4 v[{GP+4*t}:{GP+4*t+3}], v61, s[56:59], s9 offen offset:{512*t} sc1") for t in range(8)],
                   vTG, vCK, 32)
        self.sum_quads(GP, 4)
        self.sum_quads(GP + 16, 4)
        for r in range(4):
            self.rbf(GP + r)
            self.rbf(GP + 16 + r)
            self.sigmoid_like(GP + 4, GP + r)
            a(f"v_mul_f32 v{GP+r}, v{GP+r}, v{GP+4}")
            self.rbf(GP + r)
            a(f"v_mul_f32 v{GP+r}, v{GP+r}, v{GP+16+r}")
        a(f"""v_cvt_pk_bf16_f32 v{GP+4}, v{GP}, v{GP+1}
        v_cvt_pk_bf16_f32 v{GP+5}, v{GP+2}, v{GP+3}
        v_bfe_u32 v61, v{vL}, 4, 1
        v_lshlrev_b32 v62, 8, v61
        v_lshl_add_u32 v62, v60, 7, v62
        v_and_b32 v63, 15, v{vL}
        v_lshl_add_u32 v62, v63, 3, v62
        ds_write_b64 v62, v[{GP+4}:{GP+5}] offset:{L_HB}
        v_lshlrev_b32 v{vT3}, 5, v{vT3}
        v_mul_u32_u24 v{vT4}, 2560, v60
        v_lshl_add_u32 v{vT4}, v{vT5}, 5, v{vT4}
        v_lshl_add_u32 v{vT4}, v61, 4, v{vT4}
        s_mul_i32 s9, s53, 5120
        s_lshl_b32 s10, s54, 8
        s_add_u32 s9, s9, s10
        s_add_u32 s9, s9, {Y_OFF}
        s_waitcnt lgkmcnt(0)
        ds_read_b128 v[44:47], v{vT3} offset:{L_HB}
        ds_read_b128 v[48:51], v{vT3} offset:{L_HB+16}
        ds_read_b128 v[52:55], v{vT3} offset:{L_HB+256}
        ds_read_b128 v[56:59], v{vT3} offset:{L_HB+272}
        s_waitcnt lgkmcnt(0)""")
        self.job_compute(16, 44, 52, TI, 28, 36, vSEL, vTG, vT4, "s9", False)
        a("s_waitcnt vmcnt(0)")

    def text(self):
        hdr = open("recurrent_scan__mha_block_cached__moe_arch_mod__decode.s.ref").read().split("; Override launch")[0]
        self.gen()
        return hdr + f"""; @launch grid=(256,1,1) block=(512,1,1) lds={LDS_BYTES}
.amdgcn_target "amdgcn-amd-amdhsa--gfx950"
.text
.globl {KNAME}
.p2align 8
.type {KNAME},@function
{KNAME}:
""" + "\n".join(self.o) + f"""
.section .rodata,"a"
.p2align 6
.amdhsa_kernel {KNAME}
  .amdhsa_next_free_vgpr 256
  .amdhsa_next_free_sgpr 102
  .amdhsa_accum_offset 256
  .amdhsa_group_segment_fixed_size 0
  .amdhsa_kernarg_size 104
  .amdhsa_user_sgpr_count 2
  .amdhsa_user_sgpr_kernarg_segment_ptr 1
  .amdhsa_system_sgpr_workgroup_id_x 1
  .amdhsa_float_denorm_mode_32 3
.end_amdhsa_kernel
"""


if __name__ == "__main__":
    out = sys.argv[1]
    kw = {}
    for arg in sys.argv[2:]:
        k, v = arg.split("=", 1)
        try:
            v = int(v)
        except ValueError:
            pass
        kw[k] = v
    open(out, "w").write(G(**kw).text())
```

```python
import sys, struct

KNAME = "recurrent_scan__mha_block_cached__moe_arch_mod__decode_kernel"
TB = 201326592
CH = 786432
STEP = 12288

P_OFF = 0
ST_OFF = 256 * 2560
EP_OFF = ST_OFF + 64 * 256
Y_OFF = EP_OFF + 256
QX_OFF = Y_OFF + 12 * 5120
GU_OFF = QX_OFF + 32 * 4 * 2 * 768
TS_OFF = GU_OFF + 192 * 512
WS_USED = TS_OFF + 4 * 8192
STAMP_OFF = 2 << 20
WS_SRD = 4 << 20
assert WS_USED <= STAMP_OFF

L_XN = 0
L_QB = 2560
L_SC = L_QB + 512
OS = 416
L_O = L_SC + 4 * 1152
L_SCALE = L_O + 8 * OS
L_PROG = L_SCALE + 48
L_BOOST = L_SCALE + 52
L_WXOK = L_SCALE + 56
L_HB = L_SCALE + 64
L_STL = L_HB + 512
L_WX = (L_STL + 64 + 1023) // 1024 * 1024
WXS = 1040
L_TM = L_WX + 48 * WXS
LDS_BYTES = L_TM + 64

LOG2E = 0x3fb8aa3b
SCALE_F32 = 0x3d93cd3a
assert struct.unpack("<I", struct.pack("<f", 192 ** -0.5))[0] == SCALE_F32
def f32(x): return "0x%08x" % struct.unpack("<I", struct.pack("<f", x))[0]
NLOG2E = f32(-1.4426950408889634)

sWAVE, sH, sB, sSPLIT, sCHUNK, sBH = 3, 4, 5, 6, 7, 8
sT = 78
sMASK = 79
sWV = 69


class G:
    def __init__(self, R0=16, R1=8, W=4, W0=3, kvflags="nt", wflags="nt", woflags="pl", moeflags="nt", rot=1, stamps=0,
                 poll_max=1 << 18, hprio=3, hprio1=0, hprio2=3, wobatch=8, nowo=0, nomoe=0, noq=0, nob0=0, D=2, GI=4, early=0, nok=0, nopoll=0, hskip=0, stsleep=16, DV=0, earlyV=-1, D0=0, hsleep=0, diagx=0, padto=0, padwg=-1, qsleep=0, psleep=0, NE=0, DE=4, qsleep2=0, NB=0, ctl=1, cps='1,5,8', gains='9,7,7', dead=30, cdelay='48,32,16', gb=0, brk=1, mix=1, kboost=-1, pre=2, wosleep=0, dry=1, pthr=32, pslow=8, pcap=24, pst='sc1', pld='sc1', ppre=0, trace=0, pq=0, spre=0, wide=1, VD=3, brd=6):
        self.VD, self.brd = VD, brd
        self.wide = wide
        self.spre = spre
        self.pq = pq
        self.trace = trace
        self.pst, self.pld, self.ppre = pst.replace('_', ' '), pld.replace('_', ' '), ppre
        self.dry, self.pthr, self.pslow, self.pcap = dry, pthr, pslow, pcap
        self.kboost, self.pre, self.wosleep = kboost, pre, wosleep
        self.gb, self.brk, self.mix = gb, brk, mix
        self.ctl = ctl
        self.NB = NB
        self.cps = [int(x) for x in str(cps).split(',')]
        self.gains = [float(x) for x in str(gains).split(',')]
        self.dead = dead
        self.cdelay = [int(x) for x in str(cdelay).split(',')]
        self.NE, self.DE, self.qsleep2 = NE, DE, qsleep2
        self.qsleep, self.psleep = qsleep, psleep
        self.padwg = padwg
        self.padto = padto
        self.diagx = diagx
        self.DV = DV or D
        self.earlyV = early if earlyV < 0 else earlyV
        self.D0 = D0 or D
        self.hsleep = hsleep
        self.nok, self.nopoll, self.hskip, self.stsleep = nok, nopoll, hskip, stsleep
        self.D, self.GI, self.early = D, GI, early
        self.nowo, self.nomoe, self.noq, self.nob0 = nowo, nomoe, noq, nob0
        self.hprio1, self.hprio2 = hprio1, hprio2
        self.o = []
        self.R0, self.R1, self.W, self.W0 = R0, R1, W, W0
        fl = lambda x: '' if x == 'pl' else x.replace('_', ' ')
        self.kvf, self.wf, self.mf = fl(kvflags), fl(wflags), fl(moeflags)
        self.wof = fl(woflags)
        self.rot = rot
        self.stamps = stamps
        self.poll_max = poll_max
        self.hprio = hprio
        self.wobatch = wobatch
        self.nlab = 0

    def a(self, s):
        for ln in s.split("\n"):
            ln = ln.strip()
            if ln:
                self.o.append(("" if ln.endswith(":") else "    ") + ln)

    def lab(self, p="L"):
        self.nlab += 1
        return f"{p}_{self.nlab}"

    def srd(self, q, lo, nbytes):
        self.a(f"s_mov_b32 s{q}, s{lo}\ns_mov_b32 s{q+1}, s{lo+1}\ns_mov_b32 s{q+2}, {nbytes}\ns_mov_b32 s{q+3}, 0x20000")

    def dpp(self, op, d, s0, s1, ctrl):
        self.a(f"{op}_dpp v{d}, v{s0}, v{s1} {ctrl} row_mask:0xf bank_mask:0xf")

    def row_reduce(self, op, v, steps=(1, 2, 4, 8)):
        for s in steps:
            self.a("s_nop 1")
            self.dpp(op, v, v, v, f"row_ror:{s}")

    def swap_reduce(self, op, v, t, which):
        self.a(f"v_mov_b32 v{t}, v{v}\ns_nop 1\nv_permlane{which}_swap_b32 v{v}, v{t}\ns_nop 1\n{op} v{v}, v{v}, v{t}")

    def stamp(self, idx, vt, st=50, src=None):
        if not self.stamps:
            return
        if self.stamps == 3 and (self.cls == "H" or idx in (0, 1, 2, 3, 4)):
            return
        if self.stamps == 4 and not getattr(self, "dump", False):
            return
        if src is None:
            self.a(f"s_memrealtime s[{st}:{st+1}]")
            src = st
        if self.stamps == 2:
            slot = (idx if idx < 15 else 0) + (1 if self.cls == "S" else 7)
            if self.cls == "H" and idx not in (1, 2, 4, 7, 8):
                return
            if self.cls == "H":
                slot = {1: 8, 2: 9, 4: 10, 7: 11, 8: 12}[idx]
            elif idx == 15:
                slot = 1
            else:
                slot = 2 + idx
            inv = f"s_mov_b32 s65, s{src}"
            Lsk = self.lab("sk")
            if not (self.cls == "H" and idx == 8):
                self.a(f"""s_waitcnt lgkmcnt(0)
                s_cmp_lg_u32 s2, 0
                s_cbranch_scc1 {Lsk}""")
            self.a(f"""s_waitcnt lgkmcnt(0)
            {inv}
            v_mov_b32 v{vt}, s65
            v_mov_b32 v{vt+2}, {slot*4}
            s_mov_b64 exec, 1
            global_atomic_umax v{vt+2}, v{vt}, s[38:39] sc1
            s_mov_b64 exec, -1
            {Lsk}:""")
            return
        self.a(f"""s_lshl_b32 s65, s2, 3
        s_add_u32 s65, s65, s{sWV}
        s_lshl_b32 s65, s65, 7
        s_add_u32 s65, s65, {STAMP_OFF + idx*8}
        s_waitcnt lgkmcnt(0)
        v_mov_b32 v{vt}, s{src}
        v_mov_b32 v{vt+1}, s{src+1}
        v_mov_b32 v{vt+2}, 0
        s_mov_b64 exec, 1
        buffer_store_dwordx2 v[{vt}:{vt+1}], v{vt+2}, s[56:59], s65 offen
        s_mov_b64 exec, -1""")

    def selectors(self, vL, base, t0, t1, t2):
        a = self.a
        a(f"""v_and_b32 v{t0}, 1, v{vL}
        v_cmp_eq_u32 vcc, 1, v{t0}
        v_mov_b32 v{t0}, 0x0c0c0100
        v_mov_b32 v{t1}, 0x01000c0c
        v_cndmask_b32 v{t0}, v{t0}, v{t1}, vcc
        v_mov_b32 v{t1}, 0x0c0c0302
        v_mov_b32 v{t2}, 0x03020c0c
        v_cndmask_b32 v{t1}, v{t1}, v{t2}, vcc
        v_bfe_u32 v{t2}, v{vL}, 1, 2""")
        for j in range(4):
            a(f"""v_cmp_eq_u32 vcc, {j}, v{t2}
            v_mov_b32 v{base+j}, 0x0c0c0c0c
            v_mov_b32 v{base+4+j}, 0x0c0c0c0c
            v_cndmask_b32 v{base+j}, v{base+j}, v{t0}, vcc
            v_cndmask_b32 v{base+4+j}, v{base+4+j}, v{t1}, vcc""")

    def buildA(self, A, P, hi, sel):
        for j in range(4):
            self.a(f"v_perm_b32 v{A+j}, v{P}, v{P}, v{sel + (4 if hi else 0) + j}")

    def mfma(self, D, A, B, C):
        c = "0" if C is None else f"v[{C}:{C+3}]"
        self.a(f"v_mfma_f32_16x16x32_bf16 v[{D}:{D+3}], v[{A}:{A+3}], v[{B}:{B+3}], {c}")

    def smf(self, D, A, B, IDX):
        self.a(f"v_smfmac_f32_16x16x64_bf16 v[{D}:{D+3}], v[{A}:{A+3}], v[{B}:{B+7}], v{IDX}")

    def rbf(self, v):
        self.a(f"v_cvt_pk_bf16_f32 v{v}, v{v}, v{v}\nv_lshlrev_b32 v{v}, 16, v{v}")

    def tag(self, d, s, vTG, rn=False):
        if rn:
            self.a(f"v_add_u32 v{d}, 0x80, v{s}")
            s = d
        self.a(f"v_and_or_b32 v{d}, v{s}, s{sMASK}, v{vTG}")

    def chk4(self, acc, x, vTG, first=False, n=4):
        for r in range(n):
            self.a(f"v_xor_b32 v{x+r}, v{x+r}, v{vTG}")
        for r in range(0, n, 2):
            if first and r == 0:
                self.a(f"v_or_b32 v{acc}, v{x}, v{x+1}")
            else:
                self.a(f"v_or3_b32 v{acc}, v{x+r}, v{x+r+1}, v{acc}")

    def poll_tail(self, acc, Lretry, Ldone, sleep):
        self.a(f"""v_and_b32 v{acc}, 0xff, v{acc}
        v_cmp_ne_u32 vcc, 0, v{acc}
        s_cbranch_vccz {Ldone}""")
        if sleep:
            self.a(f"s_sleep {sleep}")
        self.a(f"""s_sub_u32 s12, s12, 1
        s_cmp_gt_u32 s12, 0
        s_cbranch_scc1 {Lretry}
        {Ldone}:""")

    def mpoll(self, loads, vTG, vCK, sleep, mask=None, nd=4, M0=80):
        a = self.a
        L, Ld = self.lab("mp"), self.lab("mpd")
        for t in range(len(loads)):
            if mask is None:
                a(f"s_mov_b64 s[{M0+2*t}:{M0+2*t+1}], -1")
            else:
                a(f"s_mov_b32 s{M0+2*t}, {mask[0]}\ns_mov_b32 s{M0+2*t+1}, {mask[1]}")
        a(f"s_mov_b32 s12, {self.poll_max}\n{L}:")
        for t, (r, txt) in enumerate(loads):
            sk = self.lab("ml")
            a(f"s_mov_b64 exec, s[{M0+2*t}:{M0+2*t+1}]\ns_cbranch_execz {sk}\n{txt}\n{sk}:")
        a("s_mov_b64 s[100:101], 0\ns_waitcnt vmcnt(0)")
        for t, (r, txt) in enumerate(loads):
            sk = self.lab("mc")
            a(f"s_mov_b64 exec, s[{M0+2*t}:{M0+2*t+1}]\ns_cbranch_execz {sk}")
            self.chk4(vCK, r, vTG, first=True, n=nd)
            a(f"""v_and_b32 v{vCK}, 0xff, v{vCK}
            v_cmp_ne_u32 s[{M0+2*t}:{M0+2*t+1}], 0, v{vCK}
            s_or_b64 s[100:101], s[100:101], s[{M0+2*t}:{M0+2*t+1}]
            {sk}:""")
        a(f"""s_mov_b64 exec, -1
        s_cmp_eq_u64 s[100:101], 0
        s_cbranch_scc1 {Ld}""")
        if sleep:
            a(f"s_sleep {sleep}")
        a(f"""s_sub_u32 s12, s12, 1
        s_cmp_gt_u32 s12, 0
        s_cbranch_scc1 {L}
        {Ld}:""")

    def decide(self, v, t, ci, vZ0):
        self.a(f"""v_add_f32 v{t}, {f32(float(self.dead))}, v{v}
        v_mul_f32 v{t}, {f32(self.gb / 100.0)}, v{t}
        v_min_f32 v{t}, 0, v{t}
        v_subrev_f32 v{v}, {f32(float(self.dead))}, v{v}
        v_mul_f32 v{v}, {f32(self.gains[ci] / 100.0)}, v{v}
        v_max_f32 v{v}, 0, v{v}
        v_add_f32 v{v}, v{v}, v{t}
        v_min_f32 v{v}, 64.0, v{v}
        v_max_f32 v{v}, {f32(-24.0)}, v{v}
        v_cvt_i32_f32 v{v}, v{v}
        v_and_b32 v{v}, 0xffff, v{v}
        v_or_b32 v{v}, {(ci+1) << 16}, v{v}
        ds_write_b32 v{vZ0}, v{v} offset:{L_BOOST}""")

    def sum_quads(self, X, n):
        for t in range(1, n):
            self.a(f"v_pk_add_f32 v[{X}:{X+1}], v[{X}:{X+1}], v[{X+4*t}:{X+4*t+1}]")
            self.a(f"v_pk_add_f32 v[{X+2}:{X+3}], v[{X+2}:{X+3}], v[{X+4*t+2}:{X+4*t+3}]")

    def merge4(self, X):
        a = self.a
        a(f"""s_nop 1
        v_permlane16_swap_b32 v{X}, v{X+1}
        v_permlane16_swap_b32 v{X+2}, v{X+3}
        s_nop 1
        v_add_f32 v{X}, v{X}, v{X+1}
        v_add_f32 v{X+2}, v{X+2}, v{X+3}
        s_nop 1
        v_permlane32_swap_b32 v{X}, v{X+2}
        s_nop 1
        v_add_f32 v{X}, v{X}, v{X+2}""")
        self.row_reduce("v_add_f32", X, steps=(4, 8))

    def sigmoid_like(self, d, x):
        self.a(f"""v_mul_f32 v{d}, {NLOG2E}, v{x}
        v_exp_f32 v{d}, v{d}
        s_nop 0
        v_add_f32 v{d}, 1.0, v{d}
        v_rcp_f32 v{d}, v{d}
        s_nop 0""")

    def rotcode(self):
        if self.rot < 100:
            return f"s_mul_i32 s9, s7, {self.rot}"
        if self.rot == 100:
            return "s_lshr_b32 s9, s2, 3\ns_lshl_b32 s11, s2, 5\ns_add_u32 s9, s9, s11"
        if self.rot == 101:
            return "s_lshl_b32 s9, s5, 4\ns_add_u32 s9, s9, s7"
        if self.rot == 102:
            return "s_lshr_b32 s9, s7, 6\ns_mul_i32 s9, s9, 17\ns_add_u32 s9, s9, s7"
        raise ValueError

    def epoch_load(self):
        self.a(f"s_load_dword s{sT}, s[40:41], {EP_OFF}")

    def epoch_use(self, vTG):
        self.a(f"""s_add_u32 s{sT}, s{sT}, 1
        s_mov_b32 s{sMASK}, 0xffffff00
        s_and_b32 s9, s{sT}, 0xff
        v_mov_b32 v{vTG}, s9""")

    def gen(self):
        a = self.a
        a(f"""s_cmp_ge_u32 s2, 256
        s_cbranch_scc1 L_end
        s_load_dwordx16 s[16:31], s[0:1], 0
        s_load_dwordx8 s[32:39], s[0:1], 64
        s_load_dwordx2 s[40:41], s[0:1], 96""")
        if self.stamps or self.padto or self.trace:
            a("s_memrealtime s[48:49]")
        a(f"""v_lshrrev_b32 v1, 6, v0
        v_and_b32 v0, 63, v0
        v_readfirstlane_b32 s3, v1
        s_and_b32 s9, s2, 7
        s_lshr_b32 s10, s2, 3
        s_lshl_b32 s4, s9, 2
        s_lshr_b32 s11, s10, 3
        s_add_u32 s4, s4, s11
        s_bfe_u32 s5, s10, 0x10002
        s_and_b32 s6, s10, 3
        s_lshl_b32 s8, s5, 5
        s_add_u32 s8, s8, s4
        s_lshl_b32 s7, s8, 2
        s_add_u32 s7, s7, s6
        s_mov_b32 s{sWV}, s3
        s_cmp_ge_u32 s3, 4
        s_cbranch_scc1 L_H""")
        self.gen_S()
        a("L_H:")
        self.gen_H()
        a("L_end:\ns_endpgm")

    def gen_S(self):
        self.cls = "S"
        a = self.a
        R0, D, GI = self.R0, self.D, self.GI
        RS = {2: 4, 3: 6}[D]
        R1 = 4
        DV = self.DV
        RSV = {2: 4, 3: 6}[DV]
        D0 = self.D0
        assert (64 - R0) % RS == 0
        NITK = (64 - R0) // RS
        W = 6
        vL = 0
        vOFF, vSCW, vSCR, vT0, vT1, vT2, vT3, vOW = 1, 2, 3, 4, 5, 6, 7, 8
        vA0, vA1, vTG = 9, 10, 11
        vQ = 12
        vSEL = 24
        vACC = 32
        vA = 44
        vP = 52
        RING = 64
        assert RING + R0 * 12 <= 256
        sOFF, sBEG, sEND, sIT, sCNT = 42, 43, 64, 66, 65
        a(f"""v_lshrrev_b32 v{vT0}, 3, v{vL}
        v_and_b32 v{vT1}, 7, v{vL}
        v_mul_u32_u24 v{vOFF}, 384, v{vT0}
        v_lshl_add_u32 v{vOFF}, v{vT1}, 4, v{vOFF}
        s_mul_i32 s9, s3, 3072""")
        if GI == 4:
            stepb = 4 * STEP
            a(f"""s_mul_i32 s11, s6, {STEP}
            s_add_u32 s9, s9, s11
            s_mul_i32 s{sBEG}, s8, {4*CH}
            s_add_u32 s{sEND}, s{sBEG}, {4*CH}
            v_add_u32 v{vOFF}, s9, v{vOFF}
            s_mul_i32 s9, s8, {self.rot}""")
        else:
            stepb = STEP
            a(f"""v_add_u32 v{vOFF}, s9, v{vOFF}
            s_mul_i32 s{sBEG}, s7, {CH}
            s_add_u32 s{sEND}, s{sBEG}, {CH}
            {self.rotcode()}""")
        a(f"""s_and_b32 s9, s9, 63
        s_mul_i32 s9, s9, {stepb}
        s_add_u32 s{sOFF}, s{sBEG}, s9
        s_waitcnt lgkmcnt(0)""")
        self.srd(52, 18, TB)
        vTR = 59
        def tr():
            if self.trace:
                a(f"""s_memrealtime s[80:81]
                s_waitcnt lgkmcnt(0)
                v_writelane_b32 v{vTR}, s80, m0
                s_add_u32 m0, m0, 1""")
        if self.trace:
            a(f"s_mov_b32 m0, 1\nv_mov_b32 v{vTR}, 0\nv_writelane_b32 v{vTR}, s48, 0")
        self.fs = []
        def fstamp():
            if self.stamps == 3 and len(self.fs) < 9:
                r = 80 + 2 * len(self.fs)
                a(f"s_memrealtime s[{r}:{r+1}]")
                self.fs.append(r)
        fstamp()

        def load(slot, sw=None):
            for j in range(3):
                r = RING + (slot * 3 + j) * 4
                a(f"buffer_load_dwordx4 v[{r}:{r+3}], v{vOFF}, s[52:55], s{sOFF} offen offset:{128*j} {self.kvf}")
            a(f"""s_add_u32 s{sOFF}, s{sOFF}, {stepb}
            s_cmp_ge_u32 s{sOFF}, s{sEND}
            s_cselect_b32 s{sOFF}, s{sBEG}, s{sOFF}""")
            if sw == "kv":
                a(f"""s_cmp_eq_u32 s{sIT}, {NITK-1}
                s_cselect_b32 s52, s20, s52
                s_cselect_b32 s53, s21, s53""")
            elif sw is not None:
                a(f"""s_cmp_eq_u32 s{sIT}, {sw}
                s_cselect_b32 s54, 0, s54""")
        thr = 3 * (D - 1) + self.early
        for s in range(D0):
            load(s)
        self.epoch_load()
        self.srd(56, 40, WS_SRD)
        self.selectors(vL, vSEL, vT2, vT3, vOW)
        a(f"""s_mul_i32 s9, s3, 1152
        s_add_u32 s9, s9, {L_SC}
        v_mul_u32_u24 v{vSCW}, 144, v{vT0}
        v_add_u32 v{vSCW}, s9, v{vSCW}
        v_mov_b32 v{vSCR}, v{vSCW}""")
        a(f"""v_lshrrev_b32 v{vT2}, 5, v{vL}
        s_lshl_b32 s9, s3, 1
        v_add_u32 v{vT2}, s9, v{vT2}
        v_mul_u32_u24 v{vOW}, {OS}, v{vT2}
        v_lshl_add_u32 v{vOW}, v{vT1}, 3, v{vOW}
        v_bfe_u32 v{vT2}, v{vL}, 4, 1
        v_lshl_add_u32 v{vOW}, v{vT2}, 2, v{vOW}
        v_add_u32 v{vOW}, {L_O}, v{vOW}
        v_lshlrev_b32 v{vT2}, 4, v{vT1}""")
        for s in range(D0, R0):
            a(f"s_waitcnt vmcnt({3*(D0-1)})")
            if s in (2, 3, 4, 6, 8, 10, 12, 14):
                fstamp()
            if s % 4 == 0:
                tr()
            load(s)
        a("s_waitcnt lgkmcnt(0)")
        self.epoch_use(vTG)
        self.stamp(15, vA, src=48)
        self.stamp(0, vA)
        tr()
        a("s_barrier")
        tr()
        self.stamp(1, vA)
        for j in range(3):
            a(f"ds_read_b128 v[{vQ+4*j}:{vQ+4*j+3}], v{vT2} offset:{L_QB + 128*j}")
        a(f"s_mov_b32 s{sIT}, 0\ns_mov_b32 s10, {SCALE_F32}\ns_waitcnt lgkmcnt(0)")

        sUSED, sTGT = 44, 45
        def throttle(dist=3):
            Lb, Lc = self.lab("bo"), self.lab("bc")
            a(f"""s_waitcnt vmcnt({3*(dist-1)})
            s_cmp_gt_i32 s{sUSED}, 0
            s_cbranch_scc1 {Lb}
            s_waitcnt vmcnt(3)
            s_cmp_eq_u32 s{sUSED}, 0
            s_cbranch_scc1 {Lc}
            s_waitcnt vmcnt({self.brk})
            s_add_i32 s{sUSED}, s{sUSED}, 2
            {Lb}:
            s_sub_i32 s{sUSED}, s{sUSED}, 1
            {Lc}:""")
        def kpair(s, off):
            ra, rb = RING + s * 12, RING + (s + 1) * 12
            for i in range(12):
                c0 = "0" if i == 0 else f"v{vA0}"
                c1 = "0" if i == 0 else f"v{vA1}"
                a(f"v_dot2_f32_bf16 v{vA0}, v{ra+i}, v{vQ+i}, {c0}")
                a(f"v_dot2_f32_bf16 v{vA1}, v{rb+i}, v{vQ+i}, {c1}")
            a("s_nop 2")
            self.dpp("v_add_f32", vA0, vA0, vA0, "quad_perm:[1,0,3,2]")
            self.dpp("v_add_f32", vA1, vA1, vA1, "quad_perm:[1,0,3,2]")
            a("s_nop 0")
            self.dpp("v_add_f32", vA0, vA0, vA0, "quad_perm:[2,3,0,1]")
            self.dpp("v_add_f32", vA1, vA1, vA1, "quad_perm:[2,3,0,1]")
            a("s_nop 0")
            self.dpp("v_add_f32", vA0, vA0, vA0, "row_half_mirror")
            self.dpp("v_add_f32", vA1, vA1, vA1, "row_half_mirror")
            a(f"""v_cvt_pk_bf16_f32 v{vT2}, v{vA0}, v{vA1}
            v_lshlrev_b32 v{vA0}, 16, v{vT2}
            v_and_b32 v{vA1}, 0xffff0000, v{vT2}
            v_mul_f32 v{vA0}, s10, v{vA0}
            v_mul_f32 v{vA1}, s10, v{vA1}
            v_cvt_pk_bf16_f32 v{vT2}, v{vA0}, v{vA1}
            ds_write_b32 v{vSCW}, v{vT2} offset:{off}""")
        npairs = R0 // 2
        issue_after = {0: 0, 3: 1} if D == 2 else {0: 0, 2: 1, 4: 2}
        issued = 0
        for p in range(npairs):
            a(f"s_waitcnt vmcnt({3 * ((R0 - 2*p - 2) + issued)})")
            kpair(2 * p, p * 4)
            if p in issue_after:
                a(f"s_waitcnt vmcnt({thr})")
                load(issue_after[p])
                issued += 1
        a(f"v_add_u32 v{vSCW}, {2*R0}, v{vSCW}")
        if self.kboost >= 0:
            assert D == 3
            a(f"s_mov_b32 s{sUSED}, {self.kboost}")
        a("L_kloop:")
        tr()
        for s in range(RS):
            if self.kboost >= 0:
                throttle()
            else:
                a(f"s_waitcnt vmcnt({thr})")
            load((s + D) % RS, "kv" if s == RS - D - 1 else None)
            if s & 1:
                if self.early:
                    a(f"s_waitcnt vmcnt({3*D})")
                if not self.nok:
                    kpair(s - 1, (s // 2) * 4)
        a(f"""v_add_u32 v{vSCW}, {2*RS}, v{vSCW}
        s_add_u32 s{sIT}, s{sIT}, 1
        s_cmp_lt_u32 s{sIT}, {NITK}
        s_cbranch_scc1 L_kloop""")
        for s in range(D, R1):
            load(s)
        self.stamp(2, vA)
        tr()
        F = 32
        a(f"""v_lshl_add_u32 v{vT2}, v{vT1}, 4, v{vSCR}
        s_memrealtime s[46:47]
        s_waitcnt lgkmcnt(0)
        ds_read_b128 v[40:43], v{vT2}
        s_waitcnt lgkmcnt(0)""")
        for i in range(4):
            a(f"v_lshlrev_b32 v{F+2*i}, 16, v{40+i}\nv_and_b32 v{F+2*i+1}, 0xffff0000, v{40+i}")
        a(f"""v_max3_f32 v{vA0}, v{F}, v{F+1}, v{F+2}
        v_max3_f32 v{vA0}, v{vA0}, v{F+3}, v{F+4}
        v_max3_f32 v{vA0}, v{vA0}, v{F+5}, v{F+6}
        v_max_f32 v{vA0}, v{vA0}, v{F+7}""")
        self.row_reduce("v_max_f32", vA0)
        self.swap_reduce("v_max_f32", vA0, vT3, 16)
        self.swap_reduce("v_max_f32", vA0, vT3, 32)
        for i in range(8):
            a(f"v_sub_f32 v{F+i}, v{F+i}, v{vA0}\nv_mul_f32 v{F+i}, {LOG2E}, v{F+i}")
        for i in range(8):
            a(f"v_exp_f32 v{F+i}, v{F+i}")
        a("s_nop 0")
        a(f"v_add_f32 v{vA1}, v{F}, v{F+1}")
        for i in range(2, 8):
            a(f"v_add_f32 v{vA1}, v{vA1}, v{F+i}")
        for i in range(4):
            a(f"v_cvt_pk_bf16_f32 v{40+i}, v{F+2*i}, v{F+2*i+1}")
        a(f"ds_write_b128 v{vT2}, v[40:43]")
        self.row_reduce("v_add_f32", vA1)
        self.swap_reduce("v_add_f32", vA1, vT3, 16)
        self.swap_reduce("v_add_f32", vA1, vT3, 32)
        a("s_waitcnt lgkmcnt(0)")
        def pread(n):
            if n == 2: a(f"ds_read_b64 v[{vP}:{vP+1}], v{vSCR}")
            elif n == 3: a(f"ds_read_b32 v{vP}, v{vSCR}\nds_read_b32 v{vP+1}, v{vSCR} offset:4\nds_read_b32 v{vP+2}, v{vSCR} offset:8")
            else: raise ValueError(n)
            a(f"v_add_u32 v{vSCR}, {4*n}, v{vSCR}")
        pread(R1 // 2)
        self.tag(44, vA0, vTG)
        self.tag(45, vA1, vTG)
        if self.diagx:
            a(f"s_getreg_b32 s9, hwreg(HW_REG_XCC_ID, 0, 4)\ns_lshl_b32 s9, s9, 8\nv_or_b32 v44, s9, v44")
        a(f"""v_mov_b32 v46, s{sT}
        v_mov_b32 v47, s46
        s_lshl_b32 s9, s3, 4
        v_mov_b32 v{vA0}, s9
        s_mov_b64 exec, 1
        ds_write_b128 v{vA0}, v[44:47] offset:{L_STL}
        s_mov_b64 exec, -1""")
        for i in range(12):
            a(f"v_mov_b32 v{vACC+i}, 0")
        a(f"s_mov_b32 s{sIT}, 0\ns_waitcnt lgkmcnt(0)")
        a(f"""v_and_b32 v{vT0}, 7, v{vL}
        v_mul_u32_u24 v{vT0}, {OS}, v{vT0}
        v_lshrrev_b32 v{vT1}, 4, v{vL}
        v_lshl_add_u32 v{vT0}, v{vT1}, 4, v{vT0}
        v_bfe_u32 v{vT2}, v{vL}, 3, 1
        v_mul_u32_u24 v{vT3}, 192, v{vT2}
        v_add_u32 v{vT0}, v{vT0}, v{vT3}
        v_mul_u32_u24 v18, 0xaaaa, v{vT2}
        v_add_u32 v18, 0x4444, v18
        v_lshl_or_b32 v18, v18, 16, v18
        v_and_b32 v{vT2}, 1, v{vT1}
        v_and_b32 v{vT3}, 31, v{vL}
        v_lshlrev_b32 v{vT3}, 2, v{vT3}
        v_lshlrev_b32 v{vT2}, 3, v{vT2}
        v_lshlrev_b32 v{vT1}, 8, v{vT1}
        v_bfe_u32 v{vA0}, v{vL}, 3, 1
        v_lshl_add_u32 v{vT1}, v{vA0}, 4, v{vT1}
        v_and_b32 v{vA0}, 7, v{vL}
        v_mul_u32_u24 v{vA0}, {WXS}, v{vA0}
        s_lshl_b32 s9, s3, 6
        s_add_u32 s9, s9, {L_WX}
        v_add3_u32 v{vT1}, v{vT1}, v{vA0}, s9
        s_mul_i32 s9, s7, 2560
        s_lshl_b32 s11, s3, 7
        s_add_u32 s9, s9, s11
        s_add_u32 s9, s9, {P_OFF + 2048}
        s_mov_b32 s67, s9""")
        self.stamp(3, 60)
        tr()

        def vmf(g, slot):
            A = vA + 4 * ((g + 1) & 1)
            for j in range(3):
                self.mfma(vACC + 4 * j, A, RING + (slot * 3 + j) * 4, vACC + 4 * j)
        def vA_(g):
            self.buildA(vA + 4 * ((g + 1) & 1), vP + g // 2, g & 1, vSEL)
        NE, DE = self.NE, self.DE
        RSV = 6
        VD_ = self.VD
        sUSED, sTGT = 44, 45
        vZ, vB = 62, 63
        assert (64 - R1 - NE) % RSV == 0 and NE == 12
        NITV = (64 - R1 - NE) // RSV
        def prog(val):
            L = self.lab("pg")
            a(f"""s_cmp_lg_u32 s3, 0
            s_cbranch_scc1 {L}
            v_mov_b32 v{vB}, {val}
            v_lshlrev_b32 v60, 2, v{vB}
            v_mov_b32 v61, s46
            ds_write_b32 v60, v61 offset:{L_TM}
            ds_write_b32 v{vZ}, v{vB} offset:{L_PROG}
            {L}:""")
        a(f"v_mov_b32 v{vZ}, 0\ns_mov_b32 s{sUSED}, 0\ns_mov_b32 s{sTGT}, 0")
        prog(1)
        issued = 0
        for g in range(R1):
            vA_(g)
            if g == R1 - 1:
                pread(3)
                a(f"ds_read_b32 v{vB}, v{vZ} offset:{L_BOOST}")
            if g >= 4 - VD_:
                a(f"s_waitcnt vmcnt(3)")
                load((R1 + issued) % RSV)
                issued += 1
            else:
                a(f"s_waitcnt vmcnt({3*(R1 - g - 1)})\ns_nop 0")
            vmf(g, g)
        a(f"""L_vloop:
        s_memrealtime s[46:47]
        s_waitcnt lgkmcnt(0)
        v_readfirstlane_b32 s9, v{vB}
        s_sext_i32_i16 s11, s9
        s_cmp_lg_u32 s9, s{sTGT}
        s_cselect_b32 s{sUSED}, s11, s{sUSED}
        s_mov_b32 s{sTGT}, s9
        s_add_u32 s9, s{sIT}, 2""")
        prog("s9")
        tr()
        for s in range(RSV):
            slot = (R1 + s) % RSV
            vA_(s)
            if s == RSV - 1:
                pread(3)
                a(f"ds_read_b32 v{vB}, v{vZ} offset:{L_BOOST}")
            if self.brd == 3 and s == 2:
                a(f"ds_read_b32 v{vB}, v{vZ} offset:{L_BOOST}")
            if self.brd == 3 and s == 3:
                a(f"""s_waitcnt lgkmcnt(0)
                v_readfirstlane_b32 s9, v{vB}
                s_sext_i32_i16 s11, s9
                s_cmp_lg_u32 s9, s{sTGT}
                s_cselect_b32 s{sUSED}, s11, s{sUSED}
                s_mov_b32 s{sTGT}, s9""")
            throttle(VD_)
            load((slot + VD_) % RSV)
            vmf(s, slot)
        a(f"""s_add_u32 s{sIT}, s{sIT}, 1
        s_cmp_lt_u32 s{sIT}, {NITV}
        s_cbranch_scc1 L_vloop""")
        slot_of = lambda e: (R1 + e) % RSV if e < VD_ else e + 6 - VD_
        nxt = VD_
        a(f"""s_waitcnt lgkmcnt(0)
        v_readfirstlane_b32 s9, v{vB}
        s_sext_i32_i16 s11, s9
        s_cmp_lg_u32 s9, s{sTGT}
        s_cselect_b32 s{sUSED}, s11, s{sUSED}""")
        for e in range(NE):
            if e == 6:
                a("s_waitcnt lgkmcnt(0)")
            if e % 6 == 0:
                tr()
            vA_(e % 6)
            if e == 5:
                pread(3)
            if e == 7 and self.spre:
                a(f"""L_wxw:
                ds_read_b64 v[60:61], v{vZ} offset:{L_WXOK}
                s_waitcnt lgkmcnt(0)
                v_and_b32 v60, v60, v61
                s_nop 0
                v_readfirstlane_b32 s9, v60
                s_cmp_eq_u32 s9, 0
                s_cbranch_scc1 L_wxw""")
                for kp in range(3):
                    for hl in range(2):
                        for k2 in range(2):
                            r = RING + (2 * kp + hl) * 8 + 4 * k2
                            a(f"ds_read_b128 v[{r}:{r+3}], v{vT1} offset:{8*WXS*(2*kp+k2) + 32*hl}")
            if e < self.NB:
                throttle(VD_)
                load(slot_of(nxt)); nxt += 1
            else:
                a(f"s_waitcnt vmcnt({3*(nxt - e - 1)})")
                n0 = nxt
                while nxt < NE and nxt - e - 1 < DE:
                    load(slot_of(nxt)); nxt += 1
                if nxt == n0:
                    a("s_nop 0")
            vmf(e % 6, slot_of(e))
        a("s_nop 3\ns_mov_b32 exec_lo, 0x00ff00ff\ns_mov_b32 exec_hi, 0xff00ff00")
        OC = 12
        for j in range(3):
            a(f"""v_cvt_pk_bf16_f32 v{OC+2*j}, v{vACC+4*j}, v{vACC+4*j+1}
            v_cvt_pk_bf16_f32 v{OC+2*j+1}, v{vACC+4*j+2}, v{vACC+4*j+3}
            ds_write2_b32 v{vOW}, v{OC+2*j}, v{OC+2*j+1} offset0:{16*j} offset1:{16*j+48}""")
        a("s_mov_b64 exec, -1")
        for r in (20, 21, 22, 23, 52, 53, 54, 55):
            a(f"v_mov_b32 v{r}, 0")
        a("s_waitcnt lgkmcnt(0)")
        self.stamp(4, 56)
        tr()
        a("s_barrier")
        AA = RING + 12 * W
        BB = AA + 24
        assert BB + 48 <= 256
        D0, D1, SCL = 20, 52, 40
        if self.spre:
            BB = RING
            for kp in range(3):
                a(f"ds_read_b128 v[{AA+4*kp}:{AA+4*kp+3}], v{vT0} offset:{L_O + 64*kp}")
            a(f"ds_read_b64 v[{SCL}:{SCL+1}], v{vT2} offset:{L_SCALE}")
            for kp in range(3):
                a(f"s_waitcnt lgkmcnt({3-kp})")
                self.smf(D0, AA + 4 * kp, BB + (2 * kp) * 8, 18)
                self.smf(D1, AA + 4 * kp, BB + (2 * kp + 1) * 8, 18)
        else:
            for kp in range(3):
                a(f"ds_read_b128 v[{AA+4*kp}:{AA+4*kp+3}], v{vT0} offset:{L_O + 64*kp}")
                for hl in range(2):
                    for k2 in range(2):
                        r = BB + (2 * kp + hl) * 8 + 4 * k2
                        a(f"ds_read_b128 v[{r}:{r+3}], v{vT1} offset:{8*WXS*(2*kp+k2) + 32*hl}")
                if kp == 1:
                    a("s_waitcnt lgkmcnt(5)")
            a(f"ds_read_b64 v[{SCL}:{SCL+1}], v{vT2} offset:{L_SCALE}")
            for kp in range(3):
                a(f"s_waitcnt lgkmcnt({5*(2-kp)+1})")
                self.smf(D0, AA + 4 * kp, BB + (2 * kp) * 8, 18)
                self.smf(D1, AA + 4 * kp, BB + (2 * kp + 1) * 8, 18)
        a("s_waitcnt lgkmcnt(0)\ns_nop 7")
        for D in (D0, D1):
            a(f"""v_add_f32 v{D}, v{D}, v{D+1}
            v_add_f32 v{D+2}, v{D+2}, v{D+3}
            v_mul_f32 v{D}, v{D}, v{SCL}
            v_fmac_f32 v{D}, v{D+2}, v{SCL+1}""")
        a(f"""s_nop 1
        v_permlane16_swap_b32 v{D0}, v{D1}
        s_nop 1
        v_add_f32 v{D0}, v{D0}, v{D1}""")
        self.swap_reduce("v_add_f32", D0, D1, 32)
        self.tag(D0, D0, vTG)
        if self.pq:
            a("s_endpgm")
        if self.wide:
            a(f"""s_mov_b32 exec_hi, 0
            s_nop 0
            v_mov_b32_dpp v{D0+1}, v{D0} quad_perm:[1,1,1,1] row_mask:0xf bank_mask:0xf
            v_mov_b32_dpp v{D0+2}, v{D0} quad_perm:[2,2,2,2] row_mask:0xf bank_mask:0xf
            v_mov_b32_dpp v{D0+3}, v{D0} quad_perm:[3,3,3,3] row_mask:0xf bank_mask:0xf
            s_mov_b32 exec_lo, 0x11111111
            buffer_store_dwordx4 v[{D0}:{D0+3}], v{vT3}, s[56:59], s67 offen {self.pst}
            s_mov_b64 exec, -1""")
        else:
            a(f"""s_mov_b32 exec_hi, 0
            buffer_store_dword v{D0}, v{vT3}, s[56:59], s67 offen {self.pst}
            s_mov_b64 exec, -1""")
        self.stamp(5, 12)
        tr()
        if self.trace:
            a(f"""s_sleep 127
            s_lshl_b32 s9, s2, 2
            s_add_u32 s9, s9, s3
            s_lshl_b32 s9, s9, 8
            s_add_u32 s9, s9, {3 << 20}
            v_lshlrev_b32 v12, 2, v0
            buffer_store_dword v{vTR}, v12, s[56:59], s9 offen""")
        for i, r in enumerate(self.fs):
            self.stamp(6 + i, 12, src=r)
        a("s_endpgm")

    def gen_H(self):
        self.cls = "H"
        a = self.a
        vL = 0
        vT0, vT1, vT2, vT3, vT4, vT5, vW = 1, 2, 3, 4, 5, 6, 7
        vX = 8
        vSEL = 18
        vTG = 26
        vCK = 27
        vF = 28
        vA, vACC = 28, 36
        vE = 52
        TI = 64
        if self.hprio:
            a(f"s_setprio {self.hprio}")
        a("s_sub_u32 s3, s3, 4")
        a(f"""s_and_b32 s14, s10, 7
        s_lshl_b32 s52, s14, 5
        s_add_u32 s52, s52, s4
        s_cmp_ge_u32 s14, 6
        s_cselect_b32 s52, 255, s52
        s_cmp_eq_u32 s3, 3
        s_cbranch_scc1 L_h3
        v_lshrrev_b32 v{vT0}, 5, v{vL}
        v_mul_u32_u24 v{vT0}, 1280, v{vT0}
        v_and_b32 v{vT1}, 31, v{vL}
        v_lshl_add_u32 v{vT0}, v{vT1}, 3, v{vT0}
        v_lshrrev_b32 v{vT1}, 3, v{vL}
        v_and_b32 v{vT2}, 7, v{vL}
        s_lshl_b32 s53, s4, 1
        s_add_u32 s53, s53, s14
        s_sub_u32 s53, s53, 6
        s_lshl_b32 s53, s53, 1
        s_add_u32 s53, s53, s3
        s_add_u32 s9, s52, 128
        s_cmp_eq_u32 s3, 2
        s_cselect_b32 s53, s9, s53
        s_cselect_b32 s9, 7, s14
        s_waitcnt lgkmcnt(0)""")
        self.srd(60, 16, 2560)
        for t in range(5):
            a(f"buffer_load_dwordx2 v[{vX+2*t}:{vX+2*t+1}], v{vT0}, s[60:63], 0 offen offset:{256*t}")
        a(f"""s_mov_b32 s47, 0x20000
        s_cmp_ge_u32 s9, 6
        s_cbranch_scc1 L_jgu
        s_mov_b32 s44, s22
        s_mov_b32 s45, s23
        s_mov_b32 s46, {640*12288}
        s_mov_b32 s54, 12288
        s_and_b32 s55, s14, 1
        s_lshl_b32 s55, s55, 1
        s_add_u32 s55, s55, s3
        s_lshr_b32 s11, s14, 1
        s_mul_i32 s64, s4, 384
        s_lshl_b32 s9, s11, 7
        s_add_u32 s64, s64, s9
        s_lshl_b32 s66, s4, 2
        s_add_u32 s66, s66, s55
        s_mul_i32 s66, s66, 1536
        s_lshl_b32 s9, s11, 8
        s_add_u32 s66, s66, s9
        s_add_u32 s66, s66, {QX_OFF}
        s_mov_b32 s13, 768
        s_branch L_jd
        L_jgu:
        s_bitcmp1_b32 s53, 2
        s_cselect_b32 s44, s32, s30
        s_cselect_b32 s45, s33, s31
        s_mov_b32 s46, {640*3072}
        s_mov_b32 s54, 3072
        s_and_b32 s55, s53, 3
        s_lshr_b32 s64, s53, 3
        s_lshl_b32 s64, s64, 7
        s_lshl_b32 s66, s53, 9
        s_add_u32 s66, s66, {GU_OFF}
        s_mov_b32 s13, 256
        L_jd:
        s_mul_i32 s9, s54, 20
        v_mul_lo_u32 v{vW}, v{vT1}, s9
        v_lshl_add_u32 v{vW}, v{vT2}, 4, v{vW}
        s_mul_i32 s9, s55, 160
        s_mul_i32 s9, s9, s54
        s_add_u32 s9, s9, s64
        v_add_u32 v{vW}, s9, v{vW}""")
        def job_loads():
            a("s_mov_b32 s9, 0")
            for G in range(20):
                a(f"buffer_load_dwordx4 v[{TI+4*G}:{TI+4*G+3}], v{vW}, s[44:47], s9 offen {self.wf}")
                if G < 19:
                    a("s_add_u32 s9, s9, s54")
        a("s_cmp_eq_u32 s3, 2\ns_cbranch_scc1 L_nj1")
        job_loads()
        a("L_nj1:")
        self.epoch_load()
        self.srd(56, 40, WS_SRD)
        self.selectors(vL, vSEL, vT3, vT4, vT5)
        a("s_cmp_lg_u32 s3, 2\ns_cbranch_scc1 L_nx2\ns_waitcnt vmcnt(0)\nL_nx2:")
        a(f"s_mov_b32 s9, 0x3f803f80\ns_waitcnt vmcnt(20)")
        self.stamp(11, 60)
        for i in range(10):
            c = "0" if i == 0 else f"v{vT3}"
            a(f"v_dot2_f32_bf16 v{vT3}, v{vX+i}, s9, {c}")
        for i in range(2):
            a(f"v_lshlrev_b32 v{vF+2*i}, 16, v{vX+i}\nv_and_b32 v{vF+2*i+1}, 0xffff0000, v{vX+i}")
        k = 2
        for st in (1, 2, 4, 8):
            self.dpp("v_add_f32", vT3, vT3, vT3, f"row_ror:{st}")
            a(f"v_lshlrev_b32 v{vF+2*k}, 16, v{vX+k}\nv_and_b32 v{vF+2*k+1}, 0xffff0000, v{vX+k}")
            k += 1
        a(f"v_mov_b32 v{vT4}, v{vT3}")
        a(f"v_lshlrev_b32 v{vF+2*k}, 16, v{vX+k}\nv_and_b32 v{vF+2*k+1}, 0xffff0000, v{vX+k}")
        k += 1
        a(f"v_permlane16_swap_b32 v{vT3}, v{vT4}")
        while k < 10:
            a(f"v_lshlrev_b32 v{vF+2*k}, 16, v{vX+k}\nv_and_b32 v{vF+2*k+1}, 0xffff0000, v{vX+k}")
            k += 1
        a(f"v_add_f32 v{vT3}, v{vT3}, v{vT4}")
        def div640(v, t):
            a(f"""v_mul_f32 v{t}, {f32(1/640)}, v{v}
            v_fmac_f32 v{v}, {f32(-640.0)}, v{t}
            v_fmac_f32 v{t}, {f32(1/640)}, v{v}""")
        M2 = vE
        D2 = vE + 2
        Q2 = vE + 4
        div640(vT3, M2)
        a(f"v_mov_b32 v{M2+1}, v{M2}")
        for i in range(10):
            a(f"v_pk_add_f32 v[{D2}:{D2+1}], v[{vF+2*i}:{vF+2*i+1}], v[{M2}:{M2+1}] neg_lo:[0,1] neg_hi:[0,1]")
            if i == 0:
                a(f"v_pk_mul_f32 v[{Q2}:{Q2+1}], v[{D2}:{D2+1}], v[{D2}:{D2+1}]")
            else:
                a(f"v_pk_fma_f32 v[{Q2}:{Q2+1}], v[{D2}:{D2+1}], v[{D2}:{D2+1}], v[{Q2}:{Q2+1}]")
        a(f"v_add_f32 v{vT4}, v{Q2}, v{Q2+1}")
        self.rbf(M2)
        a(f"v_mov_b32 v{M2+1}, v{M2}")
        def xc(i):
            a(f"""v_pk_add_f32 v[{vF+2*i}:{vF+2*i+1}], v[{vF+2*i}:{vF+2*i+1}], v[{M2}:{M2+1}] neg_lo:[0,1] neg_hi:[0,1]
            v_cvt_pk_bf16_f32 v{vF+2*i+1}, v{vF+2*i}, v{vF+2*i+1}
            v_lshlrev_b32 v{vF+2*i}, 16, v{vF+2*i+1}
            v_and_b32 v{vF+2*i+1}, 0xffff0000, v{vF+2*i+1}""")
        k = 0
        for st in (1, 2, 4, 8):
            self.dpp("v_add_f32", vT4, vT4, vT4, f"row_ror:{st}")
            xc(k); k += 1
        a(f"v_mov_b32 v{vT5}, v{vT4}")
        xc(k); k += 1
        a(f"v_permlane16_swap_b32 v{vT4}, v{vT5}")
        xc(k); k += 1
        a(f"v_add_f32 v{vT4}, v{vT4}, v{vT5}")
        div640(vT4, vT5)
        self.rbf(vT5)
        a(f"v_add_f32 v{vT5}, {f32(1e-5)}, v{vT5}")
        self.rbf(vT5)
        a(f"v_sqrt_f32 v{vT5}, v{vT5}")
        xc(k); k += 1
        self.rbf(vT5)
        a(f"v_rcp_f32 v{D2}, v{vT5}")
        xc(k); k += 1
        a(f"v_mov_b32 v{D2+1}, v{D2}\nv_mov_b32 v{Q2}, v{vT5}\nv_mov_b32 v{Q2+1}, v{vT5}")
        while k < 10:
            xc(k); k += 1
        R2 = vE + 6
        for i in range(10):
            f = vF + 2 * i
            a(f"""v_pk_mul_f32 v[{R2}:{R2+1}], v[{f}:{f+1}], v[{D2}:{D2+1}]
            v_pk_fma_f32 v[{f}:{f+1}], v[{R2}:{R2+1}], v[{Q2}:{Q2+1}], v[{f}:{f+1}] neg_lo:[1,0,0] neg_hi:[1,0,0]
            v_pk_fma_f32 v[{R2}:{R2+1}], v[{f}:{f+1}], v[{D2}:{D2+1}], v[{R2}:{R2+1}]
            v_cvt_pk_bf16_f32 v{vX+i}, v{R2}, v{R2+1}""")
            if i & 1:
                t = i // 2
                a(f"ds_write_b64 v{vT0}, v[{vX+2*t}:{vX+2*t+1}] offset:{L_XN + 256*t}")
        a("s_waitcnt lgkmcnt(0)")
        self.epoch_use(vTG)
        self.stamp(15, 60, src=48)
        self.stamp(1, 60)
        a(f"""s_cmp_lg_u32 s3, 2
        s_cbranch_scc1 L_job
        s_cmp_ge_u32 s52, {0 if self.nomoe else 64}
        s_cbranch_scc1 L_bar1""")
        job_loads()
        a("L_job:")
        C1 = 44
        a(f"""v_mul_u32_u24 v{vT3}, 40, v{vT1}
        s_mul_i32 s9, s55, 320
        v_add_u32 v{vT3}, s9, v{vT3}""")
        for bb, base in ((0, vX), (1, C1)):
            for t in range(5):
                a(f"ds_read_b64 v[{base+2*t}:{base+2*t+1}], v{vT3} offset:{L_XN + 1280*bb + 8*t}")
        a(f"""v_lshrrev_b32 v{vT4}, 5, v{vL}
        v_mul_lo_u32 v{vT4}, v{vT4}, s13
        v_lshl_add_u32 v{vT4}, v{vT2}, 5, v{vT4}
        v_bfe_u32 v{vT5}, v{vL}, 4, 1
        v_lshl_add_u32 v{vT4}, v{vT5}, 4, v{vT4}
        s_waitcnt lgkmcnt(0)""")
        self.job_compute(20, vX, C1, TI, vA, vACC, vSEL, vTG, vT4, "s66", True)
        a(f"s_setprio {self.hprio1}\ns_cmp_eq_u32 s3, 2\ns_cbranch_scc1 L_bar1")
        self.srd(44, 24, 0 if self.nowo else 6144 * 1280)
        a(f"""v_lshrrev_b32 v{vT3}, 4, v{vL}
        v_mul_u32_u24 v{vT3}, {8*1280}, v{vT3}
        v_and_b32 v{vT4}, 15, v{vL}
        v_lshl_add_u32 v{vT3}, v{vT4}, 4, v{vT3}
        s_mul_i32 s9, s4, {192*1280}
        s_mul_i32 s10, s3, {96*1280}
        s_add_u32 s9, s9, s10
        s_add_u32 s9, s9, 1024
        v_add_u32 v{vT3}, s9, v{vT3}
        s_mul_i32 s9, s3, {24*WXS}
        s_add_u32 s9, s9, {L_WX}
        v_lshlrev_b32 v{vT4}, 4, v{vL}
        v_add_u32 v{vT4}, s9, v{vT4}
        s_mov_b32 s14, 0x05040100
        s_mov_b32 s15, 0x07060302""")
        for kk in range(3):
            if kk == self.pre:
                a("s_barrier")
            sr, d = TI + 64 * kk, TI + 64 * kk + 32
            for e in range(8):
                if e % 4 == 0:
                    a(f"s_mov_b32 s9, {(32*kk + e)*1280}")
                a(f"buffer_load_dwordx4 v[{sr+4*e}:{sr+4*e+3}], v{vT3}, s[44:47], s9 offen offset:{(e%4)*1280} {self.wof}")
            for t in range(4):
                a(f"s_waitcnt vmcnt({6-2*t})")
                for dd in range(4):
                    a(f"v_perm_b32 v{d+(2*dd)*4+t}, v{sr+(2*t+1)*4+dd}, v{sr+(2*t)*4+dd}, s14")
                    a(f"v_perm_b32 v{d+(2*dd+1)*4+t}, v{sr+(2*t+1)*4+dd}, v{sr+(2*t)*4+dd}, s15")
            for c in range(8):
                a(f"ds_write_b128 v{vT4}, v[{d+4*c}:{d+4*c+3}] offset:{(8*kk + c)*WXS}")
        a(f"""s_lshl_b32 s9, s3, 2
        v_mov_b32 v{vT3}, s9
        v_mov_b32 v{vT4}, 1
        ds_write_b32 v{vT3}, v{vT4} offset:{L_WXOK}
        s_waitcnt lgkmcnt(0)
        s_branch L_h1""")
        a("L_h3:\nv_mov_b32 v10, 0\nv_mov_b32 v11, 0\ns_waitcnt lgkmcnt(0)")
        self.epoch_load()
        self.srd(56, 40, WS_SRD)
        a(f"""v_lshlrev_b32 v{vT3}, 4, v{vL}
        v_lshlrev_b32 v{vT4}, 3, v{vL}
        s_mul_i32 s9, s4, {4*1536}
        s_mul_i32 s11, s5, 768
        s_add_u32 s9, s9, s11
        s_add_u32 s70, s9, {QX_OFF}
        s_add_u32 s71, s70, 3072
        s_waitcnt lgkmcnt(0)""")
        self.epoch_use(vTG)
        a(f"""v_mov_b32 v{vT5}, 0
        s_not_b32 s9, s{sT}
        v_mov_b32 v{vT0}, s9
        v_lshlrev_b32 v{vT1}, 2, v{vL}
        ds_write_b32 v{vT5}, v{vT5} offset:{L_PROG}
        ds_write_b32 v{vT5}, v{vT5} offset:{L_BOOST}
        ds_write_b32 v{vT5}, v{vT5} offset:{L_WXOK}
        ds_write_b32 v{vT5}, v{vT5} offset:{L_WXOK + 4}
        s_mov_b64 exec, 0xffff
        ds_write_b32 v{vT1}, v{vT0} offset:{L_STL}
        s_mov_b64 exec, -1""")
        q = self.qsleep
        while q > 0:
            a(f"s_sleep {min(q, 127)}")
            q -= 127
        self.mpoll([(TI + 4 * k, f"buffer_load_dwordx4 v[{TI+4*k}:{TI+4*k+3}], v{vT3}, s[56:59], s{70+k//2} offen offset:{1536*(k&1)} sc1") for k in range(4)],
                   vTG, vCK, self.qsleep2, mask=("-1", "0xffff"))
        self.sum_quads(TI, 4)
        a(f"""s_mov_b32 exec_hi, 0xffff
        v_cvt_pk_bf16_f32 v{TI}, v{TI}, v{TI+1}
        v_cvt_pk_bf16_f32 v{TI+1}, v{TI+2}, v{TI+3}
        ds_write_b64 v{vT4}, v[{TI}:{TI+1}] offset:{L_QB}
        s_mov_b64 exec, -1
        s_waitcnt lgkmcnt(0)""")
        self.stamp(2, 60)
        a(f"""L_bar1:
        s_setprio {self.hprio1}
        s_barrier
        L_h1:""")
        a(f"v_and_b32 v{vT1}, 15, v{vL}\nv_lshrrev_b32 v{vT2}, 4, v{vL}")
        self.srd(44, 24, 0 if self.nowo else 6144 * 1280)
        a(f"""v_mul_u32_u24 v{vW}, {8*1280}, v{vT2}
        s_mul_i32 s9, s4, {192*1280}
        v_add_u32 v{vW}, s9, v{vW}
        v_lshl_add_u32 v{vW}, v{vT1}, 4, v{vW}
        s_lshl_b32 s9, s3, 8
        v_add_u32 v{vW}, s9, v{vW}
        s_mov_b32 s14, 0x05040100
        s_mov_b32 s15, 0x07060302""")
        self.stamp(3, 60)
        def REG(k): return 32 + 32 * k
        for K in (5, 4, 3, 2, 1, 0):
            if K == 3:
                a(f"""s_cmp_lg_u32 s3, 2
                s_cbranch_scc1 L_nodn
                s_sub_u32 s52, s52, 64
                s_cmp_ge_u32 s52, {0 if self.nomoe else 120}
                s_cbranch_scc1 L_nodn""")
                self.gen_dn(vL, vT3, vT4, vT5, vSEL, vTG, vCK, TI)
                self.stamp(9, 60)
                a("L_nodn:")
            for e in range(8):
                if e % 4 == 0:
                    a(f"s_mov_b32 s9, {(32*K + e)*1280}")
                r = REG(0) + 4 * e
                a(f"buffer_load_dwordx4 v[{r}:{r+3}], v{vW}, s[44:47], s9 offen offset:{(e%4)*1280} {self.wof}")
                if self.wobatch == 4 and e == 3:
                    a("s_waitcnt vmcnt(0)")
                    if self.wosleep:
                        a(f"s_sleep {self.wosleep}")
                if self.wobatch == 2 and e in (1, 3, 5):
                    a("s_waitcnt vmcnt(0)")
            s, d = REG(0), 64 + 64 * (K // 2) + 4 * (K & 1)
            for t in range(4):
                a(f"s_waitcnt vmcnt({6-2*t})")
                for dd in range(4):
                    a(f"v_perm_b32 v{d+(2*dd)*8+t}, v{s+(2*t+1)*4+dd}, v{s+(2*t)*4+dd}, s14")
                    a(f"v_perm_b32 v{d+(2*dd+1)*8+t}, v{s+(2*t+1)*4+dd}, v{s+(2*t)*4+dd}, s15")
        vG, vXC, vOUTA, vPA, vSC = 8, 9, 10, 11, 12
        vAR, vST = 14, 15
        Wk = 32
        self.stamp(4, 60)
        a(f"""s_cmp_lg_u32 s3, 0
        s_cbranch_scc1 L_noep
        s_cmp_lg_u32 s2, 0
        s_cbranch_scc1 L_noep""")
        Lc, Lcd = self.lab("c0"), self.lab("c0d")
        a(f"""s_mov_b32 s12, {self.poll_max}
        v_lshlrev_b32 v{Wk+8}, 6, v{vL}
        v_mov_b32 v{Wk+9}, s{sT}
        s_mov_b32 s9, {ST_OFF + 8}
        s_mov_b32 s10, {ST_OFF + 8 + 4096}
        s_mov_b32 s11, {ST_OFF + 8 + 8192}
        s_mov_b32 s13, {ST_OFF + 8 + 12288}
        {Lc}:
        s_sleep 127
        buffer_load_dword v{Wk}, v{Wk+8}, s[56:59], s9 offen sc1
        buffer_load_dword v{Wk+1}, v{Wk+8}, s[56:59], s10 offen sc1
        buffer_load_dword v{Wk+2}, v{Wk+8}, s[56:59], s11 offen sc1
        buffer_load_dword v{Wk+3}, v{Wk+8}, s[56:59], s13 offen sc1
        s_waitcnt vmcnt(0)""")
        self.chk4(vCK, Wk, Wk + 9, first=True, n=4)
        a(f"""v_cmp_ne_u32 vcc, 0, v{vCK}
        s_cbranch_vccz {Lcd}
        s_sub_u32 s12, s12, 1
        s_cmp_gt_u32 s12, 0
        s_cbranch_scc1 {Lc}
        {Lcd}:
        v_mov_b32 v{Wk}, 0
        s_mov_b32 s9, {EP_OFF}
        s_mov_b64 exec, 1
        buffer_store_dword v{Wk+9}, v{Wk}, s[56:59], s9 offen sc1
        s_mov_b64 exec, -1
        L_noep:""")
        a("s_cmp_lg_u32 s3, 3\ns_cbranch_scc1 L_nostat")
        if self.nopoll:
            a("s_branch L_nostat")
        vZ0 = Wk + 16
        L, Ld = self.lab("cw"), self.lab("cwd")
        a(f"""v_mov_b32 v{vZ0}, 0
        v_lshlrev_b32 v{Wk+4}, 4, v{vL}
        s_mov_b32 s12, {self.poll_max * 16}
        s_mov_b64 exec, 15
        {L}:
        ds_read_b128 v[{Wk}:{Wk+3}], v{Wk+4} offset:{L_STL}
        s_waitcnt lgkmcnt(0)
        v_cmp_ne_u32 vcc, s{sT}, v{Wk+2}
        s_cbranch_vccz {Ld}
        s_sleep 8
        s_sub_u32 s12, s12, 1
        s_cmp_gt_u32 s12, 0
        s_cbranch_scc1 {L}
        {Ld}:
        s_lshl_b32 s9, s7, 6
        s_add_u32 s9, s9, {ST_OFF}
        buffer_store_dwordx4 v[{Wk}:{Wk+3}], v{Wk+4}, s[56:59], s9 offen sc1
        s_mov_b64 exec, -1
        s_sleep {self.cdelay[0]}""")
        Ls, Lsd = self.lab("st"), self.lab("std")
        a(f"""v_lshlrev_b32 v{Wk+4}, 3, v{vT2}
        v_and_b32 v{Wk+5}, {self.mix}, v{vT2}
        v_lshl_add_u32 v{Wk+4}, v{Wk+5}, 2, v{Wk+4}
        v_add_u32 v{Wk+4}, s4, v{Wk+4}
        v_and_b32 v{Wk+4}, 31, v{Wk+4}
        v_lshlrev_b32 v{Wk+4}, 8, v{Wk+4}
        v_lshl_add_u32 v{Wk+4}, v{vT1}, 4, v{Wk+4}
        s_lshl_b32 s9, s5, 13
        s_add_u32 s9, s9, {ST_OFF}
        v_mov_b32 v{Wk+5}, s{sT}
        s_mov_b32 s12, {self.poll_max}""")
        if not self.ctl:
            a("s_mov_b64 exec, 0xffff")
        a(f"""{Ls}:
        buffer_load_dwordx4 v[{Wk}:{Wk+3}], v{Wk+4}, s[56:59], s9 offen sc1
        s_memrealtime s[10:11]
        s_waitcnt vmcnt(0) lgkmcnt(0)""")
        self.chk4(vCK, Wk, vTG, first=True, n=2)
        a(f"""v_and_b32 v{vCK}, 0xff, v{vCK}
        v_bitop3_b32 v{vCK}, v{Wk+2}, v{Wk+5}, v{vCK} bitop3:0xbe
        v_cmp_ne_u32 vcc, 0, v{vCK}
        s_and_b32 s13, vcc_lo, 0xffff
        s_cbranch_scc0 {Lsd}
        s_sleep {self.stsleep}
        s_sub_u32 s12, s12, 1
        s_cmp_gt_u32 s12, 0
        s_cbranch_scc1 {Ls}
        {Lsd}:
        s_mov_b64 exec, -1""")
        if self.ctl:
            a(f"""v_sub_u32 v{Wk+6}, s10, v{Wk+3}
            v_cvt_f32_i32 v{Wk+6}, v{Wk+6}
            v_cndmask_b32 v{Wk+6}, v{Wk+6}, 0, vcc
            s_lshl_b32 s9, s6, 2
            v_subrev_u32 v{Wk+7}, s9, v{vL}
            v_cmp_gt_u32 vcc, 4, v{Wk+7}
            v_mul_f32 v{Wk+7}, {f32(-15.0)}, v{Wk+6}
            s_nop 0
            v_cndmask_b32 v{Wk+6}, v{Wk+6}, v{Wk+7}, vcc""")
            self.row_reduce("v_add_f32", Wk + 6)
            self.swap_reduce("v_add_f32", Wk + 6, Wk + 7, 16)
            self.swap_reduce("v_add_f32", Wk + 6, Wk + 7, 32)
            a(f"""v_mul_f32 v{Wk+6}, {f32(1/64.0)}, v{Wk+6}
            """)
            self.decide(Wk + 6, Wk + 7, 0, vZ0)
        a(f"v_mov_b32 v{Wk+2}, v{Wk}")
        self.row_reduce("v_max_f32", Wk + 2)
        a(f"""v_sub_f32 v{Wk}, v{Wk}, v{Wk+2}
        v_mul_f32 v{Wk}, {LOG2E}, v{Wk}
        v_exp_f32 v{Wk}, v{Wk}
        s_nop 0
        v_mul_f32 v{Wk+1}, v{Wk+1}, v{Wk}""")
        self.row_reduce("v_add_f32", Wk + 1)
        a(f"""v_rcp_f32 v{Wk+2}, v{Wk+1}
        s_nop 0
        v_mul_f32 v{Wk+3}, v{Wk}, v{Wk+2}
        v_fma_f32 v{Wk}, -v{Wk+3}, v{Wk+1}, v{Wk}
        v_fmac_f32 v{Wk+3}, v{Wk}, v{Wk+2}
        s_lshl_b32 s9, s6, 2
        v_subrev_u32 v{Wk+4}, s9, v{vL}
        v_cmp_gt_u32 vcc, 4, v{Wk+4}
        v_lshlrev_b32 v{Wk+4}, 2, v{Wk+4}
        s_and_saveexec_b64 s[10:11], vcc
        ds_write_b32 v{Wk+4}, v{Wk+3} offset:{L_SCALE}
        s_mov_b64 exec, -1""")
        if self.ctl:
            a(f"""v_bfe_u32 v{Wk+4}, v{vL}, 2, 2
            v_and_b32 v{Wk+6}, {self.mix}, v{Wk+4}
            v_lshlrev_b32 v{Wk+4}, 3, v{Wk+4}
            v_lshl_add_u32 v{Wk+4}, v{Wk+6}, 2, v{Wk+4}
            v_add_u32 v{Wk+4}, s4, v{Wk+4}
            v_and_b32 v{Wk+4}, 31, v{Wk+4}
            v_lshlrev_b32 v{Wk+4}, 7, v{Wk+4}
            v_and_b32 v{Wk+6}, 3, v{vL}
            v_lshl_add_u32 v{Wk+4}, v{Wk+6}, 3, v{Wk+4}
            v_mov_b32 v{Wk+9}, s{sT}""")
            for ci in range(1, len(self.cps)):
                L, Ld = self.lab("cw"), self.lab("cwd")
                a(f"""s_mov_b32 s12, {self.poll_max * 16}
                {L}:
                ds_read_b32 v{Wk}, v{vZ0} offset:{L_PROG}
                s_waitcnt lgkmcnt(0)
                v_readfirstlane_b32 s9, v{Wk}
                s_cmp_ge_u32 s9, {self.cps[ci]}
                s_cbranch_scc1 {Ld}
                s_sleep 2
                s_sub_u32 s12, s12, 1
                s_cmp_gt_u32 s12, 0
                s_cbranch_scc1 {L}
                {Ld}:
                ds_read_b32 v{Wk+8}, v{vZ0} offset:{L_TM + 4*self.cps[ci]}
                s_lshl_b32 s9, s8, 7
                s_lshl_b32 s13, s6, 3
                s_add_u32 s9, s9, s13
                s_add_u32 s9, s9, {TS_OFF + 8192*ci}
                s_waitcnt lgkmcnt(0)
                v_readfirstlane_b32 s10, v{Wk+8}
                s_mov_b64 exec, 1
                buffer_store_dwordx2 v[{Wk+8}:{Wk+9}], v{vZ0}, s[56:59], s9 offen sc1
                s_mov_b64 exec, 0xffff
                s_sleep {self.cdelay[ci]}
                s_lshl_b32 s9, s5, 12
                s_add_u32 s9, s9, {TS_OFF + 8192*ci}
                buffer_load_dwordx2 v[{Wk}:{Wk+1}], v{Wk+4}, s[56:59], s9 offen sc1
                s_memrealtime s[12:13]
                s_waitcnt vmcnt(0) lgkmcnt(0)
                v_cmp_ne_u32 vcc, v{Wk+1}, v{Wk+9}
                v_sub_u32 v{Wk+6}, s12, v{Wk}
                v_cvt_f32_i32 v{Wk+6}, v{Wk+6}
                v_cndmask_b32 v{Wk+6}, v{Wk+6}, 0, vcc
                s_sub_u32 s12, s12, s10
                v_cvt_f32_u32 v{Wk+7}, s12""")
                self.row_reduce("v_add_f32", Wk + 6)
                a(f"""v_mul_f32 v{Wk+6}, {f32(1/16.0)}, v{Wk+6}
                v_sub_f32 v{Wk+6}, v{Wk+6}, v{Wk+7}
                """)
                self.decide(Wk + 6, Wk + 7, ci, vZ0)
                a("s_mov_b64 exec, -1")
        a("L_nostat:")
        a(f"""s_lshl_b32 s67, s6, 5
        s_add_u32 s67, s67, s4
        s_mov_b32 s68, 0
        s_cmp_lg_u32 s3, 2
        s_cbranch_scc1 L_noown
        s_cmp_ge_u32 s67, {8 if self.pq else 40}
        s_cbranch_scc1 L_noown
        s_mov_b32 s68, 1""")
        self.srd(60, 28, 1280)
        W = Wk
        a(f"""v_lshlrev_b32 v{W+20}, 2, v{vL}
        s_mul_i32 s9, s5, 1280
        v_add_u32 v{W+21}, s9, v{W+20}""")
        for t in range(5):
            a(f"buffer_load_dword v{W+t}, v{W+20}, s[60:63], 0 offen offset:{256*t}")
            a(f"ds_read_b32 v{W+5+t}, v{W+21} offset:{L_XN + 256*t}")
        self.srd(60, 16, 2560)
        a(f"""v_and_b32 v{W+22}, 3, v{vL}
        v_lshl_add_u32 v{vOUTA}, v{W+22}, 2, v{vT2}
        v_lshlrev_b32 v{vOUTA}, 1, v{vOUTA}
        s_lshl_b32 s10, s67, 5
        s_add_u32 s10, s10, s9
        v_add_u32 v{vOUTA}, s10, v{vOUTA}
        buffer_load_ushort v{vXC}, v{vOUTA}, s[60:63], 0 offen
        ds_read_u16 v{W+23}, v{vOUTA} offset:{L_XN}
        s_waitcnt vmcnt(0) lgkmcnt(0)""")
        for t in range(5):
            c = "0" if t == 0 else f"v{W+24}"
            a(f"v_dot2_f32_bf16 v{W+24}, v{W+t}, v{W+5+t}, {c}")
        a(f"v_lshlrev_b32 v{vXC}, 16, v{vXC}\nv_lshlrev_b32 v{W+23}, 16, v{W+23}\ns_nop 1")
        self.row_reduce("v_add_f32", W + 24)
        self.swap_reduce("v_add_f32", W + 24, W + 25, 16)
        self.swap_reduce("v_add_f32", W + 24, W + 25, 32)
        self.rbf(W + 24)
        self.sigmoid_like(W + 24, W + 24)
        self.rbf(W + 24)
        Ly, Lyd = self.lab("y"), self.lab("yd")
        a(f"""v_lshrrev_b32 v{W+20}, 2, v{vL}
        v_mul_u32_u24 v{W+21}, 5120, v{W+20}
        v_lshl_add_u32 v{W+21}, v{W+22}, 4, v{W+21}
        v_mul_u32_u24 v{vPA}, 2560, v{W+20}
        v_lshl_add_u32 v{vPA}, v{W+22}, 4, v{vPA}
        s_mul_i32 s9, s5, 2560
        s_lshl_b32 s10, s67, 6
        s_add_u32 s9, s9, s10
        s_add_u32 s9, s9, {Y_OFF}
        v_mov_b32 v{W}, 0
        v_mov_b32 v{W+1}, 0
        v_mov_b32 v{W+2}, 0
        v_mov_b32 v{W+3}, 0""")
        if not self.nomoe:
            self.mpoll([(W, f"buffer_load_dwordx4 v[{W}:{W+3}], v{W+21}, s[56:59], s9 offen sc1")], vTG, vCK, 64, mask=("-1", "0xffff"))
        self.merge4(W)
        self.rbf(W)
        a(f"v_mul_f32 v{W}, v{W}, v{W+24}")
        self.rbf(W)
        a(f"v_add_f32 v{W}, v{W}, v{W+23}")
        self.rbf(W)
        self.sigmoid_like(W + 1, W)
        a(f"v_mul_f32 v{vG}, v{W}, v{W+1}")
        self.rbf(vG)
        a(f"""s_mul_i32 s70, s5, {128*2560}
        s_lshl_b32 s10, s67, 6
        s_add_u32 s70, s70, s10""")
        for t in range(1, 8):
            a(f"s_add_u32 s{70+t}, s70, {t*40960}")
        if self.ppre == 1:
            for t in range(8):
                a(f"buffer_load_dwordx4 v[{W+4*t}:{W+4*t+3}], v{vPA}, s[56:59], s{70+t} offen sc1")
        a("L_noown:")
        self.srd(60, 36, 2560)
        a(f"""v_and_b32 v{vAR}, 7, v{vL}
        v_mul_u32_u24 v{vAR}, {OS}, v{vAR}
        v_lshl_add_u32 v{vAR}, v{vT2}, 4, v{vAR}
        v_bfe_u32 v{vT3}, v{vL}, 3, 1
        v_mul_u32_u24 v{vT4}, 192, v{vT3}
        v_add_u32 v{vAR}, v{vAR}, v{vT4}
        v_mul_u32_u24 v24, 0xaaaa, v{vT3}
        v_add_u32 v24, 0x4444, v24
        v_lshl_or_b32 v24, v24, 16, v24
        v_and_b32 v{vT3}, 1, v{vT2}
        v_lshlrev_b32 v{vST}, 5, v{vT1}
        v_lshl_add_u32 v{vST}, v{vT3}, 4, v{vST}
        v_lshrrev_b32 v{vT4}, 5, v{vL}
        v_lshl_add_u32 v{vST}, v{vT4}, 3, v{vST}
        v_lshlrev_b32 v{vT3}, 3, v{vT3}
        s_mul_i32 s9, s7, 2560
        s_lshl_b32 s10, s3, 9
        s_add_u32 s9, s9, s10
        s_waitcnt vmcnt(0) lgkmcnt(0)""")
        if self.ppre == 2:
            a(f"""v_not_b32 v32, v{vTG}
            v_mov_b32 v33, v32
            v_mov_b32 v34, v32
            v_mov_b32 v35, v32
            v_lshlrev_b32 v36, 4, v{vL}
            s_mul_i32 s10, s7, 2560
            s_mul_i32 s11, s3, 640
            s_add_u32 s10, s10, s11
            s_mov_b32 exec_hi, 0xff
            buffer_store_dwordx4 v[32:35], v36, s[56:59], s10 offen sc1
            s_mov_b32 exec_hi, -1
            s_waitcnt vmcnt(0)""")
        self.stamp(5, 60)
        a(f"s_setprio {self.hprio2}")
        a(f"s_mov_b32 s43, {1 if self.dry else 0}")
        a("L_tail:")
        for r in range(32, 64):
            a(f"v_mov_b32 v{r}, 0")
        a("s_cmp_lg_u32 s43, 0\ns_cbranch_scc1 L_nobar\ns_barrier\nL_nobar:")
        if self.stamps == 4:
            a("s_memrealtime s[44:45]")
        AT = [16, 20, 28]
        for kp in range(3):
            a(f"ds_read_b128 v[{AT[kp]}:{AT[kp]+3}], v{vAR} offset:{L_O + 64*kp}")
        a(f"ds_read_b64 v[{vSC}:{vSC+1}], v{vT3} offset:{L_SCALE}")
        def epi(c):
            D = 32 + 4 * c
            return [f"v_add_f32 v{D}, v{D}, v{D+1}", f"v_add_f32 v{D+2}, v{D+2}, v{D+3}",
                    f"v_mul_f32 v{D}, v{D}, v{vSC}", f"v_fmac_f32 v{D}, v{D+2}, v{vSC+1}"]
        order = (0, 2, 1, 3)
        pend = []
        for pi, pr in enumerate(order):
            for kp in range(3):
                if pi == 0:
                    a(f"s_waitcnt lgkmcnt({3-kp})")
                for c in (pr, pr + 4):
                    self.smf(32 + 4 * c, AT[kp], 64 + 64 * kp + 8 * c, 24)
                    if pi >= 2 and (kp >= 1 or pi == 3):
                        for _ in range(2):
                            if pend:
                                a(pend.pop(0))
            if pi == 1:
                a("s_waitcnt lgkmcnt(0)")
                e0, e4 = epi(order[0]), epi(order[0] + 4)
                pend += [e0[0], e0[1], e4[0], e4[1], e0[2], e0[3], e4[2], e4[3]]
            if pi == 2:
                e0, e4 = epi(order[1]), epi(order[1] + 4)
                pend += [e0[0], e0[1], e4[0], e4[1], e0[2], e0[3], e4[2], e4[3],
                         f"v_permlane16_swap_b32 v32, v48", "s_nop 0", "v_add_f32 v32, v32, v48",
                         f"v_permlane16_swap_b32 v40, v56"]
        for x in pend:
            a(x)
        RES = 16
        e1, e5, e3, e7 = epi(1), epi(5), epi(3), epi(7)
        a("v_add_f32 v40, v40, v56")
        for x in (e1[0], e1[1], e5[0], e5[1], e1[2], e1[3], e5[2], e5[3]):
            a(x)
        a("v_permlane32_swap_b32 v32, v40")
        for x in (e3[0], e3[1], e7[0], e7[1]):
            a(x)
        a(f"v_permlane16_swap_b32 v36, v52\nv_add_f32 v{RES}, v32, v40")
        for x in (e3[2], e3[3], e7[2], e7[3]):
            a(x)
        a("v_add_f32 v36, v36, v52")
        self.tag(RES, RES, vTG)
        a(f"""v_permlane16_swap_b32 v44, v60
        s_nop 0
        v_add_f32 v44, v44, v60
        s_nop 1
        v_permlane32_swap_b32 v36, v44
        s_nop 0
        v_add_f32 v{RES+1}, v36, v44""")
        self.tag(RES + 1, RES + 1, vTG)
        if self.wide:
            a(f"""v_permlane32_swap_b32 v{RES}, v{RES+2}
            s_nop 0
            v_permlane32_swap_b32 v{RES+1}, v{RES+3}""")
        a(f"""s_cmp_lg_u32 s43, 0
        s_cbranch_scc1 L_nost
        """)
        if self.wide:
            a(f"""s_mov_b32 exec_hi, 0
            buffer_store_dwordx4 v[{RES}:{RES+3}], v{vST}, s[56:59], s9 offen {self.pst}
            s_mov_b32 exec_hi, -1""")
        else:
            a(f"buffer_store_dwordx2 v[{RES}:{RES+1}], v{vST}, s[56:59], s9 offen {self.pst}")
        self.stamp(7, 20)
        if self.stamps == 4:
            a("s_memrealtime s[46:47]\ns_mov_b64 s[52:53], 0\ns_mov_b64 s[54:55], 0\ns_cmp_lg_u32 s3, 2\ns_cbranch_scc1 L_end\ns_cmp_eq_u32 s68, 0\ns_cbranch_scc1 L_dump")
        a(f"""s_cmp_eq_u32 s68, 0
        s_cbranch_scc1 L_end""")
        Z = 64
        M0 = 80
        a(f"v_not_b32 v{vCK}, v{vTG}\nv_mov_b32 v30, 0xff")
        for t in range(8):
            a(f"s_mov_b64 s[{M0+2*t}:{M0+2*t+1}], -1\nv_mov_b32 v{Z+4*t}, v{vCK}")
        a(f"s_mov_b32 s12, {self.poll_max * 4}\ns_mov_b32 s13, 512\nL_pp:")
        for t in range(8):
            sk = self.lab("pl")
            a(f"""s_mov_b64 exec, s[{M0+2*t}:{M0+2*t+1}]
            s_cbranch_execz {sk}
            buffer_load_dwordx4 v[{Z+4*t}:{Z+4*t+3}], v{vPA}, s[56:59], s{70+t} offen {self.pld}
            {sk}:""")
        a(f"""s_waitcnt vmcnt({self.pcap})
        s_cmp_le_u32 s13, {self.pthr}
        s_cbranch_scc1 L_pf
        s_waitcnt vmcnt(0)
        L_pf:
        s_mov_b32 s13, 0""")
        for t in range(8):
            sk = self.lab("pc")
            a(f"""s_mov_b64 exec, s[{M0+2*t}:{M0+2*t+1}]
            s_cbranch_execz {sk}
            v_xor_b32 v{32+4*t}, v{Z+4*t}, v{vTG}
            v_xor_b32 v{33+4*t}, v{Z+4*t+1}, v{vTG}
            v_xor_b32 v{34+4*t}, v{Z+4*t+2}, v{vTG}
            v_xor_b32 v{35+4*t}, v{Z+4*t+3}, v{vTG}
            v_or3_b32 v{vCK}, v{32+4*t}, v{33+4*t}, v{34+4*t}
            v_bitop3_b32 v{vCK}, v{vCK}, v{35+4*t}, v30 bitop3:0xa8
            v_cmp_ne_u32 s[{M0+2*t}:{M0+2*t+1}], 0, v{vCK}
            s_bcnt1_i32_b64 s10, s[{M0+2*t}:{M0+2*t+1}]
            s_add_u32 s13, s13, s10
            {sk}:""")
        a(f"""s_mov_b64 exec, -1
        s_cmp_eq_u32 s13, 0
        s_cbranch_scc1 L_nost
        s_cmp_le_u32 s13, {self.pthr}
        s_cbranch_scc1 L_pn
        s_sleep {self.pslow}
        L_pn:
        s_sub_u32 s12, s12, 1
        s_cmp_gt_u32 s12, 0
        s_cbranch_scc1 L_pp
        L_nost:""")
        if self.stamps == 4:
            a("s_memrealtime s[52:53]")
        C = 32
        for st_ in (4, 8, 16):
            for t in range(0, 32, 2 * st_):
                a(f"v_pk_add_f32 v[{C+t}:{C+t+1}], v[{C+t}:{C+t+1}], v[{C+t+st_}:{C+t+st_+1}]")
                a(f"v_pk_add_f32 v[{C+t+2}:{C+t+3}], v[{C+t+2}:{C+t+3}], v[{C+t+st_+2}:{C+t+st_+3}]")
        self.merge4(C)
        self.rbf(C)
        a(f"v_mul_f32 v{C}, v{C}, v{vG}")
        self.rbf(C)
        a(f"""v_add_f32 v{C}, v{C}, v{vXC}
        v_cvt_pk_bf16_f32 v{C}, v{C}, v{C}
        s_cmp_eq_u32 s43, 0
        s_cbranch_scc1 L_fin
        s_mov_b32 s43, 0
        s_branch L_tail
        L_fin:
        s_mov_b32 exec_lo, 0x000f000f
        s_mov_b32 exec_hi, 0x000f000f
        buffer_store_short v{C}, v{vOUTA}, s[60:63], 0 offen""")
        if self.stamps == 4:
            a("s_memrealtime s[54:55]\nL_dump:\ns_sleep 127")
            self.dump = True
            self.stamp(15, 20, src=48)
            self.stamp(6, 20, src=44)
            self.stamp(7, 20, src=46)
            self.stamp(8, 20, src=52)
            self.stamp(9, 20, src=54)
            self.dump = False
        if self.padto:
            if self.padwg >= 0:
                a(f"s_cmp_lg_u32 s2, {self.padwg}\ns_cbranch_scc1 L_end")
            a(f"""L_pad:
            s_memrealtime s[50:51]
            s_waitcnt lgkmcnt(0)
            s_sub_u32 s50, s50, s48
            s_cmp_lt_u32 s50, {self.padto}
            s_cbranch_scc1 L_pad""")
        self.stamp(8, 60)

    def job_compute(self, n, C0, C1, TILES, vA, vACC, vSEL, vTG, vOUT, sOUT, waits):
        a = self.a
        for G in range(n):
            self.buildA(vA, C0 + G // 2, G & 1, vSEL)
            self.buildA(vA + 4, C1 + G // 2, G & 1, vSEL)
            a(f"s_waitcnt vmcnt({n-1-G})\ns_nop 0" if waits else "s_nop 1")
            self.mfma(vACC, vA, TILES + 4 * G, None if G == 0 else vACC)
            self.mfma(vACC + 4, vA + 4, TILES + 4 * G, None if G == 0 else vACC + 4)
        a("s_nop 7")
        for r in range(4):
            a(f"v_permlane32_swap_b32 v{vACC+r}, v{vACC+4+r}")
        a("s_nop 1")
        for r in range(4):
            self.dpp("v_add_f32", vACC + r, vACC + 4 + r, vACC + r, "row_ror:8")
        for r in range(4):
            self.tag(vACC + r, vACC + r, vTG, rn=True)
        a(f"""s_mov_b32 exec_lo, 0x00ff00ff
        s_mov_b32 exec_hi, 0x00ff00ff
        buffer_store_dwordx4 v[{vACC}:{vACC+3}], v{vOUT}, s[56:59], {sOUT} offen sc1
        s_mov_b64 exec, -1""")

    def gen_dn(self, vL, vT3, vT4, vT5, vSEL, vTG, vCK, TI):
        a = self.a
        GP = TI + 64
        a(f"""s_mul_hi_u32 s53, s52, {(2**32 + 9)//10}
        s_mul_i32 s54, s53, 10
        s_sub_u32 s54, s52, s54""")
        self.srd(60, 34, 1536 * 1280)
        a(f"""v_lshrrev_b32 v{vT3}, 3, v{vL}
        v_mul_u32_u24 v{vT4}, {16*1280}, v{vT3}
        v_and_b32 v{vT5}, 7, v{vL}
        v_lshl_add_u32 v{vT4}, v{vT5}, 4, v{vT4}
        s_mul_i32 s9, s53, {128*1280}
        s_lshl_b32 s10, s54, 7
        s_add_u32 s9, s9, s10""")
        for G in range(16):
            a(f"buffer_load_dwordx4 v[{TI+4*G}:{TI+4*G+3}], v{vT4}, s[60:63], s9 offen offset:{(G%4)*1280} {self.mf}")
            if G % 4 == 3:
                a(f"s_add_u32 s9, s9, {4*1280}")
                if G == 7:
                    a("s_waitcnt vmcnt(0)")
        a(f"""v_lshrrev_b32 v60, 5, v{vL}
        v_lshlrev_b32 v61, 12, v60
        v_and_b32 v62, 31, v{vL}
        v_lshl_add_u32 v61, v62, 4, v61
        s_lshl_b32 s9, s53, 13
        s_add_u32 s9, s9, {GU_OFF}""")
        self.mpoll([(GP + 4 * t, f"buffer_load_dwordx4 v[{GP+4*t}:{GP+4*t+3}], v61, s[56:59], s9 offen offset:{512*t} sc1") for t in range(8)],
                   vTG, vCK, 32)
        self.sum_quads(GP, 4)
        self.sum_quads(GP + 16, 4)
        for r in range(4):
            self.rbf(GP + r)
            self.rbf(GP + 16 + r)
            self.sigmoid_like(GP + 4, GP + r)
            a(f"v_mul_f32 v{GP+r}, v{GP+r}, v{GP+4}")
            self.rbf(GP + r)
            a(f"v_mul_f32 v{GP+r}, v{GP+r}, v{GP+16+r}")
        a(f"""v_cvt_pk_bf16_f32 v{GP+4}, v{GP}, v{GP+1}
        v_cvt_pk_bf16_f32 v{GP+5}, v{GP+2}, v{GP+3}
        v_bfe_u32 v61, v{vL}, 4, 1
        v_lshlrev_b32 v62, 8, v61
        v_lshl_add_u32 v62, v60, 7, v62
        v_and_b32 v63, 15, v{vL}
        v_lshl_add_u32 v62, v63, 3, v62
        ds_write_b64 v62, v[{GP+4}:{GP+5}] offset:{L_HB}
        v_lshlrev_b32 v{vT3}, 5, v{vT3}
        v_mul_u32_u24 v{vT4}, 2560, v60
        v_lshl_add_u32 v{vT4}, v{vT5}, 5, v{vT4}
        v_lshl_add_u32 v{vT4}, v61, 4, v{vT4}
        s_mul_i32 s9, s53, 5120
        s_lshl_b32 s10, s54, 8
        s_add_u32 s9, s9, s10
        s_add_u32 s9, s9, {Y_OFF}
        s_waitcnt lgkmcnt(0)
        ds_read_b128 v[44:47], v{vT3} offset:{L_HB}
        ds_read_b128 v[48:51], v{vT3} offset:{L_HB+16}
        ds_read_b128 v[52:55], v{vT3} offset:{L_HB+256}
        ds_read_b128 v[56:59], v{vT3} offset:{L_HB+272}
        s_waitcnt lgkmcnt(0)""")
        self.job_compute(16, 44, 52, TI, 28, 36, vSEL, vTG, vT4, "s9", False)
        a("s_waitcnt vmcnt(0)")

    def text(self):
        hdr = open("recurrent_scan__mha_block_cached__moe_arch_mod__decode.s.ref").read().split("; Override launch")[0]
        self.gen()
        return hdr + f"""; @launch grid=(256,1,1) block=(512,1,1) lds={LDS_BYTES}
.amdgcn_target "amdgcn-amd-amdhsa--gfx950"
.text
.globl {KNAME}
.p2align 8
.type {KNAME},@function
{KNAME}:
""" + "\n".join(self.o) + f"""
.section .rodata,"a"
.p2align 6
.amdhsa_kernel {KNAME}
  .amdhsa_next_free_vgpr 256
  .amdhsa_next_free_sgpr 102
  .amdhsa_accum_offset 256
  .amdhsa_group_segment_fixed_size 0
  .amdhsa_kernarg_size 104
  .amdhsa_user_sgpr_count 2
  .amdhsa_user_sgpr_kernarg_segment_ptr 1
  .amdhsa_system_sgpr_workgroup_id_x 1
  .amdhsa_float_denorm_mode_32 3
.end_amdhsa_kernel
"""


if __name__ == "__main__":
    out = sys.argv[1]
    kw = {}
    for arg in sys.argv[2:]:
        k, v = arg.split("=", 1)
        try:
            v = int(v)
        except ValueError:
            pass
        kw[k] = v
    open(out, "w").write(G(**kw).text())
```

```python
import sys, struct

KNAME = "recurrent_scan__mha_block_cached__moe_arch_mod__decode_kernel"
TB = 201326592
CH = 786432
STEP = 12288

P_OFF = 0
ST_OFF = 256 * 2560
EP_OFF = ST_OFF + 64 * 256
Y_OFF = EP_OFF + 256
QX_OFF = Y_OFF + 12 * 5120
GU_OFF = QX_OFF + 32 * 4 * 2 * 768
TS_OFF = GU_OFF + 192 * 512
WS_USED = TS_OFF + 4 * 8192
STAMP_OFF = 2 << 20
WS_SRD = 4 << 20
assert WS_USED <= STAMP_OFF

L_XN = 0
L_QB = 2560
L_SC = L_QB + 512
OS = 416
L_O = L_SC + 4 * 1152
L_SCALE = L_O + 8 * OS
L_PROG = L_SCALE + 48
L_BOOST = L_SCALE + 52
L_WXOK = L_SCALE + 56
L_HB = L_SCALE + 64
L_STL = L_HB + 512
L_WX = (L_STL + 64 + 1023) // 1024 * 1024
WXS = 1040
L_TM = L_WX + 48 * WXS
LDS_BYTES = L_TM + 64

LOG2E = 0x3fb8aa3b
SCALE_F32 = 0x3d93cd3a
assert struct.unpack("<I", struct.pack("<f", 192 ** -0.5))[0] == SCALE_F32
def f32(x): return "0x%08x" % struct.unpack("<I", struct.pack("<f", x))[0]
NLOG2E = f32(-1.4426950408889634)

sWAVE, sH, sB, sSPLIT, sCHUNK, sBH = 3, 4, 5, 6, 7, 8
sT = 78
sMASK = 79
sWV = 69


class G:
    def __init__(self, R0=16, R1=8, W=4, W0=3, kvflags="nt", wflags="nt", woflags="pl", moeflags="nt", rot=1, stamps=0,
                 poll_max=1 << 18, hprio=3, hprio1=0, hprio2=3, wobatch=8, nowo=0, nomoe=0, noq=0, nob0=0, D=2, GI=4, early=0, nok=0, nopoll=0, hskip=0, stsleep=16, DV=0, earlyV=-1, D0=0, hsleep=0, diagx=0, padto=0, padwg=-1, qsleep=0, psleep=0, NE=0, DE=4, qsleep2=0, NB=0, ctl=1, cps='1,5,8', gains='9,7,7', dead=30, cdelay='48,32,16', gb=0, brk=1, mix=1, kboost=-1, pre=2, wosleep=0, dry=1, pthr=32, pslow=8, pcap=24, pst='sc1', pld='sc1', ppre=0, trace=0, pq=0, spre=0, wide=1, VD=3, brd=6, ost='pl'):
        self.ost = '' if ost == 'pl' else ost.replace('_', ' ')
        self.VD, self.brd = VD, brd
        self.wide = wide
        self.spre = spre
        self.pq = pq
        self.trace = trace
        self.pst, self.pld, self.ppre = pst.replace('_', ' '), pld.replace('_', ' '), ppre
        self.dry, self.pthr, self.pslow, self.pcap = dry, pthr, pslow, pcap
        self.kboost, self.pre, self.wosleep = kboost, pre, wosleep
        self.gb, self.brk, self.mix = gb, brk, mix
        self.ctl = ctl
        self.NB = NB
        self.cps = [int(x) for x in str(cps).split(',')]
        self.gains = [float(x) for x in str(gains).split(',')]
        self.dead = dead
        self.cdelay = [int(x) for x in str(cdelay).split(',')]
        self.NE, self.DE, self.qsleep2 = NE, DE, qsleep2
        self.qsleep, self.psleep = qsleep, psleep
        self.padwg = padwg
        self.padto = padto
        self.diagx = diagx
        self.DV = DV or D
        self.earlyV = early if earlyV < 0 else earlyV
        self.D0 = D0 or D
        self.hsleep = hsleep
        self.nok, self.nopoll, self.hskip, self.stsleep = nok, nopoll, hskip, stsleep
        self.D, self.GI, self.early = D, GI, early
        self.nowo, self.nomoe, self.noq, self.nob0 = nowo, nomoe, noq, nob0
        self.hprio1, self.hprio2 = hprio1, hprio2
        self.o = []
        self.R0, self.R1, self.W, self.W0 = R0, R1, W, W0
        fl = lambda x: '' if x == 'pl' else x.replace('_', ' ')
        self.kvf, self.wf, self.mf = fl(kvflags), fl(wflags), fl(moeflags)
        self.wof = fl(woflags)
        self.rot = rot
        self.stamps = stamps
        self.poll_max = poll_max
        self.hprio = hprio
        self.wobatch = wobatch
        self.nlab = 0

    def a(self, s):
        for ln in s.split("\n"):
            ln = ln.strip()
            if ln:
                self.o.append(("" if ln.endswith(":") else "    ") + ln)

    def lab(self, p="L"):
        self.nlab += 1
        return f"{p}_{self.nlab}"

    def srd(self, q, lo, nbytes):
        self.a(f"s_mov_b32 s{q}, s{lo}\ns_mov_b32 s{q+1}, s{lo+1}\ns_mov_b32 s{q+2}, {nbytes}\ns_mov_b32 s{q+3}, 0x20000")

    def dpp(self, op, d, s0, s1, ctrl):
        self.a(f"{op}_dpp v{d}, v{s0}, v{s1} {ctrl} row_mask:0xf bank_mask:0xf")

    def row_reduce(self, op, v, steps=(1, 2, 4, 8)):
        for s in steps:
            self.a("s_nop 1")
            self.dpp(op, v, v, v, f"row_ror:{s}")

    def swap_reduce(self, op, v, t, which):
        self.a(f"v_mov_b32 v{t}, v{v}\ns_nop 1\nv_permlane{which}_swap_b32 v{v}, v{t}\ns_nop 1\n{op} v{v}, v{v}, v{t}")

    def stamp(self, idx, vt, st=50, src=None):
        if not self.stamps:
            return
        if self.stamps == 3 and (self.cls == "H" or idx in (0, 1, 2, 3, 4)):
            return
        if self.stamps == 4 and not getattr(self, "dump", False):
            return
        if src is None:
            self.a(f"s_memrealtime s[{st}:{st+1}]")
            src = st
        if self.stamps == 2:
            slot = (idx if idx < 15 else 0) + (1 if self.cls == "S" else 7)
            if self.cls == "H" and idx not in (1, 2, 4, 7, 8):
                return
            if self.cls == "H":
                slot = {1: 8, 2: 9, 4: 10, 7: 11, 8: 12}[idx]
            elif idx == 15:
                slot = 1
            else:
                slot = 2 + idx
            inv = f"s_mov_b32 s65, s{src}"
            Lsk = self.lab("sk")
            if not (self.cls == "H" and idx == 8):
                self.a(f"""s_waitcnt lgkmcnt(0)
                s_cmp_lg_u32 s2, 0
                s_cbranch_scc1 {Lsk}""")
            self.a(f"""s_waitcnt lgkmcnt(0)
            {inv}
            v_mov_b32 v{vt}, s65
            v_mov_b32 v{vt+2}, {slot*4}
            s_mov_b64 exec, 1
            global_atomic_umax v{vt+2}, v{vt}, s[38:39] sc1
            s_mov_b64 exec, -1
            {Lsk}:""")
            return
        self.a(f"""s_lshl_b32 s65, s2, 3
        s_add_u32 s65, s65, s{sWV}
        s_lshl_b32 s65, s65, 7
        s_add_u32 s65, s65, {STAMP_OFF + idx*8}
        s_waitcnt lgkmcnt(0)
        v_mov_b32 v{vt}, s{src}
        v_mov_b32 v{vt+1}, s{src+1}
        v_mov_b32 v{vt+2}, 0
        s_mov_b64 exec, 1
        buffer_store_dwordx2 v[{vt}:{vt+1}], v{vt+2}, s[56:59], s65 offen
        s_mov_b64 exec, -1""")

    def selectors(self, vL, base, t0, t1, t2):
        a = self.a
        a(f"""v_and_b32 v{t0}, 1, v{vL}
        v_cmp_eq_u32 vcc, 1, v{t0}
        v_mov_b32 v{t0}, 0x0c0c0100
        v_mov_b32 v{t1}, 0x01000c0c
        v_cndmask_b32 v{t0}, v{t0}, v{t1}, vcc
        v_mov_b32 v{t1}, 0x0c0c0302
        v_mov_b32 v{t2}, 0x03020c0c
        v_cndmask_b32 v{t1}, v{t1}, v{t2}, vcc
        v_bfe_u32 v{t2}, v{vL}, 1, 2""")
        for j in range(4):
            a(f"""v_cmp_eq_u32 vcc, {j}, v{t2}
            v_mov_b32 v{base+j}, 0x0c0c0c0c
            v_mov_b32 v{base+4+j}, 0x0c0c0c0c
            v_cndmask_b32 v{base+j}, v{base+j}, v{t0}, vcc
            v_cndmask_b32 v{base+4+j}, v{base+4+j}, v{t1}, vcc""")

    def buildA(self, A, P, hi, sel):
        for j in range(4):
            self.a(f"v_perm_b32 v{A+j}, v{P}, v{P}, v{sel + (4 if hi else 0) + j}")

    def mfma(self, D, A, B, C):
        c = "0" if C is None else f"v[{C}:{C+3}]"
        self.a(f"v_mfma_f32_16x16x32_bf16 v[{D}:{D+3}], v[{A}:{A+3}], v[{B}:{B+3}], {c}")

    def smf(self, D, A, B, IDX):
        self.a(f"v_smfmac_f32_16x16x64_bf16 v[{D}:{D+3}], v[{A}:{A+3}], v[{B}:{B+7}], v{IDX}")

    def rbf(self, v):
        self.a(f"v_cvt_pk_bf16_f32 v{v}, v{v}, v{v}\nv_lshlrev_b32 v{v}, 16, v{v}")

    def tag(self, d, s, vTG, rn=False):
        if rn:
            self.a(f"v_add_u32 v{d}, {0x800 if rn == 12 else 0x80}, v{s}")
            s = d
        self.a(f"v_and_or_b32 v{d}, v{s}, s{sMASK}, v{vTG}")

    def chk4(self, acc, x, vTG, first=False, n=4):
        for r in range(n):
            self.a(f"v_xor_b32 v{x+r}, v{x+r}, v{vTG}")
        for r in range(0, n, 2):
            if first and r == 0:
                self.a(f"v_or_b32 v{acc}, v{x}, v{x+1}")
            else:
                self.a(f"v_or3_b32 v{acc}, v{x+r}, v{x+r+1}, v{acc}")

    def poll_tail(self, acc, Lretry, Ldone, sleep):
        self.a(f"""v_and_b32 v{acc}, 0xff, v{acc}
        v_cmp_ne_u32 vcc, 0, v{acc}
        s_cbranch_vccz {Ldone}""")
        if sleep:
            self.a(f"s_sleep {sleep}")
        self.a(f"""s_sub_u32 s12, s12, 1
        s_cmp_gt_u32 s12, 0
        s_cbranch_scc1 {Lretry}
        {Ldone}:""")

    def mpoll(self, loads, vTG, vCK, sleep, mask=None, nd=4, M0=80):
        a = self.a
        L, Ld = self.lab("mp"), self.lab("mpd")
        for t in range(len(loads)):
            if mask is None:
                a(f"s_mov_b64 s[{M0+2*t}:{M0+2*t+1}], -1")
            else:
                a(f"s_mov_b32 s{M0+2*t}, {mask[0]}\ns_mov_b32 s{M0+2*t+1}, {mask[1]}")
        a(f"s_mov_b32 s12, {self.poll_max}\n{L}:")
        for t, (r, txt) in enumerate(loads):
            sk = self.lab("ml")
            a(f"s_mov_b64 exec, s[{M0+2*t}:{M0+2*t+1}]\ns_cbranch_execz {sk}\n{txt}\n{sk}:")
        a("s_mov_b64 s[100:101], 0\ns_waitcnt vmcnt(0)")
        for t, (r, txt) in enumerate(loads):
            sk = self.lab("mc")
            a(f"s_mov_b64 exec, s[{M0+2*t}:{M0+2*t+1}]\ns_cbranch_execz {sk}")
            self.chk4(vCK, r, vTG, first=True, n=nd)
            a(f"""v_and_b32 v{vCK}, 0xff, v{vCK}
            v_cmp_ne_u32 s[{M0+2*t}:{M0+2*t+1}], 0, v{vCK}
            s_or_b64 s[100:101], s[100:101], s[{M0+2*t}:{M0+2*t+1}]
            {sk}:""")
        a(f"""s_mov_b64 exec, -1
        s_cmp_eq_u64 s[100:101], 0
        s_cbranch_scc1 {Ld}""")
        if sleep:
            a(f"s_sleep {sleep}")
        a(f"""s_sub_u32 s12, s12, 1
        s_cmp_gt_u32 s12, 0
        s_cbranch_scc1 {L}
        {Ld}:""")

    def decide(self, v, t, ci, vZ0):
        self.a(f"""v_add_f32 v{t}, {f32(float(self.dead))}, v{v}
        v_mul_f32 v{t}, {f32(self.gb / 100.0)}, v{t}
        v_min_f32 v{t}, 0, v{t}
        v_subrev_f32 v{v}, {f32(float(self.dead))}, v{v}
        v_mul_f32 v{v}, {f32(self.gains[ci] / 100.0)}, v{v}
        v_max_f32 v{v}, 0, v{v}
        v_add_f32 v{v}, v{v}, v{t}
        v_min_f32 v{v}, 64.0, v{v}
        v_max_f32 v{v}, {f32(-24.0)}, v{v}
        v_cvt_i32_f32 v{v}, v{v}
        v_and_b32 v{v}, 0xffff, v{v}
        v_or_b32 v{v}, {(ci+1) << 16}, v{v}
        ds_write_b32 v{vZ0}, v{v} offset:{L_BOOST}""")

    def sum_quads(self, X, n):
        for t in range(1, n):
            self.a(f"v_pk_add_f32 v[{X}:{X+1}], v[{X}:{X+1}], v[{X+4*t}:{X+4*t+1}]")
            self.a(f"v_pk_add_f32 v[{X+2}:{X+3}], v[{X+2}:{X+3}], v[{X+4*t+2}:{X+4*t+3}]")

    def merge4(self, X):
        a = self.a
        a(f"""s_nop 1
        v_permlane16_swap_b32 v{X}, v{X+1}
        v_permlane16_swap_b32 v{X+2}, v{X+3}
        s_nop 1
        v_add_f32 v{X}, v{X}, v{X+1}
        v_add_f32 v{X+2}, v{X+2}, v{X+3}
        s_nop 1
        v_permlane32_swap_b32 v{X}, v{X+2}
        s_nop 1
        v_add_f32 v{X}, v{X}, v{X+2}""")
        self.row_reduce("v_add_f32", X, steps=(4, 8))

    def sigmoid_like(self, d, x):
        self.a(f"""v_mul_f32 v{d}, {NLOG2E}, v{x}
        v_exp_f32 v{d}, v{d}
        s_nop 0
        v_add_f32 v{d}, 1.0, v{d}
        v_rcp_f32 v{d}, v{d}
        s_nop 0""")

    def rotcode(self):
        if self.rot < 100:
            return f"s_mul_i32 s9, s7, {self.rot}"
        if self.rot == 100:
            return "s_lshr_b32 s9, s2, 3\ns_lshl_b32 s11, s2, 5\ns_add_u32 s9, s9, s11"
        if self.rot == 101:
            return "s_lshl_b32 s9, s5, 4\ns_add_u32 s9, s9, s7"
        if self.rot == 102:
            return "s_lshr_b32 s9, s7, 6\ns_mul_i32 s9, s9, 17\ns_add_u32 s9, s9, s7"
        raise ValueError

    def wide_tag(self, vTG):
        self.a(f"""s_mov_b32 s{sMASK}, 0xfffff000
        s_and_b32 s10, s{sT}, 0xfff
        v_mov_b32 v{vTG}, s10""")

    def epoch_load(self):
        self.a(f"s_load_dword s{sT}, s[40:41], {EP_OFF}")

    def epoch_use(self, vTG):
        self.a(f"""s_add_u32 s{sT}, s{sT}, 1
        s_mov_b32 s{sMASK}, 0xffffff00
        s_and_b32 s9, s{sT}, 0xff
        v_mov_b32 v{vTG}, s9""")

    def gen(self):
        a = self.a
        a(f"""s_cmp_ge_u32 s2, 256
        s_cbranch_scc1 L_end
        s_load_dwordx16 s[16:31], s[0:1], 0
        s_load_dwordx8 s[32:39], s[0:1], 64
        s_load_dwordx2 s[40:41], s[0:1], 96""")
        if self.stamps or self.padto or self.trace:
            a("s_memrealtime s[48:49]")
        a(f"""v_lshrrev_b32 v1, 6, v0
        v_and_b32 v0, 63, v0
        v_readfirstlane_b32 s3, v1
        s_and_b32 s9, s2, 7
        s_lshr_b32 s10, s2, 3
        s_lshl_b32 s4, s9, 2
        s_lshr_b32 s11, s10, 3
        s_add_u32 s4, s4, s11
        s_bfe_u32 s5, s10, 0x10002
        s_and_b32 s6, s10, 3
        s_lshl_b32 s8, s5, 5
        s_add_u32 s8, s8, s4
        s_lshl_b32 s7, s8, 2
        s_add_u32 s7, s7, s6
        s_mov_b32 s{sWV}, s3
        s_cmp_ge_u32 s3, 4
        s_cbranch_scc1 L_H""")
        self.gen_S()
        a("L_H:")
        self.gen_H()
        a("L_end:\ns_endpgm")

    def gen_S(self):
        self.cls = "S"
        a = self.a
        R0, D, GI = self.R0, self.D, self.GI
        RS = {2: 4, 3: 6}[D]
        R1 = 4
        DV = self.DV
        RSV = {2: 4, 3: 6}[DV]
        D0 = self.D0
        assert (64 - R0) % RS == 0
        NITK = (64 - R0) // RS
        W = 6
        vL = 0
        vOFF, vSCW, vSCR, vT0, vT1, vT2, vT3, vOW = 1, 2, 3, 4, 5, 6, 7, 8
        vA0, vA1, vTG = 9, 10, 11
        vQ = 12
        vSEL = 24
        vACC = 32
        vA = 44
        vP = 52
        RING = 64
        assert RING + R0 * 12 <= 256
        sOFF, sBEG, sEND, sIT, sCNT = 42, 43, 64, 66, 65
        a(f"""v_lshrrev_b32 v{vT0}, 3, v{vL}
        v_and_b32 v{vT1}, 7, v{vL}
        v_mul_u32_u24 v{vOFF}, 384, v{vT0}
        v_lshl_add_u32 v{vOFF}, v{vT1}, 4, v{vOFF}
        s_mul_i32 s9, s3, 3072""")
        if GI == 4:
            stepb = 4 * STEP
            a(f"""s_mul_i32 s11, s6, {STEP}
            s_add_u32 s9, s9, s11
            s_mul_i32 s{sBEG}, s8, {4*CH}
            s_add_u32 s{sEND}, s{sBEG}, {4*CH}
            v_add_u32 v{vOFF}, s9, v{vOFF}
            s_mul_i32 s9, s8, {self.rot}""")
        else:
            stepb = STEP
            a(f"""v_add_u32 v{vOFF}, s9, v{vOFF}
            s_mul_i32 s{sBEG}, s7, {CH}
            s_add_u32 s{sEND}, s{sBEG}, {CH}
            {self.rotcode()}""")
        a(f"""s_and_b32 s9, s9, 63
        s_mul_i32 s9, s9, {stepb}
        s_add_u32 s{sOFF}, s{sBEG}, s9
        s_waitcnt lgkmcnt(0)""")
        self.srd(52, 18, TB)
        vTR = 59
        def tr():
            if self.trace:
                a(f"""s_memrealtime s[80:81]
                s_waitcnt lgkmcnt(0)
                v_writelane_b32 v{vTR}, s80, m0
                s_add_u32 m0, m0, 1""")
        if self.trace:
            a(f"s_mov_b32 m0, 1\nv_mov_b32 v{vTR}, 0\nv_writelane_b32 v{vTR}, s48, 0")
        self.fs = []
        def fstamp():
            if self.stamps == 3 and len(self.fs) < 9:
                r = 80 + 2 * len(self.fs)
                a(f"s_memrealtime s[{r}:{r+1}]")
                self.fs.append(r)
        fstamp()

        def load(slot, sw=None):
            for j in range(3):
                r = RING + (slot * 3 + j) * 4
                a(f"buffer_load_dwordx4 v[{r}:{r+3}], v{vOFF}, s[52:55], s{sOFF} offen offset:{128*j} {self.kvf}")
            a(f"""s_add_u32 s{sOFF}, s{sOFF}, {stepb}
            s_cmp_ge_u32 s{sOFF}, s{sEND}
            s_cselect_b32 s{sOFF}, s{sBEG}, s{sOFF}""")
            if sw == "kv":
                a(f"""s_cmp_eq_u32 s{sIT}, {NITK-1}
                s_cselect_b32 s52, s20, s52
                s_cselect_b32 s53, s21, s53""")
            elif sw is not None:
                a(f"""s_cmp_eq_u32 s{sIT}, {sw}
                s_cselect_b32 s54, 0, s54""")
        thr = 3 * (D - 1) + self.early
        for s in range(D0):
            load(s)
        self.epoch_load()
        self.srd(56, 40, WS_SRD)
        self.selectors(vL, vSEL, vT2, vT3, vOW)
        a(f"""s_mul_i32 s9, s3, 1152
        s_add_u32 s9, s9, {L_SC}
        v_mul_u32_u24 v{vSCW}, 144, v{vT0}
        v_add_u32 v{vSCW}, s9, v{vSCW}
        v_mov_b32 v{vSCR}, v{vSCW}""")
        a(f"""v_lshrrev_b32 v{vT2}, 5, v{vL}
        s_lshl_b32 s9, s3, 1
        v_add_u32 v{vT2}, s9, v{vT2}
        v_mul_u32_u24 v{vOW}, {OS}, v{vT2}
        v_lshl_add_u32 v{vOW}, v{vT1}, 3, v{vOW}
        v_bfe_u32 v{vT2}, v{vL}, 4, 1
        v_lshl_add_u32 v{vOW}, v{vT2}, 2, v{vOW}
        v_add_u32 v{vOW}, {L_O}, v{vOW}
        v_lshlrev_b32 v{vT2}, 4, v{vT1}""")
        for s in range(D0, R0):
            a(f"s_waitcnt vmcnt({3*(D0-1)})")
            if s in (2, 3, 4, 6, 8, 10, 12, 14):
                fstamp()
            if s % 4 == 0:
                tr()
            load(s)
        a("s_waitcnt lgkmcnt(0)")
        self.epoch_use(vTG)
        self.stamp(15, vA, src=48)
        self.stamp(0, vA)
        tr()
        a("s_barrier")
        tr()
        self.stamp(1, vA)
        for j in range(3):
            a(f"ds_read_b128 v[{vQ+4*j}:{vQ+4*j+3}], v{vT2} offset:{L_QB + 128*j}")
        a(f"s_mov_b32 s{sIT}, 0\ns_mov_b32 s10, {SCALE_F32}\ns_waitcnt lgkmcnt(0)")

        sUSED, sTGT = 44, 45
        def throttle(dist=3):
            Lb, Lc = self.lab("bo"), self.lab("bc")
            a(f"""s_waitcnt vmcnt({3*(dist-1)})
            s_cmp_gt_i32 s{sUSED}, 0
            s_cbranch_scc1 {Lb}
            s_waitcnt vmcnt(3)
            s_cmp_eq_u32 s{sUSED}, 0
            s_cbranch_scc1 {Lc}
            s_waitcnt vmcnt({self.brk})
            s_add_i32 s{sUSED}, s{sUSED}, 2
            {Lb}:
            s_sub_i32 s{sUSED}, s{sUSED}, 1
            {Lc}:""")
        def kpair(s, off):
            ra, rb = RING + s * 12, RING + (s + 1) * 12
            for i in range(12):
                c0 = "0" if i == 0 else f"v{vA0}"
                c1 = "0" if i == 0 else f"v{vA1}"
                a(f"v_dot2_f32_bf16 v{vA0}, v{ra+i}, v{vQ+i}, {c0}")
                a(f"v_dot2_f32_bf16 v{vA1}, v{rb+i}, v{vQ+i}, {c1}")
            a("s_nop 2")
            self.dpp("v_add_f32", vA0, vA0, vA0, "quad_perm:[1,0,3,2]")
            self.dpp("v_add_f32", vA1, vA1, vA1, "quad_perm:[1,0,3,2]")
            a("s_nop 0")
            self.dpp("v_add_f32", vA0, vA0, vA0, "quad_perm:[2,3,0,1]")
            self.dpp("v_add_f32", vA1, vA1, vA1, "quad_perm:[2,3,0,1]")
            a("s_nop 0")
            self.dpp("v_add_f32", vA0, vA0, vA0, "row_half_mirror")
            self.dpp("v_add_f32", vA1, vA1, vA1, "row_half_mirror")
            a(f"""v_cvt_pk_bf16_f32 v{vT2}, v{vA0}, v{vA1}
            v_lshlrev_b32 v{vA0}, 16, v{vT2}
            v_and_b32 v{vA1}, 0xffff0000, v{vT2}
            v_mul_f32 v{vA0}, s10, v{vA0}
            v_mul_f32 v{vA1}, s10, v{vA1}
            v_cvt_pk_bf16_f32 v{vT2}, v{vA0}, v{vA1}
            ds_write_b32 v{vSCW}, v{vT2} offset:{off}""")
        npairs = R0 // 2
        issue_after = {0: 0, 3: 1} if D == 2 else {0: 0, 2: 1, 4: 2}
        issued = 0
        for p in range(npairs):
            a(f"s_waitcnt vmcnt({3 * ((R0 - 2*p - 2) + issued)})")
            kpair(2 * p, p * 4)
            if p in issue_after:
                a(f"s_waitcnt vmcnt({thr})")
                load(issue_after[p])
                issued += 1
        a(f"v_add_u32 v{vSCW}, {2*R0}, v{vSCW}")
        if self.kboost >= 0:
            assert D == 3
            a(f"s_mov_b32 s{sUSED}, {self.kboost}")
        a("L_kloop:")
        tr()
        for s in range(RS):
            if self.kboost >= 0:
                throttle()
            else:
                a(f"s_waitcnt vmcnt({thr})")
            load((s + D) % RS, "kv" if s == RS - D - 1 else None)
            if s & 1:
                if self.early:
                    a(f"s_waitcnt vmcnt({3*D})")
                if not self.nok:
                    kpair(s - 1, (s // 2) * 4)
        a(f"""v_add_u32 v{vSCW}, {2*RS}, v{vSCW}
        s_add_u32 s{sIT}, s{sIT}, 1
        s_cmp_lt_u32 s{sIT}, {NITK}
        s_cbranch_scc1 L_kloop""")
        for s in range(D, R1):
            load(s)
        self.stamp(2, vA)
        tr()
        F = 32
        a(f"""v_lshl_add_u32 v{vT2}, v{vT1}, 4, v{vSCR}
        s_memrealtime s[46:47]
        s_waitcnt lgkmcnt(0)
        ds_read_b128 v[40:43], v{vT2}
        s_waitcnt lgkmcnt(0)""")
        for i in range(4):
            a(f"v_lshlrev_b32 v{F+2*i}, 16, v{40+i}\nv_and_b32 v{F+2*i+1}, 0xffff0000, v{40+i}")
        a(f"""v_max3_f32 v{vA0}, v{F}, v{F+1}, v{F+2}
        v_max3_f32 v{vA0}, v{vA0}, v{F+3}, v{F+4}
        v_max3_f32 v{vA0}, v{vA0}, v{F+5}, v{F+6}
        v_max_f32 v{vA0}, v{vA0}, v{F+7}""")
        self.row_reduce("v_max_f32", vA0)
        self.swap_reduce("v_max_f32", vA0, vT3, 16)
        self.swap_reduce("v_max_f32", vA0, vT3, 32)
        for i in range(8):
            a(f"v_sub_f32 v{F+i}, v{F+i}, v{vA0}\nv_mul_f32 v{F+i}, {LOG2E}, v{F+i}")
        for i in range(8):
            a(f"v_exp_f32 v{F+i}, v{F+i}")
        a("s_nop 0")
        a(f"v_add_f32 v{vA1}, v{F}, v{F+1}")
        for i in range(2, 8):
            a(f"v_add_f32 v{vA1}, v{vA1}, v{F+i}")
        for i in range(4):
            a(f"v_cvt_pk_bf16_f32 v{40+i}, v{F+2*i}, v{F+2*i+1}")
        a(f"ds_write_b128 v{vT2}, v[40:43]")
        self.row_reduce("v_add_f32", vA1)
        self.swap_reduce("v_add_f32", vA1, vT3, 16)
        self.swap_reduce("v_add_f32", vA1, vT3, 32)
        a("s_waitcnt lgkmcnt(0)")
        def pread(n):
            if n == 2: a(f"ds_read_b64 v[{vP}:{vP+1}], v{vSCR}")
            elif n == 3: a(f"ds_read_b32 v{vP}, v{vSCR}\nds_read_b32 v{vP+1}, v{vSCR} offset:4\nds_read_b32 v{vP+2}, v{vSCR} offset:8")
            else: raise ValueError(n)
            a(f"v_add_u32 v{vSCR}, {4*n}, v{vSCR}")
        pread(R1 // 2)
        self.tag(44, vA0, vTG)
        self.tag(45, vA1, vTG)
        if self.diagx:
            a(f"s_getreg_b32 s9, hwreg(HW_REG_XCC_ID, 0, 4)\ns_lshl_b32 s9, s9, 8\nv_or_b32 v44, s9, v44")
        a(f"""v_mov_b32 v46, s{sT}
        v_mov_b32 v47, s46
        s_lshl_b32 s9, s3, 4
        v_mov_b32 v{vA0}, s9
        s_mov_b64 exec, 1
        ds_write_b128 v{vA0}, v[44:47] offset:{L_STL}
        s_mov_b64 exec, -1""")
        self.wide_tag(vTG)
        for i in range(12):
            a(f"v_mov_b32 v{vACC+i}, 0")
        a(f"s_mov_b32 s{sIT}, 0\ns_waitcnt lgkmcnt(0)")
        a(f"""v_and_b32 v{vT0}, 7, v{vL}
        v_mul_u32_u24 v{vT0}, {OS}, v{vT0}
        v_lshrrev_b32 v{vT1}, 4, v{vL}
        v_lshl_add_u32 v{vT0}, v{vT1}, 4, v{vT0}
        v_bfe_u32 v{vT2}, v{vL}, 3, 1
        v_mul_u32_u24 v{vT3}, 192, v{vT2}
        v_add_u32 v{vT0}, v{vT0}, v{vT3}
        v_mul_u32_u24 v18, 0xaaaa, v{vT2}
        v_add_u32 v18, 0x4444, v18
        v_lshl_or_b32 v18, v18, 16, v18
        v_and_b32 v{vT2}, 1, v{vT1}
        v_and_b32 v{vT3}, 31, v{vL}
        v_lshlrev_b32 v{vT3}, 2, v{vT3}
        v_lshlrev_b32 v{vT2}, 3, v{vT2}
        v_lshlrev_b32 v{vT1}, 8, v{vT1}
        v_bfe_u32 v{vA0}, v{vL}, 3, 1
        v_lshl_add_u32 v{vT1}, v{vA0}, 4, v{vT1}
        v_and_b32 v{vA0}, 7, v{vL}
        v_mul_u32_u24 v{vA0}, {WXS}, v{vA0}
        s_lshl_b32 s9, s3, 6
        s_add_u32 s9, s9, {L_WX}
        v_add3_u32 v{vT1}, v{vT1}, v{vA0}, s9
        s_mul_i32 s9, s7, 2560
        s_lshl_b32 s11, s3, 7
        s_add_u32 s9, s9, s11
        s_add_u32 s9, s9, {P_OFF + 2048}
        s_mov_b32 s67, s9""")
        self.stamp(3, 60)
        tr()

        def vmf(g, slot):
            A = vA + 4 * ((g + 1) & 1)
            for j in range(3):
                self.mfma(vACC + 4 * j, A, RING + (slot * 3 + j) * 4, vACC + 4 * j)
        def vA_(g):
            self.buildA(vA + 4 * ((g + 1) & 1), vP + g // 2, g & 1, vSEL)
        NE, DE = self.NE, self.DE
        RSV = 6
        VD_ = self.VD
        sUSED, sTGT = 44, 45
        vZ, vB = 62, 63
        assert (64 - R1 - NE) % RSV == 0 and NE == 12
        NITV = (64 - R1 - NE) // RSV
        def prog(val):
            L = self.lab("pg")
            a(f"""s_cmp_lg_u32 s3, 0
            s_cbranch_scc1 {L}
            v_mov_b32 v{vB}, {val}
            v_lshlrev_b32 v60, 2, v{vB}
            v_mov_b32 v61, s46
            ds_write_b32 v60, v61 offset:{L_TM}
            ds_write_b32 v{vZ}, v{vB} offset:{L_PROG}
            {L}:""")
        a(f"v_mov_b32 v{vZ}, 0\ns_mov_b32 s{sUSED}, 0\ns_mov_b32 s{sTGT}, 0")
        prog(1)
        issued = 0
        for g in range(R1):
            vA_(g)
            if g == R1 - 1:
                pread(3)
                a(f"ds_read_b32 v{vB}, v{vZ} offset:{L_BOOST}")
            if g >= 4 - VD_:
                a(f"s_waitcnt vmcnt(3)")
                load((R1 + issued) % RSV)
                issued += 1
            else:
                a(f"s_waitcnt vmcnt({3*(R1 - g - 1)})\ns_nop 0")
            vmf(g, g)
        a(f"""L_vloop:
        s_memrealtime s[46:47]
        s_waitcnt lgkmcnt(0)
        v_readfirstlane_b32 s9, v{vB}
        s_sext_i32_i16 s11, s9
        s_cmp_lg_u32 s9, s{sTGT}
        s_cselect_b32 s{sUSED}, s11, s{sUSED}
        s_mov_b32 s{sTGT}, s9
        s_add_u32 s9, s{sIT}, 2""")
        prog("s9")
        tr()
        for s in range(RSV):
            slot = (R1 + s) % RSV
            vA_(s)
            if s == RSV - 1:
                pread(3)
                a(f"ds_read_b32 v{vB}, v{vZ} offset:{L_BOOST}")
            if self.brd == 3 and s == 2:
                a(f"ds_read_b32 v{vB}, v{vZ} offset:{L_BOOST}")
            if self.brd == 3 and s == 3:
                a(f"""s_waitcnt lgkmcnt(0)
                v_readfirstlane_b32 s9, v{vB}
                s_sext_i32_i16 s11, s9
                s_cmp_lg_u32 s9, s{sTGT}
                s_cselect_b32 s{sUSED}, s11, s{sUSED}
                s_mov_b32 s{sTGT}, s9""")
            throttle(VD_)
            load((slot + VD_) % RSV)
            vmf(s, slot)
        a(f"""s_add_u32 s{sIT}, s{sIT}, 1
        s_cmp_lt_u32 s{sIT}, {NITV}
        s_cbranch_scc1 L_vloop""")
        slot_of = lambda e: (R1 + e) % RSV if e < VD_ else e + 6 - VD_
        nxt = VD_
        a(f"""s_waitcnt lgkmcnt(0)
        v_readfirstlane_b32 s9, v{vB}
        s_sext_i32_i16 s11, s9
        s_cmp_lg_u32 s9, s{sTGT}
        s_cselect_b32 s{sUSED}, s11, s{sUSED}""")
        for e in range(NE):
            if e == 6:
                a("s_waitcnt lgkmcnt(0)")
            if e % 6 == 0:
                tr()
            vA_(e % 6)
            if e == 5:
                pread(3)
            if e == 7 and self.spre:
                a(f"""L_wxw:
                ds_read_b64 v[60:61], v{vZ} offset:{L_WXOK}
                s_waitcnt lgkmcnt(0)
                v_and_b32 v60, v60, v61
                s_nop 0
                v_readfirstlane_b32 s9, v60
                s_cmp_eq_u32 s9, 0
                s_cbranch_scc1 L_wxw""")
                for kp in range(3):
                    for hl in range(2):
                        for k2 in range(2):
                            r = RING + (2 * kp + hl) * 8 + 4 * k2
                            a(f"ds_read_b128 v[{r}:{r+3}], v{vT1} offset:{8*WXS*(2*kp+k2) + 32*hl}")
            if e < self.NB:
                throttle(VD_)
                load(slot_of(nxt)); nxt += 1
            else:
                a(f"s_waitcnt vmcnt({3*(nxt - e - 1)})")
                n0 = nxt
                while nxt < NE and nxt - e - 1 < DE:
                    load(slot_of(nxt)); nxt += 1
                if nxt == n0:
                    a("s_nop 0")
            vmf(e % 6, slot_of(e))
        a("s_nop 3\ns_mov_b32 exec_lo, 0x00ff00ff\ns_mov_b32 exec_hi, 0xff00ff00")
        OC = 12
        for j in range(3):
            a(f"""v_cvt_pk_bf16_f32 v{OC+2*j}, v{vACC+4*j}, v{vACC+4*j+1}
            v_cvt_pk_bf16_f32 v{OC+2*j+1}, v{vACC+4*j+2}, v{vACC+4*j+3}
            ds_write2_b32 v{vOW}, v{OC+2*j}, v{OC+2*j+1} offset0:{16*j} offset1:{16*j+48}""")
        a("s_mov_b64 exec, -1")
        for r in (20, 21, 22, 23, 52, 53, 54, 55):
            a(f"v_mov_b32 v{r}, 0")
        a("s_waitcnt lgkmcnt(0)")
        self.stamp(4, 56)
        tr()
        a("s_barrier")
        AA = RING + 12 * W
        BB = AA + 24
        assert BB + 48 <= 256
        D0, D1, SCL = 20, 52, 40
        if self.spre:
            BB = RING
            for kp in range(3):
                a(f"ds_read_b128 v[{AA+4*kp}:{AA+4*kp+3}], v{vT0} offset:{L_O + 64*kp}")
            a(f"ds_read_b64 v[{SCL}:{SCL+1}], v{vT2} offset:{L_SCALE}")
            for kp in range(3):
                a(f"s_waitcnt lgkmcnt({3-kp})")
                self.smf(D0, AA + 4 * kp, BB + (2 * kp) * 8, 18)
                self.smf(D1, AA + 4 * kp, BB + (2 * kp + 1) * 8, 18)
        else:
            for kp in range(3):
                a(f"ds_read_b128 v[{AA+4*kp}:{AA+4*kp+3}], v{vT0} offset:{L_O + 64*kp}")
                for hl in range(2):
                    for k2 in range(2):
                        r = BB + (2 * kp + hl) * 8 + 4 * k2
                        a(f"ds_read_b128 v[{r}:{r+3}], v{vT1} offset:{8*WXS*(2*kp+k2) + 32*hl}")
                if kp == 1:
                    a("s_waitcnt lgkmcnt(5)")
            a(f"ds_read_b64 v[{SCL}:{SCL+1}], v{vT2} offset:{L_SCALE}")
            for kp in range(3):
                a(f"s_waitcnt lgkmcnt({5*(2-kp)+1})")
                self.smf(D0, AA + 4 * kp, BB + (2 * kp) * 8, 18)
                self.smf(D1, AA + 4 * kp, BB + (2 * kp + 1) * 8, 18)
        a("s_waitcnt lgkmcnt(0)\ns_nop 7")
        for D in (D0, D1):
            a(f"""v_add_f32 v{D}, v{D}, v{D+1}
            v_add_f32 v{D+2}, v{D+2}, v{D+3}
            v_mul_f32 v{D}, v{D}, v{SCL}
            v_fmac_f32 v{D}, v{D+2}, v{SCL+1}""")
        a(f"""s_nop 1
        v_permlane16_swap_b32 v{D0}, v{D1}
        s_nop 1
        v_add_f32 v{D0}, v{D0}, v{D1}""")
        self.swap_reduce("v_add_f32", D0, D1, 32)
        self.tag(D0, D0, vTG, rn=12)
        if self.pq:
            a("s_endpgm")
        if self.wide:
            a(f"""s_mov_b32 exec_hi, 0
            s_nop 0
            v_mov_b32_dpp v{D0+1}, v{D0} quad_perm:[1,1,1,1] row_mask:0xf bank_mask:0xf
            v_mov_b32_dpp v{D0+2}, v{D0} quad_perm:[2,2,2,2] row_mask:0xf bank_mask:0xf
            v_mov_b32_dpp v{D0+3}, v{D0} quad_perm:[3,3,3,3] row_mask:0xf bank_mask:0xf
            s_mov_b32 exec_lo, 0x11111111
            buffer_store_dwordx4 v[{D0}:{D0+3}], v{vT3}, s[56:59], s67 offen {self.pst}
            s_mov_b64 exec, -1""")
        else:
            a(f"""s_mov_b32 exec_hi, 0
            buffer_store_dword v{D0}, v{vT3}, s[56:59], s67 offen {self.pst}
            s_mov_b64 exec, -1""")
        self.stamp(5, 12)
        tr()
        if self.trace:
            a(f"""s_sleep 127
            s_lshl_b32 s9, s2, 2
            s_add_u32 s9, s9, s3
            s_lshl_b32 s9, s9, 8
            s_add_u32 s9, s9, {3 << 20}
            v_lshlrev_b32 v12, 2, v0
            buffer_store_dword v{vTR}, v12, s[56:59], s9 offen""")
        for i, r in enumerate(self.fs):
            self.stamp(6 + i, 12, src=r)
        a("s_endpgm")

    def gen_H(self):
        self.cls = "H"
        a = self.a
        vL = 0
        vT0, vT1, vT2, vT3, vT4, vT5, vW = 1, 2, 3, 4, 5, 6, 7
        vX = 8
        vSEL = 18
        vTG = 26
        vCK = 27
        vF = 28
        vA, vACC = 28, 36
        vE = 52
        TI = 64
        if self.hprio:
            a(f"s_setprio {self.hprio}")
        a("s_sub_u32 s3, s3, 4")
        a(f"""s_and_b32 s14, s10, 7
        s_lshl_b32 s52, s14, 5
        s_add_u32 s52, s52, s4
        s_cmp_ge_u32 s14, 6
        s_cselect_b32 s52, 255, s52
        s_cmp_eq_u32 s3, 3
        s_cbranch_scc1 L_h3
        v_lshrrev_b32 v{vT0}, 5, v{vL}
        v_mul_u32_u24 v{vT0}, 1280, v{vT0}
        v_and_b32 v{vT1}, 31, v{vL}
        v_lshl_add_u32 v{vT0}, v{vT1}, 3, v{vT0}
        v_lshrrev_b32 v{vT1}, 3, v{vL}
        v_and_b32 v{vT2}, 7, v{vL}
        s_lshl_b32 s53, s4, 1
        s_add_u32 s53, s53, s14
        s_sub_u32 s53, s53, 6
        s_lshl_b32 s53, s53, 1
        s_add_u32 s53, s53, s3
        s_add_u32 s9, s52, 128
        s_cmp_eq_u32 s3, 2
        s_cselect_b32 s53, s9, s53
        s_cselect_b32 s9, 7, s14
        s_waitcnt lgkmcnt(0)""")
        self.srd(60, 16, 2560)
        for t in range(5):
            a(f"buffer_load_dwordx2 v[{vX+2*t}:{vX+2*t+1}], v{vT0}, s[60:63], 0 offen offset:{256*t}")
        a(f"""s_mov_b32 s47, 0x20000
        s_cmp_ge_u32 s9, 6
        s_cbranch_scc1 L_jgu
        s_mov_b32 s44, s22
        s_mov_b32 s45, s23
        s_mov_b32 s46, {640*12288}
        s_mov_b32 s54, 12288
        s_and_b32 s55, s14, 1
        s_lshl_b32 s55, s55, 1
        s_add_u32 s55, s55, s3
        s_lshr_b32 s11, s14, 1
        s_mul_i32 s64, s4, 384
        s_lshl_b32 s9, s11, 7
        s_add_u32 s64, s64, s9
        s_lshl_b32 s66, s4, 2
        s_add_u32 s66, s66, s55
        s_mul_i32 s66, s66, 1536
        s_lshl_b32 s9, s11, 8
        s_add_u32 s66, s66, s9
        s_add_u32 s66, s66, {QX_OFF}
        s_mov_b32 s13, 768
        s_branch L_jd
        L_jgu:
        s_bitcmp1_b32 s53, 2
        s_cselect_b32 s44, s32, s30
        s_cselect_b32 s45, s33, s31
        s_mov_b32 s46, {640*3072}
        s_mov_b32 s54, 3072
        s_and_b32 s55, s53, 3
        s_lshr_b32 s64, s53, 3
        s_lshl_b32 s64, s64, 7
        s_lshl_b32 s66, s53, 9
        s_add_u32 s66, s66, {GU_OFF}
        s_mov_b32 s13, 256
        L_jd:
        s_mul_i32 s9, s54, 20
        v_mul_lo_u32 v{vW}, v{vT1}, s9
        v_lshl_add_u32 v{vW}, v{vT2}, 4, v{vW}
        s_mul_i32 s9, s55, 160
        s_mul_i32 s9, s9, s54
        s_add_u32 s9, s9, s64
        v_add_u32 v{vW}, s9, v{vW}""")
        def job_loads():
            a("s_mov_b32 s9, 0")
            for G in range(20):
                a(f"buffer_load_dwordx4 v[{TI+4*G}:{TI+4*G+3}], v{vW}, s[44:47], s9 offen {self.wf}")
                if G < 19:
                    a("s_add_u32 s9, s9, s54")
        a("s_cmp_eq_u32 s3, 2\ns_cbranch_scc1 L_nj1")
        job_loads()
        a("L_nj1:")
        self.epoch_load()
        self.srd(56, 40, WS_SRD)
        self.selectors(vL, vSEL, vT3, vT4, vT5)
        a("s_cmp_lg_u32 s3, 2\ns_cbranch_scc1 L_nx2\ns_waitcnt vmcnt(0)\nL_nx2:")
        a(f"s_mov_b32 s9, 0x3f803f80\ns_waitcnt vmcnt(20)")
        self.stamp(11, 60)
        for i in range(10):
            c = "0" if i == 0 else f"v{vT3}"
            a(f"v_dot2_f32_bf16 v{vT3}, v{vX+i}, s9, {c}")
        for i in range(2):
            a(f"v_lshlrev_b32 v{vF+2*i}, 16, v{vX+i}\nv_and_b32 v{vF+2*i+1}, 0xffff0000, v{vX+i}")
        k = 2
        for st in (1, 2, 4, 8):
            self.dpp("v_add_f32", vT3, vT3, vT3, f"row_ror:{st}")
            a(f"v_lshlrev_b32 v{vF+2*k}, 16, v{vX+k}\nv_and_b32 v{vF+2*k+1}, 0xffff0000, v{vX+k}")
            k += 1
        a(f"v_mov_b32 v{vT4}, v{vT3}")
        a(f"v_lshlrev_b32 v{vF+2*k}, 16, v{vX+k}\nv_and_b32 v{vF+2*k+1}, 0xffff0000, v{vX+k}")
        k += 1
        a(f"v_permlane16_swap_b32 v{vT3}, v{vT4}")
        while k < 10:
            a(f"v_lshlrev_b32 v{vF+2*k}, 16, v{vX+k}\nv_and_b32 v{vF+2*k+1}, 0xffff0000, v{vX+k}")
            k += 1
        a(f"v_add_f32 v{vT3}, v{vT3}, v{vT4}")
        def div640(v, t):
            a(f"""v_mul_f32 v{t}, {f32(1/640)}, v{v}
            v_fmac_f32 v{v}, {f32(-640.0)}, v{t}
            v_fmac_f32 v{t}, {f32(1/640)}, v{v}""")
        M2 = vE
        D2 = vE + 2
        Q2 = vE + 4
        div640(vT3, M2)
        a(f"v_mov_b32 v{M2+1}, v{M2}")
        for i in range(10):
            a(f"v_pk_add_f32 v[{D2}:{D2+1}], v[{vF+2*i}:{vF+2*i+1}], v[{M2}:{M2+1}] neg_lo:[0,1] neg_hi:[0,1]")
            if i == 0:
                a(f"v_pk_mul_f32 v[{Q2}:{Q2+1}], v[{D2}:{D2+1}], v[{D2}:{D2+1}]")
            else:
                a(f"v_pk_fma_f32 v[{Q2}:{Q2+1}], v[{D2}:{D2+1}], v[{D2}:{D2+1}], v[{Q2}:{Q2+1}]")
        a(f"v_add_f32 v{vT4}, v{Q2}, v{Q2+1}")
        self.rbf(M2)
        a(f"v_mov_b32 v{M2+1}, v{M2}")
        def xc(i):
            a(f"""v_pk_add_f32 v[{vF+2*i}:{vF+2*i+1}], v[{vF+2*i}:{vF+2*i+1}], v[{M2}:{M2+1}] neg_lo:[0,1] neg_hi:[0,1]
            v_cvt_pk_bf16_f32 v{vF+2*i+1}, v{vF+2*i}, v{vF+2*i+1}
            v_lshlrev_b32 v{vF+2*i}, 16, v{vF+2*i+1}
            v_and_b32 v{vF+2*i+1}, 0xffff0000, v{vF+2*i+1}""")
        k = 0
        for st in (1, 2, 4, 8):
            self.dpp("v_add_f32", vT4, vT4, vT4, f"row_ror:{st}")
            xc(k); k += 1
        a(f"v_mov_b32 v{vT5}, v{vT4}")
        xc(k); k += 1
        a(f"v_permlane16_swap_b32 v{vT4}, v{vT5}")
        xc(k); k += 1
        a(f"v_add_f32 v{vT4}, v{vT4}, v{vT5}")
        div640(vT4, vT5)
        self.rbf(vT5)
        a(f"v_add_f32 v{vT5}, {f32(1e-5)}, v{vT5}")
        self.rbf(vT5)
        a(f"v_sqrt_f32 v{vT5}, v{vT5}")
        xc(k); k += 1
        self.rbf(vT5)
        a(f"v_rcp_f32 v{D2}, v{vT5}")
        xc(k); k += 1
        a(f"v_mov_b32 v{D2+1}, v{D2}\nv_mov_b32 v{Q2}, v{vT5}\nv_mov_b32 v{Q2+1}, v{vT5}")
        while k < 10:
            xc(k); k += 1
        R2 = vE + 6
        for i in range(10):
            f = vF + 2 * i
            a(f"""v_pk_mul_f32 v[{R2}:{R2+1}], v[{f}:{f+1}], v[{D2}:{D2+1}]
            v_pk_fma_f32 v[{f}:{f+1}], v[{R2}:{R2+1}], v[{Q2}:{Q2+1}], v[{f}:{f+1}] neg_lo:[1,0,0] neg_hi:[1,0,0]
            v_pk_fma_f32 v[{R2}:{R2+1}], v[{f}:{f+1}], v[{D2}:{D2+1}], v[{R2}:{R2+1}]
            v_cvt_pk_bf16_f32 v{vX+i}, v{R2}, v{R2+1}""")
            if i & 1:
                t = i // 2
                a(f"ds_write_b64 v{vT0}, v[{vX+2*t}:{vX+2*t+1}] offset:{L_XN + 256*t}")
        a("s_waitcnt lgkmcnt(0)")
        self.epoch_use(vTG)
        self.stamp(15, 60, src=48)
        self.stamp(1, 60)
        a(f"""s_cmp_lg_u32 s3, 2
        s_cbranch_scc1 L_job
        s_cmp_ge_u32 s52, {0 if self.nomoe else 64}
        s_cbranch_scc1 L_bar1""")
        job_loads()
        a("L_job:")
        C1 = 44
        a(f"""v_mul_u32_u24 v{vT3}, 40, v{vT1}
        s_mul_i32 s9, s55, 320
        v_add_u32 v{vT3}, s9, v{vT3}""")
        for bb, base in ((0, vX), (1, C1)):
            for t in range(5):
                a(f"ds_read_b64 v[{base+2*t}:{base+2*t+1}], v{vT3} offset:{L_XN + 1280*bb + 8*t}")
        a(f"""v_lshrrev_b32 v{vT4}, 5, v{vL}
        v_mul_lo_u32 v{vT4}, v{vT4}, s13
        v_lshl_add_u32 v{vT4}, v{vT2}, 5, v{vT4}
        v_bfe_u32 v{vT5}, v{vL}, 4, 1
        v_lshl_add_u32 v{vT4}, v{vT5}, 4, v{vT4}
        s_waitcnt lgkmcnt(0)""")
        self.job_compute(20, vX, C1, TI, vA, vACC, vSEL, vTG, vT4, "s66", True)
        a(f"s_setprio {self.hprio1}\ns_cmp_eq_u32 s3, 2\ns_cbranch_scc1 L_bar1")
        self.srd(44, 24, 0 if self.nowo else 6144 * 1280)
        a(f"""v_lshrrev_b32 v{vT3}, 4, v{vL}
        v_mul_u32_u24 v{vT3}, {8*1280}, v{vT3}
        v_and_b32 v{vT4}, 15, v{vL}
        v_lshl_add_u32 v{vT3}, v{vT4}, 4, v{vT3}
        s_mul_i32 s9, s4, {192*1280}
        s_mul_i32 s10, s3, {96*1280}
        s_add_u32 s9, s9, s10
        s_add_u32 s9, s9, 1024
        v_add_u32 v{vT3}, s9, v{vT3}
        s_mul_i32 s9, s3, {24*WXS}
        s_add_u32 s9, s9, {L_WX}
        v_lshlrev_b32 v{vT4}, 4, v{vL}
        v_add_u32 v{vT4}, s9, v{vT4}
        s_mov_b32 s14, 0x05040100
        s_mov_b32 s15, 0x07060302""")
        for kk in range(3):
            if kk == self.pre:
                a("s_barrier")
            sr, d = TI + 64 * kk, TI + 64 * kk + 32
            for e in range(8):
                if e % 4 == 0:
                    a(f"s_mov_b32 s9, {(32*kk + e)*1280}")
                a(f"buffer_load_dwordx4 v[{sr+4*e}:{sr+4*e+3}], v{vT3}, s[44:47], s9 offen offset:{(e%4)*1280} {self.wof}")
            for t in range(4):
                a(f"s_waitcnt vmcnt({6-2*t})")
                for dd in range(4):
                    a(f"v_perm_b32 v{d+(2*dd)*4+t}, v{sr+(2*t+1)*4+dd}, v{sr+(2*t)*4+dd}, s14")
                    a(f"v_perm_b32 v{d+(2*dd+1)*4+t}, v{sr+(2*t+1)*4+dd}, v{sr+(2*t)*4+dd}, s15")
            for c in range(8):
                a(f"ds_write_b128 v{vT4}, v[{d+4*c}:{d+4*c+3}] offset:{(8*kk + c)*WXS}")
        a(f"""s_lshl_b32 s9, s3, 2
        v_mov_b32 v{vT3}, s9
        v_mov_b32 v{vT4}, 1
        ds_write_b32 v{vT3}, v{vT4} offset:{L_WXOK}
        s_waitcnt lgkmcnt(0)
        s_branch L_h1""")
        a("L_h3:\nv_mov_b32 v10, 0\nv_mov_b32 v11, 0\ns_waitcnt lgkmcnt(0)")
        self.epoch_load()
        self.srd(56, 40, WS_SRD)
        a(f"""v_lshlrev_b32 v{vT3}, 4, v{vL}
        v_lshlrev_b32 v{vT4}, 3, v{vL}
        s_mul_i32 s9, s4, {4*1536}
        s_mul_i32 s11, s5, 768
        s_add_u32 s9, s9, s11
        s_add_u32 s70, s9, {QX_OFF}
        s_add_u32 s71, s70, 3072
        s_waitcnt lgkmcnt(0)""")
        self.epoch_use(vTG)
        a(f"""v_mov_b32 v{vT5}, 0
        s_not_b32 s9, s{sT}
        v_mov_b32 v{vT0}, s9
        v_lshlrev_b32 v{vT1}, 2, v{vL}
        ds_write_b32 v{vT5}, v{vT5} offset:{L_PROG}
        ds_write_b32 v{vT5}, v{vT5} offset:{L_BOOST}
        ds_write_b32 v{vT5}, v{vT5} offset:{L_WXOK}
        ds_write_b32 v{vT5}, v{vT5} offset:{L_WXOK + 4}
        s_mov_b64 exec, 0xffff
        ds_write_b32 v{vT1}, v{vT0} offset:{L_STL}
        s_mov_b64 exec, -1""")
        q = self.qsleep
        while q > 0:
            a(f"s_sleep {min(q, 127)}")
            q -= 127
        self.mpoll([(TI + 4 * k, f"buffer_load_dwordx4 v[{TI+4*k}:{TI+4*k+3}], v{vT3}, s[56:59], s{70+k//2} offen offset:{1536*(k&1)} sc1") for k in range(4)],
                   vTG, vCK, self.qsleep2, mask=("-1", "0xffff"))
        self.sum_quads(TI, 4)
        a(f"""s_mov_b32 exec_hi, 0xffff
        v_cvt_pk_bf16_f32 v{TI}, v{TI}, v{TI+1}
        v_cvt_pk_bf16_f32 v{TI+1}, v{TI+2}, v{TI+3}
        ds_write_b64 v{vT4}, v[{TI}:{TI+1}] offset:{L_QB}
        s_mov_b64 exec, -1
        s_waitcnt lgkmcnt(0)""")
        self.stamp(2, 60)
        a(f"""L_bar1:
        s_setprio {self.hprio1}
        s_barrier
        L_h1:""")
        a(f"v_and_b32 v{vT1}, 15, v{vL}\nv_lshrrev_b32 v{vT2}, 4, v{vL}")
        self.srd(44, 24, 0 if self.nowo else 6144 * 1280)
        a(f"""v_mul_u32_u24 v{vW}, {8*1280}, v{vT2}
        s_mul_i32 s9, s4, {192*1280}
        v_add_u32 v{vW}, s9, v{vW}
        v_lshl_add_u32 v{vW}, v{vT1}, 4, v{vW}
        s_lshl_b32 s9, s3, 8
        v_add_u32 v{vW}, s9, v{vW}
        s_mov_b32 s14, 0x05040100
        s_mov_b32 s15, 0x07060302""")
        self.stamp(3, 60)
        def REG(k): return 32 + 32 * k
        for K in (5, 4, 3, 2, 1, 0):
            if K == 3:
                a(f"""s_cmp_lg_u32 s3, 2
                s_cbranch_scc1 L_nodn
                s_sub_u32 s52, s52, 64
                s_cmp_ge_u32 s52, {0 if self.nomoe else 120}
                s_cbranch_scc1 L_nodn""")
                self.gen_dn(vL, vT3, vT4, vT5, vSEL, vTG, vCK, TI)
                self.stamp(9, 60)
                a("L_nodn:")
            for e in range(8):
                if e % 4 == 0:
                    a(f"s_mov_b32 s9, {(32*K + e)*1280}")
                r = REG(0) + 4 * e
                a(f"buffer_load_dwordx4 v[{r}:{r+3}], v{vW}, s[44:47], s9 offen offset:{(e%4)*1280} {self.wof}")
                if self.wobatch == 4 and e == 3:
                    a("s_waitcnt vmcnt(0)")
                    if self.wosleep:
                        a(f"s_sleep {self.wosleep}")
                if self.wobatch == 2 and e in (1, 3, 5):
                    a("s_waitcnt vmcnt(0)")
            s, d = REG(0), 64 + 64 * (K // 2) + 4 * (K & 1)
            for t in range(4):
                a(f"s_waitcnt vmcnt({6-2*t})")
                for dd in range(4):
                    a(f"v_perm_b32 v{d+(2*dd)*8+t}, v{s+(2*t+1)*4+dd}, v{s+(2*t)*4+dd}, s14")
                    a(f"v_perm_b32 v{d+(2*dd+1)*8+t}, v{s+(2*t+1)*4+dd}, v{s+(2*t)*4+dd}, s15")
        vG, vXC, vOUTA, vPA, vSC = 8, 9, 10, 11, 12
        vAR, vST = 14, 15
        Wk = 32
        self.stamp(4, 60)
        a(f"""s_cmp_lg_u32 s3, 0
        s_cbranch_scc1 L_noep
        s_cmp_lg_u32 s2, 0
        s_cbranch_scc1 L_noep""")
        Lc, Lcd = self.lab("c0"), self.lab("c0d")
        a(f"""s_mov_b32 s12, {self.poll_max}
        v_lshlrev_b32 v{Wk+8}, 6, v{vL}
        v_mov_b32 v{Wk+9}, s{sT}
        s_mov_b32 s9, {ST_OFF + 8}
        s_mov_b32 s10, {ST_OFF + 8 + 4096}
        s_mov_b32 s11, {ST_OFF + 8 + 8192}
        s_mov_b32 s13, {ST_OFF + 8 + 12288}
        {Lc}:
        s_sleep 127
        buffer_load_dword v{Wk}, v{Wk+8}, s[56:59], s9 offen sc1
        buffer_load_dword v{Wk+1}, v{Wk+8}, s[56:59], s10 offen sc1
        buffer_load_dword v{Wk+2}, v{Wk+8}, s[56:59], s11 offen sc1
        buffer_load_dword v{Wk+3}, v{Wk+8}, s[56:59], s13 offen sc1
        s_waitcnt vmcnt(0)""")
        self.chk4(vCK, Wk, Wk + 9, first=True, n=4)
        a(f"""v_cmp_ne_u32 vcc, 0, v{vCK}
        s_cbranch_vccz {Lcd}
        s_sub_u32 s12, s12, 1
        s_cmp_gt_u32 s12, 0
        s_cbranch_scc1 {Lc}
        {Lcd}:
        v_mov_b32 v{Wk}, 0
        s_mov_b32 s9, {EP_OFF}
        s_mov_b64 exec, 1
        buffer_store_dword v{Wk+9}, v{Wk}, s[56:59], s9 offen sc1
        s_mov_b64 exec, -1
        L_noep:""")
        a("s_cmp_lg_u32 s3, 3\ns_cbranch_scc1 L_nostat")
        if self.nopoll:
            a("s_branch L_nostat")
        vZ0 = Wk + 16
        L, Ld = self.lab("cw"), self.lab("cwd")
        a(f"""v_mov_b32 v{vZ0}, 0
        v_lshlrev_b32 v{Wk+4}, 4, v{vL}
        s_mov_b32 s12, {self.poll_max * 16}
        s_mov_b64 exec, 15
        {L}:
        ds_read_b128 v[{Wk}:{Wk+3}], v{Wk+4} offset:{L_STL}
        s_waitcnt lgkmcnt(0)
        v_cmp_ne_u32 vcc, s{sT}, v{Wk+2}
        s_cbranch_vccz {Ld}
        s_sleep 8
        s_sub_u32 s12, s12, 1
        s_cmp_gt_u32 s12, 0
        s_cbranch_scc1 {L}
        {Ld}:
        s_lshl_b32 s9, s7, 6
        s_add_u32 s9, s9, {ST_OFF}
        buffer_store_dwordx4 v[{Wk}:{Wk+3}], v{Wk+4}, s[56:59], s9 offen sc1
        s_mov_b64 exec, -1
        s_sleep {self.cdelay[0]}""")
        Ls, Lsd = self.lab("st"), self.lab("std")
        a(f"""v_lshlrev_b32 v{Wk+4}, 3, v{vT2}
        v_and_b32 v{Wk+5}, {self.mix}, v{vT2}
        v_lshl_add_u32 v{Wk+4}, v{Wk+5}, 2, v{Wk+4}
        v_add_u32 v{Wk+4}, s4, v{Wk+4}
        v_and_b32 v{Wk+4}, 31, v{Wk+4}
        v_lshlrev_b32 v{Wk+4}, 8, v{Wk+4}
        v_lshl_add_u32 v{Wk+4}, v{vT1}, 4, v{Wk+4}
        s_lshl_b32 s9, s5, 13
        s_add_u32 s9, s9, {ST_OFF}
        v_mov_b32 v{Wk+5}, s{sT}
        s_mov_b32 s12, {self.poll_max}""")
        if not self.ctl:
            a("s_mov_b64 exec, 0xffff")
        a(f"""{Ls}:
        buffer_load_dwordx4 v[{Wk}:{Wk+3}], v{Wk+4}, s[56:59], s9 offen sc1
        s_memrealtime s[10:11]
        s_waitcnt vmcnt(0) lgkmcnt(0)""")
        self.chk4(vCK, Wk, vTG, first=True, n=2)
        a(f"""v_and_b32 v{vCK}, 0xff, v{vCK}
        v_bitop3_b32 v{vCK}, v{Wk+2}, v{Wk+5}, v{vCK} bitop3:0xbe
        v_cmp_ne_u32 vcc, 0, v{vCK}
        s_and_b32 s13, vcc_lo, 0xffff
        s_cbranch_scc0 {Lsd}
        s_sleep {self.stsleep}
        s_sub_u32 s12, s12, 1
        s_cmp_gt_u32 s12, 0
        s_cbranch_scc1 {Ls}
        {Lsd}:
        s_mov_b64 exec, -1""")
        if self.ctl:
            a(f"""v_sub_u32 v{Wk+6}, s10, v{Wk+3}
            v_cvt_f32_i32 v{Wk+6}, v{Wk+6}
            v_cndmask_b32 v{Wk+6}, v{Wk+6}, 0, vcc
            s_lshl_b32 s9, s6, 2
            v_subrev_u32 v{Wk+7}, s9, v{vL}
            v_cmp_gt_u32 vcc, 4, v{Wk+7}
            v_mul_f32 v{Wk+7}, {f32(-15.0)}, v{Wk+6}
            s_nop 0
            v_cndmask_b32 v{Wk+6}, v{Wk+6}, v{Wk+7}, vcc""")
            self.row_reduce("v_add_f32", Wk + 6)
            self.swap_reduce("v_add_f32", Wk + 6, Wk + 7, 16)
            self.swap_reduce("v_add_f32", Wk + 6, Wk + 7, 32)
            a(f"""v_mul_f32 v{Wk+6}, {f32(1/64.0)}, v{Wk+6}
            """)
            self.decide(Wk + 6, Wk + 7, 0, vZ0)
        a(f"v_mov_b32 v{Wk+2}, v{Wk}")
        self.row_reduce("v_max_f32", Wk + 2)
        a(f"""v_sub_f32 v{Wk}, v{Wk}, v{Wk+2}
        v_mul_f32 v{Wk}, {LOG2E}, v{Wk}
        v_exp_f32 v{Wk}, v{Wk}
        s_nop 0
        v_mul_f32 v{Wk+1}, v{Wk+1}, v{Wk}""")
        self.row_reduce("v_add_f32", Wk + 1)
        a(f"""v_rcp_f32 v{Wk+2}, v{Wk+1}
        s_nop 0
        v_mul_f32 v{Wk+3}, v{Wk}, v{Wk+2}
        v_fma_f32 v{Wk}, -v{Wk+3}, v{Wk+1}, v{Wk}
        v_fmac_f32 v{Wk+3}, v{Wk}, v{Wk+2}
        s_lshl_b32 s9, s6, 2
        v_subrev_u32 v{Wk+4}, s9, v{vL}
        v_cmp_gt_u32 vcc, 4, v{Wk+4}
        v_lshlrev_b32 v{Wk+4}, 2, v{Wk+4}
        s_and_saveexec_b64 s[10:11], vcc
        ds_write_b32 v{Wk+4}, v{Wk+3} offset:{L_SCALE}
        s_mov_b64 exec, -1""")
        if self.ctl:
            a(f"""v_bfe_u32 v{Wk+4}, v{vL}, 2, 2
            v_and_b32 v{Wk+6}, {self.mix}, v{Wk+4}
            v_lshlrev_b32 v{Wk+4}, 3, v{Wk+4}
            v_lshl_add_u32 v{Wk+4}, v{Wk+6}, 2, v{Wk+4}
            v_add_u32 v{Wk+4}, s4, v{Wk+4}
            v_and_b32 v{Wk+4}, 31, v{Wk+4}
            v_lshlrev_b32 v{Wk+4}, 7, v{Wk+4}
            v_and_b32 v{Wk+6}, 3, v{vL}
            v_lshl_add_u32 v{Wk+4}, v{Wk+6}, 3, v{Wk+4}
            v_mov_b32 v{Wk+9}, s{sT}""")
            for ci in range(1, len(self.cps)):
                L, Ld = self.lab("cw"), self.lab("cwd")
                a(f"""s_mov_b32 s12, {self.poll_max * 16}
                {L}:
                ds_read_b32 v{Wk}, v{vZ0} offset:{L_PROG}
                s_waitcnt lgkmcnt(0)
                v_readfirstlane_b32 s9, v{Wk}
                s_cmp_ge_u32 s9, {self.cps[ci]}
                s_cbranch_scc1 {Ld}
                s_sleep 2
                s_sub_u32 s12, s12, 1
                s_cmp_gt_u32 s12, 0
                s_cbranch_scc1 {L}
                {Ld}:
                ds_read_b32 v{Wk+8}, v{vZ0} offset:{L_TM + 4*self.cps[ci]}
                s_lshl_b32 s9, s8, 7
                s_lshl_b32 s13, s6, 3
                s_add_u32 s9, s9, s13
                s_add_u32 s9, s9, {TS_OFF + 8192*ci}
                s_waitcnt lgkmcnt(0)
                v_readfirstlane_b32 s10, v{Wk+8}
                s_mov_b64 exec, 1
                buffer_store_dwordx2 v[{Wk+8}:{Wk+9}], v{vZ0}, s[56:59], s9 offen sc1
                s_mov_b64 exec, 0xffff
                s_sleep {self.cdelay[ci]}
                s_lshl_b32 s9, s5, 12
                s_add_u32 s9, s9, {TS_OFF + 8192*ci}
                buffer_load_dwordx2 v[{Wk}:{Wk+1}], v{Wk+4}, s[56:59], s9 offen sc1
                s_memrealtime s[12:13]
                s_waitcnt vmcnt(0) lgkmcnt(0)
                v_cmp_ne_u32 vcc, v{Wk+1}, v{Wk+9}
                v_sub_u32 v{Wk+6}, s12, v{Wk}
                v_cvt_f32_i32 v{Wk+6}, v{Wk+6}
                v_cndmask_b32 v{Wk+6}, v{Wk+6}, 0, vcc
                s_sub_u32 s12, s12, s10
                v_cvt_f32_u32 v{Wk+7}, s12""")
                self.row_reduce("v_add_f32", Wk + 6)
                a(f"""v_mul_f32 v{Wk+6}, {f32(1/16.0)}, v{Wk+6}
                v_sub_f32 v{Wk+6}, v{Wk+6}, v{Wk+7}
                """)
                self.decide(Wk + 6, Wk + 7, ci, vZ0)
                a("s_mov_b64 exec, -1")
        a("L_nostat:")
        a(f"""s_lshl_b32 s67, s6, 5
        s_add_u32 s67, s67, s4
        s_mov_b32 s68, 0
        s_cmp_lg_u32 s3, 2
        s_cbranch_scc1 L_noown
        s_cmp_ge_u32 s67, {8 if self.pq else 40}
        s_cbranch_scc1 L_noown
        s_mov_b32 s68, 1""")
        self.srd(60, 28, 1280)
        W = Wk
        a(f"""v_lshlrev_b32 v{W+20}, 2, v{vL}
        s_mul_i32 s9, s5, 1280
        v_add_u32 v{W+21}, s9, v{W+20}""")
        for t in range(5):
            a(f"buffer_load_dword v{W+t}, v{W+20}, s[60:63], 0 offen offset:{256*t}")
            a(f"ds_read_b32 v{W+5+t}, v{W+21} offset:{L_XN + 256*t}")
        self.srd(60, 16, 2560)
        a(f"""v_and_b32 v{W+22}, 3, v{vL}
        v_lshl_add_u32 v{vOUTA}, v{W+22}, 2, v{vT2}
        v_lshlrev_b32 v{vOUTA}, 1, v{vOUTA}
        s_lshl_b32 s10, s67, 5
        s_add_u32 s10, s10, s9
        v_add_u32 v{vOUTA}, s10, v{vOUTA}
        buffer_load_ushort v{vXC}, v{vOUTA}, s[60:63], 0 offen
        ds_read_u16 v{W+23}, v{vOUTA} offset:{L_XN}
        s_waitcnt vmcnt(0) lgkmcnt(0)""")
        for t in range(5):
            c = "0" if t == 0 else f"v{W+24}"
            a(f"v_dot2_f32_bf16 v{W+24}, v{W+t}, v{W+5+t}, {c}")
        a(f"v_lshlrev_b32 v{vXC}, 16, v{vXC}\nv_lshlrev_b32 v{W+23}, 16, v{W+23}\ns_nop 1")
        self.row_reduce("v_add_f32", W + 24)
        self.swap_reduce("v_add_f32", W + 24, W + 25, 16)
        self.swap_reduce("v_add_f32", W + 24, W + 25, 32)
        self.rbf(W + 24)
        self.sigmoid_like(W + 24, W + 24)
        self.rbf(W + 24)
        Ly, Lyd = self.lab("y"), self.lab("yd")
        a(f"""v_lshrrev_b32 v{W+20}, 2, v{vL}
        v_mul_u32_u24 v{W+21}, 5120, v{W+20}
        v_lshl_add_u32 v{W+21}, v{W+22}, 4, v{W+21}
        v_mul_u32_u24 v{vPA}, 2560, v{W+20}
        v_lshl_add_u32 v{vPA}, v{W+22}, 4, v{vPA}
        s_mul_i32 s9, s5, 2560
        s_lshl_b32 s10, s67, 6
        s_add_u32 s9, s9, s10
        s_add_u32 s9, s9, {Y_OFF}
        v_mov_b32 v{W}, 0
        v_mov_b32 v{W+1}, 0
        v_mov_b32 v{W+2}, 0
        v_mov_b32 v{W+3}, 0""")
        if not self.nomoe:
            self.mpoll([(W, f"buffer_load_dwordx4 v[{W}:{W+3}], v{W+21}, s[56:59], s9 offen sc1")], vTG, vCK, 64, mask=("-1", "0xffff"))
        self.merge4(W)
        self.rbf(W)
        a(f"v_mul_f32 v{W}, v{W}, v{W+24}")
        self.rbf(W)
        a(f"v_add_f32 v{W}, v{W}, v{W+23}")
        self.rbf(W)
        self.sigmoid_like(W + 1, W)
        a(f"v_mul_f32 v{vG}, v{W}, v{W+1}")
        self.rbf(vG)
        a(f"""s_mul_i32 s70, s5, {128*2560}
        s_lshl_b32 s10, s67, 6
        s_add_u32 s70, s70, s10""")
        for t in range(1, 8):
            a(f"s_add_u32 s{70+t}, s70, {t*40960}")
        if self.ppre == 1:
            for t in range(8):
                a(f"buffer_load_dwordx4 v[{W+4*t}:{W+4*t+3}], v{vPA}, s[56:59], s{70+t} offen sc1")
        a("L_noown:")
        self.srd(60, 36, 2560)
        a(f"""v_and_b32 v{vAR}, 7, v{vL}
        v_mul_u32_u24 v{vAR}, {OS}, v{vAR}
        v_lshl_add_u32 v{vAR}, v{vT2}, 4, v{vAR}
        v_bfe_u32 v{vT3}, v{vL}, 3, 1
        v_mul_u32_u24 v{vT4}, 192, v{vT3}
        v_add_u32 v{vAR}, v{vAR}, v{vT4}
        v_mul_u32_u24 v24, 0xaaaa, v{vT3}
        v_add_u32 v24, 0x4444, v24
        v_lshl_or_b32 v24, v24, 16, v24
        v_and_b32 v{vT3}, 1, v{vT2}
        v_lshlrev_b32 v{vST}, 5, v{vT1}
        v_lshl_add_u32 v{vST}, v{vT3}, 4, v{vST}
        v_lshrrev_b32 v{vT4}, 5, v{vL}
        v_lshl_add_u32 v{vST}, v{vT4}, 3, v{vST}
        v_lshlrev_b32 v{vT3}, 3, v{vT3}
        s_mul_i32 s9, s7, 2560
        s_lshl_b32 s10, s3, 9
        s_add_u32 s9, s9, s10
        s_waitcnt vmcnt(0) lgkmcnt(0)""")
        if self.ppre == 2:
            a(f"""v_not_b32 v32, v{vTG}
            v_mov_b32 v33, v32
            v_mov_b32 v34, v32
            v_mov_b32 v35, v32
            v_lshlrev_b32 v36, 4, v{vL}
            s_mul_i32 s10, s7, 2560
            s_mul_i32 s11, s3, 640
            s_add_u32 s10, s10, s11
            s_mov_b32 exec_hi, 0xff
            buffer_store_dwordx4 v[32:35], v36, s[56:59], s10 offen sc1
            s_mov_b32 exec_hi, -1
            s_waitcnt vmcnt(0)""")
        self.stamp(5, 60)
        a(f"s_setprio {self.hprio2}")
        a(f"s_mov_b32 s43, {1 if self.dry else 0}")
        for t in range(8):
            a(f"s_mov_b64 s[{80+2*t}:{81+2*t}], -1")
        self.wide_tag(vTG)
        a("v_mov_b32 v25, 0xfff")
        a("L_tail:")
        for r in range(32, 64):
            a(f"v_mov_b32 v{r}, 0")
        a("s_cmp_lg_u32 s43, 0\ns_cbranch_scc1 L_nobar\ns_barrier\nL_nobar:")
        if self.stamps == 4:
            a("s_memrealtime s[44:45]")
        AT = [16, 20, 28]
        for kp in range(3):
            a(f"ds_read_b128 v[{AT[kp]}:{AT[kp]+3}], v{vAR} offset:{L_O + 64*kp}")
        a(f"ds_read_b64 v[{vSC}:{vSC+1}], v{vT3} offset:{L_SCALE}")
        def epi(c):
            D = 32 + 4 * c
            return [f"v_add_f32 v{D}, v{D}, v{D+1}", f"v_add_f32 v{D+2}, v{D+2}, v{D+3}",
                    f"v_mul_f32 v{D}, v{D}, v{vSC}", f"v_fmac_f32 v{D}, v{D+2}, v{vSC+1}"]
        order = (0, 2, 1, 3)
        pend = []
        for pi, pr in enumerate(order):
            for kp in range(3):
                if pi == 0:
                    a(f"s_waitcnt lgkmcnt({3-kp})")
                for c in (pr, pr + 4):
                    self.smf(32 + 4 * c, AT[kp], 64 + 64 * kp + 8 * c, 24)
                    if pi >= 2 and (kp >= 1 or pi == 3):
                        for _ in range(2):
                            if pend:
                                a(pend.pop(0))
            if pi == 1:
                a("s_waitcnt lgkmcnt(0)")
                e0, e4 = epi(order[0]), epi(order[0] + 4)
                pend += [e0[0], e0[1], e4[0], e4[1], e0[2], e0[3], e4[2], e4[3]]
            if pi == 2:
                e0, e4 = epi(order[1]), epi(order[1] + 4)
                pend += [e0[0], e0[1], e4[0], e4[1], e0[2], e0[3], e4[2], e4[3],
                         f"v_permlane16_swap_b32 v32, v48", "s_nop 0", "v_add_f32 v32, v32, v48",
                         f"v_permlane16_swap_b32 v40, v56"]
        for x in pend:
            a(x)
        RES = 16
        e1, e5, e3, e7 = epi(1), epi(5), epi(3), epi(7)
        a("v_add_f32 v40, v40, v56")
        for x in (e1[0], e1[1], e5[0], e5[1], e1[2], e1[3], e5[2], e5[3]):
            a(x)
        a("v_permlane32_swap_b32 v32, v40")
        for x in (e3[0], e3[1], e7[0], e7[1]):
            a(x)
        a(f"v_permlane16_swap_b32 v36, v52\nv_add_f32 v{RES}, v32, v40")
        for x in (e3[2], e3[3], e7[2], e7[3]):
            a(x)
        a("v_add_f32 v36, v36, v52")
        self.tag(RES, RES, vTG, rn=12)
        a(f"""v_permlane16_swap_b32 v44, v60
        s_nop 0
        v_add_f32 v44, v44, v60
        s_nop 1
        v_permlane32_swap_b32 v36, v44
        s_nop 0
        v_add_f32 v{RES+1}, v36, v44""")
        self.tag(RES + 1, RES + 1, vTG, rn=12)
        if self.wide:
            a(f"""v_permlane32_swap_b32 v{RES}, v{RES+2}
            s_nop 0
            v_permlane32_swap_b32 v{RES+1}, v{RES+3}""")
        a(f"""s_cmp_lg_u32 s43, 0
        s_cbranch_scc1 L_nost
        """)
        if self.wide:
            a(f"""s_mov_b32 exec_hi, 0
            buffer_store_dwordx4 v[{RES}:{RES+3}], v{vST}, s[56:59], s9 offen {self.pst}
            s_mov_b32 exec_hi, -1""")
        else:
            a(f"buffer_store_dwordx2 v[{RES}:{RES+1}], v{vST}, s[56:59], s9 offen {self.pst}")
        self.stamp(7, 20)
        if self.stamps == 4:
            a("s_memrealtime s[46:47]\ns_mov_b64 s[52:53], 0\ns_mov_b64 s[54:55], 0\ns_cmp_lg_u32 s3, 2\ns_cbranch_scc1 L_end\ns_cmp_eq_u32 s68, 0\ns_cbranch_scc1 L_dump")
        a(f"""s_cmp_eq_u32 s68, 0
        s_cbranch_scc1 L_end""")
        Z = 64
        M0 = 80
        a(f"s_mov_b32 s12, {self.poll_max}\nL_pp:")
        for t in range(8):
            sk = self.lab("pl")
            a(f"""s_mov_b64 exec, s[{M0+2*t}:{M0+2*t+1}]
            s_cbranch_execz {sk}
            buffer_load_dwordx4 v[{Z+4*t}:{Z+4*t+3}], v{vPA}, s[56:59], s{70+t} offen {self.pld}
            {sk}:""")
        a("s_mov_b32 s13, 0\ns_waitcnt vmcnt(0)")
        for t in range(8):
            sk = self.lab("pc")
            a(f"""s_mov_b64 exec, s[{M0+2*t}:{M0+2*t+1}]
            s_cbranch_execz {sk}
            v_xor_b32 v{32+4*t}, v{Z+4*t}, v{vTG}
            v_xor_b32 v{33+4*t}, v{Z+4*t+1}, v{vTG}
            v_xor_b32 v{34+4*t}, v{Z+4*t+2}, v{vTG}
            v_xor_b32 v{35+4*t}, v{Z+4*t+3}, v{vTG}
            v_or3_b32 v{vCK}, v{32+4*t}, v{33+4*t}, v{34+4*t}
            v_bitop3_b32 v{vCK}, v{vCK}, v{35+4*t}, v25 bitop3:0xa8
            v_cmp_ne_u32 s[{M0+2*t}:{M0+2*t+1}], 0, v{vCK}
            s_bcnt1_i32_b64 s10, s[{M0+2*t}:{M0+2*t+1}]
            s_add_u32 s13, s13, s10
            {sk}:""")
        a(f"""s_mov_b64 exec, -1
        s_cmp_eq_u32 s13, 0
        s_cbranch_scc1 L_nost
        s_cmp_le_u32 s13, {self.pthr}
        s_cbranch_scc1 L_pn
        s_sleep {self.pslow}
        L_pn:
        s_sub_u32 s12, s12, 1
        s_cmp_gt_u32 s12, 0
        s_cbranch_scc1 L_pp
        L_nost:""")
        if self.stamps == 4:
            a("s_memrealtime s[52:53]")
        C = 32
        for st_ in (4, 8, 16):
            for t in range(0, 32, 2 * st_):
                a(f"v_pk_add_f32 v[{C+t}:{C+t+1}], v[{C+t}:{C+t+1}], v[{C+t+st_}:{C+t+st_+1}]")
                a(f"v_pk_add_f32 v[{C+t+2}:{C+t+3}], v[{C+t+2}:{C+t+3}], v[{C+t+st_+2}:{C+t+st_+3}]")
        self.merge4(C)
        self.rbf(C)
        a(f"v_mul_f32 v{C}, v{C}, v{vG}")
        self.rbf(C)
        a(f"""v_add_f32 v{C}, v{C}, v{vXC}
        v_cvt_pk_bf16_f32 v{C}, v{C}, v{C}
        s_cmp_eq_u32 s43, 0
        s_cbranch_scc1 L_fin
        s_mov_b32 s43, 0
        s_branch L_tail
        L_fin:
        s_mov_b32 exec_lo, 0x000f000f
        s_mov_b32 exec_hi, 0x000f000f
        buffer_store_short v{C}, v{vOUTA}, s[60:63], 0 offen {self.ost}""")
        if self.stamps == 4:
            a("s_memrealtime s[54:55]\nL_dump:\ns_sleep 127")
            self.dump = True
            self.stamp(15, 20, src=48)
            self.stamp(6, 20, src=44)
            self.stamp(7, 20, src=46)
            self.stamp(8, 20, src=52)
            self.stamp(9, 20, src=54)
            self.dump = False
        if self.padto:
            if self.padwg >= 0:
                a(f"s_cmp_lg_u32 s2, {self.padwg}\ns_cbranch_scc1 L_end")
            a(f"""L_pad:
            s_memrealtime s[50:51]
            s_waitcnt lgkmcnt(0)
            s_sub_u32 s50, s50, s48
            s_cmp_lt_u32 s50, {self.padto}
            s_cbranch_scc1 L_pad""")
        self.stamp(8, 60)

    def job_compute(self, n, C0, C1, TILES, vA, vACC, vSEL, vTG, vOUT, sOUT, waits):
        a = self.a
        for G in range(n):
            self.buildA(vA, C0 + G // 2, G & 1, vSEL)
            self.buildA(vA + 4, C1 + G // 2, G & 1, vSEL)
            a(f"s_waitcnt vmcnt({n-1-G})\ns_nop 0" if waits else "s_nop 1")
            self.mfma(vACC, vA, TILES + 4 * G, None if G == 0 else vACC)
            self.mfma(vACC + 4, vA + 4, TILES + 4 * G, None if G == 0 else vACC + 4)
        a("s_nop 7")
        for r in range(4):
            a(f"v_permlane32_swap_b32 v{vACC+r}, v{vACC+4+r}")
        a("s_nop 1")
        for r in range(4):
            self.dpp("v_add_f32", vACC + r, vACC + 4 + r, vACC + r, "row_ror:8")
        for r in range(4):
            self.tag(vACC + r, vACC + r, vTG, rn=True)
        a(f"""s_mov_b32 exec_lo, 0x00ff00ff
        s_mov_b32 exec_hi, 0x00ff00ff
        buffer_store_dwordx4 v[{vACC}:{vACC+3}], v{vOUT}, s[56:59], {sOUT} offen sc1
        s_mov_b64 exec, -1""")

    def gen_dn(self, vL, vT3, vT4, vT5, vSEL, vTG, vCK, TI):
        a = self.a
        GP = TI + 64
        a(f"""s_mul_hi_u32 s53, s52, {(2**32 + 9)//10}
        s_mul_i32 s54, s53, 10
        s_sub_u32 s54, s52, s54""")
        self.srd(60, 34, 1536 * 1280)
        a(f"""v_lshrrev_b32 v{vT3}, 3, v{vL}
        v_mul_u32_u24 v{vT4}, {16*1280}, v{vT3}
        v_and_b32 v{vT5}, 7, v{vL}
        v_lshl_add_u32 v{vT4}, v{vT5}, 4, v{vT4}
        s_mul_i32 s9, s53, {128*1280}
        s_lshl_b32 s10, s54, 7
        s_add_u32 s9, s9, s10""")
        for G in range(16):
            a(f"buffer_load_dwordx4 v[{TI+4*G}:{TI+4*G+3}], v{vT4}, s[60:63], s9 offen offset:{(G%4)*1280} {self.mf}")
            if G % 4 == 3:
                a(f"s_add_u32 s9, s9, {4*1280}")
                if G == 7:
                    a("s_waitcnt vmcnt(0)")
        a(f"""v_lshrrev_b32 v60, 5, v{vL}
        v_lshlrev_b32 v61, 12, v60
        v_and_b32 v62, 31, v{vL}
        v_lshl_add_u32 v61, v62, 4, v61
        s_lshl_b32 s9, s53, 13
        s_add_u32 s9, s9, {GU_OFF}""")
        self.mpoll([(GP + 4 * t, f"buffer_load_dwordx4 v[{GP+4*t}:{GP+4*t+3}], v61, s[56:59], s9 offen offset:{512*t} sc1") for t in range(8)],
                   vTG, vCK, 32)
        self.sum_quads(GP, 4)
        self.sum_quads(GP + 16, 4)
        for r in range(4):
            self.rbf(GP + r)
            self.rbf(GP + 16 + r)
            self.sigmoid_like(GP + 4, GP + r)
            a(f"v_mul_f32 v{GP+r}, v{GP+r}, v{GP+4}")
            self.rbf(GP + r)
            a(f"v_mul_f32 v{GP+r}, v{GP+r}, v{GP+16+r}")
        a(f"""v_cvt_pk_bf16_f32 v{GP+4}, v{GP}, v{GP+1}
        v_cvt_pk_bf16_f32 v{GP+5}, v{GP+2}, v{GP+3}
        v_bfe_u32 v61, v{vL}, 4, 1
        v_lshlrev_b32 v62, 8, v61
        v_lshl_add_u32 v62, v60, 7, v62
        v_and_b32 v63, 15, v{vL}
        v_lshl_add_u32 v62, v63, 3, v62
        ds_write_b64 v62, v[{GP+4}:{GP+5}] offset:{L_HB}
        v_lshlrev_b32 v{vT3}, 5, v{vT3}
        v_mul_u32_u24 v{vT4}, 2560, v60
        v_lshl_add_u32 v{vT4}, v{vT5}, 5, v{vT4}
        v_lshl_add_u32 v{vT4}, v61, 4, v{vT4}
        s_mul_i32 s9, s53, 5120
        s_lshl_b32 s10, s54, 8
        s_add_u32 s9, s9, s10
        s_add_u32 s9, s9, {Y_OFF}
        s_waitcnt lgkmcnt(0)
        ds_read_b128 v[44:47], v{vT3} offset:{L_HB}
        ds_read_b128 v[48:51], v{vT3} offset:{L_HB+16}
        ds_read_b128 v[52:55], v{vT3} offset:{L_HB+256}
        ds_read_b128 v[56:59], v{vT3} offset:{L_HB+272}
        s_waitcnt lgkmcnt(0)""")
        self.job_compute(16, 44, 52, TI, 28, 36, vSEL, vTG, vT4, "s9", False)
        a("s_waitcnt vmcnt(0)")

    def text(self):
        hdr = open("recurrent_scan__mha_block_cached__moe_arch_mod__decode.s.ref").read().split("; Override launch")[0]
        self.gen()
        return hdr + f"""; @launch grid=(256,1,1) block=(512,1,1) lds={LDS_BYTES}
.amdgcn_target "amdgcn-amd-amdhsa--gfx950"
.text
.globl {KNAME}
.p2align 8
.type {KNAME},@function
{KNAME}:
""" + "\n".join(self.o) + f"""
.section .rodata,"a"
.p2align 6
.amdhsa_kernel {KNAME}
  .amdhsa_next_free_vgpr 256
  .amdhsa_next_free_sgpr 102
  .amdhsa_accum_offset 256
  .amdhsa_group_segment_fixed_size 0
  .amdhsa_kernarg_size 104
  .amdhsa_user_sgpr_count 2
  .amdhsa_user_sgpr_kernarg_segment_ptr 1
  .amdhsa_system_sgpr_workgroup_id_x 1
  .amdhsa_float_denorm_mode_32 3
.end_amdhsa_kernel
"""


if __name__ == "__main__":
    out = sys.argv[1]
    kw = {}
    for arg in sys.argv[2:]:
        k, v = arg.split("=", 1)
        try:
            v = int(v)
        except ValueError:
            pass
        kw[k] = v
    open(out, "w").write(G(**kw).text())
```

```python
import sys, struct

KNAME = "recurrent_scan__mha_block_cached__moe_arch_mod__decode_kernel"
TB = 201326592
CH = 786432
STEP = 12288

P_OFF = 0
ST_OFF = 256 * 2560
EP_OFF = ST_OFF + 64 * 256
Y_OFF = EP_OFF + 256
QX_OFF = Y_OFF + 12 * 5120
GU_OFF = QX_OFF + 32 * 4 * 2 * 768
TS_OFF = GU_OFF + 192 * 512
WS_USED = TS_OFF + 4 * 8192
STAMP_OFF = 2 << 20
WS_SRD = 4 << 20
assert WS_USED <= STAMP_OFF

L_XN = 0
L_QB = 2560
L_SC = L_QB + 512
OS = 416
L_O = L_SC + 4 * 1152
L_SCALE = L_O + 8 * OS
L_PROG = L_SCALE + 48
L_BOOST = L_SCALE + 52
L_WXOK = L_SCALE + 56
L_HB = L_SCALE + 64
L_STL = L_HB + 512
L_WX = (L_STL + 64 + 1023) // 1024 * 1024
WXS = 1040
L_TM = L_WX + 48 * WXS
LDS_BYTES = L_TM + 64

LOG2E = 0x3fb8aa3b
SCALE_F32 = 0x3d93cd3a
assert struct.unpack("<I", struct.pack("<f", 192 ** -0.5))[0] == SCALE_F32
def f32(x): return "0x%08x" % struct.unpack("<I", struct.pack("<f", x))[0]
NLOG2E = f32(-1.4426950408889634)

sWAVE, sH, sB, sSPLIT, sCHUNK, sBH = 3, 4, 5, 6, 7, 8
sT = 78
sMASK = 79
sWV = 69


HDR = '''; ---------------------------------------------------------------------------------------------
; Design (one launch, 256 workgroups of 8 waves, one per CU; workgroup = (batch b, head h, split)):
; ---------------------------------------------------------------------------------------------
'''


class G:
    def __init__(self, R0=16, R1=8, W=4, W0=3, kvflags="nt", wflags="nt", woflags="pl", moeflags="nt", rot=1, stamps=0,
                 poll_max=1 << 18, hprio=3, hprio1=0, hprio2=3, wobatch=8, nowo=0, nomoe=0, noq=0, nob0=0, D=2, GI=4, early=0, nok=0, nopoll=0, hskip=0, stsleep=16, DV=0, earlyV=-1, D0=0, hsleep=0, diagx=0, padto=0, padwg=-1, qsleep=0, psleep=0, NE=0, DE=4, qsleep2=0, NB=0, ctl=1, cps='1,5,8', gains='9,7,7', dead=30, cdelay='48,32,16', gb=0, brk=1, mix=1, kboost=-1, pre=2, wosleep=0, dry=1, pthr=32, pslow=8, pcap=24, pst='sc1', pld='sc1', ppre=0, trace=0, pq=0, spre=0, wide=1, VD=3, brd=6, ost='pl', tlb=0, stride=1):
        self.stride = stride
        self.tlb = tlb
        self.ost = '' if ost == 'pl' else ost.replace('_', ' ')
        self.VD, self.brd = VD, brd
        self.wide = wide
        self.spre = spre
        self.pq = pq
        self.trace = trace
        self.pst, self.pld, self.ppre = pst.replace('_', ' '), pld.replace('_', ' '), ppre
        self.dry, self.pthr, self.pslow, self.pcap = dry, pthr, pslow, pcap
        self.kboost, self.pre, self.wosleep = kboost, pre, wosleep
        self.gb, self.brk, self.mix = gb, brk, mix
        self.ctl = ctl
        self.NB = NB
        self.cps = [int(x) for x in str(cps).split(',')]
        self.gains = [float(x) for x in str(gains).split(',')]
        self.dead = dead
        self.cdelay = [int(x) for x in str(cdelay).split(',')]
        self.NE, self.DE, self.qsleep2 = NE, DE, qsleep2
        self.qsleep, self.psleep = qsleep, psleep
        self.padwg = padwg
        self.padto = padto
        self.diagx = diagx
        self.DV = DV or D
        self.earlyV = early if earlyV < 0 else earlyV
        self.D0 = D0 or D
        self.hsleep = hsleep
        self.nok, self.nopoll, self.hskip, self.stsleep = nok, nopoll, hskip, stsleep
        self.D, self.GI, self.early = D, GI, early
        self.nowo, self.nomoe, self.noq, self.nob0 = nowo, nomoe, noq, nob0
        self.hprio1, self.hprio2 = hprio1, hprio2
        self.o = []
        self.R0, self.R1, self.W, self.W0 = R0, R1, W, W0
        fl = lambda x: '' if x == 'pl' else x.replace('_', ' ')
        self.kvf, self.wf, self.mf = fl(kvflags), fl(wflags), fl(moeflags)
        self.wof = fl(woflags)
        self.rot = rot
        self.stamps = stamps
        self.poll_max = poll_max
        self.hprio = hprio
        self.wobatch = wobatch
        self.nlab = 0

    def a(self, s):
        for ln in s.split("\n"):
            ln = ln.strip()
            if ln:
                self.o.append(("" if ln.endswith(":") else "    ") + ln)

    def lab(self, p="L"):
        self.nlab += 1
        return f"{p}_{self.nlab}"

    def srd(self, q, lo, nbytes):
        self.a(f"s_mov_b32 s{q}, s{lo}\ns_mov_b32 s{q+1}, s{lo+1}\ns_mov_b32 s{q+2}, {nbytes}\ns_mov_b32 s{q+3}, 0x20000")

    def dpp(self, op, d, s0, s1, ctrl):
        self.a(f"{op}_dpp v{d}, v{s0}, v{s1} {ctrl} row_mask:0xf bank_mask:0xf")

    def row_reduce(self, op, v, steps=(1, 2, 4, 8)):
        for s in steps:
            self.a("s_nop 1")
            self.dpp(op, v, v, v, f"row_ror:{s}")

    def swap_reduce(self, op, v, t, which):
        self.a(f"v_mov_b32 v{t}, v{v}\ns_nop 1\nv_permlane{which}_swap_b32 v{v}, v{t}\ns_nop 1\n{op} v{v}, v{v}, v{t}")

    def stamp(self, idx, vt, st=50, src=None):
        if not self.stamps:
            return
        if self.stamps == 3 and (self.cls == "H" or idx in (0, 1, 2, 3, 4)):
            return
        if self.stamps == 4 and not getattr(self, "dump", False):
            return
        if src is None:
            self.a(f"s_memrealtime s[{st}:{st+1}]")
            src = st
        if self.stamps == 2:
            slot = (idx if idx < 15 else 0) + (1 if self.cls == "S" else 7)
            if self.cls == "H" and idx not in (1, 2, 4, 7, 8):
                return
            if self.cls == "H":
                slot = {1: 8, 2: 9, 4: 10, 7: 11, 8: 12}[idx]
            elif idx == 15:
                slot = 1
            else:
                slot = 2 + idx
            inv = f"s_mov_b32 s65, s{src}"
            Lsk = self.lab("sk")
            if not (self.cls == "H" and idx == 8):
                self.a(f"""s_waitcnt lgkmcnt(0)
                s_cmp_lg_u32 s2, 0
                s_cbranch_scc1 {Lsk}""")
            self.a(f"""s_waitcnt lgkmcnt(0)
            {inv}
            v_mov_b32 v{vt}, s65
            v_mov_b32 v{vt+2}, {slot*4}
            s_mov_b64 exec, 1
            global_atomic_umax v{vt+2}, v{vt}, s[38:39] sc1
            s_mov_b64 exec, -1
            {Lsk}:""")
            return
        self.a(f"""s_lshl_b32 s65, s2, 3
        s_add_u32 s65, s65, s{sWV}
        s_lshl_b32 s65, s65, 7
        s_add_u32 s65, s65, {STAMP_OFF + idx*8}
        s_waitcnt lgkmcnt(0)
        v_mov_b32 v{vt}, s{src}
        v_mov_b32 v{vt+1}, s{src+1}
        v_mov_b32 v{vt+2}, 0
        s_mov_b64 exec, 1
        buffer_store_dwordx2 v[{vt}:{vt+1}], v{vt+2}, s[56:59], s65 offen
        s_mov_b64 exec, -1""")

    def selectors(self, vL, base, t0, t1, t2):
        a = self.a
        a(f"""v_and_b32 v{t0}, 1, v{vL}
        v_cmp_eq_u32 vcc, 1, v{t0}
        v_mov_b32 v{t0}, 0x0c0c0100
        v_mov_b32 v{t1}, 0x01000c0c
        v_cndmask_b32 v{t0}, v{t0}, v{t1}, vcc
        v_mov_b32 v{t1}, 0x0c0c0302
        v_mov_b32 v{t2}, 0x03020c0c
        v_cndmask_b32 v{t1}, v{t1}, v{t2}, vcc
        v_bfe_u32 v{t2}, v{vL}, 1, 2""")
        for j in range(4):
            a(f"""v_cmp_eq_u32 vcc, {j}, v{t2}
            v_mov_b32 v{base+j}, 0x0c0c0c0c
            v_mov_b32 v{base+4+j}, 0x0c0c0c0c
            v_cndmask_b32 v{base+j}, v{base+j}, v{t0}, vcc
            v_cndmask_b32 v{base+4+j}, v{base+4+j}, v{t1}, vcc""")

    def buildA(self, A, P, hi, sel):
        for j in range(4):
            self.a(f"v_perm_b32 v{A+j}, v{P}, v{P}, v{sel + (4 if hi else 0) + j}")

    def mfma(self, D, A, B, C):
        c = "0" if C is None else f"v[{C}:{C+3}]"
        self.a(f"v_mfma_f32_16x16x32_bf16 v[{D}:{D+3}], v[{A}:{A+3}], v[{B}:{B+3}], {c}")

    def smf(self, D, A, B, IDX):
        self.a(f"v_smfmac_f32_16x16x64_bf16 v[{D}:{D+3}], v[{A}:{A+3}], v[{B}:{B+7}], v{IDX}")

    def rbf(self, v):
        self.a(f"v_cvt_pk_bf16_f32 v{v}, v{v}, v{v}\nv_lshlrev_b32 v{v}, 16, v{v}")

    def tag(self, d, s, vTG, rn=False, pos=None):
        if rn:
            self.a(f"v_add_u32 v{d}, {0x800 if rn == 12 else 0x80}, v{s}")
            s = d
        if pos is None:
            self.a(f"v_and_or_b32 v{d}, v{s}, s{sMASK}, v{vTG}")
        else:
            self.a(f"v_bfi_b32 v{d}, v{vTG}, s{96+pos}, v{s}")

    def chk4(self, acc, x, vTG, first=False, n=4, full=False):
        for r in range(n):
            if full:
                self.a(f"v_xor_b32 v{x+r}, v{x+r}, v{vTG}")
            else:
                self.a(f"v_xor_b32 v{x+r}, s{96 + r % 4}, v{x+r}")
        for r in range(0, n, 2):
            if first and r == 0:
                self.a(f"v_or_b32 v{acc}, v{x}, v{x+1}")
            else:
                self.a(f"v_or3_b32 v{acc}, v{x+r}, v{x+r+1}, v{acc}")

    def poll_tail(self, acc, Lretry, Ldone, sleep):
        self.a(f"""v_and_b32 v{acc}, 0xff, v{acc}
        v_cmp_ne_u32 vcc, 0, v{acc}
        s_cbranch_vccz {Ldone}""")
        if sleep:
            self.a(f"s_sleep {sleep}")
        self.a(f"""s_sub_u32 s12, s12, 1
        s_cmp_gt_u32 s12, 0
        s_cbranch_scc1 {Lretry}
        {Ldone}:""")

    def mpoll(self, loads, vTG, vCK, sleep, mask=None, nd=4, M0=80):
        a = self.a
        L, Ld = self.lab("mp"), self.lab("mpd")
        for t in range(len(loads)):
            if mask is None:
                a(f"s_mov_b64 s[{M0+2*t}:{M0+2*t+1}], -1")
            else:
                a(f"s_mov_b32 s{M0+2*t}, {mask[0]}\ns_mov_b32 s{M0+2*t+1}, {mask[1]}")
        a(f"s_mov_b32 s12, {self.poll_max}\n{L}:")
        for t, (r, txt) in enumerate(loads):
            sk = self.lab("ml")
            a(f"s_mov_b64 exec, s[{M0+2*t}:{M0+2*t+1}]\ns_cbranch_execz {sk}\n{txt}\n{sk}:")
        a("s_mov_b64 s[100:101], 0\ns_waitcnt vmcnt(0)")
        for t, (r, txt) in enumerate(loads):
            sk = self.lab("mc")
            a(f"s_mov_b64 exec, s[{M0+2*t}:{M0+2*t+1}]\ns_cbranch_execz {sk}")
            self.chk4(vCK, r, vTG, first=True, n=nd)
            a(f"""v_and_b32 v{vCK}, 0xff, v{vCK}
            v_cmp_ne_u32 s[{M0+2*t}:{M0+2*t+1}], 0, v{vCK}
            s_or_b64 s[100:101], s[100:101], s[{M0+2*t}:{M0+2*t+1}]
            {sk}:""")
        a(f"""s_mov_b64 exec, -1
        s_cmp_eq_u64 s[100:101], 0
        s_cbranch_scc1 {Ld}""")
        if sleep:
            a(f"s_sleep {sleep}")
        a(f"""s_sub_u32 s12, s12, 1
        s_cmp_gt_u32 s12, 0
        s_cbranch_scc1 {L}
        {Ld}:""")

    def decide(self, v, t, ci, vZ0):
        self.a(f"""v_add_f32 v{t}, {f32(float(self.dead))}, v{v}
        v_mul_f32 v{t}, {f32(self.gb / 100.0)}, v{t}
        v_min_f32 v{t}, 0, v{t}
        v_subrev_f32 v{v}, {f32(float(self.dead))}, v{v}
        v_mul_f32 v{v}, {f32(self.gains[ci] / 100.0)}, v{v}
        v_max_f32 v{v}, 0, v{v}
        v_add_f32 v{v}, v{v}, v{t}
        v_min_f32 v{v}, 64.0, v{v}
        v_max_f32 v{v}, {f32(-24.0)}, v{v}
        v_cvt_i32_f32 v{v}, v{v}
        v_and_b32 v{v}, 0xffff, v{v}
        v_or_b32 v{v}, {(ci+1) << 16}, v{v}
        ds_write_b32 v{vZ0}, v{v} offset:{L_BOOST}""")

    def sum_quads(self, X, n):
        for t in range(1, n):
            self.a(f"v_pk_add_f32 v[{X}:{X+1}], v[{X}:{X+1}], v[{X+4*t}:{X+4*t+1}]")
            self.a(f"v_pk_add_f32 v[{X+2}:{X+3}], v[{X+2}:{X+3}], v[{X+4*t+2}:{X+4*t+3}]")

    def merge4(self, X):
        a = self.a
        a(f"""s_nop 1
        v_permlane16_swap_b32 v{X}, v{X+1}
        v_permlane16_swap_b32 v{X+2}, v{X+3}
        s_nop 1
        v_add_f32 v{X}, v{X}, v{X+1}
        v_add_f32 v{X+2}, v{X+2}, v{X+3}
        s_nop 1
        v_permlane32_swap_b32 v{X}, v{X+2}
        s_nop 1
        v_add_f32 v{X}, v{X}, v{X+2}""")
        self.row_reduce("v_add_f32", X, steps=(4, 8))

    def sigmoid_like(self, d, x):
        self.a(f"""v_mul_f32 v{d}, {NLOG2E}, v{x}
        v_exp_f32 v{d}, v{d}
        s_nop 0
        v_add_f32 v{d}, 1.0, v{d}
        v_rcp_f32 v{d}, v{d}
        s_nop 0""")

    def rotcode(self):
        if self.rot < 100:
            return f"s_mul_i32 s9, s7, {self.rot}"
        if self.rot == 100:
            return "s_lshr_b32 s9, s2, 3\ns_lshl_b32 s11, s2, 5\ns_add_u32 s9, s9, s11"
        if self.rot == 101:
            return "s_lshl_b32 s9, s5, 4\ns_add_u32 s9, s9, s7"
        if self.rot == 102:
            return "s_lshr_b32 s9, s7, 6\ns_mul_i32 s9, s9, 17\ns_add_u32 s9, s9, s7"
        raise ValueError

    def wide_tag(self):
        self.a(f"""s_mov_b32 s{sMASK}, 0xfffff000
        s_mul_i32 s10, s{sT}, 0x9e3779b1
        s_and_b32 s96, s{sT}, 0xfff
        s_bfe_u32 s97, s10, 0xc0008
        s_lshr_b32 s98, s10, 20
        s_mul_i32 s10, s{sT}, 0x85ebca6b
        s_lshr_b32 s99, s10, 20""")

    def epoch_load(self):
        self.a(f"s_load_dword s{sT}, s[40:41], {EP_OFF}")

    def epoch_use(self, vTG):
        self.a(f"""s_add_u32 s{sT}, s{sT}, 1
        s_mul_i32 s9, s{sT}, 0x9e3779b1
        s_and_b32 s96, s{sT}, 0xff
        s_bfe_u32 s97, s9, 0x80008
        s_bfe_u32 s98, s9, 0x80010
        s_lshr_b32 s99, s9, 24
        v_mov_b32 v{vTG}, 0xff""")

    def gen(self):
        a = self.a
        a(f"""s_cmp_ge_u32 s2, 256
        s_cbranch_scc1 L_end
        s_load_dwordx16 s[16:31], s[0:1], 0
        s_load_dwordx8 s[32:39], s[0:1], 64
        s_load_dwordx2 s[40:41], s[0:1], 96""")
        if self.stamps or self.padto or self.trace:
            a("s_memrealtime s[48:49]")
        a(f"""v_lshrrev_b32 v1, 6, v0
        v_and_b32 v0, 63, v0
        v_readfirstlane_b32 s3, v1
        s_and_b32 s9, s2, 7
        s_lshr_b32 s10, s2, 3
        s_lshl_b32 s4, s9, 2
        s_lshr_b32 s11, s10, 3
        s_add_u32 s4, s4, s11
        s_bfe_u32 s5, s10, 0x10002
        s_and_b32 s6, s10, 3
        s_lshl_b32 s8, s5, 5
        s_add_u32 s8, s8, s4
        s_lshl_b32 s7, s8, 2
        s_add_u32 s7, s7, s6
        s_mov_b32 s{sWV}, s3
        s_cmp_ge_u32 s3, 4
        s_cbranch_scc1 L_H""")
        self.gen_S()
        a("L_H:")
        a("; ================= H waves =================")
        self.gen_H()
        a("L_end:\ns_endpgm")

    def gen_S(self):
        self.cls = "S"
        a = self.a
        R0, D, GI = self.R0, self.D, self.GI
        RS = {2: 4, 3: 6}[D]
        R1 = 4
        DV = self.DV
        RSV = {2: 4, 3: 6}[DV]
        D0 = self.D0
        assert (64 - R0) % RS == 0
        NITK = (64 - R0) // RS
        W = 6
        vL = 0
        vOFF, vSCW, vSCR, vT0, vT1, vT2, vT3, vOW = 1, 2, 3, 4, 5, 6, 7, 8
        vA0, vA1, vTG = 9, 10, 11
        vQ = 12
        vSEL = 24
        vACC = 32
        vA = 44
        vP = 52
        RING = 64
        assert RING + R0 * 12 <= 256
        sOFF, sBEG, sEND, sIT, sCNT = 42, 43, 64, 66, 65
        a(f"""v_lshrrev_b32 v{vT0}, 3, v{vL}
        v_and_b32 v{vT1}, 7, v{vL}
        v_mul_u32_u24 v{vOFF}, 384, v{vT0}
        v_lshl_add_u32 v{vOFF}, v{vT1}, 4, v{vOFF}
        s_mul_i32 s9, s3, 3072""")
        if GI == 4:
            stepb = 4 * STEP
            a(f"""s_mul_i32 s11, s6, {STEP}
            s_add_u32 s9, s9, s11
            s_mul_i32 s{sBEG}, s8, {4*CH}
            s_add_u32 s{sEND}, s{sBEG}, {4*CH}
            v_add_u32 v{vOFF}, s9, v{vOFF}
            s_mul_i32 s9, s8, {self.rot}""")
        else:
            stepb = STEP
            a(f"""v_add_u32 v{vOFF}, s9, v{vOFF}
            s_mul_i32 s{sBEG}, s7, {CH}
            s_add_u32 s{sEND}, s{sBEG}, {CH}
            {self.rotcode()}""")
        a(f"""s_and_b32 s9, s9, 63
        s_mul_i32 s9, s9, {stepb}
        s_add_u32 s{sOFF}, s{sBEG}, s9
        s_waitcnt lgkmcnt(0)""")
        self.srd(52, 18, TB)
        vTR = 59
        def tr():
            if self.trace:
                a(f"""s_memrealtime s[80:81]
                s_waitcnt lgkmcnt(0)
                v_writelane_b32 v{vTR}, s80, m0
                s_add_u32 m0, m0, 1""")
        if self.trace:
            a(f"s_mov_b32 m0, 1\nv_mov_b32 v{vTR}, 0\nv_writelane_b32 v{vTR}, s48, 0")
        self.fs = []
        def fstamp():
            if self.stamps == 3 and len(self.fs) < 9:
                r = 80 + 2 * len(self.fs)
                a(f"s_memrealtime s[{r}:{r+1}]")
                self.fs.append(r)
        fstamp()

        def load(slot, sw=None):
            for j in range(3):
                r = RING + (slot * 3 + j) * 4
                a(f"buffer_load_dwordx4 v[{r}:{r+3}], v{vOFF}, s[52:55], s{sOFF} offen offset:{128*j} {self.kvf}")
            if self.stride == 1:
                a(f"""s_add_u32 s{sOFF}, s{sOFF}, {stepb}
                s_cmp_ge_u32 s{sOFF}, s{sEND}
                s_cselect_b32 s{sOFF}, s{sBEG}, s{sOFF}""")
            else:
                a(f"""s_add_u32 s{sOFF}, s{sOFF}, {stepb*self.stride}
                s_sub_u32 s68, s{sOFF}, {64*stepb}
                s_cmp_ge_u32 s{sOFF}, s{sEND}
                s_cselect_b32 s{sOFF}, s68, s{sOFF}""")
            if sw == "kv":
                a(f"""s_cmp_eq_u32 s{sIT}, {NITK-1}
                s_cselect_b32 s52, s20, s52
                s_cselect_b32 s53, s21, s53""")
            elif sw is not None:
                a(f"""s_cmp_eq_u32 s{sIT}, {sw}
                s_cselect_b32 s54, 0, s54""")
        thr = 3 * (D - 1) + self.early
        for s in range(D0):
            load(s)
        self.epoch_load()
        self.srd(56, 40, WS_SRD)
        self.selectors(vL, vSEL, vT2, vT3, vOW)
        a(f"""s_mul_i32 s9, s3, 1152
        s_add_u32 s9, s9, {L_SC}
        v_mul_u32_u24 v{vSCW}, 144, v{vT0}
        v_add_u32 v{vSCW}, s9, v{vSCW}
        v_mov_b32 v{vSCR}, v{vSCW}""")
        a(f"""v_lshrrev_b32 v{vT2}, 5, v{vL}
        s_lshl_b32 s9, s3, 1
        v_add_u32 v{vT2}, s9, v{vT2}
        v_mul_u32_u24 v{vOW}, {OS}, v{vT2}
        v_lshl_add_u32 v{vOW}, v{vT1}, 3, v{vOW}
        v_bfe_u32 v{vT2}, v{vL}, 4, 1
        v_lshl_add_u32 v{vOW}, v{vT2}, 2, v{vOW}
        v_add_u32 v{vOW}, {L_O}, v{vOW}
        v_lshlrev_b32 v{vT2}, 4, v{vT1}""")
        for s in range(D0, R0):
            a(f"s_waitcnt vmcnt({3*(D0-1)})")
            if s in (2, 3, 4, 6, 8, 10, 12, 14):
                fstamp()
            if s % 4 == 0:
                tr()
            load(s)
        a("s_waitcnt lgkmcnt(0)")
        self.epoch_use(vTG)
        self.stamp(15, vA, src=48)
        self.stamp(0, vA)
        tr()
        a("s_barrier")
        tr()
        self.stamp(1, vA)
        for j in range(3):
            a(f"ds_read_b128 v[{vQ+4*j}:{vQ+4*j+3}], v{vT2} offset:{L_QB + 128*j}")
        a(f"s_mov_b32 s{sIT}, 0\ns_mov_b32 s10, {SCALE_F32}\ns_waitcnt lgkmcnt(0)")

        sUSED, sTGT = 44, 45
        def throttle(dist=3):
            Lb, Lc = self.lab("bo"), self.lab("bc")
            a(f"""s_waitcnt vmcnt({3*(dist-1)})
            s_cmp_gt_i32 s{sUSED}, 0
            s_cbranch_scc1 {Lb}
            s_waitcnt vmcnt(3)
            s_cmp_eq_u32 s{sUSED}, 0
            s_cbranch_scc1 {Lc}
            s_waitcnt vmcnt({self.brk})
            s_add_i32 s{sUSED}, s{sUSED}, 2
            {Lb}:
            s_sub_i32 s{sUSED}, s{sUSED}, 1
            {Lc}:""")
        def kpair(s, off):
            ra, rb = RING + s * 12, RING + (s + 1) * 12
            for i in range(12):
                c0 = "0" if i == 0 else f"v{vA0}"
                c1 = "0" if i == 0 else f"v{vA1}"
                a(f"v_dot2_f32_bf16 v{vA0}, v{ra+i}, v{vQ+i}, {c0}")
                a(f"v_dot2_f32_bf16 v{vA1}, v{rb+i}, v{vQ+i}, {c1}")
            a("s_nop 2")
            self.dpp("v_add_f32", vA0, vA0, vA0, "quad_perm:[1,0,3,2]")
            self.dpp("v_add_f32", vA1, vA1, vA1, "quad_perm:[1,0,3,2]")
            a("s_nop 0")
            self.dpp("v_add_f32", vA0, vA0, vA0, "quad_perm:[2,3,0,1]")
            self.dpp("v_add_f32", vA1, vA1, vA1, "quad_perm:[2,3,0,1]")
            a("s_nop 0")
            self.dpp("v_add_f32", vA0, vA0, vA0, "row_half_mirror")
            self.dpp("v_add_f32", vA1, vA1, vA1, "row_half_mirror")
            a(f"""v_cvt_pk_bf16_f32 v{vT2}, v{vA0}, v{vA1}
            v_lshlrev_b32 v{vA0}, 16, v{vT2}
            v_and_b32 v{vA1}, 0xffff0000, v{vT2}
            v_mul_f32 v{vA0}, s10, v{vA0}
            v_mul_f32 v{vA1}, s10, v{vA1}
            v_cvt_pk_bf16_f32 v{vT2}, v{vA0}, v{vA1}
            ds_write_b32 v{vSCW}, v{vT2} offset:{off}""")
        npairs = R0 // 2
        issue_after = {0: 0, 3: 1} if D == 2 else {0: 0, 2: 1, 4: 2}
        issued = 0
        for p in range(npairs):
            a(f"s_waitcnt vmcnt({3 * ((R0 - 2*p - 2) + issued)})")
            kpair(2 * p, p * 4)
            if p in issue_after:
                a(f"s_waitcnt vmcnt({thr})")
                load(issue_after[p])
                issued += 1
        a(f"v_add_u32 v{vSCW}, {2*R0}, v{vSCW}")
        if self.kboost >= 0:
            assert D == 3
            a(f"s_mov_b32 s{sUSED}, {self.kboost}")
        a("L_kloop:")
        tr()
        for s in range(RS):
            if self.kboost >= 0:
                throttle()
            else:
                a(f"s_waitcnt vmcnt({thr})")
            load((s + D) % RS, "kv" if s == RS - D - 1 else None)
            if s & 1:
                if self.early:
                    a(f"s_waitcnt vmcnt({3*D})")
                if not self.nok:
                    kpair(s - 1, (s // 2) * 4)
        a(f"""v_add_u32 v{vSCW}, {2*RS}, v{vSCW}
        s_add_u32 s{sIT}, s{sIT}, 1
        s_cmp_lt_u32 s{sIT}, {NITK}
        s_cbranch_scc1 L_kloop""")
        for s in range(D, R1):
            load(s)
        self.stamp(2, vA)
        tr()
        F = 32
        a(f"""v_lshl_add_u32 v{vT2}, v{vT1}, 4, v{vSCR}
        s_memrealtime s[46:47]
        s_waitcnt lgkmcnt(0)
        ds_read_b128 v[40:43], v{vT2}
        s_waitcnt lgkmcnt(0)""")
        for i in range(4):
            a(f"v_lshlrev_b32 v{F+2*i}, 16, v{40+i}\nv_and_b32 v{F+2*i+1}, 0xffff0000, v{40+i}")
        a(f"""v_max3_f32 v{vA0}, v{F}, v{F+1}, v{F+2}
        v_max3_f32 v{vA0}, v{vA0}, v{F+3}, v{F+4}
        v_max3_f32 v{vA0}, v{vA0}, v{F+5}, v{F+6}
        v_max_f32 v{vA0}, v{vA0}, v{F+7}""")
        self.row_reduce("v_max_f32", vA0)
        self.swap_reduce("v_max_f32", vA0, vT3, 16)
        self.swap_reduce("v_max_f32", vA0, vT3, 32)
        for i in range(8):
            a(f"v_sub_f32 v{F+i}, v{F+i}, v{vA0}\nv_mul_f32 v{F+i}, {LOG2E}, v{F+i}")
        for i in range(8):
            a(f"v_exp_f32 v{F+i}, v{F+i}")
        a("s_nop 0")
        a(f"v_add_f32 v{vA1}, v{F}, v{F+1}")
        for i in range(2, 8):
            a(f"v_add_f32 v{vA1}, v{vA1}, v{F+i}")
        for i in range(4):
            a(f"v_cvt_pk_bf16_f32 v{40+i}, v{F+2*i}, v{F+2*i+1}")
        a(f"ds_write_b128 v{vT2}, v[40:43]")
        self.row_reduce("v_add_f32", vA1)
        self.swap_reduce("v_add_f32", vA1, vT3, 16)
        self.swap_reduce("v_add_f32", vA1, vT3, 32)
        a("s_waitcnt lgkmcnt(0)")
        def pread(n):
            if n == 2: a(f"ds_read_b64 v[{vP}:{vP+1}], v{vSCR}")
            elif n == 3: a(f"ds_read_b32 v{vP}, v{vSCR}\nds_read_b32 v{vP+1}, v{vSCR} offset:4\nds_read_b32 v{vP+2}, v{vSCR} offset:8")
            else: raise ValueError(n)
            a(f"v_add_u32 v{vSCR}, {4*n}, v{vSCR}")
        pread(R1 // 2)
        self.tag(44, vA0, vTG, pos=0)
        self.tag(45, vA1, vTG, pos=1)
        if self.diagx:
            a(f"s_getreg_b32 s9, hwreg(HW_REG_XCC_ID, 0, 4)\ns_lshl_b32 s9, s9, 8\nv_or_b32 v44, s9, v44")
        a(f"""v_mov_b32 v46, s{sT}
        v_mov_b32 v47, s46
        s_lshl_b32 s9, s3, 4
        v_mov_b32 v{vA0}, s9
        s_mov_b64 exec, 1
        ds_write_b128 v{vA0}, v[44:47] offset:{L_STL}
        s_mov_b64 exec, -1""")
        self.wide_tag()
        a(f"""v_mov_b32 v{vTG}, s96
        s_mov_b32 exec_lo, 0x22222222
        v_mov_b32 v{vTG}, s97
        s_mov_b32 exec_lo, 0x44444444
        v_mov_b32 v{vTG}, s98
        s_mov_b32 exec_lo, 0x88888888
        v_mov_b32 v{vTG}, s99
        s_mov_b32 exec_lo, -1""")
        for i in range(12):
            a(f"v_mov_b32 v{vACC+i}, 0")
        a(f"s_mov_b32 s{sIT}, 0\ns_waitcnt lgkmcnt(0)")
        a(f"""v_and_b32 v{vT0}, 7, v{vL}
        v_mul_u32_u24 v{vT0}, {OS}, v{vT0}
        v_lshrrev_b32 v{vT1}, 4, v{vL}
        v_lshl_add_u32 v{vT0}, v{vT1}, 4, v{vT0}
        v_bfe_u32 v{vT2}, v{vL}, 3, 1
        v_mul_u32_u24 v{vT3}, 192, v{vT2}
        v_add_u32 v{vT0}, v{vT0}, v{vT3}
        v_mul_u32_u24 v18, 0xaaaa, v{vT2}
        v_add_u32 v18, 0x4444, v18
        v_lshl_or_b32 v18, v18, 16, v18
        v_and_b32 v{vT2}, 1, v{vT1}
        v_and_b32 v{vT3}, 31, v{vL}
        v_lshlrev_b32 v{vT3}, 2, v{vT3}
        v_lshlrev_b32 v{vT2}, 3, v{vT2}
        v_lshlrev_b32 v{vT1}, 8, v{vT1}
        v_bfe_u32 v{vA0}, v{vL}, 3, 1
        v_lshl_add_u32 v{vT1}, v{vA0}, 4, v{vT1}
        v_and_b32 v{vA0}, 7, v{vL}
        v_mul_u32_u24 v{vA0}, {WXS}, v{vA0}
        s_lshl_b32 s9, s3, 6
        s_add_u32 s9, s9, {L_WX}
        v_add3_u32 v{vT1}, v{vT1}, v{vA0}, s9
        s_mul_i32 s9, s7, 2560
        s_lshl_b32 s11, s3, 7
        s_add_u32 s9, s9, s11
        s_add_u32 s9, s9, {P_OFF + 2048}
        s_mov_b32 s67, s9""")
        self.stamp(3, 60)
        tr()

        def vmf(g, slot):
            A = vA + 4 * ((g + 1) & 1)
            for j in range(3):
                self.mfma(vACC + 4 * j, A, RING + (slot * 3 + j) * 4, vACC + 4 * j)
        def vA_(g):
            self.buildA(vA + 4 * ((g + 1) & 1), vP + g // 2, g & 1, vSEL)
        NE, DE = self.NE, self.DE
        RSV = 6
        VD_ = self.VD
        sUSED, sTGT = 44, 45
        vZ, vB = 62, 63
        assert (64 - R1 - NE) % RSV == 0 and NE == 12
        NITV = (64 - R1 - NE) // RSV
        def prog(val):
            L = self.lab("pg")
            a(f"""s_cmp_lg_u32 s3, 0
            s_cbranch_scc1 {L}
            v_mov_b32 v{vB}, {val}
            v_lshlrev_b32 v60, 2, v{vB}
            v_mov_b32 v61, s46
            ds_write_b32 v60, v61 offset:{L_TM}
            ds_write_b32 v{vZ}, v{vB} offset:{L_PROG}
            {L}:""")
        a(f"v_mov_b32 v{vZ}, 0\ns_mov_b32 s{sUSED}, 0\ns_mov_b32 s{sTGT}, 0")
        prog(1)
        issued = 0
        for g in range(R1):
            vA_(g)
            if g == R1 - 1:
                pread(3)
                a(f"ds_read_b32 v{vB}, v{vZ} offset:{L_BOOST}")
            if g >= 4 - VD_:
                a(f"s_waitcnt vmcnt(3)")
                load((R1 + issued) % RSV)
                issued += 1
            else:
                a(f"s_waitcnt vmcnt({3*(R1 - g - 1)})\ns_nop 0")
            vmf(g, g)
        a(f"""L_vloop:
        s_memrealtime s[46:47]
        s_waitcnt lgkmcnt(0)
        v_readfirstlane_b32 s9, v{vB}
        s_sext_i32_i16 s11, s9
        s_cmp_lg_u32 s9, s{sTGT}
        s_cselect_b32 s{sUSED}, s11, s{sUSED}
        s_mov_b32 s{sTGT}, s9
        s_add_u32 s9, s{sIT}, 2""")
        prog("s9")
        tr()
        for s in range(RSV):
            slot = (R1 + s) % RSV
            vA_(s)
            if s == RSV - 1:
                pread(3)
                a(f"ds_read_b32 v{vB}, v{vZ} offset:{L_BOOST}")
            if self.brd == 3 and s == 2:
                a(f"ds_read_b32 v{vB}, v{vZ} offset:{L_BOOST}")
            if self.brd == 3 and s == 3:
                a(f"""s_waitcnt lgkmcnt(0)
                v_readfirstlane_b32 s9, v{vB}
                s_sext_i32_i16 s11, s9
                s_cmp_lg_u32 s9, s{sTGT}
                s_cselect_b32 s{sUSED}, s11, s{sUSED}
                s_mov_b32 s{sTGT}, s9""")
            throttle(VD_)
            load((slot + VD_) % RSV)
            vmf(s, slot)
        a(f"""s_add_u32 s{sIT}, s{sIT}, 1
        s_cmp_lt_u32 s{sIT}, {NITV}
        s_cbranch_scc1 L_vloop""")
        slot_of = lambda e: (R1 + e) % RSV if e < VD_ else e + 6 - VD_
        nxt = VD_
        a(f"""s_waitcnt lgkmcnt(0)
        v_readfirstlane_b32 s9, v{vB}
        s_sext_i32_i16 s11, s9
        s_cmp_lg_u32 s9, s{sTGT}
        s_cselect_b32 s{sUSED}, s11, s{sUSED}""")
        for e in range(NE):
            if e == 6:
                a("s_waitcnt lgkmcnt(0)")
            if e % 6 == 0:
                tr()
            vA_(e % 6)
            if e == 5:
                pread(3)
            if e == 7 and self.spre:
                a(f"""L_wxw:
                ds_read_b64 v[60:61], v{vZ} offset:{L_WXOK}
                s_waitcnt lgkmcnt(0)
                v_and_b32 v60, v60, v61
                s_nop 0
                v_readfirstlane_b32 s9, v60
                s_cmp_eq_u32 s9, 0
                s_cbranch_scc1 L_wxw""")
                for kp in range(3):
                    for hl in range(2):
                        for k2 in range(2):
                            r = RING + (2 * kp + hl) * 8 + 4 * k2
                            a(f"ds_read_b128 v[{r}:{r+3}], v{vT1} offset:{8*WXS*(2*kp+k2) + 32*hl}")
            if e < self.NB:
                throttle(VD_)
                load(slot_of(nxt)); nxt += 1
            else:
                a(f"s_waitcnt vmcnt({3*(nxt - e - 1)})")
                n0 = nxt
                while nxt < NE and nxt - e - 1 < DE:
                    load(slot_of(nxt)); nxt += 1
                if nxt == n0:
                    a("s_nop 0")
            vmf(e % 6, slot_of(e))
        a("s_nop 3\ns_mov_b32 exec_lo, 0x00ff00ff\ns_mov_b32 exec_hi, 0xff00ff00")
        OC = 12
        for j in range(3):
            a(f"""v_cvt_pk_bf16_f32 v{OC+2*j}, v{vACC+4*j}, v{vACC+4*j+1}
            v_cvt_pk_bf16_f32 v{OC+2*j+1}, v{vACC+4*j+2}, v{vACC+4*j+3}
            ds_write2_b32 v{vOW}, v{OC+2*j}, v{OC+2*j+1} offset0:{16*j} offset1:{16*j+48}""")
        a("s_mov_b64 exec, -1")
        for r in (20, 21, 22, 23, 52, 53, 54, 55):
            a(f"v_mov_b32 v{r}, 0")
        a("s_waitcnt lgkmcnt(0)")
        self.stamp(4, 56)
        tr()
        a("s_barrier")
        AA = RING + 12 * W
        BB = AA + 24
        assert BB + 48 <= 256
        D0, D1, SCL = 20, 52, 40
        if self.spre:
            BB = RING
            for kp in range(3):
                a(f"ds_read_b128 v[{AA+4*kp}:{AA+4*kp+3}], v{vT0} offset:{L_O + 64*kp}")
            a(f"ds_read_b64 v[{SCL}:{SCL+1}], v{vT2} offset:{L_SCALE}")
            for kp in range(3):
                a(f"s_waitcnt lgkmcnt({3-kp})")
                self.smf(D0, AA + 4 * kp, BB + (2 * kp) * 8, 18)
                self.smf(D1, AA + 4 * kp, BB + (2 * kp + 1) * 8, 18)
        else:
            for kp in range(3):
                a(f"ds_read_b128 v[{AA+4*kp}:{AA+4*kp+3}], v{vT0} offset:{L_O + 64*kp}")
                for hl in range(2):
                    for k2 in range(2):
                        r = BB + (2 * kp + hl) * 8 + 4 * k2
                        a(f"ds_read_b128 v[{r}:{r+3}], v{vT1} offset:{8*WXS*(2*kp+k2) + 32*hl}")
                if kp == 1:
                    a("s_waitcnt lgkmcnt(5)")
            a(f"ds_read_b64 v[{SCL}:{SCL+1}], v{vT2} offset:{L_SCALE}")
            for kp in range(3):
                a(f"s_waitcnt lgkmcnt({5*(2-kp)+1})")
                self.smf(D0, AA + 4 * kp, BB + (2 * kp) * 8, 18)
                self.smf(D1, AA + 4 * kp, BB + (2 * kp + 1) * 8, 18)
        a("s_waitcnt lgkmcnt(0)\ns_nop 7")
        for D in (D0, D1):
            a(f"""v_add_f32 v{D}, v{D}, v{D+1}
            v_add_f32 v{D+2}, v{D+2}, v{D+3}
            v_mul_f32 v{D}, v{D}, v{SCL}
            v_fmac_f32 v{D}, v{D+2}, v{SCL+1}""")
        a(f"""s_nop 1
        v_permlane16_swap_b32 v{D0}, v{D1}
        s_nop 1
        v_add_f32 v{D0}, v{D0}, v{D1}""")
        self.swap_reduce("v_add_f32", D0, D1, 32)
        self.tag(D0, D0, vTG, rn=12)
        if self.pq:
            a("s_endpgm")
        if self.wide:
            a(f"""s_mov_b32 exec_hi, 0
            s_nop 0
            v_mov_b32_dpp v{D0+1}, v{D0} quad_perm:[1,1,1,1] row_mask:0xf bank_mask:0xf
            v_mov_b32_dpp v{D0+2}, v{D0} quad_perm:[2,2,2,2] row_mask:0xf bank_mask:0xf
            v_mov_b32_dpp v{D0+3}, v{D0} quad_perm:[3,3,3,3] row_mask:0xf bank_mask:0xf
            s_mov_b32 exec_lo, 0x11111111
            buffer_store_dwordx4 v[{D0}:{D0+3}], v{vT3}, s[56:59], s67 offen {self.pst}
            s_mov_b64 exec, -1""")
        else:
            a(f"""s_mov_b32 exec_hi, 0
            buffer_store_dword v{D0}, v{vT3}, s[56:59], s67 offen {self.pst}
            s_mov_b64 exec, -1""")
        self.stamp(5, 12)
        tr()
        if self.trace:
            a(f"""s_sleep 127
            s_lshl_b32 s9, s2, 2
            s_add_u32 s9, s9, s3
            s_lshl_b32 s9, s9, 8
            s_add_u32 s9, s9, {3 << 20}
            v_lshlrev_b32 v12, 2, v0
            buffer_store_dword v{vTR}, v12, s[56:59], s9 offen""")
        for i, r in enumerate(self.fs):
            self.stamp(6 + i, 12, src=r)
        a("s_endpgm")

    def gen_H(self):
        self.cls = "H"
        a = self.a
        vL = 0
        vT0, vT1, vT2, vT3, vT4, vT5, vW = 1, 2, 3, 4, 5, 6, 7
        vX = 8
        vSEL = 18
        vTG = 26
        vCK = 27
        vF = 28
        vA, vACC = 28, 36
        vE = 52
        TI = 64
        if self.hprio:
            a(f"s_setprio {self.hprio}")
        a("s_sub_u32 s3, s3, 4")
        a(f"""s_and_b32 s14, s10, 7
        s_lshl_b32 s52, s14, 5
        s_add_u32 s52, s52, s4
        s_cmp_ge_u32 s14, 6
        s_cselect_b32 s52, 255, s52
        s_cmp_eq_u32 s3, 3
        s_cbranch_scc1 L_h3
        v_lshrrev_b32 v{vT0}, 5, v{vL}
        v_mul_u32_u24 v{vT0}, 1280, v{vT0}
        v_and_b32 v{vT1}, 31, v{vL}
        v_lshl_add_u32 v{vT0}, v{vT1}, 3, v{vT0}
        v_lshrrev_b32 v{vT1}, 3, v{vL}
        v_and_b32 v{vT2}, 7, v{vL}
        s_lshl_b32 s53, s4, 1
        s_add_u32 s53, s53, s14
        s_sub_u32 s53, s53, 6
        s_lshl_b32 s53, s53, 1
        s_add_u32 s53, s53, s3
        s_add_u32 s9, s52, 128
        s_cmp_eq_u32 s3, 2
        s_cselect_b32 s53, s9, s53
        s_cselect_b32 s9, 7, s14
        s_waitcnt lgkmcnt(0)""")
        self.srd(60, 16, 2560)
        for t in range(5):
            a(f"buffer_load_dwordx2 v[{vX+2*t}:{vX+2*t+1}], v{vT0}, s[60:63], 0 offen offset:{256*t}")
        a(f"""s_mov_b32 s47, 0x20000
        s_cmp_ge_u32 s9, 6
        s_cbranch_scc1 L_jgu
        s_mov_b32 s44, s22
        s_mov_b32 s45, s23
        s_mov_b32 s46, {640*12288}
        s_mov_b32 s54, 12288
        s_and_b32 s55, s14, 1
        s_lshl_b32 s55, s55, 1
        s_add_u32 s55, s55, s3
        s_lshr_b32 s11, s14, 1
        s_mul_i32 s64, s4, 384
        s_lshl_b32 s9, s11, 7
        s_add_u32 s64, s64, s9
        s_lshl_b32 s66, s4, 2
        s_add_u32 s66, s66, s55
        s_mul_i32 s66, s66, 1536
        s_lshl_b32 s9, s11, 8
        s_add_u32 s66, s66, s9
        s_add_u32 s66, s66, {QX_OFF}
        s_mov_b32 s13, 768
        s_branch L_jd
        L_jgu:
        s_bitcmp1_b32 s53, 2
        s_cselect_b32 s44, s32, s30
        s_cselect_b32 s45, s33, s31
        s_mov_b32 s46, {640*3072}
        s_mov_b32 s54, 3072
        s_and_b32 s55, s53, 3
        s_lshr_b32 s64, s53, 3
        s_lshl_b32 s64, s64, 7
        s_lshl_b32 s66, s53, 9
        s_add_u32 s66, s66, {GU_OFF}
        s_mov_b32 s13, 256
        L_jd:
        s_mul_i32 s9, s54, 20
        v_mul_lo_u32 v{vW}, v{vT1}, s9
        v_lshl_add_u32 v{vW}, v{vT2}, 4, v{vW}
        s_mul_i32 s9, s55, 160
        s_mul_i32 s9, s9, s54
        s_add_u32 s9, s9, s64
        v_add_u32 v{vW}, s9, v{vW}""")
        def job_loads():
            a("s_mov_b32 s9, 0")
            for G in range(20):
                a(f"buffer_load_dwordx4 v[{TI+4*G}:{TI+4*G+3}], v{vW}, s[44:47], s9 offen {self.wf}")
                if G < 19:
                    a("s_add_u32 s9, s9, s54")
        a("s_cmp_eq_u32 s3, 2\ns_cbranch_scc1 L_nj1")
        job_loads()
        a("L_nj1:")
        self.epoch_load()
        self.srd(56, 40, WS_SRD)
        self.selectors(vL, vSEL, vT3, vT4, vT5)
        a("s_cmp_lg_u32 s3, 2\ns_cbranch_scc1 L_nx2\ns_waitcnt vmcnt(0)\nL_nx2:")
        a(f"s_mov_b32 s9, 0x3f803f80\ns_waitcnt vmcnt(20)")
        self.stamp(11, 60)
        for i in range(10):
            c = "0" if i == 0 else f"v{vT3}"
            a(f"v_dot2_f32_bf16 v{vT3}, v{vX+i}, s9, {c}")
        for i in range(2):
            a(f"v_lshlrev_b32 v{vF+2*i}, 16, v{vX+i}\nv_and_b32 v{vF+2*i+1}, 0xffff0000, v{vX+i}")
        k = 2
        for st in (1, 2, 4, 8):
            self.dpp("v_add_f32", vT3, vT3, vT3, f"row_ror:{st}")
            a(f"v_lshlrev_b32 v{vF+2*k}, 16, v{vX+k}\nv_and_b32 v{vF+2*k+1}, 0xffff0000, v{vX+k}")
            k += 1
        a(f"v_mov_b32 v{vT4}, v{vT3}")
        a(f"v_lshlrev_b32 v{vF+2*k}, 16, v{vX+k}\nv_and_b32 v{vF+2*k+1}, 0xffff0000, v{vX+k}")
        k += 1
        a(f"v_permlane16_swap_b32 v{vT3}, v{vT4}")
        while k < 10:
            a(f"v_lshlrev_b32 v{vF+2*k}, 16, v{vX+k}\nv_and_b32 v{vF+2*k+1}, 0xffff0000, v{vX+k}")
            k += 1
        a(f"v_add_f32 v{vT3}, v{vT3}, v{vT4}")
        def div640(v, t):
            a(f"""v_mul_f32 v{t}, {f32(1/640)}, v{v}
            v_fmac_f32 v{v}, {f32(-640.0)}, v{t}
            v_fmac_f32 v{t}, {f32(1/640)}, v{v}""")
        M2 = vE
        D2 = vE + 2
        Q2 = vE + 4
        div640(vT3, M2)
        a(f"v_mov_b32 v{M2+1}, v{M2}")
        for i in range(10):
            a(f"v_pk_add_f32 v[{D2}:{D2+1}], v[{vF+2*i}:{vF+2*i+1}], v[{M2}:{M2+1}] neg_lo:[0,1] neg_hi:[0,1]")
            if i == 0:
                a(f"v_pk_mul_f32 v[{Q2}:{Q2+1}], v[{D2}:{D2+1}], v[{D2}:{D2+1}]")
            else:
                a(f"v_pk_fma_f32 v[{Q2}:{Q2+1}], v[{D2}:{D2+1}], v[{D2}:{D2+1}], v[{Q2}:{Q2+1}]")
        a(f"v_add_f32 v{vT4}, v{Q2}, v{Q2+1}")
        self.rbf(M2)
        a(f"v_mov_b32 v{M2+1}, v{M2}")
        def xc(i):
            a(f"""v_pk_add_f32 v[{vF+2*i}:{vF+2*i+1}], v[{vF+2*i}:{vF+2*i+1}], v[{M2}:{M2+1}] neg_lo:[0,1] neg_hi:[0,1]
            v_cvt_pk_bf16_f32 v{vF+2*i+1}, v{vF+2*i}, v{vF+2*i+1}
            v_lshlrev_b32 v{vF+2*i}, 16, v{vF+2*i+1}
            v_and_b32 v{vF+2*i+1}, 0xffff0000, v{vF+2*i+1}""")
        k = 0
        for st in (1, 2, 4, 8):
            self.dpp("v_add_f32", vT4, vT4, vT4, f"row_ror:{st}")
            xc(k); k += 1
        a(f"v_mov_b32 v{vT5}, v{vT4}")
        xc(k); k += 1
        a(f"v_permlane16_swap_b32 v{vT4}, v{vT5}")
        xc(k); k += 1
        a(f"v_add_f32 v{vT4}, v{vT4}, v{vT5}")
        div640(vT4, vT5)
        self.rbf(vT5)
        a(f"v_add_f32 v{vT5}, {f32(1e-5)}, v{vT5}")
        self.rbf(vT5)
        a(f"v_sqrt_f32 v{vT5}, v{vT5}")
        xc(k); k += 1
        self.rbf(vT5)
        a(f"v_rcp_f32 v{D2}, v{vT5}")
        xc(k); k += 1
        a(f"v_mov_b32 v{D2+1}, v{D2}\nv_mov_b32 v{Q2}, v{vT5}\nv_mov_b32 v{Q2+1}, v{vT5}")
        while k < 10:
            xc(k); k += 1
        R2 = vE + 6
        for i in range(10):
            f = vF + 2 * i
            a(f"""v_pk_mul_f32 v[{R2}:{R2+1}], v[{f}:{f+1}], v[{D2}:{D2+1}]
            v_pk_fma_f32 v[{f}:{f+1}], v[{R2}:{R2+1}], v[{Q2}:{Q2+1}], v[{f}:{f+1}] neg_lo:[1,0,0] neg_hi:[1,0,0]
            v_pk_fma_f32 v[{R2}:{R2+1}], v[{f}:{f+1}], v[{D2}:{D2+1}], v[{R2}:{R2+1}]
            v_cvt_pk_bf16_f32 v{vX+i}, v{R2}, v{R2+1}""")
            if i & 1:
                t = i // 2
                a(f"ds_write_b64 v{vT0}, v[{vX+2*t}:{vX+2*t+1}] offset:{L_XN + 256*t}")
        a("s_waitcnt lgkmcnt(0)")
        self.epoch_use(vTG)
        self.stamp(15, 60, src=48)
        self.stamp(1, 60)
        a(f"""s_cmp_lg_u32 s3, 2
        s_cbranch_scc1 L_job
        s_cmp_ge_u32 s52, {0 if self.nomoe else 64}
        s_cbranch_scc1 L_bar1""")
        job_loads()
        a("L_job:")
        C1 = 44
        a(f"""v_mul_u32_u24 v{vT3}, 40, v{vT1}
        s_mul_i32 s9, s55, 320
        v_add_u32 v{vT3}, s9, v{vT3}""")
        for bb, base in ((0, vX), (1, C1)):
            for t in range(5):
                a(f"ds_read_b64 v[{base+2*t}:{base+2*t+1}], v{vT3} offset:{L_XN + 1280*bb + 8*t}")
        a(f"""v_lshrrev_b32 v{vT4}, 5, v{vL}
        v_mul_lo_u32 v{vT4}, v{vT4}, s13
        v_lshl_add_u32 v{vT4}, v{vT2}, 5, v{vT4}
        v_bfe_u32 v{vT5}, v{vL}, 4, 1
        v_lshl_add_u32 v{vT4}, v{vT5}, 4, v{vT4}
        s_waitcnt lgkmcnt(0)""")
        self.job_compute(20, vX, C1, TI, vA, vACC, vSEL, vTG, vT4, "s66", True)
        a(f"s_setprio {self.hprio1}\ns_cmp_eq_u32 s3, 2\ns_cbranch_scc1 L_bar1")
        self.srd(44, 24, 0 if self.nowo else 6144 * 1280)
        a(f"""v_lshrrev_b32 v{vT3}, 4, v{vL}
        v_mul_u32_u24 v{vT3}, {8*1280}, v{vT3}
        v_and_b32 v{vT4}, 15, v{vL}
        v_lshl_add_u32 v{vT3}, v{vT4}, 4, v{vT3}
        s_mul_i32 s9, s4, {192*1280}
        s_mul_i32 s10, s3, {96*1280}
        s_add_u32 s9, s9, s10
        s_add_u32 s9, s9, 1024
        v_add_u32 v{vT3}, s9, v{vT3}
        s_mul_i32 s9, s3, {24*WXS}
        s_add_u32 s9, s9, {L_WX}
        v_lshlrev_b32 v{vT4}, 4, v{vL}
        v_add_u32 v{vT4}, s9, v{vT4}
        s_mov_b32 s14, 0x05040100
        s_mov_b32 s15, 0x07060302""")
        for kk in range(3):
            if kk == self.pre:
                a("s_barrier")
            sr, d = TI + 64 * kk, TI + 64 * kk + 32
            for e in range(8):
                if e % 4 == 0:
                    a(f"s_mov_b32 s9, {(32*kk + e)*1280}")
                a(f"buffer_load_dwordx4 v[{sr+4*e}:{sr+4*e+3}], v{vT3}, s[44:47], s9 offen offset:{(e%4)*1280} {self.wof}")
            for t in range(4):
                a(f"s_waitcnt vmcnt({6-2*t})")
                for dd in range(4):
                    a(f"v_perm_b32 v{d+(2*dd)*4+t}, v{sr+(2*t+1)*4+dd}, v{sr+(2*t)*4+dd}, s14")
                    a(f"v_perm_b32 v{d+(2*dd+1)*4+t}, v{sr+(2*t+1)*4+dd}, v{sr+(2*t)*4+dd}, s15")
            for c in range(8):
                a(f"ds_write_b128 v{vT4}, v[{d+4*c}:{d+4*c+3}] offset:{(8*kk + c)*WXS}")
        a(f"""s_lshl_b32 s9, s3, 2
        v_mov_b32 v{vT3}, s9
        v_mov_b32 v{vT4}, 1
        ds_write_b32 v{vT3}, v{vT4} offset:{L_WXOK}
        s_waitcnt lgkmcnt(0)
        s_branch L_h1""")
        a("L_h3:\nv_mov_b32 v10, 0\nv_mov_b32 v11, 0\ns_waitcnt lgkmcnt(0)")
        self.epoch_load()
        self.srd(56, 40, WS_SRD)
        if self.tlb:
            a(f"""v_lshlrev_b32 v{vT5}, 18, v{vL}
            s_mul_i32 s9, s8, {4*CH}
            s_mov_b64 exec, 0xfff""")
            self.srd(60, 20, TB)
            a(f"buffer_load_dword v64, v{vT5}, s[60:63], s9 offen nt")
            self.srd(44, 18, TB)
            a(f"buffer_load_dword v65, v{vT5}, s[44:47], s9 offen nt\ns_mov_b64 exec, 1")
            for i, (p, nb) in enumerate(((36, 2560), (34, 1536 * 1280), (28, 1280))):
                self.srd(60, p, nb)
                a(f"buffer_load_dword v{66+i}, v{vT5}, s[60:63], 0 offen nt")
            a("s_mov_b64 exec, -1")
        a(f"""v_lshlrev_b32 v{vT3}, 4, v{vL}
        v_lshlrev_b32 v{vT4}, 3, v{vL}
        s_mul_i32 s9, s4, {4*1536}
        s_mul_i32 s11, s5, 768
        s_add_u32 s9, s9, s11
        s_add_u32 s70, s9, {QX_OFF}
        s_add_u32 s71, s70, 3072
        s_waitcnt lgkmcnt(0)""")
        self.epoch_use(vTG)
        a(f"""v_mov_b32 v{vT5}, 0
        s_not_b32 s9, s{sT}
        v_mov_b32 v{vT0}, s9
        v_lshlrev_b32 v{vT1}, 2, v{vL}
        ds_write_b32 v{vT5}, v{vT5} offset:{L_PROG}
        ds_write_b32 v{vT5}, v{vT5} offset:{L_BOOST}
        ds_write_b32 v{vT5}, v{vT5} offset:{L_WXOK}
        ds_write_b32 v{vT5}, v{vT5} offset:{L_WXOK + 4}
        s_mov_b64 exec, 0xffff
        ds_write_b32 v{vT1}, v{vT0} offset:{L_STL}
        s_mov_b64 exec, -1""")
        q = self.qsleep
        while q > 0:
            a(f"s_sleep {min(q, 127)}")
            q -= 127
        self.mpoll([(TI + 4 * k, f"buffer_load_dwordx4 v[{TI+4*k}:{TI+4*k+3}], v{vT3}, s[56:59], s{70+k//2} offen offset:{1536*(k&1)} sc1") for k in range(4)],
                   vTG, vCK, self.qsleep2, mask=("-1", "0xffff"))
        self.sum_quads(TI, 4)
        a(f"""s_mov_b32 exec_hi, 0xffff
        v_cvt_pk_bf16_f32 v{TI}, v{TI}, v{TI+1}
        v_cvt_pk_bf16_f32 v{TI+1}, v{TI+2}, v{TI+3}
        ds_write_b64 v{vT4}, v[{TI}:{TI+1}] offset:{L_QB}
        s_mov_b64 exec, -1
        s_waitcnt lgkmcnt(0)""")
        self.stamp(2, 60)
        a(f"""L_bar1:
        s_setprio {self.hprio1}
        s_barrier
        L_h1:""")
        a(f"v_and_b32 v{vT1}, 15, v{vL}\nv_lshrrev_b32 v{vT2}, 4, v{vL}")
        self.srd(44, 24, 0 if self.nowo else 6144 * 1280)
        a(f"""v_mul_u32_u24 v{vW}, {8*1280}, v{vT2}
        s_mul_i32 s9, s4, {192*1280}
        v_add_u32 v{vW}, s9, v{vW}
        v_lshl_add_u32 v{vW}, v{vT1}, 4, v{vW}
        s_lshl_b32 s9, s3, 8
        v_add_u32 v{vW}, s9, v{vW}
        s_mov_b32 s14, 0x05040100
        s_mov_b32 s15, 0x07060302""")
        self.stamp(3, 60)
        def REG(k): return 32 + 32 * k
        for K in (5, 4, 3, 2, 1, 0):
            if K == 3:
                a(f"""s_cmp_lg_u32 s3, 2
                s_cbranch_scc1 L_nodn
                s_sub_u32 s52, s52, 64
                s_cmp_ge_u32 s52, {0 if self.nomoe else 120}
                s_cbranch_scc1 L_nodn""")
                self.gen_dn(vL, vT3, vT4, vT5, vSEL, vTG, vCK, TI)
                self.stamp(9, 60)
                a("L_nodn:")
            for e in range(8):
                if e % 4 == 0:
                    a(f"s_mov_b32 s9, {(32*K + e)*1280}")
                r = REG(0) + 4 * e
                a(f"buffer_load_dwordx4 v[{r}:{r+3}], v{vW}, s[44:47], s9 offen offset:{(e%4)*1280} {self.wof}")
                if self.wobatch == 4 and e == 3:
                    a("s_waitcnt vmcnt(0)")
                    if self.wosleep:
                        a(f"s_sleep {self.wosleep}")
                if self.wobatch == 2 and e in (1, 3, 5):
                    a("s_waitcnt vmcnt(0)")
            s, d = REG(0), 64 + 64 * (K // 2) + 4 * (K & 1)
            for t in range(4):
                a(f"s_waitcnt vmcnt({6-2*t})")
                for dd in range(4):
                    a(f"v_perm_b32 v{d+(2*dd)*8+t}, v{s+(2*t+1)*4+dd}, v{s+(2*t)*4+dd}, s14")
                    a(f"v_perm_b32 v{d+(2*dd+1)*8+t}, v{s+(2*t+1)*4+dd}, v{s+(2*t)*4+dd}, s15")
        vG, vXC, vOUTA, vPA, vSC = 8, 9, 10, 11, 12
        vAR, vST = 14, 15
        Wk = 32
        self.stamp(4, 60)
        a(f"""s_cmp_lg_u32 s3, 0
        s_cbranch_scc1 L_noep
        s_cmp_lg_u32 s2, 0
        s_cbranch_scc1 L_noep""")
        Lc, Lcd = self.lab("c0"), self.lab("c0d")
        a(f"""s_mov_b32 s12, {self.poll_max}
        v_lshlrev_b32 v{Wk+8}, 6, v{vL}
        v_mov_b32 v{Wk+9}, s{sT}
        s_mov_b32 s9, {ST_OFF + 8}
        s_mov_b32 s10, {ST_OFF + 8 + 4096}
        s_mov_b32 s11, {ST_OFF + 8 + 8192}
        s_mov_b32 s13, {ST_OFF + 8 + 12288}
        {Lc}:
        s_sleep 127
        buffer_load_dword v{Wk}, v{Wk+8}, s[56:59], s9 offen sc1
        buffer_load_dword v{Wk+1}, v{Wk+8}, s[56:59], s10 offen sc1
        buffer_load_dword v{Wk+2}, v{Wk+8}, s[56:59], s11 offen sc1
        buffer_load_dword v{Wk+3}, v{Wk+8}, s[56:59], s13 offen sc1
        s_waitcnt vmcnt(0)""")
        self.chk4(vCK, Wk, Wk + 9, first=True, n=4, full=True)
        a(f"""v_cmp_ne_u32 vcc, 0, v{vCK}
        s_cbranch_vccz {Lcd}
        s_sub_u32 s12, s12, 1
        s_cmp_gt_u32 s12, 0
        s_cbranch_scc1 {Lc}
        {Lcd}:
        v_mov_b32 v{Wk}, 0
        s_mov_b32 s9, {EP_OFF}
        s_mov_b64 exec, 1
        buffer_store_dword v{Wk+9}, v{Wk}, s[56:59], s9 offen sc1
        s_mov_b64 exec, -1
        L_noep:""")
        a("s_cmp_lg_u32 s3, 3\ns_cbranch_scc1 L_nostat")
        if self.nopoll:
            a("s_branch L_nostat")
        vZ0 = Wk + 16
        L, Ld = self.lab("cw"), self.lab("cwd")
        a(f"""v_mov_b32 v{vZ0}, 0
        v_lshlrev_b32 v{Wk+4}, 4, v{vL}
        s_mov_b32 s12, {self.poll_max * 16}
        s_mov_b64 exec, 15
        {L}:
        ds_read_b128 v[{Wk}:{Wk+3}], v{Wk+4} offset:{L_STL}
        s_waitcnt lgkmcnt(0)
        v_cmp_ne_u32 vcc, s{sT}, v{Wk+2}
        s_cbranch_vccz {Ld}
        s_sleep 8
        s_sub_u32 s12, s12, 1
        s_cmp_gt_u32 s12, 0
        s_cbranch_scc1 {L}
        {Ld}:
        s_lshl_b32 s9, s7, 6
        s_add_u32 s9, s9, {ST_OFF}
        buffer_store_dwordx4 v[{Wk}:{Wk+3}], v{Wk+4}, s[56:59], s9 offen sc1
        s_mov_b64 exec, -1
        s_sleep {self.cdelay[0]}""")
        Ls, Lsd = self.lab("st"), self.lab("std")
        a(f"""v_lshlrev_b32 v{Wk+4}, 3, v{vT2}
        v_and_b32 v{Wk+5}, {self.mix}, v{vT2}
        v_lshl_add_u32 v{Wk+4}, v{Wk+5}, 2, v{Wk+4}
        v_add_u32 v{Wk+4}, s4, v{Wk+4}
        v_and_b32 v{Wk+4}, 31, v{Wk+4}
        v_lshlrev_b32 v{Wk+4}, 8, v{Wk+4}
        v_lshl_add_u32 v{Wk+4}, v{vT1}, 4, v{Wk+4}
        s_lshl_b32 s9, s5, 13
        s_add_u32 s9, s9, {ST_OFF}
        v_mov_b32 v{Wk+5}, s{sT}
        s_mov_b32 s12, {self.poll_max}""")
        if not self.ctl:
            a("s_mov_b64 exec, 0xffff")
        a(f"""{Ls}:
        buffer_load_dwordx4 v[{Wk}:{Wk+3}], v{Wk+4}, s[56:59], s9 offen sc1
        s_memrealtime s[10:11]
        s_waitcnt vmcnt(0) lgkmcnt(0)""")
        self.chk4(vCK, Wk, vTG, first=True, n=2)
        a(f"""v_and_b32 v{vCK}, 0xff, v{vCK}
        v_bitop3_b32 v{vCK}, v{Wk+2}, v{Wk+5}, v{vCK} bitop3:0xbe
        v_cmp_ne_u32 vcc, 0, v{vCK}
        s_and_b32 s13, vcc_lo, 0xffff
        s_cbranch_scc0 {Lsd}
        s_sleep {self.stsleep}
        s_sub_u32 s12, s12, 1
        s_cmp_gt_u32 s12, 0
        s_cbranch_scc1 {Ls}
        {Lsd}:
        s_mov_b64 exec, -1""")
        if self.ctl:
            a(f"""v_sub_u32 v{Wk+6}, s10, v{Wk+3}
            v_cvt_f32_i32 v{Wk+6}, v{Wk+6}
            v_cndmask_b32 v{Wk+6}, v{Wk+6}, 0, vcc
            s_lshl_b32 s9, s6, 2
            v_subrev_u32 v{Wk+7}, s9, v{vL}
            v_cmp_gt_u32 vcc, 4, v{Wk+7}
            v_mul_f32 v{Wk+7}, {f32(-15.0)}, v{Wk+6}
            s_nop 0
            v_cndmask_b32 v{Wk+6}, v{Wk+6}, v{Wk+7}, vcc""")
            self.row_reduce("v_add_f32", Wk + 6)
            self.swap_reduce("v_add_f32", Wk + 6, Wk + 7, 16)
            self.swap_reduce("v_add_f32", Wk + 6, Wk + 7, 32)
            a(f"""v_mul_f32 v{Wk+6}, {f32(1/64.0)}, v{Wk+6}
            """)
            self.decide(Wk + 6, Wk + 7, 0, vZ0)
        a(f"v_mov_b32 v{Wk+2}, v{Wk}")
        self.row_reduce("v_max_f32", Wk + 2)
        a(f"""v_sub_f32 v{Wk}, v{Wk}, v{Wk+2}
        v_mul_f32 v{Wk}, {LOG2E}, v{Wk}
        v_exp_f32 v{Wk}, v{Wk}
        s_nop 0
        v_mul_f32 v{Wk+1}, v{Wk+1}, v{Wk}""")
        self.row_reduce("v_add_f32", Wk + 1)
        a(f"""v_rcp_f32 v{Wk+2}, v{Wk+1}
        s_nop 0
        v_mul_f32 v{Wk+3}, v{Wk}, v{Wk+2}
        v_fma_f32 v{Wk}, -v{Wk+3}, v{Wk+1}, v{Wk}
        v_fmac_f32 v{Wk+3}, v{Wk}, v{Wk+2}
        s_lshl_b32 s9, s6, 2
        v_subrev_u32 v{Wk+4}, s9, v{vL}
        v_cmp_gt_u32 vcc, 4, v{Wk+4}
        v_lshlrev_b32 v{Wk+4}, 2, v{Wk+4}
        s_and_saveexec_b64 s[10:11], vcc
        ds_write_b32 v{Wk+4}, v{Wk+3} offset:{L_SCALE}
        s_mov_b64 exec, -1""")
        if self.ctl:
            a(f"""v_bfe_u32 v{Wk+4}, v{vL}, 2, 2
            v_and_b32 v{Wk+6}, {self.mix}, v{Wk+4}
            v_lshlrev_b32 v{Wk+4}, 3, v{Wk+4}
            v_lshl_add_u32 v{Wk+4}, v{Wk+6}, 2, v{Wk+4}
            v_add_u32 v{Wk+4}, s4, v{Wk+4}
            v_and_b32 v{Wk+4}, 31, v{Wk+4}
            v_lshlrev_b32 v{Wk+4}, 7, v{Wk+4}
            v_and_b32 v{Wk+6}, 3, v{vL}
            v_lshl_add_u32 v{Wk+4}, v{Wk+6}, 3, v{Wk+4}
            v_mov_b32 v{Wk+9}, s{sT}""")
            for ci in range(1, len(self.cps)):
                L, Ld = self.lab("cw"), self.lab("cwd")
                a(f"""s_mov_b32 s12, {self.poll_max * 16}
                {L}:
                ds_read_b32 v{Wk}, v{vZ0} offset:{L_PROG}
                s_waitcnt lgkmcnt(0)
                v_readfirstlane_b32 s9, v{Wk}
                s_cmp_ge_u32 s9, {self.cps[ci]}
                s_cbranch_scc1 {Ld}
                s_sleep 2
                s_sub_u32 s12, s12, 1
                s_cmp_gt_u32 s12, 0
                s_cbranch_scc1 {L}
                {Ld}:
                ds_read_b32 v{Wk+8}, v{vZ0} offset:{L_TM + 4*self.cps[ci]}
                s_lshl_b32 s9, s8, 7
                s_lshl_b32 s13, s6, 3
                s_add_u32 s9, s9, s13
                s_add_u32 s9, s9, {TS_OFF + 8192*ci}
                s_waitcnt lgkmcnt(0)
                v_readfirstlane_b32 s10, v{Wk+8}
                s_mov_b64 exec, 1
                buffer_store_dwordx2 v[{Wk+8}:{Wk+9}], v{vZ0}, s[56:59], s9 offen sc1
                s_mov_b64 exec, 0xffff
                s_sleep {self.cdelay[ci]}
                s_lshl_b32 s9, s5, 12
                s_add_u32 s9, s9, {TS_OFF + 8192*ci}
                buffer_load_dwordx2 v[{Wk}:{Wk+1}], v{Wk+4}, s[56:59], s9 offen sc1
                s_memrealtime s[12:13]
                s_waitcnt vmcnt(0) lgkmcnt(0)
                v_cmp_ne_u32 vcc, v{Wk+1}, v{Wk+9}
                v_sub_u32 v{Wk+6}, s12, v{Wk}
                v_cvt_f32_i32 v{Wk+6}, v{Wk+6}
                v_cndmask_b32 v{Wk+6}, v{Wk+6}, 0, vcc
                s_sub_u32 s12, s12, s10
                v_cvt_f32_u32 v{Wk+7}, s12""")
                self.row_reduce("v_add_f32", Wk + 6)
                a(f"""v_mul_f32 v{Wk+6}, {f32(1/16.0)}, v{Wk+6}
                v_sub_f32 v{Wk+6}, v{Wk+6}, v{Wk+7}
                """)
                self.decide(Wk + 6, Wk + 7, ci, vZ0)
                a("s_mov_b64 exec, -1")
        a("L_nostat:")
        a(f"""s_lshl_b32 s67, s6, 5
        s_add_u32 s67, s67, s4
        s_mov_b32 s68, 0
        s_cmp_lg_u32 s3, 2
        s_cbranch_scc1 L_noown
        s_cmp_ge_u32 s67, {8 if self.pq else 40}
        s_cbranch_scc1 L_noown
        s_mov_b32 s68, 1""")
        self.srd(60, 28, 1280)
        W = Wk
        a(f"""v_lshlrev_b32 v{W+20}, 2, v{vL}
        s_mul_i32 s9, s5, 1280
        v_add_u32 v{W+21}, s9, v{W+20}""")
        for t in range(5):
            a(f"buffer_load_dword v{W+t}, v{W+20}, s[60:63], 0 offen offset:{256*t}")
            a(f"ds_read_b32 v{W+5+t}, v{W+21} offset:{L_XN + 256*t}")
        self.srd(60, 16, 2560)
        a(f"""v_and_b32 v{W+22}, 3, v{vL}
        v_lshl_add_u32 v{vOUTA}, v{W+22}, 2, v{vT2}
        v_lshlrev_b32 v{vOUTA}, 1, v{vOUTA}
        s_lshl_b32 s10, s67, 5
        s_add_u32 s10, s10, s9
        v_add_u32 v{vOUTA}, s10, v{vOUTA}
        buffer_load_ushort v{vXC}, v{vOUTA}, s[60:63], 0 offen
        ds_read_u16 v{W+23}, v{vOUTA} offset:{L_XN}
        s_waitcnt vmcnt(0) lgkmcnt(0)""")
        for t in range(5):
            c = "0" if t == 0 else f"v{W+24}"
            a(f"v_dot2_f32_bf16 v{W+24}, v{W+t}, v{W+5+t}, {c}")
        a(f"v_lshlrev_b32 v{vXC}, 16, v{vXC}\nv_lshlrev_b32 v{W+23}, 16, v{W+23}\ns_nop 1")
        self.row_reduce("v_add_f32", W + 24)
        self.swap_reduce("v_add_f32", W + 24, W + 25, 16)
        self.swap_reduce("v_add_f32", W + 24, W + 25, 32)
        self.rbf(W + 24)
        self.sigmoid_like(W + 24, W + 24)
        self.rbf(W + 24)
        Ly, Lyd = self.lab("y"), self.lab("yd")
        a(f"""v_lshrrev_b32 v{W+20}, 2, v{vL}
        v_mul_u32_u24 v{W+21}, 5120, v{W+20}
        v_lshl_add_u32 v{W+21}, v{W+22}, 4, v{W+21}
        v_mul_u32_u24 v{vPA}, 2560, v{W+20}
        v_lshl_add_u32 v{vPA}, v{W+22}, 4, v{vPA}
        s_mul_i32 s9, s5, 2560
        s_lshl_b32 s10, s67, 6
        s_add_u32 s9, s9, s10
        s_add_u32 s9, s9, {Y_OFF}
        v_mov_b32 v{W}, 0
        v_mov_b32 v{W+1}, 0
        v_mov_b32 v{W+2}, 0
        v_mov_b32 v{W+3}, 0""")
        if not self.nomoe:
            self.mpoll([(W, f"buffer_load_dwordx4 v[{W}:{W+3}], v{W+21}, s[56:59], s9 offen sc1")], vTG, vCK, 64, mask=("-1", "0xffff"))
        self.merge4(W)
        self.rbf(W)
        a(f"v_mul_f32 v{W}, v{W}, v{W+24}")
        self.rbf(W)
        a(f"v_add_f32 v{W}, v{W}, v{W+23}")
        self.rbf(W)
        self.sigmoid_like(W + 1, W)
        a(f"v_mul_f32 v{vG}, v{W}, v{W+1}")
        self.rbf(vG)
        a(f"""s_mul_i32 s70, s5, {128*2560}
        s_lshl_b32 s10, s67, 6
        s_add_u32 s70, s70, s10""")
        for t in range(1, 8):
            a(f"s_add_u32 s{70+t}, s70, {t*40960}")
        if self.ppre == 1:
            for t in range(8):
                a(f"buffer_load_dwordx4 v[{W+4*t}:{W+4*t+3}], v{vPA}, s[56:59], s{70+t} offen sc1")
        a("L_noown:")
        self.srd(60, 36, 2560)
        a(f"""v_and_b32 v{vAR}, 7, v{vL}
        v_mul_u32_u24 v{vAR}, {OS}, v{vAR}
        v_lshl_add_u32 v{vAR}, v{vT2}, 4, v{vAR}
        v_bfe_u32 v{vT3}, v{vL}, 3, 1
        v_mul_u32_u24 v{vT4}, 192, v{vT3}
        v_add_u32 v{vAR}, v{vAR}, v{vT4}
        v_mul_u32_u24 v24, 0xaaaa, v{vT3}
        v_add_u32 v24, 0x4444, v24
        v_lshl_or_b32 v24, v24, 16, v24
        v_and_b32 v{vT3}, 1, v{vT2}
        v_lshlrev_b32 v{vST}, 5, v{vT1}
        v_lshl_add_u32 v{vST}, v{vT3}, 4, v{vST}
        v_lshrrev_b32 v{vT4}, 5, v{vL}
        v_lshl_add_u32 v{vST}, v{vT4}, 3, v{vST}
        v_lshlrev_b32 v{vT3}, 3, v{vT3}
        s_mul_i32 s9, s7, 2560
        s_lshl_b32 s10, s3, 9
        s_add_u32 s9, s9, s10
        s_waitcnt vmcnt(0) lgkmcnt(0)""")
        if self.ppre == 2:
            a(f"""v_not_b32 v32, v{vTG}
            v_mov_b32 v33, v32
            v_mov_b32 v34, v32
            v_mov_b32 v35, v32
            v_lshlrev_b32 v36, 4, v{vL}
            s_mul_i32 s10, s7, 2560
            s_mul_i32 s11, s3, 640
            s_add_u32 s10, s10, s11
            s_mov_b32 exec_hi, 0xff
            buffer_store_dwordx4 v[32:35], v36, s[56:59], s10 offen sc1
            s_mov_b32 exec_hi, -1
            s_waitcnt vmcnt(0)""")
        self.stamp(5, 60)
        a(f"s_setprio {self.hprio2}")
        a(f"s_mov_b32 s43, {1 if self.dry else 0}")
        for t in range(8):
            a(f"s_mov_b64 s[{80+2*t}:{81+2*t}], -1")
        self.wide_tag()
        a(f"""v_mov_b32 v25, 0xfff
        v_mov_b32 v{vTG}, s96
        v_mov_b32 v{vW}, s97
        s_mov_b32 exec_lo, 0
        v_mov_b32 v{vTG}, s98
        v_mov_b32 v{vW}, s99
        s_mov_b32 exec_lo, -1""")
        a("L_tail:")
        for r in range(32, 64):
            a(f"v_mov_b32 v{r}, 0")
        a("s_cmp_lg_u32 s43, 0\ns_cbranch_scc1 L_nobar\ns_barrier\nL_nobar:")
        if self.stamps == 4:
            a("s_memrealtime s[44:45]")
        AT = [16, 20, 28]
        for kp in range(3):
            a(f"ds_read_b128 v[{AT[kp]}:{AT[kp]+3}], v{vAR} offset:{L_O + 64*kp}")
        a(f"ds_read_b64 v[{vSC}:{vSC+1}], v{vT3} offset:{L_SCALE}")
        def epi(c):
            D = 32 + 4 * c
            return [f"v_add_f32 v{D}, v{D}, v{D+1}", f"v_add_f32 v{D+2}, v{D+2}, v{D+3}",
                    f"v_mul_f32 v{D}, v{D}, v{vSC}", f"v_fmac_f32 v{D}, v{D+2}, v{vSC+1}"]
        order = (0, 2, 1, 3)
        pend = []
        for pi, pr in enumerate(order):
            for kp in range(3):
                if pi == 0:
                    a(f"s_waitcnt lgkmcnt({3-kp})")
                for c in (pr, pr + 4):
                    self.smf(32 + 4 * c, AT[kp], 64 + 64 * kp + 8 * c, 24)
                    if pi >= 2 and (kp >= 1 or pi == 3):
                        for _ in range(2):
                            if pend:
                                a(pend.pop(0))
            if pi == 1:
                a("s_waitcnt lgkmcnt(0)")
                e0, e4 = epi(order[0]), epi(order[0] + 4)
                pend += [e0[0], e0[1], e4[0], e4[1], e0[2], e0[3], e4[2], e4[3]]
            if pi == 2:
                e0, e4 = epi(order[1]), epi(order[1] + 4)
                pend += [e0[0], e0[1], e4[0], e4[1], e0[2], e0[3], e4[2], e4[3],
                         f"v_permlane16_swap_b32 v32, v48", "s_nop 0", "v_add_f32 v32, v32, v48",
                         f"v_permlane16_swap_b32 v40, v56"]
        for x in pend:
            a(x)
        RES = 16
        e1, e5, e3, e7 = epi(1), epi(5), epi(3), epi(7)
        a("v_add_f32 v40, v40, v56")
        for x in (e1[0], e1[1], e5[0], e5[1], e1[2], e1[3], e5[2], e5[3]):
            a(x)
        a("v_permlane32_swap_b32 v32, v40")
        for x in (e3[0], e3[1], e7[0], e7[1]):
            a(x)
        a(f"v_permlane16_swap_b32 v36, v52\nv_add_f32 v{RES}, v32, v40")
        for x in (e3[2], e3[3], e7[2], e7[3]):
            a(x)
        a("v_add_f32 v36, v36, v52")
        self.tag(RES, RES, vTG, rn=12)
        a(f"""v_permlane16_swap_b32 v44, v60
        s_nop 0
        v_add_f32 v44, v44, v60
        s_nop 1
        v_permlane32_swap_b32 v36, v44
        s_nop 0
        v_add_f32 v{RES+1}, v36, v44""")
        self.tag(RES + 1, RES + 1, vW, rn=12)
        if self.wide:
            a(f"""v_permlane32_swap_b32 v{RES}, v{RES+2}
            s_nop 0
            v_permlane32_swap_b32 v{RES+1}, v{RES+3}""")
        a(f"""s_cmp_lg_u32 s43, 0
        s_cbranch_scc1 L_nost
        """)
        if self.wide:
            a(f"""s_mov_b32 exec_hi, 0
            buffer_store_dwordx4 v[{RES}:{RES+3}], v{vST}, s[56:59], s9 offen {self.pst}
            s_mov_b32 exec_hi, -1""")
        else:
            a(f"buffer_store_dwordx2 v[{RES}:{RES+1}], v{vST}, s[56:59], s9 offen {self.pst}")
        self.stamp(7, 20)
        if self.stamps == 4:
            a("s_memrealtime s[46:47]\ns_mov_b64 s[52:53], 0\ns_mov_b64 s[54:55], 0\ns_cmp_lg_u32 s3, 2\ns_cbranch_scc1 L_end\ns_cmp_eq_u32 s68, 0\ns_cbranch_scc1 L_dump")
        a(f"""s_cmp_eq_u32 s68, 0
        s_cbranch_scc1 L_end""")
        Z = 64
        M0 = 80
        a(f"s_mov_b32 s12, {self.poll_max}\nL_pp:")
        for t in range(8):
            sk = self.lab("pl")
            a(f"""s_mov_b64 exec, s[{M0+2*t}:{M0+2*t+1}]
            s_cbranch_execz {sk}
            buffer_load_dwordx4 v[{Z+4*t}:{Z+4*t+3}], v{vPA}, s[56:59], s{70+t} offen {self.pld}
            {sk}:""")
        a("s_mov_b32 s13, 0\ns_waitcnt vmcnt(0)")
        for t in range(8):
            sk = self.lab("pc")
            a(f"""s_mov_b64 exec, s[{M0+2*t}:{M0+2*t+1}]
            s_cbranch_execz {sk}
            v_xor_b32 v{32+4*t}, s96, v{Z+4*t}
            v_xor_b32 v{33+4*t}, s97, v{Z+4*t+1}
            v_xor_b32 v{34+4*t}, s98, v{Z+4*t+2}
            v_xor_b32 v{35+4*t}, s99, v{Z+4*t+3}
            v_or3_b32 v{vCK}, v{32+4*t}, v{33+4*t}, v{34+4*t}
            v_bitop3_b32 v{vCK}, v{vCK}, v{35+4*t}, v25 bitop3:0xa8
            v_cmp_ne_u32 s[{M0+2*t}:{M0+2*t+1}], 0, v{vCK}
            s_bcnt1_i32_b64 s10, s[{M0+2*t}:{M0+2*t+1}]
            s_add_u32 s13, s13, s10
            {sk}:""")
        a(f"""s_mov_b64 exec, -1
        s_cmp_eq_u32 s13, 0
        s_cbranch_scc1 L_nost
        s_cmp_le_u32 s13, {self.pthr}
        s_cbranch_scc1 L_pn
        s_sleep {self.pslow}
        L_pn:
        s_sub_u32 s12, s12, 1
        s_cmp_gt_u32 s12, 0
        s_cbranch_scc1 L_pp
        L_nost:""")
        if self.stamps == 4:
            a("s_memrealtime s[52:53]")
        C = 32
        for st_ in (4, 8, 16):
            for t in range(0, 32, 2 * st_):
                a(f"v_pk_add_f32 v[{C+t}:{C+t+1}], v[{C+t}:{C+t+1}], v[{C+t+st_}:{C+t+st_+1}]")
                a(f"v_pk_add_f32 v[{C+t+2}:{C+t+3}], v[{C+t+2}:{C+t+3}], v[{C+t+st_+2}:{C+t+st_+3}]")
        self.merge4(C)
        self.rbf(C)
        a(f"v_mul_f32 v{C}, v{C}, v{vG}")
        self.rbf(C)
        a(f"""v_add_f32 v{C}, v{C}, v{vXC}
        v_cvt_pk_bf16_f32 v{C}, v{C}, v{C}
        s_cmp_eq_u32 s43, 0
        s_cbranch_scc1 L_fin
        s_mov_b32 s43, 0
        s_branch L_tail
        L_fin:
        s_mov_b32 exec_lo, 0x000f000f
        s_mov_b32 exec_hi, 0x000f000f
        buffer_store_short v{C}, v{vOUTA}, s[60:63], 0 offen {self.ost}""")
        if self.stamps == 4:
            a("s_memrealtime s[54:55]\nL_dump:\ns_sleep 127")
            self.dump = True
            self.stamp(15, 20, src=48)
            self.stamp(6, 20, src=44)
            self.stamp(7, 20, src=46)
            self.stamp(8, 20, src=52)
            self.stamp(9, 20, src=54)
            self.dump = False
        if self.padto:
            if self.padwg >= 0:
                a(f"s_cmp_lg_u32 s2, {self.padwg}\ns_cbranch_scc1 L_end")
            a(f"""L_pad:
            s_memrealtime s[50:51]
            s_waitcnt lgkmcnt(0)
            s_sub_u32 s50, s50, s48
            s_cmp_lt_u32 s50, {self.padto}
            s_cbranch_scc1 L_pad""")
        self.stamp(8, 60)

    def job_compute(self, n, C0, C1, TILES, vA, vACC, vSEL, vTG, vOUT, sOUT, waits):
        a = self.a
        for G in range(n):
            self.buildA(vA, C0 + G // 2, G & 1, vSEL)
            self.buildA(vA + 4, C1 + G // 2, G & 1, vSEL)
            a(f"s_waitcnt vmcnt({n-1-G})\ns_nop 0" if waits else "s_nop 1")
            self.mfma(vACC, vA, TILES + 4 * G, None if G == 0 else vACC)
            self.mfma(vACC + 4, vA + 4, TILES + 4 * G, None if G == 0 else vACC + 4)
        a("s_nop 7")
        for r in range(4):
            a(f"v_permlane32_swap_b32 v{vACC+r}, v{vACC+4+r}")
        a("s_nop 1")
        for r in range(4):
            self.dpp("v_add_f32", vACC + r, vACC + 4 + r, vACC + r, "row_ror:8")
        for r in range(4):
            self.tag(vACC + r, vACC + r, vTG, rn=True, pos=r)
        a(f"""s_mov_b32 exec_lo, 0x00ff00ff
        s_mov_b32 exec_hi, 0x00ff00ff
        buffer_store_dwordx4 v[{vACC}:{vACC+3}], v{vOUT}, s[56:59], {sOUT} offen sc1
        s_mov_b64 exec, -1""")

    def gen_dn(self, vL, vT3, vT4, vT5, vSEL, vTG, vCK, TI):
        a = self.a
        GP = TI + 64
        a(f"""s_mul_hi_u32 s53, s52, {(2**32 + 9)//10}
        s_mul_i32 s54, s53, 10
        s_sub_u32 s54, s52, s54""")
        self.srd(60, 34, 1536 * 1280)
        a(f"""v_lshrrev_b32 v{vT3}, 3, v{vL}
        v_mul_u32_u24 v{vT4}, {16*1280}, v{vT3}
        v_and_b32 v{vT5}, 7, v{vL}
        v_lshl_add_u32 v{vT4}, v{vT5}, 4, v{vT4}
        s_mul_i32 s9, s53, {128*1280}
        s_lshl_b32 s10, s54, 7
        s_add_u32 s9, s9, s10""")
        for G in range(16):
            a(f"buffer_load_dwordx4 v[{TI+4*G}:{TI+4*G+3}], v{vT4}, s[60:63], s9 offen offset:{(G%4)*1280} {self.mf}")
            if G % 4 == 3:
                a(f"s_add_u32 s9, s9, {4*1280}")
                if G == 7:
                    a("s_waitcnt vmcnt(0)")
        a(f"""v_lshrrev_b32 v60, 5, v{vL}
        v_lshlrev_b32 v61, 12, v60
        v_and_b32 v62, 31, v{vL}
        v_lshl_add_u32 v61, v62, 4, v61
        s_lshl_b32 s9, s53, 13
        s_add_u32 s9, s9, {GU_OFF}""")
        self.mpoll([(GP + 4 * t, f"buffer_load_dwordx4 v[{GP+4*t}:{GP+4*t+3}], v61, s[56:59], s9 offen offset:{512*t} sc1") for t in range(8)],
                   vTG, vCK, 32)
        self.sum_quads(GP, 4)
        self.sum_quads(GP + 16, 4)
        for r in range(4):
            self.rbf(GP + r)
            self.rbf(GP + 16 + r)
            self.sigmoid_like(GP + 4, GP + r)
            a(f"v_mul_f32 v{GP+r}, v{GP+r}, v{GP+4}")
            self.rbf(GP + r)
            a(f"v_mul_f32 v{GP+r}, v{GP+r}, v{GP+16+r}")
        a(f"""v_cvt_pk_bf16_f32 v{GP+4}, v{GP}, v{GP+1}
        v_cvt_pk_bf16_f32 v{GP+5}, v{GP+2}, v{GP+3}
        v_bfe_u32 v61, v{vL}, 4, 1
        v_lshlrev_b32 v62, 8, v61
        v_lshl_add_u32 v62, v60, 7, v62
        v_and_b32 v63, 15, v{vL}
        v_lshl_add_u32 v62, v63, 3, v62
        ds_write_b64 v62, v[{GP+4}:{GP+5}] offset:{L_HB}
        v_lshlrev_b32 v{vT3}, 5, v{vT3}
        v_mul_u32_u24 v{vT4}, 2560, v60
        v_lshl_add_u32 v{vT4}, v{vT5}, 5, v{vT4}
        v_lshl_add_u32 v{vT4}, v61, 4, v{vT4}
        s_mul_i32 s9, s53, 5120
        s_lshl_b32 s10, s54, 8
        s_add_u32 s9, s9, s10
        s_add_u32 s9, s9, {Y_OFF}
        s_waitcnt lgkmcnt(0)
        ds_read_b128 v[44:47], v{vT3} offset:{L_HB}
        ds_read_b128 v[48:51], v{vT3} offset:{L_HB+16}
        ds_read_b128 v[52:55], v{vT3} offset:{L_HB+256}
        ds_read_b128 v[56:59], v{vT3} offset:{L_HB+272}
        s_waitcnt lgkmcnt(0)""")
        self.job_compute(16, 44, 52, TI, 28, 36, vSEL, vTG, vT4, "s9", False)
        a("s_waitcnt vmcnt(0)")

    def text(self):
        hdr = open("recurrent_scan__mha_block_cached__moe_arch_mod__decode.s.ref").read().split("; Override launch")[0]
        self.gen()
        return hdr + HDR + f"""; @launch grid=(256,1,1) block=(512,1,1) lds={LDS_BYTES}
.amdgcn_target "amdgcn-amd-amdhsa--gfx950"
.text
.globl {KNAME}
.p2align 8
.type {KNAME},@function
{KNAME}:
""" + "\n".join(self.o) + f"""
.section .rodata,"a"
.p2align 6
.amdhsa_kernel {KNAME}
  .amdhsa_next_free_vgpr 256
  .amdhsa_next_free_sgpr 102
  .amdhsa_accum_offset 256
  .amdhsa_group_segment_fixed_size 0
  .amdhsa_kernarg_size 104
  .amdhsa_user_sgpr_count 2
  .amdhsa_user_sgpr_kernarg_segment_ptr 1
  .amdhsa_system_sgpr_workgroup_id_x 1
  .amdhsa_float_denorm_mode_32 3
.end_amdhsa_kernel
"""


if __name__ == "__main__":
    out = sys.argv[1]
    kw = {}
    for arg in sys.argv[2:]:
        k, v = arg.split("=", 1)
        try:
            v = int(v)
        except ValueError:
            pass
        kw[k] = v
    open(out, "w").write(G(**kw).text())
```

```python
import sys, struct

KNAME = "recurrent_scan__mha_block_cached__moe_arch_mod__decode_kernel"
TB = 201326592
CH = 786432
STEP = 12288

P_OFF = 0
ST_OFF = 256 * 2560
EP_OFF = ST_OFF + 64 * 256
Y_OFF = EP_OFF + 256
QX_OFF = Y_OFF + 12 * 5120
GU_OFF = QX_OFF + 32 * 4 * 2 * 768
TS_OFF = GU_OFF + 192 * 512
WS_USED = TS_OFF + 4 * 32768
STAMP_OFF = 2 << 20
WS_SRD = 4 << 20
assert WS_USED <= STAMP_OFF

L_XN = 0
L_QB = 2560
L_SC = L_QB + 512
OS = 416
L_O = L_SC + 4 * 1152
L_SCALE = L_O + 8 * OS
L_PROG = L_SCALE + 48
L_BOOST = L_SCALE + 52
L_WXOK = L_SCALE + 56
L_HB = L_SCALE + 64
L_STL = L_HB + 512
L_WX = (L_STL + 64 + 1023) // 1024 * 1024
WXS = 1040
L_TM = L_WX + 48 * WXS
LDS_BYTES = L_TM + 64

LOG2E = 0x3fb8aa3b
SCALE_F32 = 0x3d93cd3a
assert struct.unpack("<I", struct.pack("<f", 192 ** -0.5))[0] == SCALE_F32
def f32(x): return "0x%08x" % struct.unpack("<I", struct.pack("<f", x))[0]
NLOG2E = f32(-1.4426950408889634)

sWAVE, sH, sB, sSPLIT, sCHUNK, sBH = 3, 4, 5, 6, 7, 8
sT = 78
sMASK = 79
sWV = 69


HDR = '''; ---------------------------------------------------------------------------------------------
; Design (one launch, 256 workgroups of 8 waves, one per CU; workgroup = (batch b, head h, split)):
; ---------------------------------------------------------------------------------------------
'''


class G:
    def __init__(self, R0=16, R1=8, W=4, W0=3, kvflags="nt", wflags="nt", woflags="pl", moeflags="nt", rot=1, stamps=0,
                 poll_max=1 << 18, hprio=3, hprio1=0, hprio2=3, wobatch=8, nowo=0, nomoe=0, noq=0, nob0=0, D=2, GI=4, early=0, nok=0, nopoll=0, hskip=0, stsleep=16, DV=0, earlyV=-1, D0=0, hsleep=0, diagx=0, padto=0, padwg=-1, qsleep=0, psleep=0, NE=0, DE=4, qsleep2=0, NB=0, ctl=1, cps='1,5,8', gains='9,7,7', dead=30, cdelay='48,32,16', gb=0, brk=1, mix=1, kboost=-1, pre=2, wosleep=0, dry=1, pthr=32, pslow=8, pcap=24, pst='sc1', pld='sc1', ppre=0, trace=0, pq=0, spre=0, wide=1, VD=3, brd=6, ost='pl', tlb=0, stride=1, team=0, excl=0):
        self.excl = excl
        self.team = team
        self.stride = stride
        self.tlb = tlb
        self.ost = '' if ost == 'pl' else ost.replace('_', ' ')
        self.VD, self.brd = VD, brd
        self.wide = wide
        self.spre = spre
        self.pq = pq
        self.trace = trace
        self.pst, self.pld, self.ppre = pst.replace('_', ' '), pld.replace('_', ' '), ppre
        self.dry, self.pthr, self.pslow, self.pcap = dry, pthr, pslow, pcap
        self.kboost, self.pre, self.wosleep = kboost, pre, wosleep
        self.gb, self.brk, self.mix = gb, brk, mix
        self.ctl = ctl
        self.NB = NB
        self.cps = [int(x) for x in str(cps).split(',')]
        self.gains = [float(x) for x in str(gains).split(',')]
        self.dead = dead
        self.cdelay = [int(x) for x in str(cdelay).split(',')]
        self.NE, self.DE, self.qsleep2 = NE, DE, qsleep2
        self.qsleep, self.psleep = qsleep, psleep
        self.padwg = padwg
        self.padto = padto
        self.diagx = diagx
        self.DV = DV or D
        self.earlyV = early if earlyV < 0 else earlyV
        self.D0 = D0 or D
        self.hsleep = hsleep
        self.nok, self.nopoll, self.hskip, self.stsleep = nok, nopoll, hskip, stsleep
        self.D, self.GI, self.early = D, GI, early
        self.nowo, self.nomoe, self.noq, self.nob0 = nowo, nomoe, noq, nob0
        self.hprio1, self.hprio2 = hprio1, hprio2
        self.o = []
        self.R0, self.R1, self.W, self.W0 = R0, R1, W, W0
        fl = lambda x: '' if x == 'pl' else x.replace('_', ' ')
        self.kvf, self.wf, self.mf = fl(kvflags), fl(wflags), fl(moeflags)
        self.wof = fl(woflags)
        self.rot = rot
        self.stamps = stamps
        self.poll_max = poll_max
        self.hprio = hprio
        self.wobatch = wobatch
        self.nlab = 0

    def a(self, s):
        for ln in s.split("\n"):
            ln = ln.strip()
            if ln:
                self.o.append(("" if ln.endswith(":") else "    ") + ln)

    def lab(self, p="L"):
        self.nlab += 1
        return f"{p}_{self.nlab}"

    def srd(self, q, lo, nbytes):
        self.a(f"s_mov_b32 s{q}, s{lo}\ns_mov_b32 s{q+1}, s{lo+1}\ns_mov_b32 s{q+2}, {nbytes}\ns_mov_b32 s{q+3}, 0x20000")

    def dpp(self, op, d, s0, s1, ctrl):
        self.a(f"{op}_dpp v{d}, v{s0}, v{s1} {ctrl} row_mask:0xf bank_mask:0xf")

    def row_reduce(self, op, v, steps=(1, 2, 4, 8)):
        for s in steps:
            self.a("s_nop 1")
            self.dpp(op, v, v, v, f"row_ror:{s}")

    def swap_reduce(self, op, v, t, which):
        self.a(f"v_mov_b32 v{t}, v{v}\ns_nop 1\nv_permlane{which}_swap_b32 v{v}, v{t}\ns_nop 1\n{op} v{v}, v{v}, v{t}")

    def stamp(self, idx, vt, st=50, src=None):
        if not self.stamps:
            return
        if self.stamps == 3 and (self.cls == "H" or idx in (0, 1, 2, 3, 4)):
            return
        if self.stamps == 4 and not getattr(self, "dump", False):
            return
        if src is None:
            self.a(f"s_memrealtime s[{st}:{st+1}]")
            src = st
        if self.stamps == 2:
            slot = (idx if idx < 15 else 0) + (1 if self.cls == "S" else 7)
            if self.cls == "H" and idx not in (1, 2, 4, 7, 8):
                return
            if self.cls == "H":
                slot = {1: 8, 2: 9, 4: 10, 7: 11, 8: 12}[idx]
            elif idx == 15:
                slot = 1
            else:
                slot = 2 + idx
            inv = f"s_mov_b32 s65, s{src}"
            Lsk = self.lab("sk")
            if not (self.cls == "H" and idx == 8):
                self.a(f"""s_waitcnt lgkmcnt(0)
                s_cmp_lg_u32 s2, 0
                s_cbranch_scc1 {Lsk}""")
            self.a(f"""s_waitcnt lgkmcnt(0)
            {inv}
            v_mov_b32 v{vt}, s65
            v_mov_b32 v{vt+2}, {slot*4}
            s_mov_b64 exec, 1
            global_atomic_umax v{vt+2}, v{vt}, s[38:39] sc1
            s_mov_b64 exec, -1
            {Lsk}:""")
            return
        self.a(f"""s_lshl_b32 s65, s2, 3
        s_add_u32 s65, s65, s{sWV}
        s_lshl_b32 s65, s65, 7
        s_add_u32 s65, s65, {STAMP_OFF + idx*8}
        s_waitcnt lgkmcnt(0)
        v_mov_b32 v{vt}, s{src}
        v_mov_b32 v{vt+1}, s{src+1}
        v_mov_b32 v{vt+2}, 0
        s_mov_b64 exec, 1
        buffer_store_dwordx2 v[{vt}:{vt+1}], v{vt+2}, s[56:59], s65 offen
        s_mov_b64 exec, -1""")

    def selectors(self, vL, base, t0, t1, t2):
        a = self.a
        a(f"""v_and_b32 v{t0}, 1, v{vL}
        v_cmp_eq_u32 vcc, 1, v{t0}
        v_mov_b32 v{t0}, 0x0c0c0100
        v_mov_b32 v{t1}, 0x01000c0c
        v_cndmask_b32 v{t0}, v{t0}, v{t1}, vcc
        v_mov_b32 v{t1}, 0x0c0c0302
        v_mov_b32 v{t2}, 0x03020c0c
        v_cndmask_b32 v{t1}, v{t1}, v{t2}, vcc
        v_bfe_u32 v{t2}, v{vL}, 1, 2""")
        for j in range(4):
            a(f"""v_cmp_eq_u32 vcc, {j}, v{t2}
            v_mov_b32 v{base+j}, 0x0c0c0c0c
            v_mov_b32 v{base+4+j}, 0x0c0c0c0c
            v_cndmask_b32 v{base+j}, v{base+j}, v{t0}, vcc
            v_cndmask_b32 v{base+4+j}, v{base+4+j}, v{t1}, vcc""")

    def buildA(self, A, P, hi, sel):
        for j in range(4):
            self.a(f"v_perm_b32 v{A+j}, v{P}, v{P}, v{sel + (4 if hi else 0) + j}")

    def mfma(self, D, A, B, C):
        c = "0" if C is None else f"v[{C}:{C+3}]"
        self.a(f"v_mfma_f32_16x16x32_bf16 v[{D}:{D+3}], v[{A}:{A+3}], v[{B}:{B+3}], {c}")

    def smf(self, D, A, B, IDX):
        self.a(f"v_smfmac_f32_16x16x64_bf16 v[{D}:{D+3}], v[{A}:{A+3}], v[{B}:{B+7}], v{IDX}")

    def rbf(self, v):
        self.a(f"v_cvt_pk_bf16_f32 v{v}, v{v}, v{v}\nv_lshlrev_b32 v{v}, 16, v{v}")

    def tag(self, d, s, vTG, rn=False, pos=None):
        if rn:
            self.a(f"v_add_u32 v{d}, {0x800 if rn == 12 else 8}, v{s}")
            s = d
        if pos is None:
            self.a(f"v_and_or_b32 v{d}, v{s}, s{sMASK}, v{vTG}")
        else:
            self.a(f"v_bfi_b32 v{d}, v{vTG}, s{96+pos}, v{s}")

    def chk4(self, acc, x, vTG, first=False, n=4, full=False):
        for r in range(n):
            if full:
                self.a(f"v_xor_b32 v{x+r}, v{x+r}, v{vTG}")
            else:
                self.a(f"v_xor_b32 v{x+r}, s{96 + r % 4}, v{x+r}")
        for r in range(0, n, 2):
            if first and r == 0:
                self.a(f"v_or_b32 v{acc}, v{x}, v{x+1}")
            else:
                self.a(f"v_or3_b32 v{acc}, v{x+r}, v{x+r+1}, v{acc}")

    def poll_tail(self, acc, Lretry, Ldone, sleep):
        self.a(f"""v_and_b32 v{acc}, 0xff, v{acc}
        v_cmp_ne_u32 vcc, 0, v{acc}
        s_cbranch_vccz {Ldone}""")
        if sleep:
            self.a(f"s_sleep {sleep}")
        self.a(f"""s_sub_u32 s12, s12, 1
        s_cmp_gt_u32 s12, 0
        s_cbranch_scc1 {Lretry}
        {Ldone}:""")

    def mpoll(self, loads, vTG, vCK, sleep, mask=None, nd=4, M0=80):
        a = self.a
        L, Ld = self.lab("mp"), self.lab("mpd")
        for t in range(len(loads)):
            if mask is None:
                a(f"s_mov_b64 s[{M0+2*t}:{M0+2*t+1}], -1")
            else:
                a(f"s_mov_b32 s{M0+2*t}, {mask[0]}\ns_mov_b32 s{M0+2*t+1}, {mask[1]}")
        a(f"s_mov_b32 s12, {self.poll_max}\n{L}:")
        for t, (r, txt) in enumerate(loads):
            sk = self.lab("ml")
            a(f"s_mov_b64 exec, s[{M0+2*t}:{M0+2*t+1}]\ns_cbranch_execz {sk}\n{txt}\n{sk}:")
        a("s_mov_b64 s[100:101], 0\ns_waitcnt vmcnt(0)")
        for t, (r, txt) in enumerate(loads):
            sk = self.lab("mc")
            a(f"s_mov_b64 exec, s[{M0+2*t}:{M0+2*t+1}]\ns_cbranch_execz {sk}")
            self.chk4(vCK, r, vTG, first=True, n=nd)
            a(f"""v_and_b32 v{vCK}, 15, v{vCK}
            v_cmp_ne_u32 vcc, 0, v{vCK}
            s_cmp_lg_u64 vcc, 0
            s_cselect_b64 s[{M0+2*t}:{M0+2*t+1}], s[{M0+2*t}:{M0+2*t+1}], 0
            s_or_b64 s[100:101], s[100:101], s[{M0+2*t}:{M0+2*t+1}]
            {sk}:""")
        a(f"""s_mov_b64 exec, -1
        s_cmp_eq_u64 s[100:101], 0
        s_cbranch_scc1 {Ld}""")
        if sleep:
            a(f"s_sleep {sleep}")
        a(f"""s_sub_u32 s12, s12, 1
        s_cmp_gt_u32 s12, 0
        s_cbranch_scc1 {L}
        {Ld}:""")

    def decide(self, v, t, ci, vZ0):
        self.a(f"""v_add_f32 v{t}, {f32(float(self.dead))}, v{v}
        v_mul_f32 v{t}, {f32(self.gb / 100.0)}, v{t}
        v_min_f32 v{t}, 0, v{t}
        v_subrev_f32 v{v}, {f32(float(self.dead))}, v{v}
        v_mul_f32 v{v}, {f32(self.gains[ci] / 100.0)}, v{v}
        v_max_f32 v{v}, 0, v{v}
        v_add_f32 v{v}, v{v}, v{t}
        v_min_f32 v{v}, 64.0, v{v}
        v_max_f32 v{v}, {f32(-24.0)}, v{v}
        v_cvt_i32_f32 v{v}, v{v}
        v_and_b32 v{v}, 0xffff, v{v}
        v_or_b32 v{v}, {(ci+1) << 16}, v{v}
        ds_write_b32 v{vZ0}, v{v} offset:{L_BOOST}""")

    def sum_quads(self, X, n):
        for t in range(1, n):
            self.a(f"v_pk_add_f32 v[{X}:{X+1}], v[{X}:{X+1}], v[{X+4*t}:{X+4*t+1}]")
            self.a(f"v_pk_add_f32 v[{X+2}:{X+3}], v[{X+2}:{X+3}], v[{X+4*t+2}:{X+4*t+3}]")

    def merge4(self, X):
        a = self.a
        a(f"""s_nop 1
        v_permlane16_swap_b32 v{X}, v{X+1}
        v_permlane16_swap_b32 v{X+2}, v{X+3}
        s_nop 1
        v_add_f32 v{X}, v{X}, v{X+1}
        v_add_f32 v{X+2}, v{X+2}, v{X+3}
        s_nop 1
        v_permlane32_swap_b32 v{X}, v{X+2}
        s_nop 1
        v_add_f32 v{X}, v{X}, v{X+2}""")
        self.row_reduce("v_add_f32", X, steps=(4, 8))

    def sigmoid_like(self, d, x):
        self.a(f"""v_mul_f32 v{d}, {NLOG2E}, v{x}
        v_exp_f32 v{d}, v{d}
        s_nop 0
        v_add_f32 v{d}, 1.0, v{d}
        v_rcp_f32 v{d}, v{d}
        s_nop 0""")

    def rotcode(self):
        if self.rot < 100:
            return f"s_mul_i32 s9, s7, {self.rot}"
        if self.rot == 100:
            return "s_lshr_b32 s9, s2, 3\ns_lshl_b32 s11, s2, 5\ns_add_u32 s9, s9, s11"
        if self.rot == 101:
            return "s_lshl_b32 s9, s5, 4\ns_add_u32 s9, s9, s7"
        if self.rot == 102:
            return "s_lshr_b32 s9, s7, 6\ns_mul_i32 s9, s9, 17\ns_add_u32 s9, s9, s7"
        raise ValueError

    def wide_tag(self):
        self.a(f"""s_mov_b32 s{sMASK}, 0xfffff000
        s_mul_i32 s10, s{sT}, 0x9e3779b1
        s_and_b32 s96, s{sT}, 0xfff
        s_bfe_u32 s97, s10, 0xc0008
        s_lshr_b32 s98, s10, 20
        s_mul_i32 s10, s{sT}, 0x85ebca6b
        s_lshr_b32 s99, s10, 20""")

    def epoch_load(self):
        self.a(f"s_load_dword s{sT}, s[40:41], {EP_OFF}")

    def epoch_use(self, vTG):
        self.a(f"""s_lshr_b32 s9, s0, 4
        s_lshl_b32 s9, s9, 8
        s_add_u32 s{sT}, s{sT}, s9
        s_add_u32 s{sT}, s{sT}, 1
        s_mul_i32 s9, s{sT}, 0x9e3779b1
        s_and_b32 s96, s{sT}, 15
        s_bfe_u32 s97, s9, 0x40014
        s_bfe_u32 s98, s9, 0x40018
        s_lshr_b32 s99, s9, 28
        v_mov_b32 v{vTG}, 15""")

    def gen(self):
        a = self.a
        a(f"""s_cmp_ge_u32 s2, 256
        s_cbranch_scc1 L_end
        s_load_dwordx16 s[16:31], s[0:1], 0
        s_load_dwordx8 s[32:39], s[0:1], 64
        s_load_dwordx2 s[40:41], s[0:1], 96""")
        if self.stamps or self.padto or self.trace:
            a("s_memrealtime s[48:49]")
        a(f"""v_lshrrev_b32 v1, 6, v0
        v_and_b32 v0, 63, v0
        v_readfirstlane_b32 s3, v1
        s_and_b32 s9, s2, 7
        s_lshr_b32 s10, s2, 3
        s_lshl_b32 s4, s9, 2
        s_lshr_b32 s11, s10, 3
        s_add_u32 s4, s4, s11
        s_bfe_u32 s5, s10, 0x10002
        s_and_b32 s6, s10, 3
        s_lshl_b32 s8, s5, 5
        s_add_u32 s8, s8, s4
        s_lshl_b32 s7, s8, 2
        s_add_u32 s7, s7, s6
        s_mov_b32 s{sWV}, s3
        s_cmp_ge_u32 s3, 4
        s_cbranch_scc1 L_H""")
        self.gen_S()
        a("L_H:")
        a("; ================= H waves =================")
        self.gen_H()
        a("L_end:\ns_endpgm")

    def gen_S(self):
        self.cls = "S"
        a = self.a
        R0, D, GI = self.R0, self.D, self.GI
        RS = {2: 4, 3: 6}[D]
        R1 = 4
        DV = self.DV
        RSV = {2: 4, 3: 6}[DV]
        D0 = self.D0
        assert (64 - R0) % RS == 0
        NITK = (64 - R0) // RS
        W = 6
        vL = 0
        vOFF, vSCW, vSCR, vT0, vT1, vT2, vT3, vOW = 1, 2, 3, 4, 5, 6, 7, 8
        vA0, vA1, vTG = 9, 10, 11
        vQ = 12
        vSEL = 24
        vACC = 32
        vA = 44
        vP = 52
        RING = 64
        assert RING + R0 * 12 <= 256
        sOFF, sBEG, sEND, sIT, sCNT = 42, 43, 64, 66, 65
        a(f"""v_lshrrev_b32 v{vT0}, 3, v{vL}
        v_and_b32 v{vT1}, 7, v{vL}
        v_mul_u32_u24 v{vOFF}, 384, v{vT0}
        v_lshl_add_u32 v{vOFF}, v{vT1}, 4, v{vOFF}
        s_mul_i32 s9, s3, 3072""")
        if GI == 4:
            stepb = 4 * STEP
            a(f"""s_mul_i32 s11, s6, {STEP}
            s_add_u32 s9, s9, s11
            s_mul_i32 s{sBEG}, s8, {4*CH}
            s_add_u32 s{sEND}, s{sBEG}, {4*CH}
            v_add_u32 v{vOFF}, s9, v{vOFF}
            s_mul_i32 s9, s8, {self.rot}""")
        else:
            stepb = STEP
            a(f"""v_add_u32 v{vOFF}, s9, v{vOFF}
            s_mul_i32 s{sBEG}, s7, {CH}
            s_add_u32 s{sEND}, s{sBEG}, {CH}
            {self.rotcode()}""")
        a(f"""s_and_b32 s9, s9, 63
        s_mul_i32 s9, s9, {stepb}
        s_add_u32 s{sOFF}, s{sBEG}, s9
        s_waitcnt lgkmcnt(0)""")
        self.srd(52, 18, TB)
        vTR = 59
        def tr():
            if self.trace:
                a(f"""s_memrealtime s[80:81]
                s_waitcnt lgkmcnt(0)
                v_writelane_b32 v{vTR}, s80, m0
                s_add_u32 m0, m0, 1""")
        if self.trace:
            a(f"s_mov_b32 m0, 1\nv_mov_b32 v{vTR}, 0\nv_writelane_b32 v{vTR}, s48, 0")
        self.fs = []
        def fstamp():
            if self.stamps == 3 and len(self.fs) < 9:
                r = 80 + 2 * len(self.fs)
                a(f"s_memrealtime s[{r}:{r+1}]")
                self.fs.append(r)
        fstamp()

        def load(slot, sw=None):
            for j in range(3):
                r = RING + (slot * 3 + j) * 4
                a(f"buffer_load_dwordx4 v[{r}:{r+3}], v{vOFF}, s[52:55], s{sOFF} offen offset:{128*j} {self.kvf}")
            if self.stride == 1:
                a(f"""s_add_u32 s{sOFF}, s{sOFF}, {stepb}
                s_cmp_ge_u32 s{sOFF}, s{sEND}
                s_cselect_b32 s{sOFF}, s{sBEG}, s{sOFF}""")
            else:
                a(f"""s_add_u32 s{sOFF}, s{sOFF}, {stepb*self.stride}
                s_sub_u32 s68, s{sOFF}, {64*stepb}
                s_cmp_ge_u32 s{sOFF}, s{sEND}
                s_cselect_b32 s{sOFF}, s68, s{sOFF}""")
            if sw == "kv":
                a(f"""s_cmp_eq_u32 s{sIT}, {NITK-1}
                s_cselect_b32 s52, s20, s52
                s_cselect_b32 s53, s21, s53""")
            elif sw is not None:
                a(f"""s_cmp_eq_u32 s{sIT}, {sw}
                s_cselect_b32 s54, 0, s54""")
        thr = 3 * (D - 1) + self.early
        for s in range(D0):
            load(s)
        self.epoch_load()
        self.srd(56, 40, WS_SRD)
        self.selectors(vL, vSEL, vT2, vT3, vOW)
        a(f"""s_mul_i32 s9, s3, 1152
        s_add_u32 s9, s9, {L_SC}
        v_mul_u32_u24 v{vSCW}, 144, v{vT0}
        v_add_u32 v{vSCW}, s9, v{vSCW}
        v_mov_b32 v{vSCR}, v{vSCW}""")
        a(f"""v_lshrrev_b32 v{vT2}, 5, v{vL}
        s_lshl_b32 s9, s3, 1
        v_add_u32 v{vT2}, s9, v{vT2}
        v_mul_u32_u24 v{vOW}, {OS}, v{vT2}
        v_lshl_add_u32 v{vOW}, v{vT1}, 3, v{vOW}
        v_bfe_u32 v{vT2}, v{vL}, 4, 1
        v_lshl_add_u32 v{vOW}, v{vT2}, 2, v{vOW}
        v_add_u32 v{vOW}, {L_O}, v{vOW}
        v_lshlrev_b32 v{vT2}, 4, v{vT1}""")
        for s in range(D0, R0):
            a(f"s_waitcnt vmcnt({3*(D0-1)})")
            if s in (2, 3, 4, 6, 8, 10, 12, 14):
                fstamp()
            if s % 4 == 0:
                tr()
            load(s)
        a("s_waitcnt lgkmcnt(0)")
        self.epoch_use(vTG)
        self.stamp(15, vA, src=48)
        self.stamp(0, vA)
        tr()
        a("s_barrier")
        tr()
        self.stamp(1, vA)
        for j in range(3):
            a(f"ds_read_b128 v[{vQ+4*j}:{vQ+4*j+3}], v{vT2} offset:{L_QB + 128*j}")
        a(f"s_mov_b32 s{sIT}, 0\ns_mov_b32 s10, {SCALE_F32}\ns_waitcnt lgkmcnt(0)")

        sUSED, sTGT = 44, 45
        def throttle(dist=3):
            Lb, Lc = self.lab("bo"), self.lab("bc")
            a(f"""s_waitcnt vmcnt({3*(dist-1)})
            s_cmp_gt_i32 s{sUSED}, 0
            s_cbranch_scc1 {Lb}
            s_waitcnt vmcnt(3)
            s_cmp_eq_u32 s{sUSED}, 0
            s_cbranch_scc1 {Lc}
            s_waitcnt vmcnt({self.brk})
            s_add_i32 s{sUSED}, s{sUSED}, 2
            {Lb}:
            s_sub_i32 s{sUSED}, s{sUSED}, 1
            {Lc}:""")
        def kpair(s, off):
            ra, rb = RING + s * 12, RING + (s + 1) * 12
            for i in range(12):
                c0 = "0" if i == 0 else f"v{vA0}"
                c1 = "0" if i == 0 else f"v{vA1}"
                a(f"v_dot2_f32_bf16 v{vA0}, v{ra+i}, v{vQ+i}, {c0}")
                a(f"v_dot2_f32_bf16 v{vA1}, v{rb+i}, v{vQ+i}, {c1}")
            a("s_nop 2")
            self.dpp("v_add_f32", vA0, vA0, vA0, "quad_perm:[1,0,3,2]")
            self.dpp("v_add_f32", vA1, vA1, vA1, "quad_perm:[1,0,3,2]")
            a("s_nop 0")
            self.dpp("v_add_f32", vA0, vA0, vA0, "quad_perm:[2,3,0,1]")
            self.dpp("v_add_f32", vA1, vA1, vA1, "quad_perm:[2,3,0,1]")
            a("s_nop 0")
            self.dpp("v_add_f32", vA0, vA0, vA0, "row_half_mirror")
            self.dpp("v_add_f32", vA1, vA1, vA1, "row_half_mirror")
            a(f"""v_cvt_pk_bf16_f32 v{vT2}, v{vA0}, v{vA1}
            v_lshlrev_b32 v{vA0}, 16, v{vT2}
            v_and_b32 v{vA1}, 0xffff0000, v{vT2}
            v_mul_f32 v{vA0}, s10, v{vA0}
            v_mul_f32 v{vA1}, s10, v{vA1}
            v_cvt_pk_bf16_f32 v{vT2}, v{vA0}, v{vA1}
            ds_write_b32 v{vSCW}, v{vT2} offset:{off}""")
        npairs = R0 // 2
        issue_after = {0: 0, 3: 1} if D == 2 else {0: 0, 2: 1, 4: 2}
        issued = 0
        for p in range(npairs):
            a(f"s_waitcnt vmcnt({3 * ((R0 - 2*p - 2) + issued)})")
            kpair(2 * p, p * 4)
            if p in issue_after:
                a(f"s_waitcnt vmcnt({thr})")
                load(issue_after[p])
                issued += 1
        a(f"v_add_u32 v{vSCW}, {2*R0}, v{vSCW}")
        if self.kboost >= 0:
            assert D == 3
            a(f"s_mov_b32 s{sUSED}, {self.kboost}")
        a("L_kloop:")
        tr()
        for s in range(RS):
            if self.kboost >= 0:
                throttle()
            else:
                a(f"s_waitcnt vmcnt({thr})")
            load((s + D) % RS, "kv" if s == RS - D - 1 else None)
            if s & 1:
                if self.early:
                    a(f"s_waitcnt vmcnt({3*D})")
                if not self.nok:
                    kpair(s - 1, (s // 2) * 4)
        a(f"""v_add_u32 v{vSCW}, {2*RS}, v{vSCW}
        s_add_u32 s{sIT}, s{sIT}, 1
        s_cmp_lt_u32 s{sIT}, {NITK}
        s_cbranch_scc1 L_kloop""")
        for s in range(D, R1):
            load(s)
        self.stamp(2, vA)
        tr()
        F = 32
        a(f"""v_lshl_add_u32 v{vT2}, v{vT1}, 4, v{vSCR}
        s_memrealtime s[46:47]
        s_waitcnt lgkmcnt(0)
        ds_read_b128 v[40:43], v{vT2}
        s_waitcnt lgkmcnt(0)""")
        for i in range(4):
            a(f"v_lshlrev_b32 v{F+2*i}, 16, v{40+i}\nv_and_b32 v{F+2*i+1}, 0xffff0000, v{40+i}")
        a(f"""v_max3_f32 v{vA0}, v{F}, v{F+1}, v{F+2}
        v_max3_f32 v{vA0}, v{vA0}, v{F+3}, v{F+4}
        v_max3_f32 v{vA0}, v{vA0}, v{F+5}, v{F+6}
        v_max_f32 v{vA0}, v{vA0}, v{F+7}""")
        self.row_reduce("v_max_f32", vA0)
        self.swap_reduce("v_max_f32", vA0, vT3, 16)
        self.swap_reduce("v_max_f32", vA0, vT3, 32)
        for i in range(8):
            a(f"v_sub_f32 v{F+i}, v{F+i}, v{vA0}\nv_mul_f32 v{F+i}, {LOG2E}, v{F+i}")
        for i in range(8):
            a(f"v_exp_f32 v{F+i}, v{F+i}")
        a("s_nop 0")
        a(f"v_add_f32 v{vA1}, v{F}, v{F+1}")
        for i in range(2, 8):
            a(f"v_add_f32 v{vA1}, v{vA1}, v{F+i}")
        for i in range(4):
            a(f"v_cvt_pk_bf16_f32 v{40+i}, v{F+2*i}, v{F+2*i+1}")
        a(f"ds_write_b128 v{vT2}, v[40:43]")
        self.row_reduce("v_add_f32", vA1)
        self.swap_reduce("v_add_f32", vA1, vT3, 16)
        self.swap_reduce("v_add_f32", vA1, vT3, 32)
        a("s_waitcnt lgkmcnt(0)")
        def pread(n):
            if n == 2: a(f"ds_read_b64 v[{vP}:{vP+1}], v{vSCR}")
            elif n == 3: a(f"ds_read_b32 v{vP}, v{vSCR}\nds_read_b32 v{vP+1}, v{vSCR} offset:4\nds_read_b32 v{vP+2}, v{vSCR} offset:8")
            else: raise ValueError(n)
            a(f"v_add_u32 v{vSCR}, {4*n}, v{vSCR}")
        pread(R1 // 2)
        self.tag(44, vA0, vTG, pos=0)
        self.tag(45, vA1, vTG, pos=1)
        if self.diagx:
            a(f"s_getreg_b32 s9, hwreg(HW_REG_XCC_ID, 0, 4)\ns_lshl_b32 s9, s9, 8\nv_or_b32 v44, s9, v44")
        a(f"""v_mov_b32 v46, s{sT}
        v_mov_b32 v47, s46
        s_lshl_b32 s9, s3, 4
        v_mov_b32 v{vA0}, s9
        s_mov_b64 exec, 1
        ds_write_b128 v{vA0}, v[44:47] offset:{L_STL}
        s_mov_b64 exec, -1""")
        self.wide_tag()
        a(f"""v_mov_b32 v{vTG}, s96
        s_mov_b32 exec_lo, 0x22222222
        v_mov_b32 v{vTG}, s97
        s_mov_b32 exec_lo, 0x44444444
        v_mov_b32 v{vTG}, s98
        s_mov_b32 exec_lo, 0x88888888
        v_mov_b32 v{vTG}, s99
        s_mov_b32 exec_lo, -1""")
        for i in range(12):
            a(f"v_mov_b32 v{vACC+i}, 0")
        a(f"s_mov_b32 s{sIT}, 0\ns_waitcnt lgkmcnt(0)")
        a(f"""v_and_b32 v{vT0}, 7, v{vL}
        v_mul_u32_u24 v{vT0}, {OS}, v{vT0}
        v_lshrrev_b32 v{vT1}, 4, v{vL}
        v_lshl_add_u32 v{vT0}, v{vT1}, 4, v{vT0}
        v_bfe_u32 v{vT2}, v{vL}, 3, 1
        v_mul_u32_u24 v{vT3}, 192, v{vT2}
        v_add_u32 v{vT0}, v{vT0}, v{vT3}
        v_mul_u32_u24 v18, 0xaaaa, v{vT2}
        v_add_u32 v18, 0x4444, v18
        v_lshl_or_b32 v18, v18, 16, v18
        v_and_b32 v{vT2}, 1, v{vT1}
        v_and_b32 v{vT3}, 31, v{vL}
        v_lshlrev_b32 v{vT3}, 2, v{vT3}
        v_lshlrev_b32 v{vT2}, 3, v{vT2}
        v_lshlrev_b32 v{vT1}, 8, v{vT1}
        v_bfe_u32 v{vA0}, v{vL}, 3, 1
        v_lshl_add_u32 v{vT1}, v{vA0}, 4, v{vT1}
        v_and_b32 v{vA0}, 7, v{vL}
        v_mul_u32_u24 v{vA0}, {WXS}, v{vA0}
        s_lshl_b32 s9, s3, 6
        s_add_u32 s9, s9, {L_WX}
        v_add3_u32 v{vT1}, v{vT1}, v{vA0}, s9
        s_mul_i32 s9, s7, 2560
        s_lshl_b32 s11, s3, 7
        s_add_u32 s9, s9, s11
        s_add_u32 s9, s9, {P_OFF + 2048}
        s_mov_b32 s67, s9""")
        self.stamp(3, 60)
        tr()

        def vmf(g, slot):
            A = vA + 4 * ((g + 1) & 1)
            for j in range(3):
                self.mfma(vACC + 4 * j, A, RING + (slot * 3 + j) * 4, vACC + 4 * j)
        def vA_(g):
            self.buildA(vA + 4 * ((g + 1) & 1), vP + g // 2, g & 1, vSEL)
        NE, DE = self.NE, self.DE
        RSV = 6
        VD_ = self.VD
        sUSED, sTGT = 44, 45
        vZ, vB = 62, 63
        assert (64 - R1 - NE) % RSV == 0 and NE == 12
        NITV = (64 - R1 - NE) // RSV
        def prog(val):
            L = self.lab("pg")
            a(f"""s_cmp_lg_u32 s3, 0
            s_cbranch_scc1 {L}
            v_mov_b32 v{vB}, {val}
            v_lshlrev_b32 v60, 2, v{vB}
            v_mov_b32 v61, s46
            ds_write_b32 v60, v61 offset:{L_TM}
            ds_write_b32 v{vZ}, v{vB} offset:{L_PROG}
            {L}:""")
        a(f"v_mov_b32 v{vZ}, 0\ns_mov_b32 s{sUSED}, 0\ns_mov_b32 s{sTGT}, 0")
        prog(1)
        issued = 0
        for g in range(R1):
            vA_(g)
            if g == R1 - 1:
                pread(3)
                a(f"ds_read_b32 v{vB}, v{vZ} offset:{L_BOOST}")
            if g >= 4 - VD_:
                a(f"s_waitcnt vmcnt(3)")
                load((R1 + issued) % RSV)
                issued += 1
            else:
                a(f"s_waitcnt vmcnt({3*(R1 - g - 1)})\ns_nop 0")
            vmf(g, g)
        a(f"""L_vloop:
        s_memrealtime s[46:47]
        s_waitcnt lgkmcnt(0)
        v_readfirstlane_b32 s9, v{vB}
        s_sext_i32_i16 s11, s9
        s_cmp_lg_u32 s9, s{sTGT}
        s_cselect_b32 s{sUSED}, s11, s{sUSED}
        s_mov_b32 s{sTGT}, s9
        s_add_u32 s9, s{sIT}, 2""")
        prog("s9")
        tr()
        for s in range(RSV):
            slot = (R1 + s) % RSV
            vA_(s)
            if s == RSV - 1:
                pread(3)
                a(f"ds_read_b32 v{vB}, v{vZ} offset:{L_BOOST}")
            if self.brd == 3 and s == 2:
                a(f"ds_read_b32 v{vB}, v{vZ} offset:{L_BOOST}")
            if self.brd == 3 and s == 3:
                a(f"""s_waitcnt lgkmcnt(0)
                v_readfirstlane_b32 s9, v{vB}
                s_sext_i32_i16 s11, s9
                s_cmp_lg_u32 s9, s{sTGT}
                s_cselect_b32 s{sUSED}, s11, s{sUSED}
                s_mov_b32 s{sTGT}, s9""")
            throttle(VD_)
            load((slot + VD_) % RSV)
            vmf(s, slot)
        a(f"""s_add_u32 s{sIT}, s{sIT}, 1
        s_cmp_lt_u32 s{sIT}, {NITV}
        s_cbranch_scc1 L_vloop""")
        slot_of = lambda e: (R1 + e) % RSV if e < VD_ else e + 6 - VD_
        nxt = VD_
        a(f"""s_waitcnt lgkmcnt(0)
        v_readfirstlane_b32 s9, v{vB}
        s_sext_i32_i16 s11, s9
        s_cmp_lg_u32 s9, s{sTGT}
        s_cselect_b32 s{sUSED}, s11, s{sUSED}""")
        for e in range(NE):
            if e == 6:
                a("s_waitcnt lgkmcnt(0)")
            if e % 6 == 0:
                tr()
            vA_(e % 6)
            if e == 5:
                pread(3)
            if e == 7 and self.spre:
                a(f"""L_wxw:
                ds_read_b64 v[60:61], v{vZ} offset:{L_WXOK}
                s_waitcnt lgkmcnt(0)
                v_and_b32 v60, v60, v61
                s_nop 0
                v_readfirstlane_b32 s9, v60
                s_cmp_eq_u32 s9, 0
                s_cbranch_scc1 L_wxw""")
                for kp in range(3):
                    for hl in range(2):
                        for k2 in range(2):
                            r = RING + (2 * kp + hl) * 8 + 4 * k2
                            a(f"ds_read_b128 v[{r}:{r+3}], v{vT1} offset:{8*WXS*(2*kp+k2) + 32*hl}")
            if e < self.NB:
                throttle(VD_)
                load(slot_of(nxt)); nxt += 1
            else:
                a(f"s_waitcnt vmcnt({3*(nxt - e - 1)})")
                n0 = nxt
                while nxt < NE and nxt - e - 1 < DE:
                    load(slot_of(nxt)); nxt += 1
                if nxt == n0:
                    a("s_nop 0")
            vmf(e % 6, slot_of(e))
        a("s_nop 3\ns_mov_b32 exec_lo, 0x00ff00ff\ns_mov_b32 exec_hi, 0xff00ff00")
        OC = 12
        for j in range(3):
            a(f"""v_cvt_pk_bf16_f32 v{OC+2*j}, v{vACC+4*j}, v{vACC+4*j+1}
            v_cvt_pk_bf16_f32 v{OC+2*j+1}, v{vACC+4*j+2}, v{vACC+4*j+3}
            ds_write2_b32 v{vOW}, v{OC+2*j}, v{OC+2*j+1} offset0:{16*j} offset1:{16*j+48}""")
        a("s_mov_b64 exec, -1")
        for r in (20, 21, 22, 23, 52, 53, 54, 55):
            a(f"v_mov_b32 v{r}, 0")
        a("s_waitcnt lgkmcnt(0)")
        self.stamp(4, 56)
        tr()
        a("s_barrier")
        AA = RING + 12 * W
        BB = AA + 24
        assert BB + 48 <= 256
        D0, D1, SCL = 20, 52, 40
        if self.spre:
            BB = RING
            for kp in range(3):
                a(f"ds_read_b128 v[{AA+4*kp}:{AA+4*kp+3}], v{vT0} offset:{L_O + 64*kp}")
            a(f"ds_read_b64 v[{SCL}:{SCL+1}], v{vT2} offset:{L_SCALE}")
            for kp in range(3):
                a(f"s_waitcnt lgkmcnt({3-kp})")
                self.smf(D0, AA + 4 * kp, BB + (2 * kp) * 8, 18)
                self.smf(D1, AA + 4 * kp, BB + (2 * kp + 1) * 8, 18)
        else:
            for kp in range(3):
                a(f"ds_read_b128 v[{AA+4*kp}:{AA+4*kp+3}], v{vT0} offset:{L_O + 64*kp}")
                for hl in range(2):
                    for k2 in range(2):
                        r = BB + (2 * kp + hl) * 8 + 4 * k2
                        a(f"ds_read_b128 v[{r}:{r+3}], v{vT1} offset:{8*WXS*(2*kp+k2) + 32*hl}")
                if kp == 1:
                    a("s_waitcnt lgkmcnt(5)")
            a(f"ds_read_b64 v[{SCL}:{SCL+1}], v{vT2} offset:{L_SCALE}")
            for kp in range(3):
                a(f"s_waitcnt lgkmcnt({5*(2-kp)+1})")
                self.smf(D0, AA + 4 * kp, BB + (2 * kp) * 8, 18)
                self.smf(D1, AA + 4 * kp, BB + (2 * kp + 1) * 8, 18)
        a("s_waitcnt lgkmcnt(0)\ns_nop 7")
        for D in (D0, D1):
            a(f"""v_add_f32 v{D}, v{D}, v{D+1}
            v_add_f32 v{D+2}, v{D+2}, v{D+3}
            v_mul_f32 v{D}, v{D}, v{SCL}
            v_fmac_f32 v{D}, v{D+2}, v{SCL+1}""")
        a(f"""s_nop 1
        v_permlane16_swap_b32 v{D0}, v{D1}
        s_nop 1
        v_add_f32 v{D0}, v{D0}, v{D1}""")
        self.swap_reduce("v_add_f32", D0, D1, 32)
        self.tag(D0, D0, vTG, rn=12)
        if self.pq:
            a("s_endpgm")
        if self.wide:
            a(f"""s_mov_b32 exec_hi, 0
            s_nop 0
            v_mov_b32_dpp v{D0+1}, v{D0} quad_perm:[1,1,1,1] row_mask:0xf bank_mask:0xf
            v_mov_b32_dpp v{D0+2}, v{D0} quad_perm:[2,2,2,2] row_mask:0xf bank_mask:0xf
            v_mov_b32_dpp v{D0+3}, v{D0} quad_perm:[3,3,3,3] row_mask:0xf bank_mask:0xf
            s_mov_b32 exec_lo, 0x11111111
            buffer_store_dwordx4 v[{D0}:{D0+3}], v{vT3}, s[56:59], s67 offen {self.pst}
            s_mov_b64 exec, -1""")
        else:
            a(f"""s_mov_b32 exec_hi, 0
            buffer_store_dword v{D0}, v{vT3}, s[56:59], s67 offen {self.pst}
            s_mov_b64 exec, -1""")
        self.stamp(5, 12)
        tr()
        if self.trace:
            a(f"""s_sleep 127
            s_lshl_b32 s9, s2, 2
            s_add_u32 s9, s9, s3
            s_lshl_b32 s9, s9, 8
            s_add_u32 s9, s9, {3 << 20}
            v_lshlrev_b32 v12, 2, v0
            buffer_store_dword v{vTR}, v12, s[56:59], s9 offen""")
        for i, r in enumerate(self.fs):
            self.stamp(6 + i, 12, src=r)
        a("s_endpgm")

    def gen_H(self):
        self.cls = "H"
        a = self.a
        vL = 0
        vT0, vT1, vT2, vT3, vT4, vT5, vW = 1, 2, 3, 4, 5, 6, 7
        vX = 8
        vSEL = 18
        vTG = 26
        vCK = 27
        vF = 28
        vA, vACC = 28, 36
        vE = 52
        TI = 64
        if self.hprio:
            a(f"s_setprio {self.hprio}")
        a("s_sub_u32 s3, s3, 4")
        a(f"""s_and_b32 s14, s10, 7
        s_lshl_b32 s52, s14, 5
        s_add_u32 s52, s52, s4
        s_cmp_ge_u32 s14, 6
        s_cselect_b32 s52, 255, s52
        s_cmp_eq_u32 s3, 3
        s_cbranch_scc1 L_h3
        v_lshrrev_b32 v{vT0}, 5, v{vL}
        v_mul_u32_u24 v{vT0}, 1280, v{vT0}
        v_and_b32 v{vT1}, 31, v{vL}
        v_lshl_add_u32 v{vT0}, v{vT1}, 3, v{vT0}
        v_lshrrev_b32 v{vT1}, 3, v{vL}
        v_and_b32 v{vT2}, 7, v{vL}
        s_lshl_b32 s53, s4, 1
        s_add_u32 s53, s53, s14
        s_sub_u32 s53, s53, 6
        s_lshl_b32 s53, s53, 1
        s_add_u32 s53, s53, s3
        s_add_u32 s9, s52, 128
        s_cmp_eq_u32 s3, 2
        s_cselect_b32 s53, s9, s53
        s_cselect_b32 s9, 7, s14
        s_waitcnt lgkmcnt(0)""")
        self.srd(60, 16, 2560)
        for t in range(5):
            a(f"buffer_load_dwordx2 v[{vX+2*t}:{vX+2*t+1}], v{vT0}, s[60:63], 0 offen offset:{256*t}")
        a(f"""s_mov_b32 s47, 0x20000
        s_cmp_ge_u32 s9, 6
        s_cbranch_scc1 L_jgu
        s_mov_b32 s44, s22
        s_mov_b32 s45, s23
        s_mov_b32 s46, {640*12288}
        s_mov_b32 s54, 12288
        s_and_b32 s55, s14, 1
        s_lshl_b32 s55, s55, 1
        s_add_u32 s55, s55, s3
        s_lshr_b32 s11, s14, 1
        s_mul_i32 s64, s4, 384
        s_lshl_b32 s9, s11, 7
        s_add_u32 s64, s64, s9
        s_lshl_b32 s66, s4, 2
        s_add_u32 s66, s66, s55
        s_mul_i32 s66, s66, 1536
        s_lshl_b32 s9, s11, 8
        s_add_u32 s66, s66, s9
        s_add_u32 s66, s66, {QX_OFF}
        s_mov_b32 s13, 768
        s_branch L_jd
        L_jgu:
        s_bitcmp1_b32 s53, 2
        s_cselect_b32 s44, s32, s30
        s_cselect_b32 s45, s33, s31
        s_mov_b32 s46, {640*3072}
        s_mov_b32 s54, 3072
        s_and_b32 s55, s53, 3
        s_lshr_b32 s64, s53, 3
        s_lshl_b32 s64, s64, 7
        s_lshl_b32 s66, s53, 9
        s_add_u32 s66, s66, {GU_OFF}
        s_mov_b32 s13, 256
        L_jd:
        s_mul_i32 s9, s54, 20
        v_mul_lo_u32 v{vW}, v{vT1}, s9
        v_lshl_add_u32 v{vW}, v{vT2}, 4, v{vW}
        s_mul_i32 s9, s55, 160
        s_mul_i32 s9, s9, s54
        s_add_u32 s9, s9, s64
        v_add_u32 v{vW}, s9, v{vW}""")
        def job_loads():
            a("s_mov_b32 s9, 0")
            for G in range(20):
                a(f"buffer_load_dwordx4 v[{TI+4*G}:{TI+4*G+3}], v{vW}, s[44:47], s9 offen {self.wf}")
                if G < 19:
                    a("s_add_u32 s9, s9, s54")
        a("s_cmp_eq_u32 s3, 2\ns_cbranch_scc1 L_nj1")
        job_loads()
        a("L_nj1:")
        self.epoch_load()
        self.srd(56, 40, WS_SRD)
        self.selectors(vL, vSEL, vT3, vT4, vT5)
        a("s_cmp_lg_u32 s3, 2\ns_cbranch_scc1 L_nx2\ns_waitcnt vmcnt(0)\nL_nx2:")
        a(f"s_mov_b32 s9, 0x3f803f80\ns_waitcnt vmcnt(20)")
        self.stamp(11, 60)
        for i in range(10):
            c = "0" if i == 0 else f"v{vT3}"
            a(f"v_dot2_f32_bf16 v{vT3}, v{vX+i}, s9, {c}")
        for i in range(2):
            a(f"v_lshlrev_b32 v{vF+2*i}, 16, v{vX+i}\nv_and_b32 v{vF+2*i+1}, 0xffff0000, v{vX+i}")
        k = 2
        for st in (1, 2, 4, 8):
            self.dpp("v_add_f32", vT3, vT3, vT3, f"row_ror:{st}")
            a(f"v_lshlrev_b32 v{vF+2*k}, 16, v{vX+k}\nv_and_b32 v{vF+2*k+1}, 0xffff0000, v{vX+k}")
            k += 1
        a(f"v_mov_b32 v{vT4}, v{vT3}")
        a(f"v_lshlrev_b32 v{vF+2*k}, 16, v{vX+k}\nv_and_b32 v{vF+2*k+1}, 0xffff0000, v{vX+k}")
        k += 1
        a(f"v_permlane16_swap_b32 v{vT3}, v{vT4}")
        while k < 10:
            a(f"v_lshlrev_b32 v{vF+2*k}, 16, v{vX+k}\nv_and_b32 v{vF+2*k+1}, 0xffff0000, v{vX+k}")
            k += 1
        a(f"v_add_f32 v{vT3}, v{vT3}, v{vT4}")
        def div640(v, t):
            a(f"""v_mul_f32 v{t}, {f32(1/640)}, v{v}
            v_fmac_f32 v{v}, {f32(-640.0)}, v{t}
            v_fmac_f32 v{t}, {f32(1/640)}, v{v}""")
        M2 = vE
        D2 = vE + 2
        Q2 = vE + 4
        div640(vT3, M2)
        a(f"v_mov_b32 v{M2+1}, v{M2}")
        for i in range(10):
            a(f"v_pk_add_f32 v[{D2}:{D2+1}], v[{vF+2*i}:{vF+2*i+1}], v[{M2}:{M2+1}] neg_lo:[0,1] neg_hi:[0,1]")
            if i == 0:
                a(f"v_pk_mul_f32 v[{Q2}:{Q2+1}], v[{D2}:{D2+1}], v[{D2}:{D2+1}]")
            else:
                a(f"v_pk_fma_f32 v[{Q2}:{Q2+1}], v[{D2}:{D2+1}], v[{D2}:{D2+1}], v[{Q2}:{Q2+1}]")
        a(f"v_add_f32 v{vT4}, v{Q2}, v{Q2+1}")
        self.rbf(M2)
        a(f"v_mov_b32 v{M2+1}, v{M2}")
        def xc(i):
            a(f"""v_pk_add_f32 v[{vF+2*i}:{vF+2*i+1}], v[{vF+2*i}:{vF+2*i+1}], v[{M2}:{M2+1}] neg_lo:[0,1] neg_hi:[0,1]
            v_cvt_pk_bf16_f32 v{vF+2*i+1}, v{vF+2*i}, v{vF+2*i+1}
            v_lshlrev_b32 v{vF+2*i}, 16, v{vF+2*i+1}
            v_and_b32 v{vF+2*i+1}, 0xffff0000, v{vF+2*i+1}""")
        k = 0
        for st in (1, 2, 4, 8):
            self.dpp("v_add_f32", vT4, vT4, vT4, f"row_ror:{st}")
            xc(k); k += 1
        a(f"v_mov_b32 v{vT5}, v{vT4}")
        xc(k); k += 1
        a(f"v_permlane16_swap_b32 v{vT4}, v{vT5}")
        xc(k); k += 1
        a(f"v_add_f32 v{vT4}, v{vT4}, v{vT5}")
        div640(vT4, vT5)
        self.rbf(vT5)
        a(f"v_add_f32 v{vT5}, {f32(1e-5)}, v{vT5}")
        self.rbf(vT5)
        a(f"v_sqrt_f32 v{vT5}, v{vT5}")
        xc(k); k += 1
        self.rbf(vT5)
        a(f"v_rcp_f32 v{D2}, v{vT5}")
        xc(k); k += 1
        a(f"v_mov_b32 v{D2+1}, v{D2}\nv_mov_b32 v{Q2}, v{vT5}\nv_mov_b32 v{Q2+1}, v{vT5}")
        while k < 10:
            xc(k); k += 1
        R2 = vE + 6
        for i in range(10):
            f = vF + 2 * i
            a(f"""v_pk_mul_f32 v[{R2}:{R2+1}], v[{f}:{f+1}], v[{D2}:{D2+1}]
            v_pk_fma_f32 v[{f}:{f+1}], v[{R2}:{R2+1}], v[{Q2}:{Q2+1}], v[{f}:{f+1}] neg_lo:[1,0,0] neg_hi:[1,0,0]
            v_pk_fma_f32 v[{R2}:{R2+1}], v[{f}:{f+1}], v[{D2}:{D2+1}], v[{R2}:{R2+1}]
            v_cvt_pk_bf16_f32 v{vX+i}, v{R2}, v{R2+1}""")
            if i & 1:
                t = i // 2
                a(f"ds_write_b64 v{vT0}, v[{vX+2*t}:{vX+2*t+1}] offset:{L_XN + 256*t}")
        a("s_waitcnt lgkmcnt(0)")
        self.epoch_use(vTG)
        self.stamp(15, 60, src=48)
        self.stamp(1, 60)
        a(f"""s_cmp_lg_u32 s3, 2
        s_cbranch_scc1 L_job
        s_cmp_ge_u32 s52, {0 if self.nomoe else 64}
        s_cbranch_scc1 L_bar1""")
        job_loads()
        a("L_job:")
        C1 = 44
        a(f"""v_mul_u32_u24 v{vT3}, 40, v{vT1}
        s_mul_i32 s9, s55, 320
        v_add_u32 v{vT3}, s9, v{vT3}""")
        for bb, base in ((0, vX), (1, C1)):
            for t in range(5):
                a(f"ds_read_b64 v[{base+2*t}:{base+2*t+1}], v{vT3} offset:{L_XN + 1280*bb + 8*t}")
        a(f"""v_lshrrev_b32 v{vT4}, 5, v{vL}
        v_mul_lo_u32 v{vT4}, v{vT4}, s13
        v_lshl_add_u32 v{vT4}, v{vT2}, 5, v{vT4}
        v_bfe_u32 v{vT5}, v{vL}, 4, 1
        v_lshl_add_u32 v{vT4}, v{vT5}, 4, v{vT4}
        s_waitcnt lgkmcnt(0)""")
        self.job_compute(20, vX, C1, TI, vA, vACC, vSEL, vTG, vT4, "s66", True)
        a(f"s_setprio {self.hprio1}\ns_cmp_eq_u32 s3, 2\ns_cbranch_scc1 L_bar1")
        self.srd(44, 24, 0 if self.nowo else 6144 * 1280)
        a(f"""v_lshrrev_b32 v{vT3}, 4, v{vL}
        v_mul_u32_u24 v{vT3}, {8*1280}, v{vT3}
        v_and_b32 v{vT4}, 15, v{vL}
        v_lshl_add_u32 v{vT3}, v{vT4}, 4, v{vT3}
        s_mul_i32 s9, s4, {192*1280}
        s_mul_i32 s10, s3, {96*1280}
        s_add_u32 s9, s9, s10
        s_add_u32 s9, s9, 1024
        v_add_u32 v{vT3}, s9, v{vT3}
        s_mul_i32 s9, s3, {24*WXS}
        s_add_u32 s9, s9, {L_WX}
        v_lshlrev_b32 v{vT4}, 4, v{vL}
        v_add_u32 v{vT4}, s9, v{vT4}
        s_mov_b32 s14, 0x05040100
        s_mov_b32 s15, 0x07060302""")
        for kk in range(3):
            if kk == self.pre:
                a("s_barrier")
            sr, d = TI + 64 * kk, TI + 64 * kk + 32
            for e in range(8):
                if e % 4 == 0:
                    a(f"s_mov_b32 s9, {(32*kk + e)*1280}")
                a(f"buffer_load_dwordx4 v[{sr+4*e}:{sr+4*e+3}], v{vT3}, s[44:47], s9 offen offset:{(e%4)*1280} {self.wof}")
            for t in range(4):
                a(f"s_waitcnt vmcnt({6-2*t})")
                for dd in range(4):
                    a(f"v_perm_b32 v{d+(2*dd)*4+t}, v{sr+(2*t+1)*4+dd}, v{sr+(2*t)*4+dd}, s14")
                    a(f"v_perm_b32 v{d+(2*dd+1)*4+t}, v{sr+(2*t+1)*4+dd}, v{sr+(2*t)*4+dd}, s15")
            for c in range(8):
                a(f"ds_write_b128 v{vT4}, v[{d+4*c}:{d+4*c+3}] offset:{(8*kk + c)*WXS}")
        a(f"""s_lshl_b32 s9, s3, 2
        v_mov_b32 v{vT3}, s9
        v_mov_b32 v{vT4}, 1
        ds_write_b32 v{vT3}, v{vT4} offset:{L_WXOK}
        s_waitcnt lgkmcnt(0)
        s_branch L_h1""")
        a("L_h3:\nv_mov_b32 v10, 0\nv_mov_b32 v11, 0\ns_waitcnt lgkmcnt(0)")
        self.epoch_load()
        self.srd(56, 40, WS_SRD)
        if self.tlb:
            a(f"""v_lshlrev_b32 v{vT5}, 18, v{vL}
            s_mul_i32 s9, s8, {4*CH}
            s_mov_b64 exec, 0xfff""")
            self.srd(60, 20, TB)
            a(f"buffer_load_dword v64, v{vT5}, s[60:63], s9 offen nt")
            self.srd(44, 18, TB)
            a(f"buffer_load_dword v65, v{vT5}, s[44:47], s9 offen nt\ns_mov_b64 exec, 1")
            for i, (p, nb) in enumerate(((36, 2560), (34, 1536 * 1280), (28, 1280))):
                self.srd(60, p, nb)
                a(f"buffer_load_dword v{66+i}, v{vT5}, s[60:63], 0 offen nt")
            a("s_mov_b64 exec, -1")
        a(f"""v_lshlrev_b32 v{vT3}, 4, v{vL}
        v_lshlrev_b32 v{vT4}, 3, v{vL}
        s_mul_i32 s9, s4, {4*1536}
        s_mul_i32 s11, s5, 768
        s_add_u32 s9, s9, s11
        s_add_u32 s70, s9, {QX_OFF}
        s_add_u32 s71, s70, 3072
        s_waitcnt lgkmcnt(0)""")
        self.epoch_use(vTG)
        a(f"""v_mov_b32 v{vT5}, 0
        s_not_b32 s9, s{sT}
        v_mov_b32 v{vT0}, s9
        v_lshlrev_b32 v{vT1}, 2, v{vL}
        ds_write_b32 v{vT5}, v{vT5} offset:{L_PROG}
        ds_write_b32 v{vT5}, v{vT5} offset:{L_BOOST}
        ds_write_b32 v{vT5}, v{vT5} offset:{L_WXOK}
        ds_write_b32 v{vT5}, v{vT5} offset:{L_WXOK + 4}
        s_mov_b64 exec, 0xffff
        ds_write_b32 v{vT1}, v{vT0} offset:{L_STL}
        s_mov_b64 exec, -1""")
        q = self.qsleep
        while q > 0:
            a(f"s_sleep {min(q, 127)}")
            q -= 127
        self.mpoll([(TI + 4 * k, f"buffer_load_dwordx4 v[{TI+4*k}:{TI+4*k+3}], v{vT3}, s[56:59], s{70+k//2} offen offset:{1536*(k&1)} sc1") for k in range(4)],
                   vTG, vCK, self.qsleep2, mask=("-1", "0xffff"))
        self.sum_quads(TI, 4)
        a(f"""s_mov_b32 exec_hi, 0xffff
        v_cvt_pk_bf16_f32 v{TI}, v{TI}, v{TI+1}
        v_cvt_pk_bf16_f32 v{TI+1}, v{TI+2}, v{TI+3}
        ds_write_b64 v{vT4}, v[{TI}:{TI+1}] offset:{L_QB}
        s_mov_b64 exec, -1
        s_waitcnt lgkmcnt(0)""")
        self.stamp(2, 60)
        a(f"""L_bar1:
        s_setprio {self.hprio1}
        s_barrier
        L_h1:""")
        a(f"v_and_b32 v{vT1}, 15, v{vL}\nv_lshrrev_b32 v{vT2}, 4, v{vL}")
        self.srd(44, 24, 0 if self.nowo else 6144 * 1280)
        a(f"""v_mul_u32_u24 v{vW}, {8*1280}, v{vT2}
        s_mul_i32 s9, s4, {192*1280}
        v_add_u32 v{vW}, s9, v{vW}
        v_lshl_add_u32 v{vW}, v{vT1}, 4, v{vW}
        s_lshl_b32 s9, s3, 8
        v_add_u32 v{vW}, s9, v{vW}
        s_mov_b32 s14, 0x05040100
        s_mov_b32 s15, 0x07060302""")
        self.stamp(3, 60)
        def REG(k): return 32 + 32 * k
        for K in (5, 4, 3, 2, 1, 0):
            if K == 3:
                a(f"""s_cmp_lg_u32 s3, 2
                s_cbranch_scc1 L_nodn
                s_sub_u32 s52, s52, 64
                s_cmp_ge_u32 s52, {0 if self.nomoe else 120}
                s_cbranch_scc1 L_nodn""")
                self.gen_dn(vL, vT3, vT4, vT5, vSEL, vTG, vCK, TI)
                self.stamp(9, 60)
                a("L_nodn:")
            for e in range(8):
                if e % 4 == 0:
                    a(f"s_mov_b32 s9, {(32*K + e)*1280}")
                r = REG(0) + 4 * e
                a(f"buffer_load_dwordx4 v[{r}:{r+3}], v{vW}, s[44:47], s9 offen offset:{(e%4)*1280} {self.wof}")
                if self.wobatch == 4 and e == 3:
                    a("s_waitcnt vmcnt(0)")
                    if self.wosleep:
                        a(f"s_sleep {self.wosleep}")
                if self.wobatch == 2 and e in (1, 3, 5):
                    a("s_waitcnt vmcnt(0)")
            s, d = REG(0), 64 + 64 * (K // 2) + 4 * (K & 1)
            for t in range(4):
                a(f"s_waitcnt vmcnt({6-2*t})")
                for dd in range(4):
                    a(f"v_perm_b32 v{d+(2*dd)*8+t}, v{s+(2*t+1)*4+dd}, v{s+(2*t)*4+dd}, s14")
                    a(f"v_perm_b32 v{d+(2*dd+1)*8+t}, v{s+(2*t+1)*4+dd}, v{s+(2*t)*4+dd}, s15")
        vG, vXC, vOUTA, vPA, vSC = 8, 9, 10, 11, 12
        vAR, vST = 14, 15
        Wk = 32
        self.stamp(4, 60)
        a(f"""s_cmp_lg_u32 s3, 0
        s_cbranch_scc1 L_noep
        s_cmp_lg_u32 s2, 0
        s_cbranch_scc1 L_noep""")
        Lc, Lcd = self.lab("c0"), self.lab("c0d")
        a(f"""s_mov_b32 s12, {self.poll_max}
        v_lshlrev_b32 v{Wk+8}, 6, v{vL}
        v_mov_b32 v{Wk+9}, s{sT}
        s_mov_b32 s9, {ST_OFF + 8}
        s_mov_b32 s10, {ST_OFF + 8 + 4096}
        s_mov_b32 s11, {ST_OFF + 8 + 8192}
        s_mov_b32 s13, {ST_OFF + 8 + 12288}
        {Lc}:
        s_sleep 127
        buffer_load_dword v{Wk}, v{Wk+8}, s[56:59], s9 offen sc1
        buffer_load_dword v{Wk+1}, v{Wk+8}, s[56:59], s10 offen sc1
        buffer_load_dword v{Wk+2}, v{Wk+8}, s[56:59], s11 offen sc1
        buffer_load_dword v{Wk+3}, v{Wk+8}, s[56:59], s13 offen sc1
        s_waitcnt vmcnt(0)""")
        self.chk4(vCK, Wk, Wk + 9, first=True, n=4, full=True)
        a(f"""v_cmp_ne_u32 vcc, 0, v{vCK}
        s_cbranch_vccz {Lcd}
        s_sub_u32 s12, s12, 1
        s_cmp_gt_u32 s12, 0
        s_cbranch_scc1 {Lc}
        {Lcd}:
        v_mov_b32 v{Wk}, 0
        s_mov_b32 s9, {EP_OFF}
        s_mov_b64 exec, 1
        buffer_store_dword v{Wk+9}, v{Wk}, s[56:59], s9 offen sc1
        s_mov_b64 exec, -1
        L_noep:""")
        a("s_cmp_lg_u32 s3, 3\ns_cbranch_scc1 L_nostat")
        if self.nopoll:
            a("s_branch L_nostat")
        vZ0 = Wk + 16
        L, Ld = self.lab("cw"), self.lab("cwd")
        a(f"""v_mov_b32 v{vZ0}, 0
        v_lshlrev_b32 v{Wk+4}, 4, v{vL}
        s_mov_b32 s12, {self.poll_max * 16}
        s_mov_b64 exec, 15
        {L}:
        ds_read_b128 v[{Wk}:{Wk+3}], v{Wk+4} offset:{L_STL}
        s_waitcnt lgkmcnt(0)
        v_cmp_ne_u32 vcc, s{sT}, v{Wk+2}
        s_cbranch_vccz {Ld}
        s_sleep 8
        s_sub_u32 s12, s12, 1
        s_cmp_gt_u32 s12, 0
        s_cbranch_scc1 {L}
        {Ld}:
        s_lshl_b32 s9, s7, 6
        s_add_u32 s9, s9, {ST_OFF}
        buffer_store_dwordx4 v[{Wk}:{Wk+3}], v{Wk+4}, s[56:59], s9 offen sc1
        s_mov_b64 exec, -1
        s_sleep {self.cdelay[0]}""")
        Ls, Lsd = self.lab("st"), self.lab("std")
        a(f"""v_lshlrev_b32 v{Wk+4}, 3, v{vT2}
        v_and_b32 v{Wk+5}, {self.mix}, v{vT2}
        v_lshl_add_u32 v{Wk+4}, v{Wk+5}, 2, v{Wk+4}
        v_add_u32 v{Wk+4}, s4, v{Wk+4}
        v_and_b32 v{Wk+4}, 31, v{Wk+4}
        v_lshlrev_b32 v{Wk+4}, 8, v{Wk+4}
        v_lshl_add_u32 v{Wk+4}, v{vT1}, 4, v{Wk+4}
        s_lshl_b32 s9, s5, 13
        s_add_u32 s9, s9, {ST_OFF}
        v_mov_b32 v{Wk+5}, s{sT}
        s_mov_b32 s12, {self.poll_max}""")
        if not self.ctl:
            a("s_mov_b64 exec, 0xffff")
        a(f"""{Ls}:
        buffer_load_dwordx4 v[{Wk}:{Wk+3}], v{Wk+4}, s[56:59], s9 offen sc1
        s_memrealtime s[10:11]
        s_waitcnt vmcnt(0) lgkmcnt(0)""")
        self.chk4(vCK, Wk, vTG, first=True, n=2)
        a(f"""v_and_b32 v{vCK}, 15, v{vCK}
        v_bitop3_b32 v{vCK}, v{Wk+2}, v{Wk+5}, v{vCK} bitop3:0xbe
        v_cmp_ne_u32 vcc, 0, v{vCK}
        s_and_b32 s13, vcc_lo, 0xffff
        s_cbranch_scc0 {Lsd}
        s_sleep {self.stsleep}
        s_sub_u32 s12, s12, 1
        s_cmp_gt_u32 s12, 0
        s_cbranch_scc1 {Ls}
        {Lsd}:
        s_mov_b64 exec, -1""")
        if self.ctl:
            a(f"""v_sub_u32 v{Wk+6}, s10, v{Wk+3}
            v_cvt_f32_i32 v{Wk+6}, v{Wk+6}
            v_cndmask_b32 v{Wk+6}, v{Wk+6}, 0, vcc
            s_lshl_b32 s9, s6, 2
            v_subrev_u32 v{Wk+7}, s9, v{vL}
            v_cmp_gt_u32 vcc, 4, v{Wk+7}
            v_mul_f32 v{Wk+7}, {f32(-15.0)}, v{Wk+6}
            s_nop 0
            v_cndmask_b32 v{Wk+6}, v{Wk+6}, v{Wk+7}, vcc""")
            self.row_reduce("v_add_f32", Wk + 6)
            self.swap_reduce("v_add_f32", Wk + 6, Wk + 7, 16)
            self.swap_reduce("v_add_f32", Wk + 6, Wk + 7, 32)
            a(f"""v_mul_f32 v{Wk+6}, {f32(1/64.0)}, v{Wk+6}
            """)
            self.decide(Wk + 6, Wk + 7, 0, vZ0)
        a(f"v_mov_b32 v{Wk+2}, v{Wk}")
        self.row_reduce("v_max_f32", Wk + 2)
        a(f"""v_sub_f32 v{Wk}, v{Wk}, v{Wk+2}
        v_mul_f32 v{Wk}, {LOG2E}, v{Wk}
        v_exp_f32 v{Wk}, v{Wk}
        s_nop 0
        v_mul_f32 v{Wk+1}, v{Wk+1}, v{Wk}""")
        self.row_reduce("v_add_f32", Wk + 1)
        a(f"""v_rcp_f32 v{Wk+2}, v{Wk+1}
        s_nop 0
        v_mul_f32 v{Wk+3}, v{Wk}, v{Wk+2}
        v_fma_f32 v{Wk}, -v{Wk+3}, v{Wk+1}, v{Wk}
        v_fmac_f32 v{Wk+3}, v{Wk}, v{Wk+2}
        s_lshl_b32 s9, s6, 2
        v_subrev_u32 v{Wk+4}, s9, v{vL}
        v_cmp_gt_u32 vcc, 4, v{Wk+4}
        v_lshlrev_b32 v{Wk+4}, 2, v{Wk+4}
        s_and_saveexec_b64 s[10:11], vcc
        ds_write_b32 v{Wk+4}, v{Wk+3} offset:{L_SCALE}
        s_mov_b64 exec, -1""")
        if self.ctl:
            a(f"""v_bfe_u32 v{Wk+4}, v{vL}, 2, 2
            v_and_b32 v{Wk+6}, {self.mix}, v{Wk+4}
            v_lshlrev_b32 v{Wk+4}, 3, v{Wk+4}
            v_lshl_add_u32 v{Wk+4}, v{Wk+6}, 2, v{Wk+4}
            v_add_u32 v{Wk+4}, s4, v{Wk+4}
            v_and_b32 v{Wk+4}, 31, v{Wk+4}
            v_lshlrev_b32 v{Wk+4}, {9 if self.excl else 7}, v{Wk+4}
            v_and_b32 v{Wk+6}, 3, v{vL}
            v_lshl_add_u32 v{Wk+4}, v{Wk+6}, {7 if self.excl else 3}, v{Wk+4}
            v_mov_b32 v{Wk+9}, s{sT}""")
            TM_ = self.team
            if TM_:
                a(f"v_lshlrev_b32 v{Wk+4}, 3, v{vL}")
            for ci in range(1, len(self.cps)):
                L, Ld = self.lab("cw"), self.lab("cwd")
                a(f"""s_mov_b32 s12, {self.poll_max * 16}
                {L}:
                ds_read_b32 v{Wk}, v{vZ0} offset:{L_PROG}
                s_waitcnt lgkmcnt(0)
                v_readfirstlane_b32 s9, v{Wk}
                s_cmp_ge_u32 s9, {self.cps[ci]}
                s_cbranch_scc1 {Ld}
                s_sleep 2
                s_sub_u32 s12, s12, 1
                s_cmp_gt_u32 s12, 0
                s_cbranch_scc1 {L}
                {Ld}:
                ds_read_b32 v{Wk+8}, v{vZ0} offset:{L_TM + 4*self.cps[ci]}
                {"s_lshl_b32 s9, s2, 3" if TM_ else f"s_lshl_b32 s9, s8, {9 if self.excl else 7}"}
                {"s_mov_b32 s13, 0" if TM_ else f"s_lshl_b32 s13, s6, {7 if self.excl else 3}"}
                s_add_u32 s9, s9, s13
                s_add_u32 s9, s9, {TS_OFF + 32768*ci}
                s_waitcnt lgkmcnt(0)
                v_readfirstlane_b32 s10, v{Wk+8}
                s_mov_b64 exec, 1
                buffer_store_dwordx2 v[{Wk+8}:{Wk+9}], v{vZ0}, s[56:59], s9 offen sc1
                s_mov_b32 exec_lo, {"0xffff" if TM_ in (0, 16) else "-1"}
                s_mov_b32 exec_hi, {"-1" if TM_ == 64 else "0"}
                s_sleep {self.cdelay[ci]}
                {f"s_andn2_b32 s9, s2, {TM_-1}" if TM_ else f"s_lshl_b32 s9, s5, {11 if self.excl else 9}"}
                s_lshl_b32 s9, s9, 3
                s_add_u32 s9, s9, {TS_OFF + 32768*ci}
                buffer_load_dwordx2 v[{Wk}:{Wk+1}], v{Wk+4}, s[56:59], s9 offen sc1
                s_memrealtime s[12:13]
                s_waitcnt vmcnt(0) lgkmcnt(0)
                v_cmp_ne_u32 vcc, v{Wk+1}, v{Wk+9}
                v_sub_u32 v{Wk+6}, s12, v{Wk}
                v_cvt_f32_i32 v{Wk+6}, v{Wk+6}
                v_cndmask_b32 v{Wk+6}, v{Wk+6}, 0, vcc
                s_sub_u32 s12, s12, s10
                v_cvt_f32_u32 v{Wk+7}, s12""")
                self.row_reduce("v_add_f32", Wk + 6)
                if TM_ >= 32:
                    self.swap_reduce("v_add_f32", Wk + 6, Wk + 10, 16)
                if TM_ == 64:
                    self.swap_reduce("v_add_f32", Wk + 6, Wk + 10, 32)
                a(f"""v_mul_f32 v{Wk+6}, {f32(1.0/max(16, TM_))}, v{Wk+6}
                v_sub_f32 v{Wk+6}, v{Wk+6}, v{Wk+7}
                """)
                self.decide(Wk + 6, Wk + 7, ci, vZ0)
                a("s_mov_b64 exec, -1")
        a("L_nostat:")
        a(f"""s_lshl_b32 s67, s6, 5
        s_add_u32 s67, s67, s4
        s_mov_b32 s68, 0
        s_cmp_lg_u32 s3, 2
        s_cbranch_scc1 L_noown
        s_cmp_ge_u32 s67, {8 if self.pq else 40}
        s_cbranch_scc1 L_noown
        s_mov_b32 s68, 1""")
        self.srd(60, 28, 1280)
        W = Wk
        a(f"""v_lshlrev_b32 v{W+20}, 2, v{vL}
        s_mul_i32 s9, s5, 1280
        v_add_u32 v{W+21}, s9, v{W+20}""")
        for t in range(5):
            a(f"buffer_load_dword v{W+t}, v{W+20}, s[60:63], 0 offen offset:{256*t}")
            a(f"ds_read_b32 v{W+5+t}, v{W+21} offset:{L_XN + 256*t}")
        self.srd(60, 16, 2560)
        a(f"""v_and_b32 v{W+22}, 3, v{vL}
        v_lshl_add_u32 v{vOUTA}, v{W+22}, 2, v{vT2}
        v_lshlrev_b32 v{vOUTA}, 1, v{vOUTA}
        s_lshl_b32 s10, s67, 5
        s_add_u32 s10, s10, s9
        v_add_u32 v{vOUTA}, s10, v{vOUTA}
        buffer_load_ushort v{vXC}, v{vOUTA}, s[60:63], 0 offen
        ds_read_u16 v{W+23}, v{vOUTA} offset:{L_XN}
        s_waitcnt vmcnt(0) lgkmcnt(0)""")
        for t in range(5):
            c = "0" if t == 0 else f"v{W+24}"
            a(f"v_dot2_f32_bf16 v{W+24}, v{W+t}, v{W+5+t}, {c}")
        a(f"v_lshlrev_b32 v{vXC}, 16, v{vXC}\nv_lshlrev_b32 v{W+23}, 16, v{W+23}\ns_nop 1")
        self.row_reduce("v_add_f32", W + 24)
        self.swap_reduce("v_add_f32", W + 24, W + 25, 16)
        self.swap_reduce("v_add_f32", W + 24, W + 25, 32)
        self.rbf(W + 24)
        self.sigmoid_like(W + 24, W + 24)
        self.rbf(W + 24)
        Ly, Lyd = self.lab("y"), self.lab("yd")
        a(f"""v_lshrrev_b32 v{W+20}, 2, v{vL}
        v_mul_u32_u24 v{W+21}, 5120, v{W+20}
        v_lshl_add_u32 v{W+21}, v{W+22}, 4, v{W+21}
        v_mul_u32_u24 v{vPA}, 2560, v{W+20}
        v_lshl_add_u32 v{vPA}, v{W+22}, 4, v{vPA}
        s_mul_i32 s9, s5, 2560
        s_lshl_b32 s10, s67, 6
        s_add_u32 s9, s9, s10
        s_add_u32 s9, s9, {Y_OFF}
        v_mov_b32 v{W}, 0
        v_mov_b32 v{W+1}, 0
        v_mov_b32 v{W+2}, 0
        v_mov_b32 v{W+3}, 0""")
        if not self.nomoe:
            self.mpoll([(W, f"buffer_load_dwordx4 v[{W}:{W+3}], v{W+21}, s[56:59], s9 offen sc1")], vTG, vCK, 64, mask=("-1", "0xffff"))
        self.merge4(W)
        self.rbf(W)
        a(f"v_mul_f32 v{W}, v{W}, v{W+24}")
        self.rbf(W)
        a(f"v_add_f32 v{W}, v{W}, v{W+23}")
        self.rbf(W)
        self.sigmoid_like(W + 1, W)
        a(f"v_mul_f32 v{vG}, v{W}, v{W+1}")
        self.rbf(vG)
        a(f"""s_mul_i32 s70, s5, {128*2560}
        s_lshl_b32 s10, s67, 6
        s_add_u32 s70, s70, s10""")
        for t in range(1, 8):
            a(f"s_add_u32 s{70+t}, s70, {t*40960}")
        if self.ppre == 1:
            for t in range(8):
                a(f"buffer_load_dwordx4 v[{W+4*t}:{W+4*t+3}], v{vPA}, s[56:59], s{70+t} offen sc1")
        a("L_noown:")
        self.srd(60, 36, 2560)
        a(f"""v_and_b32 v{vAR}, 7, v{vL}
        v_mul_u32_u24 v{vAR}, {OS}, v{vAR}
        v_lshl_add_u32 v{vAR}, v{vT2}, 4, v{vAR}
        v_bfe_u32 v{vT3}, v{vL}, 3, 1
        v_mul_u32_u24 v{vT4}, 192, v{vT3}
        v_add_u32 v{vAR}, v{vAR}, v{vT4}
        v_mul_u32_u24 v24, 0xaaaa, v{vT3}
        v_add_u32 v24, 0x4444, v24
        v_lshl_or_b32 v24, v24, 16, v24
        v_and_b32 v{vT3}, 1, v{vT2}
        v_lshlrev_b32 v{vST}, 5, v{vT1}
        v_lshl_add_u32 v{vST}, v{vT3}, 4, v{vST}
        v_lshrrev_b32 v{vT4}, 5, v{vL}
        v_lshl_add_u32 v{vST}, v{vT4}, 3, v{vST}
        v_lshlrev_b32 v{vT3}, 3, v{vT3}
        s_mul_i32 s9, s7, 2560
        s_lshl_b32 s10, s3, 9
        s_add_u32 s9, s9, s10
        s_waitcnt vmcnt(0) lgkmcnt(0)""")
        if self.ppre == 2:
            a(f"""v_not_b32 v32, v{vTG}
            v_mov_b32 v33, v32
            v_mov_b32 v34, v32
            v_mov_b32 v35, v32
            v_lshlrev_b32 v36, 4, v{vL}
            s_mul_i32 s10, s7, 2560
            s_mul_i32 s11, s3, 640
            s_add_u32 s10, s10, s11
            s_mov_b32 exec_hi, 0xff
            buffer_store_dwordx4 v[32:35], v36, s[56:59], s10 offen sc1
            s_mov_b32 exec_hi, -1
            s_waitcnt vmcnt(0)""")
        self.stamp(5, 60)
        a(f"s_setprio {self.hprio2}")
        a(f"s_mov_b32 s43, {1 if self.dry else 0}")
        for t in range(8):
            a(f"s_mov_b64 s[{80+2*t}:{81+2*t}], -1")
        self.wide_tag()
        a(f"""v_mov_b32 v25, 0xfff
        v_mov_b32 v{vTG}, s96
        v_mov_b32 v{vW}, s97
        s_mov_b32 exec_lo, 0
        v_mov_b32 v{vTG}, s98
        v_mov_b32 v{vW}, s99
        s_mov_b32 exec_lo, -1""")
        a("L_tail:")
        for r in range(32, 64):
            a(f"v_mov_b32 v{r}, 0")
        a("s_cmp_lg_u32 s43, 0\ns_cbranch_scc1 L_nobar\ns_barrier\nL_nobar:")
        if self.stamps == 4:
            a("s_memrealtime s[44:45]")
        AT = [16, 20, 28]
        for kp in range(3):
            a(f"ds_read_b128 v[{AT[kp]}:{AT[kp]+3}], v{vAR} offset:{L_O + 64*kp}")
        a(f"ds_read_b64 v[{vSC}:{vSC+1}], v{vT3} offset:{L_SCALE}")
        def epi(c):
            D = 32 + 4 * c
            return [f"v_add_f32 v{D}, v{D}, v{D+1}", f"v_add_f32 v{D+2}, v{D+2}, v{D+3}",
                    f"v_mul_f32 v{D}, v{D}, v{vSC}", f"v_fmac_f32 v{D}, v{D+2}, v{vSC+1}"]
        order = (0, 2, 1, 3)
        pend = []
        for pi, pr in enumerate(order):
            for kp in range(3):
                if pi == 0:
                    a(f"s_waitcnt lgkmcnt({3-kp})")
                for c in (pr, pr + 4):
                    self.smf(32 + 4 * c, AT[kp], 64 + 64 * kp + 8 * c, 24)
                    if pi >= 2 and (kp >= 1 or pi == 3):
                        for _ in range(2):
                            if pend:
                                a(pend.pop(0))
            if pi == 1:
                a("s_waitcnt lgkmcnt(0)")
                e0, e4 = epi(order[0]), epi(order[0] + 4)
                pend += [e0[0], e0[1], e4[0], e4[1], e0[2], e0[3], e4[2], e4[3]]
            if pi == 2:
                e0, e4 = epi(order[1]), epi(order[1] + 4)
                pend += [e0[0], e0[1], e4[0], e4[1], e0[2], e0[3], e4[2], e4[3],
                         f"v_permlane16_swap_b32 v32, v48", "s_nop 0", "v_add_f32 v32, v32, v48",
                         f"v_permlane16_swap_b32 v40, v56"]
        for x in pend:
            a(x)
        RES = 16
        e1, e5, e3, e7 = epi(1), epi(5), epi(3), epi(7)
        a("v_add_f32 v40, v40, v56")
        for x in (e1[0], e1[1], e5[0], e5[1], e1[2], e1[3], e5[2], e5[3]):
            a(x)
        a("v_permlane32_swap_b32 v32, v40")
        for x in (e3[0], e3[1], e7[0], e7[1]):
            a(x)
        a(f"v_permlane16_swap_b32 v36, v52\nv_add_f32 v{RES}, v32, v40")
        for x in (e3[2], e3[3], e7[2], e7[3]):
            a(x)
        a("v_add_f32 v36, v36, v52")
        self.tag(RES, RES, vTG, rn=12)
        a(f"""v_permlane16_swap_b32 v44, v60
        s_nop 0
        v_add_f32 v44, v44, v60
        s_nop 1
        v_permlane32_swap_b32 v36, v44
        s_nop 0
        v_add_f32 v{RES+1}, v36, v44""")
        self.tag(RES + 1, RES + 1, vW, rn=12)
        if self.wide:
            a(f"""v_permlane32_swap_b32 v{RES}, v{RES+2}
            s_nop 0
            v_permlane32_swap_b32 v{RES+1}, v{RES+3}""")
        a(f"""s_cmp_lg_u32 s43, 0
        s_cbranch_scc1 L_nost
        """)
        if self.wide:
            a(f"""s_mov_b32 exec_hi, 0
            buffer_store_dwordx4 v[{RES}:{RES+3}], v{vST}, s[56:59], s9 offen {self.pst}
            s_mov_b32 exec_hi, -1""")
        else:
            a(f"buffer_store_dwordx2 v[{RES}:{RES+1}], v{vST}, s[56:59], s9 offen {self.pst}")
        self.stamp(7, 20)
        if self.stamps == 4:
            a("s_memrealtime s[46:47]\ns_mov_b64 s[52:53], 0\ns_mov_b64 s[54:55], 0\ns_cmp_lg_u32 s3, 2\ns_cbranch_scc1 L_end\ns_cmp_eq_u32 s68, 0\ns_cbranch_scc1 L_dump")
        a(f"""s_cmp_eq_u32 s68, 0
        s_cbranch_scc1 L_end""")
        Z = 64
        M0 = 80
        a(f"s_mov_b32 s12, {self.poll_max}\nL_pp:")
        for t in range(8):
            sk = self.lab("pl")
            a(f"""s_mov_b64 exec, s[{M0+2*t}:{M0+2*t+1}]
            s_cbranch_execz {sk}
            buffer_load_dwordx4 v[{Z+4*t}:{Z+4*t+3}], v{vPA}, s[56:59], s{70+t} offen {self.pld}
            {sk}:""")
        a("s_mov_b32 s13, 0\ns_waitcnt vmcnt(0)")
        for t in range(8):
            sk = self.lab("pc")
            a(f"""s_mov_b64 exec, s[{M0+2*t}:{M0+2*t+1}]
            s_cbranch_execz {sk}
            v_xor_b32 v{32+4*t}, s96, v{Z+4*t}
            v_xor_b32 v{33+4*t}, s97, v{Z+4*t+1}
            v_xor_b32 v{34+4*t}, s98, v{Z+4*t+2}
            v_xor_b32 v{35+4*t}, s99, v{Z+4*t+3}
            v_or3_b32 v{vCK}, v{32+4*t}, v{33+4*t}, v{34+4*t}
            v_bitop3_b32 v{vCK}, v{vCK}, v{35+4*t}, v25 bitop3:0xa8
            v_cmp_ne_u32 s[{M0+2*t}:{M0+2*t+1}], 0, v{vCK}
            s_bcnt1_i32_b64 s10, s[{M0+2*t}:{M0+2*t+1}]
            s_add_u32 s13, s13, s10
            {sk}:""")
        a(f"""s_mov_b64 exec, -1
        s_cmp_eq_u32 s13, 0
        s_cbranch_scc1 L_nost
        s_cmp_le_u32 s13, {self.pthr}
        s_cbranch_scc1 L_pn
        s_sleep {self.pslow}
        L_pn:
        s_sub_u32 s12, s12, 1
        s_cmp_gt_u32 s12, 0
        s_cbranch_scc1 L_pp
        L_nost:""")
        if self.stamps == 4:
            a("s_memrealtime s[52:53]")
        C = 32
        for st_ in (4, 8, 16):
            for t in range(0, 32, 2 * st_):
                a(f"v_pk_add_f32 v[{C+t}:{C+t+1}], v[{C+t}:{C+t+1}], v[{C+t+st_}:{C+t+st_+1}]")
                a(f"v_pk_add_f32 v[{C+t+2}:{C+t+3}], v[{C+t+2}:{C+t+3}], v[{C+t+st_+2}:{C+t+st_+3}]")
        self.merge4(C)
        self.rbf(C)
        a(f"v_mul_f32 v{C}, v{C}, v{vG}")
        self.rbf(C)
        a(f"""v_add_f32 v{C}, v{C}, v{vXC}
        v_cvt_pk_bf16_f32 v{C}, v{C}, v{C}
        s_cmp_eq_u32 s43, 0
        s_cbranch_scc1 L_fin
        s_mov_b32 s43, 0
        s_branch L_tail
        L_fin:
        s_mov_b32 exec_lo, 0x000f000f
        s_mov_b32 exec_hi, 0x000f000f
        buffer_store_short v{C}, v{vOUTA}, s[60:63], 0 offen {self.ost}""")
        if self.stamps == 4:
            a("s_memrealtime s[54:55]\nL_dump:\ns_sleep 127")
            self.dump = True
            self.stamp(15, 20, src=48)
            self.stamp(6, 20, src=44)
            self.stamp(7, 20, src=46)
            self.stamp(8, 20, src=52)
            self.stamp(9, 20, src=54)
            self.dump = False
        if self.padto:
            if self.padwg >= 0:
                a(f"s_cmp_lg_u32 s2, {self.padwg}\ns_cbranch_scc1 L_end")
            a(f"""L_pad:
            s_memrealtime s[50:51]
            s_waitcnt lgkmcnt(0)
            s_sub_u32 s50, s50, s48
            s_cmp_lt_u32 s50, {self.padto}
            s_cbranch_scc1 L_pad""")
        self.stamp(8, 60)

    def job_compute(self, n, C0, C1, TILES, vA, vACC, vSEL, vTG, vOUT, sOUT, waits):
        a = self.a
        for G in range(n):
            self.buildA(vA, C0 + G // 2, G & 1, vSEL)
            self.buildA(vA + 4, C1 + G // 2, G & 1, vSEL)
            a(f"s_waitcnt vmcnt({n-1-G})\ns_nop 0" if waits else "s_nop 1")
            self.mfma(vACC, vA, TILES + 4 * G, None if G == 0 else vACC)
            self.mfma(vACC + 4, vA + 4, TILES + 4 * G, None if G == 0 else vACC + 4)
        a("s_nop 7")
        for r in range(4):
            a(f"v_permlane32_swap_b32 v{vACC+r}, v{vACC+4+r}")
        a("s_nop 1")
        for r in range(4):
            self.dpp("v_add_f32", vACC + r, vACC + 4 + r, vACC + r, "row_ror:8")
        for r in range(4):
            self.tag(vACC + r, vACC + r, vTG, rn=True, pos=r)
        a(f"""s_mov_b32 exec_lo, 0x00ff00ff
        s_mov_b32 exec_hi, 0x00ff00ff
        buffer_store_dwordx4 v[{vACC}:{vACC+3}], v{vOUT}, s[56:59], {sOUT} offen sc1
        s_mov_b64 exec, -1""")

    def gen_dn(self, vL, vT3, vT4, vT5, vSEL, vTG, vCK, TI):
        a = self.a
        GP = TI + 64
        a(f"""s_mul_hi_u32 s53, s52, {(2**32 + 9)//10}
        s_mul_i32 s54, s53, 10
        s_sub_u32 s54, s52, s54""")
        self.srd(60, 34, 1536 * 1280)
        a(f"""v_lshrrev_b32 v{vT3}, 3, v{vL}
        v_mul_u32_u24 v{vT4}, {16*1280}, v{vT3}
        v_and_b32 v{vT5}, 7, v{vL}
        v_lshl_add_u32 v{vT4}, v{vT5}, 4, v{vT4}
        s_mul_i32 s9, s53, {128*1280}
        s_lshl_b32 s10, s54, 7
        s_add_u32 s9, s9, s10""")
        for G in range(16):
            a(f"buffer_load_dwordx4 v[{TI+4*G}:{TI+4*G+3}], v{vT4}, s[60:63], s9 offen offset:{(G%4)*1280} {self.mf}")
            if G % 4 == 3:
                a(f"s_add_u32 s9, s9, {4*1280}")
                if G == 7:
                    a("s_waitcnt vmcnt(0)")
        a(f"""v_lshrrev_b32 v60, 5, v{vL}
        v_lshlrev_b32 v61, 12, v60
        v_and_b32 v62, 31, v{vL}
        v_lshl_add_u32 v61, v62, 4, v61
        s_lshl_b32 s9, s53, 13
        s_add_u32 s9, s9, {GU_OFF}""")
        self.mpoll([(GP + 4 * t, f"buffer_load_dwordx4 v[{GP+4*t}:{GP+4*t+3}], v61, s[56:59], s9 offen offset:{512*t} sc1") for t in range(8)],
                   vTG, vCK, 32)
        self.sum_quads(GP, 4)
        self.sum_quads(GP + 16, 4)
        for r in range(4):
            self.rbf(GP + r)
            self.rbf(GP + 16 + r)
            self.sigmoid_like(GP + 4, GP + r)
            a(f"v_mul_f32 v{GP+r}, v{GP+r}, v{GP+4}")
            self.rbf(GP + r)
            a(f"v_mul_f32 v{GP+r}, v{GP+r}, v{GP+16+r}")
        a(f"""v_cvt_pk_bf16_f32 v{GP+4}, v{GP}, v{GP+1}
        v_cvt_pk_bf16_f32 v{GP+5}, v{GP+2}, v{GP+3}
        v_bfe_u32 v61, v{vL}, 4, 1
        v_lshlrev_b32 v62, 8, v61
        v_lshl_add_u32 v62, v60, 7, v62
        v_and_b32 v63, 15, v{vL}
        v_lshl_add_u32 v62, v63, 3, v62
        ds_write_b64 v62, v[{GP+4}:{GP+5}] offset:{L_HB}
        v_lshlrev_b32 v{vT3}, 5, v{vT3}
        v_mul_u32_u24 v{vT4}, 2560, v60
        v_lshl_add_u32 v{vT4}, v{vT5}, 5, v{vT4}
        v_lshl_add_u32 v{vT4}, v61, 4, v{vT4}
        s_mul_i32 s9, s53, 5120
        s_lshl_b32 s10, s54, 8
        s_add_u32 s9, s9, s10
        s_add_u32 s9, s9, {Y_OFF}
        s_waitcnt lgkmcnt(0)
        ds_read_b128 v[44:47], v{vT3} offset:{L_HB}
        ds_read_b128 v[48:51], v{vT3} offset:{L_HB+16}
        ds_read_b128 v[52:55], v{vT3} offset:{L_HB+256}
        ds_read_b128 v[56:59], v{vT3} offset:{L_HB+272}
        s_waitcnt lgkmcnt(0)""")
        self.job_compute(16, 44, 52, TI, 28, 36, vSEL, vTG, vT4, "s9", False)
        a("s_waitcnt vmcnt(0)")

    def text(self):
        hdr = open("recurrent_scan__mha_block_cached__moe_arch_mod__decode.s.ref").read().split("; Override launch")[0]
        self.gen()
        return hdr + HDR + f"""; @launch grid=(256,1,1) block=(512,1,1) lds={LDS_BYTES}
.amdgcn_target "amdgcn-amd-amdhsa--gfx950"
.text
.globl {KNAME}
.p2align 8
.type {KNAME},@function
{KNAME}:
""" + "\n".join(self.o) + f"""
.section .rodata,"a"
.p2align 6
.amdhsa_kernel {KNAME}
  .amdhsa_next_free_vgpr 256
  .amdhsa_next_free_sgpr 102
  .amdhsa_accum_offset 256
  .amdhsa_group_segment_fixed_size 0
  .amdhsa_kernarg_size 104
  .amdhsa_user_sgpr_count 2
  .amdhsa_user_sgpr_kernarg_segment_ptr 1
  .amdhsa_system_sgpr_workgroup_id_x 1
  .amdhsa_float_denorm_mode_32 3
.end_amdhsa_kernel
"""


if __name__ == "__main__":
    out = sys.argv[1]
    kw = {}
    for arg in sys.argv[2:]:
        k, v = arg.split("=", 1)
        try:
            v = int(v)
        except ValueError:
            pass
        kw[k] = v
    open(out, "w").write(G(**kw).text())
```

```python
import sys, struct

KNAME = "recurrent_scan__mha_block_cached__moe_arch_mod__decode_kernel"
TB = 201326592
CH = 786432
STEP = 12288

P_OFF = 0
ST_OFF = 256 * 2560
EP_OFF = ST_OFF + 64 * 256
Y_OFF = EP_OFF + 256
QX_OFF = Y_OFF + 12 * 5120
GU_OFF = QX_OFF + 32 * 4 * 2 * 768
TS_OFF = GU_OFF + 192 * 512
WS_USED = TS_OFF + 4 * 32768
STAMP_OFF = 2 << 20
WS_SRD = 4 << 20
assert WS_USED <= STAMP_OFF

L_XN = 0
L_QB = 2560
L_SC = L_QB + 512
OS = 416
L_O = L_SC + 4 * 1152
L_SCALE = L_O + 8 * OS
L_PROG = L_SCALE + 48
L_BOOST = L_SCALE + 52
L_WXOK = L_SCALE + 56
L_HB = L_SCALE + 64
L_STL = L_HB + 512
L_WX = (L_STL + 64 + 1023) // 1024 * 1024
WXS = 1040
L_TM = L_WX + 48 * WXS
LDS_BYTES = L_TM + 64

LOG2E = 0x3fb8aa3b
SCALE_F32 = 0x3d93cd3a
assert struct.unpack("<I", struct.pack("<f", 192 ** -0.5))[0] == SCALE_F32
def f32(x): return "0x%08x" % struct.unpack("<I", struct.pack("<f", x))[0]
NLOG2E = f32(-1.4426950408889634)

sWAVE, sH, sB, sSPLIT, sCHUNK, sBH = 3, 4, 5, 6, 7, 8
sT = 78
sMASK = 79
sWV = 69


HDR = '''; ---------------------------------------------------------------------------------------------
; Design (one launch, 256 workgroups of 8 waves, one per CU; workgroup = (batch b, head h, split)):
; ---------------------------------------------------------------------------------------------
'''


class G:
    def __init__(self, R0=16, R1=8, W=4, W0=3, kvflags="nt", wflags="nt", woflags="pl", moeflags="nt", rot=1, stamps=0,
                 poll_max=1 << 18, hprio=3, hprio1=0, hprio2=3, wobatch=8, nowo=0, nomoe=0, noq=0, nob0=0, D=2, GI=4, early=0, nok=0, nopoll=0, hskip=0, stsleep=16, DV=0, earlyV=-1, D0=0, hsleep=0, diagx=0, padto=0, padwg=-1, qsleep=0, psleep=0, NE=0, DE=4, qsleep2=0, NB=0, ctl=1, cps='1,5,8', gains='9,7,7', dead=30, cdelay='48,32,16', gb=0, brk=1, mix=1, kboost=-1, pre=2, wosleep=0, dry=1, pthr=32, pslow=8, pcap=24, pst='sc1', pld='sc1', ppre=0, trace=0, pq=0, spre=0, wide=1, VD=3, brd=6, ost='pl', tlb=0, stride=1, team=0, excl=0, diag=0):
        self.diag = diag
        self.excl = excl
        self.team = team
        self.stride = stride
        self.tlb = tlb
        self.ost = '' if ost == 'pl' else ost.replace('_', ' ')
        self.VD, self.brd = VD, brd
        self.wide = wide
        self.spre = spre
        self.pq = pq
        self.trace = trace
        self.pst, self.pld, self.ppre = pst.replace('_', ' '), pld.replace('_', ' '), ppre
        self.dry, self.pthr, self.pslow, self.pcap = dry, pthr, pslow, pcap
        self.kboost, self.pre, self.wosleep = kboost, pre, wosleep
        self.gb, self.brk, self.mix = gb, brk, mix
        self.ctl = ctl
        self.NB = NB
        self.cps = [int(x) for x in str(cps).split(',')]
        self.gains = [float(x) for x in str(gains).split(',')]
        self.dead = dead
        self.cdelay = [int(x) for x in str(cdelay).split(',')]
        self.NE, self.DE, self.qsleep2 = NE, DE, qsleep2
        self.qsleep, self.psleep = qsleep, psleep
        self.padwg = padwg
        self.padto = padto
        self.diagx = diagx
        self.DV = DV or D
        self.earlyV = early if earlyV < 0 else earlyV
        self.D0 = D0 or D
        self.hsleep = hsleep
        self.nok, self.nopoll, self.hskip, self.stsleep = nok, nopoll, hskip, stsleep
        self.D, self.GI, self.early = D, GI, early
        self.nowo, self.nomoe, self.noq, self.nob0 = nowo, nomoe, noq, nob0
        self.hprio1, self.hprio2 = hprio1, hprio2
        self.o = []
        self.R0, self.R1, self.W, self.W0 = R0, R1, W, W0
        fl = lambda x: '' if x == 'pl' else x.replace('_', ' ')
        self.kvf, self.wf, self.mf = fl(kvflags), fl(wflags), fl(moeflags)
        self.wof = fl(woflags)
        self.rot = rot
        self.stamps = stamps
        self.poll_max = poll_max
        self.hprio = hprio
        self.wobatch = wobatch
        self.nlab = 0

    def a(self, s):
        for ln in s.split("\n"):
            ln = ln.strip()
            if ln:
                self.o.append(("" if ln.endswith(":") else "    ") + ln)

    def lab(self, p="L"):
        self.nlab += 1
        return f"{p}_{self.nlab}"

    def srd(self, q, lo, nbytes):
        self.a(f"s_mov_b32 s{q}, s{lo}\ns_mov_b32 s{q+1}, s{lo+1}\ns_mov_b32 s{q+2}, {nbytes}\ns_mov_b32 s{q+3}, 0x20000")

    def dpp(self, op, d, s0, s1, ctrl):
        self.a(f"{op}_dpp v{d}, v{s0}, v{s1} {ctrl} row_mask:0xf bank_mask:0xf")

    def row_reduce(self, op, v, steps=(1, 2, 4, 8)):
        for s in steps:
            self.a("s_nop 1")
            self.dpp(op, v, v, v, f"row_ror:{s}")

    def swap_reduce(self, op, v, t, which):
        self.a(f"v_mov_b32 v{t}, v{v}\ns_nop 1\nv_permlane{which}_swap_b32 v{v}, v{t}\ns_nop 1\n{op} v{v}, v{v}, v{t}")

    def stamp(self, idx, vt, st=50, src=None):
        if not self.stamps:
            return
        if self.stamps == 3 and (self.cls == "H" or idx in (0, 1, 2, 3, 4)):
            return
        if self.stamps == 4 and not getattr(self, "dump", False):
            return
        if src is None:
            self.a(f"s_memrealtime s[{st}:{st+1}]")
            src = st
        if self.stamps == 2:
            slot = (idx if idx < 15 else 0) + (1 if self.cls == "S" else 7)
            if self.cls == "H" and idx not in (1, 2, 4, 7, 8):
                return
            if self.cls == "H":
                slot = {1: 8, 2: 9, 4: 10, 7: 11, 8: 12}[idx]
            elif idx == 15:
                slot = 1
            else:
                slot = 2 + idx
            inv = f"s_mov_b32 s65, s{src}"
            Lsk = self.lab("sk")
            if not (self.cls == "H" and idx == 8):
                self.a(f"""s_waitcnt lgkmcnt(0)
                s_cmp_lg_u32 s2, 0
                s_cbranch_scc1 {Lsk}""")
            self.a(f"""s_waitcnt lgkmcnt(0)
            {inv}
            v_mov_b32 v{vt}, s65
            v_mov_b32 v{vt+2}, {slot*4}
            s_mov_b64 exec, 1
            global_atomic_umax v{vt+2}, v{vt}, s[38:39] sc1
            s_mov_b64 exec, -1
            {Lsk}:""")
            return
        self.a(f"""s_lshl_b32 s65, s2, 3
        s_add_u32 s65, s65, s{sWV}
        s_lshl_b32 s65, s65, 7
        s_add_u32 s65, s65, {STAMP_OFF + idx*8}
        s_waitcnt lgkmcnt(0)
        v_mov_b32 v{vt}, s{src}
        v_mov_b32 v{vt+1}, s{src+1}
        v_mov_b32 v{vt+2}, 0
        s_mov_b64 exec, 1
        buffer_store_dwordx2 v[{vt}:{vt+1}], v{vt+2}, s[56:59], s65 offen
        s_mov_b64 exec, -1""")

    def selectors(self, vL, base, t0, t1, t2):
        a = self.a
        a(f"""v_and_b32 v{t0}, 1, v{vL}
        v_cmp_eq_u32 vcc, 1, v{t0}
        v_mov_b32 v{t0}, 0x0c0c0100
        v_mov_b32 v{t1}, 0x01000c0c
        v_cndmask_b32 v{t0}, v{t0}, v{t1}, vcc
        v_mov_b32 v{t1}, 0x0c0c0302
        v_mov_b32 v{t2}, 0x03020c0c
        v_cndmask_b32 v{t1}, v{t1}, v{t2}, vcc
        v_bfe_u32 v{t2}, v{vL}, 1, 2""")
        for j in range(4):
            a(f"""v_cmp_eq_u32 vcc, {j}, v{t2}
            v_mov_b32 v{base+j}, 0x0c0c0c0c
            v_mov_b32 v{base+4+j}, 0x0c0c0c0c
            v_cndmask_b32 v{base+j}, v{base+j}, v{t0}, vcc
            v_cndmask_b32 v{base+4+j}, v{base+4+j}, v{t1}, vcc""")

    def buildA(self, A, P, hi, sel):
        for j in range(4):
            self.a(f"v_perm_b32 v{A+j}, v{P}, v{P}, v{sel + (4 if hi else 0) + j}")

    def mfma(self, D, A, B, C):
        c = "0" if C is None else f"v[{C}:{C+3}]"
        self.a(f"v_mfma_f32_16x16x32_bf16 v[{D}:{D+3}], v[{A}:{A+3}], v[{B}:{B+3}], {c}")

    def smf(self, D, A, B, IDX):
        self.a(f"v_smfmac_f32_16x16x64_bf16 v[{D}:{D+3}], v[{A}:{A+3}], v[{B}:{B+7}], v{IDX}")

    def rbf(self, v):
        self.a(f"v_cvt_pk_bf16_f32 v{v}, v{v}, v{v}\nv_lshlrev_b32 v{v}, 16, v{v}")

    def tag(self, d, s, vTG, rn=False, pos=None):
        if rn:
            self.a(f"v_add_u32 v{d}, {0x800 if rn == 12 else 8}, v{s}")
            s = d
        if pos is None:
            self.a(f"v_and_or_b32 v{d}, v{s}, s{sMASK}, v{vTG}")
        else:
            self.a(f"v_bfi_b32 v{d}, v{vTG}, s{96+pos}, v{s}")

    def chk4(self, acc, x, vTG, first=False, n=4, full=False):
        for r in range(n):
            if full:
                self.a(f"v_xor_b32 v{x+r}, v{x+r}, v{vTG}")
            else:
                self.a(f"v_xor_b32 v{x+r}, s{96 + r % 4}, v{x+r}")
        for r in range(0, n, 2):
            if first and r == 0:
                self.a(f"v_or_b32 v{acc}, v{x}, v{x+1}")
            else:
                self.a(f"v_or3_b32 v{acc}, v{x+r}, v{x+r+1}, v{acc}")

    def poll_tail(self, acc, Lretry, Ldone, sleep):
        self.a(f"""v_and_b32 v{acc}, 0xff, v{acc}
        v_cmp_ne_u32 vcc, 0, v{acc}
        s_cbranch_vccz {Ldone}""")
        if sleep:
            self.a(f"s_sleep {sleep}")
        self.a(f"""s_sub_u32 s12, s12, 1
        s_cmp_gt_u32 s12, 0
        s_cbranch_scc1 {Lretry}
        {Ldone}:""")

    def mpoll(self, loads, vTG, vCK, sleep, mask=None, nd=4, M0=80):
        a = self.a
        L, Ld = self.lab("mp"), self.lab("mpd")
        for t in range(len(loads)):
            if mask is None:
                a(f"s_mov_b64 s[{M0+2*t}:{M0+2*t+1}], -1")
            else:
                a(f"s_mov_b32 s{M0+2*t}, {mask[0]}\ns_mov_b32 s{M0+2*t+1}, {mask[1]}")
        a(f"s_mov_b32 s12, {self.poll_max}\n{L}:")
        for t, (r, txt) in enumerate(loads):
            sk = self.lab("ml")
            a(f"s_mov_b64 exec, s[{M0+2*t}:{M0+2*t+1}]\ns_cbranch_execz {sk}\n{txt}\n{sk}:")
        a("s_mov_b64 s[100:101], 0\ns_waitcnt vmcnt(0)")
        for t, (r, txt) in enumerate(loads):
            sk = self.lab("mc")
            a(f"s_mov_b64 exec, s[{M0+2*t}:{M0+2*t+1}]\ns_cbranch_execz {sk}")
            self.chk4(vCK, r, vTG, first=True, n=nd)
            a(f"""v_and_b32 v{vCK}, 15, v{vCK}
            v_cmp_ne_u32 vcc, 0, v{vCK}
            s_cmp_lg_u64 vcc, 0
            s_cselect_b64 s[{M0+2*t}:{M0+2*t+1}], s[{M0+2*t}:{M0+2*t+1}], 0
            s_or_b64 s[100:101], s[100:101], s[{M0+2*t}:{M0+2*t+1}]
            {sk}:""")
        a(f"""s_mov_b64 exec, -1
        s_cmp_eq_u64 s[100:101], 0
        s_cbranch_scc1 {Ld}""")
        if sleep:
            a(f"s_sleep {sleep}")
        a(f"""s_sub_u32 s12, s12, 1
        s_cmp_gt_u32 s12, 0
        s_cbranch_scc1 {L}
        {Ld}:""")

    def decide(self, v, t, ci, vZ0):
        self.a(f"""v_add_f32 v{t}, {f32(float(self.dead))}, v{v}
        v_mul_f32 v{t}, {f32(self.gb / 100.0)}, v{t}
        v_min_f32 v{t}, 0, v{t}
        v_subrev_f32 v{v}, {f32(float(self.dead))}, v{v}
        v_mul_f32 v{v}, {f32(self.gains[ci] / 100.0)}, v{v}
        v_max_f32 v{v}, 0, v{v}
        v_add_f32 v{v}, v{v}, v{t}
        v_min_f32 v{v}, 64.0, v{v}
        v_max_f32 v{v}, {f32(-24.0)}, v{v}
        v_cvt_i32_f32 v{v}, v{v}
        v_and_b32 v{v}, 0xffff, v{v}
        v_or_b32 v{v}, {(ci+1) << 16}, v{v}
        ds_write_b32 v{vZ0}, v{v} offset:{L_BOOST}""")

    def sum_quads(self, X, n):
        for t in range(1, n):
            self.a(f"v_pk_add_f32 v[{X}:{X+1}], v[{X}:{X+1}], v[{X+4*t}:{X+4*t+1}]")
            self.a(f"v_pk_add_f32 v[{X+2}:{X+3}], v[{X+2}:{X+3}], v[{X+4*t+2}:{X+4*t+3}]")

    def merge4(self, X):
        a = self.a
        a(f"""s_nop 1
        v_permlane16_swap_b32 v{X}, v{X+1}
        v_permlane16_swap_b32 v{X+2}, v{X+3}
        s_nop 1
        v_add_f32 v{X}, v{X}, v{X+1}
        v_add_f32 v{X+2}, v{X+2}, v{X+3}
        s_nop 1
        v_permlane32_swap_b32 v{X}, v{X+2}
        s_nop 1
        v_add_f32 v{X}, v{X}, v{X+2}""")
        self.row_reduce("v_add_f32", X, steps=(4, 8))

    def sigmoid_like(self, d, x):
        self.a(f"""v_mul_f32 v{d}, {NLOG2E}, v{x}
        v_exp_f32 v{d}, v{d}
        s_nop 0
        v_add_f32 v{d}, 1.0, v{d}
        v_rcp_f32 v{d}, v{d}
        s_nop 0""")

    def rotcode(self):
        if self.rot < 100:
            return f"s_mul_i32 s9, s7, {self.rot}"
        if self.rot == 100:
            return "s_lshr_b32 s9, s2, 3\ns_lshl_b32 s11, s2, 5\ns_add_u32 s9, s9, s11"
        if self.rot == 101:
            return "s_lshl_b32 s9, s5, 4\ns_add_u32 s9, s9, s7"
        if self.rot == 102:
            return "s_lshr_b32 s9, s7, 6\ns_mul_i32 s9, s9, 17\ns_add_u32 s9, s9, s7"
        raise ValueError

    def wide_tag(self):
        self.a(f"""s_mov_b32 s{sMASK}, 0xfffff000
        s_mul_i32 s10, s{sT}, 0x9e3779b1
        s_and_b32 s96, s{sT}, 0xfff
        s_bfe_u32 s97, s10, 0xc0008
        s_lshr_b32 s98, s10, 20
        s_mul_i32 s10, s{sT}, 0x85ebca6b
        s_lshr_b32 s99, s10, 20""")

    def epoch_load(self):
        self.a(f"s_load_dword s{sT}, s[40:41], {EP_OFF}")

    def epoch_use(self, vTG):
        self.a(f"""s_lshr_b32 s9, s0, 4
        s_lshl_b32 s9, s9, 8
        s_add_u32 s{sT}, s{sT}, s9
        s_add_u32 s{sT}, s{sT}, 1
        s_mul_i32 s9, s{sT}, 0x9e3779b1
        s_and_b32 s96, s{sT}, 15
        s_bfe_u32 s97, s9, 0x40014
        s_bfe_u32 s98, s9, 0x40018
        s_lshr_b32 s99, s9, 28
        v_mov_b32 v{vTG}, 15""")

    def gen(self):
        a = self.a
        a(f"""s_cmp_ge_u32 s2, 256
        s_cbranch_scc1 L_end
        s_load_dwordx16 s[16:31], s[0:1], 0
        s_load_dwordx8 s[32:39], s[0:1], 64
        s_load_dwordx2 s[40:41], s[0:1], 96""")
        if self.stamps or self.padto or self.trace:
            a("s_memrealtime s[48:49]")
        a(f"""v_lshrrev_b32 v1, 6, v0
        v_and_b32 v0, 63, v0
        v_readfirstlane_b32 s3, v1
        s_and_b32 s9, s2, 7
        s_lshr_b32 s10, s2, 3
        s_lshl_b32 s4, s9, 2
        s_lshr_b32 s11, s10, 3
        s_add_u32 s4, s4, s11
        s_bfe_u32 s5, s10, 0x10002
        s_and_b32 s6, s10, 3
        s_lshl_b32 s8, s5, 5
        s_add_u32 s8, s8, s4
        s_lshl_b32 s7, s8, 2
        s_add_u32 s7, s7, s6
        s_mov_b32 s{sWV}, s3
        s_cmp_ge_u32 s3, 4
        s_cbranch_scc1 L_H""")
        self.gen_S()
        a("L_H:")
        a("; ================= H waves =================")
        self.gen_H()
        a("L_end:\ns_endpgm")

    def gen_S(self):
        self.cls = "S"
        a = self.a
        R0, D, GI = self.R0, self.D, self.GI
        RS = {2: 4, 3: 6}[D]
        R1 = 4
        DV = self.DV
        RSV = {2: 4, 3: 6}[DV]
        D0 = self.D0
        assert (64 - R0) % RS == 0
        NITK = (64 - R0) // RS
        W = 6
        vL = 0
        vOFF, vSCW, vSCR, vT0, vT1, vT2, vT3, vOW = 1, 2, 3, 4, 5, 6, 7, 8
        vA0, vA1, vTG = 9, 10, 11
        vQ = 12
        vSEL = 24
        vACC = 32
        vA = 44
        vP = 52
        RING = 64
        assert RING + R0 * 12 <= 256
        sOFF, sBEG, sEND, sIT, sCNT = 42, 43, 64, 66, 65
        a(f"""v_lshrrev_b32 v{vT0}, 3, v{vL}
        v_and_b32 v{vT1}, 7, v{vL}
        v_mul_u32_u24 v{vOFF}, 384, v{vT0}
        v_lshl_add_u32 v{vOFF}, v{vT1}, 4, v{vOFF}
        s_mul_i32 s9, s3, 3072""")
        if GI == 4:
            stepb = 4 * STEP
            a(f"""s_mul_i32 s11, s6, {STEP}
            s_add_u32 s9, s9, s11
            s_mul_i32 s{sBEG}, s8, {4*CH}
            s_add_u32 s{sEND}, s{sBEG}, {4*CH}
            v_add_u32 v{vOFF}, s9, v{vOFF}
            s_mul_i32 s9, s8, {self.rot}""")
        else:
            stepb = STEP
            a(f"""v_add_u32 v{vOFF}, s9, v{vOFF}
            s_mul_i32 s{sBEG}, s7, {CH}
            s_add_u32 s{sEND}, s{sBEG}, {CH}
            {self.rotcode()}""")
        a(f"""s_and_b32 s9, s9, 63
        s_mul_i32 s9, s9, {stepb}
        s_add_u32 s{sOFF}, s{sBEG}, s9
        s_waitcnt lgkmcnt(0)""")
        self.srd(52, 18, TB)
        vTR = 59
        def tr():
            if self.trace:
                a(f"""s_memrealtime s[80:81]
                s_waitcnt lgkmcnt(0)
                v_writelane_b32 v{vTR}, s80, m0
                s_add_u32 m0, m0, 1""")
        if self.trace:
            a(f"s_mov_b32 m0, 1\nv_mov_b32 v{vTR}, 0\nv_writelane_b32 v{vTR}, s48, 0")
        self.fs = []
        def fstamp():
            if self.stamps == 3 and len(self.fs) < 9:
                r = 80 + 2 * len(self.fs)
                a(f"s_memrealtime s[{r}:{r+1}]")
                self.fs.append(r)
        fstamp()

        def load(slot, sw=None):
            for j in range(3):
                r = RING + (slot * 3 + j) * 4
                a(f"buffer_load_dwordx4 v[{r}:{r+3}], v{vOFF}, s[52:55], s{sOFF} offen offset:{128*j} {self.kvf}")
            if self.stride == 1:
                a(f"""s_add_u32 s{sOFF}, s{sOFF}, {stepb}
                s_cmp_ge_u32 s{sOFF}, s{sEND}
                s_cselect_b32 s{sOFF}, s{sBEG}, s{sOFF}""")
            else:
                a(f"""s_add_u32 s{sOFF}, s{sOFF}, {stepb*self.stride}
                s_sub_u32 s68, s{sOFF}, {64*stepb}
                s_cmp_ge_u32 s{sOFF}, s{sEND}
                s_cselect_b32 s{sOFF}, s68, s{sOFF}""")
            if sw == "kv":
                a(f"""s_cmp_eq_u32 s{sIT}, {NITK-1}
                s_cselect_b32 s52, s20, s52
                s_cselect_b32 s53, s21, s53""")
            elif sw is not None:
                a(f"""s_cmp_eq_u32 s{sIT}, {sw}
                s_cselect_b32 s54, 0, s54""")
        thr = 3 * (D - 1) + self.early
        for s in range(D0):
            load(s)
        self.epoch_load()
        self.srd(56, 40, WS_SRD)
        self.selectors(vL, vSEL, vT2, vT3, vOW)
        a(f"""s_mul_i32 s9, s3, 1152
        s_add_u32 s9, s9, {L_SC}
        v_mul_u32_u24 v{vSCW}, 144, v{vT0}
        v_add_u32 v{vSCW}, s9, v{vSCW}
        v_mov_b32 v{vSCR}, v{vSCW}""")
        a(f"""v_lshrrev_b32 v{vT2}, 5, v{vL}
        s_lshl_b32 s9, s3, 1
        v_add_u32 v{vT2}, s9, v{vT2}
        v_mul_u32_u24 v{vOW}, {OS}, v{vT2}
        v_lshl_add_u32 v{vOW}, v{vT1}, 3, v{vOW}
        v_bfe_u32 v{vT2}, v{vL}, 4, 1
        v_lshl_add_u32 v{vOW}, v{vT2}, 2, v{vOW}
        v_add_u32 v{vOW}, {L_O}, v{vOW}
        v_lshlrev_b32 v{vT2}, 4, v{vT1}""")
        for s in range(D0, R0):
            a(f"s_waitcnt vmcnt({3*(D0-1)})")
            if s in (2, 3, 4, 6, 8, 10, 12, 14):
                fstamp()
            if s % 4 == 0:
                tr()
            load(s)
        a("s_waitcnt lgkmcnt(0)")
        self.epoch_use(vTG)
        self.stamp(15, vA, src=48)
        self.stamp(0, vA)
        if self.diag:
            a("s_memrealtime s[82:83]\ns_waitcnt lgkmcnt(0)")
        a("s_barrier")
        if self.diag:
            a(f"""s_memrealtime s[84:85]
            s_waitcnt lgkmcnt(0)
            s_sub_u32 s86, s84, s82
            s_sub_u32 s87, s84, s48
            s_sub_u32 s88, s82, s48""")
        self.stamp(1, vA)
        for j in range(3):
            a(f"ds_read_b128 v[{vQ+4*j}:{vQ+4*j+3}], v{vT2} offset:{L_QB + 128*j}")
        a(f"s_mov_b32 s{sIT}, 0\ns_mov_b32 s10, {SCALE_F32}\ns_waitcnt lgkmcnt(0)")

        sUSED, sTGT = 44, 45
        def throttle(dist=3):
            Lb, Lc = self.lab("bo"), self.lab("bc")
            a(f"""s_waitcnt vmcnt({3*(dist-1)})
            s_cmp_gt_i32 s{sUSED}, 0
            s_cbranch_scc1 {Lb}
            s_waitcnt vmcnt(3)
            s_cmp_eq_u32 s{sUSED}, 0
            s_cbranch_scc1 {Lc}
            s_waitcnt vmcnt({self.brk})
            s_add_i32 s{sUSED}, s{sUSED}, 2
            {Lb}:
            s_sub_i32 s{sUSED}, s{sUSED}, 1
            {Lc}:""")
        def kpair(s, off):
            ra, rb = RING + s * 12, RING + (s + 1) * 12
            for i in range(12):
                c0 = "0" if i == 0 else f"v{vA0}"
                c1 = "0" if i == 0 else f"v{vA1}"
                a(f"v_dot2_f32_bf16 v{vA0}, v{ra+i}, v{vQ+i}, {c0}")
                a(f"v_dot2_f32_bf16 v{vA1}, v{rb+i}, v{vQ+i}, {c1}")
            a("s_nop 2")
            self.dpp("v_add_f32", vA0, vA0, vA0, "quad_perm:[1,0,3,2]")
            self.dpp("v_add_f32", vA1, vA1, vA1, "quad_perm:[1,0,3,2]")
            a("s_nop 0")
            self.dpp("v_add_f32", vA0, vA0, vA0, "quad_perm:[2,3,0,1]")
            self.dpp("v_add_f32", vA1, vA1, vA1, "quad_perm:[2,3,0,1]")
            a("s_nop 0")
            self.dpp("v_add_f32", vA0, vA0, vA0, "row_half_mirror")
            self.dpp("v_add_f32", vA1, vA1, vA1, "row_half_mirror")
            a(f"""v_cvt_pk_bf16_f32 v{vT2}, v{vA0}, v{vA1}
            v_lshlrev_b32 v{vA0}, 16, v{vT2}
            v_and_b32 v{vA1}, 0xffff0000, v{vT2}
            v_mul_f32 v{vA0}, s10, v{vA0}
            v_mul_f32 v{vA1}, s10, v{vA1}
            v_cvt_pk_bf16_f32 v{vT2}, v{vA0}, v{vA1}
            ds_write_b32 v{vSCW}, v{vT2} offset:{off}""")
        npairs = R0 // 2
        issue_after = {0: 0, 3: 1} if D == 2 else {0: 0, 2: 1, 4: 2}
        issued = 0
        for p in range(npairs):
            a(f"s_waitcnt vmcnt({3 * ((R0 - 2*p - 2) + issued)})")
            kpair(2 * p, p * 4)
            if p in issue_after:
                a(f"s_waitcnt vmcnt({thr})")
                load(issue_after[p])
                issued += 1
        a(f"v_add_u32 v{vSCW}, {2*R0}, v{vSCW}")
        if self.kboost >= 0:
            assert D == 3
            a(f"s_mov_b32 s{sUSED}, {self.kboost}")
        a("L_kloop:")
        tr()
        for s in range(RS):
            if self.kboost >= 0:
                throttle()
            else:
                a(f"s_waitcnt vmcnt({thr})")
            load((s + D) % RS, "kv" if s == RS - D - 1 else None)
            if s & 1:
                if self.early:
                    a(f"s_waitcnt vmcnt({3*D})")
                if not self.nok:
                    kpair(s - 1, (s // 2) * 4)
        a(f"""v_add_u32 v{vSCW}, {2*RS}, v{vSCW}
        s_add_u32 s{sIT}, s{sIT}, 1
        s_cmp_lt_u32 s{sIT}, {NITK}
        s_cbranch_scc1 L_kloop""")
        for s in range(D, R1):
            load(s)
        self.stamp(2, vA)
        tr()
        F = 32
        a(f"""v_lshl_add_u32 v{vT2}, v{vT1}, 4, v{vSCR}
        s_memrealtime s[46:47]
        s_waitcnt lgkmcnt(0)
        ds_read_b128 v[40:43], v{vT2}
        s_waitcnt lgkmcnt(0)""")
        for i in range(4):
            a(f"v_lshlrev_b32 v{F+2*i}, 16, v{40+i}\nv_and_b32 v{F+2*i+1}, 0xffff0000, v{40+i}")
        a(f"""v_max3_f32 v{vA0}, v{F}, v{F+1}, v{F+2}
        v_max3_f32 v{vA0}, v{vA0}, v{F+3}, v{F+4}
        v_max3_f32 v{vA0}, v{vA0}, v{F+5}, v{F+6}
        v_max_f32 v{vA0}, v{vA0}, v{F+7}""")
        self.row_reduce("v_max_f32", vA0)
        self.swap_reduce("v_max_f32", vA0, vT3, 16)
        self.swap_reduce("v_max_f32", vA0, vT3, 32)
        for i in range(8):
            a(f"v_sub_f32 v{F+i}, v{F+i}, v{vA0}\nv_mul_f32 v{F+i}, {LOG2E}, v{F+i}")
        for i in range(8):
            a(f"v_exp_f32 v{F+i}, v{F+i}")
        a("s_nop 0")
        a(f"v_add_f32 v{vA1}, v{F}, v{F+1}")
        for i in range(2, 8):
            a(f"v_add_f32 v{vA1}, v{vA1}, v{F+i}")
        for i in range(4):
            a(f"v_cvt_pk_bf16_f32 v{40+i}, v{F+2*i}, v{F+2*i+1}")
        a(f"ds_write_b128 v{vT2}, v[40:43]")
        self.row_reduce("v_add_f32", vA1)
        self.swap_reduce("v_add_f32", vA1, vT3, 16)
        self.swap_reduce("v_add_f32", vA1, vT3, 32)
        a("s_waitcnt lgkmcnt(0)")
        def pread(n):
            if n == 2: a(f"ds_read_b64 v[{vP}:{vP+1}], v{vSCR}")
            elif n == 3: a(f"ds_read_b32 v{vP}, v{vSCR}\nds_read_b32 v{vP+1}, v{vSCR} offset:4\nds_read_b32 v{vP+2}, v{vSCR} offset:8")
            else: raise ValueError(n)
            a(f"v_add_u32 v{vSCR}, {4*n}, v{vSCR}")
        pread(R1 // 2)
        self.tag(44, vA0, vTG, pos=0)
        self.tag(45, vA1, vTG, pos=1)
        if self.diagx:
            a(f"s_getreg_b32 s9, hwreg(HW_REG_XCC_ID, 0, 4)\ns_lshl_b32 s9, s9, 8\nv_or_b32 v44, s9, v44")
        a(f"""v_mov_b32 v46, s{sT}
        v_mov_b32 v47, s46
        s_lshl_b32 s9, s3, 4
        v_mov_b32 v{vA0}, s9
        s_mov_b64 exec, 1
        ds_write_b128 v{vA0}, v[44:47] offset:{L_STL}
        s_mov_b64 exec, -1""")
        if self.diag:
            src = {1: "s86", 2: "s87", 3: "s89", 4: "s88"}[self.diag]
            a(f"""s_sub_u32 s89, s46, s48
            v_mov_b32 v60, {src}
            v_mov_b32 v61, 0
            ds_write_b32 v61, v60 offset:{L_TM + 48}""")
        self.wide_tag()
        a(f"""v_mov_b32 v{vTG}, s96
        s_mov_b32 exec_lo, 0x22222222
        v_mov_b32 v{vTG}, s97
        s_mov_b32 exec_lo, 0x44444444
        v_mov_b32 v{vTG}, s98
        s_mov_b32 exec_lo, 0x88888888
        v_mov_b32 v{vTG}, s99
        s_mov_b32 exec_lo, -1""")
        for i in range(12):
            a(f"v_mov_b32 v{vACC+i}, 0")
        a(f"s_mov_b32 s{sIT}, 0\ns_waitcnt lgkmcnt(0)")
        a(f"""v_and_b32 v{vT0}, 7, v{vL}
        v_mul_u32_u24 v{vT0}, {OS}, v{vT0}
        v_lshrrev_b32 v{vT1}, 4, v{vL}
        v_lshl_add_u32 v{vT0}, v{vT1}, 4, v{vT0}
        v_bfe_u32 v{vT2}, v{vL}, 3, 1
        v_mul_u32_u24 v{vT3}, 192, v{vT2}
        v_add_u32 v{vT0}, v{vT0}, v{vT3}
        v_mul_u32_u24 v18, 0xaaaa, v{vT2}
        v_add_u32 v18, 0x4444, v18
        v_lshl_or_b32 v18, v18, 16, v18
        v_and_b32 v{vT2}, 1, v{vT1}
        v_and_b32 v{vT3}, 31, v{vL}
        v_lshlrev_b32 v{vT3}, 2, v{vT3}
        v_lshlrev_b32 v{vT2}, 3, v{vT2}
        v_lshlrev_b32 v{vT1}, 8, v{vT1}
        v_bfe_u32 v{vA0}, v{vL}, 3, 1
        v_lshl_add_u32 v{vT1}, v{vA0}, 4, v{vT1}
        v_and_b32 v{vA0}, 7, v{vL}
        v_mul_u32_u24 v{vA0}, {WXS}, v{vA0}
        s_lshl_b32 s9, s3, 6
        s_add_u32 s9, s9, {L_WX}
        v_add3_u32 v{vT1}, v{vT1}, v{vA0}, s9
        s_mul_i32 s9, s7, 2560
        s_lshl_b32 s11, s3, 7
        s_add_u32 s9, s9, s11
        s_add_u32 s9, s9, {P_OFF + 2048}
        s_mov_b32 s67, s9""")
        self.stamp(3, 60)
        tr()

        def vmf(g, slot):
            A = vA + 4 * ((g + 1) & 1)
            for j in range(3):
                self.mfma(vACC + 4 * j, A, RING + (slot * 3 + j) * 4, vACC + 4 * j)
        def vA_(g):
            self.buildA(vA + 4 * ((g + 1) & 1), vP + g // 2, g & 1, vSEL)
        NE, DE = self.NE, self.DE
        RSV = 6
        VD_ = self.VD
        sUSED, sTGT = 44, 45
        vZ, vB = 62, 63
        assert (64 - R1 - NE) % RSV == 0 and NE == 12
        NITV = (64 - R1 - NE) // RSV
        def prog(val):
            L = self.lab("pg")
            a(f"""s_cmp_lg_u32 s3, 0
            s_cbranch_scc1 {L}
            v_mov_b32 v{vB}, {val}
            v_lshlrev_b32 v60, 2, v{vB}
            v_mov_b32 v61, s46
            ds_write_b32 v60, v61 offset:{L_TM}
            ds_write_b32 v{vZ}, v{vB} offset:{L_PROG}
            {L}:""")
        a(f"v_mov_b32 v{vZ}, 0\ns_mov_b32 s{sUSED}, 0\ns_mov_b32 s{sTGT}, 0")
        prog(1)
        issued = 0
        for g in range(R1):
            vA_(g)
            if g == R1 - 1:
                pread(3)
                a(f"ds_read_b32 v{vB}, v{vZ} offset:{L_BOOST}")
            if g >= 4 - VD_:
                a(f"s_waitcnt vmcnt(3)")
                load((R1 + issued) % RSV)
                issued += 1
            else:
                a(f"s_waitcnt vmcnt({3*(R1 - g - 1)})\ns_nop 0")
            vmf(g, g)
        a(f"""L_vloop:
        s_memrealtime s[46:47]
        s_waitcnt lgkmcnt(0)
        v_readfirstlane_b32 s9, v{vB}
        s_sext_i32_i16 s11, s9
        s_cmp_lg_u32 s9, s{sTGT}
        s_cselect_b32 s{sUSED}, s11, s{sUSED}
        s_mov_b32 s{sTGT}, s9
        s_add_u32 s9, s{sIT}, 2""")
        prog("s9")
        tr()
        for s in range(RSV):
            slot = (R1 + s) % RSV
            vA_(s)
            if s == RSV - 1:
                pread(3)
                a(f"ds_read_b32 v{vB}, v{vZ} offset:{L_BOOST}")
            if self.brd == 3 and s == 2:
                a(f"ds_read_b32 v{vB}, v{vZ} offset:{L_BOOST}")
            if self.brd == 3 and s == 3:
                a(f"""s_waitcnt lgkmcnt(0)
                v_readfirstlane_b32 s9, v{vB}
                s_sext_i32_i16 s11, s9
                s_cmp_lg_u32 s9, s{sTGT}
                s_cselect_b32 s{sUSED}, s11, s{sUSED}
                s_mov_b32 s{sTGT}, s9""")
            throttle(VD_)
            load((slot + VD_) % RSV)
            vmf(s, slot)
        a(f"""s_add_u32 s{sIT}, s{sIT}, 1
        s_cmp_lt_u32 s{sIT}, {NITV}
        s_cbranch_scc1 L_vloop""")
        slot_of = lambda e: (R1 + e) % RSV if e < VD_ else e + 6 - VD_
        nxt = VD_
        a(f"""s_waitcnt lgkmcnt(0)
        v_readfirstlane_b32 s9, v{vB}
        s_sext_i32_i16 s11, s9
        s_cmp_lg_u32 s9, s{sTGT}
        s_cselect_b32 s{sUSED}, s11, s{sUSED}""")
        for e in range(NE):
            if e == 6:
                a("s_waitcnt lgkmcnt(0)")
            if e % 6 == 0:
                tr()
            vA_(e % 6)
            if e == 5:
                pread(3)
            if e == 7 and self.spre:
                a(f"""L_wxw:
                ds_read_b64 v[60:61], v{vZ} offset:{L_WXOK}
                s_waitcnt lgkmcnt(0)
                v_and_b32 v60, v60, v61
                s_nop 0
                v_readfirstlane_b32 s9, v60
                s_cmp_eq_u32 s9, 0
                s_cbranch_scc1 L_wxw""")
                for kp in range(3):
                    for hl in range(2):
                        for k2 in range(2):
                            r = RING + (2 * kp + hl) * 8 + 4 * k2
                            a(f"ds_read_b128 v[{r}:{r+3}], v{vT1} offset:{8*WXS*(2*kp+k2) + 32*hl}")
            if e < self.NB:
                throttle(VD_)
                load(slot_of(nxt)); nxt += 1
            else:
                a(f"s_waitcnt vmcnt({3*(nxt - e - 1)})")
                n0 = nxt
                while nxt < NE and nxt - e - 1 < DE:
                    load(slot_of(nxt)); nxt += 1
                if nxt == n0:
                    a("s_nop 0")
            vmf(e % 6, slot_of(e))
        a("s_nop 3\ns_mov_b32 exec_lo, 0x00ff00ff\ns_mov_b32 exec_hi, 0xff00ff00")
        OC = 12
        for j in range(3):
            a(f"""v_cvt_pk_bf16_f32 v{OC+2*j}, v{vACC+4*j}, v{vACC+4*j+1}
            v_cvt_pk_bf16_f32 v{OC+2*j+1}, v{vACC+4*j+2}, v{vACC+4*j+3}
            ds_write2_b32 v{vOW}, v{OC+2*j}, v{OC+2*j+1} offset0:{16*j} offset1:{16*j+48}""")
        a("s_mov_b64 exec, -1")
        for r in (20, 21, 22, 23, 52, 53, 54, 55):
            a(f"v_mov_b32 v{r}, 0")
        a("s_waitcnt lgkmcnt(0)")
        self.stamp(4, 56)
        tr()
        a("s_barrier")
        AA = RING + 12 * W
        BB = AA + 24
        assert BB + 48 <= 256
        D0, D1, SCL = 20, 52, 40
        if self.spre:
            BB = RING
            for kp in range(3):
                a(f"ds_read_b128 v[{AA+4*kp}:{AA+4*kp+3}], v{vT0} offset:{L_O + 64*kp}")
            a(f"ds_read_b64 v[{SCL}:{SCL+1}], v{vT2} offset:{L_SCALE}")
            for kp in range(3):
                a(f"s_waitcnt lgkmcnt({3-kp})")
                self.smf(D0, AA + 4 * kp, BB + (2 * kp) * 8, 18)
                self.smf(D1, AA + 4 * kp, BB + (2 * kp + 1) * 8, 18)
        else:
            for kp in range(3):
                a(f"ds_read_b128 v[{AA+4*kp}:{AA+4*kp+3}], v{vT0} offset:{L_O + 64*kp}")
                for hl in range(2):
                    for k2 in range(2):
                        r = BB + (2 * kp + hl) * 8 + 4 * k2
                        a(f"ds_read_b128 v[{r}:{r+3}], v{vT1} offset:{8*WXS*(2*kp+k2) + 32*hl}")
                if kp == 1:
                    a("s_waitcnt lgkmcnt(5)")
            a(f"ds_read_b64 v[{SCL}:{SCL+1}], v{vT2} offset:{L_SCALE}")
            for kp in range(3):
                a(f"s_waitcnt lgkmcnt({5*(2-kp)+1})")
                self.smf(D0, AA + 4 * kp, BB + (2 * kp) * 8, 18)
                self.smf(D1, AA + 4 * kp, BB + (2 * kp + 1) * 8, 18)
        a("s_waitcnt lgkmcnt(0)\ns_nop 7")
        for D in (D0, D1):
            a(f"""v_add_f32 v{D}, v{D}, v{D+1}
            v_add_f32 v{D+2}, v{D+2}, v{D+3}
            v_mul_f32 v{D}, v{D}, v{SCL}
            v_fmac_f32 v{D}, v{D+2}, v{SCL+1}""")
        a(f"""s_nop 1
        v_permlane16_swap_b32 v{D0}, v{D1}
        s_nop 1
        v_add_f32 v{D0}, v{D0}, v{D1}""")
        self.swap_reduce("v_add_f32", D0, D1, 32)
        self.tag(D0, D0, vTG, rn=12)
        if self.pq:
            a("s_endpgm")
        if self.wide:
            a(f"""s_mov_b32 exec_hi, 0
            s_nop 0
            v_mov_b32_dpp v{D0+1}, v{D0} quad_perm:[1,1,1,1] row_mask:0xf bank_mask:0xf
            v_mov_b32_dpp v{D0+2}, v{D0} quad_perm:[2,2,2,2] row_mask:0xf bank_mask:0xf
            v_mov_b32_dpp v{D0+3}, v{D0} quad_perm:[3,3,3,3] row_mask:0xf bank_mask:0xf
            s_mov_b32 exec_lo, 0x11111111
            buffer_store_dwordx4 v[{D0}:{D0+3}], v{vT3}, s[56:59], s67 offen {self.pst}
            s_mov_b64 exec, -1""")
        else:
            a(f"""s_mov_b32 exec_hi, 0
            buffer_store_dword v{D0}, v{vT3}, s[56:59], s67 offen {self.pst}
            s_mov_b64 exec, -1""")
        self.stamp(5, 12)
        tr()
        if self.trace:
            a(f"""s_sleep 127
            s_lshl_b32 s9, s2, 2
            s_add_u32 s9, s9, s3
            s_lshl_b32 s9, s9, 8
            s_add_u32 s9, s9, {3 << 20}
            v_lshlrev_b32 v12, 2, v0
            buffer_store_dword v{vTR}, v12, s[56:59], s9 offen""")
        for i, r in enumerate(self.fs):
            self.stamp(6 + i, 12, src=r)
        a("s_endpgm")

    def gen_H(self):
        self.cls = "H"
        a = self.a
        vL = 0
        vT0, vT1, vT2, vT3, vT4, vT5, vW = 1, 2, 3, 4, 5, 6, 7
        vX = 8
        vSEL = 18
        vTG = 26
        vCK = 27
        vF = 28
        vA, vACC = 28, 36
        vE = 52
        TI = 64
        if self.hprio:
            a(f"s_setprio {self.hprio}")
        a("s_sub_u32 s3, s3, 4")
        a(f"""s_and_b32 s14, s10, 7
        s_lshl_b32 s52, s14, 5
        s_add_u32 s52, s52, s4
        s_cmp_ge_u32 s14, 6
        s_cselect_b32 s52, 255, s52
        s_cmp_eq_u32 s3, 3
        s_cbranch_scc1 L_h3
        v_lshrrev_b32 v{vT0}, 5, v{vL}
        v_mul_u32_u24 v{vT0}, 1280, v{vT0}
        v_and_b32 v{vT1}, 31, v{vL}
        v_lshl_add_u32 v{vT0}, v{vT1}, 3, v{vT0}
        v_lshrrev_b32 v{vT1}, 3, v{vL}
        v_and_b32 v{vT2}, 7, v{vL}
        s_lshl_b32 s53, s4, 1
        s_add_u32 s53, s53, s14
        s_sub_u32 s53, s53, 6
        s_lshl_b32 s53, s53, 1
        s_add_u32 s53, s53, s3
        s_add_u32 s9, s52, 128
        s_cmp_eq_u32 s3, 2
        s_cselect_b32 s53, s9, s53
        s_cselect_b32 s9, 7, s14
        s_waitcnt lgkmcnt(0)""")
        self.srd(60, 16, 2560)
        for t in range(5):
            a(f"buffer_load_dwordx2 v[{vX+2*t}:{vX+2*t+1}], v{vT0}, s[60:63], 0 offen offset:{256*t}")
        a(f"""s_mov_b32 s47, 0x20000
        s_cmp_ge_u32 s9, 6
        s_cbranch_scc1 L_jgu
        s_mov_b32 s44, s22
        s_mov_b32 s45, s23
        s_mov_b32 s46, {640*12288}
        s_mov_b32 s54, 12288
        s_and_b32 s55, s14, 1
        s_lshl_b32 s55, s55, 1
        s_add_u32 s55, s55, s3
        s_lshr_b32 s11, s14, 1
        s_mul_i32 s64, s4, 384
        s_lshl_b32 s9, s11, 7
        s_add_u32 s64, s64, s9
        s_lshl_b32 s66, s4, 2
        s_add_u32 s66, s66, s55
        s_mul_i32 s66, s66, 1536
        s_lshl_b32 s9, s11, 8
        s_add_u32 s66, s66, s9
        s_add_u32 s66, s66, {QX_OFF}
        s_mov_b32 s13, 768
        s_branch L_jd
        L_jgu:
        s_bitcmp1_b32 s53, 2
        s_cselect_b32 s44, s32, s30
        s_cselect_b32 s45, s33, s31
        s_mov_b32 s46, {640*3072}
        s_mov_b32 s54, 3072
        s_and_b32 s55, s53, 3
        s_lshr_b32 s64, s53, 3
        s_lshl_b32 s64, s64, 7
        s_lshl_b32 s66, s53, 9
        s_add_u32 s66, s66, {GU_OFF}
        s_mov_b32 s13, 256
        L_jd:
        s_mul_i32 s9, s54, 20
        v_mul_lo_u32 v{vW}, v{vT1}, s9
        v_lshl_add_u32 v{vW}, v{vT2}, 4, v{vW}
        s_mul_i32 s9, s55, 160
        s_mul_i32 s9, s9, s54
        s_add_u32 s9, s9, s64
        v_add_u32 v{vW}, s9, v{vW}""")
        def job_loads():
            a("s_mov_b32 s9, 0")
            for G in range(20):
                a(f"buffer_load_dwordx4 v[{TI+4*G}:{TI+4*G+3}], v{vW}, s[44:47], s9 offen {self.wf}")
                if G < 19:
                    a("s_add_u32 s9, s9, s54")
        a("s_cmp_eq_u32 s3, 2\ns_cbranch_scc1 L_nj1")
        job_loads()
        a("L_nj1:")
        self.epoch_load()
        self.srd(56, 40, WS_SRD)
        self.selectors(vL, vSEL, vT3, vT4, vT5)
        a("s_cmp_lg_u32 s3, 2\ns_cbranch_scc1 L_nx2\ns_waitcnt vmcnt(0)\nL_nx2:")
        a(f"s_mov_b32 s9, 0x3f803f80\ns_waitcnt vmcnt(20)")
        self.stamp(11, 60)
        for i in range(10):
            c = "0" if i == 0 else f"v{vT3}"
            a(f"v_dot2_f32_bf16 v{vT3}, v{vX+i}, s9, {c}")
        for i in range(2):
            a(f"v_lshlrev_b32 v{vF+2*i}, 16, v{vX+i}\nv_and_b32 v{vF+2*i+1}, 0xffff0000, v{vX+i}")
        k = 2
        for st in (1, 2, 4, 8):
            self.dpp("v_add_f32", vT3, vT3, vT3, f"row_ror:{st}")
            a(f"v_lshlrev_b32 v{vF+2*k}, 16, v{vX+k}\nv_and_b32 v{vF+2*k+1}, 0xffff0000, v{vX+k}")
            k += 1
        a(f"v_mov_b32 v{vT4}, v{vT3}")
        a(f"v_lshlrev_b32 v{vF+2*k}, 16, v{vX+k}\nv_and_b32 v{vF+2*k+1}, 0xffff0000, v{vX+k}")
        k += 1
        a(f"v_permlane16_swap_b32 v{vT3}, v{vT4}")
        while k < 10:
            a(f"v_lshlrev_b32 v{vF+2*k}, 16, v{vX+k}\nv_and_b32 v{vF+2*k+1}, 0xffff0000, v{vX+k}")
            k += 1
        a(f"v_add_f32 v{vT3}, v{vT3}, v{vT4}")
        def div640(v, t):
            a(f"""v_mul_f32 v{t}, {f32(1/640)}, v{v}
            v_fmac_f32 v{v}, {f32(-640.0)}, v{t}
            v_fmac_f32 v{t}, {f32(1/640)}, v{v}""")
        M2 = vE
        D2 = vE + 2
        Q2 = vE + 4
        div640(vT3, M2)
        a(f"v_mov_b32 v{M2+1}, v{M2}")
        for i in range(10):
            a(f"v_pk_add_f32 v[{D2}:{D2+1}], v[{vF+2*i}:{vF+2*i+1}], v[{M2}:{M2+1}] neg_lo:[0,1] neg_hi:[0,1]")
            if i == 0:
                a(f"v_pk_mul_f32 v[{Q2}:{Q2+1}], v[{D2}:{D2+1}], v[{D2}:{D2+1}]")
            else:
                a(f"v_pk_fma_f32 v[{Q2}:{Q2+1}], v[{D2}:{D2+1}], v[{D2}:{D2+1}], v[{Q2}:{Q2+1}]")
        a(f"v_add_f32 v{vT4}, v{Q2}, v{Q2+1}")
        self.rbf(M2)
        a(f"v_mov_b32 v{M2+1}, v{M2}")
        def xc(i):
            a(f"""v_pk_add_f32 v[{vF+2*i}:{vF+2*i+1}], v[{vF+2*i}:{vF+2*i+1}], v[{M2}:{M2+1}] neg_lo:[0,1] neg_hi:[0,1]
            v_cvt_pk_bf16_f32 v{vF+2*i+1}, v{vF+2*i}, v{vF+2*i+1}
            v_lshlrev_b32 v{vF+2*i}, 16, v{vF+2*i+1}
            v_and_b32 v{vF+2*i+1}, 0xffff0000, v{vF+2*i+1}""")
        k = 0
        for st in (1, 2, 4, 8):
            self.dpp("v_add_f32", vT4, vT4, vT4, f"row_ror:{st}")
            xc(k); k += 1
        a(f"v_mov_b32 v{vT5}, v{vT4}")
        xc(k); k += 1
        a(f"v_permlane16_swap_b32 v{vT4}, v{vT5}")
        xc(k); k += 1
        a(f"v_add_f32 v{vT4}, v{vT4}, v{vT5}")
        div640(vT4, vT5)
        self.rbf(vT5)
        a(f"v_add_f32 v{vT5}, {f32(1e-5)}, v{vT5}")
        self.rbf(vT5)
        a(f"v_sqrt_f32 v{vT5}, v{vT5}")
        xc(k); k += 1
        self.rbf(vT5)
        a(f"v_rcp_f32 v{D2}, v{vT5}")
        xc(k); k += 1
        a(f"v_mov_b32 v{D2+1}, v{D2}\nv_mov_b32 v{Q2}, v{vT5}\nv_mov_b32 v{Q2+1}, v{vT5}")
        while k < 10:
            xc(k); k += 1
        R2 = vE + 6
        for i in range(10):
            f = vF + 2 * i
            a(f"""v_pk_mul_f32 v[{R2}:{R2+1}], v[{f}:{f+1}], v[{D2}:{D2+1}]
            v_pk_fma_f32 v[{f}:{f+1}], v[{R2}:{R2+1}], v[{Q2}:{Q2+1}], v[{f}:{f+1}] neg_lo:[1,0,0] neg_hi:[1,0,0]
            v_pk_fma_f32 v[{R2}:{R2+1}], v[{f}:{f+1}], v[{D2}:{D2+1}], v[{R2}:{R2+1}]
            v_cvt_pk_bf16_f32 v{vX+i}, v{R2}, v{R2+1}""")
            if i & 1:
                t = i // 2
                a(f"ds_write_b64 v{vT0}, v[{vX+2*t}:{vX+2*t+1}] offset:{L_XN + 256*t}")
        a("s_waitcnt lgkmcnt(0)")
        self.epoch_use(vTG)
        self.stamp(15, 60, src=48)
        self.stamp(1, 60)
        a(f"""s_cmp_lg_u32 s3, 2
        s_cbranch_scc1 L_job
        s_cmp_ge_u32 s52, {0 if self.nomoe else 64}
        s_cbranch_scc1 L_bar1""")
        job_loads()
        a("L_job:")
        C1 = 44
        a(f"""v_mul_u32_u24 v{vT3}, 40, v{vT1}
        s_mul_i32 s9, s55, 320
        v_add_u32 v{vT3}, s9, v{vT3}""")
        for bb, base in ((0, vX), (1, C1)):
            for t in range(5):
                a(f"ds_read_b64 v[{base+2*t}:{base+2*t+1}], v{vT3} offset:{L_XN + 1280*bb + 8*t}")
        a(f"""v_lshrrev_b32 v{vT4}, 5, v{vL}
        v_mul_lo_u32 v{vT4}, v{vT4}, s13
        v_lshl_add_u32 v{vT4}, v{vT2}, 5, v{vT4}
        v_bfe_u32 v{vT5}, v{vL}, 4, 1
        v_lshl_add_u32 v{vT4}, v{vT5}, 4, v{vT4}
        s_waitcnt lgkmcnt(0)""")
        self.job_compute(20, vX, C1, TI, vA, vACC, vSEL, vTG, vT4, "s66", True)
        a(f"s_setprio {self.hprio1}\ns_cmp_eq_u32 s3, 2\ns_cbranch_scc1 L_bar1")
        self.srd(44, 24, 0 if self.nowo else 6144 * 1280)
        a(f"""v_lshrrev_b32 v{vT3}, 4, v{vL}
        v_mul_u32_u24 v{vT3}, {8*1280}, v{vT3}
        v_and_b32 v{vT4}, 15, v{vL}
        v_lshl_add_u32 v{vT3}, v{vT4}, 4, v{vT3}
        s_mul_i32 s9, s4, {192*1280}
        s_mul_i32 s10, s3, {96*1280}
        s_add_u32 s9, s9, s10
        s_add_u32 s9, s9, 1024
        v_add_u32 v{vT3}, s9, v{vT3}
        s_mul_i32 s9, s3, {24*WXS}
        s_add_u32 s9, s9, {L_WX}
        v_lshlrev_b32 v{vT4}, 4, v{vL}
        v_add_u32 v{vT4}, s9, v{vT4}
        s_mov_b32 s14, 0x05040100
        s_mov_b32 s15, 0x07060302""")
        for kk in range(3):
            if kk == self.pre:
                a("s_barrier")
            sr, d = TI + 64 * kk, TI + 64 * kk + 32
            for e in range(8):
                if e % 4 == 0:
                    a(f"s_mov_b32 s9, {(32*kk + e)*1280}")
                a(f"buffer_load_dwordx4 v[{sr+4*e}:{sr+4*e+3}], v{vT3}, s[44:47], s9 offen offset:{(e%4)*1280} {self.wof}")
            for t in range(4):
                a(f"s_waitcnt vmcnt({6-2*t})")
                for dd in range(4):
                    a(f"v_perm_b32 v{d+(2*dd)*4+t}, v{sr+(2*t+1)*4+dd}, v{sr+(2*t)*4+dd}, s14")
                    a(f"v_perm_b32 v{d+(2*dd+1)*4+t}, v{sr+(2*t+1)*4+dd}, v{sr+(2*t)*4+dd}, s15")
            for c in range(8):
                a(f"ds_write_b128 v{vT4}, v[{d+4*c}:{d+4*c+3}] offset:{(8*kk + c)*WXS}")
        a(f"""s_lshl_b32 s9, s3, 2
        v_mov_b32 v{vT3}, s9
        v_mov_b32 v{vT4}, 1
        ds_write_b32 v{vT3}, v{vT4} offset:{L_WXOK}
        s_waitcnt lgkmcnt(0)
        s_branch L_h1""")
        a("L_h3:\nv_mov_b32 v10, 0\nv_mov_b32 v11, 0\ns_waitcnt lgkmcnt(0)")
        self.epoch_load()
        self.srd(56, 40, WS_SRD)
        if self.tlb:
            a(f"""v_lshlrev_b32 v{vT5}, 18, v{vL}
            s_mul_i32 s9, s8, {4*CH}
            s_mov_b64 exec, 0xfff""")
            self.srd(60, 20, TB)
            a(f"buffer_load_dword v64, v{vT5}, s[60:63], s9 offen nt")
            self.srd(44, 18, TB)
            a(f"buffer_load_dword v65, v{vT5}, s[44:47], s9 offen nt\ns_mov_b64 exec, 1")
            for i, (p, nb) in enumerate(((36, 2560), (34, 1536 * 1280), (28, 1280))):
                self.srd(60, p, nb)
                a(f"buffer_load_dword v{66+i}, v{vT5}, s[60:63], 0 offen nt")
            a("s_mov_b64 exec, -1")
        a(f"""v_lshlrev_b32 v{vT3}, 4, v{vL}
        v_lshlrev_b32 v{vT4}, 3, v{vL}
        s_mul_i32 s9, s4, {4*1536}
        s_mul_i32 s11, s5, 768
        s_add_u32 s9, s9, s11
        s_add_u32 s70, s9, {QX_OFF}
        s_add_u32 s71, s70, 3072
        s_waitcnt lgkmcnt(0)""")
        self.epoch_use(vTG)
        a(f"""v_mov_b32 v{vT5}, 0
        s_not_b32 s9, s{sT}
        v_mov_b32 v{vT0}, s9
        v_lshlrev_b32 v{vT1}, 2, v{vL}
        ds_write_b32 v{vT5}, v{vT5} offset:{L_PROG}
        ds_write_b32 v{vT5}, v{vT5} offset:{L_BOOST}
        ds_write_b32 v{vT5}, v{vT5} offset:{L_WXOK}
        ds_write_b32 v{vT5}, v{vT5} offset:{L_WXOK + 4}
        s_mov_b64 exec, 0xffff
        ds_write_b32 v{vT1}, v{vT0} offset:{L_STL}
        s_mov_b64 exec, -1""")
        q = self.qsleep
        while q > 0:
            a(f"s_sleep {min(q, 127)}")
            q -= 127
        self.mpoll([(TI + 4 * k, f"buffer_load_dwordx4 v[{TI+4*k}:{TI+4*k+3}], v{vT3}, s[56:59], s{70+k//2} offen offset:{1536*(k&1)} sc1") for k in range(4)],
                   vTG, vCK, self.qsleep2, mask=("-1", "0xffff"))
        self.sum_quads(TI, 4)
        a(f"""s_mov_b32 exec_hi, 0xffff
        v_cvt_pk_bf16_f32 v{TI}, v{TI}, v{TI+1}
        v_cvt_pk_bf16_f32 v{TI+1}, v{TI+2}, v{TI+3}
        ds_write_b64 v{vT4}, v[{TI}:{TI+1}] offset:{L_QB}
        s_mov_b64 exec, -1
        s_waitcnt lgkmcnt(0)""")
        self.stamp(2, 60)
        a(f"""L_bar1:
        s_setprio {self.hprio1}
        s_barrier
        L_h1:""")
        a(f"v_and_b32 v{vT1}, 15, v{vL}\nv_lshrrev_b32 v{vT2}, 4, v{vL}")
        self.srd(44, 24, 0 if self.nowo else 6144 * 1280)
        a(f"""v_mul_u32_u24 v{vW}, {8*1280}, v{vT2}
        s_mul_i32 s9, s4, {192*1280}
        v_add_u32 v{vW}, s9, v{vW}
        v_lshl_add_u32 v{vW}, v{vT1}, 4, v{vW}
        s_lshl_b32 s9, s3, 8
        v_add_u32 v{vW}, s9, v{vW}
        s_mov_b32 s14, 0x05040100
        s_mov_b32 s15, 0x07060302""")
        self.stamp(3, 60)
        def REG(k): return 32 + 32 * k
        for K in (5, 4, 3, 2, 1, 0):
            if K == 3:
                a(f"""s_cmp_lg_u32 s3, 2
                s_cbranch_scc1 L_nodn
                s_sub_u32 s52, s52, 64
                s_cmp_ge_u32 s52, {0 if self.nomoe else 120}
                s_cbranch_scc1 L_nodn""")
                self.gen_dn(vL, vT3, vT4, vT5, vSEL, vTG, vCK, TI)
                self.stamp(9, 60)
                a("L_nodn:")
            for e in range(8):
                if e % 4 == 0:
                    a(f"s_mov_b32 s9, {(32*K + e)*1280}")
                r = REG(0) + 4 * e
                a(f"buffer_load_dwordx4 v[{r}:{r+3}], v{vW}, s[44:47], s9 offen offset:{(e%4)*1280} {self.wof}")
                if self.wobatch == 4 and e == 3:
                    a("s_waitcnt vmcnt(0)")
                    if self.wosleep:
                        a(f"s_sleep {self.wosleep}")
                if self.wobatch == 2 and e in (1, 3, 5):
                    a("s_waitcnt vmcnt(0)")
            s, d = REG(0), 64 + 64 * (K // 2) + 4 * (K & 1)
            for t in range(4):
                a(f"s_waitcnt vmcnt({6-2*t})")
                for dd in range(4):
                    a(f"v_perm_b32 v{d+(2*dd)*8+t}, v{s+(2*t+1)*4+dd}, v{s+(2*t)*4+dd}, s14")
                    a(f"v_perm_b32 v{d+(2*dd+1)*8+t}, v{s+(2*t+1)*4+dd}, v{s+(2*t)*4+dd}, s15")
        vG, vXC, vOUTA, vPA, vSC = 8, 9, 10, 11, 12
        vAR, vST = 14, 15
        Wk = 32
        self.stamp(4, 60)
        a(f"""s_cmp_lg_u32 s3, 0
        s_cbranch_scc1 L_noep
        s_cmp_lg_u32 s2, 0
        s_cbranch_scc1 L_noep""")
        Lc, Lcd = self.lab("c0"), self.lab("c0d")
        a(f"""s_mov_b32 s12, {self.poll_max}
        v_lshlrev_b32 v{Wk+8}, 6, v{vL}
        v_mov_b32 v{Wk+9}, s{sT}
        s_mov_b32 s9, {ST_OFF + 8}
        s_mov_b32 s10, {ST_OFF + 8 + 4096}
        s_mov_b32 s11, {ST_OFF + 8 + 8192}
        s_mov_b32 s13, {ST_OFF + 8 + 12288}
        {Lc}:
        s_sleep 127
        buffer_load_dword v{Wk}, v{Wk+8}, s[56:59], s9 offen sc1
        buffer_load_dword v{Wk+1}, v{Wk+8}, s[56:59], s10 offen sc1
        buffer_load_dword v{Wk+2}, v{Wk+8}, s[56:59], s11 offen sc1
        buffer_load_dword v{Wk+3}, v{Wk+8}, s[56:59], s13 offen sc1
        s_waitcnt vmcnt(0)""")
        self.chk4(vCK, Wk, Wk + 9, first=True, n=4, full=True)
        a(f"""v_cmp_ne_u32 vcc, 0, v{vCK}
        s_cbranch_vccz {Lcd}
        s_sub_u32 s12, s12, 1
        s_cmp_gt_u32 s12, 0
        s_cbranch_scc1 {Lc}
        {Lcd}:
        v_mov_b32 v{Wk}, 0
        s_mov_b32 s9, {EP_OFF}
        s_mov_b64 exec, 1
        buffer_store_dword v{Wk+9}, v{Wk}, s[56:59], s9 offen sc1
        s_mov_b64 exec, -1
        L_noep:""")
        a("s_cmp_lg_u32 s3, 3\ns_cbranch_scc1 L_nostat")
        if self.nopoll:
            a("s_branch L_nostat")
        vZ0 = Wk + 16
        L, Ld = self.lab("cw"), self.lab("cwd")
        a(f"""v_mov_b32 v{vZ0}, 0
        v_lshlrev_b32 v{Wk+4}, 4, v{vL}
        s_mov_b32 s12, {self.poll_max * 16}
        s_mov_b64 exec, 15
        {L}:
        ds_read_b128 v[{Wk}:{Wk+3}], v{Wk+4} offset:{L_STL}
        s_waitcnt lgkmcnt(0)
        v_cmp_ne_u32 vcc, s{sT}, v{Wk+2}
        s_cbranch_vccz {Ld}
        s_sleep 8
        s_sub_u32 s12, s12, 1
        s_cmp_gt_u32 s12, 0
        s_cbranch_scc1 {L}
        {Ld}:
        s_lshl_b32 s9, s7, 6
        s_add_u32 s9, s9, {ST_OFF}
        buffer_store_dwordx4 v[{Wk}:{Wk+3}], v{Wk+4}, s[56:59], s9 offen sc1
        s_mov_b64 exec, -1
        s_sleep {self.cdelay[0]}""")
        Ls, Lsd = self.lab("st"), self.lab("std")
        a(f"""v_lshlrev_b32 v{Wk+4}, 3, v{vT2}
        v_and_b32 v{Wk+5}, {self.mix}, v{vT2}
        v_lshl_add_u32 v{Wk+4}, v{Wk+5}, 2, v{Wk+4}
        v_add_u32 v{Wk+4}, s4, v{Wk+4}
        v_and_b32 v{Wk+4}, 31, v{Wk+4}
        v_lshlrev_b32 v{Wk+4}, 8, v{Wk+4}
        v_lshl_add_u32 v{Wk+4}, v{vT1}, 4, v{Wk+4}
        s_lshl_b32 s9, s5, 13
        s_add_u32 s9, s9, {ST_OFF}
        v_mov_b32 v{Wk+5}, s{sT}
        s_mov_b32 s12, {self.poll_max}""")
        if not self.ctl:
            a("s_mov_b64 exec, 0xffff")
        a(f"""{Ls}:
        buffer_load_dwordx4 v[{Wk}:{Wk+3}], v{Wk+4}, s[56:59], s9 offen sc1
        s_memrealtime s[10:11]
        s_waitcnt vmcnt(0) lgkmcnt(0)""")
        self.chk4(vCK, Wk, vTG, first=True, n=2)
        a(f"""v_and_b32 v{vCK}, 15, v{vCK}
        v_bitop3_b32 v{vCK}, v{Wk+2}, v{Wk+5}, v{vCK} bitop3:0xbe
        v_cmp_ne_u32 vcc, 0, v{vCK}
        s_and_b32 s13, vcc_lo, 0xffff
        s_cbranch_scc0 {Lsd}
        s_sleep {self.stsleep}
        s_sub_u32 s12, s12, 1
        s_cmp_gt_u32 s12, 0
        s_cbranch_scc1 {Ls}
        {Lsd}:
        s_mov_b64 exec, -1""")
        if self.ctl:
            a(f"""v_sub_u32 v{Wk+6}, s10, v{Wk+3}
            v_cvt_f32_i32 v{Wk+6}, v{Wk+6}
            v_cndmask_b32 v{Wk+6}, v{Wk+6}, 0, vcc
            s_lshl_b32 s9, s6, 2
            v_subrev_u32 v{Wk+7}, s9, v{vL}
            v_cmp_gt_u32 vcc, 4, v{Wk+7}
            v_mul_f32 v{Wk+7}, {f32(-15.0)}, v{Wk+6}
            s_nop 0
            v_cndmask_b32 v{Wk+6}, v{Wk+6}, v{Wk+7}, vcc""")
            self.row_reduce("v_add_f32", Wk + 6)
            self.swap_reduce("v_add_f32", Wk + 6, Wk + 7, 16)
            self.swap_reduce("v_add_f32", Wk + 6, Wk + 7, 32)
            a(f"""v_mul_f32 v{Wk+6}, {f32(1/64.0)}, v{Wk+6}
            """)
            self.decide(Wk + 6, Wk + 7, 0, vZ0)
        a(f"v_mov_b32 v{Wk+2}, v{Wk}")
        self.row_reduce("v_max_f32", Wk + 2)
        a(f"""v_sub_f32 v{Wk}, v{Wk}, v{Wk+2}
        v_mul_f32 v{Wk}, {LOG2E}, v{Wk}
        v_exp_f32 v{Wk}, v{Wk}
        s_nop 0
        v_mul_f32 v{Wk+1}, v{Wk+1}, v{Wk}""")
        self.row_reduce("v_add_f32", Wk + 1)
        a(f"""v_rcp_f32 v{Wk+2}, v{Wk+1}
        s_nop 0
        v_mul_f32 v{Wk+3}, v{Wk}, v{Wk+2}
        v_fma_f32 v{Wk}, -v{Wk+3}, v{Wk+1}, v{Wk}
        v_fmac_f32 v{Wk+3}, v{Wk}, v{Wk+2}
        s_lshl_b32 s9, s6, 2
        v_subrev_u32 v{Wk+4}, s9, v{vL}
        v_cmp_gt_u32 vcc, 4, v{Wk+4}
        v_lshlrev_b32 v{Wk+4}, 2, v{Wk+4}
        s_and_saveexec_b64 s[10:11], vcc
        ds_write_b32 v{Wk+4}, v{Wk+3} offset:{L_SCALE}
        s_mov_b64 exec, -1""")
        if self.ctl:
            a(f"""v_bfe_u32 v{Wk+4}, v{vL}, 2, 2
            v_and_b32 v{Wk+6}, {self.mix}, v{Wk+4}
            v_lshlrev_b32 v{Wk+4}, 3, v{Wk+4}
            v_lshl_add_u32 v{Wk+4}, v{Wk+6}, 2, v{Wk+4}
            v_add_u32 v{Wk+4}, s4, v{Wk+4}
            v_and_b32 v{Wk+4}, 31, v{Wk+4}
            v_lshlrev_b32 v{Wk+4}, {9 if self.excl else 7}, v{Wk+4}
            v_and_b32 v{Wk+6}, 3, v{vL}
            v_lshl_add_u32 v{Wk+4}, v{Wk+6}, {7 if self.excl else 3}, v{Wk+4}
            v_mov_b32 v{Wk+9}, s{sT}""")
            TM_ = self.team
            if TM_:
                a(f"v_lshlrev_b32 v{Wk+4}, 3, v{vL}")
            for ci in range(1, len(self.cps)):
                L, Ld = self.lab("cw"), self.lab("cwd")
                a(f"""s_mov_b32 s12, {self.poll_max * 16}
                {L}:
                ds_read_b32 v{Wk}, v{vZ0} offset:{L_PROG}
                s_waitcnt lgkmcnt(0)
                v_readfirstlane_b32 s9, v{Wk}
                s_cmp_ge_u32 s9, {self.cps[ci]}
                s_cbranch_scc1 {Ld}
                s_sleep 2
                s_sub_u32 s12, s12, 1
                s_cmp_gt_u32 s12, 0
                s_cbranch_scc1 {L}
                {Ld}:
                ds_read_b32 v{Wk+8}, v{vZ0} offset:{L_TM + 4*self.cps[ci]}
                {"s_lshl_b32 s9, s2, 3" if TM_ else f"s_lshl_b32 s9, s8, {9 if self.excl else 7}"}
                {"s_mov_b32 s13, 0" if TM_ else f"s_lshl_b32 s13, s6, {7 if self.excl else 3}"}
                s_add_u32 s9, s9, s13
                s_add_u32 s9, s9, {TS_OFF + 32768*ci}
                s_waitcnt lgkmcnt(0)
                v_readfirstlane_b32 s10, v{Wk+8}
                s_mov_b64 exec, 1
                buffer_store_dwordx2 v[{Wk+8}:{Wk+9}], v{vZ0}, s[56:59], s9 offen sc1
                s_mov_b32 exec_lo, {"0xffff" if TM_ in (0, 16) else "-1"}
                s_mov_b32 exec_hi, {"-1" if TM_ == 64 else "0"}
                s_sleep {self.cdelay[ci]}
                {f"s_andn2_b32 s9, s2, {TM_-1}" if TM_ else f"s_lshl_b32 s9, s5, {11 if self.excl else 9}"}
                s_lshl_b32 s9, s9, 3
                s_add_u32 s9, s9, {TS_OFF + 32768*ci}
                buffer_load_dwordx2 v[{Wk}:{Wk+1}], v{Wk+4}, s[56:59], s9 offen sc1
                s_memrealtime s[12:13]
                s_waitcnt vmcnt(0) lgkmcnt(0)
                v_cmp_ne_u32 vcc, v{Wk+1}, v{Wk+9}
                v_sub_u32 v{Wk+6}, s12, v{Wk}
                v_cvt_f32_i32 v{Wk+6}, v{Wk+6}
                v_cndmask_b32 v{Wk+6}, v{Wk+6}, 0, vcc
                s_sub_u32 s12, s12, s10
                v_cvt_f32_u32 v{Wk+7}, s12""")
                self.row_reduce("v_add_f32", Wk + 6)
                if TM_ >= 32:
                    self.swap_reduce("v_add_f32", Wk + 6, Wk + 10, 16)
                if TM_ == 64:
                    self.swap_reduce("v_add_f32", Wk + 6, Wk + 10, 32)
                a(f"""v_mul_f32 v{Wk+6}, {f32(1.0/max(16, TM_))}, v{Wk+6}
                v_sub_f32 v{Wk+6}, v{Wk+6}, v{Wk+7}
                """)
                self.decide(Wk + 6, Wk + 7, ci, vZ0)
                a("s_mov_b64 exec, -1")
        a("L_nostat:")
        a(f"""s_lshl_b32 s67, s6, 5
        s_add_u32 s67, s67, s4
        s_mov_b32 s68, 0
        s_cmp_lg_u32 s3, 2
        s_cbranch_scc1 L_noown
        s_cmp_ge_u32 s67, {8 if self.pq else 40}
        s_cbranch_scc1 L_noown
        s_mov_b32 s68, 1""")
        self.srd(60, 28, 1280)
        W = Wk
        a(f"""v_lshlrev_b32 v{W+20}, 2, v{vL}
        s_mul_i32 s9, s5, 1280
        v_add_u32 v{W+21}, s9, v{W+20}""")
        for t in range(5):
            a(f"buffer_load_dword v{W+t}, v{W+20}, s[60:63], 0 offen offset:{256*t}")
            a(f"ds_read_b32 v{W+5+t}, v{W+21} offset:{L_XN + 256*t}")
        self.srd(60, 16, 2560)
        a(f"""v_and_b32 v{W+22}, 3, v{vL}
        v_lshl_add_u32 v{vOUTA}, v{W+22}, 2, v{vT2}
        v_lshlrev_b32 v{vOUTA}, 1, v{vOUTA}
        s_lshl_b32 s10, s67, 5
        s_add_u32 s10, s10, s9
        v_add_u32 v{vOUTA}, s10, v{vOUTA}
        buffer_load_ushort v{vXC}, v{vOUTA}, s[60:63], 0 offen
        ds_read_u16 v{W+23}, v{vOUTA} offset:{L_XN}
        s_waitcnt vmcnt(0) lgkmcnt(0)""")
        for t in range(5):
            c = "0" if t == 0 else f"v{W+24}"
            a(f"v_dot2_f32_bf16 v{W+24}, v{W+t}, v{W+5+t}, {c}")
        a(f"v_lshlrev_b32 v{vXC}, 16, v{vXC}\nv_lshlrev_b32 v{W+23}, 16, v{W+23}\ns_nop 1")
        self.row_reduce("v_add_f32", W + 24)
        self.swap_reduce("v_add_f32", W + 24, W + 25, 16)
        self.swap_reduce("v_add_f32", W + 24, W + 25, 32)
        self.rbf(W + 24)
        self.sigmoid_like(W + 24, W + 24)
        self.rbf(W + 24)
        Ly, Lyd = self.lab("y"), self.lab("yd")
        a(f"""v_lshrrev_b32 v{W+20}, 2, v{vL}
        v_mul_u32_u24 v{W+21}, 5120, v{W+20}
        v_lshl_add_u32 v{W+21}, v{W+22}, 4, v{W+21}
        v_mul_u32_u24 v{vPA}, 2560, v{W+20}
        v_lshl_add_u32 v{vPA}, v{W+22}, 4, v{vPA}
        s_mul_i32 s9, s5, 2560
        s_lshl_b32 s10, s67, 6
        s_add_u32 s9, s9, s10
        s_add_u32 s9, s9, {Y_OFF}
        v_mov_b32 v{W}, 0
        v_mov_b32 v{W+1}, 0
        v_mov_b32 v{W+2}, 0
        v_mov_b32 v{W+3}, 0""")
        if not self.nomoe:
            self.mpoll([(W, f"buffer_load_dwordx4 v[{W}:{W+3}], v{W+21}, s[56:59], s9 offen sc1")], vTG, vCK, 64, mask=("-1", "0xffff"))
        self.merge4(W)
        self.rbf(W)
        a(f"v_mul_f32 v{W}, v{W}, v{W+24}")
        self.rbf(W)
        a(f"v_add_f32 v{W}, v{W}, v{W+23}")
        self.rbf(W)
        self.sigmoid_like(W + 1, W)
        a(f"v_mul_f32 v{vG}, v{W}, v{W+1}")
        self.rbf(vG)
        a(f"""s_mul_i32 s70, s5, {128*2560}
        s_lshl_b32 s10, s67, 6
        s_add_u32 s70, s70, s10""")
        for t in range(1, 8):
            a(f"s_add_u32 s{70+t}, s70, {t*40960}")
        if self.ppre == 1:
            for t in range(8):
                a(f"buffer_load_dwordx4 v[{W+4*t}:{W+4*t+3}], v{vPA}, s[56:59], s{70+t} offen sc1")
        a("L_noown:")
        self.srd(60, 36, 2560)
        a(f"""v_and_b32 v{vAR}, 7, v{vL}
        v_mul_u32_u24 v{vAR}, {OS}, v{vAR}
        v_lshl_add_u32 v{vAR}, v{vT2}, 4, v{vAR}
        v_bfe_u32 v{vT3}, v{vL}, 3, 1
        v_mul_u32_u24 v{vT4}, 192, v{vT3}
        v_add_u32 v{vAR}, v{vAR}, v{vT4}
        v_mul_u32_u24 v24, 0xaaaa, v{vT3}
        v_add_u32 v24, 0x4444, v24
        v_lshl_or_b32 v24, v24, 16, v24
        v_and_b32 v{vT3}, 1, v{vT2}
        v_lshlrev_b32 v{vST}, 5, v{vT1}
        v_lshl_add_u32 v{vST}, v{vT3}, 4, v{vST}
        v_lshrrev_b32 v{vT4}, 5, v{vL}
        v_lshl_add_u32 v{vST}, v{vT4}, 3, v{vST}
        v_lshlrev_b32 v{vT3}, 3, v{vT3}
        s_mul_i32 s9, s7, 2560
        s_lshl_b32 s10, s3, 9
        s_add_u32 s9, s9, s10
        s_waitcnt vmcnt(0) lgkmcnt(0)""")
        if self.ppre == 2:
            a(f"""v_not_b32 v32, v{vTG}
            v_mov_b32 v33, v32
            v_mov_b32 v34, v32
            v_mov_b32 v35, v32
            v_lshlrev_b32 v36, 4, v{vL}
            s_mul_i32 s10, s7, 2560
            s_mul_i32 s11, s3, 640
            s_add_u32 s10, s10, s11
            s_mov_b32 exec_hi, 0xff
            buffer_store_dwordx4 v[32:35], v36, s[56:59], s10 offen sc1
            s_mov_b32 exec_hi, -1
            s_waitcnt vmcnt(0)""")
        self.stamp(5, 60)
        a(f"s_setprio {self.hprio2}")
        a(f"s_mov_b32 s43, {1 if self.dry else 0}")
        for t in range(8):
            a(f"s_mov_b64 s[{80+2*t}:{81+2*t}], -1")
        self.wide_tag()
        a(f"""v_mov_b32 v25, 0xfff
        v_mov_b32 v{vTG}, s96
        v_mov_b32 v{vW}, s97
        s_mov_b32 exec_lo, 0
        v_mov_b32 v{vTG}, s98
        v_mov_b32 v{vW}, s99
        s_mov_b32 exec_lo, -1""")
        a("L_tail:")
        for r in range(32, 64):
            a(f"v_mov_b32 v{r}, 0")
        a("s_cmp_lg_u32 s43, 0\ns_cbranch_scc1 L_nobar\ns_barrier\nL_nobar:")
        if self.stamps == 4:
            a("s_memrealtime s[44:45]")
        AT = [16, 20, 28]
        for kp in range(3):
            a(f"ds_read_b128 v[{AT[kp]}:{AT[kp]+3}], v{vAR} offset:{L_O + 64*kp}")
        a(f"ds_read_b64 v[{vSC}:{vSC+1}], v{vT3} offset:{L_SCALE}")
        def epi(c):
            D = 32 + 4 * c
            return [f"v_add_f32 v{D}, v{D}, v{D+1}", f"v_add_f32 v{D+2}, v{D+2}, v{D+3}",
                    f"v_mul_f32 v{D}, v{D}, v{vSC}", f"v_fmac_f32 v{D}, v{D+2}, v{vSC+1}"]
        order = (0, 2, 1, 3)
        pend = []
        for pi, pr in enumerate(order):
            for kp in range(3):
                if pi == 0:
                    a(f"s_waitcnt lgkmcnt({3-kp})")
                for c in (pr, pr + 4):
                    self.smf(32 + 4 * c, AT[kp], 64 + 64 * kp + 8 * c, 24)
                    if pi >= 2 and (kp >= 1 or pi == 3):
                        for _ in range(2):
                            if pend:
                                a(pend.pop(0))
            if pi == 1:
                a("s_waitcnt lgkmcnt(0)")
                e0, e4 = epi(order[0]), epi(order[0] + 4)
                pend += [e0[0], e0[1], e4[0], e4[1], e0[2], e0[3], e4[2], e4[3]]
            if pi == 2:
                e0, e4 = epi(order[1]), epi(order[1] + 4)
                pend += [e0[0], e0[1], e4[0], e4[1], e0[2], e0[3], e4[2], e4[3],
                         f"v_permlane16_swap_b32 v32, v48", "s_nop 0", "v_add_f32 v32, v32, v48",
                         f"v_permlane16_swap_b32 v40, v56"]
        for x in pend:
            a(x)
        RES = 16
        e1, e5, e3, e7 = epi(1), epi(5), epi(3), epi(7)
        a("v_add_f32 v40, v40, v56")
        for x in (e1[0], e1[1], e5[0], e5[1], e1[2], e1[3], e5[2], e5[3]):
            a(x)
        a("v_permlane32_swap_b32 v32, v40")
        for x in (e3[0], e3[1], e7[0], e7[1]):
            a(x)
        a(f"v_permlane16_swap_b32 v36, v52\nv_add_f32 v{RES}, v32, v40")
        for x in (e3[2], e3[3], e7[2], e7[3]):
            a(x)
        a("v_add_f32 v36, v36, v52")
        self.tag(RES, RES, vTG, rn=12)
        a(f"""v_permlane16_swap_b32 v44, v60
        s_nop 0
        v_add_f32 v44, v44, v60
        s_nop 1
        v_permlane32_swap_b32 v36, v44
        s_nop 0
        v_add_f32 v{RES+1}, v36, v44""")
        self.tag(RES + 1, RES + 1, vW, rn=12)
        if self.wide:
            a(f"""v_permlane32_swap_b32 v{RES}, v{RES+2}
            s_nop 0
            v_permlane32_swap_b32 v{RES+1}, v{RES+3}""")
        a(f"""s_cmp_lg_u32 s43, 0
        s_cbranch_scc1 L_nost
        """)
        if self.wide:
            a(f"""s_mov_b32 exec_hi, 0
            buffer_store_dwordx4 v[{RES}:{RES+3}], v{vST}, s[56:59], s9 offen {self.pst}
            s_mov_b32 exec_hi, -1""")
        else:
            a(f"buffer_store_dwordx2 v[{RES}:{RES+1}], v{vST}, s[56:59], s9 offen {self.pst}")
        self.stamp(7, 20)
        if self.stamps == 4:
            a("s_memrealtime s[46:47]\ns_mov_b64 s[52:53], 0\ns_mov_b64 s[54:55], 0\ns_cmp_lg_u32 s3, 2\ns_cbranch_scc1 L_end\ns_cmp_eq_u32 s68, 0\ns_cbranch_scc1 L_dump")
        a(f"""s_cmp_eq_u32 s68, 0
        s_cbranch_scc1 L_end""")
        Z = 64
        M0 = 80
        a(f"s_mov_b32 s12, {self.poll_max}\nL_pp:")
        for t in range(8):
            sk = self.lab("pl")
            a(f"""s_mov_b64 exec, s[{M0+2*t}:{M0+2*t+1}]
            s_cbranch_execz {sk}
            buffer_load_dwordx4 v[{Z+4*t}:{Z+4*t+3}], v{vPA}, s[56:59], s{70+t} offen {self.pld}
            {sk}:""")
        a("s_mov_b32 s13, 0\ns_waitcnt vmcnt(0)")
        for t in range(8):
            sk = self.lab("pc")
            a(f"""s_mov_b64 exec, s[{M0+2*t}:{M0+2*t+1}]
            s_cbranch_execz {sk}
            v_xor_b32 v{32+4*t}, s96, v{Z+4*t}
            v_xor_b32 v{33+4*t}, s97, v{Z+4*t+1}
            v_xor_b32 v{34+4*t}, s98, v{Z+4*t+2}
            v_xor_b32 v{35+4*t}, s99, v{Z+4*t+3}
            v_or3_b32 v{vCK}, v{32+4*t}, v{33+4*t}, v{34+4*t}
            v_bitop3_b32 v{vCK}, v{vCK}, v{35+4*t}, v25 bitop3:0xa8
            v_cmp_ne_u32 s[{M0+2*t}:{M0+2*t+1}], 0, v{vCK}
            s_bcnt1_i32_b64 s10, s[{M0+2*t}:{M0+2*t+1}]
            s_add_u32 s13, s13, s10
            {sk}:""")
        a(f"""s_mov_b64 exec, -1
        s_cmp_eq_u32 s13, 0
        s_cbranch_scc1 L_nost
        s_cmp_le_u32 s13, {self.pthr}
        s_cbranch_scc1 L_pn
        s_sleep {self.pslow}
        L_pn:
        s_sub_u32 s12, s12, 1
        s_cmp_gt_u32 s12, 0
        s_cbranch_scc1 L_pp
        L_nost:""")
        if self.stamps == 4:
            a("s_memrealtime s[52:53]")
        C = 32
        for st_ in (4, 8, 16):
            for t in range(0, 32, 2 * st_):
                a(f"v_pk_add_f32 v[{C+t}:{C+t+1}], v[{C+t}:{C+t+1}], v[{C+t+st_}:{C+t+st_+1}]")
                a(f"v_pk_add_f32 v[{C+t+2}:{C+t+3}], v[{C+t+2}:{C+t+3}], v[{C+t+st_+2}:{C+t+st_+3}]")
        self.merge4(C)
        self.rbf(C)
        a(f"v_mul_f32 v{C}, v{C}, v{vG}")
        self.rbf(C)
        a(f"""v_add_f32 v{C}, v{C}, v{vXC}
        v_cvt_pk_bf16_f32 v{C}, v{C}, v{C}
        s_cmp_eq_u32 s43, 0
        s_cbranch_scc1 L_fin
        s_mov_b32 s43, 0
        s_branch L_tail
        L_fin:
        s_mov_b32 exec_lo, 0x000f000f
        s_mov_b32 exec_hi, 0x000f000f
        buffer_store_short v{C}, v{vOUTA}, s[60:63], 0 offen {self.ost}""")
        if self.stamps == 4:
            a("s_memrealtime s[54:55]\nL_dump:\ns_sleep 127")
            self.dump = True
            self.stamp(15, 20, src=48)
            self.stamp(6, 20, src=44)
            self.stamp(7, 20, src=46)
            self.stamp(8, 20, src=52)
            self.stamp(9, 20, src=54)
            self.dump = False
        if self.padto:
            if self.padwg >= 0:
                a(f"s_cmp_lg_u32 s2, {self.padwg}\ns_cbranch_scc1 L_end")
            a(f"""s_mov_b64 exec, -1
            v_mov_b32 v40, 0
            ds_read_b32 v41, v40 offset:{L_TM + 48}
            s_waitcnt lgkmcnt(0)
            v_readfirstlane_b32 s9, v41
            s_mul_i32 s9, s9, {10 if self.diag == 1 else 1}
            s_add_u32 s48, s48, s9""")
            a(f"""L_pad:
            s_memrealtime s[50:51]
            s_waitcnt lgkmcnt(0)
            s_sub_u32 s50, s50, s48
            s_cmp_lt_i32 s50, {self.padto}
            s_cbranch_scc1 L_pad""")
        self.stamp(8, 60)

    def job_compute(self, n, C0, C1, TILES, vA, vACC, vSEL, vTG, vOUT, sOUT, waits):
        a = self.a
        for G in range(n):
            self.buildA(vA, C0 + G // 2, G & 1, vSEL)
            self.buildA(vA + 4, C1 + G // 2, G & 1, vSEL)
            a(f"s_waitcnt vmcnt({n-1-G})\ns_nop 0" if waits else "s_nop 1")
            self.mfma(vACC, vA, TILES + 4 * G, None if G == 0 else vACC)
            self.mfma(vACC + 4, vA + 4, TILES + 4 * G, None if G == 0 else vACC + 4)
        a("s_nop 7")
        for r in range(4):
            a(f"v_permlane32_swap_b32 v{vACC+r}, v{vACC+4+r}")
        a("s_nop 1")
        for r in range(4):
            self.dpp("v_add_f32", vACC + r, vACC + 4 + r, vACC + r, "row_ror:8")
        for r in range(4):
            self.tag(vACC + r, vACC + r, vTG, rn=True, pos=r)
        a(f"""s_mov_b32 exec_lo, 0x00ff00ff
        s_mov_b32 exec_hi, 0x00ff00ff
        buffer_store_dwordx4 v[{vACC}:{vACC+3}], v{vOUT}, s[56:59], {sOUT} offen sc1
        s_mov_b64 exec, -1""")

    def gen_dn(self, vL, vT3, vT4, vT5, vSEL, vTG, vCK, TI):
        a = self.a
        GP = TI + 64
        a(f"""s_mul_hi_u32 s53, s52, {(2**32 + 9)//10}
        s_mul_i32 s54, s53, 10
        s_sub_u32 s54, s52, s54""")
        self.srd(60, 34, 1536 * 1280)
        a(f"""v_lshrrev_b32 v{vT3}, 3, v{vL}
        v_mul_u32_u24 v{vT4}, {16*1280}, v{vT3}
        v_and_b32 v{vT5}, 7, v{vL}
        v_lshl_add_u32 v{vT4}, v{vT5}, 4, v{vT4}
        s_mul_i32 s9, s53, {128*1280}
        s_lshl_b32 s10, s54, 7
        s_add_u32 s9, s9, s10""")
        for G in range(16):
            a(f"buffer_load_dwordx4 v[{TI+4*G}:{TI+4*G+3}], v{vT4}, s[60:63], s9 offen offset:{(G%4)*1280} {self.mf}")
            if G % 4 == 3:
                a(f"s_add_u32 s9, s9, {4*1280}")
                if G == 7:
                    a("s_waitcnt vmcnt(0)")
        a(f"""v_lshrrev_b32 v60, 5, v{vL}
        v_lshlrev_b32 v61, 12, v60
        v_and_b32 v62, 31, v{vL}
        v_lshl_add_u32 v61, v62, 4, v61
        s_lshl_b32 s9, s53, 13
        s_add_u32 s9, s9, {GU_OFF}""")
        self.mpoll([(GP + 4 * t, f"buffer_load_dwordx4 v[{GP+4*t}:{GP+4*t+3}], v61, s[56:59], s9 offen offset:{512*t} sc1") for t in range(8)],
                   vTG, vCK, 32)
        self.sum_quads(GP, 4)
        self.sum_quads(GP + 16, 4)
        for r in range(4):
            self.rbf(GP + r)
            self.rbf(GP + 16 + r)
            self.sigmoid_like(GP + 4, GP + r)
            a(f"v_mul_f32 v{GP+r}, v{GP+r}, v{GP+4}")
            self.rbf(GP + r)
            a(f"v_mul_f32 v{GP+r}, v{GP+r}, v{GP+16+r}")
        a(f"""v_cvt_pk_bf16_f32 v{GP+4}, v{GP}, v{GP+1}
        v_cvt_pk_bf16_f32 v{GP+5}, v{GP+2}, v{GP+3}
        v_bfe_u32 v61, v{vL}, 4, 1
        v_lshlrev_b32 v62, 8, v61
        v_lshl_add_u32 v62, v60, 7, v62
        v_and_b32 v63, 15, v{vL}
        v_lshl_add_u32 v62, v63, 3, v62
        ds_write_b64 v62, v[{GP+4}:{GP+5}] offset:{L_HB}
        v_lshlrev_b32 v{vT3}, 5, v{vT3}
        v_mul_u32_u24 v{vT4}, 2560, v60
        v_lshl_add_u32 v{vT4}, v{vT5}, 5, v{vT4}
        v_lshl_add_u32 v{vT4}, v61, 4, v{vT4}
        s_mul_i32 s9, s53, 5120
        s_lshl_b32 s10, s54, 8
        s_add_u32 s9, s9, s10
        s_add_u32 s9, s9, {Y_OFF}
        s_waitcnt lgkmcnt(0)
        ds_read_b128 v[44:47], v{vT3} offset:{L_HB}
        ds_read_b128 v[48:51], v{vT3} offset:{L_HB+16}
        ds_read_b128 v[52:55], v{vT3} offset:{L_HB+256}
        ds_read_b128 v[56:59], v{vT3} offset:{L_HB+272}
        s_waitcnt lgkmcnt(0)""")
        self.job_compute(16, 44, 52, TI, 28, 36, vSEL, vTG, vT4, "s9", False)
        a("s_waitcnt vmcnt(0)")

    def text(self):
        hdr = open("recurrent_scan__mha_block_cached__moe_arch_mod__decode.s.ref").read().split("; Override launch")[0]
        self.gen()
        return hdr + HDR + f"""; @launch grid=(256,1,1) block=(512,1,1) lds={LDS_BYTES}
.amdgcn_target "amdgcn-amd-amdhsa--gfx950"
.text
.globl {KNAME}
.p2align 8
.type {KNAME},@function
{KNAME}:
""" + "\n".join(self.o) + f"""
.section .rodata,"a"
.p2align 6
.amdhsa_kernel {KNAME}
  .amdhsa_next_free_vgpr 256
  .amdhsa_next_free_sgpr 102
  .amdhsa_accum_offset 256
  .amdhsa_group_segment_fixed_size 0
  .amdhsa_kernarg_size 104
  .amdhsa_user_sgpr_count 2
  .amdhsa_user_sgpr_kernarg_segment_ptr 1
  .amdhsa_system_sgpr_workgroup_id_x 1
  .amdhsa_float_denorm_mode_32 3
.end_amdhsa_kernel
"""


if __name__ == "__main__":
    out = sys.argv[1]
    kw = {}
    for arg in sys.argv[2:]:
        k, v = arg.split("=", 1)
        try:
            v = int(v)
        except ValueError:
            pass
        kw[k] = v
    open(out, "w").write(G(**kw).text())
```

```python
import sys, struct

KNAME = "recurrent_scan__mha_block_cached__moe_arch_mod__decode_kernel"
TB = 201326592
CH = 786432
STEP = 12288

P_OFF = 0
ST_OFF = 256 * 2560
EP_OFF = ST_OFF + 64 * 256
Y_OFF = EP_OFF + 256
QX_OFF = Y_OFF + 12 * 5120
GU_OFF = QX_OFF + 32 * 4 * 2 * 768
TS_OFF = GU_OFF + 192 * 512
WS_USED = TS_OFF + 4 * 32768
STAMP_OFF = 2 << 20
WS_SRD = 4 << 20
assert WS_USED <= STAMP_OFF

L_XN = 0
L_QB = 2560
L_SC = L_QB + 512
OS = 416
L_O = L_SC + 4 * 1152
L_SCALE = L_O + 8 * OS
L_PROG = L_SCALE + 48
L_BOOST = L_SCALE + 52
L_WXOK = L_SCALE + 56
L_HB = L_SCALE + 64
L_STL = L_HB + 512
L_WX = (L_STL + 64 + 1023) // 1024 * 1024
WXS = 1040
L_TM = L_WX + 48 * WXS
LDS_BYTES = L_TM + 64

LOG2E = 0x3fb8aa3b
SCALE_F32 = 0x3d93cd3a
assert struct.unpack("<I", struct.pack("<f", 192 ** -0.5))[0] == SCALE_F32
def f32(x): return "0x%08x" % struct.unpack("<I", struct.pack("<f", x))[0]
NLOG2E = f32(-1.4426950408889634)

sWAVE, sH, sB, sSPLIT, sCHUNK, sBH = 3, 4, 5, 6, 7, 8
sT = 78
sMASK = 79
sWV = 69


HDR = '''; ---------------------------------------------------------------------------------------------
; Design (one launch, 256 workgroups of 8 waves, one per CU; workgroup = (batch b, head h, split)):
; ---------------------------------------------------------------------------------------------
'''


class G:
    def __init__(self, R0=16, R1=8, W=4, W0=3, kvflags="nt", wflags="nt", woflags="pl", moeflags="nt", rot=1, stamps=0,
                 poll_max=1 << 18, hprio=3, hprio1=0, hprio2=3, wobatch=8, nowo=0, nomoe=0, noq=0, nob0=0, D=2, GI=4, early=0, nok=0, nopoll=0, hskip=0, stsleep=16, DV=0, earlyV=-1, D0=0, hsleep=0, diagx=0, padto=0, padwg=-1, qsleep=0, psleep=0, NE=0, DE=4, qsleep2=0, NB=0, ctl=1, cps='1,5,8', gains='9,7,7', dead=30, cdelay='48,32,16', gb=0, brk=1, mix=1, kboost=-1, pre=2, wosleep=0, dry=1, pthr=32, pslow=8, pcap=24, pst='sc1', pld='sc1', ppre=0, trace=0, pq=0, spre=0, wide=1, VD=3, brd=6, ost='pl', tlb=0, stride=1, team=0, excl=0, js=0):
        self.js = js
        self.excl = excl
        self.team = team
        self.stride = stride
        self.tlb = tlb
        self.ost = '' if ost == 'pl' else ost.replace('_', ' ')
        self.VD, self.brd = VD, brd
        self.wide = wide
        self.spre = spre
        self.pq = pq
        self.trace = trace
        self.pst, self.pld, self.ppre = pst.replace('_', ' '), pld.replace('_', ' '), ppre
        self.dry, self.pthr, self.pslow, self.pcap = dry, pthr, pslow, pcap
        self.kboost, self.pre, self.wosleep = kboost, pre, wosleep
        self.gb, self.brk, self.mix = gb, brk, mix
        self.ctl = ctl
        self.NB = NB
        self.cps = [int(x) for x in str(cps).split(',')]
        self.gains = [float(x) for x in str(gains).split(',')]
        self.dead = dead
        self.cdelay = [int(x) for x in str(cdelay).split(',')]
        self.NE, self.DE, self.qsleep2 = NE, DE, qsleep2
        self.qsleep, self.psleep = qsleep, psleep
        self.padwg = padwg
        self.padto = padto
        self.diagx = diagx
        self.DV = DV or D
        self.earlyV = early if earlyV < 0 else earlyV
        self.D0 = D0 or D
        self.hsleep = hsleep
        self.nok, self.nopoll, self.hskip, self.stsleep = nok, nopoll, hskip, stsleep
        self.D, self.GI, self.early = D, GI, early
        self.nowo, self.nomoe, self.noq, self.nob0 = nowo, nomoe, noq, nob0
        self.hprio1, self.hprio2 = hprio1, hprio2
        self.o = []
        self.R0, self.R1, self.W, self.W0 = R0, R1, W, W0
        fl = lambda x: '' if x == 'pl' else x.replace('_', ' ')
        self.kvf, self.wf, self.mf = fl(kvflags), fl(wflags), fl(moeflags)
        self.wof = fl(woflags)
        self.rot = rot
        self.stamps = stamps
        self.poll_max = poll_max
        self.hprio = hprio
        self.wobatch = wobatch
        self.nlab = 0

    def a(self, s):
        for ln in s.split("\n"):
            ln = ln.strip()
            if ln:
                self.o.append(("" if ln.endswith(":") else "    ") + ln)

    def lab(self, p="L"):
        self.nlab += 1
        return f"{p}_{self.nlab}"

    def srd(self, q, lo, nbytes):
        self.a(f"s_mov_b32 s{q}, s{lo}\ns_mov_b32 s{q+1}, s{lo+1}\ns_mov_b32 s{q+2}, {nbytes}\ns_mov_b32 s{q+3}, 0x20000")

    def dpp(self, op, d, s0, s1, ctrl):
        self.a(f"{op}_dpp v{d}, v{s0}, v{s1} {ctrl} row_mask:0xf bank_mask:0xf")

    def row_reduce(self, op, v, steps=(1, 2, 4, 8)):
        for s in steps:
            self.a("s_nop 1")
            self.dpp(op, v, v, v, f"row_ror:{s}")

    def swap_reduce(self, op, v, t, which):
        self.a(f"v_mov_b32 v{t}, v{v}\ns_nop 1\nv_permlane{which}_swap_b32 v{v}, v{t}\ns_nop 1\n{op} v{v}, v{v}, v{t}")

    def stamp(self, idx, vt, st=50, src=None):
        if not self.stamps:
            return
        if self.stamps == 3 and (self.cls == "H" or idx in (0, 1, 2, 3, 4)):
            return
        if self.stamps == 4 and not getattr(self, "dump", False):
            return
        if src is None:
            self.a(f"s_memrealtime s[{st}:{st+1}]")
            src = st
        if self.stamps == 2:
            slot = (idx if idx < 15 else 0) + (1 if self.cls == "S" else 7)
            if self.cls == "H" and idx not in (1, 2, 4, 7, 8):
                return
            if self.cls == "H":
                slot = {1: 8, 2: 9, 4: 10, 7: 11, 8: 12}[idx]
            elif idx == 15:
                slot = 1
            else:
                slot = 2 + idx
            inv = f"s_mov_b32 s65, s{src}"
            Lsk = self.lab("sk")
            if not (self.cls == "H" and idx == 8):
                self.a(f"""s_waitcnt lgkmcnt(0)
                s_cmp_lg_u32 s2, 0
                s_cbranch_scc1 {Lsk}""")
            self.a(f"""s_waitcnt lgkmcnt(0)
            {inv}
            v_mov_b32 v{vt}, s65
            v_mov_b32 v{vt+2}, {slot*4}
            s_mov_b64 exec, 1
            global_atomic_umax v{vt+2}, v{vt}, s[38:39] sc1
            s_mov_b64 exec, -1
            {Lsk}:""")
            return
        self.a(f"""s_lshl_b32 s65, s2, 3
        s_add_u32 s65, s65, s{sWV}
        s_lshl_b32 s65, s65, 7
        s_add_u32 s65, s65, {STAMP_OFF + idx*8}
        s_waitcnt lgkmcnt(0)
        v_mov_b32 v{vt}, s{src}
        v_mov_b32 v{vt+1}, s{src+1}
        v_mov_b32 v{vt+2}, 0
        s_mov_b64 exec, 1
        buffer_store_dwordx2 v[{vt}:{vt+1}], v{vt+2}, s[56:59], s65 offen
        s_mov_b64 exec, -1""")

    def selectors(self, vL, base, t0, t1, t2):
        a = self.a
        a(f"""v_and_b32 v{t0}, 1, v{vL}
        v_cmp_eq_u32 vcc, 1, v{t0}
        v_mov_b32 v{t0}, 0x0c0c0100
        v_mov_b32 v{t1}, 0x01000c0c
        v_cndmask_b32 v{t0}, v{t0}, v{t1}, vcc
        v_mov_b32 v{t1}, 0x0c0c0302
        v_mov_b32 v{t2}, 0x03020c0c
        v_cndmask_b32 v{t1}, v{t1}, v{t2}, vcc
        v_bfe_u32 v{t2}, v{vL}, 1, 2""")
        for j in range(4):
            a(f"""v_cmp_eq_u32 vcc, {j}, v{t2}
            v_mov_b32 v{base+j}, 0x0c0c0c0c
            v_mov_b32 v{base+4+j}, 0x0c0c0c0c
            v_cndmask_b32 v{base+j}, v{base+j}, v{t0}, vcc
            v_cndmask_b32 v{base+4+j}, v{base+4+j}, v{t1}, vcc""")

    def buildA(self, A, P, hi, sel):
        for j in range(4):
            self.a(f"v_perm_b32 v{A+j}, v{P}, v{P}, v{sel + (4 if hi else 0) + j}")

    def mfma(self, D, A, B, C):
        c = "0" if C is None else f"v[{C}:{C+3}]"
        self.a(f"v_mfma_f32_16x16x32_bf16 v[{D}:{D+3}], v[{A}:{A+3}], v[{B}:{B+3}], {c}")

    def smf(self, D, A, B, IDX):
        self.a(f"v_smfmac_f32_16x16x64_bf16 v[{D}:{D+3}], v[{A}:{A+3}], v[{B}:{B+7}], v{IDX}")

    def rbf(self, v):
        self.a(f"v_cvt_pk_bf16_f32 v{v}, v{v}, v{v}\nv_lshlrev_b32 v{v}, 16, v{v}")

    def tag(self, d, s, vTG, rn=False, pos=None):
        if rn:
            self.a(f"v_add_u32 v{d}, {0x800 if rn == 12 else 8}, v{s}")
            s = d
        if pos is None:
            self.a(f"v_and_or_b32 v{d}, v{s}, s{sMASK}, v{vTG}")
        else:
            self.a(f"v_bfi_b32 v{d}, v{vTG}, s{96+pos}, v{s}")

    def chk4(self, acc, x, vTG, first=False, n=4, full=False):
        for r in range(n):
            if full:
                self.a(f"v_xor_b32 v{x+r}, v{x+r}, v{vTG}")
            else:
                self.a(f"v_xor_b32 v{x+r}, s{96 + r % 4}, v{x+r}")
        for r in range(0, n, 2):
            if first and r == 0:
                self.a(f"v_or_b32 v{acc}, v{x}, v{x+1}")
            else:
                self.a(f"v_or3_b32 v{acc}, v{x+r}, v{x+r+1}, v{acc}")

    def poll_tail(self, acc, Lretry, Ldone, sleep):
        self.a(f"""v_and_b32 v{acc}, 0xff, v{acc}
        v_cmp_ne_u32 vcc, 0, v{acc}
        s_cbranch_vccz {Ldone}""")
        if sleep:
            self.a(f"s_sleep {sleep}")
        self.a(f"""s_sub_u32 s12, s12, 1
        s_cmp_gt_u32 s12, 0
        s_cbranch_scc1 {Lretry}
        {Ldone}:""")

    def mpoll(self, loads, vTG, vCK, sleep, mask=None, nd=4, M0=80):
        a = self.a
        L, Ld = self.lab("mp"), self.lab("mpd")
        for t in range(len(loads)):
            if mask is None:
                a(f"s_mov_b64 s[{M0+2*t}:{M0+2*t+1}], -1")
            else:
                a(f"s_mov_b32 s{M0+2*t}, {mask[0]}\ns_mov_b32 s{M0+2*t+1}, {mask[1]}")
        a(f"s_mov_b32 s12, {self.poll_max}\n{L}:")
        for t, (r, txt) in enumerate(loads):
            sk = self.lab("ml")
            a(f"s_mov_b64 exec, s[{M0+2*t}:{M0+2*t+1}]\ns_cbranch_execz {sk}\n{txt}\n{sk}:")
        a("s_mov_b64 s[100:101], 0\ns_waitcnt vmcnt(0)")
        for t, (r, txt) in enumerate(loads):
            sk = self.lab("mc")
            a(f"s_mov_b64 exec, s[{M0+2*t}:{M0+2*t+1}]\ns_cbranch_execz {sk}")
            self.chk4(vCK, r, vTG, first=True, n=nd)
            a(f"""v_and_b32 v{vCK}, 15, v{vCK}
            v_cmp_ne_u32 vcc, 0, v{vCK}
            s_cmp_lg_u64 vcc, 0
            s_cselect_b64 s[{M0+2*t}:{M0+2*t+1}], s[{M0+2*t}:{M0+2*t+1}], 0
            s_or_b64 s[100:101], s[100:101], s[{M0+2*t}:{M0+2*t+1}]
            {sk}:""")
        a(f"""s_mov_b64 exec, -1
        s_cmp_eq_u64 s[100:101], 0
        s_cbranch_scc1 {Ld}""")
        if sleep:
            a(f"s_sleep {sleep}")
        a(f"""s_sub_u32 s12, s12, 1
        s_cmp_gt_u32 s12, 0
        s_cbranch_scc1 {L}
        {Ld}:""")

    def decide(self, v, t, ci, vZ0):
        self.a(f"""v_add_f32 v{t}, {f32(float(self.dead))}, v{v}
        v_mul_f32 v{t}, {f32(self.gb / 100.0)}, v{t}
        v_min_f32 v{t}, 0, v{t}
        v_subrev_f32 v{v}, {f32(float(self.dead))}, v{v}
        v_mul_f32 v{v}, {f32(self.gains[ci] / 100.0)}, v{v}
        v_max_f32 v{v}, 0, v{v}
        v_add_f32 v{v}, v{v}, v{t}
        v_min_f32 v{v}, 64.0, v{v}
        v_max_f32 v{v}, {f32(-24.0)}, v{v}
        v_cvt_i32_f32 v{v}, v{v}
        v_and_b32 v{v}, 0xffff, v{v}
        v_or_b32 v{v}, {(ci+1) << 16}, v{v}
        ds_write_b32 v{vZ0}, v{v} offset:{L_BOOST}""")

    def sum_quads(self, X, n):
        for t in range(1, n):
            self.a(f"v_pk_add_f32 v[{X}:{X+1}], v[{X}:{X+1}], v[{X+4*t}:{X+4*t+1}]")
            self.a(f"v_pk_add_f32 v[{X+2}:{X+3}], v[{X+2}:{X+3}], v[{X+4*t+2}:{X+4*t+3}]")

    def merge4(self, X):
        a = self.a
        a(f"""s_nop 1
        v_permlane16_swap_b32 v{X}, v{X+1}
        v_permlane16_swap_b32 v{X+2}, v{X+3}
        s_nop 1
        v_add_f32 v{X}, v{X}, v{X+1}
        v_add_f32 v{X+2}, v{X+2}, v{X+3}
        s_nop 1
        v_permlane32_swap_b32 v{X}, v{X+2}
        s_nop 1
        v_add_f32 v{X}, v{X}, v{X+2}""")
        self.row_reduce("v_add_f32", X, steps=(4, 8))

    def sigmoid_like(self, d, x):
        self.a(f"""v_mul_f32 v{d}, {NLOG2E}, v{x}
        v_exp_f32 v{d}, v{d}
        s_nop 0
        v_add_f32 v{d}, 1.0, v{d}
        v_rcp_f32 v{d}, v{d}
        s_nop 0""")

    def rotcode(self):
        if self.rot < 100:
            return f"s_mul_i32 s9, s7, {self.rot}"
        if self.rot == 100:
            return "s_lshr_b32 s9, s2, 3\ns_lshl_b32 s11, s2, 5\ns_add_u32 s9, s9, s11"
        if self.rot == 101:
            return "s_lshl_b32 s9, s5, 4\ns_add_u32 s9, s9, s7"
        if self.rot == 102:
            return "s_lshr_b32 s9, s7, 6\ns_mul_i32 s9, s9, 17\ns_add_u32 s9, s9, s7"
        raise ValueError

    def wide_tag(self):
        self.a(f"""s_mov_b32 s{sMASK}, 0xfffff000
        s_mul_i32 s10, s{sT}, 0x9e3779b1
        s_and_b32 s96, s{sT}, 0xfff
        s_bfe_u32 s97, s10, 0xc0008
        s_lshr_b32 s98, s10, 20
        s_mul_i32 s10, s{sT}, 0x85ebca6b
        s_lshr_b32 s99, s10, 20""")

    def epoch_load(self):
        self.a(f"s_load_dword s{sT}, s[40:41], {EP_OFF}")

    def epoch_use(self, vTG):
        self.a(f"""s_lshr_b32 s9, s0, 4
        s_lshl_b32 s9, s9, 8
        s_add_u32 s{sT}, s{sT}, s9
        s_add_u32 s{sT}, s{sT}, 1
        s_mul_i32 s9, s{sT}, 0x9e3779b1
        s_and_b32 s96, s{sT}, 15
        s_bfe_u32 s97, s9, 0x40014
        s_bfe_u32 s98, s9, 0x40018
        s_lshr_b32 s99, s9, 28
        v_mov_b32 v{vTG}, 15""")

    def gen(self):
        a = self.a
        a(f"""s_cmp_ge_u32 s2, 256
        s_cbranch_scc1 L_end
        s_load_dwordx16 s[16:31], s[0:1], 0
        s_load_dwordx8 s[32:39], s[0:1], 64
        s_load_dwordx2 s[40:41], s[0:1], 96""")
        if self.stamps or self.padto or self.trace:
            a("s_memrealtime s[48:49]")
        a(f"""v_lshrrev_b32 v1, 6, v0
        v_and_b32 v0, 63, v0
        v_readfirstlane_b32 s3, v1
        s_and_b32 s9, s2, 7
        s_lshr_b32 s10, s2, 3
        s_lshl_b32 s4, s9, 2
        s_lshr_b32 s11, s10, 3
        s_add_u32 s4, s4, s11
        s_bfe_u32 s5, s10, 0x10002
        s_and_b32 s6, s10, 3
        s_lshl_b32 s8, s5, 5
        s_add_u32 s8, s8, s4
        s_lshl_b32 s7, s8, 2
        s_add_u32 s7, s7, s6
        s_mov_b32 s{sWV}, s3
        s_cmp_ge_u32 s3, 4
        s_cbranch_scc1 L_H""")
        self.gen_S()
        a("L_H:")
        a("; ================= H waves =================")
        self.gen_H()
        a("L_end:\ns_endpgm")

    def gen_S(self):
        self.cls = "S"
        a = self.a
        R0, D, GI = self.R0, self.D, self.GI
        RS = {2: 4, 3: 6}[D]
        R1 = 4
        DV = self.DV
        RSV = {2: 4, 3: 6}[DV]
        D0 = self.D0
        assert (64 - R0) % RS == 0
        NITK = (64 - R0) // RS
        W = 6
        vL = 0
        vOFF, vSCW, vSCR, vT0, vT1, vT2, vT3, vOW = 1, 2, 3, 4, 5, 6, 7, 8
        vA0, vA1, vTG = 9, 10, 11
        vQ = 12
        vSEL = 24
        vACC = 32
        vA = 44
        vP = 52
        RING = 64
        assert RING + R0 * 12 <= 256
        sOFF, sBEG, sEND, sIT, sCNT = 42, 43, 64, 66, 65
        a(f"""v_lshrrev_b32 v{vT0}, 3, v{vL}
        v_and_b32 v{vT1}, 7, v{vL}
        v_mul_u32_u24 v{vOFF}, 384, v{vT0}
        v_lshl_add_u32 v{vOFF}, v{vT1}, 4, v{vOFF}
        s_mul_i32 s9, s3, 3072""")
        if GI == 4:
            stepb = 4 * STEP
            a(f"""s_mul_i32 s11, s6, {STEP}
            s_add_u32 s9, s9, s11
            s_mul_i32 s{sBEG}, s8, {4*CH}
            s_add_u32 s{sEND}, s{sBEG}, {4*CH}
            v_add_u32 v{vOFF}, s9, v{vOFF}
            s_mul_i32 s9, s8, {self.rot}""")
        else:
            stepb = STEP
            a(f"""v_add_u32 v{vOFF}, s9, v{vOFF}
            s_mul_i32 s{sBEG}, s7, {CH}
            s_add_u32 s{sEND}, s{sBEG}, {CH}
            {self.rotcode()}""")
        a(f"""s_and_b32 s9, s9, 63
        s_mul_i32 s9, s9, {stepb}
        s_add_u32 s{sOFF}, s{sBEG}, s9
        s_waitcnt lgkmcnt(0)""")
        self.srd(52, 18, TB)
        vTR = 59
        def tr():
            if self.trace:
                a(f"""s_memrealtime s[80:81]
                s_waitcnt lgkmcnt(0)
                v_writelane_b32 v{vTR}, s80, m0
                s_add_u32 m0, m0, 1""")
        if self.trace:
            a(f"s_mov_b32 m0, 1\nv_mov_b32 v{vTR}, 0\nv_writelane_b32 v{vTR}, s48, 0")
        self.fs = []
        def fstamp():
            if self.stamps == 3 and len(self.fs) < 9:
                r = 80 + 2 * len(self.fs)
                a(f"s_memrealtime s[{r}:{r+1}]")
                self.fs.append(r)
        fstamp()

        def load(slot, sw=None):
            for j in range(3):
                r = RING + (slot * 3 + j) * 4
                a(f"buffer_load_dwordx4 v[{r}:{r+3}], v{vOFF}, s[52:55], s{sOFF} offen offset:{128*j} {self.kvf}")
            if self.stride == 1:
                a(f"""s_add_u32 s{sOFF}, s{sOFF}, {stepb}
                s_cmp_ge_u32 s{sOFF}, s{sEND}
                s_cselect_b32 s{sOFF}, s{sBEG}, s{sOFF}""")
            else:
                a(f"""s_add_u32 s{sOFF}, s{sOFF}, {stepb*self.stride}
                s_sub_u32 s68, s{sOFF}, {64*stepb}
                s_cmp_ge_u32 s{sOFF}, s{sEND}
                s_cselect_b32 s{sOFF}, s68, s{sOFF}""")
            if sw == "kv":
                a(f"""s_cmp_eq_u32 s{sIT}, {NITK-1}
                s_cselect_b32 s52, s20, s52
                s_cselect_b32 s53, s21, s53""")
            elif sw is not None:
                a(f"""s_cmp_eq_u32 s{sIT}, {sw}
                s_cselect_b32 s54, 0, s54""")
        thr = 3 * (D - 1) + self.early
        for s in range(D0):
            load(s)
        self.epoch_load()
        self.srd(56, 40, WS_SRD)
        self.selectors(vL, vSEL, vT2, vT3, vOW)
        a(f"""s_mul_i32 s9, s3, 1152
        s_add_u32 s9, s9, {L_SC}
        v_mul_u32_u24 v{vSCW}, 144, v{vT0}
        v_add_u32 v{vSCW}, s9, v{vSCW}
        v_mov_b32 v{vSCR}, v{vSCW}""")
        a(f"""v_lshrrev_b32 v{vT2}, 5, v{vL}
        s_lshl_b32 s9, s3, 1
        v_add_u32 v{vT2}, s9, v{vT2}
        v_mul_u32_u24 v{vOW}, {OS}, v{vT2}
        v_lshl_add_u32 v{vOW}, v{vT1}, 3, v{vOW}
        v_bfe_u32 v{vT2}, v{vL}, 4, 1
        v_lshl_add_u32 v{vOW}, v{vT2}, 2, v{vOW}
        v_add_u32 v{vOW}, {L_O}, v{vOW}
        v_lshlrev_b32 v{vT2}, 4, v{vT1}""")
        for s in range(D0, R0):
            a(f"s_waitcnt vmcnt({3*(D0-1)})")
            if s in (2, 3, 4, 6, 8, 10, 12, 14):
                fstamp()
            if s % 4 == 0:
                tr()
            load(s)
        a("s_waitcnt lgkmcnt(0)")
        self.epoch_use(vTG)
        self.stamp(15, vA, src=48)
        self.stamp(0, vA)
        tr()
        a("s_barrier")
        tr()
        self.stamp(1, vA)
        for j in range(3):
            a(f"ds_read_b128 v[{vQ+4*j}:{vQ+4*j+3}], v{vT2} offset:{L_QB + 128*j}")
        a(f"s_mov_b32 s{sIT}, 0\ns_mov_b32 s10, {SCALE_F32}\ns_waitcnt lgkmcnt(0)")

        sUSED, sTGT = 44, 45
        def throttle(dist=3):
            Lb, Lc = self.lab("bo"), self.lab("bc")
            a(f"""s_waitcnt vmcnt({3*(dist-1)})
            s_cmp_gt_i32 s{sUSED}, 0
            s_cbranch_scc1 {Lb}
            s_waitcnt vmcnt(3)
            s_cmp_eq_u32 s{sUSED}, 0
            s_cbranch_scc1 {Lc}
            s_waitcnt vmcnt({self.brk})
            s_add_i32 s{sUSED}, s{sUSED}, 2
            {Lb}:
            s_sub_i32 s{sUSED}, s{sUSED}, 1
            {Lc}:""")
        def kpair(s, off):
            ra, rb = RING + s * 12, RING + (s + 1) * 12
            for i in range(12):
                c0 = "0" if i == 0 else f"v{vA0}"
                c1 = "0" if i == 0 else f"v{vA1}"
                a(f"v_dot2_f32_bf16 v{vA0}, v{ra+i}, v{vQ+i}, {c0}")
                a(f"v_dot2_f32_bf16 v{vA1}, v{rb+i}, v{vQ+i}, {c1}")
            a("s_nop 2")
            self.dpp("v_add_f32", vA0, vA0, vA0, "quad_perm:[1,0,3,2]")
            self.dpp("v_add_f32", vA1, vA1, vA1, "quad_perm:[1,0,3,2]")
            a("s_nop 0")
            self.dpp("v_add_f32", vA0, vA0, vA0, "quad_perm:[2,3,0,1]")
            self.dpp("v_add_f32", vA1, vA1, vA1, "quad_perm:[2,3,0,1]")
            a("s_nop 0")
            self.dpp("v_add_f32", vA0, vA0, vA0, "row_half_mirror")
            self.dpp("v_add_f32", vA1, vA1, vA1, "row_half_mirror")
            a(f"""v_cvt_pk_bf16_f32 v{vT2}, v{vA0}, v{vA1}
            v_lshlrev_b32 v{vA0}, 16, v{vT2}
            v_and_b32 v{vA1}, 0xffff0000, v{vT2}
            v_mul_f32 v{vA0}, s10, v{vA0}
            v_mul_f32 v{vA1}, s10, v{vA1}
            v_cvt_pk_bf16_f32 v{vT2}, v{vA0}, v{vA1}
            ds_write_b32 v{vSCW}, v{vT2} offset:{off}""")
        npairs = R0 // 2
        issue_after = {0: 0, 3: 1} if D == 2 else {0: 0, 2: 1, 4: 2}
        issued = 0
        for p in range(npairs):
            a(f"s_waitcnt vmcnt({3 * ((R0 - 2*p - 2) + issued)})")
            kpair(2 * p, p * 4)
            if p in issue_after:
                a(f"s_waitcnt vmcnt({thr})")
                load(issue_after[p])
                issued += 1
        a(f"v_add_u32 v{vSCW}, {2*R0}, v{vSCW}")
        if self.kboost >= 0:
            assert D == 3
            a(f"s_mov_b32 s{sUSED}, {self.kboost}")
        a("L_kloop:")
        tr()
        for s in range(RS):
            if self.kboost >= 0:
                throttle()
            else:
                a(f"s_waitcnt vmcnt({thr})")
            load((s + D) % RS, "kv" if s == RS - D - 1 else None)
            if s & 1:
                if self.early:
                    a(f"s_waitcnt vmcnt({3*D})")
                if not self.nok:
                    kpair(s - 1, (s // 2) * 4)
        a(f"""v_add_u32 v{vSCW}, {2*RS}, v{vSCW}
        s_add_u32 s{sIT}, s{sIT}, 1
        s_cmp_lt_u32 s{sIT}, {NITK}
        s_cbranch_scc1 L_kloop""")
        for s in range(D, R1):
            load(s)
        self.stamp(2, vA)
        tr()
        F = 32
        a(f"""v_lshl_add_u32 v{vT2}, v{vT1}, 4, v{vSCR}
        s_memrealtime s[46:47]
        s_waitcnt lgkmcnt(0)
        ds_read_b128 v[40:43], v{vT2}
        s_waitcnt lgkmcnt(0)""")
        for i in range(4):
            a(f"v_lshlrev_b32 v{F+2*i}, 16, v{40+i}\nv_and_b32 v{F+2*i+1}, 0xffff0000, v{40+i}")
        a(f"""v_max3_f32 v{vA0}, v{F}, v{F+1}, v{F+2}
        v_max3_f32 v{vA0}, v{vA0}, v{F+3}, v{F+4}
        v_max3_f32 v{vA0}, v{vA0}, v{F+5}, v{F+6}
        v_max_f32 v{vA0}, v{vA0}, v{F+7}""")
        self.row_reduce("v_max_f32", vA0)
        self.swap_reduce("v_max_f32", vA0, vT3, 16)
        self.swap_reduce("v_max_f32", vA0, vT3, 32)
        for i in range(8):
            a(f"v_sub_f32 v{F+i}, v{F+i}, v{vA0}\nv_mul_f32 v{F+i}, {LOG2E}, v{F+i}")
        for i in range(8):
            a(f"v_exp_f32 v{F+i}, v{F+i}")
        a("s_nop 0")
        a(f"v_add_f32 v{vA1}, v{F}, v{F+1}")
        for i in range(2, 8):
            a(f"v_add_f32 v{vA1}, v{vA1}, v{F+i}")
        for i in range(4):
            a(f"v_cvt_pk_bf16_f32 v{40+i}, v{F+2*i}, v{F+2*i+1}")
        a(f"ds_write_b128 v{vT2}, v[40:43]")
        self.row_reduce("v_add_f32", vA1)
        self.swap_reduce("v_add_f32", vA1, vT3, 16)
        self.swap_reduce("v_add_f32", vA1, vT3, 32)
        a("s_waitcnt lgkmcnt(0)")
        def pread(n):
            if n == 2: a(f"ds_read_b64 v[{vP}:{vP+1}], v{vSCR}")
            elif n == 3: a(f"ds_read_b32 v{vP}, v{vSCR}\nds_read_b32 v{vP+1}, v{vSCR} offset:4\nds_read_b32 v{vP+2}, v{vSCR} offset:8")
            else: raise ValueError(n)
            a(f"v_add_u32 v{vSCR}, {4*n}, v{vSCR}")
        pread(R1 // 2)
        self.tag(44, vA0, vTG, pos=0)
        self.tag(45, vA1, vTG, pos=1)
        if self.diagx:
            a(f"s_getreg_b32 s9, hwreg(HW_REG_XCC_ID, 0, 4)\ns_lshl_b32 s9, s9, 8\nv_or_b32 v44, s9, v44")
        a(f"""v_mov_b32 v46, s{sT}
        v_mov_b32 v47, s46
        s_lshl_b32 s9, s3, 4
        v_mov_b32 v{vA0}, s9
        s_mov_b64 exec, 1
        ds_write_b128 v{vA0}, v[44:47] offset:{L_STL}
        s_mov_b64 exec, -1""")
        self.wide_tag()
        a(f"""v_mov_b32 v{vTG}, s96
        s_mov_b32 exec_lo, 0x22222222
        v_mov_b32 v{vTG}, s97
        s_mov_b32 exec_lo, 0x44444444
        v_mov_b32 v{vTG}, s98
        s_mov_b32 exec_lo, 0x88888888
        v_mov_b32 v{vTG}, s99
        s_mov_b32 exec_lo, -1""")
        for i in range(12):
            a(f"v_mov_b32 v{vACC+i}, 0")
        a(f"s_mov_b32 s{sIT}, 0\ns_waitcnt lgkmcnt(0)")
        a(f"""v_and_b32 v{vT0}, 7, v{vL}
        v_mul_u32_u24 v{vT0}, {OS}, v{vT0}
        v_lshrrev_b32 v{vT1}, 4, v{vL}
        v_lshl_add_u32 v{vT0}, v{vT1}, 4, v{vT0}
        v_bfe_u32 v{vT2}, v{vL}, 3, 1
        v_mul_u32_u24 v{vT3}, 192, v{vT2}
        v_add_u32 v{vT0}, v{vT0}, v{vT3}
        v_mul_u32_u24 v18, 0xaaaa, v{vT2}
        v_add_u32 v18, 0x4444, v18
        v_lshl_or_b32 v18, v18, 16, v18
        v_and_b32 v{vT2}, 1, v{vT1}
        v_and_b32 v{vT3}, 31, v{vL}
        v_lshlrev_b32 v{vT3}, 2, v{vT3}
        v_lshlrev_b32 v{vT2}, 3, v{vT2}
        v_lshlrev_b32 v{vT1}, 8, v{vT1}
        v_bfe_u32 v{vA0}, v{vL}, 3, 1
        v_lshl_add_u32 v{vT1}, v{vA0}, 4, v{vT1}
        v_and_b32 v{vA0}, 7, v{vL}
        v_mul_u32_u24 v{vA0}, {WXS}, v{vA0}
        s_lshl_b32 s9, s3, 6
        s_add_u32 s9, s9, {L_WX}
        v_add3_u32 v{vT1}, v{vT1}, v{vA0}, s9
        s_mul_i32 s9, s7, 2560
        s_lshl_b32 s11, s3, 7
        s_add_u32 s9, s9, s11
        s_add_u32 s9, s9, {P_OFF + 2048}
        s_mov_b32 s67, s9""")
        self.stamp(3, 60)
        tr()

        def vmf(g, slot):
            A = vA + 4 * ((g + 1) & 1)
            for j in range(3):
                self.mfma(vACC + 4 * j, A, RING + (slot * 3 + j) * 4, vACC + 4 * j)
        def vA_(g):
            self.buildA(vA + 4 * ((g + 1) & 1), vP + g // 2, g & 1, vSEL)
        NE, DE = self.NE, self.DE
        RSV = 6
        VD_ = self.VD
        sUSED, sTGT = 44, 45
        vZ, vB = 62, 63
        assert (64 - R1 - NE) % RSV == 0 and NE == 12
        NITV = (64 - R1 - NE) // RSV
        def prog(val):
            L = self.lab("pg")
            a(f"""s_cmp_lg_u32 s3, 0
            s_cbranch_scc1 {L}
            v_mov_b32 v{vB}, {val}
            v_lshlrev_b32 v60, 2, v{vB}
            v_mov_b32 v61, s46
            ds_write_b32 v60, v61 offset:{L_TM}
            ds_write_b32 v{vZ}, v{vB} offset:{L_PROG}
            {L}:""")
        a(f"v_mov_b32 v{vZ}, 0\ns_mov_b32 s{sUSED}, 0\ns_mov_b32 s{sTGT}, 0")
        prog(1)
        issued = 0
        for g in range(R1):
            vA_(g)
            if g == R1 - 1:
                pread(3)
                a(f"ds_read_b32 v{vB}, v{vZ} offset:{L_BOOST}")
            if g >= 4 - VD_:
                a(f"s_waitcnt vmcnt(3)")
                load((R1 + issued) % RSV)
                issued += 1
            else:
                a(f"s_waitcnt vmcnt({3*(R1 - g - 1)})\ns_nop 0")
            vmf(g, g)
        a(f"""L_vloop:
        s_memrealtime s[46:47]
        s_waitcnt lgkmcnt(0)
        v_readfirstlane_b32 s9, v{vB}
        s_sext_i32_i16 s11, s9
        s_cmp_lg_u32 s9, s{sTGT}
        s_cselect_b32 s{sUSED}, s11, s{sUSED}
        s_mov_b32 s{sTGT}, s9
        s_add_u32 s9, s{sIT}, 2""")
        prog("s9")
        tr()
        for s in range(RSV):
            slot = (R1 + s) % RSV
            vA_(s)
            if s == RSV - 1:
                pread(3)
                a(f"ds_read_b32 v{vB}, v{vZ} offset:{L_BOOST}")
            if self.brd == 3 and s == 2:
                a(f"ds_read_b32 v{vB}, v{vZ} offset:{L_BOOST}")
            if self.brd == 3 and s == 3:
                a(f"""s_waitcnt lgkmcnt(0)
                v_readfirstlane_b32 s9, v{vB}
                s_sext_i32_i16 s11, s9
                s_cmp_lg_u32 s9, s{sTGT}
                s_cselect_b32 s{sUSED}, s11, s{sUSED}
                s_mov_b32 s{sTGT}, s9""")
            throttle(VD_)
            load((slot + VD_) % RSV)
            vmf(s, slot)
        a(f"""s_add_u32 s{sIT}, s{sIT}, 1
        s_cmp_lt_u32 s{sIT}, {NITV}
        s_cbranch_scc1 L_vloop""")
        slot_of = lambda e: (R1 + e) % RSV if e < VD_ else e + 6 - VD_
        nxt = VD_
        a(f"""s_waitcnt lgkmcnt(0)
        v_readfirstlane_b32 s9, v{vB}
        s_sext_i32_i16 s11, s9
        s_cmp_lg_u32 s9, s{sTGT}
        s_cselect_b32 s{sUSED}, s11, s{sUSED}""")
        for e in range(NE):
            if e == 6:
                a("s_waitcnt lgkmcnt(0)")
            if e % 6 == 0:
                tr()
            vA_(e % 6)
            if e == 5:
                pread(3)
            if e == 7 and self.spre:
                a(f"""L_wxw:
                ds_read_b64 v[60:61], v{vZ} offset:{L_WXOK}
                s_waitcnt lgkmcnt(0)
                v_and_b32 v60, v60, v61
                s_nop 0
                v_readfirstlane_b32 s9, v60
                s_cmp_eq_u32 s9, 0
                s_cbranch_scc1 L_wxw""")
                for kp in range(3):
                    for hl in range(2):
                        for k2 in range(2):
                            r = RING + (2 * kp + hl) * 8 + 4 * k2
                            a(f"ds_read_b128 v[{r}:{r+3}], v{vT1} offset:{8*WXS*(2*kp+k2) + 32*hl}")
            if e < self.NB:
                throttle(VD_)
                load(slot_of(nxt)); nxt += 1
            else:
                a(f"s_waitcnt vmcnt({3*(nxt - e - 1)})")
                n0 = nxt
                while nxt < NE and nxt - e - 1 < DE:
                    load(slot_of(nxt)); nxt += 1
                if nxt == n0:
                    a("s_nop 0")
            vmf(e % 6, slot_of(e))
        a("s_nop 3\ns_mov_b32 exec_lo, 0x00ff00ff\ns_mov_b32 exec_hi, 0xff00ff00")
        OC = 12
        for j in range(3):
            a(f"""v_cvt_pk_bf16_f32 v{OC+2*j}, v{vACC+4*j}, v{vACC+4*j+1}
            v_cvt_pk_bf16_f32 v{OC+2*j+1}, v{vACC+4*j+2}, v{vACC+4*j+3}
            ds_write2_b32 v{vOW}, v{OC+2*j}, v{OC+2*j+1} offset0:{16*j} offset1:{16*j+48}""")
        a("s_mov_b64 exec, -1")
        for r in (20, 21, 22, 23, 52, 53, 54, 55):
            a(f"v_mov_b32 v{r}, 0")
        a("s_waitcnt lgkmcnt(0)")
        self.stamp(4, 56)
        tr()
        a("s_barrier")
        AA = RING + 12 * W
        BB = AA + 24
        assert BB + 48 <= 256
        D0, D1, SCL = 20, 52, 40
        if self.spre:
            BB = RING
            for kp in range(3):
                a(f"ds_read_b128 v[{AA+4*kp}:{AA+4*kp+3}], v{vT0} offset:{L_O + 64*kp}")
            a(f"ds_read_b64 v[{SCL}:{SCL+1}], v{vT2} offset:{L_SCALE}")
            for kp in range(3):
                a(f"s_waitcnt lgkmcnt({3-kp})")
                self.smf(D0, AA + 4 * kp, BB + (2 * kp) * 8, 18)
                self.smf(D1, AA + 4 * kp, BB + (2 * kp + 1) * 8, 18)
        else:
            for kp in range(3):
                a(f"ds_read_b128 v[{AA+4*kp}:{AA+4*kp+3}], v{vT0} offset:{L_O + 64*kp}")
                for hl in range(2):
                    for k2 in range(2):
                        r = BB + (2 * kp + hl) * 8 + 4 * k2
                        a(f"ds_read_b128 v[{r}:{r+3}], v{vT1} offset:{8*WXS*(2*kp+k2) + 32*hl}")
                if kp == 1:
                    a("s_waitcnt lgkmcnt(5)")
            a(f"ds_read_b64 v[{SCL}:{SCL+1}], v{vT2} offset:{L_SCALE}")
            for kp in range(3):
                a(f"s_waitcnt lgkmcnt({5*(2-kp)+1})")
                self.smf(D0, AA + 4 * kp, BB + (2 * kp) * 8, 18)
                self.smf(D1, AA + 4 * kp, BB + (2 * kp + 1) * 8, 18)
        a("s_waitcnt lgkmcnt(0)\ns_nop 7")
        for D in (D0, D1):
            a(f"""v_add_f32 v{D}, v{D}, v{D+1}
            v_add_f32 v{D+2}, v{D+2}, v{D+3}
            v_mul_f32 v{D}, v{D}, v{SCL}
            v_fmac_f32 v{D}, v{D+2}, v{SCL+1}""")
        a(f"""s_nop 1
        v_permlane16_swap_b32 v{D0}, v{D1}
        s_nop 1
        v_add_f32 v{D0}, v{D0}, v{D1}""")
        self.swap_reduce("v_add_f32", D0, D1, 32)
        self.tag(D0, D0, vTG, rn=12)
        if self.pq:
            a("s_endpgm")
        if self.wide:
            a(f"""s_mov_b32 exec_hi, 0
            s_nop 0
            v_mov_b32_dpp v{D0+1}, v{D0} quad_perm:[1,1,1,1] row_mask:0xf bank_mask:0xf
            v_mov_b32_dpp v{D0+2}, v{D0} quad_perm:[2,2,2,2] row_mask:0xf bank_mask:0xf
            v_mov_b32_dpp v{D0+3}, v{D0} quad_perm:[3,3,3,3] row_mask:0xf bank_mask:0xf
            s_mov_b32 exec_lo, 0x11111111
            buffer_store_dwordx4 v[{D0}:{D0+3}], v{vT3}, s[56:59], s67 offen {self.pst}
            s_mov_b64 exec, -1""")
        else:
            a(f"""s_mov_b32 exec_hi, 0
            buffer_store_dword v{D0}, v{vT3}, s[56:59], s67 offen {self.pst}
            s_mov_b64 exec, -1""")
        self.stamp(5, 12)
        tr()
        if self.trace:
            a(f"""s_sleep 127
            s_lshl_b32 s9, s2, 2
            s_add_u32 s9, s9, s3
            s_lshl_b32 s9, s9, 8
            s_add_u32 s9, s9, {3 << 20}
            v_lshlrev_b32 v12, 2, v0
            buffer_store_dword v{vTR}, v12, s[56:59], s9 offen""")
        for i, r in enumerate(self.fs):
            self.stamp(6 + i, 12, src=r)
        a("s_endpgm")

    def gen_H(self):
        self.cls = "H"
        a = self.a
        vL = 0
        vT0, vT1, vT2, vT3, vT4, vT5, vW = 1, 2, 3, 4, 5, 6, 7
        vX = 8
        vSEL = 18
        vTG = 26
        vCK = 27
        vF = 28
        vA, vACC = 28, 36
        vE = 52
        TI = 64
        if self.hprio:
            a(f"s_setprio {self.hprio}")
        a("s_sub_u32 s3, s3, 4")
        a(f"""s_and_b32 s14, s10, 7
        s_lshl_b32 s52, s14, 5
        s_add_u32 s52, s52, s4
        s_cmp_ge_u32 s14, 6
        s_cselect_b32 s52, 255, s52
        s_cmp_eq_u32 s3, 3
        s_cbranch_scc1 L_h3
        v_lshrrev_b32 v{vT0}, 5, v{vL}
        v_mul_u32_u24 v{vT0}, 1280, v{vT0}
        v_and_b32 v{vT1}, 31, v{vL}
        v_lshl_add_u32 v{vT0}, v{vT1}, 3, v{vT0}
        v_lshrrev_b32 v{vT1}, 3, v{vL}
        v_and_b32 v{vT2}, 7, v{vL}
        s_lshl_b32 s53, s4, 1
        s_add_u32 s53, s53, s14
        s_sub_u32 s53, s53, 6
        s_lshl_b32 s53, s53, 1
        s_add_u32 s53, s53, s3
        s_add_u32 s9, s52, 128
        s_cmp_eq_u32 s3, 2
        s_cselect_b32 s53, s9, s53
        s_cselect_b32 s9, 7, s14
        s_waitcnt lgkmcnt(0)""")
        self.srd(60, 16, 2560)
        for t in range(5):
            a(f"buffer_load_dwordx2 v[{vX+2*t}:{vX+2*t+1}], v{vT0}, s[60:63], 0 offen offset:{256*t}")
        a(f"""s_mov_b32 s47, 0x20000
        s_cmp_ge_u32 s9, 6
        s_cbranch_scc1 L_jgu
        s_mov_b32 s44, s22
        s_mov_b32 s45, s23
        s_mov_b32 s46, {640*12288}
        s_mov_b32 s54, 12288
        s_and_b32 s55, s14, 1
        s_lshl_b32 s55, s55, 1
        s_add_u32 s55, s55, s3
        s_lshr_b32 s11, s14, 1
        s_mul_i32 s64, s4, 384
        s_lshl_b32 s9, s11, 7
        s_add_u32 s64, s64, s9
        s_lshl_b32 s66, s4, 2
        s_add_u32 s66, s66, s55
        s_mul_i32 s66, s66, 1536
        s_lshl_b32 s9, s11, 8
        s_add_u32 s66, s66, s9
        s_add_u32 s66, s66, {QX_OFF}
        s_mov_b32 s13, 768
        s_branch L_jd
        L_jgu:
        s_bitcmp1_b32 s53, 2
        s_cselect_b32 s44, s32, s30
        s_cselect_b32 s45, s33, s31
        s_mov_b32 s46, {640*3072}
        s_mov_b32 s54, 3072
        s_and_b32 s55, s53, 3
        s_lshr_b32 s64, s53, 3
        s_lshl_b32 s64, s64, 7
        s_lshl_b32 s66, s53, 9
        s_add_u32 s66, s66, {GU_OFF}
        s_mov_b32 s13, 256
        L_jd:
        s_mul_i32 s9, s54, 20
        v_mul_lo_u32 v{vW}, v{vT1}, s9
        v_lshl_add_u32 v{vW}, v{vT2}, 4, v{vW}
        s_mul_i32 s9, s55, 160
        s_mul_i32 s9, s9, s54
        s_add_u32 s9, s9, s64
        v_add_u32 v{vW}, s9, v{vW}""")
        def job_loads(g0=0, g1=20, thr=None):
            if g0 == 0:
                a("s_mov_b32 s42, 0")
            for G in range(g0, g1):
                if thr is not None and G >= thr:
                    a(f"s_waitcnt vmcnt({thr-1})")
                a(f"buffer_load_dwordx4 v[{TI+4*G}:{TI+4*G+3}], v{vW}, s[44:47], s42 offen {self.wf}")
                if G < 19:
                    a("s_add_u32 s42, s42, s54")
        def part(g0, g1):
            L = self.lab("nj")
            a(f"s_cmp_eq_u32 s3, 2\ns_cbranch_scc1 {L}")
            job_loads(g0, g1)
            a(f"{L}:")
        J1 = self.js or 20
        J2 = min(20, 2 * J1)
        part(0, J1)
        self.epoch_load()
        self.srd(56, 40, WS_SRD)
        self.selectors(vL, vSEL, vT3, vT4, vT5)
        a("s_cmp_lg_u32 s3, 2\ns_cbranch_scc1 L_nx2\ns_waitcnt vmcnt(0)\nL_nx2:")
        a(f"s_mov_b32 s9, 0x3f803f80\ns_waitcnt vmcnt({J1})")
        if J1 < 20:
            part(J1, J2)
        self.stamp(11, 60)
        for i in range(10):
            c = "0" if i == 0 else f"v{vT3}"
            a(f"v_dot2_f32_bf16 v{vT3}, v{vX+i}, s9, {c}")
        for i in range(2):
            a(f"v_lshlrev_b32 v{vF+2*i}, 16, v{vX+i}\nv_and_b32 v{vF+2*i+1}, 0xffff0000, v{vX+i}")
        k = 2
        for st in (1, 2, 4, 8):
            self.dpp("v_add_f32", vT3, vT3, vT3, f"row_ror:{st}")
            a(f"v_lshlrev_b32 v{vF+2*k}, 16, v{vX+k}\nv_and_b32 v{vF+2*k+1}, 0xffff0000, v{vX+k}")
            k += 1
        a(f"v_mov_b32 v{vT4}, v{vT3}")
        a(f"v_lshlrev_b32 v{vF+2*k}, 16, v{vX+k}\nv_and_b32 v{vF+2*k+1}, 0xffff0000, v{vX+k}")
        k += 1
        a(f"v_permlane16_swap_b32 v{vT3}, v{vT4}")
        while k < 10:
            a(f"v_lshlrev_b32 v{vF+2*k}, 16, v{vX+k}\nv_and_b32 v{vF+2*k+1}, 0xffff0000, v{vX+k}")
            k += 1
        a(f"v_add_f32 v{vT3}, v{vT3}, v{vT4}")
        def div640(v, t):
            a(f"""v_mul_f32 v{t}, {f32(1/640)}, v{v}
            v_fmac_f32 v{v}, {f32(-640.0)}, v{t}
            v_fmac_f32 v{t}, {f32(1/640)}, v{v}""")
        M2 = vE
        D2 = vE + 2
        Q2 = vE + 4
        div640(vT3, M2)
        a(f"v_mov_b32 v{M2+1}, v{M2}")
        for i in range(10):
            a(f"v_pk_add_f32 v[{D2}:{D2+1}], v[{vF+2*i}:{vF+2*i+1}], v[{M2}:{M2+1}] neg_lo:[0,1] neg_hi:[0,1]")
            if i == 0:
                a(f"v_pk_mul_f32 v[{Q2}:{Q2+1}], v[{D2}:{D2+1}], v[{D2}:{D2+1}]")
            else:
                a(f"v_pk_fma_f32 v[{Q2}:{Q2+1}], v[{D2}:{D2+1}], v[{D2}:{D2+1}], v[{Q2}:{Q2+1}]")
        a(f"v_add_f32 v{vT4}, v{Q2}, v{Q2+1}")
        if J2 < 20:
            part(J2, 20)
        self.rbf(M2)
        a(f"v_mov_b32 v{M2+1}, v{M2}")
        def xc(i):
            a(f"""v_pk_add_f32 v[{vF+2*i}:{vF+2*i+1}], v[{vF+2*i}:{vF+2*i+1}], v[{M2}:{M2+1}] neg_lo:[0,1] neg_hi:[0,1]
            v_cvt_pk_bf16_f32 v{vF+2*i+1}, v{vF+2*i}, v{vF+2*i+1}
            v_lshlrev_b32 v{vF+2*i}, 16, v{vF+2*i+1}
            v_and_b32 v{vF+2*i+1}, 0xffff0000, v{vF+2*i+1}""")
        k = 0
        for st in (1, 2, 4, 8):
            self.dpp("v_add_f32", vT4, vT4, vT4, f"row_ror:{st}")
            xc(k); k += 1
        a(f"v_mov_b32 v{vT5}, v{vT4}")
        xc(k); k += 1
        a(f"v_permlane16_swap_b32 v{vT4}, v{vT5}")
        xc(k); k += 1
        a(f"v_add_f32 v{vT4}, v{vT4}, v{vT5}")
        div640(vT4, vT5)
        self.rbf(vT5)
        a(f"v_add_f32 v{vT5}, {f32(1e-5)}, v{vT5}")
        self.rbf(vT5)
        a(f"v_sqrt_f32 v{vT5}, v{vT5}")
        xc(k); k += 1
        self.rbf(vT5)
        a(f"v_rcp_f32 v{D2}, v{vT5}")
        xc(k); k += 1
        a(f"v_mov_b32 v{D2+1}, v{D2}\nv_mov_b32 v{Q2}, v{vT5}\nv_mov_b32 v{Q2+1}, v{vT5}")
        while k < 10:
            xc(k); k += 1
        R2 = vE + 6
        for i in range(10):
            f = vF + 2 * i
            a(f"""v_pk_mul_f32 v[{R2}:{R2+1}], v[{f}:{f+1}], v[{D2}:{D2+1}]
            v_pk_fma_f32 v[{f}:{f+1}], v[{R2}:{R2+1}], v[{Q2}:{Q2+1}], v[{f}:{f+1}] neg_lo:[1,0,0] neg_hi:[1,0,0]
            v_pk_fma_f32 v[{R2}:{R2+1}], v[{f}:{f+1}], v[{D2}:{D2+1}], v[{R2}:{R2+1}]
            v_cvt_pk_bf16_f32 v{vX+i}, v{R2}, v{R2+1}""")
            if i & 1:
                t = i // 2
                a(f"ds_write_b64 v{vT0}, v[{vX+2*t}:{vX+2*t+1}] offset:{L_XN + 256*t}")
        a("s_waitcnt lgkmcnt(0)")
        self.epoch_use(vTG)
        self.stamp(15, 60, src=48)
        self.stamp(1, 60)
        a(f"""s_cmp_lg_u32 s3, 2
        s_cbranch_scc1 L_job
        s_cmp_ge_u32 s52, {0 if self.nomoe else 64}
        s_cbranch_scc1 L_bar1""")
        job_loads(thr=(self.js or None))
        a("L_job:")
        C1 = 44
        a(f"""v_mul_u32_u24 v{vT3}, 40, v{vT1}
        s_mul_i32 s9, s55, 320
        v_add_u32 v{vT3}, s9, v{vT3}""")
        for bb, base in ((0, vX), (1, C1)):
            for t in range(5):
                a(f"ds_read_b64 v[{base+2*t}:{base+2*t+1}], v{vT3} offset:{L_XN + 1280*bb + 8*t}")
        a(f"""v_lshrrev_b32 v{vT4}, 5, v{vL}
        v_mul_lo_u32 v{vT4}, v{vT4}, s13
        v_lshl_add_u32 v{vT4}, v{vT2}, 5, v{vT4}
        v_bfe_u32 v{vT5}, v{vL}, 4, 1
        v_lshl_add_u32 v{vT4}, v{vT5}, 4, v{vT4}
        s_waitcnt lgkmcnt(0)""")
        self.job_compute(20, vX, C1, TI, vA, vACC, vSEL, vTG, vT4, "s66", True)
        a(f"s_setprio {self.hprio1}\ns_cmp_eq_u32 s3, 2\ns_cbranch_scc1 L_bar1")
        self.srd(44, 24, 0 if self.nowo else 6144 * 1280)
        a(f"""v_lshrrev_b32 v{vT3}, 4, v{vL}
        v_mul_u32_u24 v{vT3}, {8*1280}, v{vT3}
        v_and_b32 v{vT4}, 15, v{vL}
        v_lshl_add_u32 v{vT3}, v{vT4}, 4, v{vT3}
        s_mul_i32 s9, s4, {192*1280}
        s_mul_i32 s10, s3, {96*1280}
        s_add_u32 s9, s9, s10
        s_add_u32 s9, s9, 1024
        v_add_u32 v{vT3}, s9, v{vT3}
        s_mul_i32 s9, s3, {24*WXS}
        s_add_u32 s9, s9, {L_WX}
        v_lshlrev_b32 v{vT4}, 4, v{vL}
        v_add_u32 v{vT4}, s9, v{vT4}
        s_mov_b32 s14, 0x05040100
        s_mov_b32 s15, 0x07060302""")
        for kk in range(3):
            if kk == self.pre:
                a("s_barrier")
            sr, d = TI + 64 * kk, TI + 64 * kk + 32
            for e in range(8):
                if e % 4 == 0:
                    a(f"s_mov_b32 s9, {(32*kk + e)*1280}")
                a(f"buffer_load_dwordx4 v[{sr+4*e}:{sr+4*e+3}], v{vT3}, s[44:47], s9 offen offset:{(e%4)*1280} {self.wof}")
            for t in range(4):
                a(f"s_waitcnt vmcnt({6-2*t})")
                for dd in range(4):
                    a(f"v_perm_b32 v{d+(2*dd)*4+t}, v{sr+(2*t+1)*4+dd}, v{sr+(2*t)*4+dd}, s14")
                    a(f"v_perm_b32 v{d+(2*dd+1)*4+t}, v{sr+(2*t+1)*4+dd}, v{sr+(2*t)*4+dd}, s15")
            for c in range(8):
                a(f"ds_write_b128 v{vT4}, v[{d+4*c}:{d+4*c+3}] offset:{(8*kk + c)*WXS}")
        a(f"""s_lshl_b32 s9, s3, 2
        v_mov_b32 v{vT3}, s9
        v_mov_b32 v{vT4}, 1
        ds_write_b32 v{vT3}, v{vT4} offset:{L_WXOK}
        s_waitcnt lgkmcnt(0)
        s_branch L_h1""")
        a("L_h3:\nv_mov_b32 v10, 0\nv_mov_b32 v11, 0\ns_waitcnt lgkmcnt(0)")
        self.epoch_load()
        self.srd(56, 40, WS_SRD)
        if self.tlb:
            a(f"""v_lshlrev_b32 v{vT5}, 18, v{vL}
            s_mul_i32 s9, s8, {4*CH}
            s_mov_b64 exec, 0xfff""")
            self.srd(60, 20, TB)
            a(f"buffer_load_dword v64, v{vT5}, s[60:63], s9 offen nt")
            self.srd(44, 18, TB)
            a(f"buffer_load_dword v65, v{vT5}, s[44:47], s9 offen nt\ns_mov_b64 exec, 1")
            for i, (p, nb) in enumerate(((36, 2560), (34, 1536 * 1280), (28, 1280))):
                self.srd(60, p, nb)
                a(f"buffer_load_dword v{66+i}, v{vT5}, s[60:63], 0 offen nt")
            a("s_mov_b64 exec, -1")
        a(f"""v_lshlrev_b32 v{vT3}, 4, v{vL}
        v_lshlrev_b32 v{vT4}, 3, v{vL}
        s_mul_i32 s9, s4, {4*1536}
        s_mul_i32 s11, s5, 768
        s_add_u32 s9, s9, s11
        s_add_u32 s70, s9, {QX_OFF}
        s_add_u32 s71, s70, 3072
        s_waitcnt lgkmcnt(0)""")
        self.epoch_use(vTG)
        a(f"""v_mov_b32 v{vT5}, 0
        s_not_b32 s9, s{sT}
        v_mov_b32 v{vT0}, s9
        v_lshlrev_b32 v{vT1}, 2, v{vL}
        ds_write_b32 v{vT5}, v{vT5} offset:{L_PROG}
        ds_write_b32 v{vT5}, v{vT5} offset:{L_BOOST}
        ds_write_b32 v{vT5}, v{vT5} offset:{L_WXOK}
        ds_write_b32 v{vT5}, v{vT5} offset:{L_WXOK + 4}
        s_mov_b64 exec, 0xffff
        ds_write_b32 v{vT1}, v{vT0} offset:{L_STL}
        s_mov_b64 exec, -1""")
        q = self.qsleep
        while q > 0:
            a(f"s_sleep {min(q, 127)}")
            q -= 127
        self.mpoll([(TI + 4 * k, f"buffer_load_dwordx4 v[{TI+4*k}:{TI+4*k+3}], v{vT3}, s[56:59], s{70+k//2} offen offset:{1536*(k&1)} sc1") for k in range(4)],
                   vTG, vCK, self.qsleep2, mask=("-1", "0xffff"))
        self.sum_quads(TI, 4)
        a(f"""s_mov_b32 exec_hi, 0xffff
        v_cvt_pk_bf16_f32 v{TI}, v{TI}, v{TI+1}
        v_cvt_pk_bf16_f32 v{TI+1}, v{TI+2}, v{TI+3}
        ds_write_b64 v{vT4}, v[{TI}:{TI+1}] offset:{L_QB}
        s_mov_b64 exec, -1
        s_waitcnt lgkmcnt(0)""")
        self.stamp(2, 60)
        a(f"""L_bar1:
        s_setprio {self.hprio1}
        s_barrier
        L_h1:""")
        a(f"v_and_b32 v{vT1}, 15, v{vL}\nv_lshrrev_b32 v{vT2}, 4, v{vL}")
        self.srd(44, 24, 0 if self.nowo else 6144 * 1280)
        a(f"""v_mul_u32_u24 v{vW}, {8*1280}, v{vT2}
        s_mul_i32 s9, s4, {192*1280}
        v_add_u32 v{vW}, s9, v{vW}
        v_lshl_add_u32 v{vW}, v{vT1}, 4, v{vW}
        s_lshl_b32 s9, s3, 8
        v_add_u32 v{vW}, s9, v{vW}
        s_mov_b32 s14, 0x05040100
        s_mov_b32 s15, 0x07060302""")
        self.stamp(3, 60)
        def REG(k): return 32 + 32 * k
        for K in (5, 4, 3, 2, 1, 0):
            if K == 3:
                a(f"""s_cmp_lg_u32 s3, 2
                s_cbranch_scc1 L_nodn
                s_sub_u32 s52, s52, 64
                s_cmp_ge_u32 s52, {0 if self.nomoe else 120}
                s_cbranch_scc1 L_nodn""")
                self.gen_dn(vL, vT3, vT4, vT5, vSEL, vTG, vCK, TI)
                self.stamp(9, 60)
                a("L_nodn:")
            for e in range(8):
                if e % 4 == 0:
                    a(f"s_mov_b32 s9, {(32*K + e)*1280}")
                r = REG(0) + 4 * e
                a(f"buffer_load_dwordx4 v[{r}:{r+3}], v{vW}, s[44:47], s9 offen offset:{(e%4)*1280} {self.wof}")
                if self.wobatch == 4 and e == 3:
                    a("s_waitcnt vmcnt(0)")
                    if self.wosleep:
                        a(f"s_sleep {self.wosleep}")
                if self.wobatch == 2 and e in (1, 3, 5):
                    a("s_waitcnt vmcnt(0)")
            s, d = REG(0), 64 + 64 * (K // 2) + 4 * (K & 1)
            for t in range(4):
                a(f"s_waitcnt vmcnt({6-2*t})")
                for dd in range(4):
                    a(f"v_perm_b32 v{d+(2*dd)*8+t}, v{s+(2*t+1)*4+dd}, v{s+(2*t)*4+dd}, s14")
                    a(f"v_perm_b32 v{d+(2*dd+1)*8+t}, v{s+(2*t+1)*4+dd}, v{s+(2*t)*4+dd}, s15")
        vG, vXC, vOUTA, vPA, vSC = 8, 9, 10, 11, 12
        vAR, vST = 14, 15
        Wk = 32
        self.stamp(4, 60)
        a(f"""s_cmp_lg_u32 s3, 0
        s_cbranch_scc1 L_noep
        s_cmp_lg_u32 s2, 0
        s_cbranch_scc1 L_noep""")
        Lc, Lcd = self.lab("c0"), self.lab("c0d")
        a(f"""s_mov_b32 s12, {self.poll_max}
        v_lshlrev_b32 v{Wk+8}, 6, v{vL}
        v_mov_b32 v{Wk+9}, s{sT}
        s_mov_b32 s9, {ST_OFF + 8}
        s_mov_b32 s10, {ST_OFF + 8 + 4096}
        s_mov_b32 s11, {ST_OFF + 8 + 8192}
        s_mov_b32 s13, {ST_OFF + 8 + 12288}
        {Lc}:
        s_sleep 127
        buffer_load_dword v{Wk}, v{Wk+8}, s[56:59], s9 offen sc1
        buffer_load_dword v{Wk+1}, v{Wk+8}, s[56:59], s10 offen sc1
        buffer_load_dword v{Wk+2}, v{Wk+8}, s[56:59], s11 offen sc1
        buffer_load_dword v{Wk+3}, v{Wk+8}, s[56:59], s13 offen sc1
        s_waitcnt vmcnt(0)""")
        self.chk4(vCK, Wk, Wk + 9, first=True, n=4, full=True)
        a(f"""v_cmp_ne_u32 vcc, 0, v{vCK}
        s_cbranch_vccz {Lcd}
        s_sub_u32 s12, s12, 1
        s_cmp_gt_u32 s12, 0
        s_cbranch_scc1 {Lc}
        {Lcd}:
        v_mov_b32 v{Wk}, 0
        s_mov_b32 s9, {EP_OFF}
        s_mov_b64 exec, 1
        buffer_store_dword v{Wk+9}, v{Wk}, s[56:59], s9 offen sc1
        s_mov_b64 exec, -1
        L_noep:""")
        a("s_cmp_lg_u32 s3, 3\ns_cbranch_scc1 L_nostat")
        if self.nopoll:
            a("s_branch L_nostat")
        vZ0 = Wk + 16
        L, Ld = self.lab("cw"), self.lab("cwd")
        a(f"""v_mov_b32 v{vZ0}, 0
        v_lshlrev_b32 v{Wk+4}, 4, v{vL}
        s_mov_b32 s12, {self.poll_max * 16}
        s_mov_b64 exec, 15
        {L}:
        ds_read_b128 v[{Wk}:{Wk+3}], v{Wk+4} offset:{L_STL}
        s_waitcnt lgkmcnt(0)
        v_cmp_ne_u32 vcc, s{sT}, v{Wk+2}
        s_cbranch_vccz {Ld}
        s_sleep 8
        s_sub_u32 s12, s12, 1
        s_cmp_gt_u32 s12, 0
        s_cbranch_scc1 {L}
        {Ld}:
        s_lshl_b32 s9, s7, 6
        s_add_u32 s9, s9, {ST_OFF}
        buffer_store_dwordx4 v[{Wk}:{Wk+3}], v{Wk+4}, s[56:59], s9 offen sc1
        s_mov_b64 exec, -1
        s_sleep {self.cdelay[0]}""")
        Ls, Lsd = self.lab("st"), self.lab("std")
        a(f"""v_lshlrev_b32 v{Wk+4}, 3, v{vT2}
        v_and_b32 v{Wk+5}, {self.mix}, v{vT2}
        v_lshl_add_u32 v{Wk+4}, v{Wk+5}, 2, v{Wk+4}
        v_add_u32 v{Wk+4}, s4, v{Wk+4}
        v_and_b32 v{Wk+4}, 31, v{Wk+4}
        v_lshlrev_b32 v{Wk+4}, 8, v{Wk+4}
        v_lshl_add_u32 v{Wk+4}, v{vT1}, 4, v{Wk+4}
        s_lshl_b32 s9, s5, 13
        s_add_u32 s9, s9, {ST_OFF}
        v_mov_b32 v{Wk+5}, s{sT}
        s_mov_b32 s12, {self.poll_max}""")
        if not self.ctl:
            a("s_mov_b64 exec, 0xffff")
        a(f"""{Ls}:
        buffer_load_dwordx4 v[{Wk}:{Wk+3}], v{Wk+4}, s[56:59], s9 offen sc1
        s_memrealtime s[10:11]
        s_waitcnt vmcnt(0) lgkmcnt(0)""")
        self.chk4(vCK, Wk, vTG, first=True, n=2)
        a(f"""v_and_b32 v{vCK}, 15, v{vCK}
        v_bitop3_b32 v{vCK}, v{Wk+2}, v{Wk+5}, v{vCK} bitop3:0xbe
        v_cmp_ne_u32 vcc, 0, v{vCK}
        s_and_b32 s13, vcc_lo, 0xffff
        s_cbranch_scc0 {Lsd}
        s_sleep {self.stsleep}
        s_sub_u32 s12, s12, 1
        s_cmp_gt_u32 s12, 0
        s_cbranch_scc1 {Ls}
        {Lsd}:
        s_mov_b64 exec, -1""")
        if self.ctl:
            a(f"""v_sub_u32 v{Wk+6}, s10, v{Wk+3}
            v_cvt_f32_i32 v{Wk+6}, v{Wk+6}
            v_cndmask_b32 v{Wk+6}, v{Wk+6}, 0, vcc
            s_lshl_b32 s9, s6, 2
            v_subrev_u32 v{Wk+7}, s9, v{vL}
            v_cmp_gt_u32 vcc, 4, v{Wk+7}
            v_mul_f32 v{Wk+7}, {f32(-15.0)}, v{Wk+6}
            s_nop 0
            v_cndmask_b32 v{Wk+6}, v{Wk+6}, v{Wk+7}, vcc""")
            self.row_reduce("v_add_f32", Wk + 6)
            self.swap_reduce("v_add_f32", Wk + 6, Wk + 7, 16)
            self.swap_reduce("v_add_f32", Wk + 6, Wk + 7, 32)
            a(f"""v_mul_f32 v{Wk+6}, {f32(1/64.0)}, v{Wk+6}
            """)
            self.decide(Wk + 6, Wk + 7, 0, vZ0)
        a(f"v_mov_b32 v{Wk+2}, v{Wk}")
        self.row_reduce("v_max_f32", Wk + 2)
        a(f"""v_sub_f32 v{Wk}, v{Wk}, v{Wk+2}
        v_mul_f32 v{Wk}, {LOG2E}, v{Wk}
        v_exp_f32 v{Wk}, v{Wk}
        s_nop 0
        v_mul_f32 v{Wk+1}, v{Wk+1}, v{Wk}""")
        self.row_reduce("v_add_f32", Wk + 1)
        a(f"""v_rcp_f32 v{Wk+2}, v{Wk+1}
        s_nop 0
        v_mul_f32 v{Wk+3}, v{Wk}, v{Wk+2}
        v_fma_f32 v{Wk}, -v{Wk+3}, v{Wk+1}, v{Wk}
        v_fmac_f32 v{Wk+3}, v{Wk}, v{Wk+2}
        s_lshl_b32 s9, s6, 2
        v_subrev_u32 v{Wk+4}, s9, v{vL}
        v_cmp_gt_u32 vcc, 4, v{Wk+4}
        v_lshlrev_b32 v{Wk+4}, 2, v{Wk+4}
        s_and_saveexec_b64 s[10:11], vcc
        ds_write_b32 v{Wk+4}, v{Wk+3} offset:{L_SCALE}
        s_mov_b64 exec, -1""")
        if self.ctl:
            a(f"""v_bfe_u32 v{Wk+4}, v{vL}, 2, 2
            v_and_b32 v{Wk+6}, {self.mix}, v{Wk+4}
            v_lshlrev_b32 v{Wk+4}, 3, v{Wk+4}
            v_lshl_add_u32 v{Wk+4}, v{Wk+6}, 2, v{Wk+4}
            v_add_u32 v{Wk+4}, s4, v{Wk+4}
            v_and_b32 v{Wk+4}, 31, v{Wk+4}
            v_lshlrev_b32 v{Wk+4}, {9 if self.excl else 7}, v{Wk+4}
            v_and_b32 v{Wk+6}, 3, v{vL}
            v_lshl_add_u32 v{Wk+4}, v{Wk+6}, {7 if self.excl else 3}, v{Wk+4}
            v_mov_b32 v{Wk+9}, s{sT}""")
            TM_ = self.team
            if TM_:
                a(f"v_lshlrev_b32 v{Wk+4}, 3, v{vL}")
            for ci in range(1, len(self.cps)):
                L, Ld = self.lab("cw"), self.lab("cwd")
                a(f"""s_mov_b32 s12, {self.poll_max * 16}
                {L}:
                ds_read_b32 v{Wk}, v{vZ0} offset:{L_PROG}
                s_waitcnt lgkmcnt(0)
                v_readfirstlane_b32 s9, v{Wk}
                s_cmp_ge_u32 s9, {self.cps[ci]}
                s_cbranch_scc1 {Ld}
                s_sleep 2
                s_sub_u32 s12, s12, 1
                s_cmp_gt_u32 s12, 0
                s_cbranch_scc1 {L}
                {Ld}:
                ds_read_b32 v{Wk+8}, v{vZ0} offset:{L_TM + 4*self.cps[ci]}
                {"s_lshl_b32 s9, s2, 3" if TM_ else f"s_lshl_b32 s9, s8, {9 if self.excl else 7}"}
                {"s_mov_b32 s13, 0" if TM_ else f"s_lshl_b32 s13, s6, {7 if self.excl else 3}"}
                s_add_u32 s9, s9, s13
                s_add_u32 s9, s9, {TS_OFF + 32768*ci}
                s_waitcnt lgkmcnt(0)
                v_readfirstlane_b32 s10, v{Wk+8}
                s_mov_b64 exec, 1
                buffer_store_dwordx2 v[{Wk+8}:{Wk+9}], v{vZ0}, s[56:59], s9 offen sc1
                s_mov_b32 exec_lo, {"0xffff" if TM_ in (0, 16) else "-1"}
                s_mov_b32 exec_hi, {"-1" if TM_ == 64 else "0"}
                s_sleep {self.cdelay[ci]}
                {f"s_andn2_b32 s9, s2, {TM_-1}" if TM_ else f"s_lshl_b32 s9, s5, {11 if self.excl else 9}"}
                s_lshl_b32 s9, s9, 3
                s_add_u32 s9, s9, {TS_OFF + 32768*ci}
                buffer_load_dwordx2 v[{Wk}:{Wk+1}], v{Wk+4}, s[56:59], s9 offen sc1
                s_memrealtime s[12:13]
                s_waitcnt vmcnt(0) lgkmcnt(0)
                v_cmp_ne_u32 vcc, v{Wk+1}, v{Wk+9}
                v_sub_u32 v{Wk+6}, s12, v{Wk}
                v_cvt_f32_i32 v{Wk+6}, v{Wk+6}
                v_cndmask_b32 v{Wk+6}, v{Wk+6}, 0, vcc
                s_sub_u32 s12, s12, s10
                v_cvt_f32_u32 v{Wk+7}, s12""")
                self.row_reduce("v_add_f32", Wk + 6)
                if TM_ >= 32:
                    self.swap_reduce("v_add_f32", Wk + 6, Wk + 10, 16)
                if TM_ == 64:
                    self.swap_reduce("v_add_f32", Wk + 6, Wk + 10, 32)
                a(f"""v_mul_f32 v{Wk+6}, {f32(1.0/max(16, TM_))}, v{Wk+6}
                v_sub_f32 v{Wk+6}, v{Wk+6}, v{Wk+7}
                """)
                self.decide(Wk + 6, Wk + 7, ci, vZ0)
                a("s_mov_b64 exec, -1")
        a("L_nostat:")
        a(f"""s_lshl_b32 s67, s6, 5
        s_add_u32 s67, s67, s4
        s_mov_b32 s68, 0
        s_cmp_lg_u32 s3, 2
        s_cbranch_scc1 L_noown
        s_cmp_ge_u32 s67, {8 if self.pq else 40}
        s_cbranch_scc1 L_noown
        s_mov_b32 s68, 1""")
        self.srd(60, 28, 1280)
        W = Wk
        a(f"""v_lshlrev_b32 v{W+20}, 2, v{vL}
        s_mul_i32 s9, s5, 1280
        v_add_u32 v{W+21}, s9, v{W+20}""")
        for t in range(5):
            a(f"buffer_load_dword v{W+t}, v{W+20}, s[60:63], 0 offen offset:{256*t}")
            a(f"ds_read_b32 v{W+5+t}, v{W+21} offset:{L_XN + 256*t}")
        self.srd(60, 16, 2560)
        a(f"""v_and_b32 v{W+22}, 3, v{vL}
        v_lshl_add_u32 v{vOUTA}, v{W+22}, 2, v{vT2}
        v_lshlrev_b32 v{vOUTA}, 1, v{vOUTA}
        s_lshl_b32 s10, s67, 5
        s_add_u32 s10, s10, s9
        v_add_u32 v{vOUTA}, s10, v{vOUTA}
        buffer_load_ushort v{vXC}, v{vOUTA}, s[60:63], 0 offen
        ds_read_u16 v{W+23}, v{vOUTA} offset:{L_XN}
        s_waitcnt vmcnt(0) lgkmcnt(0)""")
        for t in range(5):
            c = "0" if t == 0 else f"v{W+24}"
            a(f"v_dot2_f32_bf16 v{W+24}, v{W+t}, v{W+5+t}, {c}")
        a(f"v_lshlrev_b32 v{vXC}, 16, v{vXC}\nv_lshlrev_b32 v{W+23}, 16, v{W+23}\ns_nop 1")
        self.row_reduce("v_add_f32", W + 24)
        self.swap_reduce("v_add_f32", W + 24, W + 25, 16)
        self.swap_reduce("v_add_f32", W + 24, W + 25, 32)
        self.rbf(W + 24)
        self.sigmoid_like(W + 24, W + 24)
        self.rbf(W + 24)
        Ly, Lyd = self.lab("y"), self.lab("yd")
        a(f"""v_lshrrev_b32 v{W+20}, 2, v{vL}
        v_mul_u32_u24 v{W+21}, 5120, v{W+20}
        v_lshl_add_u32 v{W+21}, v{W+22}, 4, v{W+21}
        v_mul_u32_u24 v{vPA}, 2560, v{W+20}
        v_lshl_add_u32 v{vPA}, v{W+22}, 4, v{vPA}
        s_mul_i32 s9, s5, 2560
        s_lshl_b32 s10, s67, 6
        s_add_u32 s9, s9, s10
        s_add_u32 s9, s9, {Y_OFF}
        v_mov_b32 v{W}, 0
        v_mov_b32 v{W+1}, 0
        v_mov_b32 v{W+2}, 0
        v_mov_b32 v{W+3}, 0""")
        if not self.nomoe:
            self.mpoll([(W, f"buffer_load_dwordx4 v[{W}:{W+3}], v{W+21}, s[56:59], s9 offen sc1")], vTG, vCK, 64, mask=("-1", "0xffff"))
        self.merge4(W)
        self.rbf(W)
        a(f"v_mul_f32 v{W}, v{W}, v{W+24}")
        self.rbf(W)
        a(f"v_add_f32 v{W}, v{W}, v{W+23}")
        self.rbf(W)
        self.sigmoid_like(W + 1, W)
        a(f"v_mul_f32 v{vG}, v{W}, v{W+1}")
        self.rbf(vG)
        a(f"""s_mul_i32 s70, s5, {128*2560}
        s_lshl_b32 s10, s67, 6
        s_add_u32 s70, s70, s10""")
        for t in range(1, 8):
            a(f"s_add_u32 s{70+t}, s70, {t*40960}")
        if self.ppre == 1:
            for t in range(8):
                a(f"buffer_load_dwordx4 v[{W+4*t}:{W+4*t+3}], v{vPA}, s[56:59], s{70+t} offen sc1")
        a("L_noown:")
        self.srd(60, 36, 2560)
        a(f"""v_and_b32 v{vAR}, 7, v{vL}
        v_mul_u32_u24 v{vAR}, {OS}, v{vAR}
        v_lshl_add_u32 v{vAR}, v{vT2}, 4, v{vAR}
        v_bfe_u32 v{vT3}, v{vL}, 3, 1
        v_mul_u32_u24 v{vT4}, 192, v{vT3}
        v_add_u32 v{vAR}, v{vAR}, v{vT4}
        v_mul_u32_u24 v24, 0xaaaa, v{vT3}
        v_add_u32 v24, 0x4444, v24
        v_lshl_or_b32 v24, v24, 16, v24
        v_and_b32 v{vT3}, 1, v{vT2}
        v_lshlrev_b32 v{vST}, 5, v{vT1}
        v_lshl_add_u32 v{vST}, v{vT3}, 4, v{vST}
        v_lshrrev_b32 v{vT4}, 5, v{vL}
        v_lshl_add_u32 v{vST}, v{vT4}, 3, v{vST}
        v_lshlrev_b32 v{vT3}, 3, v{vT3}
        s_mul_i32 s9, s7, 2560
        s_lshl_b32 s10, s3, 9
        s_add_u32 s9, s9, s10
        s_waitcnt vmcnt(0) lgkmcnt(0)""")
        if self.ppre == 2:
            a(f"""v_not_b32 v32, v{vTG}
            v_mov_b32 v33, v32
            v_mov_b32 v34, v32
            v_mov_b32 v35, v32
            v_lshlrev_b32 v36, 4, v{vL}
            s_mul_i32 s10, s7, 2560
            s_mul_i32 s11, s3, 640
            s_add_u32 s10, s10, s11
            s_mov_b32 exec_hi, 0xff
            buffer_store_dwordx4 v[32:35], v36, s[56:59], s10 offen sc1
            s_mov_b32 exec_hi, -1
            s_waitcnt vmcnt(0)""")
        self.stamp(5, 60)
        a(f"s_setprio {self.hprio2}")
        a(f"s_mov_b32 s43, {1 if self.dry else 0}")
        for t in range(8):
            a(f"s_mov_b64 s[{80+2*t}:{81+2*t}], -1")
        self.wide_tag()
        a(f"""v_mov_b32 v25, 0xfff
        v_mov_b32 v{vTG}, s96
        v_mov_b32 v{vW}, s97
        s_mov_b32 exec_lo, 0
        v_mov_b32 v{vTG}, s98
        v_mov_b32 v{vW}, s99
        s_mov_b32 exec_lo, -1""")
        a("L_tail:")
        for r in range(32, 64):
            a(f"v_mov_b32 v{r}, 0")
        a("s_cmp_lg_u32 s43, 0\ns_cbranch_scc1 L_nobar\ns_barrier\nL_nobar:")
        if self.stamps == 4:
            a("s_memrealtime s[44:45]")
        AT = [16, 20, 28]
        for kp in range(3):
            a(f"ds_read_b128 v[{AT[kp]}:{AT[kp]+3}], v{vAR} offset:{L_O + 64*kp}")
        a(f"ds_read_b64 v[{vSC}:{vSC+1}], v{vT3} offset:{L_SCALE}")
        def epi(c):
            D = 32 + 4 * c
            return [f"v_add_f32 v{D}, v{D}, v{D+1}", f"v_add_f32 v{D+2}, v{D+2}, v{D+3}",
                    f"v_mul_f32 v{D}, v{D}, v{vSC}", f"v_fmac_f32 v{D}, v{D+2}, v{vSC+1}"]
        order = (0, 2, 1, 3)
        pend = []
        for pi, pr in enumerate(order):
            for kp in range(3):
                if pi == 0:
                    a(f"s_waitcnt lgkmcnt({3-kp})")
                for c in (pr, pr + 4):
                    self.smf(32 + 4 * c, AT[kp], 64 + 64 * kp + 8 * c, 24)
                    if pi >= 2 and (kp >= 1 or pi == 3):
                        for _ in range(2):
                            if pend:
                                a(pend.pop(0))
            if pi == 1:
                a("s_waitcnt lgkmcnt(0)")
                e0, e4 = epi(order[0]), epi(order[0] + 4)
                pend += [e0[0], e0[1], e4[0], e4[1], e0[2], e0[3], e4[2], e4[3]]
            if pi == 2:
                e0, e4 = epi(order[1]), epi(order[1] + 4)
                pend += [e0[0], e0[1], e4[0], e4[1], e0[2], e0[3], e4[2], e4[3],
                         f"v_permlane16_swap_b32 v32, v48", "s_nop 0", "v_add_f32 v32, v32, v48",
                         f"v_permlane16_swap_b32 v40, v56"]
        for x in pend:
            a(x)
        RES = 16
        e1, e5, e3, e7 = epi(1), epi(5), epi(3), epi(7)
        a("v_add_f32 v40, v40, v56")
        for x in (e1[0], e1[1], e5[0], e5[1], e1[2], e1[3], e5[2], e5[3]):
            a(x)
        a("v_permlane32_swap_b32 v32, v40")
        for x in (e3[0], e3[1], e7[0], e7[1]):
            a(x)
        a(f"v_permlane16_swap_b32 v36, v52\nv_add_f32 v{RES}, v32, v40")
        for x in (e3[2], e3[3], e7[2], e7[3]):
            a(x)
        a("v_add_f32 v36, v36, v52")
        self.tag(RES, RES, vTG, rn=12)
        a(f"""v_permlane16_swap_b32 v44, v60
        s_nop 0
        v_add_f32 v44, v44, v60
        s_nop 1
        v_permlane32_swap_b32 v36, v44
        s_nop 0
        v_add_f32 v{RES+1}, v36, v44""")
        self.tag(RES + 1, RES + 1, vW, rn=12)
        if self.wide:
            a(f"""v_permlane32_swap_b32 v{RES}, v{RES+2}
            s_nop 0
            v_permlane32_swap_b32 v{RES+1}, v{RES+3}""")
        a(f"""s_cmp_lg_u32 s43, 0
        s_cbranch_scc1 L_nost
        """)
        if self.wide:
            a(f"""s_mov_b32 exec_hi, 0
            buffer_store_dwordx4 v[{RES}:{RES+3}], v{vST}, s[56:59], s9 offen {self.pst}
            s_mov_b32 exec_hi, -1""")
        else:
            a(f"buffer_store_dwordx2 v[{RES}:{RES+1}], v{vST}, s[56:59], s9 offen {self.pst}")
        self.stamp(7, 20)
        if self.stamps == 4:
            a("s_memrealtime s[46:47]\ns_mov_b64 s[52:53], 0\ns_mov_b64 s[54:55], 0\ns_cmp_lg_u32 s3, 2\ns_cbranch_scc1 L_end\ns_cmp_eq_u32 s68, 0\ns_cbranch_scc1 L_dump")
        a(f"""s_cmp_eq_u32 s68, 0
        s_cbranch_scc1 L_end""")
        Z = 64
        M0 = 80
        a(f"s_mov_b32 s12, {self.poll_max}\nL_pp:")
        for t in range(8):
            sk = self.lab("pl")
            a(f"""s_mov_b64 exec, s[{M0+2*t}:{M0+2*t+1}]
            s_cbranch_execz {sk}
            buffer_load_dwordx4 v[{Z+4*t}:{Z+4*t+3}], v{vPA}, s[56:59], s{70+t} offen {self.pld}
            {sk}:""")
        a("s_mov_b32 s13, 0\ns_waitcnt vmcnt(0)")
        for t in range(8):
            sk = self.lab("pc")
            a(f"""s_mov_b64 exec, s[{M0+2*t}:{M0+2*t+1}]
            s_cbranch_execz {sk}
            v_xor_b32 v{32+4*t}, s96, v{Z+4*t}
            v_xor_b32 v{33+4*t}, s97, v{Z+4*t+1}
            v_xor_b32 v{34+4*t}, s98, v{Z+4*t+2}
            v_xor_b32 v{35+4*t}, s99, v{Z+4*t+3}
            v_or3_b32 v{vCK}, v{32+4*t}, v{33+4*t}, v{34+4*t}
            v_bitop3_b32 v{vCK}, v{vCK}, v{35+4*t}, v25 bitop3:0xa8
            v_cmp_ne_u32 s[{M0+2*t}:{M0+2*t+1}], 0, v{vCK}
            s_bcnt1_i32_b64 s10, s[{M0+2*t}:{M0+2*t+1}]
            s_add_u32 s13, s13, s10
            {sk}:""")
        a(f"""s_mov_b64 exec, -1
        s_cmp_eq_u32 s13, 0
        s_cbranch_scc1 L_nost
        s_cmp_le_u32 s13, {self.pthr}
        s_cbranch_scc1 L_pn
        s_sleep {self.pslow}
        L_pn:
        s_sub_u32 s12, s12, 1
        s_cmp_gt_u32 s12, 0
        s_cbranch_scc1 L_pp
        L_nost:""")
        if self.stamps == 4:
            a("s_memrealtime s[52:53]")
        C = 32
        for st_ in (4, 8, 16):
            for t in range(0, 32, 2 * st_):
                a(f"v_pk_add_f32 v[{C+t}:{C+t+1}], v[{C+t}:{C+t+1}], v[{C+t+st_}:{C+t+st_+1}]")
                a(f"v_pk_add_f32 v[{C+t+2}:{C+t+3}], v[{C+t+2}:{C+t+3}], v[{C+t+st_+2}:{C+t+st_+3}]")
        self.merge4(C)
        self.rbf(C)
        a(f"v_mul_f32 v{C}, v{C}, v{vG}")
        self.rbf(C)
        a(f"""v_add_f32 v{C}, v{C}, v{vXC}
        v_cvt_pk_bf16_f32 v{C}, v{C}, v{C}
        s_cmp_eq_u32 s43, 0
        s_cbranch_scc1 L_fin
        s_mov_b32 s43, 0
        s_branch L_tail
        L_fin:
        s_mov_b32 exec_lo, 0x000f000f
        s_mov_b32 exec_hi, 0x000f000f
        buffer_store_short v{C}, v{vOUTA}, s[60:63], 0 offen {self.ost}""")
        if self.stamps == 4:
            a("s_memrealtime s[54:55]\nL_dump:\ns_sleep 127")
            self.dump = True
            self.stamp(15, 20, src=48)
            self.stamp(6, 20, src=44)
            self.stamp(7, 20, src=46)
            self.stamp(8, 20, src=52)
            self.stamp(9, 20, src=54)
            self.dump = False
        if self.padto:
            if self.padwg >= 0:
                a(f"s_cmp_lg_u32 s2, {self.padwg}\ns_cbranch_scc1 L_end")
            a(f"""L_pad:
            s_memrealtime s[50:51]
            s_waitcnt lgkmcnt(0)
            s_sub_u32 s50, s50, s48
            s_cmp_lt_u32 s50, {self.padto}
            s_cbranch_scc1 L_pad""")
        self.stamp(8, 60)

    def job_compute(self, n, C0, C1, TILES, vA, vACC, vSEL, vTG, vOUT, sOUT, waits):
        a = self.a
        for G in range(n):
            self.buildA(vA, C0 + G // 2, G & 1, vSEL)
            self.buildA(vA + 4, C1 + G // 2, G & 1, vSEL)
            a(f"s_waitcnt vmcnt({n-1-G})\ns_nop 0" if waits else "s_nop 1")
            self.mfma(vACC, vA, TILES + 4 * G, None if G == 0 else vACC)
            self.mfma(vACC + 4, vA + 4, TILES + 4 * G, None if G == 0 else vACC + 4)
        a("s_nop 7")
        for r in range(4):
            a(f"v_permlane32_swap_b32 v{vACC+r}, v{vACC+4+r}")
        a("s_nop 1")
        for r in range(4):
            self.dpp("v_add_f32", vACC + r, vACC + 4 + r, vACC + r, "row_ror:8")
        for r in range(4):
            self.tag(vACC + r, vACC + r, vTG, rn=True, pos=r)
        a(f"""s_mov_b32 exec_lo, 0x00ff00ff
        s_mov_b32 exec_hi, 0x00ff00ff
        buffer_store_dwordx4 v[{vACC}:{vACC+3}], v{vOUT}, s[56:59], {sOUT} offen sc1
        s_mov_b64 exec, -1""")

    def gen_dn(self, vL, vT3, vT4, vT5, vSEL, vTG, vCK, TI):
        a = self.a
        GP = TI + 64
        a(f"""s_mul_hi_u32 s53, s52, {(2**32 + 9)//10}
        s_mul_i32 s54, s53, 10
        s_sub_u32 s54, s52, s54""")
        self.srd(60, 34, 1536 * 1280)
        a(f"""v_lshrrev_b32 v{vT3}, 3, v{vL}
        v_mul_u32_u24 v{vT4}, {16*1280}, v{vT3}
        v_and_b32 v{vT5}, 7, v{vL}
        v_lshl_add_u32 v{vT4}, v{vT5}, 4, v{vT4}
        s_mul_i32 s9, s53, {128*1280}
        s_lshl_b32 s10, s54, 7
        s_add_u32 s9, s9, s10""")
        for G in range(16):
            a(f"buffer_load_dwordx4 v[{TI+4*G}:{TI+4*G+3}], v{vT4}, s[60:63], s9 offen offset:{(G%4)*1280} {self.mf}")
            if G % 4 == 3:
                a(f"s_add_u32 s9, s9, {4*1280}")
                if G == 7:
                    a("s_waitcnt vmcnt(0)")
        a(f"""v_lshrrev_b32 v60, 5, v{vL}
        v_lshlrev_b32 v61, 12, v60
        v_and_b32 v62, 31, v{vL}
        v_lshl_add_u32 v61, v62, 4, v61
        s_lshl_b32 s9, s53, 13
        s_add_u32 s9, s9, {GU_OFF}""")
        self.mpoll([(GP + 4 * t, f"buffer_load_dwordx4 v[{GP+4*t}:{GP+4*t+3}], v61, s[56:59], s9 offen offset:{512*t} sc1") for t in range(8)],
                   vTG, vCK, 32)
        self.sum_quads(GP, 4)
        self.sum_quads(GP + 16, 4)
        for r in range(4):
            self.rbf(GP + r)
            self.rbf(GP + 16 + r)
            self.sigmoid_like(GP + 4, GP + r)
            a(f"v_mul_f32 v{GP+r}, v{GP+r}, v{GP+4}")
            self.rbf(GP + r)
            a(f"v_mul_f32 v{GP+r}, v{GP+r}, v{GP+16+r}")
        a(f"""v_cvt_pk_bf16_f32 v{GP+4}, v{GP}, v{GP+1}
        v_cvt_pk_bf16_f32 v{GP+5}, v{GP+2}, v{GP+3}
        v_bfe_u32 v61, v{vL}, 4, 1
        v_lshlrev_b32 v62, 8, v61
        v_lshl_add_u32 v62, v60, 7, v62
        v_and_b32 v63, 15, v{vL}
        v_lshl_add_u32 v62, v63, 3, v62
        ds_write_b64 v62, v[{GP+4}:{GP+5}] offset:{L_HB}
        v_lshlrev_b32 v{vT3}, 5, v{vT3}
        v_mul_u32_u24 v{vT4}, 2560, v60
        v_lshl_add_u32 v{vT4}, v{vT5}, 5, v{vT4}
        v_lshl_add_u32 v{vT4}, v61, 4, v{vT4}
        s_mul_i32 s9, s53, 5120
        s_lshl_b32 s10, s54, 8
        s_add_u32 s9, s9, s10
        s_add_u32 s9, s9, {Y_OFF}
        s_waitcnt lgkmcnt(0)
        ds_read_b128 v[44:47], v{vT3} offset:{L_HB}
        ds_read_b128 v[48:51], v{vT3} offset:{L_HB+16}
        ds_read_b128 v[52:55], v{vT3} offset:{L_HB+256}
        ds_read_b128 v[56:59], v{vT3} offset:{L_HB+272}
        s_waitcnt lgkmcnt(0)""")
        self.job_compute(16, 44, 52, TI, 28, 36, vSEL, vTG, vT4, "s9", False)
        a("s_waitcnt vmcnt(0)")

    def text(self):
        hdr = open("recurrent_scan__mha_block_cached__moe_arch_mod__decode.s.ref").read().split("; Override launch")[0]
        self.gen()
        return hdr + HDR + f"""; @launch grid=(256,1,1) block=(512,1,1) lds={LDS_BYTES}
.amdgcn_target "amdgcn-amd-amdhsa--gfx950"
.text
.globl {KNAME}
.p2align 8
.type {KNAME},@function
{KNAME}:
""" + "\n".join(self.o) + f"""
.section .rodata,"a"
.p2align 6
.amdhsa_kernel {KNAME}
  .amdhsa_next_free_vgpr 256
  .amdhsa_next_free_sgpr 102
  .amdhsa_accum_offset 256
  .amdhsa_group_segment_fixed_size 0
  .amdhsa_kernarg_size 104
  .amdhsa_user_sgpr_count 2
  .amdhsa_user_sgpr_kernarg_segment_ptr 1
  .amdhsa_system_sgpr_workgroup_id_x 1
  .amdhsa_float_denorm_mode_32 3
.end_amdhsa_kernel
"""


if __name__ == "__main__":
    out = sys.argv[1]
    kw = {}
    for arg in sys.argv[2:]:
        k, v = arg.split("=", 1)
        try:
            v = int(v)
        except ValueError:
            pass
        kw[k] = v
    open(out, "w").write(G(**kw).text())
```
